```python
import torch

def _softmax(x, axis=-1):
    return torch.softmax(x, dim=axis)
def _gelu(x):
    return torch.nn.functional.gelu(x, approximate="tanh")
def _silu(x):
    return torch.nn.functional.silu(x)
def _sigmoid(x):
    return torch.sigmoid(x)
def _layernorm(x, axis=-1, eps=1e-5):
    m = x.mean(dim=axis, keepdim=True)
    v = x.var(dim=axis, keepdim=True, unbiased=False)
    return (x - m) / torch.sqrt(v + eps)
def _scatter_add(tgt, idx, src, axis=0):
    return tgt.clone().index_add_(axis, idx, src)
def _segment_sum(src, seg, n):
    out = torch.zeros((n,) + src.shape[1:], dtype=src.dtype)
    return out.index_add_(0, seg, src)
def _pad(x, pw):
    flat = tuple(v for pair in reversed(pw) for v in pair)
    return torch.nn.functional.pad(x, flat)

kernel_name = 'parallel_sum__sliding_block__dense_activation_relu__prompt'

def setup_inputs():

    _w = (lambda a: (lambda t: t.to(torch.bfloat16) if t.is_floating_point() else t)(torch.as_tensor(a)))
    def _A_setup():
        B, S, D = 1, 2048, 512
        return {
            "x": _w((lambda *s: torch.randn(*s, dtype=torch.bfloat16) * 0.05)(B, S, D)),
            "wqkv": _w((lambda *s: torch.randn(*s, dtype=torch.bfloat16) * 0.05)(D, 3 * D)),
            "wo": _w((lambda *s: torch.randn(*s, dtype=torch.bfloat16) * 0.1)(D, D)),
        }
    _A_in = _A_setup()

    def _B_setup():
        B, S, D, Dff = 1, 2048, 512, 1792
        return {
            "x": _w((lambda *s: torch.randn(*s, dtype=torch.bfloat16) * 0.05)(B, S, D)),
            "w1": _w((lambda *s: torch.randn(*s, dtype=torch.bfloat16) * 0.05)(D, Dff)),
            "w2": _w((lambda *s: torch.randn(*s, dtype=torch.bfloat16) * 0.05)(Dff, D)),
        }
    _B_in = _B_setup()

    return {
        "A_x": _A_in["x"],
        "A_wqkv": _A_in["wqkv"],
        "A_wo": _A_in["wo"],
        "B_x": _B_in["x"],
        "B_w1": _B_in["w1"],
        "B_w2": _B_in["w2"],
    }

def reference(A_x, A_wqkv, A_wo, B_x, B_w1, B_w2):
    def _A_ref(x, wqkv, wo):
        B, S, D = x.shape
        H = 32; Dh = D // H; W = 256
        qkv = (lambda x, *d: x.permute(*d))((x @ wqkv).reshape(B, S, 3, H, Dh), 2, 0, 3, 1, 4)
        q, k, v = qkv[0], qkv[1], qkv[2]
        scores = torch.einsum("bhqd,bhkd->bhqk", q, k) * (Dh ** -0.5)
        idx = torch.arange(S)
        mask = (idx[:, None] - idx[None, :] >= 0) & (idx[:, None] - idx[None, :] < W)
        scores = torch.where(mask[None, None], scores, -1e9)
        p = _softmax(scores, axis=-1)
        o = torch.einsum("bhqk,bhkd->bhqd", p, v)
        return (lambda x, *d: x.permute(*d))(o, 0, 2, 1, 3).reshape(B, S, D) @ wo

    def _B_ref(x, w1, w2):
        h = torch.einsum("bsd,df->bsf", x, w1)
        zero = torch.zeros_like(h)
        h = torch.maximum(h, zero)
        return torch.einsum("bsf,fd->bsd", h, w2)

    x = A_x
    xn = _layernorm(x, axis=-1)
    return x + _A_ref(xn, A_wqkv, A_wo) + _B_ref(xn, B_w1, B_w2)
```

```python
class Em:
    def __init__(self):
        self.lines = []
        self.vm = []
        self.lg = []
    def __call__(self, s):
        for l in s.split("\n"):
            l = l.strip()
            if l: self.lines.append(("" if l.endswith(":") else "  ") + l)
    def c(self, s):
        self.lines.append("  ; " + s)
    def vmem(self, s, tag):
        self(s); self.vm.append(tag)
    def vwait(self, tag, extra=""):
        tags = tag if isinstance(tag, list) else [tag]
        idx = [i for i, t in enumerate(self.vm) if t in tags]
        if not idx: return False
        last = idx[-1]
        n = len(self.vm) - last - 1
        assert n <= 63
        self(f"s_waitcnt vmcnt({n}) {extra}".strip())
        self.vm = self.vm[last + 1:]
        return True
    def vwait_all(self):
        self("s_waitcnt vmcnt(0)"); self.vm = []
    def lds(self, s, tag):
        self(s); self.lg.append(tag)
    def lwait(self, tag):
        tags = tag if isinstance(tag, list) else [tag]
        idx = [i for i, t in enumerate(self.lg) if t in tags]
        if not idx: return False
        last = idx[-1]
        n = len(self.lg) - last - 1
        n = min(n, 15)
        self(f"s_waitcnt lgkmcnt({n})")
        self.lg = self.lg[len(self.lg) - n:] if n else []
        return True
    def lwait_all(self):
        self("s_waitcnt lgkmcnt(0)"); self.lg = []
    def text(self):
        return "\n".join(self.lines) + "\n"

def vr(a, n=1):
    return f"v{a}" if n == 1 else f"v[{a}:{a+n-1}]"
def sr(a, n=1):
    return f"s{a}" if n == 1 else f"s[{a}:{a+n-1}]"

def srd(e, s, base, nbytes):
    e(f"s_mov_b32 s{s}, s{base}")
    e(f"s_and_b32 s{s+1}, s{base+1}, 0xffff")
    e(f"s_mov_b32 s{s+2}, {nbytes:#x}")
    e(f"s_mov_b32 s{s+3}, 0x20000")

def kd(name, vgpr, sgpr=102, accum=None):
    if accum is None: accum = min(256, (vgpr + 3) // 4 * 4)
    return f""".amdhsa_kernel {name}
  .amdhsa_next_free_vgpr {vgpr}
  .amdhsa_next_free_sgpr {sgpr}
  .amdhsa_accum_offset {accum}
  .amdhsa_group_segment_fixed_size 0
  .amdhsa_kernarg_size 72
  .amdhsa_user_sgpr_count 2
  .amdhsa_user_sgpr_kernarg_segment_ptr 1
  .amdhsa_system_sgpr_workgroup_id_x 1
.end_amdhsa_kernel
"""
```

```python
from emit import *

WS_Q, WS_K, WS_V, WS_H, WS_O = 0, 0x200000, 0x400000, 0x600000, 0xD00000
WS_BYTES = 0x1000000
REG = 7168
STAGE = 4 * REG
NSLOT = 5
K1_LDS = STAGE * NSLOT

def gen_k1(opt):
    e = Em()
    name = "k1_kernel"
    e(f"{name}:")
    e("s_cmp_ge_u32 s2, 256")
    e("s_cbranch_scc1 K1_END")
    e("s_load_dwordx4 s[4:7], s[0:1], 0")
    e("s_load_dwordx2 s[8:9], s[0:1], 32")
    e("s_load_dwordx2 s[10:11], s[0:1], 64")
    e("v_lshrrev_b32 v1, 6, v0")
    e("v_and_b32 v0, 63, v0")
    e("v_readfirstlane_b32 s14, v1")
    e("""s_and_b32 s12, s2, 1
    s_lshl_b32 s12, s12, 3
    s_lshr_b32 s15, s2, 5
    s_add_u32 s12, s12, s15
    s_bfe_u32 s13, s2, 0x20001
    s_lshl_b32 s13, s13, 2
    s_bfe_u32 s15, s2, 0x20003
    s_add_u32 s13, s13, s15""")
    e("s_cmp_ge_u32 s14, 4")
    e("s_waitcnt lgkmcnt(0)")
    e("s_cbranch_scc1 K1_LOADER")

    X = lambda ks, r: 128 + (ks * 2 + r) * 4
    ACC = lambda s, r: 24 + (s * 2 + r) * 4
    F = lambda f: 4 + (f % 5) * 4
    srd(e, 16, 4, 2048 * 1024)
    srd(e, 20, 10, WS_BYTES)
    e("""v_and_b32 v1, 15, v0
    v_lshlrev_b32 v1, 10, v1
    v_lshrrev_b32 v2, 4, v0
    v_lshl_add_u32 v1, v2, 4, v1
    s_lshl_b32 s24, s12, 17
    s_lshl_b32 s25, s14, 15
    s_add_u32 s24, s24, s25
    s_add_u32 s25, s24, 0x4000""")
    for ks in range(16):
        for r in range(2):
            e.vmem(f"buffer_load_dwordx4 {vr(X(ks,r),4)}, v1, s[16:19], s{24+r} offen offset:{ks*64}", ("x", ks))
    e("""v_lshrrev_b32 v4, 2, v0
    v_and_b32 v5, 3, v0
    v_lshlrev_b32 v5, 3, v5
    v_and_b32 v6, 1, v2
    v_lshlrev_b32 v6, 5, v6
    v_lshl_add_u32 v1, v4, 6, v5
    v_add_u32 v1, v1, v6
    v_xor_b32 v2, 32, v1
    v_mul_u32_u24 v3, 224, v4
    v_add_u32 v3, v3, v5
    v_add_u32 v3, 3072, v3
    s_mov_b32 s26, 0x3f803f80""")
    SUM = lambda r, a: 24 + r * 4 + a
    SQ = lambda r, a: 24 + r * 4 + 2 + a
    for ks in range(16):
        e.vwait(("x", ks))
        for r in range(2):
            for q in range(4):
                x = X(ks, r) + q
                a = q & 1
                first = (ks == 0 and q < 2)
                e(f"v_dot2_f32_bf16 v{SUM(r,a)}, v{x}, s26, {'0' if first else 'v%d' % SUM(r,a)}")
                e(f"v_dot2_f32_bf16 v{SQ(r,a)}, v{x}, v{x}, {'0' if first else 'v%d' % SQ(r,a)}")
    e("s_nop 3")
    for b in (24, 26, 28, 30): e(f"v_add_f32 v{b}, v{b}, v{b+1}")
    for sw in ("v_permlane16_swap_b32", "v_permlane32_swap_b32"):
        for b in (24, 26, 28, 30): e(f"v_mov_b32 v{b+1}, v{b}")
        e("s_nop 1")
        for b in (24, 26, 28, 30): e(f"{sw} v{b}, v{b+1}")
        e("s_nop 1")
        for b in (24, 26, 28, 30): e(f"v_add_f32 v{b}, v{b}, v{b+1}")
    e("s_mov_b32 s27, 0x3b000000")
    e("s_mov_b32 s28, 0x3727c5ac")
    for r in range(2):
        s_, q_ = 24 + 4 * r, 26 + 4 * r
        rs, nb = 32 + 4 * r, 34 + 4 * r
        e(f"v_mul_f32 v{s_}, s27, v{s_}")
        e(f"v_mul_f32 v{q_}, s27, v{q_}")
        e(f"v_fma_f32 v{q_}, -v{s_}, v{s_}, v{q_}")
        e(f"v_max_f32 v{q_}, 0, v{q_}")
        e(f"v_add_f32 v{q_}, s28, v{q_}")
        e(f"v_rsq_f32 v{rs}, v{q_}")
        e("s_nop 0")
        e(f"v_mul_f32 v{nb}, v{s_}, v{rs}")
        e(f"v_sub_f32 v{nb}, 0, v{nb}")
    e("s_mov_b32 s29, 0xffff0000")
    for ks in range(16):
        for r in range(2):
            rs, nb = 32 + 4 * r, 34 + 4 * r
            T = 40
            for q in range(4):
                x = X(ks, r) + q
                e(f"v_lshlrev_b32 v{T+2*q}, 16, v{x}")
                e(f"v_and_b32 v{T+2*q+1}, s29, v{x}")
            for q in range(4):
                e(f"v_pk_fma_f32 v[{T+2*q}:{T+2*q+1}], v[{T+2*q}:{T+2*q+1}], v[{rs}:{rs+1}], v[{nb}:{nb+1}] op_sel_hi:[1,0,0]")
            for q in range(4):
                x = X(ks, r) + q
                e(f"v_cvt_pk_bf16_f32 v{x}, v{T+2*q}, v{T+2*q+1}")
    NF = 16 * 13
    def rd(f):
        ks, s = divmod(f, 13)
        kk = ks & 1
        for q in range(2):
            hw = 2 * kk + q
            if s < 6:
                P, hs = divmod(s, 2)
                a, off = (1 + hs), hw * REG + P * 1024
            else:
                a, off = 3, hw * REG + (s - 6) * 32
            yield f"ds_read_b64_tr_b16 v[{F(f)+2*q}:{F(f)+2*q+1}], v{a} offset:{off}"
    def stage_switch(S):
        if S > 0:
            d = STAGE if S % NSLOT else -(NSLOT - 1) * STAGE
            for a in (1, 2, 3):
                e(f"v_add_u32 v{a}, {d & 0xffffffff:#x}, v{a}")
        e("s_barrier")
    LA = 4
    stage_switch(0)
    for f in range(LA):
        for r_ in rd(f): e.lds(r_, f)
    for f in range(NF):
        ks, s = divmod(f, 13)
        nxt = f + LA
        if nxt < NF and nxt % 26 == 0: stage_switch(nxt // 26)
        e.lwait(f)
        rds = list(rd(nxt)) if nxt < NF else [None, None]
        for r in range(2):
            acc = vr(ACC(s, r), 4)
            cin = "0" if ks == 0 else acc
            xa, wf = vr(X(ks, r), 4), vr(F(f), 4)
            if 4 <= s < 6: e(f"v_mfma_f32_16x16x32_bf16 {acc}, {xa}, {wf}, {cin}")
            else:          e(f"v_mfma_f32_16x16x32_bf16 {acc}, {wf}, {xa}, {cin}")
            if rds[r]: e.lds(rds[r], nxt)
    e("v_lshlrev_b32 v1, 4, v0")
    e("v_mov_b32 v2, 0x3eb8aa3b")
    e("""s_lshl_b32 s24, s12, 2
    s_add_u32 s24, s24, s14
    s_lshl_b32 s25, s13, 7
    s_add_u32 s25, s25, s24
    s_lshl_b32 s25, s25, 10
    s_mul_i32 s26, s24, 112
    s_mul_i32 s27, s13, 7
    s_add_u32 s26, s26, s27
    s_lshl_b32 s26, s26, 10""")
    e(f"s_add_u32 s26, s26, {WS_H:#x}")
    st = opt.get("k1_store", "")
    for s in range(13):
        T = 128 + 4 * s
        if s == 12: e("s_nop 4")
        if s < 2:
            for r in range(2):
                a = ACC(s, r)
                for h in range(2):
                    e(f"v_pk_mul_f32 v[{a+2*h}:{a+2*h+1}], v[{a+2*h}:{a+2*h+1}], v[2:3] op_sel_hi:[1,0]")
        for r in range(2):
            a = ACC(s, r)
            for h in range(2):
                e(f"v_cvt_pk_bf16_f32 v{T+2*r+h}, v{a+2*h}, v{a+2*h+1}")
        if s >= 6:
            for q in range(4): e(f"v_pk_max_i16 v{T+q}, v{T+q}, 0")
        if s < 6:
            P, hs = divmod(s, 2)
            e(f"s_add_u32 s28, s25, {P*0x200000 + hs*0x10000:#x}")
        else:
            e(f"s_add_u32 s28, s26, {(s-6)*1024}")
        e("s_nop 0")
        sw = "v_permlane32_swap_b32" if 4 <= s < 6 else "v_permlane16_swap_b32"
        e(f"{sw} v{T}, v{T+2}")
        e(f"{sw} v{T+1}, v{T+3}")
        e(f"buffer_store_dwordx4 {vr(T,4)}, v1, s[20:23], s28 offen {st}")
    e("s_endpgm")

    e("K1_LOADER:")
    e.vm = []
    srd(e, 16, 6, 512 * 3072)
    srd(e, 20, 8, 512 * 3584)
    e("s_sub_u32 s14, s14, 4")
    e("""v_lshrrev_b32 v2, 4, v0
    v_bfe_u32 v3, v0, 2, 2
    v_lshl_add_u32 v3, v2, 3, v3
    v_mul_u32_u24 v1, 3072, v3
    v_and_b32 v4, 1, v2
    v_lshlrev_b32 v4, 1, v4
    v_and_b32 v5, 3, v0
    v_xor_b32 v4, v4, v5
    v_lshl_add_u32 v1, v4, 4, v1""")
    for t in range(4):
        e(f"v_add_u32 v2, {64*t}, v0")
        e("v_mul_u32_u24 v3, 4682, v2")
        e("v_lshrrev_b32 v3, 16, v3")
        e("v_mul_u32_u24 v4, 14, v3")
        e("v_sub_u32 v4, v2, v4")
        e("v_lshrrev_b32 v5, 2, v3")
        e("v_and_b32 v6, 3, v3")
        e("v_lshl_add_u32 v5, v5, 3, v6")
        e(f"v_mul_u32_u24 v{8+t}, 3584, v5")
        e(f"v_lshl_add_u32 v{8+t}, v4, 4, v{8+t}")
        if t: e(f"v_subrev_u32 v{8+t}, {t*1024}, v{8+t}")
        if t == 3:
            e("v_mov_b32 v5, 0x80000000")
            e("v_cmp_gt_u32 vcc, 32, v0")
            e("s_nop 1")
            e(f"v_cndmask_b32 v{8+t}, v5, v{8+t}, vcc")
    e("""s_lshr_b32 s24, s14, 1
    s_lshl_b32 s24, s24, 5
    s_and_b32 s25, s14, 1
    s_lshl_b32 s25, s25, 2
    s_add_u32 s24, s24, s25
    s_mul_i32 s26, s24, 3072
    s_lshl_b32 s27, s13, 6
    s_add_u32 s26, s26, s27
    s_mul_i32 s27, s24, 3584
    s_mul_i32 s28, s13, 224
    s_add_u32 s27, s27, s28""")
    e(f"s_mul_i32 s28, s14, {REG}")
    def issue(S):
        sl = S % NSLOT
        e(f"s_add_u32 m0, s28, {sl*STAGE}")
        e(f"s_add_u32 s29, s26, {S*64*3072}")
        for P in range(3):
            e.vmem(f"buffer_load_dwordx4 v1, s[16:19], s29 offen offset:{P*1024} lds", S)
        e(f"s_add_u32 m0, s28, {sl*STAGE+3072}")
        e(f"s_add_u32 s29, s27, {S*64*3584}")
        for t in range(4):
            e.vmem(f"buffer_load_dwordx4 v{8+t}, s[20:23], s29 offen offset:{t*1024} lds", S)
    for S in range(NSLOT): issue(S)
    for S in range(8):
        e.vwait(S)
        e("s_barrier")
        if S >= 2 and S + 3 < 8: issue(S + 3)
    e("K1_END:")
    e("s_endpgm")
    return name, e.text(), kd(name, 256), (256, 512, K1_LDS)
```

```python
from emit import *
from k1 import WS_Q, WS_K, WS_V, WS_H, WS_O, WS_BYTES

WREG = 20480
K2_LDS = 8 * WREG
NEG = 0xf149f2ca

def gen_k2(opt):
    e = Em()
    name = "k2_kernel"
    e(f"{name}:")
    e("s_cmp_ge_u32 s2, 256")
    e("s_cbranch_scc1 K2_END")
    e("s_load_dwordx2 s[4:5], s[0:1], 0")
    e("s_load_dwordx2 s[6:7], s[0:1], 16")
    e("s_load_dwordx4 s[8:11], s[0:1], 40")
    e("s_load_dwordx4 s[12:15], s[0:1], 56")
    e("v_lshrrev_b32 v1, 6, v0")
    e("v_and_b32 v0, 63, v0")
    e("v_readfirstlane_b32 s18, v1")
    e("""s_and_b32 s16, s2, 7
    s_lshr_b32 s17, s2, 3
    s_lshl_b32 s19, s16, 3
    s_add_u32 s19, s19, s18
    s_lshl_b32 s20, s16, 2
    s_lshr_b32 s21, s17, 3
    s_add_u32 s20, s20, s21
    s_and_b32 s21, s17, 7
    s_add_u32 s22, s19, 1
    s_min_u32 s22, s22, 9""")
    e("v_lshlrev_b32 v1, 4, v0")
    e("""v_lshrrev_b32 v7, 5, v0
    v_and_b32 v8, 15, v0
    v_lshlrev_b32 v8, 4, v8
    v_lshl_add_u32 v2, v7, 8, v8""")
    e("""v_lshrrev_b32 v8, 3, v0
    v_and_b32 v9, 7, v0
    v_bfe_u32 v10, v0, 4, 1
    v_lshlrev_b32 v10, 2, v10
    v_xor_b32 v9, v9, v10
    v_lshlrev_b32 v9, 4, v9
    v_lshl_add_u32 v3, v8, 10, v9
    v_lshrrev_b32 v10, 2, v8
    v_lshlrev_b32 v10, 3, v10
    v_and_b32 v8, 3, v8
    v_add_u32 v8, v8, v10
    v_lshl_add_u32 v4, v8, 10, v9""")
    e("s_waitcnt lgkmcnt(0)")
    srd(e, 24, 14, WS_BYTES)
    Q, K, V = 12, (lambda u: 16 + 4 * u), (lambda u, g: 52 + 8 * u + 4 * g)
    S = lambda b: 124 + 16 * b
    P, O = 172, 188
    ASL = [208, 224, 240, 16, 32]
    ACC = lambda tb, nb: 52 + (tb * 2 + nb) * 16
    BF = lambda kk, nb: 124 + (kk * 2 + nb) * 4
    e("s_lshl_b32 s44, s17, 6")
    e("s_add_u32 s45, s44, s19")
    e("s_lshl_b32 s45, s45, 10")
    e.vmem(f"buffer_load_dwordx4 {vr(Q,4)}, v1, s[24:27], s45 offen", "Q")
    for u in range(9):
        e(f"s_sub_i32 s{46+u}, s19, {u}")
        e(f"s_max_i32 s{46+u}, s{46+u}, 0")
        e(f"s_add_u32 s{46+u}, s{46+u}, s44")
        e(f"s_lshl_b32 s{46+u}, s{46+u}, 10")
        e(f"s_add_u32 s45, s{46+u}, {WS_K:#x}")
        e.vmem(f"buffer_load_dwordx4 {vr(K(u),4)}, v1, s[24:27], s45 offen", ("K", u))
    for r in range(52, 124): e(f"v_mov_b32 v{r}, 0x3f803f80")
    e("s_mov_b32 exec_lo, 0xffff")
    e("s_mov_b32 exec_hi, 0xffff")
    for u in range(9):
        e(f"s_add_u32 s45, s{46+u}, {WS_V:#x}")
        for g in range(2):
            e.vmem(f"buffer_load_dwordx4 {vr(V(u,g),4)}, v2, s[24:27], s45 offen offset:{g*512}", ("V", u))
    e("s_mov_b64 exec, -1")
    srd(e, 28, 8, 1792 * 1024)
    srd(e, 32, 6, 512 * 1024)
    srd(e, 36, 4, 2048 * 1024)
    srd(e, 40, 10, 2048 * 1024)
    e(f"s_mul_i32 s56, s18, {WREG}")
    e("s_lshl_b32 s61, s21, 7")
    e(f"s_mul_i32 s57, s18, {7*32*1024}")
    e("s_add_u32 s57, s57, s61")
    e("s_lshl_b32 s58, s18, 16")
    e("s_add_u32 s58, s58, s61")
    e(f"s_mul_i32 s59, s20, {2*112*1024}")
    e(f"s_mul_i32 s61, s18, {14*1024}")
    e("s_add_u32 s59, s59, s61")
    e(f"s_add_u32 s59, s59, {WS_H:#x}")
    e("s_lshl_b32 s60, s20, 16")
    e("s_lshl_b32 s61, s18, 12")
    e("s_add_u32 s60, s60, s61")
    e(f"s_add_u32 s60, s60, {WS_O:#x}")
    def issueB(sg):
        sl = sg % 5
        for a in range(4):
            e(f"s_add_u32 m0, s56, {sl*4096 + a*1024}")
            if sg < 7:
                e(f"s_add_u32 s61, s57, {(32*sg + 8*a)*1024}")
                e.vmem("buffer_load_dwordx4 v3, s[28:31], s61 offen lds", ("B", sg))
            else:
                e(f"s_add_u32 s61, s58, {(32*(sg-7) + 16*(a>>1) + 4*(a&1))*1024}")
                e.vmem("buffer_load_dwordx4 v4, s[32:35], s61 offen lds", ("B", sg))
    AF = lambda sg, tb, kk: ASL[sg % 5] + (tb * 2 + kk) * 4
    def issueA(sg):
        for tb in range(2):
            if sg < 7:
                e(f"s_add_u32 s61, s59, {(tb*112 + 2*sg)*1024}")
            else:
                e(f"s_add_u32 s61, s60, {(tb*32 + 2*(sg-7))*1024}")
            for kk in range(2):
                e.vmem(f"buffer_load_dwordx4 {vr(AF(sg,tb,kk),4)}, v1, s[24:27], s61 offen offset:{kk*1024}" + (" sc1" if sg >= 7 else ""), ("A", sg))
    for sg in range(5): issueB(sg)
    for sg in range(3): issueA(sg)
    e("""v_lshrrev_b32 v7, 3, v0
    v_and_b32 v8, 7, v0
    v_lshlrev_b32 v8, 4, v8
    v_lshl_add_u32 v204, v7, 10, v8
    s_lshl_b32 s62, s20, 16
    s_lshl_b32 s61, s18, 13
    s_add_u32 s62, s62, s61
    s_lshl_b32 s61, s21, 7
    s_add_u32 s62, s62, s61""")
    e.vmem("buffer_load_dwordx4 v[8:11], v204, s[36:39], s62 offen", "xres")
    e("""v_lshrrev_b32 v5, 5, v0
    v_lshlrev_b32 v5, 3, v5
    v_bfe_u32 v6, v0, 2, 2
    v_add_u32 v5, v5, v6
    v_lshlrev_b32 v5, 7, v5
    v_lshrrev_b32 v6, 1, v6
    v_lshl_add_u32 v5, v6, 6, v5
    v_bfe_u32 v6, v0, 4, 1
    v_lshl_add_u32 v5, v6, 5, v5
    v_and_b32 v6, 3, v0
    v_lshl_add_u32 v5, v6, 3, v5
    v_add_u32 v5, s56, v5
    v_xor_b32 v6, 64, v5""")
    for j in range(16):
        b0 = (j >> 2) * 8 + (j & 3)
        e(f"s_mov_b32 s{64+2*j}, {(0xffffffff << b0) & 0xffffffff:#x}")
        e(f"s_mov_b32 s{65+2*j}, {(0xffffffff << (b0+4)) & 0xffffffff:#x}")
    e(f"v_mov_b32 v205, {NEG:#x}")
    def fill(buf, val, diag):
        for j in range(16):
            a, b = ("v205", val) if diag else (val, "v205")
            e(f"v_cndmask_b32 v{S(buf)+j}, {a}, {b}, s[{64+2*j}:{65+2*j}]")
    def smfma(u, buf, cin):
        e.vwait(["Q", ("K", u)])
        e(f"v_mfma_f32_32x32x16_bf16 {vr(S(buf),16)}, {vr(K(u),4)}, {vr(Q,4)}, {cin}")
    e("v_mov_b32 v206, v205")
    e("v_mov_b32 v207, v205")
    fill(0, "0", True)
    e("s_nop 1")
    smfma(0, 0, vr(S(0), 16))
    smfma(1, 1, "0")
    for u in range(9):
        if u + 2 <= 8:
            if u + 2 == 8:
                fill((u + 2) % 3, "0", False); e("s_nop 1")
                smfma(u + 2, (u + 2) % 3, vr(S((u + 2) % 3), 16))
            else:
                smfma(u + 2, (u + 2) % 3, "0")
        if u == 0: e("s_nop 9")
        if u == 8: e("s_nop 3")
        for q in range(8):
            m = 206 + (q & 1)
            e(f"v_max3_f32 v{m}, v{S(u%3)+2*q}, v{S(u%3)+2*q+1}, v{m}")
        if u < 8:
            e(f"s_cmp_eq_u32 s22, {u+1}")
            e("s_cbranch_scc1 K2_P1DONE")
    e("K2_P1DONE:")
    e("v_max_f32 v206, v206, v207")
    e("v_mov_b32 v207, v206")
    e("s_nop 1")
    e("v_permlane32_swap_b32 v206, v207")
    e("s_nop 1")
    e("v_max_f32 v206, v206, v207")
    e("v_sub_f32 v7, 0, v206")
    e("s_nop 7")
    CB = S(2)
    for j in range(16): e(f"v_mov_b32 v{CB+j}, v7")
    fill(0, "v7", True)
    e("s_nop 1")
    smfma(0, 0, vr(S(0), 16))
    for u in range(9):
        s = S(u % 2)
        if u + 1 <= 8:
            nb_ = (u + 1) % 2
            if u + 1 == 8:
                fill(nb_, "v7", False); e("s_nop 1")
                smfma(u + 1, nb_, vr(S(nb_), 16))
            else:
                smfma(u + 1, nb_, vr(CB, 16))
        if u == 0: e("s_nop 10")
        for j in range(8): e(f"v_exp_f32 v{s+j}, v{s+j}")
        for q in range(4): e(f"v_cvt_pk_bf16_f32 v{P+q}, v{s+2*q}, v{s+2*q+1}")
        for j in range(8, 16): e(f"v_exp_f32 v{s+j}, v{s+j}")
        e.vwait(("V", u))
        e(f"v_mfma_f32_32x32x16_bf16 {vr(O,16)}, {vr(V(u,0),4)}, {vr(P,4)}, {'0' if u == 0 else vr(O,16)}")
        for q in range(4, 8): e(f"v_cvt_pk_bf16_f32 v{P+q}, v{s+2*q}, v{s+2*q+1}")
        e("s_nop 1")
        e(f"v_mfma_f32_32x32x16_bf16 {vr(O,16)}, {vr(V(u,1),4)}, {vr(P+4,4)}, {vr(O,16)}")
        if u < 8:
            e(f"s_cmp_eq_u32 s22, {u+1}")
            e("s_cbranch_scc1 K2_P2DONE")
    e("K2_P2DONE:")
    e("s_lshl_b32 s45, s19, 5")
    e("s_add_u32 s45, s45, s17")
    e("s_lshl_b32 s45, s45, 10")
    e(f"s_add_u32 s45, s45, {WS_O:#x}")
    e("s_nop 8")
    e(f"v_rcp_f32 v7, v{O+8}")
    e("s_nop 0")
    for j in range(8): e(f"v_mul_f32 v{O+j}, v{O+j}, v7")
    for q in range(4): e(f"v_cvt_pk_bf16_f32 v{P+q}, v{O+2*q}, v{O+2*q+1}")
    e.vmem(f"buffer_store_dwordx4 {vr(P,4)}, v1, s[24:27], s45 offen sc1", "ostore")
    issueA(3); issueA(4)
    def step(sg):
        e.vwait([("B", sg), ("A", sg)])
        sl = sg % 5
        for kk in range(2):
            for nb in range(2):
                for q in range(2):
                    e.lds(f"ds_read_b64_tr_b16 v[{BF(kk,nb)+2*q}:{BF(kk,nb)+2*q+1}], v{5+nb} offset:{sl*4096 + kk*2048 + q*512}", (kk, nb))
        for kk in range(2):
            for nb in range(2):
                e.lwait((kk, nb))
                for tb in range(2):
                    acc = vr(ACC(tb, nb), 16)
                    cin = "0" if (sg == 0 and kk == 0) else acc
                    e(f"v_mfma_f32_32x32x16_bf16 {acc}, {vr(BF(kk,nb),4)}, {vr(AF(sg,tb,kk),4)}, {cin}")
        if sg + 5 <= 8: issueB(sg + 5)
        if sg + 5 <= 6: issueA(sg + 5)
    step(0)
    e.vwait("ostore")
    e("s_barrier")
    e("s_cmp_lg_u32 s18, 0")
    e("s_cbranch_scc1 K2_NOFLAG")
    e("s_lshl_b32 s61, s16, 5")
    e("s_add_u32 s61, s61, s17")
    e("v_mov_b32 v206, s61")
    e("v_mov_b32 v207, 1")
    e("s_mov_b64 exec, 1")
    e("global_store_byte v206, v207, s[12:13] sc0 sc1")
    e("s_mov_b64 exec, -1")
    e("K2_NOFLAG:")
    for sg in range(1, 5): step(sg)
    e("s_lshl_b32 s61, s16, 5")
    e("s_lshl_b32 s63, s18, 2")
    e("s_add_u32 s61, s61, s63")
    e("v_mov_b32 v206, s61")
    e("s_mov_b32 s63, 0x40000")
    e("K2_POLL:")
    e("global_load_dword v207, v206, s[12:13] sc0 sc1")
    e.vwait_all()
    e("v_readfirstlane_b32 s61, v207")
    e("s_cmp_eq_u32 s61, 0x01010101")
    e("s_cbranch_scc1 K2_POLLED")
    e("s_sleep 2")
    e("s_sub_u32 s63, s63, 1")
    e("s_cmp_lg_u32 s63, 0")
    e("s_cbranch_scc1 K2_POLL")
    e("K2_POLLED:")
    issueA(7); issueA(8)
    for sg in range(5, 9): step(sg)
    e("""v_and_b32 v12, 31, v0
    v_lshlrev_b32 v12, 8, v12
    v_lshrrev_b32 v13, 5, v0
    v_and_b32 v14, 15, v0
    v_xor_b32 v13, v13, v14
    v_lshl_add_u32 v12, v13, 4, v12
    v_add_u32 v12, s56, v12""")
    for nb in range(2):
        for a in range(4):
            e(f"v_xor_b32 v{16+nb*4+a}, {(8*nb+2*a)*16}, v12")
    e("s_nop 4")
    for tb in range(2):
        for nb in range(2):
            for a in range(4):
                e(f"ds_write_b128 v{16+nb*4+a}, {vr(ACC(tb,nb)+4*a,4)} offset:{tb*8192}")
    e("""v_lshrrev_b32 v12, 3, v0
    s_lshl_b32 s61, s18, 3
    v_add_u32 v12, s61, v12
    v_and_b32 v13, 15, v12
    v_and_b32 v14, 7, v0
    v_lshlrev_b32 v14, 1, v14
    v_xor_b32 v13, v13, v14
    v_lshlrev_b32 v12, 8, v12
    v_lshl_add_u32 v24, v13, 4, v12
    v_xor_b32 v25, 16, v24""")
    for g in range(1, 3):
        e(f"v_add_u32 v{24+2*g}, {g*3*WREG}, v24")
        e(f"v_add_u32 v{25+2*g}, {g*3*WREG}, v25")
    e("s_waitcnt lgkmcnt(0)")
    e("s_barrier")
    R = lambda src, h: 124 + src * 8 + h * 4
    for src in range(8):
        g, o = divmod(src, 3)
        for h in range(2):
            e.lds(f"ds_read_b128 {vr(R(src,h),4)}, v{24+2*g+h} offset:{o*WREG}", src)
    e("s_mov_b32 s61, 0xffff0000")
    for q in range(4):
        e(f"v_lshlrev_b32 v{32+2*q}, 16, v{8+q}")
        e(f"v_and_b32 v{33+2*q}, s61, v{8+q}")
    for src in range(8):
        e.lwait(src)
        for q in range(4):
            e(f"v_pk_add_f32 v[{32+2*q}:{33+2*q}], v[{32+2*q}:{33+2*q}], v[{R(src,0)+2*q}:{R(src,0)+2*q+1}]")
    for q in range(4): e(f"v_cvt_pk_bf16_f32 v{40+q}, v{32+2*q}, v{33+2*q}")
    e("buffer_store_dwordx4 v[40:43], v204, s[40:43], s62 offen")
    e("K2_END:")
    e("s_endpgm")
    return name, e.text(), kd(name, 256), (256, 512, K2_LDS)
```

```python
import sys, json
from k1 import gen_k1
from k2 import gen_k2
NAME = "parallel_sum__sliding_block__dense_activation_relu__prompt"
def build(opt, path):
    ks = [gen_k1(opt), gen_k2(opt)]
    ref = open(f"cdna_kernels/{NAME}.s.ref").read().split("\n")
    head = [l for l in ref if l.startswith(";") and "@launch" not in l and "Override launch" not in l and "grid=ceil" not in l]
    s = "\n".join(head[:10]) + "\n"
    for n, t, k, (g, b, lds) in ks:
        s += f"; @launch kernel={n} grid=({g},1,1) block=({b},1,1) lds={lds}\n"
    s += '.amdgcn_target "amdgcn-amd-amdhsa--gfx950"\n.text\n'
    for n, t, k, _ in ks:
        s += f".globl {n}\n.p2align 8\n.type {n},@function\n" + t
    s += '.section .rodata,"a"\n'
    for n, t, k, _ in ks:
        s += ".p2align 6\n" + k
    open(path, "w").write(s)
if __name__ == "__main__":
    opt = json.loads(sys.argv[2]) if len(sys.argv) > 2 else {}
    build(opt, sys.argv[1] if len(sys.argv) > 1 else f"cdna_kernels/{NAME}.s")
```

```python
class Em:
    def __init__(self):
        self.lines = []
        self.vm = []
        self.lg = []
        self.stamps = None
    def __call__(self, s):
        for l in s.split("\n"):
            l = l.strip()
            if l: self.lines.append(("" if l.endswith(":") else "  ") + l)
    def c(self, s):
        self.lines.append("  ; " + s)
    def vmem(self, s, tag):
        self(s); self.vm.append(tag)
    def vwait(self, tag, extra=""):
        tags = tag if isinstance(tag, list) else [tag]
        idx = [i for i, t in enumerate(self.vm) if t in tags]
        if not idx: return False
        last = idx[-1]
        n = len(self.vm) - last - 1
        assert n <= 63
        self(f"s_waitcnt vmcnt({n}) {extra}".strip())
        self.vm = self.vm[last + 1:]
        return True
    def vwait_all(self):
        self("s_waitcnt vmcnt(0)"); self.vm = []
    def lds(self, s, tag):
        self(s); self.lg.append(tag)
    def lwait(self, tag):
        tags = tag if isinstance(tag, list) else [tag]
        idx = [i for i, t in enumerate(self.lg) if t in tags]
        if not idx: return False
        last = idx[-1]
        n = len(self.lg) - last - 1
        n = min(n, 15)
        self(f"s_waitcnt lgkmcnt({n})")
        self.lg = self.lg[len(self.lg) - n:] if n else []
        return True
    def lwait_all(self):
        self("s_waitcnt lgkmcnt(0)"); self.lg = []
    def stamp(self, i):
        if self.stamps is None: return
        b = self.stamps + 2 * i
        self(f"s_memtime s[{b}:{b+1}]")
    def stamp_rt(self, i):
        if self.stamps is None: return
        b = self.stamps + 2 * i
        self(f"s_memrealtime s[{b}:{b+1}]")
    def stamp_dump(self, n, wsbase, wave_s, off, vt=2):
        if self.stamps is None: return
        self("s_waitcnt lgkmcnt(0)")
        self("s_mov_b64 exec, 1")
        self(f"s_lshl_b32 s3, s2, 3")
        self(f"s_add_u32 s3, s3, s{wave_s}")
        self(f"s_lshl_b32 s3, s3, 6")
        self(f"s_add_u32 s3, s3, {off:#x}")
        self(f"v_mov_b32 v{vt}, s3")
        for i in range(n):
            self(f"v_mov_b32 v{vt+1}, s{self.stamps+2*i}")
            self(f"global_store_dword v{vt}, v{vt+1}, s[{wsbase}:{wsbase+1}] offset:{4*i}")
            self("s_nop 1")
        self("s_waitcnt vmcnt(0)")
    def text(self):
        return "\n".join(self.lines) + "\n"

def vr(a, n=1):
    return f"v{a}" if n == 1 else f"v[{a}:{a+n-1}]"
def sr(a, n=1):
    return f"s{a}" if n == 1 else f"s[{a}:{a+n-1}]"

def srd(e, s, base, nbytes):
    e(f"s_mov_b32 s{s}, s{base}")
    e(f"s_and_b32 s{s+1}, s{base+1}, 0xffff")
    e(f"s_mov_b32 s{s+2}, {nbytes:#x}")
    e(f"s_mov_b32 s{s+3}, 0x20000")

def kd(name, vgpr, sgpr=102, accum=None):
    if accum is None: accum = min(256, (vgpr + 3) // 4 * 4)
    return f""".amdhsa_kernel {name}
  .amdhsa_next_free_vgpr {vgpr}
  .amdhsa_next_free_sgpr {sgpr}
  .amdhsa_accum_offset {accum}
  .amdhsa_group_segment_fixed_size 0
  .amdhsa_kernarg_size 72
  .amdhsa_user_sgpr_count 2
  .amdhsa_user_sgpr_kernarg_segment_ptr 1
  .amdhsa_system_sgpr_workgroup_id_x 1
.end_amdhsa_kernel
"""
```

```python
from emit import *

WS_Q, WS_K, WS_V, WS_H, WS_O = 0, 0x200000, 0x400000, 0x600000, 0xD00000
WS_RS = 0xF00000
WS_CS = 0xF10000
WS_EP1 = 0xF80000
WS_EP2 = 0xF80100
WS_FL = 0xF90000
WS_BYTES = 0x1000000
EPC = 0x9E3779B9
WSL = 13312
NWS = 7
XSL = 16384
NXS = 4
L_X = NWS * WSL
L_ST = L_X + NXS * XSL
K1_LDS = L_ST + 3072
pk = lambda a: f"v[{a}:{a+1}]"

def reduce32(e, regs, tmp):
    for ctl in ("quad_perm:[1,0,3,2]", "quad_perm:[2,3,0,1]", "row_half_mirror", "row_mirror"):
        e("s_nop 1")
        for r in regs: e(f"v_add_f32_dpp v{r}, v{r}, v{r} {ctl} row_mask:0xf bank_mask:0xf")
    for r, t in zip(regs, tmp): e(f"v_mov_b32 v{t}, v{r}")
    e("s_nop 1")
    for r, t in zip(regs, tmp): e(f"v_permlane16_swap_b32 v{r}, v{t}")
    e("s_nop 1")
    for r, t in zip(regs, tmp): e(f"v_add_f32 v{r}, v{r}, v{t}")

def gen_k1(opt):
    e = Em()
    cst = (lambda i: None) if opt.get('ck') else (lambda i: e.stamp(i))
    name = "k1_kernel"
    LA = opt.get("la", 5)
    if opt.get("stamps"): e.stamps = 40
    e(f"{name}:")
    e("s_cmp_ge_u32 s2, 256")
    e("s_cbranch_scc1 K1_END")
    e.stamp_rt(0); e.stamp(1)
    e("s_load_dwordx4 s[4:7], s[0:1], 0")
    e("s_load_dwordx2 s[8:9], s[0:1], 32")
    e("s_load_dwordx4 s[28:31], s[0:1], 56")
    e("v_lshrrev_b32 v1, 6, v0")
    e("v_and_b32 v0, 63, v0")
    e("v_readfirstlane_b32 s14, v1")
    e("""s_and_b32 s12, s2, 1
    s_lshl_b32 s12, s12, 3
    s_lshr_b32 s15, s2, 5
    s_add_u32 s12, s12, s15
    s_bfe_u32 s10, s2, 0x20001
    s_bfe_u32 s11, s2, 0x20003
    s_lshl_b32 s13, s10, 2
    s_add_u32 s13, s13, s11
    s_lshl_b32 s15, s10, 1
    s_and_b32 s3, s11, 1
    s_add_u32 s15, s15, s3""")
    if opt.get("swap", 1): e("s_xor_b32 s14, s14, 4")
    e("s_cmp_ge_u32 s14, 4")
    e("s_waitcnt lgkmcnt(0)")
    e("s_cselect_b32 s80, 1, 0")
    e(f"s_add_u32 s72, s30, {WS_EP1:#x}")
    e("s_addc_u32 s73, s31, 0")
    srd(e, 20, 8, 512 * 3584)
    e("s_cmp_ge_u32 s11, 2")
    e("s_cselect_b32 s16, s8, s6")
    e("s_cselect_b32 s17, s9, s7")
    e(f"s_mov_b32 s18, {512*3072}")
    e(f"s_cselect_b32 s18, s22, s18")
    e("s_mov_b32 s60, 3072")
    e("s_cselect_b32 s60, 3584, s60")
    e("s_mov_b32 s61, 128")
    e("s_cselect_b32 s61, 384, s61")
    e("s_mov_b32 s62, 1024")
    e(f"s_cselect_b32 s62, 128, s62")
    e("s_and_b32 s17, s17, 0xffff")
    e("s_mov_b32 s19, 0x20000")
    e("s_mul_i32 s61, s61, s15")
    srd(e, 24, 4, 2048 * 1024)
    srd(e, 32, 30, WS_BYTES)
    e("s_lshl_b32 s69, s60, 5")
    e("s_cmp_eq_u32 s80, 0")
    e("s_cbranch_scc1 K1_CONS")
    e.vm = []; e.lg = []
    e("s_sub_u32 s14, s14, 4")
    e(f"""v_and_b32 v5, 7, v0
    v_lshrrev_b32 v2, 3, v0
    v_lshrrev_b32 v3, 4, v0
    v_xor_b32 v3, v3, v5
    v_lshlrev_b32 v2, 10, v2
    v_lshl_add_u32 v12, v3, 4, v2
    v_xor_b32 v13, 64, v12
    s_lshl_b32 s65, s12, 17
    s_lshl_b32 s3, s14, 15
    s_add_u32 s65, s65, s3
    s_lshl_b32 s67, s14, 12
    s_add_u32 s67, s67, {L_X}""")
    def issueX(P):
        e(f"s_add_u32 m0, s67, {(P % NXS)*XSL}")
        e(f"s_add_u32 s74, s65, {P*128}")
        for a in range(4):
            e.vmem(f"buffer_load_dwordx4 v{12+(a&1)}, s[24:27], s74 offen offset:{a*1024} lds", ("x", P))
            if a < 3: e(f"s_add_u32 s74, s74, {8192-1024}")
    cst(2)
    issueX(0)
    e("""v_lshrrev_b32 v2, 5, v0
    v_bfe_u32 v3, v0, 3, 2
    v_lshl_add_u32 v3, v2, 3, v3
    v_mul_lo_u32 v1, v3, s60
    v_bfe_u32 v4, v0, 4, 2
    v_lshlrev_b32 v4, 1, v4
    v_xor_b32 v4, v4, v5
    v_lshl_add_u32 v1, v4, 4, v1""")
    e("""v_bfe_u32 v2, v0, 3, 2
    v_lshlrev_b32 v2, 3, v2
    v_lshrrev_b32 v3, 5, v0
    v_lshl_add_u32 v2, v3, 2, v2
    v_bfe_u32 v3, v0, 1, 2
    v_add_u32 v2, v2, v3
    v_mul_u32_u24 v8, 3584, v2
    v_and_b32 v3, 1, v0
    v_lshl_add_u32 v8, v3, 4, v8""")
    e(f"""s_and_b32 s39, s14, 1
    s_mul_i32 s63, s39, s60
    s_lshl_b32 s63, s63, 2
    s_add_u32 s63, s63, s61
    s_lshl_b32 s64, s13, 5
    s_add_u32 s64, s64, 3072
    s_mul_i32 s66, s39, 6144
    s_lshl_b32 s68, s60, 4""")
    curq = [0]
    def issueW(p):
        sl = p % NWS
        if curq[0] == 0:
            e(f"s_mov_b32 m0, {sl*WSL + 12288}")
            e(f"s_add_u32 s74, s64, {p*32*3584}")
            e.vmem("buffer_load_dwordx4 v8, s[20:23], s74 offen lds", ("w", p))
        e(f"s_mul_i32 s74, s69, {p}")
        e("s_add_u32 s74, s74, s63")
        for ah in range(2):
            e(f"s_add_u32 m0, s66, {sl*WSL + ah*3072}")
            if ah: e("s_add_u32 s74, s74, s68")
            e("s_add_u32 s75, s74, s62")
            e.vmem("buffer_load_dwordx4 v1, s[16:19], s74 offen lds", ("w", p))
            e(f"s_add_u32 m0, s66, {sl*WSL + ah*3072 + 1024}")
            e("s_add_u32 s76, s75, s62")
            e.vmem("buffer_load_dwordx4 v1, s[16:19], s75 offen lds", ("w", p))
            e(f"s_add_u32 m0, s66, {sl*WSL + ah*3072 + 2048}")
            e("s_nop 0")
            e.vmem("buffer_load_dwordx4 v1, s[16:19], s76 offen lds", ("w", p))
    L0, U, A, CL, C0, C1, VE = 16, 24, 40, 48, 64, 72, 80
    def statload(hw):
        e(f"v_mov_b32 v{VE}, 0")
        e(f"s_mov_b32 s85, {WS_EP1:#x}")
        e.vmem(f"buffer_load_dword v{VE}, v{VE}, s[32:35], s85 offen sc1", "rs")
        e(f"""v_lshrrev_b32 v4, 5, v0
        v_and_b32 v6, 31, v0
        v_lshlrev_b32 v6, 4, v6
        v_lshl_add_u32 v6, v4, 10, v6
        v_lshlrev_b32 v{VE+1}, 4, v4
        s_lshl_b32 s84, s12, 7
        s_lshl_b32 s85, s13, 3
        s_add_u32 s84, s84, s85
        s_add_u32 s84, s84, {2*hw}
        s_lshl_b32 s85, s84, 10""")
        e.vmem(f"buffer_load_dwordx4 {vr(L0,4)}, v6, s[24:27], s85 offen", "rs")
        e.vmem(f"buffer_load_dwordx4 {vr(L0+4,4)}, v6, s[24:27], s85 offen offset:512", "rs")
        e("""v_lshrrev_b32 v2, 3, v0
        v_lshlrev_b32 v3, 4, v5""")
        if hw < 3:
            e(f"""v_mul_lo_u32 v4, v2, s60
            s_mul_i32 s37, s12, s69
            s_add_u32 s37, s37, s61
            s_mul_i32 s38, s62, {hw}
            s_add_u32 s37, s37, s38
            v_add_u32 v4, v4, v3
            s_lshl_b32 s77, s60, 3""")
            for t in range(4):
                e.vmem(f"buffer_load_dwordx4 {vr(CL+4*t,4)}, v4, s[16:19], s37 offen", "cl")
                if t < 3: e(f"s_add_u32 s37, s37, s77")
            e("""s_add_u32 s38, s38, s61
            s_lshl_b32 s38, s38, 1
            s_cmp_ge_u32 s11, 2
            s_cselect_b32 s77, 6144, 0
            s_add_u32 s38, s38, s77""")
        else:
            e("""v_mul_u32_u24 v4, 3584, v2
            v_add_u32 v4, v4, v3
            s_lshl_b32 s38, s10, 7
            s_add_u32 s38, s38, 3072""")
            e(f"s_mul_i32 s37, s12, {32*3584}")
            e("s_add_u32 s37, s37, s38")
            for t in range(4):
                e.vmem(f"buffer_load_dwordx4 {vr(CL+4*t,4)}, v4, s[20:23], s37 offen", "cl")
                if t < 3: e(f"s_add_u32 s37, s37, {8*3584}")
            e("s_lshl_b32 s38, s38, 1")
            e("s_add_u32 s38, s38, 6144")
        e(f"""s_mov_b32 s86, 0xffff0000
        s_mov_b32 s87, 0x3b000000
        s_lshl_b32 s84, s84, 4
        s_add_u32 s84, s84, {WS_RS:#x}""")
    def piece(n):
        if n == 0:
            e.vwait("rs")
            for q in range(8):
                e(f"v_lshlrev_b32 v{U+2*q}, 16, v{L0+q}")
                e(f"v_and_b32 v{U+2*q+1}, s86, v{L0+q}")
            for q in range(4): e(f"v_pk_add_f32 {pk(A+2*q)}, {pk(U+4*q)}, {pk(U+4*q+2)}")
            e(f"v_pk_add_f32 {pk(A)}, {pk(A)}, {pk(A+2)}")
            e(f"v_pk_add_f32 {pk(A+4)}, {pk(A+4)}, {pk(A+6)}")
            e(f"v_pk_add_f32 {pk(A)}, {pk(A)}, {pk(A+4)}")
            e(f"v_add_f32 v{A}, v{A}, v{A+1}")
            reduce32(e, [A], [A + 1])
            e(f"v_mul_f32 v{A}, s87, v{A}")
            e(f"v_add_u32 v{A+6}, {EPC:#x}, v{VE}")
        if n == 1:
            for q in range(8): e(f"v_pk_add_f32 {pk(U+2*q)}, {pk(U+2*q)}, {pk(A)} op_sel_hi:[1,0] neg_lo:[0,1] neg_hi:[0,1]")
            e(f"v_pk_mul_f32 {pk(A+2)}, {pk(U)}, {pk(U)}")
            e(f"v_pk_mul_f32 {pk(A+4)}, {pk(U+2)}, {pk(U+2)}")
            for q in range(2, 8): e(f"v_pk_fma_f32 {pk(A+2+2*(q&1))}, {pk(U+2*q)}, {pk(U+2*q)}, {pk(A+2+2*(q&1))}")
            e(f"v_pk_add_f32 {pk(A+4)}, {pk(A+2)}, {pk(A+4)}")
            e(f"v_add_f32 v{A+4}, v{A+4}, v{A+5}")
            reduce32(e, [A + 4], [A + 5])
            e(f"v_mov_b32 v{A+5}, 0x3727c5ac")
            e(f"v_fma_f32 v{A+4}, v{A+4}, s87, v{A+5}")
            e(f"v_rsq_f32 v{A+4}, v{A+4}")
            e(f"v_readfirstlane_b32 s71, v{A+6}")
            e(f"v_mov_b32 v{A+7}, v{A+6}")
            e(f"v_mul_f32 v{A+5}, v{A}, v{A+4}")
            e(f"v_sub_f32 v{A+5}, 0, v{A+5}")
            e("s_mov_b32 exec_lo, 1")
            e("s_mov_b32 exec_hi, 1")
            e.vmem(f"buffer_store_dwordx4 {vr(A+4,4)}, v{VE+1}, s[32:35], s84 offen sc1", "st")
            e("s_mov_b64 exec, -1")
        if n == 2:
            e.vwait("cl")
            for q in range(4):
                e(f"v_lshlrev_b32 v{C0+2*q}, 16, v{CL+q}")
                e(f"v_and_b32 v{C0+2*q+1}, s86, v{CL+q}")
            for t in range(1, 4):
                for q in range(4):
                    e(f"v_lshlrev_b32 v{C1+2*q}, 16, v{CL+4*t+q}")
                    e(f"v_and_b32 v{C1+2*q+1}, s86, v{CL+4*t+q}")
                for q in range(4): e(f"v_pk_add_f32 {pk(C0+2*q)}, {pk(C0+2*q)}, {pk(C1+2*q)}")
        if n == 3:
            for q in range(8): e(f"v_add_f32_dpp v{C0+q}, v{C0+q}, v{C0+q} row_ror:8 row_mask:0xf bank_mask:0xf")
            e("s_mov_b32 s36, 0xff00ff00")
            e("s_mov_b32 s37, 0xff00ff00")
            for q in range(4): e(f"v_cndmask_b32 v{C0+q}, v{C0+q}, v{C0+4+q}, s[36:37]")
            for sw in ("v_permlane16_swap_b32", "v_permlane32_swap_b32"):
                for q in range(4): e(f"v_mov_b32 v{C1+q}, v{C0+q}")
                e("s_nop 0")
                for q in range(4): e(f"{sw} v{C0+q}, v{C1+q}")
                for q in range(4): e(f"v_add_f32 v{C0+q}, v{C0+q}, v{C1+q}")
            e("s_mov_b32 s77, 0xff")
            e(f"v_bfe_u32 v{C1+2}, v0, 3, 1")
            for q in range(4): e(f"v_bfi_b32 v{C0+q}, s77, v{A+6}, v{C0+q}")
            e(f"v_lshlrev_b32 v{C1+1}, 5, v5")
            e(f"v_lshl_add_u32 v{C1+1}, v{C1+2}, 4, v{C1+1}")
            e(f"s_mul_i32 s77, s12, {3328*4}")
            e("s_add_u32 s77, s77, s38")
            e(f"s_add_u32 s77, s77, {WS_CS:#x}")
            e("s_mov_b64 exec, 0xffff")
            e.vmem(f"buffer_store_dwordx4 {vr(C0,4)}, v{C1+1}, s[32:35], s77 offen sc1", "st")
            e("s_mov_b64 exec, -1")
    def gather(track):
        e(f"s_mov_b32 s77, {WS_CS:#x}")
        for g in range(16):
            s_ = f"buffer_load_dwordx4 {vr(96+4*g,4)}, v15, s[32:35], s77 offen sc1"
            e.vmem(s_, "cs") if track else e(s_)
            e(f"s_add_u32 s77, s77, {3328*4}")
        e("s_lshl_b32 s77, s12, 11")
        e(f"s_add_u32 s77, s77, {WS_RS:#x}")
        for h in range(2):
            s_ = f"buffer_load_dwordx4 {vr(160+4*h,4)}, v14, s[32:35], s77 offen offset:{h*1024} sc1"
            e.vmem(s_, "cs") if track else e(s_)
    def path(par, q, post, bump=False):
        e.vm = [("x", 0)] * 4; curq[0] = q
        issueW(par)
        cst(3)
        WL = opt.get("wl", 3); XL = opt.get("xl", 2)
        statload(2 * par + q)
        for P in range(1, XL): issueX(P)
        for p in range(par + 2, WL, 2): issueW(p)
        SK = opt.get("sk", [-1, -2, 0, 2, 5, 8, 12, 15])
        GK = opt.get("gk", 9)
        for k in range(16):
            w = []
            if k % 2 == par: w.append(("w", k))
            if k % 2 == 0: w.append(("x", k // 2))
            e.vwait(w)
            if k in SK: e.stamp(2 + SK.index(k))
            e("s_barrier")
            if (k + WL) % 2 == par and k + WL <= 15: issueW(k + WL)
            if k % 2 == 0 and k // 2 + XL <= 7: issueX(k // 2 + XL)
            if opt.get("pf2", 1) and k == opt.get("pf2k", 12):
                hw = 2 * par + q
                e("s_load_dwordx2 s[90:91], s[0:1], 16")
                e("s_load_dwordx2 s[92:93], s[0:1], 40")
                e("v_lshlrev_b32 v84, 7, v0")
                e("s_lshr_b32 s88, s2, 3")
                e("s_waitcnt lgkmcnt(0)")
                jobs = [("w2", j) for j in range(7)] + [("wo", j) for j in range(2)]
                for n_, (m_, j) in enumerate(jobs):
                    if n_ % 4 != (3 - hw): continue
                    if m_ == "w2":
                        e("s_mul_i32 s89, s88, 57344")
                        e(f"s_add_u32 s89, s89, {j*8192}")
                        e("v_add_u32 v85, s89, v84")
                        e.vmem("global_load_dword v86, v85, s[92:93]", "pf2")
                    else:
                        e("s_lshl_b32 s89, s88, 14")
                        e(f"s_add_u32 s89, s89, {j*8192}")
                        e("v_add_u32 v85, s89, v84")
                        e.vmem("global_load_dword v86, v85, s[90:91]", "pf2")
            PK = opt.get("pk", [0, 1, 2, 3])
            for n_, kk_ in enumerate(PK):
                if kk_ == k: piece(n_)
            if post and k == GK:
                e(f"""v_lshrrev_b32 v2, 4, v0
                v_and_b32 v3, 15, v0
                v_lshlrev_b32 v14, 4, v0
                s_cmp_ge_u32 s11, 2
                s_mov_b32 s77, 2048
                s_cselect_b32 s77, 256, s77
                s_lshl_b32 s78, s15, 8
                s_mul_i32 s79, s15, 768
                s_add_u32 s79, s79, {1536*4}
                s_cmp_ge_u32 s11, 2
                s_cselect_b32 s78, s79, s78
                v_mul_lo_u32 v2, v2, s77
                v_lshl_add_u32 v2, v3, 4, v2
                v_add_u32 v2, s78, v2
                s_lshl_b32 s78, s13, 6
                s_add_u32 s78, s78, {3072*4}
                v_and_b32 v3, 3, v0
                v_lshl_add_u32 v3, v3, 4, s78
                v_cmp_gt_u32 vcc, 48, v0
                s_nop 1
                v_cndmask_b32 v15, v3, v2, vcc""")
                gather(True)
            if post and k == 12:
                e("s_setprio 3")
                e("s_mov_b32 s79, 0x20000")
                e.vwait("cs")
                e("K1_CHK:")
                e("v_xor_b32 v2, s71, v96")
                for i in range(97, 160): e(f"v_bitop3_b32 v2, v2, v{i}, s71 bitop3:0xf6")
                e("v_and_b32 v2, 0xff, v2")
                for i in (162, 163, 166, 167): e(f"v_bitop3_b32 v2, v2, v{i}, s71 bitop3:0xf6")
                e("v_cmp_ne_u32 vcc, 0, v2")
                e("s_nop 1")
                e("s_cmp_eq_u64 vcc, 0")
                e("s_cbranch_scc1 K1_GOT")
                e("s_sub_u32 s79, s79, 1")
                e("s_cmp_eq_u32 s79, 0")
                e("s_cbranch_scc1 K1_GOT")
                gather(False)
                e("s_waitcnt vmcnt(0)")
                e("s_branch K1_CHK")
                e("K1_GOT:")
            if post and k == 13:
                e("s_mov_b32 s77, 0xffffff00")
                for i in range(96, 160): e(f"v_and_b32 v{i}, s77, v{i}")
            if post and k == 14:
                for g in range(1, 16):
                    for h in range(2):
                        e(f"v_pk_add_f32 v[{96+2*h}:{97+2*h}], v[{96+2*h}:{97+2*h}], v[{96+4*g+2*h}:{97+4*g+2*h}]")
                e(f"v_add_u32 v2, {L_ST}, v14")
                e("ds_write_b128 v2, v[160:163]")
                e("ds_write_b128 v2, v[164:167] offset:1024")
                e("ds_write_b128 v2, v[96:99] offset:2048")
                e("s_waitcnt lgkmcnt(0)")
        if bump:
            e("s_cmp_lg_u32 s2, 0")
            e("s_cbranch_scc1 K1_NOBUMP")
            e("v_lshlrev_b32 v2, 4, v0")
            e("s_mov_b32 s79, 0x20000")
            e("K1_BCHK:")
            e(f"s_mov_b32 s77, {WS_RS + 8:#x}")
            for g in range(32):
                e(f"buffer_load_dword v{64+g}, v2, s[32:35], s77 offen sc1")
                e("s_add_u32 s77, s77, 1024")
            e("s_waitcnt vmcnt(0)")
            e("v_xor_b32 v3, s71, v64")
            for i in range(65, 96): e(f"v_bitop3_b32 v3, v3, v{i}, s71 bitop3:0xf6")
            e("v_cmp_ne_u32 vcc, 0, v3")
            e("s_sub_u32 s79, s79, 1")
            e("s_cmp_eq_u32 s79, 0")
            e("s_cbranch_scc1 K1_NOBUMP")
            e("s_cmp_lg_u64 vcc, 0")
            e("s_cbranch_scc1 K1_BCHK")
            e("s_mov_b64 exec, 1")
            e("v_mov_b32 v2, s71")
            e("v_mov_b32 v3, 0")
            e("global_store_dword v3, v2, s[72:73] sc1")
            e("K1_NOBUMP:")
        if e.stamps is not None:
            e("s_add_u32 s14, s14, 4")
            e.stamp_dump(10, 30, 14, 0x1000000)
        e("s_endpgm")
    e("s_cmp_eq_u32 s14, 1")
    e("s_cbranch_scc1 K1_LD1")
    e("s_cmp_eq_u32 s14, 2")
    e("s_cbranch_scc1 K1_LD2")
    e("s_cmp_eq_u32 s14, 3")
    e("s_cbranch_scc1 K1_LD3")
    path(0, 0, True)
    e("K1_LD1:")
    path(0, 1, False, True)
    e("K1_LD2:")
    path(1, 0, False)
    e("K1_LD3:")
    path(1, 1, False)
    NFB = LA + 1
    F = lambda f: 8 + (f % NFB) * 4
    XB = 8 + NFB * 4
    XF = lambda p, r: XB + ((p & 1) * 2 + r) * 4
    AB = XB + 16
    ACC = lambda s, r: AB + (s * 2 + r) * 4
    TB = AB + 104
    e("K1_CONS:")
    e.vm = []; e.lg = []
    AW = [1, 2, 3, 4]; AE = 6; AX = [7, 5]
    e(f"""v_lshrrev_b32 v8, 2, v0
    v_lshrrev_b32 v9, 3, v8
    v_mul_u32_u24 v9, 3072, v9
    v_and_b32 v10, 7, v8
    v_lshl_add_u32 v9, v10, 7, v9
    v_and_b32 v10, 3, v0
    v_lshlrev_b32 v10, 3, v10
    v_add_u32 v9, v9, v10
    v_bfe_u32 v11, v0, 3, 2
    v_lshl_add_u32 v1, v11, 5, v9
    v_xor_b32 v2, 32, v1
    v_xor_b32 v3, 64, v1
    v_xor_b32 v4, 96, v1
    v_lshl_add_u32 v6, v8, 5, v10
    v_add_u32 v6, 12288, v6
    v_and_b32 v8, 15, v0
    v_lshrrev_b32 v9, 4, v0
    v_lshrrev_b32 v10, 1, v8
    v_xor_b32 v9, v9, v10
    v_lshlrev_b32 v8, 7, v8
    v_lshl_add_u32 v7, v9, 4, v8
    s_lshl_b32 s85, s14, 12
    s_add_u32 s85, s85, {L_X}
    v_add_u32 v7, s85, v7
    v_xor_b32 v{AX[1]}, 64, v7
""")
    cst(2)
    e("s_cmp_ge_u32 s11, 2")
    e("s_cbranch_scc1 K1_CONS_B")
    NF = 16 * 13
    VATOM = TB + 62
    def consumer(typ):
        e.lg = []
        isV = lambda s: typ == 0 and 8 <= s < 12
        def rd(f):
            p, s = divmod(f, 13)
            for q in range(2):
                if s < 12:
                    G, sub = divmod(s, 4)
                    a, off = AW[sub], q * 6144 + G * 1024
                else:
                    a, off = AE, q * 512
                yield f"ds_read_b64_tr_b16 v[{F(f)+2*q}:{F(f)+2*q+1}], v{a} offset:{off}"
        def kswitch(p):
            if p > 0:
                d = WSL if p % NWS else -(NWS - 1) * WSL
                for a in AW + [AE]: e(f"v_add_u32 v{a}, {d & 0xffffffff:#x}, v{a}")
            CK = opt.get("ck", [])
            if p in CK: e.stamp(2 + CK.index(p))
            e("s_barrier")
            xs = ((p >> 1) % NXS) * XSL
            for r in range(2): e.lds(f"ds_read_b128 {vr(XF(p,r),4)}, v{AX[p&1]} offset:{xs + r*2048}", ("x", p))
        kswitch(0)
        cst(3)
        for f in range(LA):
            for r_ in rd(f): e.lds(r_, f)
        for f in range(NF):
            p, s = divmod(f, 13)
            nxt = f + LA
            if nxt < NF and nxt % 13 == 0: kswitch(nxt // 13)
            e.lwait([f, ("x", p)])
            rds = list(rd(nxt)) if nxt < NF else [None, None]
            for r in range(2):
                acc = vr(ACC(s, r), 4)
                cin = "0" if p == 0 else acc
                xa, wf = vr(XF(p, r), 4), vr(F(f), 4)
                if isV(s): e(f"v_mfma_f32_16x16x32_bf16 {acc}, {xa}, {wf}, {cin}")
                else:      e(f"v_mfma_f32_16x16x32_bf16 {acc}, {wf}, {xa}, {cin}")
                if rds[r]: e.lds(rds[r], nxt)
        cst(4)
        e(f"""v_and_b32 v5, 15, v0
        v_lshrrev_b32 v6, 4, v0
        s_lshl_b32 s84, s14, 9
        s_add_u32 s84, s84, {L_ST}
        v_lshl_add_u32 v1, v5, 4, s84
        v_lshl_add_u32 v2, v6, 6, s84
        v_lshlrev_b32 v3, 4, v6
        v_add_u32 v3, {L_ST+2048}, v3
        v_lshlrev_b32 v4, 2, v5
        v_add_u32 v4, {L_ST+2048}, v4""")
        cst(5)
        RS = lambda r: TB + 2 * r
        RQ = lambda r: TB + 4 + 2 * r
        VS = lambda r, j: TB + 8 + (r * 4 + j) * 2
        VC = lambda i: TB + 24 + i
        csreg = {}
        nxt_cs = 8
        for s in range(13):
            if isV(s): continue
            if nxt_cs + 4 > AB: nxt_cs = TB + 32 if nxt_cs < TB else nxt_cs
            csreg[s] = nxt_cs; nxt_cs += 4
        TT = TB + 64
        assert max(csreg.values()) + 4 <= TB + 64 and TT + 24 <= 256
        for r in range(2): e.lds(f"ds_read_b64 {pk(RS(r))}, v1 offset:{256*r}", "st")
        order = [4, 5, 6, 7, 0, 1, 2, 3, 8, 9, 10, 11, 12] if typ == 0 else list(range(13))
        nonv = [s for s in order if not isV(s)]
        for s in nonv[:5]: e.lds(f"ds_read_b128 {vr(csreg[s],4)}, v3 offset:{64*s}", ("cs", s))
        e("v_lshlrev_b32 v1, 4, v0")
        e("""s_lshl_b32 s84, s12, 2
        s_add_u32 s84, s84, s14
        s_lshl_b32 s85, s15, 8
        s_add_u32 s85, s85, s84
        s_lshl_b32 s85, s85, 10
        s_mul_i32 s86, s84, 112
        s_add_u32 s87, s86, s13
        s_add_u32 s87, s87, 96
        s_lshl_b32 s87, s87, 10
        s_mul_i32 s3, s15, 12
        s_add_u32 s86, s86, s3
        s_lshl_b32 s86, s86, 10""")
        e(f"s_add_u32 s86, s86, {WS_H:#x}")
        e(f"s_add_u32 s87, s87, {WS_H:#x}")
        e.lwait("st")
        if typ == 0:
            e("s_mov_b32 s3, 0x3eb8aa3b")
            for r in range(2):
                e(f"v_mul_f32 v{RQ(r)}, s3, v{RS(r)}")
                e(f"v_mul_f32 v{RQ(r)+1}, s3, v{RS(r)+1}")
        st = opt.get("k1_store", "")
        for n, s in enumerate(order):
            T = TT + 8 + 4 * (n % 4)
            if n == 2:
                for s2 in nonv[5:]: e.lds(f"ds_read_b128 {vr(csreg[s2],4)}, v3 offset:{64*s2}", ("cs", s2))
            if n == 5 and typ == 0:
                for r in range(2):
                    for j in range(4): e.lds(f"ds_read_b64 {pk(VS(r,j))}, v2 offset:{256*r+16*j}", "vst")
                for i in range(4): e.lds(f"ds_read_b32 v{TB+24+2*i}, v4 offset:{64*(8+i)}", "vst")
            e.lwait("vst" if isV(s) else ("cs", s))
            if isV(s):
                c = TB + 24 + 2 * (s - 8)
                for r in range(2):
                    for j in range(4): e(f"v_mul_f32 v{TT+4*r+j}, v{VS(r,j)+1}, v{c}")
                for r in range(2):
                    for j in range(4): e(f"v_fma_f32 v{TT+4*r+j}, v{ACC(s,r)+j}, v{VS(r,j)}, v{TT+4*r+j}")
            else:
                isQ = typ == 0 and s < 4
                for r in range(2):
                    sp = RQ(r) if isQ else RS(r)
                    for h in range(2):
                        e(f"v_pk_mul_f32 {pk(TT+4*r+2*h)}, {pk(csreg[s]+2*h)}, {pk(sp)} op_sel:[0,1] op_sel_hi:[1,1]")
                for r in range(2):
                    sp = RQ(r) if isQ else RS(r)
                    for h in range(2):
                        t = TT + 4 * r + 2 * h
                        e(f"v_pk_fma_f32 {pk(t)}, {pk(ACC(s,r)+2*h)}, {pk(sp)}, {pk(t)} op_sel_hi:[1,0,1]")
            for r in range(2):
                for h in range(2):
                    t = TT + 4 * r + 2 * h
                    e(f"v_cvt_pk_bf16_f32 v{T+2*r+h}, v{t}, v{t+1}")
            isH = typ == 1 or s == 12
            if isH:
                for q in range(4): e(f"v_pk_max_i16 v{T+q}, v{T+q}, 0")
            if s == 12: e("s_mov_b32 s3, s87")
            elif typ == 0:
                G, sub = divmod(s, 4)
                e(f"s_add_u32 s3, s85, {G*0x200000 + sub*0x10000:#x}")
            else: e(f"s_add_u32 s3, s86, {s*1024}")
            e("s_nop 0")
            sw = "v_permlane32_swap_b32" if isV(s) else "v_permlane16_swap_b32"
            e(f"{sw} v{T}, v{T+2}")
            e(f"{sw} v{T+1}, v{T+3}")
            e(f"buffer_store_dwordx4 {vr(T,4)}, v1, s[32:35], s3 offen {opt.get('hst', '') if isH else st}")
        cst(6)
        if e.stamps is not None: e("s_waitcnt vmcnt(0)")
        e.stamp(7); e.stamp_rt(8)
        e.stamp_dump(9, 30, 14, 0x1000000)
        e("s_endpgm")
    consumer(0)
    e("K1_CONS_B:")
    consumer(1)

    e("K1_END:")
    e("s_endpgm")
    return name, e.text(), kd(name, 256), (256, 512, K1_LDS)
```

```python
from emit import *
from k1 import WS_Q, WS_K, WS_V, WS_H, WS_O, WS_BYTES, WS_EP2, WS_FL, EPC, pk

NSL = 7
L_V = 16384
L_MISC = 32768
L_G = 33792
GREG = NSL * 4096
K2_LDS = L_G + 4 * GREG
NEG = 0xf149f2ca

def gen_k2(opt):
    e = Em()
    name = "k2_kernel"
    ST = opt.get("stamps")
    VST = 167
    def stamp(i, rt=False):
        if not ST: return
        e(("s_memrealtime" if rt else "s_memtime") + " s[96:97]")
        e("s_waitcnt lgkmcnt(0)")
        e(f"v_writelane_b32 v{VST}, s96, {i}")
    e(f"{name}:")
    e("s_cmp_ge_u32 s2, 256")
    e("s_cbranch_scc1 K2_END")
    stamp(0, True); stamp(1)
    e("s_load_dwordx2 s[4:5], s[0:1], 0")
    e("s_load_dwordx2 s[6:7], s[0:1], 16")
    e("s_load_dwordx4 s[8:11], s[0:1], 40")
    e("s_load_dwordx2 s[14:15], s[0:1], 64")
    e("v_lshrrev_b32 v1, 6, v0")
    e("v_and_b32 v0, 63, v0")
    e("v_readfirstlane_b32 s18, v1")
    e("""s_and_b32 s3, s2, 1
    s_lshl_b32 s3, s3, 2
    s_bfe_u32 s17, s2, 0x20001
    s_add_u32 s23, s3, s17
    s_lshr_b32 s21, s2, 6
    s_add_u32 s16, s3, s21
    s_lshl_b32 s20, s23, 2
    s_add_u32 s20, s20, s21
    s_bfe_u32 s21, s2, 0x30003
    s_lshl_b32 s17, s17, 3
    s_add_u32 s17, s17, s21
    v_lshlrev_b32 v1, 4, v0
    s_and_b32 s19, s18, 3
    s_cmp_ge_u32 s18, 8""")
    e("s_waitcnt lgkmcnt(0)")
    e("s_mov_b32 s24, s14")
    e("s_mov_b32 s26, 0x1000000")
    e("s_mov_b32 s27, 0x20000")
    e("s_cselect_b32 s3, 1, 0")
    e("s_and_b32 s25, s15, 0xffff")
    e("s_cmp_lg_u32 s3, 0")
    e("s_cbranch_scc1 K2_G")

    Q = lambda uu: 8
    K = lambda u: 12 + 4 * u
    V = lambda u, g: 48 + ((u & 1) * 2 + g) * 4
    S = lambda b: 64 + 16 * b
    P, O = 112, 120
    VNEG, M0_, M1_, NM = 136, 137, 138, 139
    e("s_lshl_b32 s44, s17, 6")
    e("s_lshl_b32 s45, s16, 3")
    e("s_lshl_b32 s46, s18, 1")
    e("s_add_u32 s45, s45, s46")
    e("s_lshl_b32 s47, s18, 11")
    for t in range(2):
        e(f"s_add_u32 s48, s45, {t}")
        e("s_sub_i32 s48, s48, 8")
        e("s_max_i32 s48, s48, 0")
        e("s_add_u32 s48, s48, s44")
        e("s_lshl_b32 s48, s48, 10")
        e(f"s_add_u32 m0, s47, {t*1024}")
        e(f"s_add_u32 s49, s48, {WS_K:#x}")
        e.vmem("buffer_load_dwordx4 v1, s[24:27], s49 offen lds", "kv")
        e(f"s_add_u32 m0, s47, {L_V + t*1024}")
        e(f"s_add_u32 s49, s48, {WS_V:#x}")
        e.vmem("buffer_load_dwordx4 v1, s[24:27], s49 offen lds", "kv")
    e("s_lshl_b32 s50, s16, 3")
    e("s_add_u32 s50, s50, s18")
    e("s_add_u32 s48, s50, s44")
    e("s_lshl_b32 s48, s48, 10")
    e.vmem(f"buffer_load_dwordx4 {vr(Q(0),4)}, v1, s[24:27], s48 offen", "kv")
    e("v_mov_b32 v2, 0")
    e(f"s_mov_b32 s48, {WS_EP2:#x}")
    e.vmem("buffer_load_dword v3, v2, s[24:27], s48 offen sc1", "kv")
    if opt.get("pfh", 0):
        e("s_cmp_ge_u32 s18, 4")
        e("s_cbranch_scc1 K2_NOPF")
        e(f"s_mul_i32 s48, s20, {2*112*1024}")
        e(f"s_mul_i32 s49, s21, {28*1024}")
        e("s_add_u32 s48, s48, s49")
        e("s_lshl_b32 s49, s18, 13")
        e("s_add_u32 s48, s48, s49")
        e(f"s_add_u32 s48, s48, {WS_H:#x}")
        e("v_lshlrev_b32 v6, 7, v0")
        e("buffer_load_dword v160, v6, s[24:27], s48 offen")
        e("K2_NOPF:")
    for j in range(16):
        b0 = (j >> 2) * 8 + (j & 3)
        e(f"s_mov_b32 s{64+2*j}, {(0xffffffff << b0) & 0xffffffff:#x}")
        e(f"s_mov_b32 s{65+2*j}, {(0xffffffff << (b0+4)) & 0xffffffff:#x}")
    e(f"v_mov_b32 v{VNEG}, {NEG:#x}")
    for r in range(48, 64): e(f"v_mov_b32 v{r}, 0x3f803f80")
    if opt.get('fast', 1):
        e("v_mov_b32 v6, 0xffff")
        e("v_mov_b32 v7, 0xffff0000")
        for q in range(8):
            e(f"v_cndmask_b32 v{140+q}, 0, v6, s[{64+4*q}:{65+4*q}]")
            e(f"v_cndmask_b32 v{S(2)}, 0, v7, s[{66+4*q}:{67+4*q}]")
            e(f"v_or_b32 v{140+q}, v{140+q}, v{S(2)}")
    e("s_add_u32 s22, s50, 1")
    e("s_min_u32 s22, s22, 9")
    e("s_lshl_b32 s46, s18, 10")
    e("v_add_u32 v4, s46, v1")
    e(f"""v_lshrrev_b32 v5, 5, v0
    v_and_b32 v6, 15, v0
    v_lshlrev_b32 v6, 4, v6
    v_lshl_add_u32 v5, v5, 8, v6
    s_add_u32 s46, s46, {L_V}
    v_add_u32 v5, s46, v5""")
    e("s_waitcnt vmcnt(0)") if not opt.get("pfh", 0) else None
    if opt.get("pfh", 0):
        e("s_cmp_ge_u32 s18, 4")
        e("s_cbranch_scc1 K2_W0")
        e("s_waitcnt vmcnt(1)")
        e("s_branch K2_W1")
        e("K2_W0:")
        e("s_waitcnt vmcnt(0)")
        e("K2_W1:")
    e(f"v_add_u32 v3, {EPC:#x}, v3")
    e(f"v_mov_b32 v6, {L_MISC}")
    e("v_mov_b32 v7, 0")
    e("v_readfirstlane_b32 s51, v3")
    e("ds_write_b32 v6, v3")
    e("ds_write_b32 v6, v7 offset:4")
    e("s_waitcnt lgkmcnt(0)")
    stamp(2)
    e("s_barrier")
    if opt.get("aprio", 0): e("s_setprio 2")
    stamp(3)
    def fill(buf, val, diag):
        for j in range(16):
            a, b = (f"v{VNEG}", val) if diag else (val, f"v{VNEG}")
            e(f"v_cndmask_b32 v{S(buf)+j}, {a}, {b}, s[{64+2*j}:{65+2*j}]")
    def smfma(u, buf, cin):
        e.lwait(("K", u))
        e(f"v_mfma_f32_32x32x16_bf16 {vr(S(buf),16)}, {vr(K(u),4)}, {vr(Q(0),4)}, {cin}")
    def vread(u):
        e("s_mov_b32 exec_lo, 0xffff")
        e("s_mov_b32 exec_hi, 0xffff")
        for g in range(2): e.lds(f"ds_read_b128 {vr(V(u,g),4)}, v5 offset:{(8-u)*1024 + g*512}", ("V", u))
        e("s_mov_b64 exec, -1")
    FAST = opt.get("fast", 1)
    MK = 140
    PD, PFR = S(2), S(2) + 8
    if FAST:
        e.lg = []
        V8 = lambda g: V(1, g)
        order = [0, 8, 1, 2, 3, 4, 5, 6, 7]
        for u in order: e.lds(f"ds_read_b128 {vr(K(u),4)}, v4 offset:{(8-u)*1024}", ("K", u))
        vread(0)
        e("s_mov_b32 exec_lo, 0xffff")
        e("s_mov_b32 exec_hi, 0xffff")
        for g in range(2): e.lds(f"ds_read_b128 {vr(V8(g),4)}, v5 offset:{g*512}", ("V", 8))
        e("s_mov_b64 exec, -1")
        smfma(0, 0, "0"); smfma(8, 2, "0"); smfma(1, 1, "0")
        e("s_nop 10")
        s0 = S(0)
        for j in range(16): e(f"v_cndmask_b32 v{s0+j}, v{S(2)+j}, v{s0+j}, s[{64+2*j}:{65+2*j}]")
        for j in range(16): e(f"v_exp_f32 v{s0+j}, v{s0+j}")
        for q in range(8): e(f"v_cvt_pk_bf16_f32 v{P+q}, v{s0+2*q}, v{s0+2*q+1}")
        for q in range(8): e(f"v_and_b32 v{PD+q}, v{MK+q}, v{P+q}")
        e.lwait(("V", 8))
        e(f"v_mfma_f32_32x32x16_bf16 {vr(O,16)}, {vr(V(0,0),4)}, {vr(PD,4)}, 0")
        for q in range(8): e(f"v_bfi_b32 v{PFR+q}, v{MK+q}, 0, v{P+q}")
        e(f"v_mfma_f32_32x32x16_bf16 {vr(O,16)}, {vr(V(0,1),4)}, {vr(PD+4,4)}, {vr(O,16)}")
        e("s_cmp_lt_u32 s22, 9")
        e("s_cbranch_scc1 K2_NOFAR")
        e(f"v_mfma_f32_32x32x16_bf16 {vr(O,16)}, {vr(V8(0),4)}, {vr(PFR,4)}, {vr(O,16)}")
        e(f"v_mfma_f32_32x32x16_bf16 {vr(O,16)}, {vr(V8(1),4)}, {vr(PFR+4,4)}, {vr(O,16)}")
        e("K2_NOFAR:")
        vread(1)
        e("s_cmp_eq_u32 s22, 1")
        e("s_cbranch_scc1 K2_FCHK")
        def pv(u, g): e(f"v_mfma_f32_32x32x16_bf16 {vr(O,16)}, {vr(V(u,g),4)}, {vr(P+4*g,4)}, {vr(O,16)}")
        for u in range(1, 8):
            s_ = S(u % 2)
            if u + 1 <= 7: smfma(u + 1, (u + 1) % 2, "0")
            for j in range(2): e(f"v_exp_f32 v{s_+j}, v{s_+j}")
            if u > 1: pv(u - 1, 1)
            if u + 1 <= 7: vread(u + 1)
            for j in range(2, 8): e(f"v_exp_f32 v{s_+j}, v{s_+j}")
            for q in range(4): e(f"v_cvt_pk_bf16_f32 v{P+q}, v{s_+2*q}, v{s_+2*q+1}")
            for j in range(8, 10): e(f"v_exp_f32 v{s_+j}, v{s_+j}")
            e.lwait(("V", u))
            pv(u, 0)
            for j in range(10, 16): e(f"v_exp_f32 v{s_+j}, v{s_+j}")
            for q in range(4, 8): e(f"v_cvt_pk_bf16_f32 v{P+q}, v{s_+2*q}, v{s_+2*q+1}")
            if u < 7:
                e(f"s_cmp_eq_u32 s22, {u+1}")
                e(f"s_cbranch_scc1 K2_FX{u&1}")
        e("K2_FX1:")
        e("s_nop 1")
        pv(1, 1)
        e("s_branch K2_FCHK")
        e("K2_FX0:")
        e("s_nop 1")
        pv(0, 1)
        e("K2_FCHK:")
        e("s_mov_b32 s45, 0x1f800000")
        e("s_mov_b32 s46, 0x5f800000")
        e("s_mov_b32 s47, 0x7f800000")
        e("s_waitcnt lgkmcnt(0)")
        e("s_nop 7")
        e(f"v_add_f32 v6, |v{O}|, |v{O+1}|")
        e(f"v_add_f32 v7, |v{O+2}|, |v{O+3}|")
        e(f"v_add_f32 v2, |v{O+4}|, |v{O+5}|")
        e(f"v_add_f32 v3, |v{O+6}|, |v{O+7}|")
        e(f"v_cmp_le_f32 s[48:49], s45, v{O+8}")
        e(f"v_cmp_ge_f32 s[54:55], s46, v{O+8}")
        e("v_add_f32 v6, v6, v7")
        e("v_add_f32 v2, v2, v3")
        e("v_add_f32 v6, v6, v2")
        e("s_and_b64 s[48:49], s[48:49], s[54:55]")
        e("v_cmp_gt_f32 vcc, s47, v6")
        e("s_nop 0")
        e("s_and_b64 s[48:49], s[48:49], vcc")
        e("s_cmp_eq_u64 s[48:49], -1")
        if opt.get("forceslow"): e("s_cmp_eq_u32 s48, 12345")
        e("s_cbranch_scc1 K2_P2DONE")
    e("K2_SLOW:")
    e.lg = []
    for u in range(9): e.lds(f"ds_read_b128 {vr(K(u),4)}, v4 offset:{(8-u)*1024}", ("K", u))
    e(f"v_mov_b32 v{M0_}, v{VNEG}")
    e(f"v_mov_b32 v{M1_}, v{VNEG}")
    fill(0, "0", True)
    e("s_nop 1")
    smfma(0, 0, vr(S(0), 16))
    smfma(1, 1, "0")
    for u in range(9):
        if u + 2 <= 8:
            if u + 2 == 8:
                fill((u + 2) % 3, "0", False); e("s_nop 1")
                smfma(u + 2, (u + 2) % 3, vr(S((u + 2) % 3), 16))
            else:
                smfma(u + 2, (u + 2) % 3, "0")
        if u == 0: e("s_nop 9")
        for q in range(8):
            m = M0_ + (q & 1)
            e(f"v_max3_f32 v{m}, v{S(u%3)+2*q}, v{S(u%3)+2*q+1}, v{m}")
        if u < 8:
            e(f"s_cmp_eq_u32 s22, {u+1}")
            e("s_cbranch_scc1 K2_P1DONE")
    e("K2_P1DONE:")
    e.lwait_all()
    vread(0)
    e(f"v_max_f32 v{M0_}, v{M0_}, v{M1_}")
    e(f"v_mov_b32 v{M1_}, v{M0_}")
    e("s_nop 1")
    e(f"v_permlane32_swap_b32 v{M0_}, v{M1_}")
    e("s_nop 1")
    e(f"v_max_f32 v{M0_}, v{M0_}, v{M1_}")
    e(f"v_sub_f32 v{NM}, 0, v{M0_}")
    e("s_nop 3")
    CB = S(2)
    for j in range(16): e(f"v_mov_b32 v{CB+j}, v{NM}")
    fill(0, f"v{NM}", True)
    e("s_nop 1")
    smfma(0, 0, vr(S(0), 16))
    for u in range(9):
        s = S(u % 2)
        if u + 1 <= 8:
            nb_ = (u + 1) % 2
            if u + 1 == 8:
                fill(nb_, f"v{NM}", False); e("s_nop 1")
                smfma(u + 1, nb_, vr(S(nb_), 16))
            else:
                smfma(u + 1, nb_, vr(CB, 16))
            vread(u + 1)
        if u == 0: e("s_nop 6")
        for j in range(8): e(f"v_exp_f32 v{s+j}, v{s+j}")
        for q in range(4): e(f"v_cvt_pk_bf16_f32 v{P+q}, v{s+2*q}, v{s+2*q+1}")
        for j in range(8, 16): e(f"v_exp_f32 v{s+j}, v{s+j}")
        e.lwait(("V", u))
        e(f"v_mfma_f32_32x32x16_bf16 {vr(O,16)}, {vr(V(u,0),4)}, {vr(P,4)}, {'0' if u == 0 else vr(O,16)}")
        for q in range(4, 8): e(f"v_cvt_pk_bf16_f32 v{P+q}, v{s+2*q}, v{s+2*q+1}")
        e("s_nop 1")
        e(f"v_mfma_f32_32x32x16_bf16 {vr(O,16)}, {vr(V(u,1),4)}, {vr(P+4,4)}, {vr(O,16)}")
        if u < 8:
            e(f"s_cmp_eq_u32 s22, {u+1}")
            e("s_cbranch_scc1 K2_P2DONE")
    e("K2_P2DONE:")
    e("s_lshl_b32 s45, s50, 5")
    e("s_add_u32 s45, s45, s17")
    e("s_lshl_b32 s45, s45, 10")
    e(f"s_add_u32 s45, s45, {WS_O:#x}")
    e("s_nop 8")
    e(f"v_rcp_f32 v7, v{O+8}")
    e("s_nop 0")
    for j in range(8): e(f"v_mul_f32 v{O+j}, v{O+j}, v7")
    for q in range(4): e(f"v_cvt_pk_bf16_f32 v{P+q}, v{O+2*q}, v{O+2*q+1}")
    e(f"buffer_store_dwordx4 {vr(P,4)}, v1, s[24:27], s45 offen sc1")
    stamp(4)
    e("s_waitcnt vmcnt(0)")
    e(f"v_mov_b32 v6, {L_MISC}")
    e("v_mov_b32 v7, 1")
    e("s_mov_b64 exec, 1")
    e("ds_add_rtn_u32 v7, v6, v7 offset:4")
    e("s_waitcnt lgkmcnt(0)")
    e("v_readfirstlane_b32 s45, v7")
    e("s_cmp_lg_u32 s45, 7")
    e("s_cbranch_scc1 K2_NOFLAG")
    e("s_lshl_b32 s45, s16, 5")
    e("s_add_u32 s45, s45, s17")
    e("s_lshl_b32 s45, s45, 7")
    e(f"s_add_u32 s45, s45, {WS_FL:#x}")
    e("v_mov_b32 v6, 0")
    e("v_mov_b32 v7, s51")
    e("buffer_store_dword v7, v6, s[24:27], s45 offen sc1")
    e("K2_NOFLAG:")
    e("s_mov_b64 exec, -1")
    stamp(5)
    e("s_cmp_lg_u32 s2, 0")
    e("s_cbranch_scc1 K2_FIN")
    e("s_cmp_lg_u32 s18, 1")
    e("s_cbranch_scc1 K2_FIN")
    e("v_lshlrev_b32 v6, 7, v0")
    e("s_mov_b32 s46, 0x20000")
    e("K2_BCHK:")
    for g in range(4):
        e(f"s_mov_b32 s45, {WS_FL + g*8192:#x}")
        e(f"buffer_load_dword v{8+g}, v6, s[24:27], s45 offen sc1")
    e("s_waitcnt vmcnt(0)")
    e("v_xor_b32 v7, s51, v8")
    for i in range(9, 12): e(f"v_bitop3_b32 v7, v7, v{i}, s51 bitop3:0xf6")
    e("v_cmp_ne_u32 vcc, 0, v7")
    e("s_sub_u32 s46, s46, 1")
    e("s_cmp_eq_u32 s46, 0")
    e("s_cbranch_scc1 K2_FIN")
    e("s_sleep 4")
    e("s_cmp_lg_u64 vcc, 0")
    e("s_cbranch_scc1 K2_BCHK")
    e("s_mov_b64 exec, 1")
    e("v_mov_b32 v6, 0")
    e("v_mov_b32 v7, s51")
    e(f"s_mov_b32 s45, {WS_EP2:#x}")
    e("buffer_store_dword v7, v6, s[24:27], s45 offen sc1")
    e("s_mov_b64 exec, -1")
    e("s_branch K2_FIN")

    e("K2_G:")
    if opt.get("gprio", 3): e(f"s_setprio {opt.get('gprio', 3)}")
    e.vm = []; e.lg = []
    srd(e, 28, 8, 1792 * 1024)
    e("""v_lshrrev_b32 v8, 3, v0
    v_and_b32 v9, 7, v0
    v_bfe_u32 v10, v0, 4, 1
    v_lshlrev_b32 v10, 2, v10
    v_xor_b32 v9, v9, v10
    v_lshlrev_b32 v9, 4, v9
    v_lshl_add_u32 v3, v8, 10, v9""")
    e(f"s_mul_i32 s56, s19, {GREG}")
    e(f"s_add_u32 s56, s56, {L_G}")
    e("s_lshl_b32 s61, s21, 7")
    e(f"s_mul_i32 s57, s19, {14*32*1024}")
    e("s_add_u32 s57, s57, s61")
    e(f"s_mul_i32 s59, s20, {2*112*1024}")
    e(f"s_mul_i32 s62, s19, {28*1024}")
    e("s_add_u32 s59, s59, s62")
    e(f"s_add_u32 s59, s59, {WS_H:#x}")
    NF2 = 14; NS = 18
    A0 = 16
    NA = 4
    AF = lambda sg, tb, kk: A0 + (sg % NA) * 16 + (tb * 2 + kk) * 4
    ACB = A0 + NA * 16
    ACC = lambda tb, nb: ACB + (tb * 2 + nb) * 16
    BFB = ACB + 64
    BF = lambda kk, nb: BFB + (kk * 2 + nb) * 4
    assert BFB + 16 <= 166
    def issueB(sg):
        sl = sg % NSL
        for a in range(4):
            e(f"s_add_u32 m0, s56, {sl*4096 + a*1024}")
            if sg < NF2:
                e(f"s_add_u32 s61, s57, {(32*sg + 8*a)*1024}")
                e.vmem("buffer_load_dwordx4 v3, s[28:31], s61 offen lds", ("B", sg))
            else:
                e(f"s_add_u32 s61, s58, {(32*(sg-NF2) + 16*(a>>1) + 4*(a&1))*1024}")
                e.vmem("buffer_load_dwordx4 v4, s[32:35], s61 offen lds", ("B", sg))
    def issueA(sg):
        for tb in range(2):
            if sg < NF2: e(f"s_add_u32 s61, s59, {(tb*112 + 2*sg)*1024}")
            else:        e(f"s_add_u32 s61, s60, {(tb*32 + 2*(sg-NF2))*1024}")
            for kk in range(2):
                e.vmem(f"buffer_load_dwordx4 {vr(AF(sg,tb,kk),4)}, v1, s[24:27], s61 offen offset:{kk*1024}" + (" sc1" if sg >= NF2 else ""), ("A", sg))
    D = opt.get("gd", 3); DB = opt.get("gdb", 4)
    D0 = opt.get("gd0", 1)
    for sg in range(D0): issueB(sg); issueA(sg)
    srd(e, 32, 6, 512 * 1024)
    e("""v_lshrrev_b32 v10, 2, v8
    v_lshlrev_b32 v10, 3, v10
    v_and_b32 v8, 3, v8
    v_add_u32 v8, v8, v10
    v_lshl_add_u32 v4, v8, 10, v9
    s_lshl_b32 s58, s19, 17
    s_lshl_b32 s61, s21, 7
    s_add_u32 s58, s58, s61
    s_lshl_b32 s60, s20, 16
    s_lshl_b32 s61, s19, 13
    s_add_u32 s60, s60, s61""")
    e(f"s_add_u32 s60, s60, {WS_O:#x}")
    e("""v_lshrrev_b32 v5, 5, v0
    v_lshlrev_b32 v5, 3, v5
    v_bfe_u32 v6, v0, 2, 2
    v_add_u32 v5, v5, v6
    v_lshlrev_b32 v5, 7, v5
    v_lshrrev_b32 v6, 1, v6
    v_lshl_add_u32 v5, v6, 6, v5
    v_bfe_u32 v6, v0, 4, 1
    v_lshl_add_u32 v5, v6, 5, v5
    v_and_b32 v6, 3, v0
    v_lshl_add_u32 v5, v6, 3, v5
    v_add_u32 v5, s56, v5
    v_xor_b32 v6, 64, v5""")
    stamp(2)
    e("s_barrier")
    stamp(3)
    for sg in range(D0, D): issueB(sg); issueA(sg)
    for sg in range(D, DB): issueB(sg)
    PS = opt.get("ps", 11)
    def step(sg):
        e.vwait([("B", sg), ("A", sg)])
        sl = sg % NSL
        for kk in range(2):
            for nb in range(2):
                for q in range(2):
                    e.lds(f"ds_read_b64_tr_b16 v[{BF(kk,nb)+2*q}:{BF(kk,nb)+2*q+1}], v{5+nb} offset:{sl*4096 + kk*2048 + q*512}", (kk, nb))
        if sg + DB < NS: issueB(sg + DB)
        if sg + D < NF2 or (sg + D < NS and sg > PS): issueA(sg + D)
        for kk in range(2):
            for nb in range(2):
                e.lwait((kk, nb))
                for tb in range(2):
                    acc = vr(ACC(tb, nb), 16)
                    cin = "0" if (sg == 0 and kk == 0) else acc
                    if opt.get("nogmfma") and sg < 12: continue
                    e(f"v_mfma_f32_32x32x16_bf16 {acc}, {vr(BF(kk,nb),4)}, {vr(AF(sg,tb,kk),4)}, {cin}")
    for sg in range(PS + 1):
        step(sg)
        if sg == 3: stamp(8)
        if sg == 7: stamp(9)
    stamp(4)
    e(f"v_mov_b32 v8, {L_MISC}")
    e("ds_read_b32 v8, v8")
    e("v_and_b32 v9, 7, v0")
    e("v_lshlrev_b32 v9, 7, v9")
    e("s_lshl_b32 s62, s23, 5")
    e("s_lshl_b32 s63, s19, 3")
    e("s_add_u32 s62, s62, s63")
    e("s_lshl_b32 s62, s62, 7")
    e(f"s_add_u32 s62, s62, {WS_FL:#x}")
    e("s_mov_b32 s63, 0x40000")
    e("K2_POLL:")
    e("buffer_load_dword v10, v9, s[24:27], s62 offen sc1")
    e("s_waitcnt vmcnt(0) lgkmcnt(0)")
    e.vm = []; e.lg = []
    e("v_cmp_ne_u32 vcc, v8, v10")
    e("s_sub_u32 s63, s63, 1")
    e("s_cmp_eq_u32 s63, 0")
    e("s_cbranch_scc1 K2_POLLED")
    e("s_cmp_lg_u64 vcc, 0")
    e("s_cbranch_scc1 K2_POLL")
    e("K2_POLLED:")
    stamp(5)
    for sg in range(NF2, min(NS, PS + 1 + D)): issueA(sg)
    for sg in range(PS + 1, NS): step(sg)
    stamp(6)
    e("""v_and_b32 v12, 31, v0
    v_lshlrev_b32 v12, 8, v12
    v_lshrrev_b32 v13, 5, v0
    v_and_b32 v14, 15, v0
    v_xor_b32 v13, v13, v14
    v_lshl_add_u32 v12, v13, 4, v12
    v_add_u32 v12, s56, v12""")
    for nb in range(2):
        for a in range(4):
            e(f"v_xor_b32 v{16+nb*4+a}, {(8*nb+2*a)*16}, v12")
    for tb in range(2):
        for nb in range(2):
            for a in range(4):
                e(f"ds_write_b128 v{16+nb*4+a}, {vr(ACC(tb,nb)+4*a,4)} offset:{tb*8192}")
    e("s_waitcnt lgkmcnt(0)")
    stamp(7)
    e("s_barrier")
    if ST: e("s_branch K2_DUMP")
    e("s_endpgm")

    e("K2_FIN:")
    e.vm = []; e.lg = []
    srd(e, 36, 4, 2048 * 1024)
    srd(e, 40, 10, 2048 * 1024)
    e("""v_lshrrev_b32 v7, 3, v0
    v_and_b32 v14, 7, v0
    v_lshlrev_b32 v8, 4, v14
    v_lshl_add_u32 v2, v7, 10, v8
    s_lshl_b32 s62, s20, 16
    s_lshl_b32 s61, s18, 13
    s_add_u32 s62, s62, s61
    s_lshl_b32 s61, s21, 7
    s_add_u32 s62, s62, s61""")
    e("buffer_load_dwordx4 v[8:11], v2, s[36:39], s62 offen")
    e(f"""s_lshl_b32 s61, s18, 3
    v_add_u32 v12, s61, v7
    v_and_b32 v13, 15, v12
    v_lshlrev_b32 v14, 1, v14
    v_xor_b32 v13, v13, v14
    v_lshlrev_b32 v12, 8, v12
    v_lshl_add_u32 v24, v13, 4, v12
    v_add_u32 v24, {L_G}, v24
    v_xor_b32 v25, 16, v24
    v_add_u32 v26, {2*GREG}, v24
    v_add_u32 v27, {2*GREG}, v25""")
    e("s_waitcnt lgkmcnt(0)")
    stamp(7)
    e("s_barrier")
    stamp(8)
    R = lambda src, h: 48 + src * 8 + h * 4
    for src in range(4):
        g, o = divmod(src, 2)
        for h in range(2):
            e.lds(f"ds_read_b128 {vr(R(src,h),4)}, v{24+2*g+h} offset:{o*GREG}", src)
    e("s_mov_b32 s61, 0xffff0000")
    e("s_waitcnt vmcnt(0)")
    for q in range(4):
        e(f"v_lshlrev_b32 v{32+2*q}, 16, v{8+q}")
        e(f"v_and_b32 v{33+2*q}, s61, v{8+q}")
    for src in range(4):
        e.lwait(src)
        for q in range(4):
            e(f"v_pk_add_f32 v[{32+2*q}:{33+2*q}], v[{32+2*q}:{33+2*q}], v[{R(src,0)+2*q}:{R(src,0)+2*q+1}]")
    for q in range(4): e(f"v_cvt_pk_bf16_f32 v{40+q}, v{32+2*q}, v{33+2*q}")
    e("buffer_store_dwordx4 v[40:43], v2, s[40:43], s62 offen")
    stamp(9)
    if ST:
        e("K2_DUMP:")
        e("s_waitcnt vmcnt(0)")
        stamp(10); stamp(11, True)
        e("s_mul_i32 s3, s2, 12")
        e("s_add_u32 s3, s3, s18")
        e("s_lshl_b32 s3, s3, 6")
        e("s_add_u32 s3, s3, 0x1100000")
        e("v_lshl_add_u32 v2, v0, 2, s3")
        e("s_mov_b64 exec, 0xffff")
        e(f"global_store_dword v2, v{VST}, s[14:15]")
    e("K2_END:")
    e("s_endpgm")
    return name, e.text(), kd(name, 168), (256, 768, K2_LDS)
```

```python
class Alloc:
    def __init__(self, size):
        self.n = size // 1024
        self.items = []
    def fits(self, lo, n, t0, t1):
        if lo + n > self.n: return False
        for (a, b, s0, s1, _) in self.items:
            if a < lo + n and lo < b and s0 < t1 and t0 < s1: return False
        return True
    def place(self, name, kb, t0, t1, top=False):
        rng = range(self.n - kb, -1, -1) if top else range(0, self.n - kb + 1)
        for lo in rng:
            if self.fits(lo, kb, t0, t1):
                self.items.append((lo, lo + kb, t0, t1, name)); return lo * 1024
        return None
    def earliest(self, name, kb, tmin, t1, tmax, top=False):
        for t in range(tmin, tmax + 1):
            a = self.place(name, kb, t, t1, top)
            if a is not None: return t, a
        raise RuntimeError("no space for " + name)

def plan(WL=3, XL=2, W2T=12, W2L=4):
    A = Alloc(158720)
    X = {}; W1 = {}; W2 = {}
    x_t0 = lambda P: -1 if P < XL else 2 * (P - XL)
    todo = []
    for P in range(3, 8): todo.append((min(16 + (2 * P + 1 - 6) // 2 + 2, 24), "X", P))
    for c in range(8): todo.append((min(16 + c + 2, 24), "W2", c))
    for t1, kind, i in sorted(todo, reverse=True):
        if kind == "X": X[i] = A.place(f"X{i}", 16, x_t0(i), t1, top=True)
    for P in range(3): X[P] = A.place(f"X{P}", 16, x_t0(P), 2 * P + 2, top=True)
    for p in range(15, -1, -1): W1[p] = A.place(f"W1_{p}", 8, max(-1, p - WL), p + 2, top=True)
    for t1, kind, i in sorted(todo):
        if kind == "W2": W2[i] = A.earliest(f"W2_{i}", 12, max(W2T, 16 + i - W2L), t1, 16 + i - 1, top=True)
    assert None not in X.values() and None not in W1.values()
    free = lambda lo, kb: max([13] + [s1 for (a, b, s0, s1, _) in A.items if a < lo + kb and lo < b])
    regs = sorted((free(16 * i, 16), 16 * i * 1024) for i in range(9))
    fin = {f"B{j}": regs[j] for j in range(7)}
    fin["V"], fin["K"] = regs[7], regs[8]
    fin["Q"] = (free(144, 8), 144 * 1024)
    return X, W1, W2, fin
if __name__ == "__main__":
    for l in (2, 3, 4):
        for r in plan(W2L=l)[2:]: print(r)

def plan3(L=2, W2L=2, NB=6):
    busy = [[] for _ in range(10)]
    def put(t0, t1, pref):
        for s_ in pref:
            if all(t1 <= a or b <= t0 for a, b in busy[s_]):
                busy[s_].append((t0, t1)); return s_ * 16384
        return None
    X = {}; W1 = {}; W2 = {}
    t0 = lambda c: max(-1, c - L)
    hi = list(range(8, -1, -1)); lo = list(range(9))
    for P in range(7, 2, -1): X[P] = put(t0(P), min(8 + (P - 3) + 2, 16), hi)
    items = sorted([(t0(P), P + 2, "X", P) for P in range(3)] + [(t0(c), c + 2, "W", c) for c in range(8)])
    def dfs(n):
        if n == len(items): return True
        a, b, k, i = items[n]
        for s_ in hi:
            if put(a, b, [s_]) is not None:
                (X if k == "X" else W1)[i] = s_ * 16384
                if dfs(n + 1): return True
                busy[s_].remove((a, b))
        return False
    assert dfs(0)
    assert None not in X.values() and None not in W1.values(), (X, W1)
    for c in range(8):
        for t in range(max(4, 8 + c - W2L - (1 if c < 3 else 0)), 8 + c):
            r = put(t, min(8 + c + 2, 16), [9] + hi)
            if r is not None:
                W2[c] = (t, r); break
    assert len(W2) == 8
    free = lambda s_: max([6] + [b for a, b in busy[s_]])
    regs = sorted((free(i), i * 16384) for i in range(NB))
    fin = {f"B{j}": regs[j] for j in range(NB)}
    o = 16 * NB
    fin["K"], fin["V"], fin["Q"], fin["ONES"] = o * 1024, (o + 24) * 1024, (o + 48) * 1024, (o + 56) * 1024
    assert (o + 57) * 1024 <= 158720
    return X, W1, W2, fin
```

```python
from emit import *
from alloc import plan3

NAME = "parallel_sum__sliding_block__dense_activation_relu__prompt"
WS_KV, WS_H, WS_O = 0, 0x600000, 0xD00000
WS_RS = 0xF00000
WS_CS = 0xF10000
WS_EP = 0xF80000
WS_F1, WS_F1B, WS_F2, WS_F1H = 0xF90000, 0xFA0000, 0xFB0000, 0xFC0000
WS_BYTES = 0x1000000
EPC = 0x9E3779B9
L_ST = 158720
L_MISC = L_ST + 3072
LDS = L_MISC + 64
ORD2 = list(range(6, 16)) + list(range(6))
NEG = 0xf149f2ca
pk = lambda a: f"v[{a}:{a+1}]"
SW, S1, SX, SS, S2, SO = "s[28:31]", "s[32:35]", "s[36:39]", "s[40:43]", "s[44:47]", "s[48:51]"
VST = 167

def reduce32(e, regs, tmp):
    for ctl in ("quad_perm:[1,0,3,2]", "quad_perm:[2,3,0,1]", "row_half_mirror", "row_mirror"):
        e("s_nop 1")
        for r in regs: e(f"v_add_f32_dpp v{r}, v{r}, v{r} {ctl} row_mask:0xf bank_mask:0xf")
    for r, t in zip(regs, tmp): e(f"v_mov_b32 v{t}, v{r}")
    e("s_nop 1")
    for r, t in zip(regs, tmp): e(f"v_permlane16_swap_b32 v{r}, v{t}")
    e("s_nop 1")
    for r, t in zip(regs, tmp): e(f"v_add_f32 v{r}, v{r}, v{t}")

def gen(opt):
    e = Em()
    name = NAME + "_kernel"
    ST = opt.get("stamps")
    NB = 6
    PL = opt.get("pl", 2)
    XA, W1A, W2A, FIN = plan3(PL, opt.get("w2l", 2), NB)
    BREG = [FIN[f"B{j}"][1] for j in range(NB)]
    BT = [max(FIN[f"B{j}"][0], min(16, opt.get("bt0", 16) + j)) for j in range(NB)]
    L_K, L_V, L_Q, L_ONE = FIN["K"], FIN["V"], FIN["Q"], FIN["ONES"]
    def stamp(i, rt=False):
        if not ST: return
        e(("s_memrealtime" if rt else "s_memtime") + " s[100:101]")
        e("s_waitcnt lgkmcnt(0)")
        e(f"v_writelane_b32 v{VST}, s100, {i}")
    BK = opt.get("bk", [])
    def bstamp(k):
        if ST and k in BK: e(f"s_memtime s[{80+2*BK.index(k)}:{81+2*BK.index(k)}]")
    def bflush():
        if ST and BK:
            e("s_waitcnt lgkmcnt(0)")
            for i in range(len(BK)): e(f"v_writelane_b32 v{VST}, s{80+2*i}, {16+i}")
    uid = [0]
    def lab(p):
        uid[0] += 1
        return f"{p}_{uid[0]}"
    def poll(voff, soff, vtag, vd):
        L, D = lab("POLL"), lab("POLLED")
        e("s_mov_b32 s63, 0x40000")
        e(f"{L}:")
        e(f"buffer_load_dword v{vd}, v{voff}, {SS}, {soff} offen sc1")
        e("s_waitcnt vmcnt(0) lgkmcnt(0)")
        e(f"v_cmp_ne_u32 vcc, v{vtag}, v{vd}")
        e("s_sub_u32 s63, s63, 1")
        e("s_cmp_eq_u32 s63, 0")
        e(f"s_cbranch_scc1 {D}")
        e("s_cmp_lg_u64 vcc, 0")
        e(f"s_cbranch_scc1 {L}")
        e(f"{D}:")
        e.vm = []; e.lg = []
    def ldswait(off, val, va, vb):
        L, D = lab("LW"), lab("LWOK")
        e(f"v_mov_b32 v{va}, {L_MISC}")
        e("s_mov_b32 s63, 0x400000")
        e(f"{L}:")
        e(f"ds_read_b32 v{vb}, v{va} offset:{off}")
        e("s_sub_u32 s63, s63, 1")
        e("s_waitcnt lgkmcnt(0)")
        e(f"v_readfirstlane_b32 s62, v{vb}")
        e("s_cmp_eq_u32 s63, 0")
        e(f"s_cbranch_scc1 {D}")
        e(f"s_cmp_ge_u32 s62, {val}")
        e(f"s_cbranch_scc1 {D}")
        e("s_sleep 1")
        e(f"s_branch {L}")
        e(f"{D}:")
        e.lg = []
    def ldsadd(off, va, vb):
        e(f"v_mov_b32 v{va}, {L_MISC}")
        e(f"v_mov_b32 v{vb}, 1")
        e("s_mov_b64 exec, 1")
        e(f"ds_add_u32 v{va}, v{vb} offset:{off}")
        e("s_mov_b64 exec, -1")
    def signal(coff, last, base, va=2, vb=3, vm=0):
        N = lab("NOFLAG")
        e(f"s_waitcnt vmcnt({vm})")
        e(f"v_mov_b32 v{va}, {L_MISC}")
        e(f"v_mov_b32 v{vb}, 1")
        e("s_mov_b64 exec, 1")
        e(f"ds_add_rtn_u32 v{vb}, v{va}, v{vb} offset:{coff}")
        e(f"s_add_u32 s62, s24, {base:#x}")
        e("s_waitcnt lgkmcnt(0)")
        e(f"v_readfirstlane_b32 s63, v{vb}")
        e(f"s_cmp_lg_u32 s63, {last}")
        e(f"s_cbranch_scc1 {N}")
        e(f"v_mov_b32 v{va}, 0")
        e(f"v_mov_b32 v{vb}, s61")
        e(f"buffer_store_dword v{vb}, v{va}, {SS}, s62 offen sc1")
        e(f"{N}:")
        e("s_mov_b64 exec, -1")
        e.lg = []

    e(f"{name}:")
    e("s_cmp_ge_u32 s2, 256")
    e("s_cbranch_scc1 L_END")
    stamp(0, True); stamp(1)
    e("s_load_dwordx4 s[4:7], s[0:1], 0")
    e("s_load_dwordx4 s[12:15], s[0:1], 32")
    e("s_load_dwordx2 s[16:17], s[0:1], 64")
    e("s_load_dwordx2 s[8:9], s[0:1], 16")
    e("s_load_dwordx2 s[10:11], s[0:1], 48")
    e("v_lshrrev_b32 v1, 6, v0")
    e("v_and_b32 v0, 63, v0")
    e("v_readfirstlane_b32 s18, v1")
    e("""s_and_b32 s3, s2, 1
    s_lshl_b32 s20, s3, 3
    s_lshr_b32 s24, s2, 5
    s_add_u32 s20, s20, s24
    s_bfe_u32 s21, s2, 0x20001
    s_bfe_u32 s22, s2, 0x20003
    s_lshl_b32 s23, s21, 2
    s_add_u32 s23, s23, s22
    s_lshl_b32 s24, s20, 4
    s_add_u32 s24, s24, s23
    s_lshl_b32 s24, s24, 7
    s_and_b32 s19, s18, 3
    s_lshl_b32 s3, s3, 2
    s_add_u32 s58, s3, s21
    s_lshl_b32 s58, s58, 2
    s_lshr_b32 s59, s2, 6
    s_add_u32 s58, s58, s59
    s_bfe_u32 s59, s2, 0x30003""")
    e("s_waitcnt lgkmcnt(0)")
    srd(e, 36, 4, 2048 * 1024)
    srd(e, 28, 6, 512 * 3072)
    srd(e, 32, 12, 512 * 3584)
    srd(e, 40, 16, WS_BYTES)
    e("s_cmp_ge_u32 s18, 8")
    e("s_cbranch_scc1 L_UTIL")
    e("s_cmp_ge_u32 s18, 4")
    e("s_cbranch_scc1 L_CONS")

    e(f"""v_and_b32 v5, 7, v0
    v_lshrrev_b32 v2, 3, v0
    v_lshrrev_b32 v3, 4, v0
    v_xor_b32 v3, v3, v5
    v_lshlrev_b32 v2, 10, v2
    v_lshl_add_u32 v12, v3, 4, v2
    v_xor_b32 v13, 64, v12
    s_lshl_b32 s65, s20, 17
    s_lshl_b32 s3, s18, 15
    s_add_u32 s65, s65, s3
    s_lshl_b32 s67, s18, 12""")
    def issueX(P):
        e(f"s_add_u32 m0, s67, {XA[P]}")
        e(f"s_add_u32 s74, s65, {P*128}")
        for a in range(4):
            e.vmem(f"buffer_load_dwordx4 v{12+(a&1)}, {SX}, s74 offen offset:{a*1024} lds", ("x", P))
            if a < 3: e(f"s_add_u32 s74, s74, {8192-1024}")
    issueX(0)
    e("""v_lshrrev_b32 v2, 5, v0
    v_bfe_u32 v3, v0, 3, 2
    v_lshl_add_u32 v3, v2, 3, v3
    v_bfe_u32 v4, v0, 4, 2
    v_lshlrev_b32 v4, 1, v4
    v_xor_b32 v4, v4, v5
    v_lshlrev_b32 v4, 4, v4
    v_mul_u32_u24 v10, 3072, v3
    v_add_u32 v10, v10, v4
    v_mul_u32_u24 v11, 3584, v3
    v_add_u32 v11, v11, v4
    s_lshr_b32 s52, s18, 1
    s_lshl_b32 s52, s52, 5
    s_and_b32 s62, s18, 1
    s_lshl_b32 s3, s62, 2
    s_add_u32 s52, s52, s3
    s_lshl_b32 s3, s23, 7
    s_mul_i32 s53, s52, 3072
    s_add_u32 s53, s53, s3
    s_add_u32 s53, s53, 1024
    s_mul_i32 s54, s52, 3584
    s_add_u32 s54, s54, s3""")
    def issueW(c):
        for ah in range(2):
            e(f"s_add_u32 m0, s67, {W1A[c] + ah*2048}")
            e(f"s_add_u32 s74, s53, {(64*c + 16*ah)*3072}")
            e.vmem(f"buffer_load_dwordx4 v10, {SW}, s74 offen lds", ("w", c))
            e(f"s_add_u32 m0, s67, {W1A[c] + ah*2048 + 1024}")
            e(f"s_add_u32 s74, s54, {(64*c + 16*ah)*3584}")
            e.vmem(f"buffer_load_dwordx4 v11, {S1}, s74 offen lds", ("w", c))
    def esetup():
        e("""v_lshrrev_b32 v2, 4, v0
        v_bfe_u32 v3, v0, 2, 2
        v_lshl_add_u32 v3, v2, 3, v3
        v_mul_u32_u24 v16, 3072, v3
        v_and_b32 v2, 1, v2
        v_lshlrev_b32 v2, 1, v2
        v_and_b32 v3, 3, v0
        v_xor_b32 v2, v2, v3
        v_lshl_add_u32 v16, v2, 4, v16
        s_and_b32 s62, s18, 1
        s_lshl_b32 s3, s62, 7""")
        for j in range(2):
            e(f"""v_add_u32 v2, s3, v0
            v_add_u32 v2, {64*j}, v2
            v_mul_u32_u24 v3, 10923, v2
            v_lshrrev_b32 v3, 16, v3
            v_mul_u32_u24 v4, 6, v3
            v_sub_u32 v4, v2, v4
            v_bfe_u32 v6, v3, 2, 2
            v_lshlrev_b32 v6, 3, v6
            v_lshrrev_b32 v7, 4, v3
            v_lshl_add_u32 v6, v7, 2, v6
            v_and_b32 v7, 3, v3
            v_add_u32 v6, v6, v7
            v_mul_u32_u24 v{17+j}, 3584, v6
            v_lshl_add_u32 v{17+j}, v4, 4, v{17+j}""")
        e("""s_cmp_eq_u32 s62, 1
        s_cselect_b32 s3, 0x80000000, 0
        v_or_b32 v18, s3, v18
        s_lshr_b32 s3, s18, 1
        s_mul_i32 s55, s52, 3072
        s_lshl_b32 s64, s23, 6
        s_add_u32 s55, s55, s64
        s_mul_i32 s56, s3, 114688
        s_mul_i32 s64, s23, 96
        s_add_u32 s56, s56, s64
        s_add_u32 s56, s56, 2048
        s_mul_i32 s57, s3, 5120
        s_lshl_b32 s64, s62, 10
        s_add_u32 s60, s57, s64
        s_lshl_b32 s64, s62, 11
        s_add_u32 s57, s57, s64
        s_add_u32 s64, s57, 1024
        s_cmp_eq_u32 s62, 1
        s_cselect_b32 s64, 8192, s64""")
    def issueW2(c):
        p = ORD2[2 * c]
        base = W2A[c][1]
        e(f"s_add_u32 m0, s60, {base}")
        e(f"s_add_u32 s74, s55, {p*32*3072}")
        e.vmem(f"buffer_load_dwordx4 v16, {SW}, s74 offen lds", ("w2", c))
        e(f"s_add_u32 m0, s57, {base + 2048}")
        e(f"s_add_u32 s74, s56, {p*32*3584}")
        e.vmem(f"buffer_load_dwordx4 v17, {S1}, s74 offen lds", ("w2", c))
        e(f"s_add_u32 m0, s64, {base + 2048}")
        e("s_nop 0")
        e.vmem(f"buffer_load_dwordx4 v18, {S1}, s74 offen lds", ("w2", c))
    NF2, NS, NA = 14, 18, 4
    A0 = 20
    AF = lambda sg, tb, kk: A0 + (sg % NA) * 16 + (tb * 2 + kk) * 4
    ACB = A0 + NA * 16
    GACC = lambda tb, nb: ACB + (tb * 2 + nb) * 16
    BFB = ACB + 64
    BF = lambda kk, nb: BFB + (kk * 2 + nb) * 4
    assert BFB + 16 <= VST
    def gsetup():
        srd(e, 44, 14, 1792 * 1024)
        srd(e, 48, 8, 512 * 1024)
        e(f"""v_lshrrev_b32 v8, 3, v0
        v_bfe_u32 v2, v0, 4, 1
        v_lshlrev_b32 v2, 2, v2
        v_xor_b32 v9, v5, v2
        v_lshlrev_b32 v9, 4, v9
        v_lshl_add_u32 v14, v8, 10, v9
        v_lshrrev_b32 v2, 2, v8
        v_lshlrev_b32 v2, 3, v2
        v_and_b32 v8, 3, v8
        v_add_u32 v8, v8, v2
        v_lshl_add_u32 v15, v8, 10, v9
        v_lshlrev_b32 v1, 4, v0
        s_lshl_b32 s3, s59, 7
        s_lshl_b32 s70, s18, 18
        s_add_u32 s70, s70, s3
        s_mul_i32 s78, s18, {12*16*1024}
        s_add_u32 s78, s78, s3
        s_lshl_b32 s71, s18, 17
        s_add_u32 s71, s71, s3
        s_mul_i32 s72, s58, {2*112*1024}
        s_add_u32 s72, s72, {WS_H:#x}
        s_mul_i32 s79, s18, {12*1024}
        s_add_u32 s79, s79, s72
        s_lshl_b32 s3, s18, 14
        s_add_u32 s72, s72, s3
        s_lshl_b32 s73, s58, 16
        s_lshl_b32 s3, s18, 13
        s_add_u32 s73, s73, s3
        s_add_u32 s73, s73, {WS_O:#x}""")
    KS = [(2 * i, False) for i in range(8)] + [(64 + 2 * i, True) for i in range(6)]
    def issueB(sg):
        for a in range(4):
            e(f"s_add_u32 m0, s67, {BREG[sg % NB] + a*1024}")
            if sg < NF2:
                k16, ex = KS[sg]
                e(f"s_add_u32 s74, {'s78' if ex else 's70'}, {(16*k16 + 8*a)*1024}")
                e.vmem(f"buffer_load_dwordx4 v14, {S2}, s74 offen lds", ("B", sg))
            else:
                e(f"s_add_u32 s74, s71, {(32*(sg-NF2) + 16*(a>>1) + 4*(a&1))*1024}")
                e.vmem(f"buffer_load_dwordx4 v15, {SO}, s74 offen lds", ("B", sg))
    def issueA(sg):
        for tb in range(2):
            if sg < NF2:
                k16, ex = KS[sg]
                e(f"s_add_u32 s74, {'s79' if ex else 's72'}, {(tb*112 + k16)*1024}")
            else: e(f"s_add_u32 s74, s73, {(tb*32 + 2*(sg-NF2))*1024}")
            for kk in range(2):
                e.vmem(f"buffer_load_dwordx4 {vr(AF(sg,tb,kk),4)}, v1, {SS}, s74 offen offset:{kk*1024} sc1", ("A", sg))
    issueW(0)
    for c in range(1, PL): issueX(c); issueW(c)
    for k in range(17):
        e.vwait([("w", k), ("x", k)] if k < 8 else [("w2", k - 8)])
        if k == 0: stamp(2)
        if k == 8: stamp(3)
        if k == 16: stamp(4)
        bstamp(k)
        if k == 16: bflush()
        e("s_barrier")
        if k + PL <= 7: issueX(k + PL); issueW(k + PL)
        if k == 1: gsetup()
        if k == 2: esetup()
        for c in range(8):
            if W2A[c][0] == k: issueW2(c)
        if k < 16:
            for j in range(NB):
                if BT[j] == k: issueB(j)
    if opt.get("gprio", 0): e(f"s_setprio {opt.get('gprio')}")
    e(f"""v_lshrrev_b32 v6, 5, v0
    v_lshlrev_b32 v6, 3, v6
    v_bfe_u32 v7, v0, 2, 2
    v_add_u32 v6, v6, v7
    v_lshlrev_b32 v6, 7, v6
    v_lshrrev_b32 v7, 1, v7
    v_lshl_add_u32 v6, v7, 6, v6
    v_bfe_u32 v7, v0, 4, 1
    v_lshl_add_u32 v6, v7, 5, v6
    v_and_b32 v7, 3, v0
    v_lshl_add_u32 v6, v7, 3, v6
    v_add_u32 v6, s67, v6
    v_xor_b32 v7, 64, v6
    v_add_u32 v8, 49152, v6
    v_add_u32 v9, 49152, v7
    v_mov_b32 v2, {L_MISC}
    ds_read_b32 v2, v2
    v_and_b32 v3, 3, v0
    v_lshlrev_b32 v3, 7, v3
    s_lshr_b32 s76, s58, 1
    s_lshl_b32 s76, s76, 11
    s_lshl_b32 s3, s18, 9
    s_add_u32 s76, s76, s3
    s_add_u32 s62, s76, {WS_F1H:#x}""")
    for j in range(opt.get("bpre", 2)):
        if BT[j] >= 16: issueB(j)
    poll(3, "s62", 2, 4)
    stamp(5)
    D = opt.get("gd", 3); DB = NB - 1; PS = opt.get("ps", 11); PB = 8 - D - 1
    for sg in range(max(D, NB)):
        if sg < NB and BT[sg] >= 16 and sg >= opt.get("bpre", 2): issueB(sg)
        if sg < D: issueA(sg)
    def step(sg):
        if sg == opt.get("ghold", -1): ldswait(16, 8, 12, 13)
        e.vwait([("B", sg), ("A", sg)])
        reg = BREG[sg % NB]
        hi = reg // 49152
        off0 = reg - 49152 * hi
        for kk in range(2):
            for nb in range(2):
                for q in range(2):
                    e.lds(f"ds_read_b64_tr_b16 v[{BF(kk,nb)+2*q}:{BF(kk,nb)+2*q+1}], v{6+2*hi+nb} offset:{off0 + kk*2048 + q*512}", (kk, nb))
        if NB <= sg + DB < NS: issueB(sg + DB)
        if sg + D < NF2 or (sg + D < NS and sg > PS): issueA(sg + D)
        for kk in range(2):
            for nb in range(2):
                e.lwait((kk, nb))
                for tb in range(2):
                    acc = vr(GACC(tb, nb), 16)
                    cin = "0" if (sg == 0 and kk == 0) else acc
                    e(f"v_mfma_f32_32x32x16_bf16 {acc}, {vr(BF(kk,nb),4)}, {vr(AF(sg,tb,kk),4)}, {cin}")
    for sg in range(PS + 1):
        step(sg)
        if sg == PB:
            stamp(6)
            e(f"s_add_u32 s62, s76, {WS_F1B:#x}")
            poll(3, "s62", 2, 4)
    stamp(7)
    e(f"s_add_u32 s62, s76, {WS_F2:#x}")
    poll(3, "s62", 2, 4)
    stamp(8)
    for sg in range(NF2, min(NS, PS + 1 + D)): issueA(sg)
    for sg in range(PS + 1, NS): step(sg)
    stamp(9)
    e("""v_and_b32 v12, 31, v0
    v_lshlrev_b32 v12, 7, v12
    v_lshrrev_b32 v13, 5, v0
    v_xor_b32 v13, v13, v5
    v_lshl_add_u32 v12, v13, 4, v12
    v_add_u32 v12, s67, v12""")
    for nb in range(2):
        for a in range(4): e(f"v_xor_b32 v{20+nb*4+a}, {((2*a) ^ nb)*16}, v12")
    for tb in range(2):
        for nb in range(2):
            for a in range(4): e(f"v_add_u32 v{28+(tb*2+nb)*4+a}, {BREG[tb*2+nb]}, v{20+nb*4+a}")
    for tb in range(2):
        for nb in range(2):
            for a in range(4): e(f"ds_write_b128 v{28+(tb*2+nb)*4+a}, {vr(GACC(tb,nb)+4*a,4)}")
    e("s_waitcnt lgkmcnt(0)")
    stamp(10)
    e("s_barrier")
    if ST: e("s_branch L_DUMP")
    e("s_endpgm")

    e("L_CONS:")
    e.vm = []; e.lg = []
    LA = opt.get("la", 5); NFB = 6
    F = lambda f: 8 + (f % NFB) * 4
    XF = lambda n, r: 32 + ((n & 1) * 2 + r) * 4
    XK = lambda p, r: 48 + (p * 2 + r) * 4
    ACC = lambda s, r: 96 + (s * 2 + r) * 4
    AW = [1, 2, 3, 4]; AX = [7, 5]
    e(f"""v_lshrrev_b32 v8, 2, v0
    v_lshrrev_b32 v9, 3, v8
    v_lshlrev_b32 v9, 11, v9
    v_and_b32 v10, 7, v8
    v_lshl_add_u32 v9, v10, 7, v9
    v_and_b32 v10, 3, v0
    v_lshlrev_b32 v10, 3, v10
    v_add_u32 v9, v9, v10
    v_bfe_u32 v11, v0, 3, 2
    v_lshl_add_u32 v1, v11, 5, v9
    v_add_u32 v1, {W1A[0]}, v1
    v_xor_b32 v2, 32, v1
    v_xor_b32 v3, 64, v1
    v_xor_b32 v4, 96, v1
    v_and_b32 v8, 15, v0
    v_lshrrev_b32 v9, 4, v0
    v_lshrrev_b32 v10, 1, v8
    v_xor_b32 v9, v9, v10
    v_lshlrev_b32 v8, 7, v8
    v_lshl_add_u32 v7, v9, 4, v8
    s_lshl_b32 s3, s19, 12
    s_add_u32 s3, s3, {XA[0]}
    v_add_u32 v7, s3, v7
    v_xor_b32 v5, 64, v7""")
    if opt.get("cprio", 0): e(f"s_setprio {opt.get('cprio')}")
    cur = {"w": W1A[0], "x": XA[0]}
    DEF = []; NST = [0]; TIM = opt.get("tim", 2)
    def move(kind, regs, addr):
        d = addr - cur[kind]
        if d:
            for a in regs: e(f"v_add_u32 v{a}, {d & 0xffffffff:#x}, v{a}")
        cur[kind] = addr
    def gemm(ps):
        NSB = 8 if ps == 1 else 5
        NF = 16 * NSB
        kst = (lambda n: n) if ps == 1 else (lambda n: ORD2[n])
        xreg = lambda n, r: XK(kst(n), r) if kst(n) < 6 else XF(n, r)
        def rd(f):
            n, s = divmod(f, NSB)
            for q in range(2):
                if ps == 1:  a, off = AW[s & 3], (n & 1) * 8192 + q * 4096 + (s >> 2) * 1024
                elif s < 2:  a, off = AW[s], (n & 1) * 5120 + q * 1024
                else:        a, off = AW[2], (n & 1) * 5120 + 2048 + q * 1536 + (s - 2) * 32
                yield f"ds_read_b64_tr_b16 v[{F(f)+2*q}:{F(f)+2*q+1}], v{a} offset:{off}"
        def kswitch(n):
            if n % 2 == 0:
                if ps == 1: move("w", AW, W1A[n // 2])
                else:       move("w", AW[:3], W2A[n // 2][1])
                bstamp(8 * (ps - 1) + n // 2)
                e("s_barrier")
                if ps == 2:
                    for _ in range(opt.get("tper", 1)):
                        if DEF:
                            for x in DEF.pop(0): e(x)
                            NST[0] += 1
                    if n // 2 == opt.get("sgk", 4): signal(4, 3, WS_F1, 164, 165, max(0, NST[0] - 4))
                    if n // 2 == opt.get("sgh", 7):
                        assert not DEF
                        signal(24, 3, WS_F1H, 164, 165)
            if NSB > LA or n < 2: xread(n)
        def xread(n):
            p = kst(n)
            if ps == 1 or p >= 6:
                move("x", AX, XA[p >> 1])
                for r in range(2): e.lds(f"ds_read_b128 {vr(xreg(n,r),4)}, v{AX[p&1]} offset:{r*2048}", ("x", n))
        kswitch(0)
        if ps == 1: stamp(2)
        for f in range(LA):
            if f and f % NSB == 0: kswitch(f // NSB)
            for r_ in rd(f): e.lds(r_, f)
        for f in range(NF):
            n, s = divmod(f, NSB)
            nxt = f + LA
            if nxt < NF and nxt % NSB == 0: kswitch(nxt // NSB)
            if NSB <= LA and s == 0 and 1 <= n < 15: xread(n + 1)
            e.lwait([f, ("x", n)])
            if ps == 2 and f == NF - 1: e("s_barrier")
            rds = list(rd(nxt)) if nxt < NF else [None, None]
            for r in range(2):
                acc = vr(ACC(s, r), 4)
                e(f"v_mfma_f32_16x16x32_bf16 {acc}, {vr(F(f),4)}, {vr(xreg(n,r),4)}, {'0' if n == 0 else acc}")
                if rds[r]: e.lds(rds[r], nxt)
    RS = lambda r: 160 + 2 * r
    RQ = lambda r: 32 + 2 * r
    TT = 8
    CSR = [24, 28]
    def epilogue(ps):
        order = ([0, 1, 5, 6, 7, 2, 3, 4] if TIM else list(range(8))) if ps == 1 else [2, 3, 4, 0, 1]
        dd = {}
        loc = lambda s: s if ps == 1 else 8 + s
        if ps == 1: ldswait(20, 1, 8, 9)
        e(f"""v_and_b32 v16, 15, v0
        v_lshrrev_b32 v17, 4, v0
        s_lshl_b32 s3, s19, 9
        s_add_u32 s3, s3, {L_ST}
        v_lshl_add_u32 v8, v16, 4, s3
        v_lshlrev_b32 v164, 4, v17
        v_add_u32 v164, {L_ST+2048}, v164
        v_mov_b32 v10, {L_MISC}""")
        if ps == 1:
            for r in range(2): e.lds(f"ds_read_b64 {pk(RS(r))}, v8 offset:{256*r}", "st")
            e.lds("ds_read_b32 v10, v10", "st")
        def csread(n):
            if n < len(order): e.lds(f"ds_read_b128 {vr(CSR[n%2],4)}, v164 offset:{64*loc(order[n])}", ("cs", n))
        csread(0)
        e("v_lshlrev_b32 v166, 4, v0")
        if ps == 1:
            e(f"""s_lshl_b32 s64, s20, 2
            s_add_u32 s64, s64, s19
            s_lshl_b32 s65, s23, 8
            s_add_u32 s65, s65, s64
            s_lshl_b32 s65, s65, 10
            s_mul_i32 s66, s64, 112
            s_mul_i32 s67, s23, 3
            s_add_u32 s67, s67, s66
            s_add_u32 s67, s67, 64
            s_lshl_b32 s67, s67, 10
            s_lshl_b32 s3, s23, 2
            s_add_u32 s66, s66, s3
            s_lshl_b32 s66, s66, 10
            s_add_u32 s66, s66, {WS_H:#x}
            s_add_u32 s67, s67, {WS_H:#x}""")
            e.lwait("st")
            e("v_readfirstlane_b32 s61, v10")
        else:
            e("s_mov_b32 s3, 0x3eb8aa3b")
            for q in range(4): e(f"v_mul_f32 v{32+q}, s3, v{160+q}")
            e("s_lshl_b32 s3, s19, 10")
            e(f"s_add_u32 s3, s3, {L_Q}")
            e("v_add_u32 v36, s3, v166")
        for n, s in enumerate(order):
            T = 16 + 4 * (n % 2)
            dfr = ps == 1 and TIM and s >= 2
            if dfr: T = ACC(s, 0) if s >= 5 else ACC(s + 3, 1)
            isQ = ps == 2 and s < 2
            isH = (ps == 1 and s >= 4) or (ps == 2 and s >= 2)
            e.lwait(("cs", n))
            c = CSR[n % 2]
            csread(n + 1)
            for r in range(2):
                sp = RQ(r) if isQ else RS(r)
                for h in range(2):
                    e(f"v_pk_mul_f32 {pk(TT+4*r+2*h)}, {pk(c+2*h)}, {pk(sp)} op_sel:[0,1] op_sel_hi:[1,1]")
            for r in range(2):
                sp = RQ(r) if isQ else RS(r)
                for h in range(2):
                    t = TT + 4 * r + 2 * h
                    e(f"v_pk_fma_f32 {pk(t)}, {pk(ACC(s,r)+2*h)}, {pk(sp)}, {pk(t)} op_sel_hi:[1,0,1]")
            for r in range(2):
                for h in range(2):
                    t = TT + 4 * r + 2 * h
                    e(f"v_cvt_pk_bf16_f32 v{T+2*r+h}, v{t}, v{t+1}")
            if isH:
                for q in range(4): e(f"v_pk_max_i16 v{T+q}, v{T+q}, 0")
            if isQ: e("s_nop 0")
            elif ps == 2: e(f"s_add_u32 s3, s67, {(s-2)*1024}")
            elif s < 4: e(f"s_add_u32 s3, s65, {WS_KV + s*0x10000:#x}")
            else: e(f"s_add_u32 s3, s66, {(s-4)*1024}")
            e("s_nop 0")
            e(f"v_permlane16_swap_b32 v{T}, v{T+2}")
            e(f"v_permlane16_swap_b32 v{T+1}, v{T+3}")
            if isQ: e.lds(f"ds_write_b128 v36, {vr(T,4)} offset:{s*4096}", "qw")
            elif dfr: dd[s] = [e.lines[-4].strip(), f"buffer_store_dwordx4 {vr(T,4)}, v166, {SS}, s3 offen sc1"]
            else:
                e(f"buffer_store_dwordx4 {vr(T,4)}, v166, {SS}, s3 offen sc1")
                NST[0] += 1
        for s in sorted(dd): DEF.append(dd[s])
    gemm(1)
    stamp(3)
    epilogue(1)
    e(f"""v_lshrrev_b32 v8, 2, v0
    v_and_b32 v10, 3, v0
    v_lshlrev_b32 v10, 3, v10
    v_lshl_add_u32 v1, v8, 6, v10
    v_bfe_u32 v11, v0, 4, 1
    v_lshl_add_u32 v1, v11, 5, v1
    v_add_u32 v1, {W2A[0][1]}, v1
    v_xor_b32 v2, 32, v1
    v_mul_u32_u24 v3, 96, v8
    v_add_u32 v3, v3, v10
    v_add_u32 v3, {W2A[0][1]}, v3""")
    cur["w"] = W2A[0][1]
    stamp(4)
    gemm(2)
    bflush()
    stamp(5)
    epilogue(2)
    e("s_waitcnt lgkmcnt(0)")
    ldsadd(16, 2, 3)
    e("s_mov_b32 s96, s19")
    e("s_mov_b32 s97, 1")
    e("s_branch L_ATT")

    e("L_UTIL:")
    e.vm = []; e.lg = []
    if opt.get("uprio0", 3): e(f"s_setprio {opt.get('uprio0', 3)}")
    L0, U, A, CL, C0, C1, VE = 16, 24, 40, 48, 64, 72, 80
    e("v_and_b32 v5, 7, v0")
    e(f"v_mov_b32 v{VE}, 0")
    e(f"s_mov_b32 s3, {WS_EP:#x}")
    e.vmem(f"buffer_load_dword v{VE}, v{VE}, {SS}, s3 offen sc1", "rs")
    e(f"""v_lshrrev_b32 v4, 5, v0
    v_and_b32 v6, 31, v0
    v_lshlrev_b32 v6, 4, v6
    v_lshl_add_u32 v6, v4, 10, v6
    v_lshlrev_b32 v{VE+1}, 4, v4
    s_lshl_b32 s64, s20, 7
    s_lshl_b32 s65, s23, 3
    s_add_u32 s64, s64, s65
    s_lshl_b32 s65, s19, 1
    s_add_u32 s64, s64, s65
    s_lshl_b32 s65, s64, 10""")
    e.vmem(f"buffer_load_dwordx4 {vr(L0,4)}, v6, {SX}, s65 offen", "rs")
    e.vmem(f"buffer_load_dwordx4 {vr(L0+4,4)}, v6, {SX}, s65 offen offset:512", "rs")
    e("""s_add_u32 s66, s23, 8
    s_add_u32 s67, s23, 24
    s_cmp_eq_u32 s19, 1
    s_cselect_b32 s66, s67, s66
    s_add_u32 s67, s23, 32
    s_cmp_lt_u32 s23, 8
    s_cselect_b32 s67, s23, s67
    s_cmp_eq_u32 s19, 2
    s_cselect_b32 s66, s67, s66
    s_add_u32 s67, s23, 48
    s_cmp_eq_u32 s19, 3
    s_cselect_b32 s66, s67, s66
    v_lshrrev_b32 v2, 3, v0
    v_lshlrev_b32 v3, 4, v5
    s_cmp_ge_u32 s66, 52
    s_cbranch_scc1 L_CSD
    s_lshl_b32 s67, s66, 7
    s_cmp_ge_u32 s66, 24
    s_cbranch_scc1 L_CSW
    v_mul_u32_u24 v4, 3072, v2
    v_add_u32 v4, v4, v3""")
    e(f"s_mul_i32 s68, s20, {32*3072}")
    e("s_add_u32 s68, s68, s67")
    for t in range(4):
        e(f"buffer_load_dwordx4 {vr(CL+4*t,4)}, v4, {SW}, s68 offen")
        if t < 3: e(f"s_add_u32 s68, s68, {8*3072}")
    e("s_branch L_CSD")
    e("L_CSW:")
    e("v_mul_u32_u24 v4, 3584, v2")
    e("v_add_u32 v4, v4, v3")
    e(f"s_mul_i32 s68, s20, {32*3584}")
    e("s_add_u32 s68, s68, s67")
    e(f"s_sub_u32 s68, s68, {24*128}")
    for t in range(4):
        e(f"buffer_load_dwordx4 {vr(CL+4*t,4)}, v4, {S1}, s68 offen")
        if t < 3: e(f"s_add_u32 s68, s68, {8*3584}")
    e("L_CSD:")
    e(f"""s_mov_b32 s69, 0xffff0000
    s_mov_b32 s70, 0x3b000000
    s_lshl_b32 s64, s64, 4
    s_add_u32 s64, s64, {WS_RS:#x}
    v_lshlrev_b32 v14, 4, v0
    s_lshl_b32 s71, s23, 8
    s_add_u32 s72, s71, {512*4}
    v_add_u32 v15, s72, v14
    s_add_u32 s72, s71, {1536*4 - 256}
    v_add_u32 v2, s72, v14
    v_cmp_le_u32 vcc, 16, v0
    s_lshl_b32 s72, s23, 7
    s_sub_u32 s72, s72, 512
    v_cndmask_b32 v15, v15, v2, vcc
    v_add_u32 v2, s72, v14
    v_cmp_le_u32 vcc, 32, v0
    s_mul_i32 s72, s23, 192
    s_add_u32 s72, s72, {2560*4 - 640}
    v_cndmask_b32 v15, v15, v2, vcc
    v_min_u32 v2, 51, v0
    v_lshlrev_b32 v2, 4, v2
    v_add_u32 v2, s72, v2
    v_cmp_le_u32 vcc, 40, v0
    s_nop 1
    v_cndmask_b32 v15, v15, v2, vcc""")
    def piece(n):
        if n == 0:
            e("s_cmp_ge_u32 s66, 52")
            e("s_cbranch_scc1 L_P0A")
            e("s_waitcnt vmcnt(4)")
            e("s_branch L_P0B")
            e("L_P0A:")
            e("s_waitcnt vmcnt(0)")
            e("L_P0B:")
            for q in range(8):
                e(f"v_lshlrev_b32 v{U+2*q}, 16, v{L0+q}")
                e(f"v_and_b32 v{U+2*q+1}, s69, v{L0+q}")
            for q in range(4): e(f"v_pk_add_f32 {pk(A+2*q)}, {pk(U+4*q)}, {pk(U+4*q+2)}")
            e(f"v_pk_add_f32 {pk(A)}, {pk(A)}, {pk(A+2)}")
            e(f"v_pk_add_f32 {pk(A+4)}, {pk(A+4)}, {pk(A+6)}")
            e(f"v_pk_add_f32 {pk(A)}, {pk(A)}, {pk(A+4)}")
            e(f"v_add_f32 v{A}, v{A}, v{A+1}")
            reduce32(e, [A], [A + 1])
            e(f"v_mul_f32 v{A}, s70, v{A}")
            e(f"v_add_u32 v{A+6}, {EPC:#x}, v{VE}")
            e(f"v_mov_b32 v2, {L_MISC}")
            e("v_mov_b32 v3, 0")
            e(f"ds_write_b32 v2, v{A+6}")
            for o in (4, 8, 12, 16, 20, 24): e(f"ds_write_b32 v2, v3 offset:{o}")
        if n == 1:
            for q in range(8): e(f"v_pk_add_f32 {pk(U+2*q)}, {pk(U+2*q)}, {pk(A)} op_sel_hi:[1,0] neg_lo:[0,1] neg_hi:[0,1]")
            e(f"v_pk_mul_f32 {pk(A+2)}, {pk(U)}, {pk(U)}")
            e(f"v_pk_mul_f32 {pk(A+4)}, {pk(U+2)}, {pk(U+2)}")
            for q in range(2, 8): e(f"v_pk_fma_f32 {pk(A+2+2*(q&1))}, {pk(U+2*q)}, {pk(U+2*q)}, {pk(A+2+2*(q&1))}")
            e(f"v_pk_add_f32 {pk(A+4)}, {pk(A+2)}, {pk(A+4)}")
            e(f"v_add_f32 v{A+4}, v{A+4}, v{A+5}")
            reduce32(e, [A + 4], [A + 5])
            e(f"v_mov_b32 v{A+5}, 0x3727c5ac")
            e(f"v_fma_f32 v{A+4}, v{A+4}, s70, v{A+5}")
            e(f"v_rsq_f32 v{A+4}, v{A+4}")
            e(f"v_readfirstlane_b32 s61, v{A+6}")
            e(f"v_mov_b32 v{A+7}, v{A+6}")
            e(f"v_mul_f32 v{A+5}, v{A}, v{A+4}")
            e(f"v_sub_f32 v{A+5}, 0, v{A+5}")
            e("s_mov_b32 exec_lo, 1")
            e("s_mov_b32 exec_hi, 1")
            e(f"buffer_store_dwordx4 {vr(A+4,4)}, v{VE+1}, {SS}, s64 offen sc1")
            e("s_mov_b64 exec, -1")
        if n == 2:
            e("s_waitcnt vmcnt(1)")
            for q in range(4):
                e(f"v_lshlrev_b32 v{C0+2*q}, 16, v{CL+q}")
                e(f"v_and_b32 v{C0+2*q+1}, s69, v{CL+q}")
            for t in range(1, 4):
                for q in range(4):
                    e(f"v_lshlrev_b32 v{C1+2*q}, 16, v{CL+4*t+q}")
                    e(f"v_and_b32 v{C1+2*q+1}, s69, v{CL+4*t+q}")
                for q in range(4): e(f"v_pk_add_f32 {pk(C0+2*q)}, {pk(C0+2*q)}, {pk(C1+2*q)}")
            e("s_nop 1")
            for q in range(8): e(f"v_add_f32_dpp v{C0+q}, v{C0+q}, v{C0+q} row_ror:8 row_mask:0xf bank_mask:0xf")
            e("s_mov_b32 s72, 0xff00ff00")
            e("s_mov_b32 s73, 0xff00ff00")
            for q in range(4): e(f"v_cndmask_b32 v{C0+q}, v{C0+q}, v{C0+4+q}, s[72:73]")
            for sw in ("v_permlane16_swap_b32", "v_permlane32_swap_b32"):
                for q in range(4): e(f"v_mov_b32 v{C1+q}, v{C0+q}")
                e("s_nop 0")
                for q in range(4): e(f"{sw} v{C0+q}, v{C1+q}")
                for q in range(4): e(f"v_add_f32 v{C0+q}, v{C0+q}, v{C1+q}")
            e("s_mov_b32 s71, 0xff")
            e(f"v_bfe_u32 v{C1+2}, v0, 3, 1")
            for q in range(4): e(f"v_bfi_b32 v{C0+q}, s71, v{A+6}, v{C0+q}")
            e(f"v_lshlrev_b32 v{C1+1}, 5, v5")
            e(f"v_lshl_add_u32 v{C1+1}, v{C1+2}, 4, v{C1+1}")
            e(f"s_mul_i32 s71, s20, {3328*4}")
            e("s_lshl_b32 s72, s66, 8")
            e("s_add_u32 s71, s71, s72")
            e(f"s_add_u32 s71, s71, {WS_CS:#x}")
            e("s_cmp_ge_u32 s66, 52")
            e("s_cbranch_scc1 L_P2S")
            e("s_mov_b64 exec, 0xffff")
            e(f"buffer_store_dwordx4 {vr(C0,4)}, v{C1+1}, {SS}, s71 offen sc1")
            e("s_mov_b64 exec, -1")
            e("L_P2S:")
    G0 = 84
    def gather():
        e(f"s_mov_b32 s71, {WS_CS:#x}")
        for g in range(16):
            e(f"buffer_load_dwordx4 {vr(G0+4*g,4)}, v15, {SS}, s71 offen sc1")
            e(f"s_add_u32 s71, s71, {3328*4}")
        e("s_lshl_b32 s71, s20, 11")
        e(f"s_add_u32 s71, s71, {WS_RS:#x}")
        for h in range(2):
            e(f"buffer_load_dwordx4 {vr(G0+64+4*h,4)}, v14, {SS}, s71 offen offset:{h*1024} sc1")
    PK = opt.get("pk", [0, 0, 1]); GK = opt.get("gk", 4); CK = opt.get("ck", 6)
    for n_, kk_ in enumerate(PK):
        if kk_ < 0: piece(n_)
    for k in range(16):
        if k == 2: e("s_waitcnt lgkmcnt(0)")
        bstamp(k)
        e("s_barrier")
        for n_, kk_ in enumerate(PK):
            if kk_ == k: piece(n_)
        if k == opt.get("pf2k", 2) and opt.get("pf2", 1):
            sk = lab("NOPF")
            e("s_cmp_lg_u32 s19, 1")
            e(f"s_cbranch_scc1 {sk}")
            srd(e, 44, 14, 1792 * 1024)
            srd(e, 48, 8, 512 * 1024)
            e("v_lshlrev_b32 v2, 7, v0")
            e("s_mul_i32 s71, s2, 7168")
            e("s_mov_b32 exec_hi, 0xffffff")
            e(f"buffer_load_dword v160, v2, {S2}, s71 offen")
            e("s_lshl_b32 s71, s2, 11")
            e("s_mov_b64 exec, 0xffff")
            e(f"buffer_load_dword v161, v2, {SO}, s71 offen")
            e("s_mov_b64 exec, -1")
            e(f"{sk}:")
        if k in (GK, CK, CK + 1):
            sk = lab("NOPOST")
            e("s_cmp_lg_u32 s19, 0")
            e(f"s_cbranch_scc1 {sk}")
            if k == GK: gather()
            if k == CK:
                e("s_mov_b32 s73, 0x20000")
                e("L_CHK:")
                e("s_waitcnt vmcnt(0)")
                e(f"v_xor_b32 v2, s61, v{G0}")
                for i in range(G0 + 1, G0 + 64): e(f"v_bitop3_b32 v2, v2, v{i}, s61 bitop3:0xf6")
                e("v_and_b32 v2, 0xff, v2")
                for i in (66, 67, 70, 71): e(f"v_bitop3_b32 v2, v2, v{G0+i}, s61 bitop3:0xf6")
                e("v_cmp_ne_u32 vcc, 0, v2")
                e("s_sub_u32 s73, s73, 1")
                e("s_cmp_eq_u32 s73, 0")
                e("s_cbranch_scc1 L_GOT")
                e("s_cmp_eq_u64 vcc, 0")
                e("s_cbranch_scc1 L_GOT")
                gather()
                e("s_branch L_CHK")
                e("L_GOT:")
            if k == CK + 1:
                e("s_mov_b32 s71, 0xffffff00")
                for i in range(G0, G0 + 64): e(f"v_and_b32 v{i}, s71, v{i}")
                for g in range(1, 16):
                    for h in range(2): e(f"v_pk_add_f32 {pk(G0+2*h)}, {pk(G0+2*h)}, {pk(G0+4*g+2*h)}")
                e(f"v_add_u32 v2, {L_ST}, v14")
                e(f"ds_write_b128 v2, {vr(G0+64,4)}")
                e(f"ds_write_b128 v2, {vr(G0+68,4)} offset:1024")
                e(f"ds_write_b128 v2, {vr(G0,4)} offset:2048")
                e("s_waitcnt lgkmcnt(0)")
                ldsadd(20, 2, 3)
            e(f"{sk}:")
    bflush()
    e(f"""v_and_b32 v2, 3, v0
    v_min_u32 v2, 2, v2
    s_sub_u32 s62, s20, 2
    v_add_u32 v2, s62, v2
    v_max_i32 v2, 0, v2
    v_lshlrev_b32 v2, 11, v2
    v_bfe_u32 v3, v0, 2, 1
    v_lshl_add_u32 v2, v3, 10, v2
    s_lshr_b32 s62, s23, 1
    s_lshl_b32 s62, s62, 7
    s_add_u32 s62, s62, {WS_F1:#x}
    v_mov_b32 v3, s61
    v_lshlrev_b32 v1, 4, v0
    s_lshr_b32 s64, s19, 1
    s_lshl_b32 s65, s23, 1
    s_add_u32 s65, s65, s64
    s_lshl_b32 s65, s65, 6
    s_and_b32 s66, s19, 1
    s_mul_i32 s66, s66, 6
    s_lshl_b32 s67, s20, 2
    s_add_u32 s66, s66, s67
    s_mul_i32 s67, s19, 6144""")
    stamp(3)
    e("s_barrier")
    poll(2, "s62", 3, 4)
    stamp(4)
    for t in range(6):
        e(f"s_add_u32 s68, s66, {t}")
        e("s_sub_i32 s68, s68, 8")
        e("s_max_i32 s68, s68, 0")
        e("s_add_u32 s68, s68, s65")
        e("s_lshl_b32 s68, s68, 10")
        e(f"s_add_u32 m0, s67, {L_K + t*1024}")
        e("s_add_u32 s69, s68, 0x200000")
        e(f"buffer_load_dwordx4 v1, {SS}, s68 offen sc1 lds")
        e(f"s_add_u32 m0, s67, {L_V + t*1024}")
        e("s_nop 0")
        e(f"buffer_load_dwordx4 v1, {SS}, s69 offen sc1 lds")
    e(f"v_add_u32 v2, {L_ONE}, v1")
    for q in range(4): e(f"v_mov_b32 v{8+q}, 0x3f803f80")
    e("ds_write_b128 v2, v[8:11]")
    e("s_add_u32 s96, s19, 4")
    e("s_mov_b32 s97, 0")
    e("s_waitcnt vmcnt(0) lgkmcnt(0)")
    ldsadd(16, 2, 3)
    stamp(5)

    e("L_ATT:")
    e.vm = []; e.lg = []
    Q = 8
    K = lambda u: 12 + 4 * u
    V = lambda u, g: 48 + ((u & 1) * 2 + g) * 4
    S = lambda b: 64 + 16 * b
    P, O = 112, 120
    VNEG, M0_, M1_, NM, MK = 136, 137, 138, 139, 140
    VA, VSTR = 148, 149
    for j in range(16):
        b0 = (j >> 2) * 8 + (j & 3)
        e(f"s_mov_b32 s{64+2*j}, {(0xffffffff << b0) & 0xffffffff:#x}")
        e(f"s_mov_b32 s{65+2*j}, {(0xffffffff << (b0+4)) & 0xffffffff:#x}")
    e(f"v_mov_b32 v{VNEG}, {NEG:#x}")
    e("v_mov_b32 v6, 0xffff")
    e("v_mov_b32 v7, 0xffff0000")
    for q in range(8):
        e(f"v_cndmask_b32 v{MK+q}, 0, v6, s[{64+4*q}:{65+4*q}]")
        e(f"v_cndmask_b32 v{S(2)}, 0, v7, s[{66+4*q}:{67+4*q}]")
        e(f"v_or_b32 v{MK+q}, v{MK+q}, v{S(2)}")
    e(f"""s_and_b32 s3, s96, 3
    s_lshl_b32 s26, s20, 2
    s_add_u32 s26, s26, s3
    s_add_u32 s25, s26, 1
    s_min_u32 s25, s25, 9
    s_lshr_b32 s62, s96, 2
    s_lshl_b32 s27, s23, 1
    s_add_u32 s27, s27, s62
    v_lshlrev_b32 v1, 4, v0
    s_lshl_b32 s63, s96, 10
    s_add_u32 s63, s63, {L_Q}
    v_add_u32 v3, s63, v1
    s_mul_i32 s62, s62, 12288
    s_lshl_b32 s3, s3, 10
    s_add_u32 s3, s3, s62
    s_add_u32 s62, s3, {L_K}
    v_add_u32 v4, s62, v1
    v_lshrrev_b32 v5, 5, v0
    v_lshlrev_b32 v5, 2, v5
    v_bfe_u32 v6, v0, 2, 2
    v_add_u32 v5, v5, v6
    v_lshlrev_b32 v5, 4, v5
    v_bfe_u32 v6, v0, 1, 1
    v_lshl_add_u32 v5, v6, 9, v5
    v_and_b32 v6, 1, v0
    v_lshl_add_u32 v5, v6, 3, v5
    s_add_u32 s3, s3, {L_V + 8192}
    v_add_u32 v5, s3, v5
    v_mov_b32 v6, {L_ONE}
    v_mov_b32 v7, 1024
    s_mov_b32 s98, 0xffff
    s_mov_b32 s99, 0xffff
    v_cndmask_b32 v5, v6, v5, s[98:99]
    v_cndmask_b32 v{VSTR}, 0, v7, s[98:99]
    v_lshlrev_b32 v7, 3, v{VSTR}
    v_sub_u32 v{VA+2}, v5, v7""")
    stamp(6)
    def owed():
        sk = lab("NOOWE")
        e("s_cmp_eq_u32 s97, 0")
        e(f"s_cbranch_scc1 {sk}")
        signal(12, 3, WS_F1B, 152, 153)
        e(f"{sk}:")
    if opt.get("owu", 0) == 0: owed()
    ldswait(16, 8, 2, 6)
    e(f"s_setprio {opt.get('aprio', 0)}")
    stamp(7)
    def fill(buf, val, diag):
        for j in range(16):
            a, b = (f"v{VNEG}", val) if diag else (val, f"v{VNEG}")
            e(f"v_cndmask_b32 v{S(buf)+j}, {a}, {b}, s[{64+2*j}:{65+2*j}]")
    def smfma(u, buf, cin):
        e.lwait(("K", u))
        e(f"v_mfma_f32_32x32x16_bf16 {vr(S(buf),16)}, {vr(K(u),4)}, {vr(Q,4)}, {cin}")
    def vread(u, par=None, va=None):
        if va is None:
            if u == 0: e(f"v_mov_b32 v{VA}, v5")
            else: e(f"v_sub_u32 v{VA}, v{VA}, v{VSTR}")
            va = VA
        for g in range(2):
            r = V(u if par is None else par, g)
            for h in range(2): e.lds(f"ds_read_b64_tr_b16 v[{r+2*h}:{r+2*h+1}], v{va} offset:{g*256 + h*128}", ("V", u))
    PD, PFR = S(2), S(2) + 8
    e.lds(f"ds_read_b128 {vr(Q,4)}, v3", "Q")
    for u in [0, 8, 1]: e.lds(f"ds_read_b128 {vr(K(u),4)}, v4 offset:{(8-u)*1024}", ("K", u))
    vread(0); vread(8, 1, VA + 2)
    smfma(0, 0, "0"); smfma(8, 2, "0"); smfma(1, 1, "0")
    for u in range(2, 8): e.lds(f"ds_read_b128 {vr(K(u),4)}, v4 offset:{(8-u)*1024}", ("K", u))
    e("s_nop 4")
    s0 = S(0)
    for j in range(16): e(f"v_cndmask_b32 v{s0+j}, v{S(2)+j}, v{s0+j}, s[{64+2*j}:{65+2*j}]")
    for j in range(16): e(f"v_exp_f32 v{s0+j}, v{s0+j}")
    for q in range(8): e(f"v_cvt_pk_bf16_f32 v{P+q}, v{s0+2*q}, v{s0+2*q+1}")
    for q in range(8): e(f"v_and_b32 v{PD+q}, v{MK+q}, v{P+q}")
    e.lwait(("V", 8))
    e(f"v_mfma_f32_32x32x16_bf16 {vr(O,16)}, {vr(V(0,0),4)}, {vr(PD,4)}, 0")
    for q in range(8): e(f"v_bfi_b32 v{PFR+q}, v{MK+q}, 0, v{P+q}")
    e(f"v_mfma_f32_32x32x16_bf16 {vr(O,16)}, {vr(V(0,1),4)}, {vr(PD+4,4)}, {vr(O,16)}")
    e("s_cmp_lt_u32 s25, 9")
    e("s_cbranch_scc1 L_NOFAR")
    e(f"v_mfma_f32_32x32x16_bf16 {vr(O,16)}, {vr(V(1,0),4)}, {vr(PFR,4)}, {vr(O,16)}")
    e(f"v_mfma_f32_32x32x16_bf16 {vr(O,16)}, {vr(V(1,1),4)}, {vr(PFR+4,4)}, {vr(O,16)}")
    e("L_NOFAR:")
    vread(1)
    e("s_cmp_eq_u32 s25, 1")
    e("s_cbranch_scc1 L_FCHK")
    def pv(u, g): e(f"v_mfma_f32_32x32x16_bf16 {vr(O,16)}, {vr(V(u,g),4)}, {vr(P+4*g,4)}, {vr(O,16)}")
    for u in range(1, 8):
        s_ = S(u % 2)
        if u + 1 <= 7: smfma(u + 1, (u + 1) % 2, "0")
        for j in range(2): e(f"v_exp_f32 v{s_+j}, v{s_+j}")
        if u > 1: pv(u - 1, 1)
        if u + 1 <= 7: vread(u + 1)
        for j in range(2, 8): e(f"v_exp_f32 v{s_+j}, v{s_+j}")
        for q in range(4): e(f"v_cvt_pk_bf16_f32 v{P+q}, v{s_+2*q}, v{s_+2*q+1}")
        for j in range(8, 10): e(f"v_exp_f32 v{s_+j}, v{s_+j}")
        e.lwait(("V", u))
        pv(u, 0)
        for j in range(10, 16): e(f"v_exp_f32 v{s_+j}, v{s_+j}")
        for q in range(4, 8): e(f"v_cvt_pk_bf16_f32 v{P+q}, v{s_+2*q}, v{s_+2*q+1}")
        if u < 7:
            e(f"s_cmp_eq_u32 s25, {u+1}")
            e(f"s_cbranch_scc1 L_FX{u&1}")
    e("L_FX1:")
    e("s_nop 1")
    pv(1, 1)
    e("s_branch L_FCHK")
    e("L_FX0:")
    e("s_nop 1")
    pv(0, 1)
    e("L_FCHK:")
    e("s_mov_b32 s52, 0x1f800000")
    e("s_mov_b32 s53, 0x5f800000")
    e("s_mov_b32 s3, 0x7f800000")
    e("s_waitcnt lgkmcnt(0)")
    e("s_nop 7")
    e(f"v_add_f32 v6, |v{O}|, |v{O+1}|")
    e(f"v_add_f32 v7, |v{O+2}|, |v{O+3}|")
    e(f"v_add_f32 v2, |v{O+4}|, |v{O+5}|")
    e(f"v_add_f32 v3, |v{O+6}|, |v{O+7}|")
    e(f"v_cmp_le_f32 s[62:63], s52, v{O+8}")
    e(f"v_cmp_ge_f32 s[98:99], s53, v{O+8}")
    e("v_add_f32 v6, v6, v7")
    e("v_add_f32 v2, v2, v3")
    e("v_add_f32 v6, v6, v2")
    e("s_and_b64 s[62:63], s[62:63], s[98:99]")
    e("v_cmp_gt_f32 vcc, s3, v6")
    e("s_nop 0")
    e("s_and_b64 s[62:63], s[62:63], vcc")
    e("s_cmp_eq_u64 s[62:63], -1")
    if opt.get("forceslow"): e("s_cmp_eq_u32 s62, 12345")
    e("s_cbranch_scc1 L_P2DONE")
    e.lg = []
    e(f"v_mov_b32 v{M0_}, v{VNEG}")
    e(f"v_mov_b32 v{M1_}, v{VNEG}")
    fill(0, "0", True)
    e("s_nop 1")
    smfma(0, 0, vr(S(0), 16))
    smfma(1, 1, "0")
    for u in range(9):
        if u + 2 <= 8:
            if u + 2 == 8:
                fill((u + 2) % 3, "0", False); e("s_nop 1")
                smfma(u + 2, (u + 2) % 3, vr(S((u + 2) % 3), 16))
            else:
                smfma(u + 2, (u + 2) % 3, "0")
        if u == 0: e("s_nop 9")
        for q in range(8):
            m = M0_ + (q & 1)
            e(f"v_max3_f32 v{m}, v{S(u%3)+2*q}, v{S(u%3)+2*q+1}, v{m}")
        if u < 8:
            e(f"s_cmp_eq_u32 s25, {u+1}")
            e("s_cbranch_scc1 L_P1DONE")
    e("L_P1DONE:")
    vread(0)
    e(f"v_max_f32 v{M0_}, v{M0_}, v{M1_}")
    e(f"v_mov_b32 v{M1_}, v{M0_}")
    e("s_nop 1")
    e(f"v_permlane32_swap_b32 v{M0_}, v{M1_}")
    e("s_nop 1")
    e(f"v_max_f32 v{M0_}, v{M0_}, v{M1_}")
    e(f"v_sub_f32 v{NM}, 0, v{M0_}")
    e("s_nop 3")
    CB = S(2)
    for j in range(16): e(f"v_mov_b32 v{CB+j}, v{NM}")
    fill(0, f"v{NM}", True)
    e("s_nop 1")
    smfma(0, 0, vr(S(0), 16))
    for u in range(9):
        s = S(u % 2)
        if u + 1 <= 8:
            nb_ = (u + 1) % 2
            if u + 1 == 8:
                fill(nb_, f"v{NM}", False); e("s_nop 1")
                smfma(u + 1, nb_, vr(S(nb_), 16))
            else:
                smfma(u + 1, nb_, vr(CB, 16))
            vread(u + 1)
        if u == 0: e("s_nop 6")
        for j in range(8): e(f"v_exp_f32 v{s+j}, v{s+j}")
        for q in range(4): e(f"v_cvt_pk_bf16_f32 v{P+q}, v{s+2*q}, v{s+2*q+1}")
        for j in range(8, 16): e(f"v_exp_f32 v{s+j}, v{s+j}")
        e.lwait(("V", u))
        e(f"v_mfma_f32_32x32x16_bf16 {vr(O,16)}, {vr(V(u,0),4)}, {vr(P,4)}, {'0' if u == 0 else vr(O,16)}")
        for q in range(4, 8): e(f"v_cvt_pk_bf16_f32 v{P+q}, v{s+2*q}, v{s+2*q+1}")
        e("s_nop 1")
        e(f"v_mfma_f32_32x32x16_bf16 {vr(O,16)}, {vr(V(u,1),4)}, {vr(P+4,4)}, {vr(O,16)}")
        if u < 8:
            e(f"s_cmp_eq_u32 s25, {u+1}")
            e("s_cbranch_scc1 L_P2X")
    e("L_P2X:")
    e("s_waitcnt lgkmcnt(0)")
    e("s_nop 12")
    e("L_P2DONE:")
    e("s_lshl_b32 s3, s26, 5")
    e("s_add_u32 s3, s3, s27")
    e("s_lshl_b32 s3, s3, 10")
    e(f"s_add_u32 s3, s3, {WS_O:#x}")
    e(f"v_rcp_f32 v7, v{O+8}")
    e("s_nop 0")
    for j in range(8): e(f"v_mul_f32 v{O+j}, v{O+j}, v7")
    for q in range(4): e(f"v_cvt_pk_bf16_f32 v{P+q}, v{O+2*q}, v{O+2*q+1}")
    e(f"buffer_store_dwordx4 {vr(P,4)}, v1, {SS}, s3 offen sc1")
    stamp(8)
    signal(8, 7, WS_F2)
    stamp(9)
    e("s_cmp_lg_u32 s2, 0")
    e("s_cbranch_scc1 L_FIN")
    e("s_cmp_lg_u32 s96, 1")
    e("s_cbranch_scc1 L_FIN")
    e("v_lshlrev_b32 v6, 7, v0")
    e("s_mov_b32 s63, 0x20000")
    e("L_BCHK:")
    for g in range(4):
        e(f"s_mov_b32 s62, {WS_F2 + g*8192:#x}")
        e(f"buffer_load_dword v{8+g}, v6, {SS}, s62 offen sc1")
    e("s_waitcnt vmcnt(0)")
    e("v_xor_b32 v7, s61, v8")
    for i in range(9, 12): e(f"v_bitop3_b32 v7, v7, v{i}, s61 bitop3:0xf6")
    e("v_cmp_ne_u32 vcc, 0, v7")
    e("s_sub_u32 s63, s63, 1")
    e("s_cmp_eq_u32 s63, 0")
    e("s_cbranch_scc1 L_FIN")
    e("s_cmp_lg_u64 vcc, 0")
    e("s_cbranch_scc1 L_BCHK")
    e("s_mov_b64 exec, 1")
    e("v_mov_b32 v6, 0")
    e("v_mov_b32 v7, s61")
    e(f"s_mov_b32 s62, {WS_EP:#x}")
    e(f"buffer_store_dword v7, v6, {SS}, s62 offen sc1")
    e("s_mov_b64 exec, -1")
    e("L_FIN:")
    e.vm = []; e.lg = []
    srd(e, 28, 10, 2048 * 1024)
    e(f"""v_lshrrev_b32 v7, 3, v0
    v_and_b32 v14, 7, v0
    v_lshlrev_b32 v8, 4, v14
    v_lshl_add_u32 v2, v7, 10, v8
    s_lshl_b32 s62, s58, 16
    s_lshl_b32 s3, s96, 13
    s_add_u32 s62, s62, s3
    s_lshl_b32 s3, s59, 7
    s_add_u32 s62, s62, s3""")
    e(f"buffer_load_dwordx4 v[8:11], v2, {SX}, s62 offen")
    e(f"""s_and_b32 s3, s96, 3
    s_lshl_b32 s3, s3, 10
    s_cmp_ge_u32 s96, 4
    s_mov_b32 s63, {BREG[0]}
    s_cselect_b32 s63, {BREG[2]}, s63
    s_mov_b32 s64, {BREG[1]}
    s_cselect_b32 s64, {BREG[3]}, s64
    s_add_u32 s63, s63, s3
    s_add_u32 s64, s64, s3
    v_and_b32 v12, 3, v0
    v_lshlrev_b32 v12, 1, v12
    v_xor_b32 v12, v12, v7
    v_bfe_u32 v13, v0, 2, 1
    v_xor_b32 v12, v12, v13
    v_lshlrev_b32 v12, 4, v12
    v_lshl_add_u32 v12, v7, 7, v12
    v_mov_b32 v15, s63
    v_mov_b32 v16, s64
    v_cmp_eq_u32 vcc, 1, v13
    s_nop 1
    v_cndmask_b32 v15, v15, v16, vcc
    v_add_u32 v24, v15, v12
    v_xor_b32 v25, 16, v24""")
    stamp(10)
    e("s_barrier")
    stamp(11)
    R = lambda src, h: 48 + src * 8 + h * 4
    for src in range(4):
        for h in range(2): e.lds(f"ds_read_b128 {vr(R(src,h),4)}, v{24+h} offset:{src*4096}", src)
    e("s_mov_b32 s3, 0xffff0000")
    e("s_waitcnt vmcnt(0)")
    for q in range(4):
        e(f"v_lshlrev_b32 v{32+2*q}, 16, v{8+q}")
        e(f"v_and_b32 v{33+2*q}, s3, v{8+q}")
    for src in range(4):
        e.lwait(src)
        for q in range(4): e(f"v_pk_add_f32 {pk(32+2*q)}, {pk(32+2*q)}, {pk(R(src,0)+2*q)}")
    for q in range(4): e(f"v_cvt_pk_bf16_f32 v{40+q}, v{32+2*q}, v{33+2*q}")
    e("buffer_store_dwordx4 v[40:43], v2, s[28:31], s62 offen")
    if ST:
        e("L_DUMP:")
        stamp(12)
        e("s_waitcnt vmcnt(0)")
        stamp(13); stamp(14, True)
        e("s_mul_i32 s3, s2, 12")
        e("s_add_u32 s3, s3, s18")
        e("s_lshl_b32 s3, s3, 7")
        e("s_add_u32 s3, s3, 0x1000000")
        e("v_lshl_add_u32 v2, v0, 2, s3")
        e("s_mov_b64 exec, 0xffffffff")
        e(f"global_store_dword v2, v{VST}, s[16:17]")
    e("L_END:")
    e("s_endpgm")
    return name, e.text(), kd(name, 168), (256, 768, LDS)

def build(opt, path):
    n, t, k, (g, b, lds) = gen(opt)
    ref = open(f"cdna_kernels/{NAME}.s.ref").read().split("\n")
    head = [l for l in ref if l.startswith(";") and "@launch" not in l and "Override launch" not in l and "grid=ceil" not in l]
    s = "\n".join(head[:10]) + "\n"
    s += f"; @launch grid=({g},1,1) block=({b},1,1) lds={lds}\n"
    s += '.amdgcn_target "amdgcn-amd-amdhsa--gfx950"\n.text\n'
    s += f".globl {n}\n.p2align 8\n.type {n},@function\n" + t
    s += '.section .rodata,"a"\n.p2align 6\n' + k
    open(path, "w").write(s)

if __name__ == "__main__":
    import sys, json
    opt = json.loads(sys.argv[2]) if len(sys.argv) > 2 else {}
    build(opt, sys.argv[1])
```

```python
from emit import *
from alloc import plan3

NAME = "parallel_sum__sliding_block__dense_activation_relu__prompt"
WS_KV, WS_H, WS_O = 0, 0x600000, 0xD00000
WS_RS = 0xF00000
WS_CS = 0xF10000
WS_EP = 0xF80000
WS_F1, WS_F1B, WS_F2, WS_F1H = 0xF90000, 0xFA0000, 0xFB0000, 0xFC0000
WS_BYTES = 0x1000000
EPC = 0x9E3779B9
L_ST = 158720
L_MISC = L_ST + 3072
LDS = L_MISC + 64
ORD2 = list(range(6, 16)) + list(range(6))
NEG = 0xf149f2ca
pk = lambda a: f"v[{a}:{a+1}]"
SW, S1, SX, SS, S2, SO = "s[28:31]", "s[32:35]", "s[36:39]", "s[40:43]", "s[44:47]", "s[48:51]"
VST = 167

def reduce32(e, regs, tmp):
    for ctl in ("quad_perm:[1,0,3,2]", "quad_perm:[2,3,0,1]", "row_half_mirror", "row_mirror"):
        e("s_nop 1")
        for r in regs: e(f"v_add_f32_dpp v{r}, v{r}, v{r} {ctl} row_mask:0xf bank_mask:0xf")
    for r, t in zip(regs, tmp): e(f"v_mov_b32 v{t}, v{r}")
    e("s_nop 1")
    for r, t in zip(regs, tmp): e(f"v_permlane16_swap_b32 v{r}, v{t}")
    e("s_nop 1")
    for r, t in zip(regs, tmp): e(f"v_add_f32 v{r}, v{r}, v{t}")

def gen(opt):
    e = Em()
    name = NAME + "_kernel"
    ST = opt.get("stamps")
    NB = 6
    PL = opt.get("pl", 2)
    XA, W1A, W2A, FIN = plan3(PL, opt.get("w2l", 2), NB)
    BREG = [FIN[f"B{j}"][1] for j in range(NB)]
    BT = [max(FIN[f"B{j}"][0], min(16, opt.get("bt0", 16) + j)) for j in range(NB)]
    L_K, L_V, L_Q, L_ONE = FIN["K"], FIN["V"], FIN["Q"], FIN["ONES"]
    def stamp(i, rt=False):
        if not ST: return
        e(("s_memrealtime" if rt else "s_memtime") + " s[100:101]")
        e("s_waitcnt lgkmcnt(0)")
        e(f"v_writelane_b32 v{VST}, s100, {i}")
    BK = opt.get("bk", [])
    def bstamp(k):
        if ST and k in BK: e(f"s_memtime s[{80+2*BK.index(k)}:{81+2*BK.index(k)}]")
    def bflush():
        if ST and BK:
            e("s_waitcnt lgkmcnt(0)")
            for i in range(len(BK)): e(f"v_writelane_b32 v{VST}, s{80+2*i}, {16+i}")
    uid = [0]
    def lab(p):
        uid[0] += 1
        return f"{p}_{uid[0]}"
    def poll(voff, soff, vtag, vd):
        L, D = lab("POLL"), lab("POLLED")
        e("s_mov_b32 s63, 0x40000")
        e(f"{L}:")
        e(f"buffer_load_dword v{vd}, v{voff}, {SS}, {soff} offen sc1")
        e("s_waitcnt vmcnt(0) lgkmcnt(0)")
        e(f"v_cmp_ne_u32 vcc, v{vtag}, v{vd}")
        e("s_sub_u32 s63, s63, 1")
        e("s_cmp_eq_u32 s63, 0")
        e(f"s_cbranch_scc1 {D}")
        e("s_cmp_lg_u64 vcc, 0")
        e(f"s_cbranch_scc1 {L}")
        e(f"{D}:")
        e.vm = []; e.lg = []
    def ldswait(off, val, va, vb):
        L, D = lab("LW"), lab("LWOK")
        e(f"v_mov_b32 v{va}, {L_MISC}")
        e("s_mov_b32 s63, 0x400000")
        e(f"{L}:")
        e(f"ds_read_b32 v{vb}, v{va} offset:{off}")
        e("s_sub_u32 s63, s63, 1")
        e("s_waitcnt lgkmcnt(0)")
        e(f"v_readfirstlane_b32 s62, v{vb}")
        e("s_cmp_eq_u32 s63, 0")
        e(f"s_cbranch_scc1 {D}")
        e(f"s_cmp_ge_u32 s62, {val}")
        e(f"s_cbranch_scc1 {D}")
        e("s_sleep 1")
        e(f"s_branch {L}")
        e(f"{D}:")
        e.lg = []
    def ldsadd(off, va, vb):
        e(f"v_mov_b32 v{va}, {L_MISC}")
        e(f"v_mov_b32 v{vb}, 1")
        e("s_mov_b64 exec, 1")
        e(f"ds_add_u32 v{va}, v{vb} offset:{off}")
        e("s_mov_b64 exec, -1")
    def signal(coff, last, base, va=2, vb=3, vm=0):
        N = lab("NOFLAG")
        e(f"s_waitcnt vmcnt({vm})")
        e(f"v_mov_b32 v{va}, {L_MISC}")
        e(f"v_mov_b32 v{vb}, 1")
        e("s_mov_b64 exec, 1")
        e(f"ds_add_rtn_u32 v{vb}, v{va}, v{vb} offset:{coff}")
        e(f"s_add_u32 s62, s24, {base:#x}")
        e("s_waitcnt lgkmcnt(0)")
        e(f"v_readfirstlane_b32 s63, v{vb}")
        e(f"s_cmp_lg_u32 s63, {last}")
        e(f"s_cbranch_scc1 {N}")
        e(f"v_mov_b32 v{va}, 0")
        e(f"v_mov_b32 v{vb}, s61")
        e(f"buffer_store_dword v{vb}, v{va}, {SS}, s62 offen sc1")
        e(f"{N}:")
        e("s_mov_b64 exec, -1")
        e.lg = []

    e(f"{name}:")
    e("s_cmp_ge_u32 s2, 256")
    e("s_cbranch_scc1 L_END")
    stamp(0, True); stamp(1)
    e("s_load_dwordx4 s[4:7], s[0:1], 0")
    e("s_load_dwordx4 s[12:15], s[0:1], 32")
    e("s_load_dwordx2 s[16:17], s[0:1], 64")
    e("s_load_dwordx2 s[8:9], s[0:1], 16")
    e("s_load_dwordx2 s[10:11], s[0:1], 48")
    e("v_lshrrev_b32 v1, 6, v0")
    e("v_and_b32 v0, 63, v0")
    e("v_readfirstlane_b32 s18, v1")
    e("""s_and_b32 s3, s2, 1
    s_lshl_b32 s20, s3, 3
    s_lshr_b32 s24, s2, 5
    s_add_u32 s20, s20, s24
    s_bfe_u32 s21, s2, 0x20001
    s_bfe_u32 s22, s2, 0x20003
    s_lshl_b32 s23, s21, 2
    s_add_u32 s23, s23, s22
    s_lshl_b32 s24, s20, 4
    s_add_u32 s24, s24, s23
    s_lshl_b32 s24, s24, 7
    s_and_b32 s19, s18, 3
    s_lshl_b32 s3, s3, 2
    s_add_u32 s58, s3, s21
    s_lshl_b32 s58, s58, 2
    s_lshr_b32 s59, s2, 6
    s_add_u32 s58, s58, s59
    s_bfe_u32 s59, s2, 0x30003""")
    e("s_waitcnt lgkmcnt(0)")
    srd(e, 36, 4, 2048 * 1024)
    srd(e, 28, 6, 512 * 3072)
    srd(e, 32, 12, 512 * 3584)
    srd(e, 40, 16, WS_BYTES)
    e("s_cmp_ge_u32 s18, 8")
    e("s_cbranch_scc1 L_UTIL")
    e("s_cmp_ge_u32 s18, 4")
    e("s_cbranch_scc1 L_CONS")

    e(f"""v_and_b32 v5, 7, v0
    v_lshrrev_b32 v2, 3, v0
    v_lshrrev_b32 v3, 4, v0
    v_xor_b32 v3, v3, v5
    v_lshlrev_b32 v2, 10, v2
    v_lshl_add_u32 v12, v3, 4, v2
    v_xor_b32 v13, 64, v12
    s_lshl_b32 s65, s20, 17
    s_lshl_b32 s3, s18, 15
    s_add_u32 s65, s65, s3
    s_lshl_b32 s67, s18, 12""")
    def issueX(P):
        e(f"s_add_u32 m0, s67, {XA[P]}")
        e(f"s_add_u32 s74, s65, {P*128}")
        for a in range(4):
            e.vmem(f"buffer_load_dwordx4 v{12+(a&1)}, {SX}, s74 offen offset:{a*1024} lds", ("x", P))
            if a < 3: e(f"s_add_u32 s74, s74, {8192-1024}")
    issueX(0)
    e("""v_lshrrev_b32 v2, 5, v0
    v_bfe_u32 v3, v0, 3, 2
    v_lshl_add_u32 v3, v2, 3, v3
    v_bfe_u32 v4, v0, 4, 2
    v_lshlrev_b32 v4, 1, v4
    v_xor_b32 v4, v4, v5
    v_lshlrev_b32 v4, 4, v4
    v_mul_u32_u24 v10, 3072, v3
    v_add_u32 v10, v10, v4
    v_mul_u32_u24 v11, 3584, v3
    v_add_u32 v11, v11, v4
    s_lshr_b32 s52, s18, 1
    s_lshl_b32 s52, s52, 5
    s_and_b32 s62, s18, 1
    s_lshl_b32 s3, s62, 2
    s_add_u32 s52, s52, s3
    s_lshl_b32 s3, s23, 7
    s_mul_i32 s53, s52, 3072
    s_add_u32 s53, s53, s3
    s_add_u32 s53, s53, 1024
    s_mul_i32 s54, s52, 3584
    s_add_u32 s54, s54, s3""")
    def issueW(c):
        for ah in range(2):
            e(f"s_add_u32 m0, s67, {W1A[c] + ah*2048}")
            e(f"s_add_u32 s74, s53, {(64*c + 16*ah)*3072}")
            e.vmem(f"buffer_load_dwordx4 v10, {SW}, s74 offen lds", ("w", c))
            e(f"s_add_u32 m0, s67, {W1A[c] + ah*2048 + 1024}")
            e(f"s_add_u32 s74, s54, {(64*c + 16*ah)*3584}")
            e.vmem(f"buffer_load_dwordx4 v11, {S1}, s74 offen lds", ("w", c))
    def esetup():
        e("""v_lshrrev_b32 v2, 4, v0
        v_bfe_u32 v3, v0, 2, 2
        v_lshl_add_u32 v3, v2, 3, v3
        v_mul_u32_u24 v16, 3072, v3
        v_and_b32 v2, 1, v2
        v_lshlrev_b32 v2, 1, v2
        v_and_b32 v3, 3, v0
        v_xor_b32 v2, v2, v3
        v_lshl_add_u32 v16, v2, 4, v16
        s_and_b32 s62, s18, 1
        s_lshl_b32 s3, s62, 7""")
        for j in range(2):
            e(f"""v_add_u32 v2, s3, v0
            v_add_u32 v2, {64*j}, v2
            v_mul_u32_u24 v3, 10923, v2
            v_lshrrev_b32 v3, 16, v3
            v_mul_u32_u24 v4, 6, v3
            v_sub_u32 v4, v2, v4
            v_bfe_u32 v6, v3, 2, 2
            v_lshlrev_b32 v6, 3, v6
            v_lshrrev_b32 v7, 4, v3
            v_lshl_add_u32 v6, v7, 2, v6
            v_and_b32 v7, 3, v3
            v_add_u32 v6, v6, v7
            v_mul_u32_u24 v{17+j}, 3584, v6
            v_lshl_add_u32 v{17+j}, v4, 4, v{17+j}""")
        e("""s_cmp_eq_u32 s62, 1
        s_cselect_b32 s3, 0x80000000, 0
        v_or_b32 v18, s3, v18
        s_lshr_b32 s3, s18, 1
        s_mul_i32 s55, s52, 3072
        s_lshl_b32 s64, s23, 6
        s_add_u32 s55, s55, s64
        s_mul_i32 s56, s3, 114688
        s_mul_i32 s64, s23, 96
        s_add_u32 s56, s56, s64
        s_add_u32 s56, s56, 2048
        s_mul_i32 s57, s3, 5120
        s_lshl_b32 s64, s62, 10
        s_add_u32 s60, s57, s64
        s_lshl_b32 s64, s62, 11
        s_add_u32 s57, s57, s64
        s_add_u32 s64, s57, 1024
        s_cmp_eq_u32 s62, 1
        s_cselect_b32 s64, 8192, s64""")
    def issueW2(c):
        p = ORD2[2 * c]
        base = W2A[c][1]
        e(f"s_add_u32 m0, s60, {base}")
        e(f"s_add_u32 s74, s55, {p*32*3072}")
        e.vmem(f"buffer_load_dwordx4 v16, {SW}, s74 offen lds", ("w2", c))
        e(f"s_add_u32 m0, s57, {base + 2048}")
        e(f"s_add_u32 s74, s56, {p*32*3584}")
        e.vmem(f"buffer_load_dwordx4 v17, {S1}, s74 offen lds", ("w2", c))
        e(f"s_add_u32 m0, s64, {base + 2048}")
        e("s_nop 0")
        e.vmem(f"buffer_load_dwordx4 v18, {S1}, s74 offen lds", ("w2", c))
    NF2, NS, NA = 14, 18, 4
    A0 = 20
    AF = lambda sg, tb, kk: A0 + (sg % NA) * 16 + (tb * 2 + kk) * 4
    ACB = A0 + NA * 16
    GACC = lambda tb, nb: ACB + (tb * 2 + nb) * 16
    BFB = ACB + 64
    BF = lambda kk, nb: BFB + (kk * 2 + nb) * 4
    assert BFB + 16 <= VST
    def gsetup():
        srd(e, 44, 14, 1792 * 1024)
        srd(e, 48, 8, 512 * 1024)
        e(f"""v_lshrrev_b32 v8, 3, v0
        v_bfe_u32 v2, v0, 4, 1
        v_lshlrev_b32 v2, 2, v2
        v_xor_b32 v9, v5, v2
        v_lshlrev_b32 v9, 4, v9
        v_lshl_add_u32 v14, v8, 10, v9
        v_lshrrev_b32 v2, 2, v8
        v_lshlrev_b32 v2, 3, v2
        v_and_b32 v8, 3, v8
        v_add_u32 v8, v8, v2
        v_lshl_add_u32 v15, v8, 10, v9
        v_lshlrev_b32 v1, 4, v0
        s_lshl_b32 s3, s59, 7
        s_lshl_b32 s70, s18, 18
        s_add_u32 s70, s70, s3
        s_mul_i32 s78, s18, {12*16*1024}
        s_add_u32 s78, s78, s3
        s_lshl_b32 s71, s18, 17
        s_add_u32 s71, s71, s3
        s_mul_i32 s72, s58, {2*112*1024}
        s_add_u32 s72, s72, {WS_H:#x}
        s_mul_i32 s79, s18, {12*1024}
        s_add_u32 s79, s79, s72
        s_lshl_b32 s3, s18, 14
        s_add_u32 s72, s72, s3
        s_lshl_b32 s73, s58, 16
        s_lshl_b32 s3, s18, 13
        s_add_u32 s73, s73, s3
        s_add_u32 s73, s73, {WS_O:#x}""")
    KS = [(2 * i, False) for i in range(8)] + [(64 + 2 * i, True) for i in range(6)]
    def issueB(sg):
        for a in range(4):
            e(f"s_add_u32 m0, s67, {BREG[sg % NB] + a*1024}")
            if sg < NF2:
                k16, ex = KS[sg]
                e(f"s_add_u32 s74, {'s78' if ex else 's70'}, {(16*k16 + 8*a)*1024}")
                e.vmem(f"buffer_load_dwordx4 v14, {S2}, s74 offen lds", ("B", sg))
            else:
                e(f"s_add_u32 s74, s71, {(32*(sg-NF2) + 16*(a>>1) + 4*(a&1))*1024}")
                e.vmem(f"buffer_load_dwordx4 v15, {SO}, s74 offen lds", ("B", sg))
    def issueA(sg):
        for tb in range(2):
            if sg < NF2:
                k16, ex = KS[sg]
                e(f"s_add_u32 s74, {'s79' if ex else 's72'}, {(tb*112 + k16)*1024}")
            else: e(f"s_add_u32 s74, s73, {(tb*32 + 2*(sg-NF2))*1024}")
            for kk in range(2):
                e.vmem(f"buffer_load_dwordx4 {vr(AF(sg,tb,kk),4)}, v1, {SS}, s74 offen offset:{kk*1024} sc1", ("A", sg))
    issueW(0)
    for c in range(1, PL): issueX(c); issueW(c)
    for k in range(17):
        e.vwait([("w", k), ("x", k)] if k < 8 else [("w2", k - 8)])
        if k == 0: stamp(2)
        if k == 8: stamp(3)
        if k == 16: stamp(4)
        bstamp(k)
        if k == 16: bflush()
        e("s_barrier")
        if k + PL <= 7: issueX(k + PL); issueW(k + PL)
        if k == 1: gsetup()
        if k == 2: esetup()
        for c in range(8):
            if W2A[c][0] == k: issueW2(c)
        if k < 16:
            for j in range(NB):
                if BT[j] == k: issueB(j)
    if opt.get("gprio", 0): e(f"s_setprio {opt.get('gprio')}")
    e(f"""v_lshrrev_b32 v6, 5, v0
    v_lshlrev_b32 v6, 3, v6
    v_bfe_u32 v7, v0, 2, 2
    v_add_u32 v6, v6, v7
    v_lshlrev_b32 v6, 7, v6
    v_lshrrev_b32 v7, 1, v7
    v_lshl_add_u32 v6, v7, 6, v6
    v_bfe_u32 v7, v0, 4, 1
    v_lshl_add_u32 v6, v7, 5, v6
    v_and_b32 v7, 3, v0
    v_lshl_add_u32 v6, v7, 3, v6
    v_add_u32 v6, s67, v6
    v_xor_b32 v7, 64, v6
    v_add_u32 v8, 49152, v6
    v_add_u32 v9, 49152, v7
    v_mov_b32 v2, {L_MISC}
    ds_read_b32 v2, v2
    v_and_b32 v3, 3, v0
    v_lshlrev_b32 v3, 7, v3
    s_lshr_b32 s76, s58, 1
    s_lshl_b32 s76, s76, 11
    s_lshl_b32 s3, s18, 9
    s_add_u32 s76, s76, s3
    s_add_u32 s62, s76, {WS_F1H:#x}""")
    for j in range(opt.get("bpre", 2)):
        if BT[j] >= 16: issueB(j)
    poll(3, "s62", 2, 4)
    stamp(5)
    D = opt.get("gd", 3); DB = NB - 1; PS = opt.get("ps", 11); PB = 8 - D - 1
    for sg in range(max(D, NB)):
        if sg < NB and BT[sg] >= 16 and sg >= opt.get("bpre", 2): issueB(sg)
        if sg < D: issueA(sg)
    def step(sg):
        if sg == opt.get("ghold", -1): ldswait(16, 8, 12, 13)
        e.vwait([("B", sg), ("A", sg)])
        reg = BREG[sg % NB]
        hi = reg // 49152
        off0 = reg - 49152 * hi
        for kk in range(2):
            for nb in range(2):
                for q in range(2):
                    e.lds(f"ds_read_b64_tr_b16 v[{BF(kk,nb)+2*q}:{BF(kk,nb)+2*q+1}], v{6+2*hi+nb} offset:{off0 + kk*2048 + q*512}", (kk, nb))
        if NB <= sg + DB < NS: issueB(sg + DB)
        if sg + D < NF2 or (sg + D < NS and sg > PS): issueA(sg + D)
        for kk in range(2):
            for nb in range(2):
                e.lwait((kk, nb))
                for tb in range(2):
                    acc = vr(GACC(tb, nb), 16)
                    cin = "0" if (sg == 0 and kk == 0) else acc
                    e(f"v_mfma_f32_32x32x16_bf16 {acc}, {vr(BF(kk,nb),4)}, {vr(AF(sg,tb,kk),4)}, {cin}")
    for sg in range(PS + 1):
        step(sg)
        if sg == PB:
            stamp(6)
            e(f"s_add_u32 s62, s76, {WS_F1B:#x}")
            poll(3, "s62", 2, 4)
    stamp(7)
    e(f"s_add_u32 s62, s76, {WS_F2:#x}")
    poll(3, "s62", 2, 4)
    stamp(8)
    for sg in range(NF2, min(NS, PS + 1 + D)): issueA(sg)
    for sg in range(PS + 1, NS): step(sg)
    stamp(9)
    e("""v_and_b32 v12, 31, v0
    v_lshlrev_b32 v12, 7, v12
    v_lshrrev_b32 v13, 5, v0
    v_xor_b32 v13, v13, v5
    v_lshl_add_u32 v12, v13, 4, v12
    v_add_u32 v12, s67, v12""")
    for nb in range(2):
        for a in range(4): e(f"v_xor_b32 v{20+nb*4+a}, {((2*a) ^ nb)*16}, v12")
    for tb in range(2):
        for nb in range(2):
            for a in range(4): e(f"v_add_u32 v{28+(tb*2+nb)*4+a}, {BREG[tb*2+nb]}, v{20+nb*4+a}")
    for tb in range(2):
        for nb in range(2):
            for a in range(4): e(f"ds_write_b128 v{28+(tb*2+nb)*4+a}, {vr(GACC(tb,nb)+4*a,4)}")
    e("s_waitcnt lgkmcnt(0)")
    stamp(10)
    e("s_barrier")
    if ST: e("s_branch L_DUMP")
    e("s_endpgm")

    e("L_CONS:")
    e.vm = []; e.lg = []
    LA = opt.get("la", 5); NFB = 6
    F = lambda f: 8 + (f % NFB) * 4
    XF = lambda n, r: 32 + ((n & 1) * 2 + r) * 4
    XK = lambda p, r: 48 + (p * 2 + r) * 4
    ACC = lambda s, r: 96 + (s * 2 + r) * 4
    AW = [1, 2, 3, 4]; AX = [7, 5]
    e(f"""v_lshrrev_b32 v8, 2, v0
    v_lshrrev_b32 v9, 3, v8
    v_lshlrev_b32 v9, 11, v9
    v_and_b32 v10, 7, v8
    v_lshl_add_u32 v9, v10, 7, v9
    v_and_b32 v10, 3, v0
    v_lshlrev_b32 v10, 3, v10
    v_add_u32 v9, v9, v10
    v_bfe_u32 v11, v0, 3, 2
    v_lshl_add_u32 v1, v11, 5, v9
    v_add_u32 v1, {W1A[0]}, v1
    v_xor_b32 v2, 32, v1
    v_xor_b32 v3, 64, v1
    v_xor_b32 v4, 96, v1
    v_and_b32 v8, 15, v0
    v_lshrrev_b32 v9, 4, v0
    v_lshrrev_b32 v10, 1, v8
    v_xor_b32 v9, v9, v10
    v_lshlrev_b32 v8, 7, v8
    v_lshl_add_u32 v7, v9, 4, v8
    s_lshl_b32 s3, s19, 12
    s_add_u32 s3, s3, {XA[0]}
    v_add_u32 v7, s3, v7
    v_xor_b32 v5, 64, v7""")
    if opt.get("cprio", 0): e(f"s_setprio {opt.get('cprio')}")
    cur = {"w": W1A[0], "x": XA[0]}
    DEF = []; NST = [0]; TIM = opt.get("tim", 2)
    def move(kind, regs, addr):
        d = addr - cur[kind]
        if d:
            for a in regs: e(f"v_add_u32 v{a}, {d & 0xffffffff:#x}, v{a}")
        cur[kind] = addr
    def gemm(ps):
        NSB = 8 if ps == 1 else 5
        NF = 16 * NSB
        kst = (lambda n: n) if ps == 1 else (lambda n: ORD2[n])
        xreg = lambda n, r: XK(kst(n), r) if kst(n) < 6 else XF(n, r)
        def rd(f):
            n, s = divmod(f, NSB)
            for q in range(2):
                if ps == 1:  a, off = AW[s & 3], (n & 1) * 8192 + q * 4096 + (s >> 2) * 1024
                elif s < 2:  a, off = AW[s], (n & 1) * 5120 + q * 1024
                else:        a, off = AW[2], (n & 1) * 5120 + 2048 + q * 1536 + (s - 2) * 32
                yield f"ds_read_b64_tr_b16 v[{F(f)+2*q}:{F(f)+2*q+1}], v{a} offset:{off}"
        def kswitch(n):
            if n % 2 == 0:
                if ps == 1: move("w", AW, W1A[n // 2])
                else:       move("w", AW[:3], W2A[n // 2][1])
                bstamp(8 * (ps - 1) + n // 2)
                e("s_barrier")
                if ps == 2:
                    for _ in range(opt.get("tper", 1)):
                        if DEF:
                            for x in DEF.pop(0): e(x)
                            NST[0] += 1
                    if n // 2 == opt.get("sgk", 4): signal(4, 3, WS_F1, 164, 165, max(0, NST[0] - 4))
                    if n // 2 == opt.get("sgh", 7):
                        assert not DEF
                        signal(24, 3, WS_F1H, 164, 165)
            if NSB > LA or n < 2: xread(n)
        def xread(n):
            p = kst(n)
            if ps == 1 or p >= 6:
                move("x", AX, XA[p >> 1])
                for r in range(2): e.lds(f"ds_read_b128 {vr(xreg(n,r),4)}, v{AX[p&1]} offset:{r*2048}", ("x", n))
        kswitch(0)
        if ps == 1: stamp(2)
        for f in range(LA):
            if f and f % NSB == 0: kswitch(f // NSB)
            for r_ in rd(f): e.lds(r_, f)
        for f in range(NF):
            n, s = divmod(f, NSB)
            nxt = f + LA
            if nxt < NF and nxt % NSB == 0: kswitch(nxt // NSB)
            if NSB <= LA and s == 0 and 1 <= n < 15: xread(n + 1)
            e.lwait([f, ("x", n)])
            if ps == 2 and f == NF - 1: e("s_barrier")
            rds = list(rd(nxt)) if nxt < NF else [None, None]
            for r in range(2):
                acc = vr(ACC(s, r), 4)
                e(f"v_mfma_f32_16x16x32_bf16 {acc}, {vr(F(f),4)}, {vr(xreg(n,r),4)}, {'0' if n == 0 else acc}")
                if rds[r]: e.lds(rds[r], nxt)
    RS = lambda r: 160 + 2 * r
    RQ = lambda r: 32 + 2 * r
    TT = 8
    CSR = [24, 28]
    def epilogue(ps):
        order = ([0, 1, 5, 6, 7, 2, 3, 4] if TIM else list(range(8))) if ps == 1 else [2, 3, 4, 0, 1]
        dd = {}
        loc = lambda s: s if ps == 1 else 8 + s
        if ps == 1: ldswait(20, 1, 8, 9)
        e(f"""v_and_b32 v16, 15, v0
        v_lshrrev_b32 v17, 4, v0
        s_lshl_b32 s3, s19, 9
        s_add_u32 s3, s3, {L_ST}
        v_lshl_add_u32 v8, v16, 4, s3
        v_lshlrev_b32 v164, 4, v17
        v_add_u32 v164, {L_ST+2048}, v164
        v_mov_b32 v10, {L_MISC}""")
        if ps == 1:
            for r in range(2): e.lds(f"ds_read_b64 {pk(RS(r))}, v8 offset:{256*r}", "st")
            e.lds("ds_read_b32 v10, v10", "st")
        def csread(n):
            if n < len(order): e.lds(f"ds_read_b128 {vr(CSR[n%2],4)}, v164 offset:{64*loc(order[n])}", ("cs", n))
        csread(0)
        e("v_lshlrev_b32 v166, 4, v0")
        if ps == 1:
            e(f"""s_lshl_b32 s64, s20, 2
            s_add_u32 s64, s64, s19
            s_lshl_b32 s65, s23, 8
            s_add_u32 s65, s65, s64
            s_lshl_b32 s65, s65, 10
            s_mul_i32 s66, s64, 112
            s_mul_i32 s67, s23, 3
            s_add_u32 s67, s67, s66
            s_add_u32 s67, s67, 64
            s_lshl_b32 s67, s67, 10
            s_lshl_b32 s3, s23, 2
            s_add_u32 s66, s66, s3
            s_lshl_b32 s66, s66, 10
            s_add_u32 s66, s66, {WS_H:#x}
            s_add_u32 s67, s67, {WS_H:#x}""")
            e.lwait("st")
            e("v_readfirstlane_b32 s61, v10")
        else:
            e("s_mov_b32 s3, 0x3eb8aa3b")
            for q in range(4): e(f"v_mul_f32 v{32+q}, s3, v{160+q}")
            e("s_lshl_b32 s3, s19, 10")
            e(f"s_add_u32 s3, s3, {L_Q}")
            e("v_add_u32 v36, s3, v166")
        for n, s in enumerate(order):
            T = 16 + 4 * (n % 2)
            dfr = ps == 1 and TIM and s >= 2
            if dfr: T = ACC(s, 0) if s >= 5 else ACC(s + 3, 1)
            isQ = ps == 2 and s < 2
            isH = (ps == 1 and s >= 4) or (ps == 2 and s >= 2)
            e.lwait(("cs", n))
            c = CSR[n % 2]
            csread(n + 1)
            for r in range(2):
                sp = RQ(r) if isQ else RS(r)
                for h in range(2):
                    e(f"v_pk_mul_f32 {pk(TT+4*r+2*h)}, {pk(c+2*h)}, {pk(sp)} op_sel:[0,1] op_sel_hi:[1,1]")
            for r in range(2):
                sp = RQ(r) if isQ else RS(r)
                for h in range(2):
                    t = TT + 4 * r + 2 * h
                    e(f"v_pk_fma_f32 {pk(t)}, {pk(ACC(s,r)+2*h)}, {pk(sp)}, {pk(t)} op_sel_hi:[1,0,1]")
            for r in range(2):
                for h in range(2):
                    t = TT + 4 * r + 2 * h
                    e(f"v_cvt_pk_bf16_f32 v{T+2*r+h}, v{t}, v{t+1}")
            if isH:
                for q in range(4): e(f"v_pk_max_i16 v{T+q}, v{T+q}, 0")
            if isQ: e("s_nop 0")
            elif ps == 2: e(f"s_add_u32 s3, s67, {(s-2)*1024}")
            elif s < 4: e(f"s_add_u32 s3, s65, {WS_KV + s*0x10000:#x}")
            else: e(f"s_add_u32 s3, s66, {(s-4)*1024}")
            e("s_nop 0")
            e(f"v_permlane16_swap_b32 v{T}, v{T+2}")
            e(f"v_permlane16_swap_b32 v{T+1}, v{T+3}")
            if isQ: e.lds(f"ds_write_b128 v36, {vr(T,4)} offset:{s*4096}", "qw")
            elif dfr: dd[s] = [e.lines[-4].strip(), f"buffer_store_dwordx4 {vr(T,4)}, v166, {SS}, s3 offen sc1"]
            else:
                e(f"buffer_store_dwordx4 {vr(T,4)}, v166, {SS}, s3 offen sc1")
                NST[0] += 1
        for s in sorted(dd): DEF.append(dd[s])
    gemm(1)
    stamp(3)
    epilogue(1)
    e(f"""v_lshrrev_b32 v8, 2, v0
    v_and_b32 v10, 3, v0
    v_lshlrev_b32 v10, 3, v10
    v_lshl_add_u32 v1, v8, 6, v10
    v_bfe_u32 v11, v0, 4, 1
    v_lshl_add_u32 v1, v11, 5, v1
    v_add_u32 v1, {W2A[0][1]}, v1
    v_xor_b32 v2, 32, v1
    v_mul_u32_u24 v3, 96, v8
    v_add_u32 v3, v3, v10
    v_add_u32 v3, {W2A[0][1]}, v3""")
    cur["w"] = W2A[0][1]
    stamp(4)
    gemm(2)
    bflush()
    stamp(5)
    epilogue(2)
    e("s_waitcnt lgkmcnt(0)")
    ldsadd(16, 2, 3)
    e("s_mov_b32 s96, s19")
    e("s_mov_b32 s97, 1")
    e("s_branch L_ATT")

    e("L_UTIL:")
    e.vm = []; e.lg = []
    if opt.get("uprio0", 3): e(f"s_setprio {opt.get('uprio0', 3)}")
    L0, U, A, CL, C0, C1, VE = 16, 24, 40, 48, 64, 72, 80
    e("v_and_b32 v5, 7, v0")
    e(f"v_mov_b32 v{VE}, 0")
    e(f"s_mov_b32 s3, {WS_EP:#x}")
    e.vmem(f"buffer_load_dword v{VE}, v{VE}, {SS}, s3 offen sc1", "rs")
    e(f"""v_lshrrev_b32 v4, 5, v0
    v_and_b32 v6, 31, v0
    v_lshlrev_b32 v6, 4, v6
    v_lshl_add_u32 v6, v4, 10, v6
    v_lshlrev_b32 v{VE+1}, 4, v4
    s_lshl_b32 s64, s20, 7
    s_lshl_b32 s65, s23, 3
    s_add_u32 s64, s64, s65
    s_lshl_b32 s65, s19, 1
    s_add_u32 s64, s64, s65
    s_lshl_b32 s65, s64, 10""")
    e.vmem(f"buffer_load_dwordx4 {vr(L0,4)}, v6, {SX}, s65 offen", "rs")
    e.vmem(f"buffer_load_dwordx4 {vr(L0+4,4)}, v6, {SX}, s65 offen offset:512", "rs")
    e("""s_add_u32 s66, s23, 8
    s_add_u32 s67, s23, 24
    s_cmp_eq_u32 s19, 1
    s_cselect_b32 s66, s67, s66
    s_add_u32 s67, s23, 32
    s_cmp_lt_u32 s23, 8
    s_cselect_b32 s67, s23, s67
    s_cmp_eq_u32 s19, 2
    s_cselect_b32 s66, s67, s66
    s_add_u32 s67, s23, 48
    s_cmp_eq_u32 s19, 3
    s_cselect_b32 s66, s67, s66
    v_lshrrev_b32 v2, 3, v0
    v_lshlrev_b32 v3, 4, v5
    s_cmp_ge_u32 s66, 52
    s_cbranch_scc1 L_CSD
    s_lshl_b32 s67, s66, 7
    s_cmp_ge_u32 s66, 24
    s_cbranch_scc1 L_CSW
    v_mul_u32_u24 v4, 3072, v2
    v_add_u32 v4, v4, v3""")
    e(f"s_mul_i32 s68, s20, {32*3072}")
    e("s_add_u32 s68, s68, s67")
    for t in range(4):
        e(f"buffer_load_dwordx4 {vr(CL+4*t,4)}, v4, {SW}, s68 offen")
        if t < 3: e(f"s_add_u32 s68, s68, {8*3072}")
    e("s_branch L_CSD")
    e("L_CSW:")
    e("v_mul_u32_u24 v4, 3584, v2")
    e("v_add_u32 v4, v4, v3")
    e(f"s_mul_i32 s68, s20, {32*3584}")
    e("s_add_u32 s68, s68, s67")
    e(f"s_sub_u32 s68, s68, {24*128}")
    for t in range(4):
        e(f"buffer_load_dwordx4 {vr(CL+4*t,4)}, v4, {S1}, s68 offen")
        if t < 3: e(f"s_add_u32 s68, s68, {8*3584}")
    e("L_CSD:")
    e(f"""s_mov_b32 s69, 0xffff0000
    s_mov_b32 s70, 0x3b000000
    s_lshl_b32 s64, s64, 4
    s_add_u32 s64, s64, {WS_RS:#x}
    v_lshlrev_b32 v14, 4, v0
    s_lshl_b32 s71, s23, 8
    s_add_u32 s72, s71, {512*4}
    v_add_u32 v15, s72, v14
    s_add_u32 s72, s71, {1536*4 - 256}
    v_add_u32 v2, s72, v14
    v_cmp_le_u32 vcc, 16, v0
    s_lshl_b32 s72, s23, 7
    s_sub_u32 s72, s72, 512
    v_cndmask_b32 v15, v15, v2, vcc
    v_add_u32 v2, s72, v14
    v_cmp_le_u32 vcc, 32, v0
    s_mul_i32 s72, s23, 192
    s_add_u32 s72, s72, {2560*4 - 640}
    v_cndmask_b32 v15, v15, v2, vcc
    v_min_u32 v2, 51, v0
    v_lshlrev_b32 v2, 4, v2
    v_add_u32 v2, s72, v2
    v_cmp_le_u32 vcc, 40, v0
    s_nop 1
    v_cndmask_b32 v15, v15, v2, vcc""")
    def piece(n):
        if n == 0:
            e("s_cmp_ge_u32 s66, 52")
            e("s_cbranch_scc1 L_P0A")
            e("s_waitcnt vmcnt(4)")
            e("s_branch L_P0B")
            e("L_P0A:")
            e("s_waitcnt vmcnt(0)")
            e("L_P0B:")
            for q in range(8):
                e(f"v_lshlrev_b32 v{U+2*q}, 16, v{L0+q}")
                e(f"v_and_b32 v{U+2*q+1}, s69, v{L0+q}")
            for q in range(4): e(f"v_pk_add_f32 {pk(A+2*q)}, {pk(U+4*q)}, {pk(U+4*q+2)}")
            e(f"v_pk_add_f32 {pk(A)}, {pk(A)}, {pk(A+2)}")
            e(f"v_pk_add_f32 {pk(A+4)}, {pk(A+4)}, {pk(A+6)}")
            e(f"v_pk_add_f32 {pk(A)}, {pk(A)}, {pk(A+4)}")
            e(f"v_add_f32 v{A}, v{A}, v{A+1}")
            reduce32(e, [A], [A + 1])
            e(f"v_mul_f32 v{A}, s70, v{A}")
            e(f"v_add_u32 v{A+6}, {EPC:#x}, v{VE}")
            e(f"v_mov_b32 v2, {L_MISC}")
            e("v_mov_b32 v3, 0")
            e(f"ds_write_b32 v2, v{A+6}")
            for o in (4, 8, 12, 16, 20, 24): e(f"ds_write_b32 v2, v3 offset:{o}")
        if n == 1:
            for q in range(8): e(f"v_pk_add_f32 {pk(U+2*q)}, {pk(U+2*q)}, {pk(A)} op_sel_hi:[1,0] neg_lo:[0,1] neg_hi:[0,1]")
            e(f"v_pk_mul_f32 {pk(A+2)}, {pk(U)}, {pk(U)}")
            e(f"v_pk_mul_f32 {pk(A+4)}, {pk(U+2)}, {pk(U+2)}")
            for q in range(2, 8): e(f"v_pk_fma_f32 {pk(A+2+2*(q&1))}, {pk(U+2*q)}, {pk(U+2*q)}, {pk(A+2+2*(q&1))}")
            e(f"v_pk_add_f32 {pk(A+4)}, {pk(A+2)}, {pk(A+4)}")
            e(f"v_add_f32 v{A+4}, v{A+4}, v{A+5}")
            reduce32(e, [A + 4], [A + 5])
            e(f"v_mov_b32 v{A+5}, 0x3727c5ac")
            e(f"v_fma_f32 v{A+4}, v{A+4}, s70, v{A+5}")
            e(f"v_rsq_f32 v{A+4}, v{A+4}")
            e(f"v_readfirstlane_b32 s61, v{A+6}")
            e(f"v_mov_b32 v{A+7}, v{A+6}")
            e(f"v_mul_f32 v{A+5}, v{A}, v{A+4}")
            e(f"v_sub_f32 v{A+5}, 0, v{A+5}")
            e("s_mov_b32 exec_lo, 1")
            e("s_mov_b32 exec_hi, 1")
            e(f"buffer_store_dwordx4 {vr(A+4,4)}, v{VE+1}, {SS}, s64 offen sc1")
            e("s_mov_b64 exec, -1")
        if n == 2:
            e("s_waitcnt vmcnt(1)")
            for q in range(4):
                e(f"v_lshlrev_b32 v{C0+2*q}, 16, v{CL+q}")
                e(f"v_and_b32 v{C0+2*q+1}, s69, v{CL+q}")
            for t in range(1, 4):
                for q in range(4):
                    e(f"v_lshlrev_b32 v{C1+2*q}, 16, v{CL+4*t+q}")
                    e(f"v_and_b32 v{C1+2*q+1}, s69, v{CL+4*t+q}")
                for q in range(4): e(f"v_pk_add_f32 {pk(C0+2*q)}, {pk(C0+2*q)}, {pk(C1+2*q)}")
            e("s_nop 1")
            for q in range(8): e(f"v_add_f32_dpp v{C0+q}, v{C0+q}, v{C0+q} row_ror:8 row_mask:0xf bank_mask:0xf")
            e("s_mov_b32 s72, 0xff00ff00")
            e("s_mov_b32 s73, 0xff00ff00")
            for q in range(4): e(f"v_cndmask_b32 v{C0+q}, v{C0+q}, v{C0+4+q}, s[72:73]")
            for sw in ("v_permlane16_swap_b32", "v_permlane32_swap_b32"):
                for q in range(4): e(f"v_mov_b32 v{C1+q}, v{C0+q}")
                e("s_nop 0")
                for q in range(4): e(f"{sw} v{C0+q}, v{C1+q}")
                for q in range(4): e(f"v_add_f32 v{C0+q}, v{C0+q}, v{C1+q}")
            e("s_mov_b32 s71, 0xff")
            e(f"v_bfe_u32 v{C1+2}, v0, 3, 1")
            for q in range(4): e(f"v_bfi_b32 v{C0+q}, s71, v{A+6}, v{C0+q}")
            e(f"v_lshlrev_b32 v{C1+1}, 5, v5")
            e(f"v_lshl_add_u32 v{C1+1}, v{C1+2}, 4, v{C1+1}")
            e(f"s_mul_i32 s71, s20, {3328*4}")
            e("s_lshl_b32 s72, s66, 8")
            e("s_add_u32 s71, s71, s72")
            e(f"s_add_u32 s71, s71, {WS_CS:#x}")
            e("s_cmp_ge_u32 s66, 52")
            e("s_cbranch_scc1 L_P2S")
            e("s_mov_b64 exec, 0xffff")
            e(f"buffer_store_dwordx4 {vr(C0,4)}, v{C1+1}, {SS}, s71 offen sc1")
            e("s_mov_b64 exec, -1")
            e("L_P2S:")
    G0 = 84
    def gather():
        e(f"s_mov_b32 s71, {WS_CS:#x}")
        for g in range(16):
            e(f"buffer_load_dwordx4 {vr(G0+4*g,4)}, v15, {SS}, s71 offen sc1")
            e(f"s_add_u32 s71, s71, {3328*4}")
        e("s_lshl_b32 s71, s20, 11")
        e(f"s_add_u32 s71, s71, {WS_RS:#x}")
        for h in range(2):
            e(f"buffer_load_dwordx4 {vr(G0+64+4*h,4)}, v14, {SS}, s71 offen offset:{h*1024} sc1")
    PK = opt.get("pk", [0, 0, 1]); GK = opt.get("gk", 4); CK = opt.get("ck", 6)
    for n_, kk_ in enumerate(PK):
        if kk_ < 0: piece(n_)
    for k in range(16):
        if k == 2: e("s_waitcnt lgkmcnt(0)")
        bstamp(k)
        e("s_barrier")
        for n_, kk_ in enumerate(PK):
            if kk_ == k: piece(n_)
        if k == opt.get("pf2k", 2) and opt.get("pf2", 1):
            sk = lab("NOPF")
            e("s_cmp_lg_u32 s19, 1")
            e(f"s_cbranch_scc1 {sk}")
            srd(e, 44, 14, 1792 * 1024)
            srd(e, 48, 8, 512 * 1024)
            e("v_lshlrev_b32 v2, 7, v0")
            e("s_mul_i32 s71, s2, 7168")
            e("s_mov_b32 exec_hi, 0xffffff")
            e(f"buffer_load_dword v160, v2, {S2}, s71 offen")
            e("s_lshl_b32 s71, s2, 11")
            e("s_mov_b64 exec, 0xffff")
            e(f"buffer_load_dword v161, v2, {SO}, s71 offen")
            e("s_mov_b64 exec, -1")
            e(f"{sk}:")
        if k in (GK, CK, CK + 1):
            sk = lab("NOPOST")
            e("s_cmp_lg_u32 s19, 0")
            e(f"s_cbranch_scc1 {sk}")
            if k == GK: gather()
            if k == CK:
                e("s_mov_b32 s73, 0x20000")
                e("L_CHK:")
                e("s_waitcnt vmcnt(0)")
                e(f"v_xor_b32 v2, s61, v{G0}")
                for i in range(G0 + 1, G0 + 64): e(f"v_bitop3_b32 v2, v2, v{i}, s61 bitop3:0xf6")
                e("v_and_b32 v2, 0xff, v2")
                for i in (66, 67, 70, 71): e(f"v_bitop3_b32 v2, v2, v{G0+i}, s61 bitop3:0xf6")
                e("v_cmp_ne_u32 vcc, 0, v2")
                e("s_sub_u32 s73, s73, 1")
                e("s_cmp_eq_u32 s73, 0")
                e("s_cbranch_scc1 L_GOT")
                e("s_cmp_eq_u64 vcc, 0")
                e("s_cbranch_scc1 L_GOT")
                gather()
                e("s_branch L_CHK")
                e("L_GOT:")
            if k == CK + 1:
                e("s_mov_b32 s71, 0xffffff00")
                for i in range(G0, G0 + 64): e(f"v_and_b32 v{i}, s71, v{i}")
                for g in range(1, 16):
                    for h in range(2): e(f"v_pk_add_f32 {pk(G0+2*h)}, {pk(G0+2*h)}, {pk(G0+4*g+2*h)}")
                e(f"v_add_u32 v2, {L_ST}, v14")
                e(f"ds_write_b128 v2, {vr(G0+64,4)}")
                e(f"ds_write_b128 v2, {vr(G0+68,4)} offset:1024")
                e(f"ds_write_b128 v2, {vr(G0,4)} offset:2048")
                e("s_waitcnt lgkmcnt(0)")
                ldsadd(20, 2, 3)
            e(f"{sk}:")
    bflush()
    e(f"""v_and_b32 v2, 3, v0
    v_min_u32 v2, 2, v2
    s_sub_u32 s62, s20, 2
    v_add_u32 v2, s62, v2
    v_max_i32 v2, 0, v2
    v_lshlrev_b32 v2, 11, v2
    v_bfe_u32 v3, v0, 2, 1
    v_lshl_add_u32 v2, v3, 10, v2
    s_lshr_b32 s62, s23, 1
    s_lshl_b32 s62, s62, 7
    s_add_u32 s62, s62, {WS_F1:#x}
    v_mov_b32 v3, s61
    v_lshlrev_b32 v1, 4, v0
    s_lshr_b32 s64, s19, 1
    s_lshl_b32 s65, s23, 1
    s_add_u32 s65, s65, s64
    s_lshl_b32 s65, s65, 6
    s_and_b32 s66, s19, 1
    s_mul_i32 s66, s66, 6
    s_lshl_b32 s67, s20, 2
    s_add_u32 s66, s66, s67
    s_mul_i32 s67, s19, 6144""")
    stamp(3)
    e("s_barrier")
    poll(2, "s62", 3, 4)
    stamp(4)
    for t in range(6):
        e(f"s_add_u32 s68, s66, {t}")
        e("s_sub_i32 s68, s68, 8")
        e("s_max_i32 s68, s68, 0")
        e("s_add_u32 s68, s68, s65")
        e("s_lshl_b32 s68, s68, 10")
        e(f"s_add_u32 m0, s67, {L_K + t*1024}")
        e("s_add_u32 s69, s68, 0x200000")
        e(f"buffer_load_dwordx4 v1, {SS}, s68 offen sc1 lds")
        e(f"s_add_u32 m0, s67, {L_V + t*1024}")
        e("s_nop 0")
        e(f"buffer_load_dwordx4 v1, {SS}, s69 offen sc1 lds")
    e(f"v_add_u32 v2, {L_ONE}, v1")
    for q in range(4): e(f"v_mov_b32 v{8+q}, 0x3f803f80")
    e("ds_write_b128 v2, v[8:11]")
    e("s_add_u32 s96, s19, 4")
    e("s_mov_b32 s97, 0")
    e("s_waitcnt vmcnt(0) lgkmcnt(0)")
    ldsadd(16, 2, 3)
    stamp(5)

    e("L_ATT:")
    e.vm = []; e.lg = []
    Q = 8
    K = lambda u: 12 + 4 * u
    V = lambda u, g: 48 + ((u & 1) * 2 + g) * 4
    S = lambda b: 64 + 16 * b
    P, O = 112, 120
    VNEG, M0_, M1_, NM, MK = 136, 137, 138, 139, 140
    VA, VSTR = 148, 149
    for j in range(16):
        b0 = (j >> 2) * 8 + (j & 3)
        e(f"s_mov_b32 s{64+2*j}, {(0xffffffff << b0) & 0xffffffff:#x}")
        e(f"s_mov_b32 s{65+2*j}, {(0xffffffff << (b0+4)) & 0xffffffff:#x}")
    e(f"v_mov_b32 v{VNEG}, {NEG:#x}")
    e("v_mov_b32 v6, 0xffff")
    e("v_mov_b32 v7, 0xffff0000")
    for q in range(8):
        e(f"v_cndmask_b32 v{MK+q}, 0, v6, s[{64+4*q}:{65+4*q}]")
        e(f"v_cndmask_b32 v{S(2)}, 0, v7, s[{66+4*q}:{67+4*q}]")
        e(f"v_or_b32 v{MK+q}, v{MK+q}, v{S(2)}")
    e(f"""s_and_b32 s3, s96, 3
    s_lshl_b32 s26, s20, 2
    s_add_u32 s26, s26, s3
    s_add_u32 s25, s26, 1
    s_min_u32 s25, s25, 9
    s_lshr_b32 s62, s96, 2
    s_lshl_b32 s27, s23, 1
    s_add_u32 s27, s27, s62
    v_lshlrev_b32 v1, 4, v0
    s_lshl_b32 s63, s96, 10
    s_add_u32 s63, s63, {L_Q}
    v_add_u32 v3, s63, v1
    s_mul_i32 s62, s62, 12288
    s_lshl_b32 s3, s3, 10
    s_add_u32 s3, s3, s62
    s_add_u32 s62, s3, {L_K}
    v_add_u32 v4, s62, v1
    v_lshrrev_b32 v5, 5, v0
    v_lshlrev_b32 v5, 2, v5
    v_bfe_u32 v6, v0, 2, 2
    v_add_u32 v5, v5, v6
    v_lshlrev_b32 v5, 4, v5
    v_bfe_u32 v6, v0, 1, 1
    v_lshl_add_u32 v5, v6, 9, v5
    v_and_b32 v6, 1, v0
    v_lshl_add_u32 v5, v6, 3, v5
    s_add_u32 s3, s3, {L_V + 8192}
    v_add_u32 v5, s3, v5
    v_mov_b32 v6, {L_ONE}
    v_mov_b32 v7, 1024
    s_mov_b32 s98, 0xffff
    s_mov_b32 s99, 0xffff
    v_cndmask_b32 v5, v6, v5, s[98:99]
    v_cndmask_b32 v{VSTR}, 0, v7, s[98:99]
    v_lshlrev_b32 v7, 3, v{VSTR}
    v_sub_u32 v{VA+2}, v5, v7""")
    stamp(6)
    def owed():
        sk = lab("NOOWE")
        e("s_cmp_eq_u32 s97, 0")
        e(f"s_cbranch_scc1 {sk}")
        signal(12, 3, WS_F1B, 152, 153)
        e(f"{sk}:")
    if opt.get("owu", 0) == 0: owed()
    ldswait(16, 8, 2, 6)
    e(f"s_setprio {opt.get('aprio', 0)}")
    stamp(7)
    def fill(buf, val, diag):
        for j in range(16):
            a, b = (f"v{VNEG}", val) if diag else (val, f"v{VNEG}")
            e(f"v_cndmask_b32 v{S(buf)+j}, {a}, {b}, s[{64+2*j}:{65+2*j}]")
    def smfma(u, buf, cin):
        e.lwait(("K", u))
        e(f"v_mfma_f32_32x32x16_bf16 {vr(S(buf),16)}, {vr(K(u),4)}, {vr(Q,4)}, {cin}")
    def vread(u, par=None, va=None):
        if va is None:
            if u == 0: e(f"v_mov_b32 v{VA}, v5")
            else: e(f"v_sub_u32 v{VA}, v{VA}, v{VSTR}")
            va = VA
        for g in range(2):
            r = V(u if par is None else par, g)
            for h in range(2): e.lds(f"ds_read_b64_tr_b16 v[{r+2*h}:{r+2*h+1}], v{va} offset:{g*256 + h*128}", ("V", u))
    PD, PFR = S(2), S(2) + 8
    e.lds(f"ds_read_b128 {vr(Q,4)}, v3", "Q")
    for u in [0, 8, 1]: e.lds(f"ds_read_b128 {vr(K(u),4)}, v4 offset:{(8-u)*1024}", ("K", u))
    vread(0); vread(8, 1, VA + 2)
    smfma(0, 0, "0"); smfma(8, 2, "0"); smfma(1, 1, "0")
    for u in range(2, 8): e.lds(f"ds_read_b128 {vr(K(u),4)}, v4 offset:{(8-u)*1024}", ("K", u))
    e("s_nop 4")
    s0 = S(0)
    for j in range(16): e(f"v_cndmask_b32 v{s0+j}, v{S(2)+j}, v{s0+j}, s[{64+2*j}:{65+2*j}]")
    for j in range(16): e(f"v_exp_f32 v{s0+j}, v{s0+j}")
    for q in range(8): e(f"v_cvt_pk_bf16_f32 v{P+q}, v{s0+2*q}, v{s0+2*q+1}")
    for q in range(8): e(f"v_and_b32 v{PD+q}, v{MK+q}, v{P+q}")
    e.lwait(("V", 8))
    e(f"v_mfma_f32_32x32x16_bf16 {vr(O,16)}, {vr(V(0,0),4)}, {vr(PD,4)}, 0")
    for q in range(8): e(f"v_bfi_b32 v{PFR+q}, v{MK+q}, 0, v{P+q}")
    e(f"v_mfma_f32_32x32x16_bf16 {vr(O,16)}, {vr(V(0,1),4)}, {vr(PD+4,4)}, {vr(O,16)}")
    e("s_cmp_lt_u32 s25, 9")
    e("s_cbranch_scc1 L_NOFAR")
    e(f"v_mfma_f32_32x32x16_bf16 {vr(O,16)}, {vr(V(1,0),4)}, {vr(PFR,4)}, {vr(O,16)}")
    e(f"v_mfma_f32_32x32x16_bf16 {vr(O,16)}, {vr(V(1,1),4)}, {vr(PFR+4,4)}, {vr(O,16)}")
    e("L_NOFAR:")
    vread(1)
    e("s_cmp_eq_u32 s25, 1")
    e("s_cbranch_scc1 L_FCHK")
    def pv(u, g): e(f"v_mfma_f32_32x32x16_bf16 {vr(O,16)}, {vr(V(u,g),4)}, {vr(P+4*g,4)}, {vr(O,16)}")
    for u in range(1, 8):
        s_ = S(u % 2)
        if u + 1 <= 7: smfma(u + 1, (u + 1) % 2, "0")
        for j in range(2): e(f"v_exp_f32 v{s_+j}, v{s_+j}")
        if u > 1: pv(u - 1, 1)
        if u + 1 <= 7: vread(u + 1)
        for j in range(2, 8): e(f"v_exp_f32 v{s_+j}, v{s_+j}")
        for q in range(4): e(f"v_cvt_pk_bf16_f32 v{P+q}, v{s_+2*q}, v{s_+2*q+1}")
        for j in range(8, 10): e(f"v_exp_f32 v{s_+j}, v{s_+j}")
        e.lwait(("V", u))
        pv(u, 0)
        for j in range(10, 16): e(f"v_exp_f32 v{s_+j}, v{s_+j}")
        for q in range(4, 8): e(f"v_cvt_pk_bf16_f32 v{P+q}, v{s_+2*q}, v{s_+2*q+1}")
        if u < 7:
            e(f"s_cmp_eq_u32 s25, {u+1}")
            e(f"s_cbranch_scc1 L_FX{u&1}")
    e("L_FX1:")
    e("s_nop 1")
    pv(1, 1)
    e("s_branch L_FCHK")
    e("L_FX0:")
    e("s_nop 1")
    pv(0, 1)
    e("L_FCHK:")
    e("s_mov_b32 s52, 0x1f800000")
    e("s_mov_b32 s53, 0x5f800000")
    e("s_mov_b32 s3, 0x7f800000")
    e("s_waitcnt lgkmcnt(0)")
    e("s_nop 7")
    e(f"v_add_f32 v6, |v{O}|, |v{O+1}|")
    e(f"v_add_f32 v7, |v{O+2}|, |v{O+3}|")
    e(f"v_add_f32 v2, |v{O+4}|, |v{O+5}|")
    e(f"v_add_f32 v3, |v{O+6}|, |v{O+7}|")
    e(f"v_cmp_le_f32 s[62:63], s52, v{O+8}")
    e(f"v_cmp_ge_f32 s[98:99], s53, v{O+8}")
    e("v_add_f32 v6, v6, v7")
    e("v_add_f32 v2, v2, v3")
    e("v_add_f32 v6, v6, v2")
    e("s_and_b64 s[62:63], s[62:63], s[98:99]")
    e("v_cmp_gt_f32 vcc, s3, v6")
    e("s_nop 0")
    e("s_and_b64 s[62:63], s[62:63], vcc")
    e("s_cmp_eq_u64 s[62:63], -1")
    if opt.get("forceslow"): e("s_cmp_eq_u32 s62, 12345")
    e("s_cbranch_scc1 L_P2DONE")
    e.lg = []
    e(f"v_mov_b32 v{M0_}, v{VNEG}")
    e(f"v_mov_b32 v{M1_}, v{VNEG}")
    fill(0, "0", True)
    e("s_nop 1")
    smfma(0, 0, vr(S(0), 16))
    smfma(1, 1, "0")
    for u in range(9):
        if u + 2 <= 8:
            if u + 2 == 8:
                fill((u + 2) % 3, "0", False); e("s_nop 1")
                smfma(u + 2, (u + 2) % 3, vr(S((u + 2) % 3), 16))
            else:
                smfma(u + 2, (u + 2) % 3, "0")
        if u == 0: e("s_nop 9")
        for q in range(8):
            m = M0_ + (q & 1)
            e(f"v_max3_f32 v{m}, v{S(u%3)+2*q}, v{S(u%3)+2*q+1}, v{m}")
        if u < 8:
            e(f"s_cmp_eq_u32 s25, {u+1}")
            e("s_cbranch_scc1 L_P1DONE")
    e("L_P1DONE:")
    vread(0)
    e(f"v_max_f32 v{M0_}, v{M0_}, v{M1_}")
    e(f"v_mov_b32 v{M1_}, v{M0_}")
    e("s_nop 1")
    e(f"v_permlane32_swap_b32 v{M0_}, v{M1_}")
    e("s_nop 1")
    e(f"v_max_f32 v{M0_}, v{M0_}, v{M1_}")
    e(f"v_sub_f32 v{NM}, 0, v{M0_}")
    e("s_nop 3")
    CB = S(2)
    for j in range(16): e(f"v_mov_b32 v{CB+j}, v{NM}")
    fill(0, f"v{NM}", True)
    e("s_nop 1")
    smfma(0, 0, vr(S(0), 16))
    for u in range(9):
        s = S(u % 2)
        if u + 1 <= 8:
            nb_ = (u + 1) % 2
            if u + 1 == 8:
                fill(nb_, f"v{NM}", False); e("s_nop 1")
                smfma(u + 1, nb_, vr(S(nb_), 16))
            else:
                smfma(u + 1, nb_, vr(CB, 16))
            vread(u + 1)
        if u == 0: e("s_nop 6")
        for j in range(8): e(f"v_exp_f32 v{s+j}, v{s+j}")
        for q in range(4): e(f"v_cvt_pk_bf16_f32 v{P+q}, v{s+2*q}, v{s+2*q+1}")
        for j in range(8, 16): e(f"v_exp_f32 v{s+j}, v{s+j}")
        e.lwait(("V", u))
        e(f"v_mfma_f32_32x32x16_bf16 {vr(O,16)}, {vr(V(u,0),4)}, {vr(P,4)}, {'0' if u == 0 else vr(O,16)}")
        for q in range(4, 8): e(f"v_cvt_pk_bf16_f32 v{P+q}, v{s+2*q}, v{s+2*q+1}")
        e("s_nop 1")
        e(f"v_mfma_f32_32x32x16_bf16 {vr(O,16)}, {vr(V(u,1),4)}, {vr(P+4,4)}, {vr(O,16)}")
        if u < 8:
            e(f"s_cmp_eq_u32 s25, {u+1}")
            e("s_cbranch_scc1 L_P2X")
    e("L_P2X:")
    e("s_waitcnt lgkmcnt(0)")
    e("s_nop 12")
    e("L_P2DONE:")
    e("s_lshl_b32 s3, s26, 5")
    e("s_add_u32 s3, s3, s27")
    e("s_lshl_b32 s3, s3, 10")
    e(f"s_add_u32 s3, s3, {WS_O:#x}")
    e(f"v_rcp_f32 v7, v{O+8}")
    e("s_nop 0")
    for j in range(8): e(f"v_mul_f32 v{O+j}, v{O+j}, v7")
    for q in range(4): e(f"v_cvt_pk_bf16_f32 v{P+q}, v{O+2*q}, v{O+2*q+1}")
    e(f"buffer_store_dwordx4 {vr(P,4)}, v1, {SS}, s3 offen sc1")
    stamp(8)
    signal(8, 7, WS_F2)
    stamp(9)
    e("s_cmp_lg_u32 s2, 0")
    e("s_cbranch_scc1 L_FIN")
    e("s_cmp_lg_u32 s96, 1")
    e("s_cbranch_scc1 L_FIN")
    e("v_lshlrev_b32 v6, 7, v0")
    e("s_mov_b32 s63, 0x20000")
    e("L_BCHK:")
    for g in range(4):
        e(f"s_mov_b32 s62, {WS_F2 + g*8192:#x}")
        e(f"buffer_load_dword v{8+g}, v6, {SS}, s62 offen sc1")
    e("s_waitcnt vmcnt(0)")
    e("v_xor_b32 v7, s61, v8")
    for i in range(9, 12): e(f"v_bitop3_b32 v7, v7, v{i}, s61 bitop3:0xf6")
    e("v_cmp_ne_u32 vcc, 0, v7")
    e("s_sub_u32 s63, s63, 1")
    e("s_cmp_eq_u32 s63, 0")
    e("s_cbranch_scc1 L_FIN")
    e("s_cmp_lg_u64 vcc, 0")
    e("s_cbranch_scc1 L_BCHK")
    e("s_mov_b64 exec, 1")
    e("v_mov_b32 v6, 0")
    e("v_mov_b32 v7, s61")
    e(f"s_mov_b32 s62, {WS_EP:#x}")
    e(f"buffer_store_dword v7, v6, {SS}, s62 offen sc1")
    e("s_mov_b64 exec, -1")
    e("L_FIN:")
    e.vm = []; e.lg = []
    srd(e, 28, 10, 2048 * 1024)
    e(f"""v_lshrrev_b32 v7, 3, v0
    v_and_b32 v14, 7, v0
    v_lshlrev_b32 v8, 4, v14
    v_lshl_add_u32 v2, v7, 10, v8
    s_lshl_b32 s62, s58, 16
    s_lshl_b32 s3, s96, 13
    s_add_u32 s62, s62, s3
    s_lshl_b32 s3, s59, 7
    s_add_u32 s62, s62, s3""")
    e(f"buffer_load_dwordx4 v[8:11], v2, {SX}, s62 offen")
    e(f"""s_and_b32 s3, s96, 3
    s_lshl_b32 s3, s3, 10
    s_cmp_ge_u32 s96, 4
    s_mov_b32 s63, {BREG[0]}
    s_cselect_b32 s63, {BREG[2]}, s63
    s_mov_b32 s64, {BREG[1]}
    s_cselect_b32 s64, {BREG[3]}, s64
    s_add_u32 s63, s63, s3
    s_add_u32 s64, s64, s3
    v_and_b32 v12, 3, v0
    v_lshlrev_b32 v12, 1, v12
    v_xor_b32 v12, v12, v7
    v_bfe_u32 v13, v0, 2, 1
    v_xor_b32 v12, v12, v13
    v_lshlrev_b32 v12, 4, v12
    v_lshl_add_u32 v12, v7, 7, v12
    v_mov_b32 v15, s63
    v_mov_b32 v16, s64
    v_cmp_eq_u32 vcc, 1, v13
    s_nop 1
    v_cndmask_b32 v15, v15, v16, vcc
    v_add_u32 v24, v15, v12
    v_xor_b32 v25, 16, v24""")
    stamp(10)
    e("s_barrier")
    stamp(11)
    R = lambda src, h: 48 + src * 8 + h * 4
    for src in range(4):
        for h in range(2): e.lds(f"ds_read_b128 {vr(R(src,h),4)}, v{24+h} offset:{src*4096}", src)
    e("s_mov_b32 s3, 0xffff0000")
    e("s_waitcnt vmcnt(0)")
    for q in range(4):
        e(f"v_lshlrev_b32 v{32+2*q}, 16, v{8+q}")
        e(f"v_and_b32 v{33+2*q}, s3, v{8+q}")
    for src in range(4):
        e.lwait(src)
        for q in range(4): e(f"v_pk_add_f32 {pk(32+2*q)}, {pk(32+2*q)}, {pk(R(src,0)+2*q)}")
    for q in range(4): e(f"v_cvt_pk_bf16_f32 v{40+q}, v{32+2*q}, v{33+2*q}")
    e("buffer_store_dwordx4 v[40:43], v2, s[28:31], s62 offen")
    if ST:
        e("L_DUMP:")
        stamp(12)
        e("s_waitcnt vmcnt(0)")
        stamp(13); stamp(14, True)
        if opt.get("dbgst") is not None:
            e("s_load_dwordx2 s[4:5], s[0:1], 56")
            e(f"s_cmp_lg_u32 s2, {opt['dbgst']}")
            e("s_cbranch_scc1 L_END")
            e("s_cmp_lg_u32 s18, 4")
            e("s_cbranch_scc1 L_END")
            e(f"v_readlane_b32 s6, v{VST}, 1")
            e(f"v_readlane_b32 s7, v{VST}, 0")
            e("s_waitcnt lgkmcnt(0)")
            e(f"v_subrev_u32 v3, s6, v{VST}")
            e(f"v_subrev_u32 v4, s7, v{VST}")
            e("v_cmp_eq_u32 vcc, 14, v0")
            e("s_nop 1")
            e("v_cndmask_b32 v3, v3, v4, vcc")
            e("v_lshlrev_b32 v2, 2, v0")
            e("s_mov_b64 exec, 0xffff")
            e("global_store_dword v2, v3, s[4:5]")
            e("s_endpgm")
        e("s_mul_i32 s3, s2, 12")
        e("s_add_u32 s3, s3, s18")
        e("s_lshl_b32 s3, s3, 7")
        e("s_add_u32 s3, s3, 0x1000000")
        e("v_lshl_add_u32 v2, v0, 2, s3")
        e("s_mov_b64 exec, 0xffffffff")
        e(f"global_store_dword v2, v{VST}, s[16:17]")
    e("L_END:")
    e("s_endpgm")
    return name, e.text(), kd(name, 168), (256, 768, LDS)

def build(opt, path):
    n, t, k, (g, b, lds) = gen(opt)
    ref = open(f"cdna_kernels/{NAME}.s.ref").read().split("\n")
    head = [l for l in ref if l.startswith(";") and "@launch" not in l and "Override launch" not in l and "grid=ceil" not in l]
    s = "\n".join(head[:10]) + "\n"
    s += f"; @launch grid=({g},1,1) block=({b},1,1) lds={lds}\n"
    s += '.amdgcn_target "amdgcn-amd-amdhsa--gfx950"\n.text\n'
    s += f".globl {n}\n.p2align 8\n.type {n},@function\n" + t
    s += '.section .rodata,"a"\n.p2align 6\n' + k
    open(path, "w").write(s)

if __name__ == "__main__":
    import sys, json
    opt = json.loads(sys.argv[2]) if len(sys.argv) > 2 else {}
    build(opt, sys.argv[1])
```

```python
class Alloc:
    def __init__(self, size):
        self.n = size // 1024
        self.items = []
    def fits(self, lo, n, t0, t1):
        if lo + n > self.n: return False
        for (a, b, s0, s1, _) in self.items:
            if a < lo + n and lo < b and s0 < t1 and t0 < s1: return False
        return True
    def place(self, name, kb, t0, t1, top=False):
        rng = range(self.n - kb, -1, -1) if top else range(0, self.n - kb + 1)
        for lo in rng:
            if self.fits(lo, kb, t0, t1):
                self.items.append((lo, lo + kb, t0, t1, name)); return lo * 1024
        return None
    def earliest(self, name, kb, tmin, t1, tmax, top=False):
        for t in range(tmin, tmax + 1):
            a = self.place(name, kb, t, t1, top)
            if a is not None: return t, a
        raise RuntimeError("no space for " + name)

def plan(WL=3, XL=2, W2T=12, W2L=4):
    A = Alloc(158720)
    X = {}; W1 = {}; W2 = {}
    x_t0 = lambda P: -1 if P < XL else 2 * (P - XL)
    todo = []
    for P in range(3, 8): todo.append((min(16 + (2 * P + 1 - 6) // 2 + 2, 24), "X", P))
    for c in range(8): todo.append((min(16 + c + 2, 24), "W2", c))
    for t1, kind, i in sorted(todo, reverse=True):
        if kind == "X": X[i] = A.place(f"X{i}", 16, x_t0(i), t1, top=True)
    for P in range(3): X[P] = A.place(f"X{P}", 16, x_t0(P), 2 * P + 2, top=True)
    for p in range(15, -1, -1): W1[p] = A.place(f"W1_{p}", 8, max(-1, p - WL), p + 2, top=True)
    for t1, kind, i in sorted(todo):
        if kind == "W2": W2[i] = A.earliest(f"W2_{i}", 12, max(W2T, 16 + i - W2L), t1, 16 + i - 1, top=True)
    assert None not in X.values() and None not in W1.values()
    free = lambda lo, kb: max([13] + [s1 for (a, b, s0, s1, _) in A.items if a < lo + kb and lo < b])
    regs = sorted((free(16 * i, 16), 16 * i * 1024) for i in range(9))
    fin = {f"B{j}": regs[j] for j in range(7)}
    fin["V"], fin["K"] = regs[7], regs[8]
    fin["Q"] = (free(144, 8), 144 * 1024)
    return X, W1, W2, fin
if __name__ == "__main__":
    for l in (2, 3, 4):
        for r in plan(W2L=l)[2:]: print(r)

def plan3(L=2, W2L=2, NB=6, stage=False):
    busy = [[] for _ in range(10)]
    def put(t0, t1, pref):
        for s_ in pref:
            if all(t1 <= a or b <= t0 for a, b in busy[s_]):
                busy[s_].append((t0, t1)); return s_ * 16384
        return None
    X = {}; W1 = {}; W2 = {}
    t0 = lambda c: max(-1, c - L)
    hi = list(range(8, -1, -1)); lo = list(range(9))
    for P in range(7, 2, -1): X[P] = put(t0(P), min(8 + (P - 3) + 2, 16), hi)
    items = sorted([(t0(P), P + 2, "X", P) for P in range(3)] + [(t0(c), c + 2, "W", c) for c in range(8)])
    def dfs(n):
        if n == len(items): return True
        a, b, k, i = items[n]
        for s_ in hi:
            if put(a, b, [s_]) is not None:
                (X if k == "X" else W1)[i] = s_ * 16384
                if dfs(n + 1): return True
                busy[s_].remove((a, b))
        return False
    assert dfs(0)
    assert None not in X.values() and None not in W1.values(), (X, W1)
    if stage:
        for c in (6, 7):
            s_ = W1[c] // 16384
            busy[s_].remove((t0(c), c + 2)); busy[s_].append((t0(c), 9))
    for c in range(8):
        for t in range(max(4, 8 + c - W2L - (1 if c < 3 else 0)), 8 + c):
            r = put(t, min(8 + c + 2, 16), [9] + hi)
            if r is not None:
                W2[c] = (t, r); break
    assert len(W2) == 8
    free = lambda s_: max([6] + [b for a, b in busy[s_]])
    regs = sorted((free(i), i * 16384) for i in range(NB))
    fin = {f"B{j}": regs[j] for j in range(NB)}
    o = 16 * NB
    fin["K"], fin["V"], fin["Q"], fin["ONES"] = o * 1024, (o + 24) * 1024, (o + 48) * 1024, (o + 56) * 1024
    assert (o + 57) * 1024 <= 158720
    return X, W1, W2, fin


def plan4(L=2, NB=6, W2T=5):
    X, W1, _, fin = plan3(L, 2, NB)
    A = Alloc(158720)
    t0 = lambda c: max(-1, c - L)
    for P, a in X.items(): A.items.append((a // 1024, a // 1024 + 16, t0(P), P + 2 if P < 3 else min(8 + (P - 3) + 2, 16), f"X{P}"))
    for c, a in W1.items(): A.items.append((a // 1024, a // 1024 + 16, t0(c), min(c + 2, 7.5), f"W{c}"))
    W2 = {}
    times = [W2T + i for i in range(8 - W2T)] + [7.5] + list(range(8, 16))
    ti = 0
    for c in range(8):
        while True:
            t = times[ti]
            r = A.place(f"W2_{c}", 11, t, min(8 + c + 2, 16), top=True)
            if r is not None:
                W2[c] = (t, r)
                if t != 7.5: ti += 1
                break
            ti += 1
        assert W2[c][0] < 8 + c
    free = lambda lo, kb: max([6] + [s1 for (a, b, s0, s1, _) in A.items if a < lo + kb and lo < b])
    regs = sorted((int(free(16 * i, 16) + 0.5), i * 16384) for i in range(NB))
    for j in range(NB): fin[f"B{j}"] = regs[j]
    return X, W1, W2, fin


def plan5(NB=6, L=2):
    import itertools
    seq = []
    for c in range(8): seq += [("X", c), ("W", c)]
    fs = lambda k, i: (i if i < 3 else 8 + i - 3) if k == "X" else (i if k == "W" else 8 + i)
    best = None
    fixed = {("X", P): P + 1 for P in range(3, 8)}
    free_items = [it for it in seq if it not in fixed]
    def evaluate(asg):
        last = {}; pre = {}
        for it in seq:
            s_ = asg[it]
            pre[it] = last.get(s_, -1)
            last[s_] = fs(*it)
        return pre, last
    def dfs(n, asg, last):
        if n == len(seq): return dict(asg)
        it = seq[n]
        cands = [fixed[it]] if it in fixed else list(range(8, -1, -1))
        for s_ in cands:
            if last.get(s_, -1) > max(-1, it[1] - L): continue
            old = last.get(s_)
            last[s_] = fs(*it); asg[it] = s_
            r = dfs(n + 1, asg, last)
            if r: return r
            if old is None: del last[s_]
            else: last[s_] = old
            del asg[it]
        return None
    asg = dfs(0, {}, {})
    assert asg
    pre, last = evaluate(asg)
    X = {i: (asg[("X", i)] * 16384, pre[("X", i)]) for i in range(8)}
    W1 = {i: (asg[("W", i)] * 16384, pre[("W", i)]) for i in range(8)}
    fr = [-1] * 155
    for s_, st in last.items():
        for k in range(16 * s_, 16 * s_ + 16): fr[k] = st
    W2 = {}
    for c in range(8):
        lo = min(range(0, 155 - 11 + 1), key=lambda lo: (max(fr[lo:lo + 11]), -lo))
        W2[c] = (lo * 1024, max(fr[lo:lo + 11]))
        assert W2[c][1] < 8 + c
        for k in range(lo, lo + 11): fr[k] = 8 + c
    regs = sorted((max(fr[16 * i:16 * i + 16]), i * 16384) for i in range(NB))
    fin = {f"B{j}": regs[j] for j in range(NB)}
    o = 16 * NB
    fin["K"], fin["V"], fin["Q"], fin["ONES"] = o * 1024, (o + 24) * 1024, (o + 48) * 1024, (o + 56) * 1024
    fin["KVpre"] = max(fr[o:o + 48]); fin["Qpre"] = max(fr[o + 48:o + 56]); fin["ONEpre"] = fr[o + 56]
    return X, W1, W2, fin
```

```python
from emit import *
from alloc import plan3, plan4

NAME = "parallel_sum__sliding_block__dense_activation_relu__prompt"
WS_KV, WS_H, WS_O = 0, 0x600000, 0xD00000
WS_RS = 0xF00000
WS_CS = 0xF10000
WS_EP = 0xF80000
WS_F1, WS_F1B, WS_F2, WS_F1H = 0xF90000, 0xFA0000, 0xFB0000, 0xFC0000
WS_BYTES = 0x1000000
EPC = 0x9E3779B9
L_ST = 158720
L_MISC = L_ST + 3072
LDS = L_MISC + 64
ORD2 = list(range(6, 16)) + list(range(6))
NEG = 0xf149f2ca
pk = lambda a: f"v[{a}:{a+1}]"
SW, S1, SX, SS, S2, SO = "s[28:31]", "s[32:35]", "s[36:39]", "s[40:43]", "s[44:47]", "s[48:51]"
VST = 167

def reduce32(e, regs, tmp):
    for ctl in ("quad_perm:[1,0,3,2]", "quad_perm:[2,3,0,1]", "row_half_mirror", "row_mirror"):
        e("s_nop 1")
        for r in regs: e(f"v_add_f32_dpp v{r}, v{r}, v{r} {ctl} row_mask:0xf bank_mask:0xf")
    for r, t in zip(regs, tmp): e(f"v_mov_b32 v{t}, v{r}")
    e("s_nop 1")
    for r, t in zip(regs, tmp): e(f"v_permlane16_swap_b32 v{r}, v{t}")
    e("s_nop 1")
    for r, t in zip(regs, tmp): e(f"v_add_f32 v{r}, v{r}, v{t}")

def gen(opt):
    e = Em()
    name = NAME + "_kernel"
    ST = opt.get("stamps")
    NB = 6
    NT = opt.get("nt", "")
    PL = opt.get("pl", 2)
    XA, W1A, W2A, FIN = plan3(PL, opt.get("w2l", 2), NB, opt.get("ust", 0))
    if not opt.get("ust", 0): XA, W1A, W2A, FIN = plan4(PL, NB, opt.get("w2t", 5))
    BREG = [FIN[f"B{j}"][1] for j in range(NB)]
    BT = [max(FIN[f"B{j}"][0], min(16, opt.get("bt0", 11) + j)) for j in range(NB)]
    L_K, L_V, L_Q, L_ONE = FIN["K"], FIN["V"], FIN["Q"], FIN["ONES"]
    def stamp(i, rt=False):
        if not ST: return
        e(("s_memrealtime" if rt else "s_memtime") + " s[100:101]")
        e("s_waitcnt lgkmcnt(0)")
        e(f"v_writelane_b32 v{VST}, s100, {i}")
    BK = opt.get("bk", [])
    def bstamp(k):
        if ST and k in BK: e(f"s_memtime s[{80+2*BK.index(k)}:{81+2*BK.index(k)}]")
    def bflush():
        if ST and BK:
            e("s_waitcnt lgkmcnt(0)")
            for i in range(len(BK)): e(f"v_writelane_b32 v{VST}, s{80+2*i}, {16+i}")
    uid = [0]
    def lab(p):
        uid[0] += 1
        return f"{p}_{uid[0]}"
    def apoll_issue(voff, soff, vd, tag):
        e.vmem(f"buffer_load_dword v{vd}, v{voff}, {SS}, {soff} offen sc1", tag)
    def apoll_check(voff, soff, vtag, vd, tag):
        D = lab("AOK")
        e.vwait(tag)
        e(f"v_cmp_ne_u32 vcc, v{vtag}, v{vd}")
        e("s_nop 1")
        e("s_cmp_eq_u64 vcc, 0")
        e(f"s_cbranch_scc1 {D}")
        keep = list(e.vm); keepl = list(e.lg)
        poll(voff, soff, vtag, vd)
        e.vm = keep; e.lg = keepl
        e(f"{D}:")
    def poll(voff, soff, vtag, vd):
        L, D = lab("POLL"), lab("POLLED")
        e("s_mov_b32 s63, 0x40000")
        e(f"{L}:")
        e(f"buffer_load_dword v{vd}, v{voff}, {SS}, {soff} offen sc1")
        e("s_waitcnt vmcnt(0) lgkmcnt(0)")
        e(f"v_cmp_ne_u32 vcc, v{vtag}, v{vd}")
        e("s_sub_u32 s63, s63, 1")
        e("s_cmp_eq_u32 s63, 0")
        e(f"s_cbranch_scc1 {D}")
        e("s_cmp_lg_u64 vcc, 0")
        e(f"s_cbranch_scc1 {L}")
        e(f"{D}:")
        e.vm = []; e.lg = []
    def ldswait(off, val, va, vb):
        L, D = lab("LW"), lab("LWOK")
        e(f"v_mov_b32 v{va}, {L_MISC}")
        e("s_mov_b32 s63, 0x400000")
        e(f"{L}:")
        e(f"ds_read_b32 v{vb}, v{va} offset:{off}")
        e("s_sub_u32 s63, s63, 1")
        e("s_waitcnt lgkmcnt(0)")
        e(f"v_readfirstlane_b32 s62, v{vb}")
        e("s_cmp_eq_u32 s63, 0")
        e(f"s_cbranch_scc1 {D}")
        e(f"s_cmp_ge_u32 s62, {val}")
        e(f"s_cbranch_scc1 {D}")
        e("s_sleep 1")
        e(f"s_branch {L}")
        e(f"{D}:")
        e.lg = []
    def ldsadd(off, va, vb):
        e(f"v_mov_b32 v{va}, {L_MISC}")
        e(f"v_mov_b32 v{vb}, 1")
        e("s_mov_b64 exec, 1")
        e(f"ds_add_u32 v{va}, v{vb} offset:{off}")
        e("s_mov_b64 exec, -1")
    def signal(coff, last, base, va=2, vb=3, vm=0):
        N = lab("NOFLAG")
        e(f"s_waitcnt vmcnt({vm})")
        e(f"v_mov_b32 v{va}, {L_MISC}")
        e(f"v_mov_b32 v{vb}, 1")
        e("s_mov_b64 exec, 1")
        e(f"ds_add_rtn_u32 v{vb}, v{va}, v{vb} offset:{coff}")
        e(f"s_add_u32 s62, s24, {base:#x}")
        e("s_waitcnt lgkmcnt(0)")
        e(f"v_readfirstlane_b32 s63, v{vb}")
        e(f"s_cmp_lg_u32 s63, {last}")
        e(f"s_cbranch_scc1 {N}")
        e(f"v_mov_b32 v{va}, 0")
        e(f"v_mov_b32 v{vb}, s61")
        e(f"buffer_store_dword v{vb}, v{va}, {SS}, s62 offen sc1")
        e(f"{N}:")
        e("s_mov_b64 exec, -1")
        e.lg = []

    e(f"{name}:")
    e("s_cmp_ge_u32 s2, 256")
    e("s_cbranch_scc1 L_END")
    stamp(0, True); stamp(1)
    e("s_load_dwordx4 s[4:7], s[0:1], 0")
    e("s_load_dwordx4 s[12:15], s[0:1], 32")
    e("s_load_dwordx2 s[16:17], s[0:1], 64")
    e("s_load_dwordx2 s[8:9], s[0:1], 16")
    e("s_load_dwordx2 s[10:11], s[0:1], 48")
    e("v_lshrrev_b32 v1, 6, v0")
    e("v_and_b32 v0, 63, v0")
    e("v_readfirstlane_b32 s18, v1")
    e("""s_and_b32 s3, s2, 1
    s_lshl_b32 s20, s3, 3
    s_lshr_b32 s24, s2, 5
    s_add_u32 s20, s20, s24
    s_bfe_u32 s21, s2, 0x20001
    s_bfe_u32 s22, s2, 0x20003
    s_lshl_b32 s23, s21, 2
    s_add_u32 s23, s23, s22
    s_lshl_b32 s24, s20, 4
    s_add_u32 s24, s24, s23
    s_lshl_b32 s24, s24, 7
    s_and_b32 s19, s18, 3
    s_lshl_b32 s3, s3, 2
    s_add_u32 s58, s3, s21
    s_lshl_b32 s58, s58, 2
    s_lshr_b32 s59, s2, 6
    s_add_u32 s58, s58, s59
    s_bfe_u32 s59, s2, 0x30003""")
    e("s_waitcnt lgkmcnt(0)")
    if opt.get("wsoff"):
        e(f"s_add_u32 s16, s16, {opt['wsoff'] << 20:#x}")
        e("s_addc_u32 s17, s17, 0")
    srd(e, 36, 4, 2048 * 1024)
    srd(e, 28, 6, 512 * 3072)
    srd(e, 32, 12, 512 * 3584)
    srd(e, 40, 16, WS_BYTES)
    e("s_cmp_ge_u32 s18, 8")
    e("s_cbranch_scc1 L_UTIL")
    e("s_cmp_ge_u32 s18, 4")
    e("s_cbranch_scc1 L_CONS")

    e(f"""v_and_b32 v5, 7, v0
    v_lshrrev_b32 v2, 3, v0
    v_lshrrev_b32 v3, 4, v0
    v_xor_b32 v3, v3, v5
    v_lshlrev_b32 v2, 10, v2
    v_lshl_add_u32 v12, v3, 4, v2
    v_xor_b32 v13, 64, v12
    s_lshl_b32 s65, s20, 17
    s_lshl_b32 s3, s18, 15
    s_add_u32 s65, s65, s3
    s_lshl_b32 s67, s18, 12""")
    def issueX(P):
        e(f"s_add_u32 m0, s67, {XA[P]}")
        e(f"s_add_u32 s74, s65, {P*128}")
        for a in range(4):
            e.vmem(f"buffer_load_dwordx4 v{12+(a&1)}, {SX}, s74 offen offset:{a*1024} {NT} lds", ("x", P))
            if a < 3: e(f"s_add_u32 s74, s74, {8192-1024}")
    issueX(0)
    e("""v_lshrrev_b32 v2, 5, v0
    v_bfe_u32 v3, v0, 3, 2
    v_lshl_add_u32 v3, v2, 3, v3
    v_bfe_u32 v4, v0, 4, 2
    v_lshlrev_b32 v4, 1, v4
    v_xor_b32 v4, v4, v5
    v_lshlrev_b32 v4, 4, v4
    v_mul_u32_u24 v10, 3072, v3
    v_add_u32 v10, v10, v4
    v_mul_u32_u24 v11, 3584, v3
    v_add_u32 v11, v11, v4
    s_lshr_b32 s52, s18, 1
    s_lshl_b32 s52, s52, 5
    s_and_b32 s62, s18, 1
    s_lshl_b32 s3, s62, 2
    s_add_u32 s52, s52, s3
    s_lshl_b32 s3, s23, 7
    s_mul_i32 s53, s52, 3072
    s_add_u32 s53, s53, s3
    s_add_u32 s53, s53, 1024
    s_mul_i32 s54, s52, 3584
    s_add_u32 s54, s54, s3""")
    def issueW(c):
        for ah in range(2):
            e(f"s_add_u32 m0, s67, {W1A[c] + ah*2048}")
            e(f"s_add_u32 s74, s53, {(64*c + 16*ah)*3072}")
            e.vmem(f"buffer_load_dwordx4 v10, {SW}, s74 offen {NT} lds", ("w", c))
            e(f"s_add_u32 m0, s67, {W1A[c] + ah*2048 + 1024}")
            e(f"s_add_u32 s74, s54, {(64*c + 16*ah)*3584}")
            e.vmem(f"buffer_load_dwordx4 v11, {S1}, s74 offen {NT} lds", ("w", c))
    def esetup():
        e("""v_lshrrev_b32 v2, 4, v0
        v_bfe_u32 v3, v0, 2, 2
        v_lshl_add_u32 v3, v2, 3, v3
        v_mul_u32_u24 v16, 3072, v3
        v_and_b32 v2, 1, v2
        v_lshlrev_b32 v2, 1, v2
        v_and_b32 v3, 3, v0
        v_xor_b32 v2, v2, v3
        v_lshl_add_u32 v16, v2, 4, v16
        s_and_b32 s62, s18, 1
        s_lshl_b32 s3, s62, 7""")
        for j in range(2):
            e(f"""v_add_u32 v2, s3, v0
            v_add_u32 v2, {64*j}, v2
            v_mul_u32_u24 v3, 10923, v2
            v_lshrrev_b32 v3, 16, v3
            v_mul_u32_u24 v4, 6, v3
            v_sub_u32 v4, v2, v4
            v_bfe_u32 v6, v3, 2, 2
            v_lshlrev_b32 v6, 3, v6
            v_lshrrev_b32 v7, 4, v3
            v_lshl_add_u32 v6, v7, 2, v6
            v_and_b32 v7, 3, v3
            v_add_u32 v6, v6, v7
            v_mul_u32_u24 v{17+j}, 3584, v6
            v_lshl_add_u32 v{17+j}, v4, 4, v{17+j}""")
        e("""s_cmp_eq_u32 s62, 1
        s_cselect_b32 s3, 0x80000000, 0
        v_or_b32 v18, s3, v18
        s_lshr_b32 s3, s18, 1
        s_mul_i32 s55, s52, 3072
        s_lshl_b32 s64, s23, 6
        s_add_u32 s55, s55, s64
        s_mul_i32 s56, s3, 114688
        s_mul_i32 s64, s23, 96
        s_add_u32 s56, s56, s64
        s_add_u32 s56, s56, 2048
        s_mul_i32 s57, s3, 5120
        s_lshl_b32 s64, s62, 10
        s_add_u32 s60, s57, s64
        s_lshl_b32 s64, s62, 11
        s_add_u32 s57, s57, s64
        s_add_u32 s64, s57, 1024
        s_cmp_eq_u32 s62, 1
        s_cselect_b32 s64, 8192, s64""")
    def issueW2(c):
        p = ORD2[2 * c]
        base = W2A[c][1]
        e(f"s_add_u32 m0, s60, {base}")
        e(f"s_add_u32 s74, s55, {p*32*3072}")
        e.vmem(f"buffer_load_dwordx4 v16, {SW}, s74 offen {NT} lds", ("w2", c))
        e(f"s_add_u32 m0, s57, {base + 2048}")
        e(f"s_add_u32 s74, s56, {p*32*3584}")
        e.vmem(f"buffer_load_dwordx4 v17, {S1}, s74 offen {NT} lds", ("w2", c))
        e(f"s_add_u32 m0, s64, {base + 2048}")
        e("s_nop 0")
        e.vmem(f"buffer_load_dwordx4 v18, {S1}, s74 offen {NT} lds", ("w2", c))
    NF2, NS, NA = 14, 18, 4
    A0 = 20
    AF = lambda sg, tb, kk: A0 + (sg % NA) * 16 + (tb * 2 + kk) * 4
    ACB = A0 + NA * 16
    GACC = lambda tb, nb: ACB + (tb * 2 + nb) * 16
    BFB = ACB + 64
    BF = lambda kk, nb: BFB + (kk * 2 + nb) * 4
    assert BFB + 16 <= VST
    def gsetup():
        srd(e, 44, 14, 1792 * 1024)
        srd(e, 48, 8, 512 * 1024)
        e(f"""v_lshrrev_b32 v8, 3, v0
        v_bfe_u32 v2, v0, 4, 1
        v_lshlrev_b32 v2, 2, v2
        v_xor_b32 v9, v5, v2
        v_lshlrev_b32 v9, 4, v9
        v_lshl_add_u32 v14, v8, 10, v9
        v_lshrrev_b32 v2, 2, v8
        v_lshlrev_b32 v2, 3, v2
        v_and_b32 v8, 3, v8
        v_add_u32 v8, v8, v2
        v_lshl_add_u32 v15, v8, 10, v9
        v_lshlrev_b32 v1, 4, v0
        s_lshl_b32 s3, s59, 7
        s_lshl_b32 s70, s18, 18
        s_add_u32 s70, s70, s3
        s_mul_i32 s78, s18, {12*16*1024}
        s_add_u32 s78, s78, s3
        s_lshl_b32 s71, s18, 17
        s_add_u32 s71, s71, s3
        s_mul_i32 s72, s58, {2*112*1024}
        s_add_u32 s72, s72, {WS_H:#x}
        s_mul_i32 s79, s18, {12*1024}
        s_add_u32 s79, s79, s72
        s_lshl_b32 s3, s18, 14
        s_add_u32 s72, s72, s3
        s_lshl_b32 s73, s58, 16
        s_lshl_b32 s3, s18, 13
        s_add_u32 s73, s73, s3
        s_add_u32 s73, s73, {WS_O:#x}
        s_lshl_b32 s69, s58, 1
        s_add_u32 s69, s69, s59
        s_and_b32 s69, s69, {opt.get("rotm", 7)}
        s_sub_u32 s25, s69, 6
        s_cmp_ge_u32 s69, 6
        s_cselect_b32 s25, s25, s69""")
    KS = [(2 * i, False) for i in range(8)] + [(64 + 2 * i, True) for i in range(6)]
    ROT = opt.get("rot", 0)
    def ridx(sg):
        if sg < 8:
            e(f"s_add_u32 s68, s69, {sg}")
            e("s_and_b32 s68, s68, 7")
        elif sg < NF2:
            e(f"s_add_u32 s68, s25, {sg-8}")
            e("s_sub_u32 s3, s68, 6")
            e("s_cmp_ge_u32 s68, 6")
            e("s_cselect_b32 s68, s3, s68")
        else:
            e(f"s_add_u32 s68, s69, {sg-NF2}")
            e("s_and_b32 s68, s68, 3")
    def issueB(sg):
        if ROT:
            ridx(sg)
            e("s_lshl_b32 s68, s68, 15")
            e(f"s_add_u32 s68, s68, {'s70' if sg < 8 else 's78' if sg < NF2 else 's71'}")
        for a in range(4):
            e(f"s_add_u32 m0, s67, {BREG[sg % NB] + a*1024}")
            if sg < NF2:
                k16, ex = KS[sg]
                if ROT: e(f"s_add_u32 s74, s68, {((1024 if ex else 0) + 8*a)*1024}")
                else: e(f"s_add_u32 s74, {'s78' if ex else 's70'}, {(16*k16 + 8*a)*1024}")
                e.vmem(f"buffer_load_dwordx4 v14, {S2}, s74 offen lds", ("B", sg))
            else:
                if ROT: e(f"s_add_u32 s74, s68, {(16*(a>>1) + 4*(a&1))*1024}")
                else: e(f"s_add_u32 s74, s71, {(32*(sg-NF2) + 16*(a>>1) + 4*(a&1))*1024}")
                e.vmem(f"buffer_load_dwordx4 v15, {SO}, s74 offen lds", ("B", sg))
    def issueA(sg):
        if ROT:
            ridx(sg)
            e("s_lshl_b32 s68, s68, 11")
            e(f"s_add_u32 s68, s68, {'s72' if sg < 8 else 's79' if sg < NF2 else 's73'}")
        for tb in range(2):
            if sg < NF2:
                k16, ex = KS[sg]
                if ROT: e(f"s_add_u32 s74, s68, {(tb*112 + (64 if ex else 0))*1024}")
                else: e(f"s_add_u32 s74, {'s79' if ex else 's72'}, {(tb*112 + k16)*1024}")
            elif ROT: e(f"s_add_u32 s74, s68, {tb*32*1024}")
            else: e(f"s_add_u32 s74, s73, {(tb*32 + 2*(sg-NF2))*1024}")
            for kk in range(2):
                e.vmem(f"buffer_load_dwordx4 {vr(AF(sg,tb,kk),4)}, v1, {SS}, s74 offen offset:{kk*1024} sc1", ("A", sg))
    def gsetup2():
        e(f"""v_lshrrev_b32 v6, 5, v0
        v_lshlrev_b32 v6, 3, v6
        v_bfe_u32 v7, v0, 2, 2
        v_add_u32 v6, v6, v7
        v_lshlrev_b32 v6, 7, v6
        v_lshrrev_b32 v7, 1, v7
        v_lshl_add_u32 v6, v7, 6, v6
        v_bfe_u32 v7, v0, 4, 1
        v_lshl_add_u32 v6, v7, 5, v6
        v_and_b32 v7, 3, v0
        v_lshl_add_u32 v6, v7, 3, v6
        v_add_u32 v6, s67, v6
        v_xor_b32 v7, 64, v6
        v_add_u32 v8, 49152, v6
        v_add_u32 v9, 49152, v7
        v_mov_b32 v2, {L_MISC}
        ds_read_b32 v2, v2
        v_and_b32 v3, 3, v0
        v_lshlrev_b32 v3, 7, v3
        s_lshr_b32 s76, s58, 1
        s_lshl_b32 s76, s76, 11
        s_lshl_b32 s3, s18, 9
        s_add_u32 s76, s76, s3
        s_add_u32 s66, s76, {WS_F1H:#x}""")
        e("s_mov_b32 s75, 0")
        e("s_waitcnt lgkmcnt(0)")
    D = opt.get("gd", 3); DB = NB - 1; PS = opt.get("ps", 11); PB = 8 - D - 1
    GE = opt.get("ge", 15)
    issueW(0)
    for c in range(1, PL): issueX(c); issueW(c)
    for k in range(17):
        e.vwait([("w", k), ("x", k)] if k < 8 else [("w2", k - 8)])
        if k == 0: stamp(2)
        if k == 8: stamp(3)
        if k == 16: stamp(4)
        bstamp(k)
        if k == 16: bflush()
        e("s_barrier")
        if k + PL <= 7: issueX(k + PL); issueW(k + PL)
        if k == 1: gsetup()
        if k == 2: esetup()
        for c in range(8):
            if W2A[c][0] == k: issueW2(c)
        if k == 7 and any(W2A[c][0] == 7.5 for c in range(8)):
            ldswait(28, 4, 2, 3)
            for c in range(8):
                if W2A[c][0] == 7.5: issueW2(c)
        if k == 9: gsetup2()
        if k == GE - 2: apoll_issue(3, "s66", 4, "f1h")
        if k == GE:
            sk = lab("GLATE")
            e.vwait("f1h")
            e("v_cmp_ne_u32 vcc, v2, v4")
            e("s_nop 1")
            e("s_cmp_lg_u64 vcc, 0")
            e(f"s_cbranch_scc1 {sk}")
            keep = list(e.vm)
            for sg in range(D): issueA(sg)
            e.vm = keep
            e("s_mov_b32 s75, 1")
            e(f"{sk}:")
        if k < 16:
            for j in range(NB):
                if BT[j] == k: issueB(j)
    if opt.get("gprio", 0): e(f"s_setprio {opt.get('gprio')}")
    for j in range(NB):
        if BT[j] >= 16: issueB(j)
    e("s_cmp_lg_u32 s75, 0")
    e("s_cbranch_scc1 L_GGO")
    keep = list(e.vm)
    poll(3, "s66", 2, 4)
    e.vm = keep
    for sg in range(D): issueA(sg)
    e("L_GGO:")
    stamp(5)
    def step(sg):
        if sg == opt.get("ghold", -1): ldswait(16, 8, 12, 13)
        e.vwait([("B", sg), ("A", sg)])
        reg = BREG[sg % NB]
        hi = reg // 49152
        off0 = reg - 49152 * hi
        for kk in range(2):
            for nb in range(2):
                for q in range(2):
                    e.lds(f"ds_read_b64_tr_b16 v[{BF(kk,nb)+2*q}:{BF(kk,nb)+2*q+1}], v{6+2*hi+nb} offset:{off0 + kk*2048 + q*512}", (kk, nb))
        if NB <= sg + DB < NS: issueB(sg + DB)
        if sg + D < NF2 or (sg + D < NS and sg > PS): issueA(sg + D)
        for kk in range(2):
            for nb in range(2):
                e.lwait((kk, nb))
                for tb in range(2):
                    acc = vr(GACC(tb, nb), 16)
                    cin = "0" if (sg == 0 and kk == 0) else acc
                    e(f"v_mfma_f32_32x32x16_bf16 {acc}, {vr(BF(kk,nb),4)}, {vr(AF(sg,tb,kk),4)}, {cin}")
    for sg in range(PS + 1):
        if sg == PB - 1 or sg == PS - 1:
            e(f"s_add_u32 s66, s76, {(WS_F1B if sg == PB - 1 else WS_F2):#x}")
            apoll_issue(3, "s66", 4, "fl")
        step(sg)
        if sg == PB:
            stamp(6)
            apoll_check(3, "s66", 2, 4, "fl")
    stamp(7)
    apoll_check(3, "s66", 2, 4, "fl")
    stamp(8)
    for sg in range(NF2, min(NS, PS + 1 + D)): issueA(sg)
    for sg in range(PS + 1, NS): step(sg)
    stamp(9)
    e("""v_and_b32 v12, 31, v0
    v_lshlrev_b32 v12, 7, v12
    v_lshrrev_b32 v13, 5, v0
    v_xor_b32 v13, v13, v5
    v_lshl_add_u32 v12, v13, 4, v12
    v_add_u32 v12, s67, v12""")
    for nb in range(2):
        for a in range(4): e(f"v_xor_b32 v{20+nb*4+a}, {((2*a) ^ nb)*16}, v12")
    for tb in range(2):
        for nb in range(2):
            for a in range(4): e(f"v_add_u32 v{28+(tb*2+nb)*4+a}, {BREG[tb*2+nb]}, v{20+nb*4+a}")
    for tb in range(2):
        for nb in range(2):
            for a in range(4): e(f"ds_write_b128 v{28+(tb*2+nb)*4+a}, {vr(GACC(tb,nb)+4*a,4)}")
    e("s_waitcnt lgkmcnt(0)")
    stamp(10)
    e("s_barrier")
    if ST: e("s_branch L_DUMP")
    e("s_endpgm")

    e("L_CONS:")
    e.vm = []; e.lg = []
    LA = opt.get("la", 5); NFB = 6
    F = lambda f: 8 + (f % NFB) * 4
    XF = lambda n, r: 32 + ((n & 1) * 2 + r) * 4
    XK = lambda p, r: 48 + (p * 2 + r) * 4
    ACC = lambda s, r: 96 + (s * 2 + r) * 4
    AW = [1, 2, 3, 4]; AX = [7, 5]
    e(f"""v_lshrrev_b32 v8, 2, v0
    v_lshrrev_b32 v9, 3, v8
    v_lshlrev_b32 v9, 11, v9
    v_and_b32 v10, 7, v8
    v_lshl_add_u32 v9, v10, 7, v9
    v_and_b32 v10, 3, v0
    v_lshlrev_b32 v10, 3, v10
    v_add_u32 v9, v9, v10
    v_bfe_u32 v11, v0, 3, 2
    v_lshl_add_u32 v1, v11, 5, v9
    v_add_u32 v1, {W1A[0]}, v1
    v_xor_b32 v2, 32, v1
    v_xor_b32 v3, 64, v1
    v_xor_b32 v4, 96, v1
    v_and_b32 v8, 15, v0
    v_lshrrev_b32 v9, 4, v0
    v_lshrrev_b32 v10, 1, v8
    v_xor_b32 v9, v9, v10
    v_lshlrev_b32 v8, 7, v8
    v_lshl_add_u32 v7, v9, 4, v8
    s_lshl_b32 s3, s19, 12
    s_add_u32 s3, s3, {XA[0]}
    v_add_u32 v7, s3, v7
    v_xor_b32 v5, 64, v7""")
    if opt.get("cprio", 0): e(f"s_setprio {opt.get('cprio')}")
    cur = {"w": W1A[0], "x": XA[0]}
    UST = opt.get("ust", 0)
    DEF = []; NST = [0]; TIM = 0 if UST else opt.get("tim", 2)
    def move(kind, regs, addr):
        d = addr - cur[kind]
        if d:
            for a in regs: e(f"v_add_u32 v{a}, {d & 0xffffffff:#x}, v{a}")
        cur[kind] = addr
    def gemm(ps):
        NSB = 8 if ps == 1 else 5
        NF = 16 * NSB
        kst = (lambda n: n) if ps == 1 else (lambda n: ORD2[n])
        xreg = lambda n, r: XK(kst(n), r) if kst(n) < 6 else XF(n, r)
        def rd(f):
            n, s = divmod(f, NSB)
            for q in range(2):
                if ps == 1:  a, off = AW[s & 3], (n & 1) * 8192 + q * 4096 + (s >> 2) * 1024
                elif s < 2:  a, off = AW[s], (n & 1) * 5120 + q * 1024
                else:        a, off = AW[2], (n & 1) * 5120 + 2048 + q * 1536 + (s - 2) * 32
                yield f"ds_read_b64_tr_b16 v[{F(f)+2*q}:{F(f)+2*q+1}], v{a} offset:{off}"
        def kswitch(n):
            if n % 2 == 0:
                if ps == 1: move("w", AW, W1A[n // 2])
                else:       move("w", AW[:3], W2A[n // 2][1])
                bstamp(8 * (ps - 1) + n // 2)
                e("s_barrier")
                if ps == 2 and not UST:
                    for _ in range(opt.get("tper", 2)):
                        if DEF:
                            for x in DEF.pop(0):
                                if opt.get("nost1") and "buffer_store" in x: continue
                                e(x.replace(" sc1", "") if opt.get("plain1") else x)
                            NST[0] += 1
                    if n // 2 == opt.get("sgk", 3):
                        bstamp(20); signal(4, 3, WS_F1, 164, 165, max(0, NST[0] - 4)); bstamp(21)
                    if n // 2 == opt.get("sgh", 5):
                        assert not DEF
                        bstamp(22); signal(24, 3, WS_F1H, 164, 165); bstamp(23)
            if NSB > LA or n < 2: xread(n)
        def xread(n):
            p = kst(n)
            if ps == 1 or p >= 6:
                move("x", AX, XA[p >> 1])
                for r in range(2): e.lds(f"ds_read_b128 {vr(xreg(n,r),4)}, v{AX[p&1]} offset:{r*2048}", ("x", n))
        kswitch(0)
        if ps == 1: stamp(2)
        for f in range(LA):
            if f and f % NSB == 0: kswitch(f // NSB)
            for r_ in rd(f): e.lds(r_, f)
        for f in range(NF):
            n, s = divmod(f, NSB)
            nxt = f + LA
            if nxt < NF and nxt % NSB == 0: kswitch(nxt // NSB)
            if NSB <= LA and s == 0 and 1 <= n < 15: xread(n + 1)
            e.lwait([f, ("x", n)])
            if ps == 2 and f == NF - 1: e("s_barrier")
            rds = list(rd(nxt)) if nxt < NF else [None, None]
            for r in range(2):
                acc = vr(ACC(s, r), 4)
                e(f"v_mfma_f32_16x16x32_bf16 {acc}, {vr(F(f),4)}, {vr(xreg(n,r),4)}, {'0' if n == 0 else acc}")
                if rds[r]: e.lds(rds[r], nxt)
    RS = lambda r: 160 + 2 * r
    RQ = lambda r: 32 + 2 * r
    TT = 8
    CSR = [24, 28]
    def epilogue(ps):
        order = ([5, 6, 7, 2, 3, 4, 0, 1] if TIM else list(range(8))) if ps == 1 else [0, 1, 2, 3, 4]
        dd = {}
        loc = lambda s: s if ps == 1 else 8 + s
        if ps == 1:
            ldsadd(28, 8, 9)
            ldswait(20, 1, 8, 9)
        e(f"""v_and_b32 v16, 15, v0
        v_lshrrev_b32 v17, 4, v0
        s_lshl_b32 s3, s19, 9
        s_add_u32 s3, s3, {L_ST}
        v_lshl_add_u32 v8, v16, 4, s3
        v_lshlrev_b32 v164, 4, v17
        v_add_u32 v164, {L_ST+2048}, v164
        v_mov_b32 v10, {L_MISC}""")
        if ps == 1:
            for r in range(2): e.lds(f"ds_read_b64 {pk(RS(r))}, v8 offset:{256*r}", "st")
            e.lds("ds_read_b32 v10, v10", "st")
        def csread(n):
            if n < len(order): e.lds(f"ds_read_b128 {vr(CSR[n%2],4)}, v164 offset:{64*loc(order[n])}", ("cs", n))
        csread(0)
        e("v_lshlrev_b32 v166, 4, v0")
        if ps == 1:
            e(f"""s_lshl_b32 s64, s20, 2
            s_add_u32 s64, s64, s19
            s_lshl_b32 s65, s23, 8
            s_add_u32 s65, s65, s64
            s_lshl_b32 s65, s65, 10
            s_mul_i32 s66, s64, 112
            s_mul_i32 s67, s23, 3
            s_add_u32 s67, s67, s66
            s_add_u32 s67, s67, 64
            s_lshl_b32 s67, s67, 10
            s_lshl_b32 s3, s23, 2
            s_add_u32 s66, s66, s3
            s_lshl_b32 s66, s66, 10
            s_add_u32 s66, s66, {WS_H:#x}
            s_add_u32 s67, s67, {WS_H:#x}""")
            if UST:
                e("s_lshl_b32 s3, s19, 12")
                e("v_add_u32 v36, s3, v166")
                e(f"v_add_u32 v37, {W1A[7]}, v36")
                e(f"v_add_u32 v36, {W1A[6]}, v36")
            e.lwait("st")
            e("v_readfirstlane_b32 s61, v10")
        else:
            e("s_mov_b32 s3, 0x3eb8aa3b")
            for q in range(4): e(f"v_mul_f32 v{32+q}, s3, v{160+q}")
            e("s_lshl_b32 s3, s19, 10")
            e(f"s_add_u32 s3, s3, {L_Q}")
            e("v_add_u32 v36, s3, v166")
        for n, s in enumerate(order):
            T = 16 + 4 * (n % 2)
            stg = ps == 1 and UST
            dfr = ps == 1 and TIM and s >= 2 and not UST
            if dfr: T = ACC(s, 0) if s >= 5 else ACC(s + 3, 1)
            isQ = ps == 2 and s < 2
            isH = (ps == 1 and s >= 4) or (ps == 2 and s >= 2)
            if stg and s == 4: ldswait(28, 4, 38, 39)
            e.lwait(("cs", n))
            c = CSR[n % 2]
            csread(n + 1)
            for r in range(2):
                sp = RQ(r) if isQ else RS(r)
                for h in range(2):
                    e(f"v_pk_mul_f32 {pk(TT+4*r+2*h)}, {pk(c+2*h)}, {pk(sp)} op_sel:[0,1] op_sel_hi:[1,1]")
            for r in range(2):
                sp = RQ(r) if isQ else RS(r)
                for h in range(2):
                    t = TT + 4 * r + 2 * h
                    e(f"v_pk_fma_f32 {pk(t)}, {pk(ACC(s,r)+2*h)}, {pk(sp)}, {pk(t)} op_sel_hi:[1,0,1]")
            for r in range(2):
                for h in range(2):
                    t = TT + 4 * r + 2 * h
                    e(f"v_cvt_pk_bf16_f32 v{T+2*r+h}, v{t}, v{t+1}")
            if isH:
                for q in range(4): e(f"v_pk_max_i16 v{T+q}, v{T+q}, 0")
            if isQ or stg: e("s_nop 0")
            elif ps == 2: e(f"s_add_u32 s3, s67, {(s-2)*1024}")
            elif s < 4: e(f"s_add_u32 s3, s65, {WS_KV + s*0x10000:#x}")
            else: e(f"s_add_u32 s3, s66, {(s-4)*1024}")
            e("s_nop 0")
            e(f"v_permlane16_swap_b32 v{T}, v{T+2}")
            e(f"v_permlane16_swap_b32 v{T+1}, v{T+3}")
            if isQ:
                e.lds(f"ds_write_b128 v36, {vr(T,4)} offset:{s*4096}", "qw")
                if s == 1:
                    e.lwait_all()
                    ldsadd(16, 37, 38)
            elif stg: e.lds(f"ds_write_b128 v{36 + (s >> 2)}, {vr(T,4)} offset:{(s&3)*1024}", "qw")
            elif dfr: dd[s] = [e.lines[-4].strip(), f"buffer_store_dwordx4 {vr(T,4)}, v166, {SS}, s3 offen sc1"]
            else:
                e(f"buffer_store_dwordx4 {vr(T,4)}, v166, {SS}, s3 offen sc1")
                NST[0] += 1
        for s in sorted(dd): DEF.append(dd[s])
    gemm(1)
    stamp(3)
    epilogue(1)
    e(f"""v_lshrrev_b32 v8, 2, v0
    v_and_b32 v10, 3, v0
    v_lshlrev_b32 v10, 3, v10
    v_lshl_add_u32 v1, v8, 6, v10
    v_bfe_u32 v11, v0, 4, 1
    v_lshl_add_u32 v1, v11, 5, v1
    v_add_u32 v1, {W2A[0][1]}, v1
    v_xor_b32 v2, 32, v1
    v_mul_u32_u24 v3, 96, v8
    v_add_u32 v3, v3, v10
    v_add_u32 v3, {W2A[0][1]}, v3""")
    cur["w"] = W2A[0][1]
    e.lwait_all()
    stamp(4)
    gemm(2)
    bflush()
    stamp(5)
    epilogue(2)
    e("s_mov_b32 s96, s19")
    e("s_mov_b32 s97, 1")
    e("s_branch L_ATT")

    e("L_UTIL:")
    e.vm = []; e.lg = []
    if opt.get("uprio0", 3): e(f"s_setprio {opt.get('uprio0', 3)}")
    L0, U, A, CL, C0, C1, VE = 16, 24, 40, 48, 64, 72, 80
    e("v_and_b32 v5, 7, v0")
    if opt.get("pfc", 1):
        sk = lab("NOPC")
        e("s_cmp_lg_u32 s19, 3")
        e(f"s_cbranch_scc1 {sk}")
        e("s_getpc_b64 s[64:65]")
        e("L_PCREF:")
        e(f"s_sub_u32 s64, s64, L_PCREF-{name}")
        e("s_subb_u32 s65, s65, 0")
        e("s_lshr_b32 s66, s2, 3")
        e("s_mul_i32 s66, s66, (L_END-%s+4095)/4096*128" % name)
        e("v_lshlrev_b32 v2, 7, v0")
        e("v_add_u32 v2, s66, v2")
        e("v_mov_b32 v3, s65")
        e("v_add_co_u32 v2, vcc, s64, v2")
        e("s_nop 1")
        e("v_addc_co_u32 v3, vcc, 0, v3, vcc")
        e("v_cmp_gt_u32 vcc, (L_END-%s+4095)/4096, v0" % name)
        e("s_nop 1")
        e("s_and_saveexec_b64 s[66:67], vcc")
        e("global_load_dword v163, v[2:3], off")
        e("s_mov_b64 exec, -1")
        e(f"{sk}:")
    PFU = opt.get("pfu", 0)
    def pf_x():
        e("""v_and_b32 v2, 31, v0
        v_lshlrev_b32 v2, 10, v2
        v_lshrrev_b32 v3, 5, v0
        v_lshl_add_u32 v2, v3, 7, v2
        s_lshl_b32 s64, s20, 17
        s_lshl_b32 s65, s22, 15
        s_add_u32 s64, s64, s65
        s_lshl_b32 s65, s19, 8
        s_add_u32 s64, s64, s65""")
        e(f"buffer_load_dword v160, v2, {SX}, s64 offen")
    def pf_w():
        L1, L2, L3, LD = lab("PW"), lab("PW"), lab("PW"), lab("PW")
        e("""s_and_b32 s64, s20, 7
        v_lshlrev_b32 v2, 3, v0
        v_add_u32 v2, s64, v2
        v_mul_u32_u24 v3, 3584, v2
        v_mul_u32_u24 v2, 3072, v2
        s_lshl_b32 s64, s23, 7""")
        e("s_cmp_eq_u32 s19, 1"); e(f"s_cbranch_scc1 {L1}")
        e("s_cmp_eq_u32 s19, 3"); e(f"s_cbranch_scc1 {L3}")
        e("s_add_u32 s65, s64, 1024")
        e("s_lshr_b32 s64, s64, 1")
        e("s_cmp_eq_u32 s19, 0")
        e("s_cselect_b32 s64, s65, s64")
        e(f"buffer_load_dword v161, v2, {SW}, s64 offen")
        e(f"s_branch {LD}")
        e(f"{L3}:")
        e("s_mul_i32 s64, s23, 96")
        e("s_add_u32 s64, s64, 2048")
        e(f"buffer_load_dword v162, v3, {S1}, s64 offen offset:92")
        e(f"{L1}:")
        e(f"buffer_load_dword v161, v3, {S1}, s64 offen")
        e(f"{LD}:")
    if PFU == 1: pf_x(); pf_w()
    e(f"v_mov_b32 v{VE}, 0")
    e(f"s_mov_b32 s3, {WS_EP:#x}")
    e.vmem(f"buffer_load_dword v{VE}, v{VE}, {SS}, s3 offen sc1", "rs")
    e(f"""v_lshrrev_b32 v4, 5, v0
    v_and_b32 v6, 31, v0
    v_lshlrev_b32 v6, 4, v6
    v_lshl_add_u32 v6, v4, 10, v6
    v_lshlrev_b32 v{VE+1}, 4, v4
    s_lshl_b32 s64, s20, 7
    s_lshl_b32 s65, s23, 3
    s_add_u32 s64, s64, s65
    s_lshl_b32 s65, s19, 1
    s_add_u32 s64, s64, s65
    s_lshl_b32 s65, s64, 10""")
    e.vmem(f"buffer_load_dwordx4 {vr(L0,4)}, v6, {SX}, s65 offen", "rs")
    e.vmem(f"buffer_load_dwordx4 {vr(L0+4,4)}, v6, {SX}, s65 offen offset:512", "rs")
    e("""s_add_u32 s66, s23, 8
    s_add_u32 s67, s23, 24
    s_cmp_eq_u32 s19, 1
    s_cselect_b32 s66, s67, s66
    s_add_u32 s67, s23, 32
    s_cmp_lt_u32 s23, 8
    s_cselect_b32 s67, s23, s67
    s_cmp_eq_u32 s19, 2
    s_cselect_b32 s66, s67, s66
    s_add_u32 s67, s23, 48
    s_cmp_eq_u32 s19, 3
    s_cselect_b32 s66, s67, s66
    v_lshrrev_b32 v2, 3, v0
    v_lshlrev_b32 v3, 4, v5
    s_cmp_ge_u32 s66, 52
    s_cbranch_scc1 L_CSD
    s_lshl_b32 s67, s66, 7
    s_cmp_ge_u32 s66, 24
    s_cbranch_scc1 L_CSW
    v_mul_u32_u24 v4, 3072, v2
    v_add_u32 v4, v4, v3""")
    e(f"s_mul_i32 s68, s20, {32*3072}")
    e("s_add_u32 s68, s68, s67")
    for t in range(4):
        e(f"buffer_load_dwordx4 {vr(CL+4*t,4)}, v4, {SW}, s68 offen")
        if t < 3: e(f"s_add_u32 s68, s68, {8*3072}")
    e("s_branch L_CSD")
    e("L_CSW:")
    e("v_mul_u32_u24 v4, 3584, v2")
    e("v_add_u32 v4, v4, v3")
    e(f"s_mul_i32 s68, s20, {32*3584}")
    e("s_add_u32 s68, s68, s67")
    e(f"s_sub_u32 s68, s68, {24*128}")
    for t in range(4):
        e(f"buffer_load_dwordx4 {vr(CL+4*t,4)}, v4, {S1}, s68 offen")
        if t < 3: e(f"s_add_u32 s68, s68, {8*3584}")
    e("L_CSD:")
    if PFU == 2:
        e("s_mov_b32 s74, s64")
        pf_x(); pf_w()
        e("s_mov_b32 s64, s74")
    e(f"""s_mov_b32 s69, 0xffff0000
    s_mov_b32 s70, 0x3b000000
    s_lshl_b32 s64, s64, 4
    s_add_u32 s64, s64, {WS_RS:#x}
    v_lshlrev_b32 v14, 4, v0
    s_lshl_b32 s71, s23, 8
    s_add_u32 s72, s71, {512*4}
    v_add_u32 v15, s72, v14
    s_add_u32 s72, s71, {1536*4 - 256}
    v_add_u32 v2, s72, v14
    v_cmp_le_u32 vcc, 16, v0
    s_lshl_b32 s72, s23, 7
    s_sub_u32 s72, s72, 512
    v_cndmask_b32 v15, v15, v2, vcc
    v_add_u32 v2, s72, v14
    v_cmp_le_u32 vcc, 32, v0
    s_mul_i32 s72, s23, 192
    s_add_u32 s72, s72, {2560*4 - 640}
    v_cndmask_b32 v15, v15, v2, vcc
    v_min_u32 v2, 51, v0
    v_lshlrev_b32 v2, 4, v2
    v_add_u32 v2, s72, v2
    v_cmp_le_u32 vcc, 40, v0
    s_nop 1
    v_cndmask_b32 v15, v15, v2, vcc""")
    def piece(n):
        if n == 0:
            e("s_cmp_ge_u32 s66, 52")
            e("s_cbranch_scc1 L_P0A")
            e(f"s_waitcnt vmcnt({4 + (2 if PFU == 2 else 0)})")
            e("s_branch L_P0B")
            e("L_P0A:")
            e(f"s_waitcnt vmcnt({2 if PFU == 2 else 0})")
            e("L_P0B:")
            for q in range(8):
                e(f"v_lshlrev_b32 v{U+2*q}, 16, v{L0+q}")
                e(f"v_and_b32 v{U+2*q+1}, s69, v{L0+q}")
            for q in range(4): e(f"v_pk_add_f32 {pk(A+2*q)}, {pk(U+4*q)}, {pk(U+4*q+2)}")
            e(f"v_pk_add_f32 {pk(A)}, {pk(A)}, {pk(A+2)}")
            e(f"v_pk_add_f32 {pk(A+4)}, {pk(A+4)}, {pk(A+6)}")
            e(f"v_pk_add_f32 {pk(A)}, {pk(A)}, {pk(A+4)}")
            e(f"v_add_f32 v{A}, v{A}, v{A+1}")
            reduce32(e, [A], [A + 1])
            e(f"v_mul_f32 v{A}, s70, v{A}")
            e(f"v_add_u32 v{A+6}, {EPC:#x}, v{VE}")
            e(f"v_mov_b32 v2, {L_MISC}")
            e("v_mov_b32 v3, 0")
            e(f"ds_write_b32 v2, v{A+6}")
            for o in (4, 8, 12, 16, 20, 24, 28): e(f"ds_write_b32 v2, v3 offset:{o}")
        if n == 1:
            for q in range(8): e(f"v_pk_add_f32 {pk(U+2*q)}, {pk(U+2*q)}, {pk(A)} op_sel_hi:[1,0] neg_lo:[0,1] neg_hi:[0,1]")
            e(f"v_pk_mul_f32 {pk(A+2)}, {pk(U)}, {pk(U)}")
            e(f"v_pk_mul_f32 {pk(A+4)}, {pk(U+2)}, {pk(U+2)}")
            for q in range(2, 8): e(f"v_pk_fma_f32 {pk(A+2+2*(q&1))}, {pk(U+2*q)}, {pk(U+2*q)}, {pk(A+2+2*(q&1))}")
            e(f"v_pk_add_f32 {pk(A+4)}, {pk(A+2)}, {pk(A+4)}")
            e(f"v_add_f32 v{A+4}, v{A+4}, v{A+5}")
            reduce32(e, [A + 4], [A + 5])
            e(f"v_mov_b32 v{A+5}, 0x3727c5ac")
            e(f"v_fma_f32 v{A+4}, v{A+4}, s70, v{A+5}")
            e(f"v_rsq_f32 v{A+4}, v{A+4}")
            e(f"v_readfirstlane_b32 s61, v{A+6}")
            e(f"v_mov_b32 v{A+7}, v{A+6}")
            e(f"v_mul_f32 v{A+5}, v{A}, v{A+4}")
            e(f"v_sub_f32 v{A+5}, 0, v{A+5}")
            e("s_mov_b32 exec_lo, 1")
            e("s_mov_b32 exec_hi, 1")
            e(f"buffer_store_dwordx4 {vr(A+4,4)}, v{VE+1}, {SS}, s64 offen sc1")
            e("s_mov_b64 exec, -1")
        if n == 2:
            e(f"s_waitcnt vmcnt({1 + (2 if PFU == 2 else 0)})")
            for q in range(4):
                e(f"v_lshlrev_b32 v{C0+2*q}, 16, v{CL+q}")
                e(f"v_and_b32 v{C0+2*q+1}, s69, v{CL+q}")
            for t in range(1, 4):
                for q in range(4):
                    e(f"v_lshlrev_b32 v{C1+2*q}, 16, v{CL+4*t+q}")
                    e(f"v_and_b32 v{C1+2*q+1}, s69, v{CL+4*t+q}")
                for q in range(4): e(f"v_pk_add_f32 {pk(C0+2*q)}, {pk(C0+2*q)}, {pk(C1+2*q)}")
            e("s_nop 1")
            for q in range(8): e(f"v_add_f32_dpp v{C0+q}, v{C0+q}, v{C0+q} row_ror:8 row_mask:0xf bank_mask:0xf")
            e("s_mov_b32 s72, 0xff00ff00")
            e("s_mov_b32 s73, 0xff00ff00")
            for q in range(4): e(f"v_cndmask_b32 v{C0+q}, v{C0+q}, v{C0+4+q}, s[72:73]")
            for sw in ("v_permlane16_swap_b32", "v_permlane32_swap_b32"):
                for q in range(4): e(f"v_mov_b32 v{C1+q}, v{C0+q}")
                e("s_nop 0")
                for q in range(4): e(f"{sw} v{C0+q}, v{C1+q}")
                for q in range(4): e(f"v_add_f32 v{C0+q}, v{C0+q}, v{C1+q}")
            e("s_mov_b32 s71, 0xff")
            e(f"v_bfe_u32 v{C1+2}, v0, 3, 1")
            for q in range(4): e(f"v_bfi_b32 v{C0+q}, s71, v{A+6}, v{C0+q}")
            e(f"v_lshlrev_b32 v{C1+1}, 5, v5")
            e(f"v_lshl_add_u32 v{C1+1}, v{C1+2}, 4, v{C1+1}")
            e(f"s_mul_i32 s71, s20, {3328*4}")
            e("s_lshl_b32 s72, s66, 8")
            e("s_add_u32 s71, s71, s72")
            e(f"s_add_u32 s71, s71, {WS_CS:#x}")
            e("s_cmp_ge_u32 s66, 52")
            e("s_cbranch_scc1 L_P2S")
            e("s_mov_b64 exec, 0xffff")
            e(f"buffer_store_dwordx4 {vr(C0,4)}, v{C1+1}, {SS}, s71 offen sc1")
            e("s_mov_b64 exec, -1")
            e("L_P2S:")
    def kvsetup():
        e(f"""v_and_b32 v10, 3, v0
        v_min_u32 v10, 2, v10
        s_sub_u32 s76, s20, 2
        v_add_u32 v10, s76, v10
        v_max_i32 v10, 0, v10
        v_lshlrev_b32 v10, 11, v10
        v_bfe_u32 v11, v0, 2, 1
        v_lshl_add_u32 v10, v11, 10, v10
        s_lshr_b32 s76, s23, 1
        s_lshl_b32 s76, s76, 7
        s_add_u32 s76, s76, {WS_F1:#x}
        v_mov_b32 v11, s61
        v_lshlrev_b32 v1, 4, v0
        s_lshr_b32 s52, s19, 1
        s_lshl_b32 s53, s23, 1
        s_add_u32 s53, s53, s52
        s_lshl_b32 s53, s53, 6
        s_and_b32 s54, s19, 1
        s_mul_i32 s54, s54, 6
        s_lshl_b32 s55, s20, 2
        s_add_u32 s54, s54, s55
        s_mul_i32 s55, s19, 6144""")
    def kvdma():
        for t in range(6):
            e(f"s_add_u32 s68, s54, {t}")
            e("s_sub_i32 s68, s68, 8")
            e("s_max_i32 s68, s68, 0")
            e("s_add_u32 s68, s68, s53")
            e("s_lshl_b32 s68, s68, 10")
            e(f"s_add_u32 m0, s55, {L_K + t*1024}")
            e("s_add_u32 s69, s68, 0x200000")
            e(f"buffer_load_dwordx4 v1, {SS}, s68 offen sc1 lds")
            e(f"s_add_u32 m0, s55, {L_V + t*1024}")
            e("s_nop 0")
            e(f"buffer_load_dwordx4 v1, {SS}, s69 offen sc1 lds")
    G0 = 84
    def gather():
        e(f"s_mov_b32 s71, {WS_CS:#x}")
        for g in range(16):
            e(f"buffer_load_dwordx4 {vr(G0+4*g,4)}, v15, {SS}, s71 offen sc1")
            e(f"s_add_u32 s71, s71, {3328*4}")
        e("s_lshl_b32 s71, s20, 11")
        e(f"s_add_u32 s71, s71, {WS_RS:#x}")
        for h in range(2):
            e(f"buffer_load_dwordx4 {vr(G0+64+4*h,4)}, v14, {SS}, s71 offen offset:{h*1024} sc1")
    PK = opt.get("pk", [0, 0, 1]); GK = opt.get("gk", 4); CK = opt.get("ck", 6)
    for n_, kk_ in enumerate(PK):
        if kk_ < 0: piece(n_)
    for k in range(16):
        if k == 2: e("s_waitcnt lgkmcnt(0)")
        bstamp(k)
        e("s_barrier")
        for n_, kk_ in enumerate(PK):
            if kk_ == k: piece(n_)
        KVK = opt.get("kvk", 14)
        if k == 8:
            kvsetup()
            e("s_mov_b32 s77, 0")
        if k == KVK - 1: e(f"buffer_load_dword v4, v10, {SS}, s76 offen sc1")
        if k == KVK:
            sk = lab("KVLATE")
            e("s_waitcnt vmcnt(0)")
            e("v_cmp_ne_u32 vcc, v11, v4")
            e("s_nop 1")
            e("s_cmp_lg_u64 vcc, 0")
            e(f"s_cbranch_scc1 {sk}")
            kvdma()
            e("s_mov_b32 s77, 1")
            e(f"{sk}:")
        PW0 = opt.get("pfw", 0)
        if PW0 and PW0 <= k < 16:
            if k == PW0:
                srd(e, 44, 14, 1792 * 1024)
                srd(e, 48, 8, 512 * 1024)
                e("s_lshr_b32 s78, s2, 3")
                e("s_mul_i32 s79, s78, 57344")
                e("s_mul_i32 s3, s19, 14336")
                e("s_add_u32 s79, s79, s3")
                e("s_lshl_b32 s78, s78, 14")
                e("s_lshl_b32 s3, s19, 12")
                e("s_add_u32 s78, s78, s3")
            per = -(-18 // (opt.get("pfwe", 16) - PW0))
            for j in range(per * (k - PW0), min(18, per * (k - PW0 + 1))):
                if j < 14:
                    e(f"s_add_u32 s3, s79, {j*1024}")
                    e(f"buffer_load_dwordx4 v[120:123], v14, {S2}, s3 offen")
                else:
                    e(f"buffer_load_dwordx4 v[120:123], v14, {SO}, s78 offen offset:{(j-14)*1024}")
        if opt.get("pfl2", 0) and 8 <= k <= 10:
            if k == 8:
                srd(e, 44, 14, 1792 * 1024)
                srd(e, 48, 8, 512 * 1024)
                e("v_lshlrev_b32 v12, 7, v0")
                e("s_lshr_b32 s78, s2, 3")
            j = k - 8
            sk = lab("NOP2")
            if j < 2:
                e("s_mul_i32 s71, s78, 57344")
                e("s_lshl_b32 s72, s19, 13")
                e("s_add_u32 s71, s71, s72")
                if j == 1:
                    e("s_cmp_eq_u32 s19, 3")
                    e(f"s_cbranch_scc1 {sk}")
                    e("s_add_u32 s71, s71, 32768")
                e(f"buffer_load_dword v13, v12, {S2}, s71 offen")
            else:
                e("s_cmp_ge_u32 s19, 2")
                e(f"s_cbranch_scc1 {sk}")
                e("s_lshl_b32 s71, s78, 14")
                e("s_lshl_b32 s72, s19, 13")
                e("s_add_u32 s71, s71, s72")
                e(f"buffer_load_dword v13, v12, {SO}, s71 offen")
            e(f"{sk}:")
        if UST and k == 8:
            e(f"""s_lshl_b32 s3, s19, 12
            v_add_u32 v2, s3, v14
            v_add_u32 v3, {W1A[7]}, v2
            v_add_u32 v2, {W1A[6]}, v2""")
            for s_ in range(8): e(f"ds_read_b128 {vr(16+4*s_,4)}, v{2+(s_>>2)} offset:{(s_&3)*1024}")
            e(f"""s_lshl_b32 s64, s20, 2
            s_add_u32 s64, s64, s19
            s_lshl_b32 s65, s23, 8
            s_add_u32 s65, s65, s64
            s_lshl_b32 s65, s65, 10
            s_mul_i32 s66, s64, 112
            s_lshl_b32 s3, s23, 2
            s_add_u32 s66, s66, s3
            s_lshl_b32 s66, s66, 10
            s_add_u32 s66, s66, {WS_H:#x}
            s_waitcnt lgkmcnt(0)""")
        if UST and k >= 8:
            SP = opt.get("sper", 2)
            for s_ in range(SP * (k - 8), min(8, SP * (k - 7))):
                if s_ < 4: e(f"s_add_u32 s3, s65, {WS_KV + s_*0x10000:#x}")
                else: e(f"s_add_u32 s3, s66, {(s_-4)*1024}")
                e(f"buffer_store_dwordx4 {vr(16+4*s_,4)}, v14, {SS}, s3 offen sc1")
            if k == opt.get("ugk", 12): signal(4, 3, WS_F1, 2, 3, max(0, min(8, SP * (k - 7)) - 4))
            if k == opt.get("ugh", 15): signal(24, 3, WS_F1H, 2, 3)
        if k == opt.get("pf2k", 2) and opt.get("pf2", 1):
            sk = lab("NOPF")
            e("s_cmp_lg_u32 s19, 1")
            e(f"s_cbranch_scc1 {sk}")
            srd(e, 44, 14, 1792 * 1024)
            srd(e, 48, 8, 512 * 1024)
            e("v_lshlrev_b32 v2, 7, v0")
            e("s_mul_i32 s71, s2, 7168")
            e("s_mov_b32 exec_hi, 0xffffff")
            e(f"buffer_load_dword v160, v2, {S2}, s71 offen")
            e("s_lshl_b32 s71, s2, 11")
            e("s_mov_b64 exec, 0xffff")
            e(f"buffer_load_dword v161, v2, {SO}, s71 offen")
            e("s_mov_b64 exec, -1")
            e(f"{sk}:")
        if k in (GK, CK, CK + 1):
            sk = lab("NOPOST")
            e("s_cmp_lg_u32 s19, 0")
            e(f"s_cbranch_scc1 {sk}")
            if k == GK: gather()
            if k == CK:
                e("s_mov_b32 s73, 0x20000")
                e("L_CHK:")
                e("s_waitcnt vmcnt(0)")
                e(f"v_xor_b32 v2, s61, v{G0}")
                for i in range(G0 + 1, G0 + 64): e(f"v_bitop3_b32 v2, v2, v{i}, s61 bitop3:0xf6")
                e("v_and_b32 v2, 0xff, v2")
                for i in (66, 67, 70, 71): e(f"v_bitop3_b32 v2, v2, v{G0+i}, s61 bitop3:0xf6")
                e("v_cmp_ne_u32 vcc, 0, v2")
                e("s_sub_u32 s73, s73, 1")
                e("s_cmp_eq_u32 s73, 0")
                e("s_cbranch_scc1 L_GOT")
                e("s_cmp_eq_u64 vcc, 0")
                e("s_cbranch_scc1 L_GOT")
                gather()
                e("s_branch L_CHK")
                e("L_GOT:")
            if k == CK + 1:
                e("s_mov_b32 s71, 0xffffff00")
                for i in range(G0, G0 + 64): e(f"v_and_b32 v{i}, s71, v{i}")
                for g in range(1, 16):
                    for h in range(2): e(f"v_pk_add_f32 {pk(G0+2*h)}, {pk(G0+2*h)}, {pk(G0+4*g+2*h)}")
                e(f"v_add_u32 v2, {L_ST}, v14")
                e(f"ds_write_b128 v2, {vr(G0+64,4)}")
                e(f"ds_write_b128 v2, {vr(G0+68,4)} offset:1024")
                e(f"ds_write_b128 v2, {vr(G0,4)} offset:2048")
                e("s_waitcnt lgkmcnt(0)")
                ldsadd(20, 2, 3)
            e(f"{sk}:")
    bflush()
    stamp(3)
    e("s_barrier")
    stamp(4)
    e("s_cmp_lg_u32 s77, 0")
    e("s_cbranch_scc1 L_KVDONE")
    poll(10, "s76", 11, 4)
    kvdma()
    e("L_KVDONE:")
    e(f"v_add_u32 v2, {L_ONE}, v1")
    for q in range(4): e(f"v_mov_b32 v{8+q}, 0x3f803f80")
    e("ds_write_b128 v2, v[8:11]")
    e("s_add_u32 s96, s19, 4")
    e("s_mov_b32 s97, 0")
    e("s_waitcnt vmcnt(0) lgkmcnt(0)")
    ldsadd(16, 2, 3)
    stamp(5)

    e("L_ATT:")
    e.vm = []; e.lg = []
    Q = 8
    K = lambda u: 12 + 4 * u
    V = lambda u, g: 48 + ((u & 1) * 2 + g) * 4
    S = lambda b: 64 + 16 * b
    P, O = 112, 120
    VNEG, M0_, M1_, NM, MK = 136, 137, 138, 139, 140
    VA, VSTR = 148, 149
    for j in range(16):
        b0 = (j >> 2) * 8 + (j & 3)
        e(f"s_mov_b32 s{64+2*j}, {(0xffffffff << b0) & 0xffffffff:#x}")
        e(f"s_mov_b32 s{65+2*j}, {(0xffffffff << (b0+4)) & 0xffffffff:#x}")
    e(f"v_mov_b32 v{VNEG}, {NEG:#x}")
    e("v_mov_b32 v6, 0xffff")
    e("v_mov_b32 v7, 0xffff0000")
    for q in range(8):
        e(f"v_cndmask_b32 v{MK+q}, 0, v6, s[{64+4*q}:{65+4*q}]")
        e(f"v_cndmask_b32 v{S(2)}, 0, v7, s[{66+4*q}:{67+4*q}]")
        e(f"v_or_b32 v{MK+q}, v{MK+q}, v{S(2)}")
    e(f"""s_and_b32 s3, s96, 3
    s_lshl_b32 s26, s20, 2
    s_add_u32 s26, s26, s3
    s_add_u32 s25, s26, 1
    s_min_u32 s25, s25, 9
    s_lshr_b32 s62, s96, 2
    s_lshl_b32 s27, s23, 1
    s_add_u32 s27, s27, s62
    v_lshlrev_b32 v1, 4, v0
    s_lshl_b32 s63, s96, 10
    s_add_u32 s63, s63, {L_Q}
    v_add_u32 v3, s63, v1
    s_mul_i32 s62, s62, 12288
    s_lshl_b32 s3, s3, 10
    s_add_u32 s3, s3, s62
    s_add_u32 s62, s3, {L_K}
    v_add_u32 v4, s62, v1
    v_lshrrev_b32 v5, 5, v0
    v_lshlrev_b32 v5, 2, v5
    v_bfe_u32 v6, v0, 2, 2
    v_add_u32 v5, v5, v6
    v_lshlrev_b32 v5, 4, v5
    v_bfe_u32 v6, v0, 1, 1
    v_lshl_add_u32 v5, v6, 9, v5
    v_and_b32 v6, 1, v0
    v_lshl_add_u32 v5, v6, 3, v5
    s_add_u32 s3, s3, {L_V + 8192}
    v_add_u32 v5, s3, v5
    v_mov_b32 v6, {L_ONE}
    v_mov_b32 v7, 1024
    s_mov_b32 s98, 0xffff
    s_mov_b32 s99, 0xffff
    v_cndmask_b32 v5, v6, v5, s[98:99]
    v_cndmask_b32 v{VSTR}, 0, v7, s[98:99]
    v_lshlrev_b32 v7, 3, v{VSTR}
    v_sub_u32 v{VA+2}, v5, v7""")
    stamp(6)
    def owed():
        sk = lab("NOOWE")
        e("s_cmp_eq_u32 s97, 0")
        e(f"s_cbranch_scc1 {sk}")
        signal(12, 3, WS_F1B, 152, 153)
        e(f"{sk}:")
    if opt.get("owu", 0) == 0: owed()
    ldswait(16, 8, 2, 6)
    e(f"s_setprio {opt.get('aprio', 0)}")
    stamp(7)
    def fill(buf, val, diag):
        for j in range(16):
            a, b = (f"v{VNEG}", val) if diag else (val, f"v{VNEG}")
            e(f"v_cndmask_b32 v{S(buf)+j}, {a}, {b}, s[{64+2*j}:{65+2*j}]")
    def smfma(u, buf, cin):
        e.lwait(("K", u))
        e(f"v_mfma_f32_32x32x16_bf16 {vr(S(buf),16)}, {vr(K(u),4)}, {vr(Q,4)}, {cin}")
    def vread(u, par=None, va=None):
        if va is None:
            if u == 0: e(f"v_mov_b32 v{VA}, v5")
            else: e(f"v_sub_u32 v{VA}, v{VA}, v{VSTR}")
            va = VA
        for g in range(2):
            r = V(u if par is None else par, g)
            for h in range(2): e.lds(f"ds_read_b64_tr_b16 v[{r+2*h}:{r+2*h+1}], v{va} offset:{g*256 + h*128}", ("V", u))
    PD, PFR = S(2), S(2) + 8
    e.lds(f"ds_read_b128 {vr(Q,4)}, v3", "Q")
    for u in [0, 8, 1]: e.lds(f"ds_read_b128 {vr(K(u),4)}, v4 offset:{(8-u)*1024}", ("K", u))
    vread(0); vread(8, 1, VA + 2)
    smfma(0, 0, "0"); smfma(8, 2, "0"); smfma(1, 1, "0")
    for u in range(2, 8): e.lds(f"ds_read_b128 {vr(K(u),4)}, v4 offset:{(8-u)*1024}", ("K", u))
    e("s_nop 4")
    s0 = S(0)
    for j in range(16): e(f"v_cndmask_b32 v{s0+j}, v{S(2)+j}, v{s0+j}, s[{64+2*j}:{65+2*j}]")
    for j in range(16): e(f"v_exp_f32 v{s0+j}, v{s0+j}")
    for q in range(8): e(f"v_cvt_pk_bf16_f32 v{P+q}, v{s0+2*q}, v{s0+2*q+1}")
    for q in range(8): e(f"v_and_b32 v{PD+q}, v{MK+q}, v{P+q}")
    e.lwait(("V", 8))
    e(f"v_mfma_f32_32x32x16_bf16 {vr(O,16)}, {vr(V(0,0),4)}, {vr(PD,4)}, 0")
    for q in range(8): e(f"v_bfi_b32 v{PFR+q}, v{MK+q}, 0, v{P+q}")
    e(f"v_mfma_f32_32x32x16_bf16 {vr(O,16)}, {vr(V(0,1),4)}, {vr(PD+4,4)}, {vr(O,16)}")
    e("s_cmp_lt_u32 s25, 9")
    e("s_cbranch_scc1 L_NOFAR")
    e(f"v_mfma_f32_32x32x16_bf16 {vr(O,16)}, {vr(V(1,0),4)}, {vr(PFR,4)}, {vr(O,16)}")
    e(f"v_mfma_f32_32x32x16_bf16 {vr(O,16)}, {vr(V(1,1),4)}, {vr(PFR+4,4)}, {vr(O,16)}")
    e("L_NOFAR:")
    vread(1)
    e("s_cmp_eq_u32 s25, 1")
    e("s_cbranch_scc1 L_FCHK")
    def pv(u, g): e(f"v_mfma_f32_32x32x16_bf16 {vr(O,16)}, {vr(V(u,g),4)}, {vr(P+4*g,4)}, {vr(O,16)}")
    for u in range(1, 8):
        s_ = S(u % 2)
        if u + 1 <= 7: smfma(u + 1, (u + 1) % 2, "0")
        for j in range(2): e(f"v_exp_f32 v{s_+j}, v{s_+j}")
        if u > 1: pv(u - 1, 1)
        if u + 1 <= 7: vread(u + 1)
        for j in range(2, 8): e(f"v_exp_f32 v{s_+j}, v{s_+j}")
        for q in range(4): e(f"v_cvt_pk_bf16_f32 v{P+q}, v{s_+2*q}, v{s_+2*q+1}")
        for j in range(8, 10): e(f"v_exp_f32 v{s_+j}, v{s_+j}")
        e.lwait(("V", u))
        pv(u, 0)
        for j in range(10, 16): e(f"v_exp_f32 v{s_+j}, v{s_+j}")
        for q in range(4, 8): e(f"v_cvt_pk_bf16_f32 v{P+q}, v{s_+2*q}, v{s_+2*q+1}")
        if u < 7:
            e(f"s_cmp_eq_u32 s25, {u+1}")
            e(f"s_cbranch_scc1 L_FX{u&1}")
    e("L_FX1:")
    e("s_nop 1")
    pv(1, 1)
    e("s_branch L_FCHK")
    e("L_FX0:")
    e("s_nop 1")
    pv(0, 1)
    e("L_FCHK:")
    e("s_mov_b32 s52, 0x1f800000")
    e("s_mov_b32 s53, 0x5f800000")
    e("s_mov_b32 s3, 0x7f800000")
    e("s_waitcnt lgkmcnt(0)")
    e("s_nop 7")
    e(f"v_add_f32 v6, |v{O}|, |v{O+1}|")
    e(f"v_add_f32 v7, |v{O+2}|, |v{O+3}|")
    e(f"v_add_f32 v2, |v{O+4}|, |v{O+5}|")
    e(f"v_add_f32 v3, |v{O+6}|, |v{O+7}|")
    e(f"v_cmp_le_f32 s[62:63], s52, v{O+8}")
    e(f"v_cmp_ge_f32 s[98:99], s53, v{O+8}")
    e("v_add_f32 v6, v6, v7")
    e("v_add_f32 v2, v2, v3")
    e("v_add_f32 v6, v6, v2")
    e("s_and_b64 s[62:63], s[62:63], s[98:99]")
    e("v_cmp_gt_f32 vcc, s3, v6")
    e("s_nop 0")
    e("s_and_b64 s[62:63], s[62:63], vcc")
    e("s_cmp_eq_u64 s[62:63], -1")
    if opt.get("forceslow"): e("s_cmp_eq_u32 s62, 12345")
    e("s_cbranch_scc1 L_P2DONE")
    e.lg = []
    e(f"v_mov_b32 v{M0_}, v{VNEG}")
    e(f"v_mov_b32 v{M1_}, v{VNEG}")
    fill(0, "0", True)
    e("s_nop 1")
    smfma(0, 0, vr(S(0), 16))
    smfma(1, 1, "0")
    for u in range(9):
        if u + 2 <= 8:
            if u + 2 == 8:
                fill((u + 2) % 3, "0", False); e("s_nop 1")
                smfma(u + 2, (u + 2) % 3, vr(S((u + 2) % 3), 16))
            else:
                smfma(u + 2, (u + 2) % 3, "0")
        if u == 0: e("s_nop 9")
        for q in range(8):
            m = M0_ + (q & 1)
            e(f"v_max3_f32 v{m}, v{S(u%3)+2*q}, v{S(u%3)+2*q+1}, v{m}")
        if u < 8:
            e(f"s_cmp_eq_u32 s25, {u+1}")
            e("s_cbranch_scc1 L_P1DONE")
    e("L_P1DONE:")
    vread(0)
    e(f"v_max_f32 v{M0_}, v{M0_}, v{M1_}")
    e(f"v_mov_b32 v{M1_}, v{M0_}")
    e("s_nop 1")
    e(f"v_permlane32_swap_b32 v{M0_}, v{M1_}")
    e("s_nop 1")
    e(f"v_max_f32 v{M0_}, v{M0_}, v{M1_}")
    e(f"v_sub_f32 v{NM}, 0, v{M0_}")
    e("s_nop 3")
    CB = S(2)
    for j in range(16): e(f"v_mov_b32 v{CB+j}, v{NM}")
    fill(0, f"v{NM}", True)
    e("s_nop 1")
    smfma(0, 0, vr(S(0), 16))
    for u in range(9):
        s = S(u % 2)
        if u + 1 <= 8:
            nb_ = (u + 1) % 2
            if u + 1 == 8:
                fill(nb_, f"v{NM}", False); e("s_nop 1")
                smfma(u + 1, nb_, vr(S(nb_), 16))
            else:
                smfma(u + 1, nb_, vr(CB, 16))
            vread(u + 1)
        if u == 0: e("s_nop 6")
        for j in range(8): e(f"v_exp_f32 v{s+j}, v{s+j}")
        for q in range(4): e(f"v_cvt_pk_bf16_f32 v{P+q}, v{s+2*q}, v{s+2*q+1}")
        for j in range(8, 16): e(f"v_exp_f32 v{s+j}, v{s+j}")
        e.lwait(("V", u))
        e(f"v_mfma_f32_32x32x16_bf16 {vr(O,16)}, {vr(V(u,0),4)}, {vr(P,4)}, {'0' if u == 0 else vr(O,16)}")
        for q in range(4, 8): e(f"v_cvt_pk_bf16_f32 v{P+q}, v{s+2*q}, v{s+2*q+1}")
        e("s_nop 1")
        e(f"v_mfma_f32_32x32x16_bf16 {vr(O,16)}, {vr(V(u,1),4)}, {vr(P+4,4)}, {vr(O,16)}")
        if u < 8:
            e(f"s_cmp_eq_u32 s25, {u+1}")
            e("s_cbranch_scc1 L_P2X")
    e("L_P2X:")
    e("s_waitcnt lgkmcnt(0)")
    e("s_nop 12")
    e("L_P2DONE:")
    e("s_lshl_b32 s3, s26, 5")
    e("s_add_u32 s3, s3, s27")
    e("s_lshl_b32 s3, s3, 10")
    e(f"s_add_u32 s3, s3, {WS_O:#x}")
    e(f"v_rcp_f32 v7, v{O+8}")
    e("s_nop 0")
    for j in range(8): e(f"v_mul_f32 v{O+j}, v{O+j}, v7")
    for q in range(4): e(f"v_cvt_pk_bf16_f32 v{P+q}, v{O+2*q}, v{O+2*q+1}")
    e(f"buffer_store_dwordx4 {vr(P,4)}, v1, {SS}, s3 offen sc1")
    stamp(8)
    signal(8, 7, WS_F2)
    stamp(9)
    e("s_cmp_lg_u32 s2, 0")
    e("s_cbranch_scc1 L_FIN")
    e("s_cmp_lg_u32 s96, 1")
    e("s_cbranch_scc1 L_FIN")
    e("v_lshlrev_b32 v6, 7, v0")
    e("s_mov_b32 s63, 0x20000")
    e("L_BCHK:")
    for g in range(4):
        e(f"s_mov_b32 s62, {WS_F2 + g*8192:#x}")
        e(f"buffer_load_dword v{8+g}, v6, {SS}, s62 offen sc1")
    e("s_waitcnt vmcnt(0)")
    e("v_xor_b32 v7, s61, v8")
    for i in range(9, 12): e(f"v_bitop3_b32 v7, v7, v{i}, s61 bitop3:0xf6")
    e("v_cmp_ne_u32 vcc, 0, v7")
    e("s_sub_u32 s63, s63, 1")
    e("s_cmp_eq_u32 s63, 0")
    e("s_cbranch_scc1 L_FIN")
    e("s_cmp_lg_u64 vcc, 0")
    e("s_cbranch_scc1 L_BCHK")
    e("s_mov_b64 exec, 1")
    e("v_mov_b32 v6, 0")
    e("v_mov_b32 v7, s61")
    e(f"s_mov_b32 s62, {WS_EP:#x}")
    e(f"buffer_store_dword v7, v6, {SS}, s62 offen sc1")
    e("s_mov_b64 exec, -1")
    e("L_FIN:")
    e.vm = []; e.lg = []
    srd(e, 28, 10, 2048 * 1024)
    e(f"""v_lshrrev_b32 v7, 3, v0
    v_and_b32 v14, 7, v0
    v_lshlrev_b32 v8, 4, v14
    v_lshl_add_u32 v2, v7, 10, v8
    s_lshl_b32 s62, s58, 16
    s_lshl_b32 s3, s96, 13
    s_add_u32 s62, s62, s3
    s_lshl_b32 s3, s59, 7
    s_add_u32 s62, s62, s3""")
    e(f"buffer_load_dwordx4 v[8:11], v2, {SX}, s62 offen")
    e(f"""s_and_b32 s3, s96, 3
    s_lshl_b32 s3, s3, 10
    s_cmp_ge_u32 s96, 4
    s_mov_b32 s63, {BREG[0]}
    s_cselect_b32 s63, {BREG[2]}, s63
    s_mov_b32 s64, {BREG[1]}
    s_cselect_b32 s64, {BREG[3]}, s64
    s_add_u32 s63, s63, s3
    s_add_u32 s64, s64, s3
    v_and_b32 v12, 3, v0
    v_lshlrev_b32 v12, 1, v12
    v_xor_b32 v12, v12, v7
    v_bfe_u32 v13, v0, 2, 1
    v_xor_b32 v12, v12, v13
    v_lshlrev_b32 v12, 4, v12
    v_lshl_add_u32 v12, v7, 7, v12
    v_mov_b32 v15, s63
    v_mov_b32 v16, s64
    v_cmp_eq_u32 vcc, 1, v13
    s_nop 1
    v_cndmask_b32 v15, v15, v16, vcc
    v_add_u32 v24, v15, v12
    v_xor_b32 v25, 16, v24""")
    stamp(10)
    e("s_barrier")
    stamp(11)
    R = lambda src, h: 48 + src * 8 + h * 4
    for src in range(4):
        for h in range(2): e.lds(f"ds_read_b128 {vr(R(src,h),4)}, v{24+h} offset:{src*4096}", src)
    e("s_mov_b32 s3, 0xffff0000")
    e("s_waitcnt vmcnt(0)")
    for q in range(4):
        e(f"v_lshlrev_b32 v{32+2*q}, 16, v{8+q}")
        e(f"v_and_b32 v{33+2*q}, s3, v{8+q}")
    for src in range(4):
        e.lwait(src)
        for q in range(4): e(f"v_pk_add_f32 {pk(32+2*q)}, {pk(32+2*q)}, {pk(R(src,0)+2*q)}")
    for q in range(4): e(f"v_cvt_pk_bf16_f32 v{40+q}, v{32+2*q}, v{33+2*q}")
    e("buffer_store_dwordx4 v[40:43], v2, s[28:31], s62 offen " + opt.get("ost", ""))
    if ST:
        e("L_DUMP:")
        stamp(12)
        e("s_waitcnt vmcnt(0)")
        stamp(13); stamp(14, True)
        if opt.get("dbgst") is not None:
            e("s_load_dwordx2 s[4:5], s[0:1], 56")
            e(f"s_cmp_lg_u32 s2, {opt['dbgst']}")
            e("s_cbranch_scc1 L_END")
            e("s_cmp_lg_u32 s18, 4")
            e("s_cbranch_scc1 L_END")
            e(f"v_readlane_b32 s6, v{VST}, 1")
            e(f"v_readlane_b32 s7, v{VST}, 0")
            e("s_waitcnt lgkmcnt(0)")
            e(f"v_subrev_u32 v3, s6, v{VST}")
            e(f"v_subrev_u32 v4, s7, v{VST}")
            e("v_cmp_eq_u32 vcc, 14, v0")
            e("s_nop 1")
            e("v_cndmask_b32 v3, v3, v4, vcc")
            e("v_lshlrev_b32 v2, 2, v0")
            e("s_mov_b64 exec, 0xffff")
            e("global_store_dword v2, v3, s[4:5]")
            e("s_endpgm")
        e("s_mul_i32 s3, s2, 12")
        e("s_add_u32 s3, s3, s18")
        e("s_lshl_b32 s3, s3, 7")
        e("s_add_u32 s3, s3, 0x1000000")
        e("v_lshl_add_u32 v2, v0, 2, s3")
        e("s_mov_b64 exec, 0xffffffff")
        e(f"global_store_dword v2, v{VST}, s[16:17]")
    e("L_END:")
    e("s_endpgm")
    return name, e.text(), kd(name, 168), (256, 768, LDS)

def build(opt, path):
    n, t, k, (g, b, lds) = gen(opt)
    ref = open(f"cdna_kernels/{NAME}.s.ref").read().split("\n")
    head = [l for l in ref if l.startswith(";") and "@launch" not in l and "Override launch" not in l and "grid=ceil" not in l]
    s = "\n".join(head[:10]) + "\n"
    s += f"; @launch grid=({g},1,1) block=({b},1,1) lds={lds}\n"
    s += '.amdgcn_target "amdgcn-amd-amdhsa--gfx950"\n.text\n'
    s += f".globl {n}\n.p2align 8\n.type {n},@function\n" + t
    s += '.section .rodata,"a"\n.p2align 6\n' + k
    open(path, "w").write(s)

if __name__ == "__main__":
    import sys, json
    opt = json.loads(sys.argv[2]) if len(sys.argv) > 2 else {}
    build(opt, sys.argv[1])
```

```python
class Em:
    def __init__(self):
        self.lines = []
        self.vm = []
        self.lg = []
        self.stamps = None
        self.var = None; self.act = []
    def __call__(self, s):
        for l in s.split("\n"):
            l = l.strip()
            if l: self.lines.append(("" if l.endswith(":") else "  ") + l)
    def c(self, s):
        self.lines.append("  ; " + s)
    def vmem(self, s, tag):
        self(s); self.vm.append(tag)
        if self.var is not None:
            for k in self.act: self.var[k].append(tag)
    def var_start(self, keys):
        self.var = {k: list(self.vm) for k in keys}; self.act = list(keys)
    def var_wait(self, tags):
        n = None
        for k, l in self.var.items():
            idx = [i for i, t in enumerate(l) if t in tags]
            if idx: n = min(len(l) - idx[-1] - 1, 63 if n is None else n)
        if n is None: return
        self(f"s_waitcnt vmcnt({n})")
        for k in self.var: self.var[k] = self.var[k][len(self.var[k]) - n:] if n and len(self.var[k]) > n else (self.var[k] if n else [])
    def vwait(self, tag, extra=""):
        tags = tag if isinstance(tag, list) else [tag]
        if self.var is not None: return self.var_wait(tags)
        idx = [i for i, t in enumerate(self.vm) if t in tags]
        if not idx: return False
        last = idx[-1]
        n = len(self.vm) - last - 1
        assert n <= 63
        self(f"s_waitcnt vmcnt({n}) {extra}".strip())
        self.vm = self.vm[last + 1:]
        return True
    def vwait_all(self):
        self("s_waitcnt vmcnt(0)"); self.vm = []
    def lds(self, s, tag):
        self(s); self.lg.append(tag)
    def lwait(self, tag):
        tags = tag if isinstance(tag, list) else [tag]
        idx = [i for i, t in enumerate(self.lg) if t in tags]
        if not idx: return False
        last = idx[-1]
        n = len(self.lg) - last - 1
        n = min(n, 15)
        self(f"s_waitcnt lgkmcnt({n})")
        self.lg = self.lg[len(self.lg) - n:] if n else []
        return True
    def lwait_all(self):
        self("s_waitcnt lgkmcnt(0)"); self.lg = []
    def stamp(self, i):
        if self.stamps is None: return
        b = self.stamps + 2 * i
        self(f"s_memtime s[{b}:{b+1}]")
    def stamp_rt(self, i):
        if self.stamps is None: return
        b = self.stamps + 2 * i
        self(f"s_memrealtime s[{b}:{b+1}]")
    def stamp_dump(self, n, wsbase, wave_s, off, vt=2):
        if self.stamps is None: return
        self("s_waitcnt lgkmcnt(0)")
        self("s_mov_b64 exec, 1")
        self(f"s_lshl_b32 s3, s2, 3")
        self(f"s_add_u32 s3, s3, s{wave_s}")
        self(f"s_lshl_b32 s3, s3, 6")
        self(f"s_add_u32 s3, s3, {off:#x}")
        self(f"v_mov_b32 v{vt}, s3")
        for i in range(n):
            self(f"v_mov_b32 v{vt+1}, s{self.stamps+2*i}")
            self(f"global_store_dword v{vt}, v{vt+1}, s[{wsbase}:{wsbase+1}] offset:{4*i}")
            self("s_nop 1")
        self("s_waitcnt vmcnt(0)")
    def text(self):
        return "\n".join(self.lines) + "\n"

def vr(a, n=1):
    return f"v{a}" if n == 1 else f"v[{a}:{a+n-1}]"
def sr(a, n=1):
    return f"s{a}" if n == 1 else f"s[{a}:{a+n-1}]"

def srd(e, s, base, nbytes):
    e(f"s_mov_b32 s{s}, s{base}")
    e(f"s_and_b32 s{s+1}, s{base+1}, 0xffff")
    e(f"s_mov_b32 s{s+2}, {nbytes:#x}")
    e(f"s_mov_b32 s{s+3}, 0x20000")

def kd(name, vgpr, sgpr=102, accum=None):
    if accum is None: accum = min(256, (vgpr + 3) // 4 * 4)
    return f""".amdhsa_kernel {name}
  .amdhsa_next_free_vgpr {vgpr}
  .amdhsa_next_free_sgpr {sgpr}
  .amdhsa_accum_offset {accum}
  .amdhsa_group_segment_fixed_size 0
  .amdhsa_kernarg_size 72
  .amdhsa_user_sgpr_count 2
  .amdhsa_user_sgpr_kernarg_segment_ptr 1
  .amdhsa_system_sgpr_workgroup_id_x 1
.end_amdhsa_kernel
"""
```

```python
from emit import *
from alloc import plan3, plan4

NAME = "parallel_sum__sliding_block__dense_activation_relu__prompt"
WS_KV, WS_H, WS_O = 0, 0x600000, 0xD00000
WS_RS = 0xF00000
WS_CS = 0xF10000
WS_EP = 0xF80000
WS_F1, WS_F1B, WS_F2, WS_F1H = 0xF90000, 0xFA0000, 0xFB0000, 0xFC0000
WS_BYTES = 0x1000000
EPC = 0x9E3779B9
L_ST = 158720
L_MISC = L_ST + 3072
LDS = L_MISC + 64
ORD2 = list(range(6, 16)) + list(range(6))
NEG = 0xf149f2ca
pk = lambda a: f"v[{a}:{a+1}]"
SW, S1, SX, SS, S2, SO = "s[28:31]", "s[32:35]", "s[36:39]", "s[40:43]", "s[44:47]", "s[48:51]"
VST = 167

def reduce32(e, regs, tmp):
    for ctl in ("quad_perm:[1,0,3,2]", "quad_perm:[2,3,0,1]", "row_half_mirror", "row_mirror"):
        e("s_nop 1")
        for r in regs: e(f"v_add_f32_dpp v{r}, v{r}, v{r} {ctl} row_mask:0xf bank_mask:0xf")
    for r, t in zip(regs, tmp): e(f"v_mov_b32 v{t}, v{r}")
    e("s_nop 1")
    for r, t in zip(regs, tmp): e(f"v_permlane16_swap_b32 v{r}, v{t}")
    e("s_nop 1")
    for r, t in zip(regs, tmp): e(f"v_add_f32 v{r}, v{r}, v{t}")

def gen(opt):
    e = Em()
    name = NAME + "_kernel"
    ST = opt.get("stamps")
    NB = 6
    NT = opt.get("nt", "")
    PL = opt.get("pl", 2)
    XA, W1A, W2A, FIN = plan3(PL, opt.get("w2l", 2), NB, opt.get("ust", 0))
    if not opt.get("ust", 0): XA, W1A, W2A, FIN = plan4(PL, NB, opt.get("w2t", 5))
    BREG = [FIN[f"B{j}"][1] for j in range(NB)]
    BT = [max(FIN[f"B{j}"][0], min(16, opt.get("bt0", 11) + j)) for j in range(NB)]
    L_K, L_V, L_Q, L_ONE = FIN["K"], FIN["V"], FIN["Q"], FIN["ONES"]
    def stamp(i, rt=False):
        if not ST: return
        e(("s_memrealtime" if rt else "s_memtime") + " s[100:101]")
        e("s_waitcnt lgkmcnt(0)")
        e(f"v_writelane_b32 v{VST}, s100, {i}")
    BK = opt.get("bk", [])
    def bstamp(k):
        if ST and k in BK: e(f"s_memtime s[{80+2*BK.index(k)}:{81+2*BK.index(k)}]")
    def bflush():
        if ST and BK:
            e("s_waitcnt lgkmcnt(0)")
            for i in range(len(BK)): e(f"v_writelane_b32 v{VST}, s{80+2*i}, {16+i}")
    uid = [0]
    def lab(p):
        uid[0] += 1
        return f"{p}_{uid[0]}"
    def apoll_issue(voff, soff, vd, tag):
        e.vmem(f"buffer_load_dword v{vd}, v{voff}, {SS}, {soff} offen sc1", tag)
    def apoll_check(voff, soff, vtag, vd, tag):
        D = lab("AOK")
        e.vwait(tag)
        e(f"v_cmp_ne_u32 vcc, v{vtag}, v{vd}")
        e("s_nop 1")
        e("s_cmp_eq_u64 vcc, 0")
        e(f"s_cbranch_scc1 {D}")
        keep = list(e.vm); keepl = list(e.lg)
        poll(voff, soff, vtag, vd)
        e.vm = keep; e.lg = keepl
        e(f"{D}:")
    def poll(voff, soff, vtag, vd):
        L, D = lab("POLL"), lab("POLLED")
        e("s_mov_b32 s63, 0x40000")
        e(f"{L}:")
        e(f"buffer_load_dword v{vd}, v{voff}, {SS}, {soff} offen sc1")
        e("s_waitcnt vmcnt(0) lgkmcnt(0)")
        e(f"v_cmp_ne_u32 vcc, v{vtag}, v{vd}")
        e("s_sub_u32 s63, s63, 1")
        e("s_cmp_eq_u32 s63, 0")
        e(f"s_cbranch_scc1 {D}")
        e("s_cmp_lg_u64 vcc, 0")
        e(f"s_cbranch_scc1 {L}")
        e(f"{D}:")
        e.vm = []; e.lg = []
    def ldswait(off, val, va, vb):
        L, D = lab("LW"), lab("LWOK")
        e(f"v_mov_b32 v{va}, {L_MISC}")
        e("s_mov_b32 s63, 0x400000")
        e(f"{L}:")
        e(f"ds_read_b32 v{vb}, v{va} offset:{off}")
        e("s_sub_u32 s63, s63, 1")
        e("s_waitcnt lgkmcnt(0)")
        e(f"v_readfirstlane_b32 s62, v{vb}")
        e("s_cmp_eq_u32 s63, 0")
        e(f"s_cbranch_scc1 {D}")
        e(f"s_cmp_ge_u32 s62, {val}")
        e(f"s_cbranch_scc1 {D}")
        e("s_sleep 1")
        e(f"s_branch {L}")
        e(f"{D}:")
        e.lg = []
    def ldsadd(off, va, vb):
        e(f"v_mov_b32 v{va}, {L_MISC}")
        e(f"v_mov_b32 v{vb}, 1")
        e("s_mov_b64 exec, 1")
        e(f"ds_add_u32 v{va}, v{vb} offset:{off}")
        e("s_mov_b64 exec, -1")
    def signal(coff, last, base, va=2, vb=3, vm=0):
        N = lab("NOFLAG")
        e(f"s_waitcnt vmcnt({vm})")
        e(f"v_mov_b32 v{va}, {L_MISC}")
        e(f"v_mov_b32 v{vb}, 1")
        e("s_mov_b64 exec, 1")
        e(f"ds_add_rtn_u32 v{vb}, v{va}, v{vb} offset:{coff}")
        e(f"s_add_u32 s62, s24, {base:#x}")
        e("s_waitcnt lgkmcnt(0)")
        e(f"v_readfirstlane_b32 s63, v{vb}")
        e(f"s_cmp_lg_u32 s63, {last}")
        e(f"s_cbranch_scc1 {N}")
        e(f"v_mov_b32 v{va}, 0")
        e(f"v_mov_b32 v{vb}, s61")
        e(f"buffer_store_dword v{vb}, v{va}, {SS}, s62 offen sc1")
        e(f"{N}:")
        e("s_mov_b64 exec, -1")
        e.lg = []

    e(f"{name}:")
    e("s_cmp_ge_u32 s2, 256")
    e("s_cbranch_scc1 L_END")
    stamp(0, True); stamp(1)
    e("s_load_dwordx4 s[4:7], s[0:1], 0")
    e("s_load_dwordx4 s[12:15], s[0:1], 32")
    e("s_load_dwordx2 s[16:17], s[0:1], 64")
    e("s_load_dwordx2 s[8:9], s[0:1], 16")
    e("s_load_dwordx2 s[10:11], s[0:1], 48")
    e("v_lshrrev_b32 v1, 6, v0")
    e("v_and_b32 v0, 63, v0")
    e("v_readfirstlane_b32 s18, v1")
    e("""s_and_b32 s3, s2, 1
    s_lshl_b32 s20, s3, 3
    s_lshr_b32 s24, s2, 5
    s_add_u32 s20, s20, s24
    s_bfe_u32 s21, s2, 0x20001
    s_bfe_u32 s22, s2, 0x20003
    s_lshl_b32 s23, s21, 2
    s_add_u32 s23, s23, s22
    s_lshl_b32 s24, s20, 4
    s_add_u32 s24, s24, s23
    s_lshl_b32 s24, s24, 7
    s_and_b32 s19, s18, 3
    s_lshl_b32 s3, s3, 2
    s_add_u32 s58, s3, s21
    s_lshl_b32 s58, s58, 2
    s_lshr_b32 s59, s2, 6
    s_add_u32 s58, s58, s59
    s_bfe_u32 s59, s2, 0x30003""")
    if opt.get("own", 1):
        e("s_lshl_b32 s58, s20, 1")
        e("s_lshr_b32 s59, s23, 3")
        e("s_add_u32 s58, s58, s59")
        e("s_and_b32 s59, s23, 7")
    e("s_waitcnt lgkmcnt(0)")
    if opt.get("wsoff"):
        e(f"s_add_u32 s16, s16, {opt['wsoff'] << 20:#x}")
        e("s_addc_u32 s17, s17, 0")
    srd(e, 36, 4, 2048 * 1024)
    srd(e, 28, 6, 512 * 3072)
    srd(e, 32, 12, 512 * 3584)
    srd(e, 40, 16, WS_BYTES)
    e("s_cmp_ge_u32 s18, 8")
    e("s_cbranch_scc1 L_UTIL")
    e("s_cmp_ge_u32 s18, 4")
    e("s_cbranch_scc1 L_CONS")

    e(f"""v_and_b32 v5, 7, v0
    v_lshrrev_b32 v2, 3, v0
    v_lshrrev_b32 v3, 4, v0
    v_xor_b32 v3, v3, v5
    v_lshlrev_b32 v2, 10, v2
    v_lshl_add_u32 v12, v3, 4, v2
    v_xor_b32 v13, 64, v12
    s_lshl_b32 s65, s20, 17
    s_lshl_b32 s3, s18, 15
    s_add_u32 s65, s65, s3
    s_lshl_b32 s67, s18, 12""")
    def issueX(P):
        e(f"s_add_u32 m0, s67, {XA[P]}")
        e(f"s_add_u32 s74, s65, {P*128}")
        for a in range(4):
            e.vmem(f"buffer_load_dwordx4 v{12+(a&1)}, {SX}, s74 offen offset:{a*1024} {NT} lds", ("x", P))
            if a < 3: e(f"s_add_u32 s74, s74, {8192-1024}")
    issueX(0)
    e("""v_lshrrev_b32 v2, 5, v0
    v_bfe_u32 v3, v0, 3, 2
    v_lshl_add_u32 v3, v2, 3, v3
    v_bfe_u32 v4, v0, 4, 2
    v_lshlrev_b32 v4, 1, v4
    v_xor_b32 v4, v4, v5
    v_lshlrev_b32 v4, 4, v4
    v_mul_u32_u24 v10, 3072, v3
    v_add_u32 v10, v10, v4
    v_mul_u32_u24 v11, 3584, v3
    v_add_u32 v11, v11, v4
    s_lshr_b32 s52, s18, 1
    s_lshl_b32 s52, s52, 5
    s_and_b32 s62, s18, 1
    s_lshl_b32 s3, s62, 2
    s_add_u32 s52, s52, s3
    s_lshl_b32 s3, s23, 7
    s_mul_i32 s53, s52, 3072
    s_add_u32 s53, s53, s3
    s_add_u32 s53, s53, 1024
    s_mul_i32 s54, s52, 3584
    s_add_u32 s54, s54, s3""")
    def issueW(c):
        for ah in range(2):
            e(f"s_add_u32 m0, s67, {W1A[c] + ah*2048}")
            e(f"s_add_u32 s74, s53, {(64*c + 16*ah)*3072}")
            e.vmem(f"buffer_load_dwordx4 v10, {SW}, s74 offen {NT} lds", ("w", c))
            e(f"s_add_u32 m0, s67, {W1A[c] + ah*2048 + 1024}")
            e(f"s_add_u32 s74, s54, {(64*c + 16*ah)*3584}")
            e.vmem(f"buffer_load_dwordx4 v11, {S1}, s74 offen {NT} lds", ("w", c))
    def esetup():
        e("""v_lshrrev_b32 v2, 4, v0
        v_bfe_u32 v3, v0, 2, 2
        v_lshl_add_u32 v3, v2, 3, v3
        v_mul_u32_u24 v16, 3072, v3
        v_and_b32 v2, 1, v2
        v_lshlrev_b32 v2, 1, v2
        v_and_b32 v3, 3, v0
        v_xor_b32 v2, v2, v3
        v_lshl_add_u32 v16, v2, 4, v16
        s_and_b32 s62, s18, 1
        s_lshl_b32 s3, s62, 7""")
        for j in range(2):
            e(f"""v_add_u32 v2, s3, v0
            v_add_u32 v2, {64*j}, v2
            v_mul_u32_u24 v3, 10923, v2
            v_lshrrev_b32 v3, 16, v3
            v_mul_u32_u24 v4, 6, v3
            v_sub_u32 v4, v2, v4
            v_bfe_u32 v6, v3, 2, 2
            v_lshlrev_b32 v6, 3, v6
            v_lshrrev_b32 v7, 4, v3
            v_lshl_add_u32 v6, v7, 2, v6
            v_and_b32 v7, 3, v3
            v_add_u32 v6, v6, v7
            v_mul_u32_u24 v{17+j}, 3584, v6
            v_lshl_add_u32 v{17+j}, v4, 4, v{17+j}""")
        e("""s_cmp_eq_u32 s62, 1
        s_cselect_b32 s3, 0x80000000, 0
        v_or_b32 v18, s3, v18
        s_lshr_b32 s3, s18, 1
        s_mul_i32 s55, s52, 3072
        s_lshl_b32 s64, s23, 6
        s_add_u32 s55, s55, s64
        s_mul_i32 s56, s3, 114688
        s_mul_i32 s64, s23, 96
        s_add_u32 s56, s56, s64
        s_add_u32 s56, s56, 2048
        s_mul_i32 s57, s3, 5120
        s_lshl_b32 s64, s62, 10
        s_add_u32 s60, s57, s64
        s_lshl_b32 s64, s62, 11
        s_add_u32 s57, s57, s64
        s_add_u32 s64, s57, 1024
        s_cmp_eq_u32 s62, 1
        s_cselect_b32 s64, 8192, s64""")
    def issueW2(c):
        p = ORD2[2 * c]
        base = W2A[c][1]
        e(f"s_add_u32 m0, s60, {base}")
        e(f"s_add_u32 s74, s55, {p*32*3072}")
        e.vmem(f"buffer_load_dwordx4 v16, {SW}, s74 offen {NT} lds", ("w2", c))
        e(f"s_add_u32 m0, s57, {base + 2048}")
        e(f"s_add_u32 s74, s56, {p*32*3584}")
        e.vmem(f"buffer_load_dwordx4 v17, {S1}, s74 offen {NT} lds", ("w2", c))
        e(f"s_add_u32 m0, s64, {base + 2048}")
        e("s_nop 0")
        e.vmem(f"buffer_load_dwordx4 v18, {S1}, s74 offen {NT} lds", ("w2", c))
    NF2, NS, NA = 14, 18, 4
    A0 = 20
    AF = lambda sg, tb, kk: A0 + (sg % NA) * 16 + (tb * 2 + kk) * 4
    ACB = A0 + NA * 16
    GACC = lambda tb, nb: ACB + (tb * 2 + nb) * 16
    BFB = ACB + 64
    BF = lambda kk, nb: BFB + (kk * 2 + nb) * 4
    assert BFB + 16 <= VST
    def gsetup():
        srd(e, 44, 14, 1792 * 1024)
        srd(e, 48, 8, 512 * 1024)
        e(f"""v_lshrrev_b32 v8, 3, v0
        v_bfe_u32 v2, v0, 4, 1
        v_lshlrev_b32 v2, 2, v2
        v_xor_b32 v9, v5, v2
        v_lshlrev_b32 v9, 4, v9
        v_lshl_add_u32 v14, v8, 10, v9
        v_lshrrev_b32 v2, 2, v8
        v_lshlrev_b32 v2, 3, v2
        v_and_b32 v8, 3, v8
        v_add_u32 v8, v8, v2
        v_lshl_add_u32 v15, v8, 10, v9
        v_lshlrev_b32 v1, 4, v0
        s_lshl_b32 s3, s59, 7
        s_lshl_b32 s70, s18, 18
        s_add_u32 s70, s70, s3
        s_mul_i32 s78, s18, {12*16*1024}
        s_add_u32 s78, s78, s3
        s_lshl_b32 s71, s18, 17
        s_add_u32 s71, s71, s3
        s_mul_i32 s72, s58, {2*112*1024}
        s_add_u32 s72, s72, {WS_H:#x}
        s_mul_i32 s79, s18, {12*1024}
        s_add_u32 s79, s79, s72
        s_lshl_b32 s3, s18, 14
        s_add_u32 s72, s72, s3
        s_lshl_b32 s73, s58, 16
        s_lshl_b32 s3, s18, 13
        s_add_u32 s73, s73, s3
        s_add_u32 s73, s73, {WS_O:#x}
        s_and_b32 s3, s58, 3
        s_cmp_eq_u32 s3, s18
        s_cselect_b32 s26, 1, 0
        s_cmp_eq_u32 s59, s18
        s_cselect_b32 s27, 1, 0
        s_add_u32 s3, s18, 4
        s_cmp_eq_u32 s59, s3
        s_cselect_b32 s21, 1, 0
        s_lshl_b32 s69, s58, 1
        s_add_u32 s69, s69, s59
        s_and_b32 s69, s69, {opt.get("rotm", 7)}
        s_sub_u32 s25, s69, 6
        s_cmp_ge_u32 s69, 6
        s_cselect_b32 s25, s25, s69""")
    KS = [(2 * i, False) for i in range(8)] + [(64 + 2 * i, True) for i in range(6)]
    ROT = opt.get("rot", 0)
    def ridx(sg):
        if sg < 8:
            e(f"s_add_u32 s68, s69, {sg}")
            e("s_and_b32 s68, s68, 7")
        elif sg < NF2:
            e(f"s_add_u32 s68, s25, {sg-8}")
            e("s_sub_u32 s3, s68, 6")
            e("s_cmp_ge_u32 s68, 6")
            e("s_cselect_b32 s68, s3, s68")
        else:
            e(f"s_add_u32 s68, s69, {sg-NF2}")
            e("s_and_b32 s68, s68, 3")
    def issueB(sg):
        if ROT:
            ridx(sg)
            e("s_lshl_b32 s68, s68, 15")
            e(f"s_add_u32 s68, s68, {'s70' if sg < 8 else 's78' if sg < NF2 else 's71'}")
        for a in range(4):
            e(f"s_add_u32 m0, s67, {BREG[sg % NB] + a*1024}")
            if sg < NF2:
                k16, ex = KS[sg]
                if ROT: e(f"s_add_u32 s74, s68, {((1024 if ex else 0) + 8*a)*1024}")
                else: e(f"s_add_u32 s74, {'s78' if ex else 's70'}, {(16*k16 + 8*a)*1024}")
                e.vmem(f"buffer_load_dwordx4 v14, {S2}, s74 offen lds", ("B", sg))
            else:
                if ROT: e(f"s_add_u32 s74, s68, {(16*(a>>1) + 4*(a&1))*1024}")
                else: e(f"s_add_u32 s74, s71, {(32*(sg-NF2) + 16*(a>>1) + 4*(a&1))*1024}")
                e.vmem(f"buffer_load_dwordx4 v15, {SO}, s74 offen lds", ("B", sg))
    def issueA(sg, tbs=(0, 1)):
        for tb in tbs:
            if sg < NF2:
                k16, ex = KS[sg]
                e(f"s_add_u32 s74, {'s79' if ex else 's72'}, {(tb*112 + k16)*1024}")
            else: e(f"s_add_u32 s74, s73, {(tb*32 + 2*(sg-NF2))*1024}")
            for kk in range(2):
                e.vmem(f"buffer_load_dwordx4 {vr(AF(sg,tb,kk),4)}, v1, {SS}, s74 offen offset:{kk*1024} sc1", ("A", sg))
    LEAD = opt.get("lead", 0)
    def either(sreg, lead_fn, foll_fn):
        L1, L2 = lab("LD"), lab("LE")
        e(f"s_cmp_lg_u32 {sreg}, 0")
        e(f"s_cbranch_scc1 {L1}")
        allk = list(e.act)
        e.act = [k for k in allk if sreg not in k]
        if foll_fn: foll_fn()
        e(f"s_branch {L2}")
        e(f"{L1}:")
        keep = list(e.vm)
        e.act = [k for k in allk if sreg in k]
        if lead_fn: lead_fn()
        e.vm = keep
        e.act = allk
        e(f"{L2}:")
    def gsetup2():
        e(f"""v_lshrrev_b32 v6, 5, v0
        v_lshlrev_b32 v6, 3, v6
        v_bfe_u32 v7, v0, 2, 2
        v_add_u32 v6, v6, v7
        v_lshlrev_b32 v6, 7, v6
        v_lshrrev_b32 v7, 1, v7
        v_lshl_add_u32 v6, v7, 6, v6
        v_bfe_u32 v7, v0, 4, 1
        v_lshl_add_u32 v6, v7, 5, v6
        v_and_b32 v7, 3, v0
        v_lshl_add_u32 v6, v7, 3, v6
        v_add_u32 v6, s67, v6
        v_xor_b32 v7, 64, v6
        v_add_u32 v8, 49152, v6
        v_add_u32 v9, 49152, v7
        v_mov_b32 v2, {L_MISC}
        ds_read_b32 v2, v2
        v_and_b32 v3, 3, v0
        v_lshlrev_b32 v3, 7, v3
        s_lshr_b32 s76, s58, 1
        s_lshl_b32 s76, s76, 11
        s_lshl_b32 s3, s18, 9
        s_add_u32 s76, s76, s3
        s_add_u32 s66, s76, {WS_F1H:#x}""")
        e("s_mov_b32 s75, 0")
        e("s_waitcnt lgkmcnt(0)")
    D = opt.get("gd", 3); DB = NB - 1; PS = opt.get("ps", 11); PB = 8 - D - 1
    GE = opt.get("ge", 15)
    def firstA(lo=0, hi=None):
        hi = D if hi is None else hi
        for sg in range(lo, hi):
            if LEAD & 2 and sg == hi - 1:
                for tb in range(2): either(("s27", "s21")[tb], lambda: issueA(sg, (tb,)), None)
            else: issueA(sg)
    issueW(0)
    for c in range(1, PL): issueX(c); issueW(c)
    for k in range(17):
        e.vwait([("w", k), ("x", k)] if k < 8 else [("w2", k - 8)])
        if k == 0: stamp(2)
        if k == 8: stamp(3)
        if k == 16: stamp(4)
        bstamp(k)
        if k == 16: bflush()
        e("s_barrier")
        if k + PL <= 7: issueX(k + PL); issueW(k + PL)
        if k == 1: gsetup()
        if k == 2: esetup()
        for c in range(8):
            if W2A[c][0] == k: issueW2(c)
        if k == 7 and any(W2A[c][0] == 7.5 for c in range(8)):
            ldswait(28, 4, 2, 3)
            for c in range(8):
                if W2A[c][0] == 7.5: issueW2(c)
        if k == 9: gsetup2()
        if k == GE - 2: apoll_issue(3, "s66", 4, "f1h")
        if k == GE:
            sk = lab("GLATE")
            e.vwait("f1h")
            e("v_cmp_ne_u32 vcc, v2, v4")
            e("s_nop 1")
            e("s_cmp_lg_u64 vcc, 0")
            e(f"s_cbranch_scc1 {sk}")
            keep = list(e.vm)
            firstA()
            e.vm = keep
            e("s_mov_b32 s75, 1")
            e(f"{sk}:")
        if k < 16:
            for j in range(NB):
                if BT[j] == k: issueB(j)
    if opt.get("gprio", 0): e(f"s_setprio {opt.get('gprio')}")
    for j in range(NB):
        if BT[j] >= 16: issueB(j)
    e("s_cmp_lg_u32 s75, 0")
    e("s_cbranch_scc1 L_GGO")
    keep = list(e.vm)
    poll(3, "s66", 2, 4)
    e.vm = keep
    if LEAD:
        assert GE > 16
        e.vm = []
        e.var_start([(b_, a_) for b_ in ("", "s26") for a_ in ("", "s27", "s21")])
    firstA()
    e("L_GGO:")
    stamp(5)
    def step(sg):
        if sg == opt.get("ghold", -1): ldswait(16, 8, 12, 13)
        e.vwait([("B", sg), ("A", sg)])
        reg = BREG[sg % NB]
        hi = reg // 49152
        off0 = reg - 49152 * hi
        for kk in range(2):
            for nb in range(2):
                for q in range(2):
                    e.lds(f"ds_read_b64_tr_b16 v[{BF(kk,nb)+2*q}:{BF(kk,nb)+2*q+1}], v{6+2*hi+nb} offset:{off0 + kk*2048 + q*512}", (kk, nb))
        if LEAD & 1:
            FB = opt.get("fb", 3)
            okb = lambda j: NB <= j < NS
            if okb(sg + DB) or okb(sg + FB):
                either("s26", (lambda: issueB(sg + DB)) if okb(sg + DB) else None, (lambda: issueB(sg + FB)) if okb(sg + FB) else None)
        elif NB <= sg + DB < NS: issueB(sg + DB)
        oka = lambda j: j < NF2 or (j < NS and sg > PS and j >= PS + 1 + D)
        if LEAD & 2:
            okf = lambda j: j < NF2 or (j < NS and sg > PS and j >= PS + D)
            for tb in range(2):
                if oka(sg + D) or okf(sg + D - 1):
                    either(("s27", "s21")[tb], (lambda: issueA(sg + D, (tb,))) if oka(sg + D) else None, (lambda: issueA(sg + D - 1, (tb,))) if okf(sg + D - 1) else None)
        elif oka(sg + D): issueA(sg + D)
        for kk in range(2):
            for nb in range(2):
                e.lwait((kk, nb))
                for tb in range(2):
                    acc = vr(GACC(tb, nb), 16)
                    cin = "0" if (sg == 0 and kk == 0) else acc
                    if opt.get("nogm") and (kk or nb): continue
                    e(f"v_mfma_f32_32x32x16_bf16 {acc}, {vr(BF(kk,nb),4)}, {vr(AF(sg,tb,kk),4)}, {cin}")
    for sg in range(PS + 1):
        if sg == PB - 1 or sg == PS - 1:
            e(f"s_add_u32 s66, s76, {(WS_F1B if sg == PB - 1 else WS_F2):#x}")
            apoll_issue(3, "s66", 4, "fl")
        step(sg)
        if sg == PB:
            stamp(6)
            apoll_check(3, "s66", 2, 4, "fl")
    stamp(7)
    apoll_check(3, "s66", 2, 4, "fl")
    stamp(8)
    firstA(NF2, min(NS, PS + 1 + D))
    for sg in range(PS + 1, NS): step(sg)
    e.var = None
    stamp(9)
    e("""v_and_b32 v12, 31, v0
    v_lshlrev_b32 v12, 7, v12
    v_lshrrev_b32 v13, 5, v0
    v_xor_b32 v13, v13, v5
    v_lshl_add_u32 v12, v13, 4, v12
    v_add_u32 v12, s67, v12""")
    for nb in range(2):
        for a in range(4): e(f"v_xor_b32 v{20+nb*4+a}, {((2*a) ^ nb)*16}, v12")
    for tb in range(2):
        for nb in range(2):
            for a in range(4): e(f"v_add_u32 v{28+(tb*2+nb)*4+a}, {BREG[tb*2+nb]}, v{20+nb*4+a}")
    for tb in range(2):
        for nb in range(2):
            for a in range(4): e(f"ds_write_b128 v{28+(tb*2+nb)*4+a}, {vr(GACC(tb,nb)+4*a,4)}")
    e("s_waitcnt lgkmcnt(0)")
    stamp(10)
    e("s_barrier")
    if ST: e("s_branch L_DUMP")
    e("s_endpgm")

    e("L_CONS:")
    e.vm = []; e.lg = []
    LA = opt.get("la", 5); NFB = 6
    F = lambda f: 8 + (f % NFB) * 4
    XF = lambda n, r: 32 + ((n & 1) * 2 + r) * 4
    XK = lambda p, r: 48 + (p * 2 + r) * 4
    ACC = lambda s, r: 96 + (s * 2 + r) * 4
    AW = [1, 2, 3, 4]; AX = [7, 5]
    e(f"""v_lshrrev_b32 v8, 2, v0
    v_lshrrev_b32 v9, 3, v8
    v_lshlrev_b32 v9, 11, v9
    v_and_b32 v10, 7, v8
    v_lshl_add_u32 v9, v10, 7, v9
    v_and_b32 v10, 3, v0
    v_lshlrev_b32 v10, 3, v10
    v_add_u32 v9, v9, v10
    v_bfe_u32 v11, v0, 3, 2
    v_lshl_add_u32 v1, v11, 5, v9
    v_add_u32 v1, {W1A[0]}, v1
    v_xor_b32 v2, 32, v1
    v_xor_b32 v3, 64, v1
    v_xor_b32 v4, 96, v1
    v_and_b32 v8, 15, v0
    v_lshrrev_b32 v9, 4, v0
    v_lshrrev_b32 v10, 1, v8
    v_xor_b32 v9, v9, v10
    v_lshlrev_b32 v8, 7, v8
    v_lshl_add_u32 v7, v9, 4, v8
    s_lshl_b32 s3, s19, 12
    s_add_u32 s3, s3, {XA[0]}
    v_add_u32 v7, s3, v7
    v_xor_b32 v5, 64, v7""")
    if opt.get("cprio", 0): e(f"s_setprio {opt.get('cprio')}")
    cur = {"w": W1A[0], "x": XA[0]}
    UST = opt.get("ust", 0)
    DEF = []; NST = [0]; TIM = 0 if UST else opt.get("tim", 2)
    def move(kind, regs, addr):
        d = addr - cur[kind]
        if d:
            for a in regs: e(f"v_add_u32 v{a}, {d & 0xffffffff:#x}, v{a}")
        cur[kind] = addr
    def gemm(ps):
        NSB = 8 if ps == 1 else 5
        NF = 16 * NSB
        kst = (lambda n: n) if ps == 1 else (lambda n: ORD2[n])
        xreg = lambda n, r: XK(kst(n), r) if kst(n) < 6 else XF(n, r)
        def rd(f):
            n, s = divmod(f, NSB)
            for q in range(2):
                if ps == 1:  a, off = AW[s & 3], (n & 1) * 8192 + q * 4096 + (s >> 2) * 1024
                elif s < 2:  a, off = AW[s], (n & 1) * 5120 + q * 1024
                else:        a, off = AW[2], (n & 1) * 5120 + 2048 + q * 1536 + (s - 2) * 32
                yield f"ds_read_b64_tr_b16 v[{F(f)+2*q}:{F(f)+2*q+1}], v{a} offset:{off}"
        def kswitch(n):
            if n % 2 == 0:
                if ps == 1: move("w", AW, W1A[n // 2])
                else:       move("w", AW[:3], W2A[n // 2][1])
                bstamp(8 * (ps - 1) + n // 2)
                e("s_barrier")
                if ps == 2 and not UST:
                    for _ in range(opt.get("tper", 2)):
                        if DEF:
                            for x in DEF.pop(0):
                                if opt.get("nost1") and "buffer_store" in x: continue
                                e(x.replace(" sc1", "") if opt.get("plain1") else x)
                            NST[0] += 1
                    if n // 2 == opt.get("sgk", 3):
                        bstamp(20); signal(4, 3, WS_F1, 164, 165, max(0, NST[0] - 4)); bstamp(21)
                    if n // 2 == opt.get("sgh", 5):
                        assert not DEF
                        bstamp(22); signal(24, 3, WS_F1H, 164, 165); bstamp(23)
            if NSB > LA or n < 2: xread(n)
        def xread(n):
            p = kst(n)
            if ps == 1 or p >= 6:
                move("x", AX, XA[p >> 1])
                for r in range(2): e.lds(f"ds_read_b128 {vr(xreg(n,r),4)}, v{AX[p&1]} offset:{r*2048}", ("x", n))
        kswitch(0)
        if ps == 1: stamp(2)
        for f in range(LA):
            if f and f % NSB == 0: kswitch(f // NSB)
            for r_ in rd(f): e.lds(r_, f)
        for f in range(NF):
            n, s = divmod(f, NSB)
            nxt = f + LA
            if nxt < NF and nxt % NSB == 0: kswitch(nxt // NSB)
            if NSB <= LA and s == 0 and 1 <= n < 15: xread(n + 1)
            e.lwait([f, ("x", n)])
            if ps == 2 and f == NF - 1: e("s_barrier")
            rds = list(rd(nxt)) if nxt < NF else [None, None]
            for r in range(2):
                acc = vr(ACC(s, r), 4)
                e(f"v_mfma_f32_16x16x32_bf16 {acc}, {vr(F(f),4)}, {vr(xreg(n,r),4)}, {'0' if n == 0 else acc}")
                if rds[r]: e.lds(rds[r], nxt)
    RS = lambda r: 160 + 2 * r
    RQ = lambda r: 32 + 2 * r
    TT = 8
    CSR = [24, 28]
    def epilogue(ps):
        order = ([5, 6, 7, 2, 3, 4, 0, 1] if TIM else list(range(8))) if ps == 1 else [0, 1, 2, 3, 4]
        dd = {}
        loc = lambda s: s if ps == 1 else 8 + s
        if ps == 1:
            ldsadd(28, 8, 9)
            ldswait(20, 1, 8, 9)
        e(f"""v_and_b32 v16, 15, v0
        v_lshrrev_b32 v17, 4, v0
        s_lshl_b32 s3, s19, 9
        s_add_u32 s3, s3, {L_ST}
        v_lshl_add_u32 v8, v16, 4, s3
        v_lshlrev_b32 v164, 4, v17
        v_add_u32 v164, {L_ST+2048}, v164
        v_mov_b32 v10, {L_MISC}""")
        if ps == 1:
            for r in range(2): e.lds(f"ds_read_b64 {pk(RS(r))}, v8 offset:{256*r}", "st")
            e.lds("ds_read_b32 v10, v10", "st")
        def csread(n):
            if n < len(order): e.lds(f"ds_read_b128 {vr(CSR[n%2],4)}, v164 offset:{64*loc(order[n])}", ("cs", n))
        csread(0)
        e("v_lshlrev_b32 v166, 4, v0")
        if ps == 1:
            e(f"""s_lshl_b32 s64, s20, 2
            s_add_u32 s64, s64, s19
            s_lshl_b32 s65, s23, 8
            s_add_u32 s65, s65, s64
            s_lshl_b32 s65, s65, 10
            s_mul_i32 s66, s64, 112
            s_mul_i32 s67, s23, 3
            s_add_u32 s67, s67, s66
            s_add_u32 s67, s67, 64
            s_lshl_b32 s67, s67, 10
            s_lshl_b32 s3, s23, 2
            s_add_u32 s66, s66, s3
            s_lshl_b32 s66, s66, 10
            s_add_u32 s66, s66, {WS_H:#x}
            s_add_u32 s67, s67, {WS_H:#x}""")
            if UST:
                e("s_lshl_b32 s3, s19, 12")
                e("v_add_u32 v36, s3, v166")
                e(f"v_add_u32 v37, {W1A[7]}, v36")
                e(f"v_add_u32 v36, {W1A[6]}, v36")
            e.lwait("st")
            e("v_readfirstlane_b32 s61, v10")
        else:
            e("s_mov_b32 s3, 0x3eb8aa3b")
            for q in range(4): e(f"v_mul_f32 v{32+q}, s3, v{160+q}")
            e("s_lshl_b32 s3, s19, 10")
            e(f"s_add_u32 s3, s3, {L_Q}")
            e("v_add_u32 v36, s3, v166")
        for n, s in enumerate(order):
            T = 16 + 4 * (n % 2)
            stg = ps == 1 and UST
            dfr = ps == 1 and TIM and s >= 2 and not UST
            if dfr: T = ACC(s, 0) if s >= 5 else ACC(s + 3, 1)
            isQ = ps == 2 and s < 2
            isH = (ps == 1 and s >= 4) or (ps == 2 and s >= 2)
            if stg and s == 4: ldswait(28, 4, 38, 39)
            e.lwait(("cs", n))
            c = CSR[n % 2]
            csread(n + 1)
            for r in range(2):
                sp = RQ(r) if isQ else RS(r)
                for h in range(2):
                    e(f"v_pk_mul_f32 {pk(TT+4*r+2*h)}, {pk(c+2*h)}, {pk(sp)} op_sel:[0,1] op_sel_hi:[1,1]")
            for r in range(2):
                sp = RQ(r) if isQ else RS(r)
                for h in range(2):
                    t = TT + 4 * r + 2 * h
                    e(f"v_pk_fma_f32 {pk(t)}, {pk(ACC(s,r)+2*h)}, {pk(sp)}, {pk(t)} op_sel_hi:[1,0,1]")
            for r in range(2):
                for h in range(2):
                    t = TT + 4 * r + 2 * h
                    e(f"v_cvt_pk_bf16_f32 v{T+2*r+h}, v{t}, v{t+1}")
            if isH:
                for q in range(4): e(f"v_pk_max_i16 v{T+q}, v{T+q}, 0")
            if isQ or stg: e("s_nop 0")
            elif ps == 2: e(f"s_add_u32 s3, s67, {(s-2)*1024}")
            elif s < 4: e(f"s_add_u32 s3, s65, {WS_KV + s*0x10000:#x}")
            else: e(f"s_add_u32 s3, s66, {(s-4)*1024}")
            e("s_nop 0")
            e(f"v_permlane16_swap_b32 v{T}, v{T+2}")
            e(f"v_permlane16_swap_b32 v{T+1}, v{T+3}")
            if isQ:
                e.lds(f"ds_write_b128 v36, {vr(T,4)} offset:{s*4096}", "qw")
                if s == 1:
                    e.lwait_all()
                    ldsadd(16, 37, 38)
            elif stg: e.lds(f"ds_write_b128 v{36 + (s >> 2)}, {vr(T,4)} offset:{(s&3)*1024}", "qw")
            elif dfr: dd[s] = [e.lines[-4].strip(), f"buffer_store_dwordx4 {vr(T,4)}, v166, {SS}, s3 offen sc1"]
            else:
                e(f"buffer_store_dwordx4 {vr(T,4)}, v166, {SS}, s3 offen sc1")
                NST[0] += 1
        for s in sorted(dd): DEF.append(dd[s])
    gemm(1)
    stamp(3)
    epilogue(1)
    e(f"""v_lshrrev_b32 v8, 2, v0
    v_and_b32 v10, 3, v0
    v_lshlrev_b32 v10, 3, v10
    v_lshl_add_u32 v1, v8, 6, v10
    v_bfe_u32 v11, v0, 4, 1
    v_lshl_add_u32 v1, v11, 5, v1
    v_add_u32 v1, {W2A[0][1]}, v1
    v_xor_b32 v2, 32, v1
    v_mul_u32_u24 v3, 96, v8
    v_add_u32 v3, v3, v10
    v_add_u32 v3, {W2A[0][1]}, v3""")
    cur["w"] = W2A[0][1]
    e.lwait_all()
    stamp(4)
    gemm(2)
    bflush()
    stamp(5)
    epilogue(2)
    e("s_mov_b32 s96, s19")
    e("s_mov_b32 s97, 1")
    e("s_branch L_ATT")

    e("L_UTIL:")
    e.vm = []; e.lg = []
    if opt.get("uprio0", 3): e(f"s_setprio {opt.get('uprio0', 3)}")
    L0, U, A, CL, C0, C1, VE = 16, 24, 40, 48, 64, 72, 80
    e("v_and_b32 v5, 7, v0")
    if opt.get("pfc", 1):
        sk = lab("NOPC")
        e("s_cmp_lg_u32 s19, 3")
        e(f"s_cbranch_scc1 {sk}")
        e("s_getpc_b64 s[64:65]")
        e("L_PCREF:")
        e(f"s_sub_u32 s64, s64, L_PCREF-{name}")
        e("s_subb_u32 s65, s65, 0")
        e("s_lshr_b32 s66, s2, 3")
        e("s_mul_i32 s66, s66, (L_END-%s+4095)/4096*128" % name)
        e("v_lshlrev_b32 v2, 7, v0")
        e("v_add_u32 v2, s66, v2")
        e("v_mov_b32 v3, s65")
        e("v_add_co_u32 v2, vcc, s64, v2")
        e("s_nop 1")
        e("v_addc_co_u32 v3, vcc, 0, v3, vcc")
        e("v_cmp_gt_u32 vcc, (L_END-%s+4095)/4096, v0" % name)
        e("s_nop 1")
        e("s_and_saveexec_b64 s[66:67], vcc")
        e("global_load_dword v163, v[2:3], off")
        e("s_mov_b64 exec, -1")
        e(f"{sk}:")
    PFU = opt.get("pfu", 0)
    def pf_x():
        e("""v_and_b32 v2, 31, v0
        v_lshlrev_b32 v2, 10, v2
        v_lshrrev_b32 v3, 5, v0
        v_lshl_add_u32 v2, v3, 7, v2
        s_lshl_b32 s64, s20, 17
        s_lshl_b32 s65, s22, 15
        s_add_u32 s64, s64, s65
        s_lshl_b32 s65, s19, 8
        s_add_u32 s64, s64, s65""")
        e(f"buffer_load_dword v160, v2, {SX}, s64 offen")
    def pf_w():
        L1, L2, L3, LD = lab("PW"), lab("PW"), lab("PW"), lab("PW")
        e("""s_and_b32 s64, s20, 7
        v_lshlrev_b32 v2, 3, v0
        v_add_u32 v2, s64, v2
        v_mul_u32_u24 v3, 3584, v2
        v_mul_u32_u24 v2, 3072, v2
        s_lshl_b32 s64, s23, 7""")
        e("s_cmp_eq_u32 s19, 1"); e(f"s_cbranch_scc1 {L1}")
        e("s_cmp_eq_u32 s19, 3"); e(f"s_cbranch_scc1 {L3}")
        e("s_add_u32 s65, s64, 1024")
        e("s_lshr_b32 s64, s64, 1")
        e("s_cmp_eq_u32 s19, 0")
        e("s_cselect_b32 s64, s65, s64")
        e(f"buffer_load_dword v161, v2, {SW}, s64 offen")
        e(f"s_branch {LD}")
        e(f"{L3}:")
        e("s_mul_i32 s64, s23, 96")
        e("s_add_u32 s64, s64, 2048")
        e(f"buffer_load_dword v162, v3, {S1}, s64 offen offset:92")
        e(f"{L1}:")
        e(f"buffer_load_dword v161, v3, {S1}, s64 offen")
        e(f"{LD}:")
    if PFU == 1: pf_x(); pf_w()
    e(f"v_mov_b32 v{VE}, 0")
    e(f"s_mov_b32 s3, {WS_EP:#x}")
    e.vmem(f"buffer_load_dword v{VE}, v{VE}, {SS}, s3 offen sc1", "rs")
    e(f"""v_lshrrev_b32 v4, 5, v0
    v_and_b32 v6, 31, v0
    v_lshlrev_b32 v6, 4, v6
    v_lshl_add_u32 v6, v4, 10, v6
    v_lshlrev_b32 v{VE+1}, 4, v4
    s_lshl_b32 s64, s20, 7
    s_lshl_b32 s65, s23, 3
    s_add_u32 s64, s64, s65
    s_lshl_b32 s65, s19, 1
    s_add_u32 s64, s64, s65
    s_lshl_b32 s65, s64, 10""")
    e.vmem(f"buffer_load_dwordx4 {vr(L0,4)}, v6, {SX}, s65 offen", "rs")
    e.vmem(f"buffer_load_dwordx4 {vr(L0+4,4)}, v6, {SX}, s65 offen offset:512", "rs")
    e("""s_add_u32 s66, s23, 8
    s_add_u32 s67, s23, 24
    s_cmp_eq_u32 s19, 1
    s_cselect_b32 s66, s67, s66
    s_add_u32 s67, s23, 32
    s_cmp_lt_u32 s23, 8
    s_cselect_b32 s67, s23, s67
    s_cmp_eq_u32 s19, 2
    s_cselect_b32 s66, s67, s66
    s_add_u32 s67, s23, 48
    s_cmp_eq_u32 s19, 3
    s_cselect_b32 s66, s67, s66
    v_lshrrev_b32 v2, 3, v0
    v_lshlrev_b32 v3, 4, v5
    s_cmp_ge_u32 s66, 52
    s_cbranch_scc1 L_CSD
    s_lshl_b32 s67, s66, 7
    s_cmp_ge_u32 s66, 24
    s_cbranch_scc1 L_CSW
    v_mul_u32_u24 v4, 3072, v2
    v_add_u32 v4, v4, v3""")
    e(f"s_mul_i32 s68, s20, {32*3072}")
    e("s_add_u32 s68, s68, s67")
    for t in range(4):
        e(f"buffer_load_dwordx4 {vr(CL+4*t,4)}, v4, {SW}, s68 offen")
        if t < 3: e(f"s_add_u32 s68, s68, {8*3072}")
    e("s_branch L_CSD")
    e("L_CSW:")
    e("v_mul_u32_u24 v4, 3584, v2")
    e("v_add_u32 v4, v4, v3")
    e(f"s_mul_i32 s68, s20, {32*3584}")
    e("s_add_u32 s68, s68, s67")
    e(f"s_sub_u32 s68, s68, {24*128}")
    for t in range(4):
        e(f"buffer_load_dwordx4 {vr(CL+4*t,4)}, v4, {S1}, s68 offen")
        if t < 3: e(f"s_add_u32 s68, s68, {8*3584}")
    e("L_CSD:")
    if PFU == 2:
        e("s_mov_b32 s74, s64")
        pf_x(); pf_w()
        e("s_mov_b32 s64, s74")
    e(f"""s_mov_b32 s69, 0xffff0000
    s_mov_b32 s70, 0x3b000000
    s_lshl_b32 s64, s64, 4
    s_add_u32 s64, s64, {WS_RS:#x}
    v_lshlrev_b32 v14, 4, v0
    s_lshl_b32 s71, s23, 8
    s_add_u32 s72, s71, {512*4}
    v_add_u32 v15, s72, v14
    s_add_u32 s72, s71, {1536*4 - 256}
    v_add_u32 v2, s72, v14
    v_cmp_le_u32 vcc, 16, v0
    s_lshl_b32 s72, s23, 7
    s_sub_u32 s72, s72, 512
    v_cndmask_b32 v15, v15, v2, vcc
    v_add_u32 v2, s72, v14
    v_cmp_le_u32 vcc, 32, v0
    s_mul_i32 s72, s23, 192
    s_add_u32 s72, s72, {2560*4 - 640}
    v_cndmask_b32 v15, v15, v2, vcc
    v_min_u32 v2, 51, v0
    v_lshlrev_b32 v2, 4, v2
    v_add_u32 v2, s72, v2
    v_cmp_le_u32 vcc, 40, v0
    s_nop 1
    v_cndmask_b32 v15, v15, v2, vcc""")
    def piece(n):
        if n == 0:
            e("s_cmp_ge_u32 s66, 52")
            e("s_cbranch_scc1 L_P0A")
            e(f"s_waitcnt vmcnt({4 + (2 if PFU == 2 else 0)})")
            e("s_branch L_P0B")
            e("L_P0A:")
            e(f"s_waitcnt vmcnt({2 if PFU == 2 else 0})")
            e("L_P0B:")
            for q in range(8):
                e(f"v_lshlrev_b32 v{U+2*q}, 16, v{L0+q}")
                e(f"v_and_b32 v{U+2*q+1}, s69, v{L0+q}")
            for q in range(4): e(f"v_pk_add_f32 {pk(A+2*q)}, {pk(U+4*q)}, {pk(U+4*q+2)}")
            e(f"v_pk_add_f32 {pk(A)}, {pk(A)}, {pk(A+2)}")
            e(f"v_pk_add_f32 {pk(A+4)}, {pk(A+4)}, {pk(A+6)}")
            e(f"v_pk_add_f32 {pk(A)}, {pk(A)}, {pk(A+4)}")
            e(f"v_add_f32 v{A}, v{A}, v{A+1}")
            reduce32(e, [A], [A + 1])
            e(f"v_mul_f32 v{A}, s70, v{A}")
            e(f"v_add_u32 v{A+6}, {EPC:#x}, v{VE}")
            e(f"v_mov_b32 v2, {L_MISC}")
            e("v_mov_b32 v3, 0")
            e(f"ds_write_b32 v2, v{A+6}")
            for o in (4, 8, 12, 16, 20, 24, 28): e(f"ds_write_b32 v2, v3 offset:{o}")
        if n == 1:
            for q in range(8): e(f"v_pk_add_f32 {pk(U+2*q)}, {pk(U+2*q)}, {pk(A)} op_sel_hi:[1,0] neg_lo:[0,1] neg_hi:[0,1]")
            e(f"v_pk_mul_f32 {pk(A+2)}, {pk(U)}, {pk(U)}")
            e(f"v_pk_mul_f32 {pk(A+4)}, {pk(U+2)}, {pk(U+2)}")
            for q in range(2, 8): e(f"v_pk_fma_f32 {pk(A+2+2*(q&1))}, {pk(U+2*q)}, {pk(U+2*q)}, {pk(A+2+2*(q&1))}")
            e(f"v_pk_add_f32 {pk(A+4)}, {pk(A+2)}, {pk(A+4)}")
            e(f"v_add_f32 v{A+4}, v{A+4}, v{A+5}")
            reduce32(e, [A + 4], [A + 5])
            e(f"v_mov_b32 v{A+5}, 0x3727c5ac")
            e(f"v_fma_f32 v{A+4}, v{A+4}, s70, v{A+5}")
            e(f"v_rsq_f32 v{A+4}, v{A+4}")
            e(f"v_readfirstlane_b32 s61, v{A+6}")
            e(f"v_mov_b32 v{A+7}, v{A+6}")
            e(f"v_mul_f32 v{A+5}, v{A}, v{A+4}")
            e(f"v_sub_f32 v{A+5}, 0, v{A+5}")
            e("s_mov_b32 exec_lo, 1")
            e("s_mov_b32 exec_hi, 1")
            e(f"buffer_store_dwordx4 {vr(A+4,4)}, v{VE+1}, {SS}, s64 offen sc1")
            e("s_mov_b64 exec, -1")
        if n == 2:
            e(f"s_waitcnt vmcnt({1 + (2 if PFU == 2 else 0)})")
            for q in range(4):
                e(f"v_lshlrev_b32 v{C0+2*q}, 16, v{CL+q}")
                e(f"v_and_b32 v{C0+2*q+1}, s69, v{CL+q}")
            for t in range(1, 4):
                for q in range(4):
                    e(f"v_lshlrev_b32 v{C1+2*q}, 16, v{CL+4*t+q}")
                    e(f"v_and_b32 v{C1+2*q+1}, s69, v{CL+4*t+q}")
                for q in range(4): e(f"v_pk_add_f32 {pk(C0+2*q)}, {pk(C0+2*q)}, {pk(C1+2*q)}")
            e("s_nop 1")
            for q in range(8): e(f"v_add_f32_dpp v{C0+q}, v{C0+q}, v{C0+q} row_ror:8 row_mask:0xf bank_mask:0xf")
            e("s_mov_b32 s72, 0xff00ff00")
            e("s_mov_b32 s73, 0xff00ff00")
            for q in range(4): e(f"v_cndmask_b32 v{C0+q}, v{C0+q}, v{C0+4+q}, s[72:73]")
            for sw in ("v_permlane16_swap_b32", "v_permlane32_swap_b32"):
                for q in range(4): e(f"v_mov_b32 v{C1+q}, v{C0+q}")
                e("s_nop 0")
                for q in range(4): e(f"{sw} v{C0+q}, v{C1+q}")
                for q in range(4): e(f"v_add_f32 v{C0+q}, v{C0+q}, v{C1+q}")
            e("s_mov_b32 s71, 0xff")
            e(f"v_bfe_u32 v{C1+2}, v0, 3, 1")
            for q in range(4): e(f"v_bfi_b32 v{C0+q}, s71, v{A+6}, v{C0+q}")
            e(f"v_lshlrev_b32 v{C1+1}, 5, v5")
            e(f"v_lshl_add_u32 v{C1+1}, v{C1+2}, 4, v{C1+1}")
            e(f"s_mul_i32 s71, s20, {3328*4}")
            e("s_lshl_b32 s72, s66, 8")
            e("s_add_u32 s71, s71, s72")
            e(f"s_add_u32 s71, s71, {WS_CS:#x}")
            e("s_cmp_ge_u32 s66, 52")
            e("s_cbranch_scc1 L_P2S")
            e("s_mov_b64 exec, 0xffff")
            e(f"buffer_store_dwordx4 {vr(C0,4)}, v{C1+1}, {SS}, s71 offen sc1")
            e("s_mov_b64 exec, -1")
            e("L_P2S:")
    def kvsetup():
        e(f"""v_and_b32 v10, 3, v0
        v_min_u32 v10, 2, v10
        s_sub_u32 s76, s20, 2
        v_add_u32 v10, s76, v10
        v_max_i32 v10, 0, v10
        v_lshlrev_b32 v10, 11, v10
        v_bfe_u32 v11, v0, 2, 1
        v_lshl_add_u32 v10, v11, 10, v10
        s_lshr_b32 s76, s23, 1
        s_lshl_b32 s76, s76, 7
        s_add_u32 s76, s76, {WS_F1:#x}
        v_mov_b32 v11, s61
        v_lshlrev_b32 v1, 4, v0
        s_lshr_b32 s52, s19, 1
        s_lshl_b32 s53, s23, 1
        s_add_u32 s53, s53, s52
        s_lshl_b32 s53, s53, 6
        s_and_b32 s54, s19, 1
        s_mul_i32 s54, s54, 6
        s_lshl_b32 s55, s20, 2
        s_add_u32 s54, s54, s55
        s_mul_i32 s55, s19, 6144""")
    def kvdma():
        for t in range(6):
            e(f"s_add_u32 s68, s54, {t}")
            e("s_sub_i32 s68, s68, 8")
            e("s_max_i32 s68, s68, 0")
            e("s_add_u32 s68, s68, s53")
            e("s_lshl_b32 s68, s68, 10")
            e(f"s_add_u32 m0, s55, {L_K + t*1024}")
            e("s_add_u32 s69, s68, 0x200000")
            e(f"buffer_load_dwordx4 v1, {SS}, s68 offen sc1 lds")
            e(f"s_add_u32 m0, s55, {L_V + t*1024}")
            e("s_nop 0")
            e(f"buffer_load_dwordx4 v1, {SS}, s69 offen sc1 lds")
    G0 = 84
    def gather():
        e(f"s_mov_b32 s71, {WS_CS:#x}")
        for g in range(16):
            e(f"buffer_load_dwordx4 {vr(G0+4*g,4)}, v15, {SS}, s71 offen sc1")
            e(f"s_add_u32 s71, s71, {3328*4}")
        e("s_lshl_b32 s71, s20, 11")
        e(f"s_add_u32 s71, s71, {WS_RS:#x}")
        for h in range(2):
            e(f"buffer_load_dwordx4 {vr(G0+64+4*h,4)}, v14, {SS}, s71 offen offset:{h*1024} sc1")
    PK = opt.get("pk", [0, 0, 1]); GK = opt.get("gk", 4); CK = opt.get("ck", 6)
    for n_, kk_ in enumerate(PK):
        if kk_ < 0: piece(n_)
    for k in range(16):
        if k == 2: e("s_waitcnt lgkmcnt(0)")
        bstamp(k)
        e("s_barrier")
        for n_, kk_ in enumerate(PK):
            if kk_ == k: piece(n_)
        KVK = opt.get("kvk", 14)
        if k == 8:
            kvsetup()
            e("s_mov_b32 s77, 0")
        if k == KVK - 1: e(f"buffer_load_dword v4, v10, {SS}, s76 offen sc1")
        if k == KVK:
            sk = lab("KVLATE")
            e("s_waitcnt vmcnt(0)")
            e("v_cmp_ne_u32 vcc, v11, v4")
            e("s_nop 1")
            e("s_cmp_lg_u64 vcc, 0")
            e(f"s_cbranch_scc1 {sk}")
            kvdma()
            e("s_mov_b32 s77, 1")
            e(f"{sk}:")
        PW0 = opt.get("pfw", 0)
        if PW0 and PW0 <= k < 16:
            if k == PW0:
                srd(e, 44, 14, 1792 * 1024)
                srd(e, 48, 8, 512 * 1024)
                e("s_lshr_b32 s78, s2, 3")
                e("s_mul_i32 s79, s78, 57344")
                e("s_mul_i32 s3, s19, 14336")
                e("s_add_u32 s79, s79, s3")
                e("s_lshl_b32 s78, s78, 14")
                e("s_lshl_b32 s3, s19, 12")
                e("s_add_u32 s78, s78, s3")
            per = -(-18 // (opt.get("pfwe", 16) - PW0))
            for j in range(per * (k - PW0), min(18, per * (k - PW0 + 1))):
                if j < 14:
                    e(f"s_add_u32 s3, s79, {j*1024}")
                    e(f"buffer_load_dwordx4 v[120:123], v14, {S2}, s3 offen")
                else:
                    e(f"buffer_load_dwordx4 v[120:123], v14, {SO}, s78 offen offset:{(j-14)*1024}")
        if opt.get("pfl2", 0) and 8 <= k <= 10:
            if k == 8:
                srd(e, 44, 14, 1792 * 1024)
                srd(e, 48, 8, 512 * 1024)
                e("v_lshlrev_b32 v12, 7, v0")
                e("s_lshr_b32 s78, s2, 3")
            j = k - 8
            sk = lab("NOP2")
            if j < 2:
                e("s_mul_i32 s71, s78, 57344")
                e("s_lshl_b32 s72, s19, 13")
                e("s_add_u32 s71, s71, s72")
                if j == 1:
                    e("s_cmp_eq_u32 s19, 3")
                    e(f"s_cbranch_scc1 {sk}")
                    e("s_add_u32 s71, s71, 32768")
                e(f"buffer_load_dword v13, v12, {S2}, s71 offen")
            else:
                e("s_cmp_ge_u32 s19, 2")
                e(f"s_cbranch_scc1 {sk}")
                e("s_lshl_b32 s71, s78, 14")
                e("s_lshl_b32 s72, s19, 13")
                e("s_add_u32 s71, s71, s72")
                e(f"buffer_load_dword v13, v12, {SO}, s71 offen")
            e(f"{sk}:")
        if UST and k == 8:
            e(f"""s_lshl_b32 s3, s19, 12
            v_add_u32 v2, s3, v14
            v_add_u32 v3, {W1A[7]}, v2
            v_add_u32 v2, {W1A[6]}, v2""")
            for s_ in range(8): e(f"ds_read_b128 {vr(16+4*s_,4)}, v{2+(s_>>2)} offset:{(s_&3)*1024}")
            e(f"""s_lshl_b32 s64, s20, 2
            s_add_u32 s64, s64, s19
            s_lshl_b32 s65, s23, 8
            s_add_u32 s65, s65, s64
            s_lshl_b32 s65, s65, 10
            s_mul_i32 s66, s64, 112
            s_lshl_b32 s3, s23, 2
            s_add_u32 s66, s66, s3
            s_lshl_b32 s66, s66, 10
            s_add_u32 s66, s66, {WS_H:#x}
            s_waitcnt lgkmcnt(0)""")
        if UST and k >= 8:
            SP = opt.get("sper", 2)
            for s_ in range(SP * (k - 8), min(8, SP * (k - 7))):
                if s_ < 4: e(f"s_add_u32 s3, s65, {WS_KV + s_*0x10000:#x}")
                else: e(f"s_add_u32 s3, s66, {(s_-4)*1024}")
                e(f"buffer_store_dwordx4 {vr(16+4*s_,4)}, v14, {SS}, s3 offen sc1")
            if k == opt.get("ugk", 12): signal(4, 3, WS_F1, 2, 3, max(0, min(8, SP * (k - 7)) - 4))
            if k == opt.get("ugh", 15): signal(24, 3, WS_F1H, 2, 3)
        if k == opt.get("pf2k", 2) and opt.get("pf2", 1):
            sk = lab("NOPF")
            e("s_cmp_lg_u32 s19, 1")
            e(f"s_cbranch_scc1 {sk}")
            srd(e, 44, 14, 1792 * 1024)
            srd(e, 48, 8, 512 * 1024)
            e("v_lshlrev_b32 v2, 7, v0")
            e("s_mul_i32 s71, s2, 7168")
            e("s_mov_b32 exec_hi, 0xffffff")
            e(f"buffer_load_dword v160, v2, {S2}, s71 offen")
            e("s_lshl_b32 s71, s2, 11")
            e("s_mov_b64 exec, 0xffff")
            e(f"buffer_load_dword v161, v2, {SO}, s71 offen")
            e("s_mov_b64 exec, -1")
            e(f"{sk}:")
        if k in (GK, CK, CK + 1):
            sk = lab("NOPOST")
            e("s_cmp_lg_u32 s19, 0")
            e(f"s_cbranch_scc1 {sk}")
            if k == GK: gather()
            if k == CK:
                e("s_mov_b32 s73, 0x20000")
                e("L_CHK:")
                e("s_waitcnt vmcnt(0)")
                e(f"v_xor_b32 v2, s61, v{G0}")
                for i in range(G0 + 1, G0 + 64): e(f"v_bitop3_b32 v2, v2, v{i}, s61 bitop3:0xf6")
                e("v_and_b32 v2, 0xff, v2")
                for i in (66, 67, 70, 71): e(f"v_bitop3_b32 v2, v2, v{G0+i}, s61 bitop3:0xf6")
                e("v_cmp_ne_u32 vcc, 0, v2")
                e("s_sub_u32 s73, s73, 1")
                e("s_cmp_eq_u32 s73, 0")
                e("s_cbranch_scc1 L_GOT")
                e("s_cmp_eq_u64 vcc, 0")
                e("s_cbranch_scc1 L_GOT")
                gather()
                e("s_branch L_CHK")
                e("L_GOT:")
            if k == CK + 1:
                e("s_mov_b32 s71, 0xffffff00")
                for i in range(G0, G0 + 64): e(f"v_and_b32 v{i}, s71, v{i}")
                for g in range(1, 16):
                    for h in range(2): e(f"v_pk_add_f32 {pk(G0+2*h)}, {pk(G0+2*h)}, {pk(G0+4*g+2*h)}")
                e(f"v_add_u32 v2, {L_ST}, v14")
                e(f"ds_write_b128 v2, {vr(G0+64,4)}")
                e(f"ds_write_b128 v2, {vr(G0+68,4)} offset:1024")
                e(f"ds_write_b128 v2, {vr(G0,4)} offset:2048")
                e("s_waitcnt lgkmcnt(0)")
                ldsadd(20, 2, 3)
            e(f"{sk}:")
    bflush()
    stamp(3)
    e("s_barrier")
    stamp(4)
    e("s_cmp_lg_u32 s77, 0")
    e("s_cbranch_scc1 L_KVDONE")
    poll(10, "s76", 11, 4)
    kvdma()
    e("L_KVDONE:")
    e(f"v_add_u32 v2, {L_ONE}, v1")
    for q in range(4): e(f"v_mov_b32 v{8+q}, 0x3f803f80")
    e("ds_write_b128 v2, v[8:11]")
    e("s_add_u32 s96, s19, 4")
    e("s_mov_b32 s97, 0")
    e("s_waitcnt vmcnt(0) lgkmcnt(0)")
    ldsadd(16, 2, 3)
    stamp(5)

    e("L_ATT:")
    e.vm = []; e.lg = []
    Q = 8
    K = lambda u: 12 + 4 * u
    V = lambda u, g: 48 + ((u & 1) * 2 + g) * 4
    S = lambda b: 64 + 16 * b
    P, O = 112, 120
    VNEG, M0_, M1_, NM, MK = 136, 137, 138, 139, 140
    VA, VSTR = 148, 149
    for j in range(16):
        b0 = (j >> 2) * 8 + (j & 3)
        e(f"s_mov_b32 s{64+2*j}, {(0xffffffff << b0) & 0xffffffff:#x}")
        e(f"s_mov_b32 s{65+2*j}, {(0xffffffff << (b0+4)) & 0xffffffff:#x}")
    e(f"v_mov_b32 v{VNEG}, {NEG:#x}")
    e("v_mov_b32 v6, 0xffff")
    e("v_mov_b32 v7, 0xffff0000")
    for q in range(8):
        e(f"v_cndmask_b32 v{MK+q}, 0, v6, s[{64+4*q}:{65+4*q}]")
        e(f"v_cndmask_b32 v{S(2)}, 0, v7, s[{66+4*q}:{67+4*q}]")
        e(f"v_or_b32 v{MK+q}, v{MK+q}, v{S(2)}")
    e(f"""s_and_b32 s3, s96, 3
    s_lshl_b32 s26, s20, 2
    s_add_u32 s26, s26, s3
    s_add_u32 s25, s26, 1
    s_min_u32 s25, s25, 9
    s_lshr_b32 s62, s96, 2
    s_lshl_b32 s27, s23, 1
    s_add_u32 s27, s27, s62
    v_lshlrev_b32 v1, 4, v0
    s_lshl_b32 s63, s96, 10
    s_add_u32 s63, s63, {L_Q}
    v_add_u32 v3, s63, v1
    s_mul_i32 s62, s62, 12288
    s_lshl_b32 s3, s3, 10
    s_add_u32 s3, s3, s62
    s_add_u32 s62, s3, {L_K}
    v_add_u32 v4, s62, v1
    v_lshrrev_b32 v5, 5, v0
    v_lshlrev_b32 v5, 2, v5
    v_bfe_u32 v6, v0, 2, 2
    v_add_u32 v5, v5, v6
    v_lshlrev_b32 v5, 4, v5
    v_bfe_u32 v6, v0, 1, 1
    v_lshl_add_u32 v5, v6, 9, v5
    v_and_b32 v6, 1, v0
    v_lshl_add_u32 v5, v6, 3, v5
    s_add_u32 s3, s3, {L_V + 8192}
    v_add_u32 v5, s3, v5
    v_mov_b32 v6, {L_ONE}
    v_mov_b32 v7, 1024
    s_mov_b32 s98, 0xffff
    s_mov_b32 s99, 0xffff
    v_cndmask_b32 v5, v6, v5, s[98:99]
    v_cndmask_b32 v{VSTR}, 0, v7, s[98:99]
    v_lshlrev_b32 v7, 3, v{VSTR}
    v_sub_u32 v{VA+2}, v5, v7""")
    stamp(6)
    def owed():
        sk = lab("NOOWE")
        e("s_cmp_eq_u32 s97, 0")
        e(f"s_cbranch_scc1 {sk}")
        signal(12, 3, WS_F1B, 152, 153)
        e(f"{sk}:")
    if opt.get("owu", 0) == 0: owed()
    ldswait(16, 8, 2, 6)
    e(f"s_setprio {opt.get('aprio', 0)}")
    stamp(7)
    def fill(buf, val, diag):
        for j in range(16):
            a, b = (f"v{VNEG}", val) if diag else (val, f"v{VNEG}")
            e(f"v_cndmask_b32 v{S(buf)+j}, {a}, {b}, s[{64+2*j}:{65+2*j}]")
    def smfma(u, buf, cin):
        e.lwait(("K", u))
        e(f"v_mfma_f32_32x32x16_bf16 {vr(S(buf),16)}, {vr(K(u),4)}, {vr(Q,4)}, {cin}")
    def vread(u, par=None, va=None):
        if va is None:
            if u == 0: e(f"v_mov_b32 v{VA}, v5")
            else: e(f"v_sub_u32 v{VA}, v{VA}, v{VSTR}")
            va = VA
        for g in range(2):
            r = V(u if par is None else par, g)
            for h in range(2): e.lds(f"ds_read_b64_tr_b16 v[{r+2*h}:{r+2*h+1}], v{va} offset:{g*256 + h*128}", ("V", u))
    PD, PFR = S(2), S(2) + 8
    if opt.get("noatt"): e("s_branch L_P2DONE")
    e.lds(f"ds_read_b128 {vr(Q,4)}, v3", "Q")
    for u in [0, 8, 1]: e.lds(f"ds_read_b128 {vr(K(u),4)}, v4 offset:{(8-u)*1024}", ("K", u))
    vread(0); vread(8, 1, VA + 2)
    smfma(0, 0, "0"); smfma(8, 2, "0"); smfma(1, 1, "0")
    for u in range(2, 8): e.lds(f"ds_read_b128 {vr(K(u),4)}, v4 offset:{(8-u)*1024}", ("K", u))
    e("s_nop 4")
    s0 = S(0)
    for j in range(16): e(f"v_cndmask_b32 v{s0+j}, v{S(2)+j}, v{s0+j}, s[{64+2*j}:{65+2*j}]")
    for j in range(16): e(f"v_exp_f32 v{s0+j}, v{s0+j}")
    for q in range(8): e(f"v_cvt_pk_bf16_f32 v{P+q}, v{s0+2*q}, v{s0+2*q+1}")
    for q in range(8): e(f"v_and_b32 v{PD+q}, v{MK+q}, v{P+q}")
    e.lwait(("V", 8))
    e(f"v_mfma_f32_32x32x16_bf16 {vr(O,16)}, {vr(V(0,0),4)}, {vr(PD,4)}, 0")
    for q in range(8): e(f"v_bfi_b32 v{PFR+q}, v{MK+q}, 0, v{P+q}")
    e(f"v_mfma_f32_32x32x16_bf16 {vr(O,16)}, {vr(V(0,1),4)}, {vr(PD+4,4)}, {vr(O,16)}")
    e("s_cmp_lt_u32 s25, 9")
    e("s_cbranch_scc1 L_NOFAR")
    e(f"v_mfma_f32_32x32x16_bf16 {vr(O,16)}, {vr(V(1,0),4)}, {vr(PFR,4)}, {vr(O,16)}")
    e(f"v_mfma_f32_32x32x16_bf16 {vr(O,16)}, {vr(V(1,1),4)}, {vr(PFR+4,4)}, {vr(O,16)}")
    e("L_NOFAR:")
    vread(1)
    e("s_cmp_eq_u32 s25, 1")
    e("s_cbranch_scc1 L_FCHK")
    def pv(u, g): e(f"v_mfma_f32_32x32x16_bf16 {vr(O,16)}, {vr(V(u,g),4)}, {vr(P+4*g,4)}, {vr(O,16)}")
    for u in range(1, 8):
        s_ = S(u % 2)
        if u + 1 <= 7: smfma(u + 1, (u + 1) % 2, "0")
        for j in range(2): e(f"v_exp_f32 v{s_+j}, v{s_+j}")
        if u > 1: pv(u - 1, 1)
        if u + 1 <= 7: vread(u + 1)
        for j in range(2, 8): e(f"v_exp_f32 v{s_+j}, v{s_+j}")
        for q in range(4): e(f"v_cvt_pk_bf16_f32 v{P+q}, v{s_+2*q}, v{s_+2*q+1}")
        for j in range(8, 10): e(f"v_exp_f32 v{s_+j}, v{s_+j}")
        e.lwait(("V", u))
        pv(u, 0)
        for j in range(10, 16): e(f"v_exp_f32 v{s_+j}, v{s_+j}")
        for q in range(4, 8): e(f"v_cvt_pk_bf16_f32 v{P+q}, v{s_+2*q}, v{s_+2*q+1}")
        if u < 7:
            e(f"s_cmp_eq_u32 s25, {u+1}")
            e(f"s_cbranch_scc1 L_FX{u&1}")
    e("L_FX1:")
    e("s_nop 1")
    pv(1, 1)
    e("s_branch L_FCHK")
    e("L_FX0:")
    e("s_nop 1")
    pv(0, 1)
    e("L_FCHK:")
    e("s_mov_b32 s52, 0x1f800000")
    e("s_mov_b32 s53, 0x5f800000")
    e("s_mov_b32 s3, 0x7f800000")
    e("s_waitcnt lgkmcnt(0)")
    e("s_nop 7")
    e(f"v_add_f32 v6, |v{O}|, |v{O+1}|")
    e(f"v_add_f32 v7, |v{O+2}|, |v{O+3}|")
    e(f"v_add_f32 v2, |v{O+4}|, |v{O+5}|")
    e(f"v_add_f32 v3, |v{O+6}|, |v{O+7}|")
    e(f"v_cmp_le_f32 s[62:63], s52, v{O+8}")
    e(f"v_cmp_ge_f32 s[98:99], s53, v{O+8}")
    e("v_add_f32 v6, v6, v7")
    e("v_add_f32 v2, v2, v3")
    e("v_add_f32 v6, v6, v2")
    e("s_and_b64 s[62:63], s[62:63], s[98:99]")
    e("v_cmp_gt_f32 vcc, s3, v6")
    e("s_nop 0")
    e("s_and_b64 s[62:63], s[62:63], vcc")
    e("s_cmp_eq_u64 s[62:63], -1")
    if opt.get("forceslow"): e("s_cmp_eq_u32 s62, 12345")
    e("s_cbranch_scc1 L_P2DONE")
    e.lg = []
    e(f"v_mov_b32 v{M0_}, v{VNEG}")
    e(f"v_mov_b32 v{M1_}, v{VNEG}")
    fill(0, "0", True)
    e("s_nop 1")
    smfma(0, 0, vr(S(0), 16))
    smfma(1, 1, "0")
    for u in range(9):
        if u + 2 <= 8:
            if u + 2 == 8:
                fill((u + 2) % 3, "0", False); e("s_nop 1")
                smfma(u + 2, (u + 2) % 3, vr(S((u + 2) % 3), 16))
            else:
                smfma(u + 2, (u + 2) % 3, "0")
        if u == 0: e("s_nop 9")
        for q in range(8):
            m = M0_ + (q & 1)
            e(f"v_max3_f32 v{m}, v{S(u%3)+2*q}, v{S(u%3)+2*q+1}, v{m}")
        if u < 8:
            e(f"s_cmp_eq_u32 s25, {u+1}")
            e("s_cbranch_scc1 L_P1DONE")
    e("L_P1DONE:")
    vread(0)
    e(f"v_max_f32 v{M0_}, v{M0_}, v{M1_}")
    e(f"v_mov_b32 v{M1_}, v{M0_}")
    e("s_nop 1")
    e(f"v_permlane32_swap_b32 v{M0_}, v{M1_}")
    e("s_nop 1")
    e(f"v_max_f32 v{M0_}, v{M0_}, v{M1_}")
    e(f"v_sub_f32 v{NM}, 0, v{M0_}")
    e("s_nop 3")
    CB = S(2)
    for j in range(16): e(f"v_mov_b32 v{CB+j}, v{NM}")
    fill(0, f"v{NM}", True)
    e("s_nop 1")
    smfma(0, 0, vr(S(0), 16))
    for u in range(9):
        s = S(u % 2)
        if u + 1 <= 8:
            nb_ = (u + 1) % 2
            if u + 1 == 8:
                fill(nb_, f"v{NM}", False); e("s_nop 1")
                smfma(u + 1, nb_, vr(S(nb_), 16))
            else:
                smfma(u + 1, nb_, vr(CB, 16))
            vread(u + 1)
        if u == 0: e("s_nop 6")
        for j in range(8): e(f"v_exp_f32 v{s+j}, v{s+j}")
        for q in range(4): e(f"v_cvt_pk_bf16_f32 v{P+q}, v{s+2*q}, v{s+2*q+1}")
        for j in range(8, 16): e(f"v_exp_f32 v{s+j}, v{s+j}")
        e.lwait(("V", u))
        e(f"v_mfma_f32_32x32x16_bf16 {vr(O,16)}, {vr(V(u,0),4)}, {vr(P,4)}, {'0' if u == 0 else vr(O,16)}")
        for q in range(4, 8): e(f"v_cvt_pk_bf16_f32 v{P+q}, v{s+2*q}, v{s+2*q+1}")
        e("s_nop 1")
        e(f"v_mfma_f32_32x32x16_bf16 {vr(O,16)}, {vr(V(u,1),4)}, {vr(P+4,4)}, {vr(O,16)}")
        if u < 8:
            e(f"s_cmp_eq_u32 s25, {u+1}")
            e("s_cbranch_scc1 L_P2X")
    e("L_P2X:")
    e("s_waitcnt lgkmcnt(0)")
    e("s_nop 12")
    e("L_P2DONE:")
    e("s_lshl_b32 s3, s26, 5")
    e("s_add_u32 s3, s3, s27")
    e("s_lshl_b32 s3, s3, 10")
    e(f"s_add_u32 s3, s3, {WS_O:#x}")
    e(f"v_rcp_f32 v7, v{O+8}")
    e("s_nop 0")
    for j in range(8): e(f"v_mul_f32 v{O+j}, v{O+j}, v7")
    for q in range(4): e(f"v_cvt_pk_bf16_f32 v{P+q}, v{O+2*q}, v{O+2*q+1}")
    e(f"buffer_store_dwordx4 {vr(P,4)}, v1, {SS}, s3 offen sc1")
    stamp(8)
    signal(8, 7, WS_F2)
    stamp(9)
    e("s_cmp_lg_u32 s2, 0")
    e("s_cbranch_scc1 L_FIN")
    e("s_cmp_lg_u32 s96, 1")
    e("s_cbranch_scc1 L_FIN")
    e("v_lshlrev_b32 v6, 7, v0")
    e("s_mov_b32 s63, 0x20000")
    e("L_BCHK:")
    for g in range(4):
        e(f"s_mov_b32 s62, {WS_F2 + g*8192:#x}")
        e(f"buffer_load_dword v{8+g}, v6, {SS}, s62 offen sc1")
    e("s_waitcnt vmcnt(0)")
    e("v_xor_b32 v7, s61, v8")
    for i in range(9, 12): e(f"v_bitop3_b32 v7, v7, v{i}, s61 bitop3:0xf6")
    e("v_cmp_ne_u32 vcc, 0, v7")
    e("s_sub_u32 s63, s63, 1")
    e("s_cmp_eq_u32 s63, 0")
    e("s_cbranch_scc1 L_FIN")
    e("s_cmp_lg_u64 vcc, 0")
    e("s_cbranch_scc1 L_BCHK")
    e("s_mov_b64 exec, 1")
    e("v_mov_b32 v6, 0")
    e("v_mov_b32 v7, s61")
    e(f"s_mov_b32 s62, {WS_EP:#x}")
    e(f"buffer_store_dword v7, v6, {SS}, s62 offen sc1")
    e("s_mov_b64 exec, -1")
    e("L_FIN:")
    e.vm = []; e.lg = []
    srd(e, 28, 10, 2048 * 1024)
    e(f"""v_lshrrev_b32 v7, 3, v0
    v_and_b32 v14, 7, v0
    v_lshlrev_b32 v8, 4, v14
    v_lshl_add_u32 v2, v7, 10, v8
    s_lshl_b32 s62, s58, 16
    s_lshl_b32 s3, s96, 13
    s_add_u32 s62, s62, s3
    s_lshl_b32 s3, s59, 7
    s_add_u32 s62, s62, s3""")
    e(f"buffer_load_dwordx4 v[8:11], v2, {SX}, s62 offen")
    e(f"""s_and_b32 s3, s96, 3
    s_lshl_b32 s3, s3, 10
    s_cmp_ge_u32 s96, 4
    s_mov_b32 s63, {BREG[0]}
    s_cselect_b32 s63, {BREG[2]}, s63
    s_mov_b32 s64, {BREG[1]}
    s_cselect_b32 s64, {BREG[3]}, s64
    s_add_u32 s63, s63, s3
    s_add_u32 s64, s64, s3
    v_and_b32 v12, 3, v0
    v_lshlrev_b32 v12, 1, v12
    v_xor_b32 v12, v12, v7
    v_bfe_u32 v13, v0, 2, 1
    v_xor_b32 v12, v12, v13
    v_lshlrev_b32 v12, 4, v12
    v_lshl_add_u32 v12, v7, 7, v12
    v_mov_b32 v15, s63
    v_mov_b32 v16, s64
    v_cmp_eq_u32 vcc, 1, v13
    s_nop 1
    v_cndmask_b32 v15, v15, v16, vcc
    v_add_u32 v24, v15, v12
    v_xor_b32 v25, 16, v24""")
    stamp(10)
    e("s_barrier")
    stamp(11)
    R = lambda src, h: 48 + src * 8 + h * 4
    for src in range(4):
        for h in range(2): e.lds(f"ds_read_b128 {vr(R(src,h),4)}, v{24+h} offset:{src*4096}", src)
    e("s_mov_b32 s3, 0xffff0000")
    e("s_waitcnt vmcnt(0)")
    for q in range(4):
        e(f"v_lshlrev_b32 v{32+2*q}, 16, v{8+q}")
        e(f"v_and_b32 v{33+2*q}, s3, v{8+q}")
    for src in range(4):
        e.lwait(src)
        for q in range(4): e(f"v_pk_add_f32 {pk(32+2*q)}, {pk(32+2*q)}, {pk(R(src,0)+2*q)}")
    for q in range(4): e(f"v_cvt_pk_bf16_f32 v{40+q}, v{32+2*q}, v{33+2*q}")
    e("buffer_store_dwordx4 v[40:43], v2, s[28:31], s62 offen " + opt.get("ost", ""))
    if ST:
        e("L_DUMP:")
        stamp(12)
        e("s_waitcnt vmcnt(0)")
        stamp(13); stamp(14, True)
        if opt.get("dbgst") is not None:
            e("s_load_dwordx2 s[4:5], s[0:1], 56")
            e(f"s_cmp_lg_u32 s2, {opt['dbgst']}")
            e("s_cbranch_scc1 L_END")
            e("s_cmp_lg_u32 s18, 4")
            e("s_cbranch_scc1 L_END")
            e(f"v_readlane_b32 s6, v{VST}, 1")
            e(f"v_readlane_b32 s7, v{VST}, 0")
            e("s_waitcnt lgkmcnt(0)")
            e(f"v_subrev_u32 v3, s6, v{VST}")
            e(f"v_subrev_u32 v4, s7, v{VST}")
            e("v_cmp_eq_u32 vcc, 14, v0")
            e("s_nop 1")
            e("v_cndmask_b32 v3, v3, v4, vcc")
            e("v_lshlrev_b32 v2, 2, v0")
            e("s_mov_b64 exec, 0xffff")
            e("global_store_dword v2, v3, s[4:5]")
            e("s_endpgm")
        e("s_mul_i32 s3, s2, 12")
        e("s_add_u32 s3, s3, s18")
        e("s_lshl_b32 s3, s3, 7")
        e("s_add_u32 s3, s3, 0x1000000")
        e("v_lshl_add_u32 v2, v0, 2, s3")
        e("s_mov_b64 exec, 0xffffffff")
        e(f"global_store_dword v2, v{VST}, s[16:17]")
    e("L_END:")
    e("s_endpgm")
    return name, e.text(), kd(name, 168), (256, 768, LDS)

def build(opt, path):
    n, t, k, (g, b, lds) = gen(opt)
    ref = open(f"cdna_kernels/{NAME}.s.ref").read().split("\n")
    head = [l for l in ref if l.startswith(";") and "@launch" not in l and "Override launch" not in l and "grid=ceil" not in l]
    s = "\n".join(head[:10]) + "\n"
    s += f"; @launch grid=({g},1,1) block=({b},1,1) lds={lds}\n"
    s += '.amdgcn_target "amdgcn-amd-amdhsa--gfx950"\n.text\n'
    s += f".globl {n}\n.p2align 8\n.type {n},@function\n" + t
    s += '.section .rodata,"a"\n.p2align 6\n' + k
    open(path, "w").write(s)

if __name__ == "__main__":
    import sys, json
    opt = json.loads(sys.argv[2]) if len(sys.argv) > 2 else {}
    build(opt, sys.argv[1])
```

```python
from emit import *
from alloc import plan3, plan4

NAME = "parallel_sum__sliding_block__dense_activation_relu__prompt"
WS_KV, WS_H, WS_O = 0, 0x600000, 0xD00000
WS_RS = 0xF00000
WS_CS = 0xF10000
WS_EP = 0xF80000
WS_F1, WS_F1B, WS_F2, WS_F1H = 0xF90000, 0xFA0000, 0xFB0000, 0xFC0000
WS_BYTES = 0x1000000
EPC = 0x9E3779B9
L_ST = 158720
L_MISC = L_ST + 3072
LDS = L_MISC + 64
ORD2 = list(range(6, 16)) + list(range(6))
NEG = 0xf149f2ca
pk = lambda a: f"v[{a}:{a+1}]"
SW, S1, SX, SS, S2, SO = "s[28:31]", "s[32:35]", "s[36:39]", "s[40:43]", "s[44:47]", "s[48:51]"
VST = 167

def reduce32(e, regs, tmp):
    for ctl in ("quad_perm:[1,0,3,2]", "quad_perm:[2,3,0,1]", "row_half_mirror", "row_mirror"):
        e("s_nop 1")
        for r in regs: e(f"v_add_f32_dpp v{r}, v{r}, v{r} {ctl} row_mask:0xf bank_mask:0xf")
    for r, t in zip(regs, tmp): e(f"v_mov_b32 v{t}, v{r}")
    e("s_nop 1")
    for r, t in zip(regs, tmp): e(f"v_permlane16_swap_b32 v{r}, v{t}")
    e("s_nop 1")
    for r, t in zip(regs, tmp): e(f"v_add_f32 v{r}, v{r}, v{t}")

def gen(opt):
    e = Em()
    name = NAME + "_kernel"
    ST = opt.get("stamps")
    NB = 6
    NT = opt.get("nt", "")
    PL = opt.get("pl", 2)
    XA, W1A, W2A, FIN = plan3(PL, opt.get("w2l", 2), NB, opt.get("ust", 0))
    if not opt.get("ust", 0): XA, W1A, W2A, FIN = plan4(PL, NB, opt.get("w2t", 5))
    BREG = [FIN[f"B{j}"][1] for j in range(NB)]
    BT = [max(FIN[f"B{j}"][0], min(16, opt.get("bt0", 11) + j)) for j in range(NB)]
    L_K, L_V, L_Q, L_ONE = FIN["K"], FIN["V"], FIN["Q"], FIN["ONES"]
    def stamp(i, rt=False):
        if not ST: return
        e(("s_memrealtime" if rt else "s_memtime") + " s[100:101]")
        e("s_waitcnt lgkmcnt(0)")
        e(f"v_writelane_b32 v{VST}, s100, {i}")
    BK = opt.get("bk", [])
    def bstamp(k):
        if ST and k in BK: e(f"s_memtime s[{80+2*BK.index(k)}:{81+2*BK.index(k)}]")
    def bflush():
        if ST and BK:
            e("s_waitcnt lgkmcnt(0)")
            for i in range(len(BK)): e(f"v_writelane_b32 v{VST}, s{80+2*i}, {16+i}")
    uid = [0]
    def lab(p):
        uid[0] += 1
        return f"{p}_{uid[0]}"
    def apoll_issue(voff, soff, vd, tag):
        e.vmem(f"buffer_load_dword v{vd}, v{voff}, {SS}, {soff} offen sc1", tag)
    def apoll_check(voff, soff, vtag, vd, tag):
        D = lab("AOK")
        e.vwait(tag)
        e(f"v_cmp_ne_u32 vcc, v{vtag}, v{vd}")
        e("s_nop 1")
        e("s_cmp_eq_u64 vcc, 0")
        e(f"s_cbranch_scc1 {D}")
        keep = list(e.vm); keepl = list(e.lg)
        poll(voff, soff, vtag, vd)
        e.vm = keep; e.lg = keepl
        e(f"{D}:")
    def poll(voff, soff, vtag, vd):
        L, D = lab("POLL"), lab("POLLED")
        e("s_mov_b32 s63, 0x40000")
        e(f"{L}:")
        e(f"buffer_load_dword v{vd}, v{voff}, {SS}, {soff} offen sc1")
        e("s_waitcnt vmcnt(0) lgkmcnt(0)")
        e(f"v_cmp_ne_u32 vcc, v{vtag}, v{vd}")
        e("s_sub_u32 s63, s63, 1")
        e("s_cmp_eq_u32 s63, 0")
        e(f"s_cbranch_scc1 {D}")
        e("s_cmp_lg_u64 vcc, 0")
        e(f"s_cbranch_scc1 {L}")
        e(f"{D}:")
        e.vm = []; e.lg = []
    def ldswait(off, val, va, vb):
        L, D = lab("LW"), lab("LWOK")
        e(f"v_mov_b32 v{va}, {L_MISC}")
        e("s_mov_b32 s63, 0x400000")
        e(f"{L}:")
        e(f"ds_read_b32 v{vb}, v{va} offset:{off}")
        e("s_sub_u32 s63, s63, 1")
        e("s_waitcnt lgkmcnt(0)")
        e(f"v_readfirstlane_b32 s62, v{vb}")
        e("s_cmp_eq_u32 s63, 0")
        e(f"s_cbranch_scc1 {D}")
        e(f"s_cmp_ge_u32 s62, {val}")
        e(f"s_cbranch_scc1 {D}")
        e("s_sleep 1")
        e(f"s_branch {L}")
        e(f"{D}:")
        e.lg = []
    def ldsadd(off, va, vb):
        e(f"v_mov_b32 v{va}, {L_MISC}")
        e(f"v_mov_b32 v{vb}, 1")
        e("s_mov_b64 exec, 1")
        e(f"ds_add_u32 v{va}, v{vb} offset:{off}")
        e("s_mov_b64 exec, -1")
    def signal(coff, last, base, va=2, vb=3, vm=0):
        N = lab("NOFLAG")
        e(f"s_waitcnt vmcnt({vm})")
        e(f"v_mov_b32 v{va}, {L_MISC}")
        e(f"v_mov_b32 v{vb}, 1")
        e("s_mov_b64 exec, 1")
        e(f"ds_add_rtn_u32 v{vb}, v{va}, v{vb} offset:{coff}")
        e(f"s_add_u32 s62, s24, {base:#x}")
        e("s_waitcnt lgkmcnt(0)")
        e(f"v_readfirstlane_b32 s63, v{vb}")
        e(f"s_cmp_lg_u32 s63, {last}")
        e(f"s_cbranch_scc1 {N}")
        e(f"v_mov_b32 v{va}, 0")
        e(f"v_mov_b32 v{vb}, s61")
        e(f"buffer_store_dword v{vb}, v{va}, {SS}, s62 offen sc1")
        e(f"{N}:")
        e("s_mov_b64 exec, -1")
        e.lg = []

    e(f"{name}:")
    e("s_cmp_ge_u32 s2, 256")
    e("s_cbranch_scc1 L_END")
    stamp(0, True); stamp(1)
    e("s_load_dwordx4 s[4:7], s[0:1], 0")
    e("s_load_dwordx4 s[12:15], s[0:1], 32")
    e("s_load_dwordx2 s[16:17], s[0:1], 64")
    e("s_load_dwordx2 s[8:9], s[0:1], 16")
    e("s_load_dwordx2 s[10:11], s[0:1], 48")
    e("v_lshrrev_b32 v1, 6, v0")
    e("v_and_b32 v0, 63, v0")
    e("v_readfirstlane_b32 s18, v1")
    e("""s_and_b32 s3, s2, 1
    s_lshl_b32 s20, s3, 3
    s_lshr_b32 s24, s2, 5
    s_add_u32 s20, s20, s24
    s_bfe_u32 s21, s2, 0x20001
    s_bfe_u32 s22, s2, 0x20003
    s_lshl_b32 s23, s21, 2
    s_add_u32 s23, s23, s22
    s_lshl_b32 s24, s20, 4
    s_add_u32 s24, s24, s23
    s_lshl_b32 s24, s24, 7
    s_and_b32 s19, s18, 3
    s_lshl_b32 s3, s3, 2
    s_add_u32 s58, s3, s21
    s_lshl_b32 s58, s58, 2
    s_lshr_b32 s59, s2, 6
    s_add_u32 s58, s58, s59
    s_bfe_u32 s59, s2, 0x30003""")
    if opt.get("own", 1):
        e("s_lshl_b32 s58, s20, 1")
        e("s_lshr_b32 s59, s23, 3")
        e("s_add_u32 s58, s58, s59")
        e("s_and_b32 s59, s23, 7")
    e("s_waitcnt lgkmcnt(0)")
    if opt.get("wsoff"):
        e(f"s_add_u32 s16, s16, {opt['wsoff'] << 20:#x}")
        e("s_addc_u32 s17, s17, 0")
    srd(e, 36, 4, 2048 * 1024)
    srd(e, 28, 6, 512 * 3072)
    srd(e, 32, 12, 512 * 3584)
    srd(e, 40, 16, WS_BYTES)
    e("s_cmp_ge_u32 s18, 8")
    e("s_cbranch_scc1 L_UTIL")
    e("s_cmp_ge_u32 s18, 4")
    e("s_cbranch_scc1 L_CONS")

    e(f"""v_and_b32 v5, 7, v0
    v_lshrrev_b32 v2, 3, v0
    v_lshrrev_b32 v3, 4, v0
    v_xor_b32 v3, v3, v5
    v_lshlrev_b32 v2, 10, v2
    v_lshl_add_u32 v12, v3, 4, v2
    v_xor_b32 v13, 64, v12
    s_lshl_b32 s65, s20, 17
    s_lshl_b32 s3, s18, 15
    s_add_u32 s65, s65, s3
    s_lshl_b32 s67, s18, 12""")
    def issueX(P):
        e(f"s_add_u32 m0, s67, {XA[P]}")
        e(f"s_add_u32 s74, s65, {P*128}")
        for a in range(4):
            e.vmem(f"buffer_load_dwordx4 v{12+(a&1)}, {SX}, s74 offen offset:{a*1024} {NT} lds", ("x", P))
            if a < 3: e(f"s_add_u32 s74, s74, {8192-1024}")
    issueX(0)
    e("""v_lshrrev_b32 v2, 5, v0
    v_bfe_u32 v3, v0, 3, 2
    v_lshl_add_u32 v3, v2, 3, v3
    v_bfe_u32 v4, v0, 4, 2
    v_lshlrev_b32 v4, 1, v4
    v_xor_b32 v4, v4, v5
    v_lshlrev_b32 v4, 4, v4
    v_mul_u32_u24 v10, 3072, v3
    v_add_u32 v10, v10, v4
    v_mul_u32_u24 v11, 3584, v3
    v_add_u32 v11, v11, v4
    s_lshr_b32 s52, s18, 1
    s_lshl_b32 s52, s52, 5
    s_and_b32 s62, s18, 1
    s_lshl_b32 s3, s62, 2
    s_add_u32 s52, s52, s3
    s_lshl_b32 s3, s23, 7
    s_mul_i32 s53, s52, 3072
    s_add_u32 s53, s53, s3
    s_add_u32 s53, s53, 1024
    s_mul_i32 s54, s52, 3584
    s_add_u32 s54, s54, s3""")
    def issueW(c):
        for ah in range(2):
            e(f"s_add_u32 m0, s67, {W1A[c] + ah*2048}")
            e(f"s_add_u32 s74, s53, {(64*c + 16*ah)*3072}")
            e.vmem(f"buffer_load_dwordx4 v10, {SW}, s74 offen {NT} lds", ("w", c))
            e(f"s_add_u32 m0, s67, {W1A[c] + ah*2048 + 1024}")
            e(f"s_add_u32 s74, s54, {(64*c + 16*ah)*3584}")
            e.vmem(f"buffer_load_dwordx4 v11, {S1}, s74 offen {NT} lds", ("w", c))
    def esetup():
        e("""v_lshrrev_b32 v2, 4, v0
        v_bfe_u32 v3, v0, 2, 2
        v_lshl_add_u32 v3, v2, 3, v3
        v_mul_u32_u24 v16, 3072, v3
        v_and_b32 v2, 1, v2
        v_lshlrev_b32 v2, 1, v2
        v_and_b32 v3, 3, v0
        v_xor_b32 v2, v2, v3
        v_lshl_add_u32 v16, v2, 4, v16
        s_and_b32 s62, s18, 1
        s_lshl_b32 s3, s62, 7""")
        for j in range(2):
            e(f"""v_add_u32 v2, s3, v0
            v_add_u32 v2, {64*j}, v2
            v_mul_u32_u24 v3, 10923, v2
            v_lshrrev_b32 v3, 16, v3
            v_mul_u32_u24 v4, 6, v3
            v_sub_u32 v4, v2, v4
            v_bfe_u32 v6, v3, 2, 2
            v_lshlrev_b32 v6, 3, v6
            v_lshrrev_b32 v7, 4, v3
            v_lshl_add_u32 v6, v7, 2, v6
            v_and_b32 v7, 3, v3
            v_add_u32 v6, v6, v7
            v_mul_u32_u24 v{17+j}, 3584, v6
            v_lshl_add_u32 v{17+j}, v4, 4, v{17+j}""")
        e("""s_cmp_eq_u32 s62, 1
        s_cselect_b32 s3, 0x80000000, 0
        v_or_b32 v18, s3, v18
        s_lshr_b32 s3, s18, 1
        s_mul_i32 s55, s52, 3072
        s_lshl_b32 s64, s23, 6
        s_add_u32 s55, s55, s64
        s_mul_i32 s56, s3, 114688
        s_mul_i32 s64, s23, 96
        s_add_u32 s56, s56, s64
        s_add_u32 s56, s56, 2048
        s_mul_i32 s57, s3, 5120
        s_lshl_b32 s64, s62, 10
        s_add_u32 s60, s57, s64
        s_lshl_b32 s64, s62, 11
        s_add_u32 s57, s57, s64
        s_add_u32 s64, s57, 1024
        s_cmp_eq_u32 s62, 1
        s_cselect_b32 s64, 8192, s64""")
    def issueW2(c):
        p = ORD2[2 * c]
        base = W2A[c][1]
        e(f"s_add_u32 m0, s60, {base}")
        e(f"s_add_u32 s74, s55, {p*32*3072}")
        e.vmem(f"buffer_load_dwordx4 v16, {SW}, s74 offen {NT} lds", ("w2", c))
        e(f"s_add_u32 m0, s57, {base + 2048}")
        e(f"s_add_u32 s74, s56, {p*32*3584}")
        e.vmem(f"buffer_load_dwordx4 v17, {S1}, s74 offen {NT} lds", ("w2", c))
        e(f"s_add_u32 m0, s64, {base + 2048}")
        e("s_nop 0")
        e.vmem(f"buffer_load_dwordx4 v18, {S1}, s74 offen {NT} lds", ("w2", c))
    NF2, NS, NA = 14, 18, 4
    A0 = 20
    AF = lambda sg, tb, kk: A0 + (sg % NA) * 16 + (tb * 2 + kk) * 4
    ACB = A0 + NA * 16
    GACC = lambda tb, nb: ACB + (tb * 2 + nb) * 16
    BFB = ACB + 64
    BF = lambda kk, nb: BFB + (kk * 2 + nb) * 4
    assert BFB + 16 <= VST
    def gsetup():
        srd(e, 44, 14, 1792 * 1024)
        srd(e, 48, 8, 512 * 1024)
        e(f"""v_lshrrev_b32 v8, 3, v0
        v_bfe_u32 v2, v0, 4, 1
        v_lshlrev_b32 v2, 2, v2
        v_xor_b32 v9, v5, v2
        v_lshlrev_b32 v9, 4, v9
        v_lshl_add_u32 v14, v8, 10, v9
        v_lshrrev_b32 v2, 2, v8
        v_lshlrev_b32 v2, 3, v2
        v_and_b32 v8, 3, v8
        v_add_u32 v8, v8, v2
        v_lshl_add_u32 v15, v8, 10, v9
        v_lshlrev_b32 v1, 4, v0
        s_lshl_b32 s3, s59, 7
        s_lshl_b32 s70, s18, 18
        s_add_u32 s70, s70, s3
        s_mul_i32 s78, s18, {12*16*1024}
        s_add_u32 s78, s78, s3
        s_lshl_b32 s71, s18, 17
        s_add_u32 s71, s71, s3
        s_mul_i32 s72, s58, {2*112*1024}
        s_add_u32 s72, s72, {WS_H:#x}
        s_mul_i32 s79, s18, {12*1024}
        s_add_u32 s79, s79, s72
        s_lshl_b32 s3, s18, 14
        s_add_u32 s72, s72, s3
        s_lshl_b32 s73, s58, 16
        s_lshl_b32 s3, s18, 13
        s_add_u32 s73, s73, s3
        s_add_u32 s73, s73, {WS_O:#x}
        s_and_b32 s3, s58, 3
        s_cmp_eq_u32 s3, s18
        s_cselect_b32 s26, 1, 0
        s_cmp_eq_u32 s59, s18
        s_cselect_b32 s27, 1, 0
        s_add_u32 s3, s18, 4
        s_cmp_eq_u32 s59, s3
        s_cselect_b32 s21, 1, 0
        s_lshl_b32 s69, s58, 1
        s_add_u32 s69, s69, s59
        s_and_b32 s69, s69, {opt.get("rotm", 7)}
        s_sub_u32 s25, s69, 6
        s_cmp_ge_u32 s69, 6
        s_cselect_b32 s25, s25, s69""")
    KS = [(2 * i, False) for i in range(8)] + [(64 + 2 * i, True) for i in range(6)]
    ROT = opt.get("rot", 0)
    def ridx(sg):
        if sg < 8:
            e(f"s_add_u32 s68, s69, {sg}")
            e("s_and_b32 s68, s68, 7")
        elif sg < NF2:
            e(f"s_add_u32 s68, s25, {sg-8}")
            e("s_sub_u32 s3, s68, 6")
            e("s_cmp_ge_u32 s68, 6")
            e("s_cselect_b32 s68, s3, s68")
        else:
            e(f"s_add_u32 s68, s69, {sg-NF2}")
            e("s_and_b32 s68, s68, 3")
    def issueB(sg):
        if ROT:
            ridx(sg)
            e("s_lshl_b32 s68, s68, 15")
            e(f"s_add_u32 s68, s68, {'s70' if sg < 8 else 's78' if sg < NF2 else 's71'}")
        for a in range(4):
            e(f"s_add_u32 m0, s67, {BREG[sg % NB] + a*1024}")
            if sg < NF2:
                k16, ex = KS[sg]
                if ROT: e(f"s_add_u32 s74, s68, {((1024 if ex else 0) + 8*a)*1024}")
                else: e(f"s_add_u32 s74, {'s78' if ex else 's70'}, {(16*k16 + 8*a)*1024}")
                e.vmem(f"buffer_load_dwordx4 v14, {S2}, s74 offen lds", ("B", sg))
            else:
                if ROT: e(f"s_add_u32 s74, s68, {(16*(a>>1) + 4*(a&1))*1024}")
                else: e(f"s_add_u32 s74, s71, {(32*(sg-NF2) + 16*(a>>1) + 4*(a&1))*1024}")
                e.vmem(f"buffer_load_dwordx4 v15, {SO}, s74 offen lds", ("B", sg))
    def issueA(sg, tbs=(0, 1)):
        for tb in tbs:
            if sg < NF2:
                k16, ex = KS[sg]
                e(f"s_add_u32 s74, {'s79' if ex else 's72'}, {(tb*112 + k16)*1024}")
            else: e(f"s_add_u32 s74, s73, {(tb*32 + 2*(sg-NF2))*1024}")
            for kk in range(2):
                e.vmem(f"buffer_load_dwordx4 {vr(AF(sg,tb,kk),4)}, v1, {SS}, s74 offen offset:{kk*1024} sc1", ("A", sg))
    LEAD = opt.get("lead", 0)
    def either(sreg, lead_fn, foll_fn):
        L1, L2 = lab("LD"), lab("LE")
        e(f"s_cmp_lg_u32 {sreg}, 0")
        e(f"s_cbranch_scc1 {L1}")
        allk = list(e.act)
        e.act = [k for k in allk if sreg not in k]
        if foll_fn: foll_fn()
        e(f"s_branch {L2}")
        e(f"{L1}:")
        keep = list(e.vm)
        e.act = [k for k in allk if sreg in k]
        if lead_fn: lead_fn()
        e.vm = keep
        e.act = allk
        e(f"{L2}:")
    def gsetup2():
        e(f"""v_lshrrev_b32 v6, 5, v0
        v_lshlrev_b32 v6, 3, v6
        v_bfe_u32 v7, v0, 2, 2
        v_add_u32 v6, v6, v7
        v_lshlrev_b32 v6, 7, v6
        v_lshrrev_b32 v7, 1, v7
        v_lshl_add_u32 v6, v7, 6, v6
        v_bfe_u32 v7, v0, 4, 1
        v_lshl_add_u32 v6, v7, 5, v6
        v_and_b32 v7, 3, v0
        v_lshl_add_u32 v6, v7, 3, v6
        v_add_u32 v6, s67, v6
        v_xor_b32 v7, 64, v6
        v_add_u32 v8, 49152, v6
        v_add_u32 v9, 49152, v7
        v_mov_b32 v2, {L_MISC}
        ds_read_b32 v2, v2
        v_and_b32 v3, 3, v0
        v_lshlrev_b32 v3, 7, v3
        s_lshr_b32 s76, s58, 1
        s_lshl_b32 s76, s76, 11
        s_lshl_b32 s3, s18, 9
        s_add_u32 s76, s76, s3
        s_add_u32 s66, s76, {WS_F1H:#x}""")
        e("s_mov_b32 s75, 0")
        e("s_waitcnt lgkmcnt(0)")
    D = opt.get("gd", 3); DB = NB - 1; PS = opt.get("ps", 11); PB = 8 - D - 1
    GE = opt.get("ge", 15)
    def firstA(lo=0, hi=None):
        hi = D if hi is None else hi
        for sg in range(lo, hi):
            if LEAD & 2 and sg == hi - 1:
                for tb in range(2): either(("s27", "s21")[tb], lambda: issueA(sg, (tb,)), None)
            else: issueA(sg)
    issueW(0)
    for c in range(1, PL): issueX(c); issueW(c)
    for k in range(17):
        e.vwait([("w", k), ("x", k)] if k < 8 else [("w2", k - 8)])
        if k == 0: stamp(2)
        if k == 8: stamp(3)
        if k == 16: stamp(4)
        bstamp(k)
        if k == 16: bflush()
        e("s_barrier")
        if k + PL <= 7: issueX(k + PL); issueW(k + PL)
        if k == 1: gsetup()
        if k == 2: esetup()
        for c in range(8):
            if W2A[c][0] == k: issueW2(c)
        if k == 7 and any(W2A[c][0] == 7.5 for c in range(8)):
            ldswait(28, 4, 2, 3)
            for c in range(8):
                if W2A[c][0] == 7.5: issueW2(c)
        if k == 9: gsetup2()
        if k == GE - 2: apoll_issue(3, "s66", 4, "f1h")
        if k == GE:
            sk = lab("GLATE")
            e.vwait("f1h")
            e("v_cmp_ne_u32 vcc, v2, v4")
            e("s_nop 1")
            e("s_cmp_lg_u64 vcc, 0")
            e(f"s_cbranch_scc1 {sk}")
            keep = list(e.vm)
            firstA()
            e.vm = keep
            e("s_mov_b32 s75, 1")
            e(f"{sk}:")
        if k < 16:
            for j in range(NB):
                if BT[j] == k: issueB(j)
    if opt.get("gprio", 0): e(f"s_setprio {opt.get('gprio')}")
    for j in range(NB):
        if BT[j] >= 16: issueB(j)
    e("s_cmp_lg_u32 s75, 0")
    e("s_cbranch_scc1 L_GGO")
    keep = list(e.vm)
    poll(3, "s66", 2, 4)
    e.vm = keep
    if LEAD:
        assert GE > 16
        e.vm = []
        e.var_start([(b_, a_) for b_ in ("", "s26") for a_ in ("", "s27", "s21")])
    firstA()
    e("L_GGO:")
    stamp(5)
    def step(sg):
        if sg == opt.get("ghold", -1): ldswait(16, 8, 12, 13)
        e.vwait([("B", sg), ("A", sg)])
        reg = BREG[sg % NB]
        hi = reg // 49152
        off0 = reg - 49152 * hi
        for kk in range(2):
            for nb in range(2):
                for q in range(2):
                    e.lds(f"ds_read_b64_tr_b16 v[{BF(kk,nb)+2*q}:{BF(kk,nb)+2*q+1}], v{6+2*hi+nb} offset:{off0 + kk*2048 + q*512}", (kk, nb))
        if LEAD & 1:
            FB = opt.get("fb", 3)
            okb = lambda j: NB <= j < NS
            if okb(sg + DB) or okb(sg + FB):
                either("s26", (lambda: issueB(sg + DB)) if okb(sg + DB) else None, (lambda: issueB(sg + FB)) if okb(sg + FB) else None)
        elif NB <= sg + DB < NS: issueB(sg + DB)
        oka = lambda j: j < NF2 or (j < NS and sg > PS and j >= PS + 1 + D)
        if LEAD & 2:
            okf = lambda j: j < NF2 or (j < NS and sg > PS and j >= PS + D)
            for tb in range(2):
                if oka(sg + D) or okf(sg + D - 1):
                    either(("s27", "s21")[tb], (lambda: issueA(sg + D, (tb,))) if oka(sg + D) else None, (lambda: issueA(sg + D - 1, (tb,))) if okf(sg + D - 1) else None)
        elif oka(sg + D): issueA(sg + D)
        for kk in range(2):
            for nb in range(2):
                e.lwait((kk, nb))
                for tb in range(2):
                    acc = vr(GACC(tb, nb), 16)
                    cin = "0" if (sg == 0 and kk == 0) else acc
                    if opt.get("nogm") and (kk or nb): continue
                    e(f"v_mfma_f32_32x32x16_bf16 {acc}, {vr(BF(kk,nb),4)}, {vr(AF(sg,tb,kk),4)}, {cin}")
    for sg in range(PS + 1):
        if sg == PB - 1 or sg == PS - 1:
            e(f"s_add_u32 s66, s76, {(WS_F1B if sg == PB - 1 else WS_F2):#x}")
            apoll_issue(3, "s66", 4, "fl")
        step(sg)
        if sg == PB:
            stamp(6)
            apoll_check(3, "s66", 2, 4, "fl")
    stamp(7)
    apoll_check(3, "s66", 2, 4, "fl")
    stamp(8)
    firstA(NF2, min(NS, PS + 1 + D))
    for sg in range(PS + 1, NS): step(sg)
    e.var = None
    stamp(9)
    e("""v_and_b32 v12, 31, v0
    v_lshlrev_b32 v12, 7, v12
    v_lshrrev_b32 v13, 5, v0
    v_xor_b32 v13, v13, v5
    v_lshl_add_u32 v12, v13, 4, v12
    v_add_u32 v12, s67, v12""")
    for nb in range(2):
        for a in range(4): e(f"v_xor_b32 v{20+nb*4+a}, {((2*a) ^ nb)*16}, v12")
    for tb in range(2):
        for nb in range(2):
            for a in range(4): e(f"v_add_u32 v{28+(tb*2+nb)*4+a}, {BREG[tb*2+nb]}, v{20+nb*4+a}")
    for tb in range(2):
        for nb in range(2):
            for a in range(4): e(f"ds_write_b128 v{28+(tb*2+nb)*4+a}, {vr(GACC(tb,nb)+4*a,4)}")
    e("s_waitcnt lgkmcnt(0)")
    stamp(10)
    e("s_barrier")
    if ST: e("s_branch L_DUMP")
    e("s_endpgm")

    e("L_CONS:")
    e.vm = []; e.lg = []
    LA = opt.get("la", 5); NFB = 6
    F = lambda f: 8 + (f % NFB) * 4
    XF = lambda n, r: 32 + ((n & 1) * 2 + r) * 4
    XK = lambda p, r: 48 + (p * 2 + r) * 4
    ACC = lambda s, r: 96 + (s * 2 + r) * 4
    AW = [1, 2, 3, 4]; AX = [7, 5]
    e(f"""v_lshrrev_b32 v8, 2, v0
    v_lshrrev_b32 v9, 3, v8
    v_lshlrev_b32 v9, 11, v9
    v_and_b32 v10, 7, v8
    v_lshl_add_u32 v9, v10, 7, v9
    v_and_b32 v10, 3, v0
    v_lshlrev_b32 v10, 3, v10
    v_add_u32 v9, v9, v10
    v_bfe_u32 v11, v0, 3, 2
    v_lshl_add_u32 v1, v11, 5, v9
    v_add_u32 v1, {W1A[0]}, v1
    v_xor_b32 v2, 32, v1
    v_xor_b32 v3, 64, v1
    v_xor_b32 v4, 96, v1
    v_and_b32 v8, 15, v0
    v_lshrrev_b32 v9, 4, v0
    v_lshrrev_b32 v10, 1, v8
    v_xor_b32 v9, v9, v10
    v_lshlrev_b32 v8, 7, v8
    v_lshl_add_u32 v7, v9, 4, v8
    s_lshl_b32 s3, s19, 12
    s_add_u32 s3, s3, {XA[0]}
    v_add_u32 v7, s3, v7
    v_xor_b32 v5, 64, v7""")
    if opt.get("cprio", 0): e(f"s_setprio {opt.get('cprio')}")
    cur = {"w": W1A[0], "x": XA[0]}
    UST = opt.get("ust", 0)
    DEF = []; NST = [0]; TIM = 0 if UST else opt.get("tim", 2)
    def move(kind, regs, addr):
        d = addr - cur[kind]
        if d:
            for a in regs: e(f"v_add_u32 v{a}, {d & 0xffffffff:#x}, v{a}")
        cur[kind] = addr
    def gemm(ps):
        NSB = 8 if ps == 1 else 5
        NF = 16 * NSB
        kst = (lambda n: n) if ps == 1 else (lambda n: ORD2[n])
        xreg = lambda n, r: XK(kst(n), r) if kst(n) < 6 else XF(n, r)
        def rd(f):
            n, s = divmod(f, NSB)
            for q in range(2):
                if ps == 1:  a, off = AW[s & 3], (n & 1) * 8192 + q * 4096 + (s >> 2) * 1024
                elif s < 2:  a, off = AW[s], (n & 1) * 5120 + q * 1024
                else:        a, off = AW[2], (n & 1) * 5120 + 2048 + q * 1536 + (s - 2) * 32
                yield f"ds_read_b64_tr_b16 v[{F(f)+2*q}:{F(f)+2*q+1}], v{a} offset:{off}"
        def kswitch(n):
            if n % 2 == 0:
                if ps == 1: move("w", AW, W1A[n // 2])
                else:       move("w", AW[:3], W2A[n // 2][1])
                bstamp(8 * (ps - 1) + n // 2)
                e("s_barrier")
                if ps == 2 and not UST:
                    for _ in range(opt.get("tper", 2)):
                        if DEF:
                            for x in DEF.pop(0):
                                if opt.get("nost1") and "buffer_store" in x: continue
                                e(x.replace(" sc1", "") if opt.get("plain1") else x)
                            NST[0] += 1
                    if n // 2 == opt.get("sgk", 3):
                        bstamp(20); signal(4, 3, WS_F1, 164, 165, max(0, NST[0] - 4)); bstamp(21)
                    if n // 2 == opt.get("sgh", 5):
                        assert not DEF
                        bstamp(22); signal(24, 3, WS_F1H, 164, 165); bstamp(23)
            if NSB > LA or n < 2: xread(n)
        def xread(n):
            p = kst(n)
            if ps == 1 or p >= 6:
                move("x", AX, XA[p >> 1])
                for r in range(2): e.lds(f"ds_read_b128 {vr(xreg(n,r),4)}, v{AX[p&1]} offset:{r*2048}", ("x", n))
        kswitch(0)
        if ps == 1: stamp(2)
        for f in range(LA):
            if f and f % NSB == 0: kswitch(f // NSB)
            for r_ in rd(f): e.lds(r_, f)
        for f in range(NF):
            n, s = divmod(f, NSB)
            nxt = f + LA
            if nxt < NF and nxt % NSB == 0: kswitch(nxt // NSB)
            if NSB <= LA and s == 0 and 1 <= n < 15: xread(n + 1)
            e.lwait([f, ("x", n)])
            if ps == 2 and f == NF - 1: e("s_barrier")
            rds = list(rd(nxt)) if nxt < NF else [None, None]
            for r in range(2):
                acc = vr(ACC(s, r), 4)
                e(f"v_mfma_f32_16x16x32_bf16 {acc}, {vr(F(f),4)}, {vr(xreg(n,r),4)}, {'0' if n == 0 else acc}")
                if rds[r]: e.lds(rds[r], nxt)
    RS = lambda r: 160 + 2 * r
    RQ = lambda r: 32 + 2 * r
    TT = 8
    CSR = [24, 28]
    def epilogue(ps):
        order = ([5, 6, 7, 2, 3, 4, 0, 1] if TIM else list(range(8))) if ps == 1 else [0, 1, 2, 3, 4]
        dd = {}
        loc = lambda s: s if ps == 1 else 8 + s
        if ps == 1:
            ldsadd(28, 8, 9)
            ldswait(20, 1, 8, 9)
        e(f"""v_and_b32 v16, 15, v0
        v_lshrrev_b32 v17, 4, v0
        s_lshl_b32 s3, s19, 9
        s_add_u32 s3, s3, {L_ST}
        v_lshl_add_u32 v8, v16, 4, s3
        v_lshlrev_b32 v164, 4, v17
        v_add_u32 v164, {L_ST+2048}, v164
        v_mov_b32 v10, {L_MISC}""")
        if ps == 1:
            for r in range(2): e.lds(f"ds_read_b64 {pk(RS(r))}, v8 offset:{256*r}", "st")
            e.lds("ds_read_b32 v10, v10", "st")
        def csread(n):
            if n < len(order): e.lds(f"ds_read_b128 {vr(CSR[n%2],4)}, v164 offset:{64*loc(order[n])}", ("cs", n))
        csread(0)
        e("v_lshlrev_b32 v166, 4, v0")
        if ps == 1:
            e(f"""s_lshl_b32 s64, s20, 2
            s_add_u32 s64, s64, s19
            s_lshl_b32 s65, s23, 8
            s_add_u32 s65, s65, s64
            s_lshl_b32 s65, s65, 10
            s_mul_i32 s66, s64, 112
            s_mul_i32 s67, s23, 3
            s_add_u32 s67, s67, s66
            s_add_u32 s67, s67, 64
            s_lshl_b32 s67, s67, 10
            s_lshl_b32 s3, s23, 2
            s_add_u32 s66, s66, s3
            s_lshl_b32 s66, s66, 10
            s_add_u32 s66, s66, {WS_H:#x}
            s_add_u32 s67, s67, {WS_H:#x}""")
            if UST:
                e("s_lshl_b32 s3, s19, 12")
                e("v_add_u32 v36, s3, v166")
                e(f"v_add_u32 v37, {W1A[7]}, v36")
                e(f"v_add_u32 v36, {W1A[6]}, v36")
            e.lwait("st")
            e("v_readfirstlane_b32 s61, v10")
        else:
            e("s_mov_b32 s3, 0x3eb8aa3b")
            for q in range(4): e(f"v_mul_f32 v{32+q}, s3, v{160+q}")
            e("s_lshl_b32 s3, s19, 10")
            e(f"s_add_u32 s3, s3, {L_Q}")
            e("v_add_u32 v36, s3, v166")
        for n, s in enumerate(order):
            T = 16 + 4 * (n % 2)
            stg = ps == 1 and UST
            dfr = ps == 1 and TIM and s >= 2 and not UST
            if dfr: T = ACC(s, 0) if s >= 5 else ACC(s + 3, 1)
            isQ = ps == 2 and s < 2
            isH = (ps == 1 and s >= 4) or (ps == 2 and s >= 2)
            if stg and s == 4: ldswait(28, 4, 38, 39)
            e.lwait(("cs", n))
            c = CSR[n % 2]
            csread(n + 1)
            if opt.get("xnop"): e("s_nop 3")
            if ps == 2 and opt.get("nopk", 1):
                for r in range(2):
                    sp = RQ(r) if isQ else RS(r)
                    for j in range(4): e(f"v_mul_f32 v{TT+4*r+j}, v{c+j}, v{sp+1}")
                for r in range(2):
                    sp = RQ(r) if isQ else RS(r)
                    for j in range(4): e(f"v_fmac_f32 v{TT+4*r+j}, v{ACC(s,r)+j}, v{sp}")
            else:
                for r in range(2):
                    sp = RQ(r) if isQ else RS(r)
                    for h in range(2):
                        e(f"v_pk_mul_f32 {pk(TT+4*r+2*h)}, {pk(c+2*h)}, {pk(sp)} op_sel:[0,1] op_sel_hi:[1,1]")
                for r in range(2):
                    sp = RQ(r) if isQ else RS(r)
                    for h in range(2):
                        t = TT + 4 * r + 2 * h
                        e(f"v_pk_fma_f32 {pk(t)}, {pk(ACC(s,r)+2*h)}, {pk(sp)}, {pk(t)} op_sel_hi:[1,0,1]")
            for r in range(2):
                for h in range(2):
                    t = TT + 4 * r + 2 * h
                    e(f"v_cvt_pk_bf16_f32 v{T+2*r+h}, v{t}, v{t+1}")
            if isQ or stg: sa = "s_nop 0"
            elif ps == 2: sa = f"s_add_u32 s3, s67, {(s-2)*1024}"
            elif s < 4: sa = f"s_add_u32 s3, s65, {WS_KV + s*0x10000:#x}"
            else: sa = f"s_add_u32 s3, s66, {(s-4)*1024}"
            e("s_nop 2")
            e(f"v_permlane16_swap_b32 v{T}, v{T+2}")
            e(f"v_permlane16_swap_b32 v{T+1}, v{T+3}")
            e(sa if not dfr else "s_nop 0")
            e("s_nop 0")
            if isH:
                for q in (0, 2, 1, 3): e(f"v_pk_max_i16 v{T+q}, v{T+q}, 0")
            if isQ:
                e.lds(f"ds_write_b128 v36, {vr(T,4)} offset:{s*4096}", "qw")
                if s == 1:
                    e.lwait_all()
                    ldsadd(16, 37, 38)
            elif stg: e.lds(f"ds_write_b128 v{36 + (s >> 2)}, {vr(T,4)} offset:{(s&3)*1024}", "qw")
            elif dfr: dd[s] = [sa, f"buffer_store_dwordx4 {vr(T,4)}, v166, {SS}, s3 offen sc1"]
            else:
                e(f"buffer_store_dwordx4 {vr(T,4)}, v166, {SS}, s3 offen sc1")
                NST[0] += 1
        for s in sorted(dd): DEF.append(dd[s])
    gemm(1)
    stamp(3)
    epilogue(1)
    e(f"""v_lshrrev_b32 v8, 2, v0
    v_and_b32 v10, 3, v0
    v_lshlrev_b32 v10, 3, v10
    v_lshl_add_u32 v1, v8, 6, v10
    v_bfe_u32 v11, v0, 4, 1
    v_lshl_add_u32 v1, v11, 5, v1
    v_add_u32 v1, {W2A[0][1]}, v1
    v_xor_b32 v2, 32, v1
    v_mul_u32_u24 v3, 96, v8
    v_add_u32 v3, v3, v10
    v_add_u32 v3, {W2A[0][1]}, v3""")
    cur["w"] = W2A[0][1]
    e.lwait_all()
    stamp(4)
    gemm(2)
    bflush()
    stamp(5)
    epilogue(2)
    e("s_mov_b32 s96, s19")
    e("s_mov_b32 s97, 1")
    e("s_branch L_ATT")

    e("L_UTIL:")
    e.vm = []; e.lg = []
    if opt.get("uprio0", 3): e(f"s_setprio {opt.get('uprio0', 3)}")
    L0, U, A, CL, C0, C1, VE = 16, 24, 40, 48, 64, 72, 80
    e("v_and_b32 v5, 7, v0")
    if opt.get("pfc", 1):
        sk = lab("NOPC")
        e("s_cmp_lg_u32 s19, 3")
        e(f"s_cbranch_scc1 {sk}")
        e("s_getpc_b64 s[64:65]")
        e("L_PCREF:")
        e(f"s_sub_u32 s64, s64, L_PCREF-{name}")
        e("s_subb_u32 s65, s65, 0")
        e("s_lshr_b32 s66, s2, 3")
        e("s_mul_i32 s66, s66, (L_END-%s+4095)/4096*128" % name)
        e("v_lshlrev_b32 v2, 7, v0")
        e("v_add_u32 v2, s66, v2")
        e("v_mov_b32 v3, s65")
        e("v_add_co_u32 v2, vcc, s64, v2")
        e("s_nop 1")
        e("v_addc_co_u32 v3, vcc, 0, v3, vcc")
        e("v_cmp_gt_u32 vcc, (L_END-%s+4095)/4096, v0" % name)
        e("s_nop 1")
        e("s_and_saveexec_b64 s[66:67], vcc")
        e("global_load_dword v163, v[2:3], off")
        e("s_mov_b64 exec, -1")
        e(f"{sk}:")
    PFU = opt.get("pfu", 0)
    def pf_x():
        e("""v_and_b32 v2, 31, v0
        v_lshlrev_b32 v2, 10, v2
        v_lshrrev_b32 v3, 5, v0
        v_lshl_add_u32 v2, v3, 7, v2
        s_lshl_b32 s64, s20, 17
        s_lshl_b32 s65, s22, 15
        s_add_u32 s64, s64, s65
        s_lshl_b32 s65, s19, 8
        s_add_u32 s64, s64, s65""")
        e(f"buffer_load_dword v160, v2, {SX}, s64 offen")
    def pf_w():
        L1, L2, L3, LD = lab("PW"), lab("PW"), lab("PW"), lab("PW")
        e("""s_and_b32 s64, s20, 7
        v_lshlrev_b32 v2, 3, v0
        v_add_u32 v2, s64, v2
        v_mul_u32_u24 v3, 3584, v2
        v_mul_u32_u24 v2, 3072, v2
        s_lshl_b32 s64, s23, 7""")
        e("s_cmp_eq_u32 s19, 1"); e(f"s_cbranch_scc1 {L1}")
        e("s_cmp_eq_u32 s19, 3"); e(f"s_cbranch_scc1 {L3}")
        e("s_add_u32 s65, s64, 1024")
        e("s_lshr_b32 s64, s64, 1")
        e("s_cmp_eq_u32 s19, 0")
        e("s_cselect_b32 s64, s65, s64")
        e(f"buffer_load_dword v161, v2, {SW}, s64 offen")
        e(f"s_branch {LD}")
        e(f"{L3}:")
        e("s_mul_i32 s64, s23, 96")
        e("s_add_u32 s64, s64, 2048")
        e(f"buffer_load_dword v162, v3, {S1}, s64 offen offset:92")
        e(f"{L1}:")
        e(f"buffer_load_dword v161, v3, {S1}, s64 offen")
        e(f"{LD}:")
    if PFU == 1: pf_x(); pf_w()
    e(f"v_mov_b32 v{VE}, 0")
    e(f"s_mov_b32 s3, {WS_EP:#x}")
    e.vmem(f"buffer_load_dword v{VE}, v{VE}, {SS}, s3 offen sc1", "rs")
    e(f"""v_lshrrev_b32 v4, 5, v0
    v_and_b32 v6, 31, v0
    v_lshlrev_b32 v6, 4, v6
    v_lshl_add_u32 v6, v4, 10, v6
    v_lshlrev_b32 v{VE+1}, 4, v4
    s_lshl_b32 s64, s20, 7
    s_lshl_b32 s65, s23, 3
    s_add_u32 s64, s64, s65
    s_lshl_b32 s65, s19, 1
    s_add_u32 s64, s64, s65
    s_lshl_b32 s65, s64, 10""")
    e.vmem(f"buffer_load_dwordx4 {vr(L0,4)}, v6, {SX}, s65 offen", "rs")
    e.vmem(f"buffer_load_dwordx4 {vr(L0+4,4)}, v6, {SX}, s65 offen offset:512", "rs")
    e("""s_add_u32 s66, s23, 8
    s_add_u32 s67, s23, 24
    s_cmp_eq_u32 s19, 1
    s_cselect_b32 s66, s67, s66
    s_add_u32 s67, s23, 32
    s_cmp_lt_u32 s23, 8
    s_cselect_b32 s67, s23, s67
    s_cmp_eq_u32 s19, 2
    s_cselect_b32 s66, s67, s66
    s_add_u32 s67, s23, 48
    s_cmp_eq_u32 s19, 3
    s_cselect_b32 s66, s67, s66
    v_lshrrev_b32 v2, 3, v0
    v_lshlrev_b32 v3, 4, v5
    s_cmp_ge_u32 s66, 52
    s_cbranch_scc1 L_CSD
    s_lshl_b32 s67, s66, 7
    s_cmp_ge_u32 s66, 24
    s_cbranch_scc1 L_CSW
    v_mul_u32_u24 v4, 3072, v2
    v_add_u32 v4, v4, v3""")
    e(f"s_mul_i32 s68, s20, {32*3072}")
    e("s_add_u32 s68, s68, s67")
    for t in range(4):
        e(f"buffer_load_dwordx4 {vr(CL+4*t,4)}, v4, {SW}, s68 offen")
        if t < 3: e(f"s_add_u32 s68, s68, {8*3072}")
    e("s_branch L_CSD")
    e("L_CSW:")
    e("v_mul_u32_u24 v4, 3584, v2")
    e("v_add_u32 v4, v4, v3")
    e(f"s_mul_i32 s68, s20, {32*3584}")
    e("s_add_u32 s68, s68, s67")
    e(f"s_sub_u32 s68, s68, {24*128}")
    for t in range(4):
        e(f"buffer_load_dwordx4 {vr(CL+4*t,4)}, v4, {S1}, s68 offen")
        if t < 3: e(f"s_add_u32 s68, s68, {8*3584}")
    e("L_CSD:")
    if PFU == 2:
        e("s_mov_b32 s74, s64")
        pf_x(); pf_w()
        e("s_mov_b32 s64, s74")
    e(f"""s_mov_b32 s69, 0xffff0000
    s_mov_b32 s70, 0x3b000000
    s_lshl_b32 s64, s64, 4
    s_add_u32 s64, s64, {WS_RS:#x}
    v_lshlrev_b32 v14, 4, v0
    s_lshl_b32 s71, s23, 8
    s_add_u32 s72, s71, {512*4}
    v_add_u32 v15, s72, v14
    s_add_u32 s72, s71, {1536*4 - 256}
    v_add_u32 v2, s72, v14
    v_cmp_le_u32 vcc, 16, v0
    s_lshl_b32 s72, s23, 7
    s_sub_u32 s72, s72, 512
    v_cndmask_b32 v15, v15, v2, vcc
    v_add_u32 v2, s72, v14
    v_cmp_le_u32 vcc, 32, v0
    s_mul_i32 s72, s23, 192
    s_add_u32 s72, s72, {2560*4 - 640}
    v_cndmask_b32 v15, v15, v2, vcc
    v_min_u32 v2, 51, v0
    v_lshlrev_b32 v2, 4, v2
    v_add_u32 v2, s72, v2
    v_cmp_le_u32 vcc, 40, v0
    s_nop 1
    v_cndmask_b32 v15, v15, v2, vcc""")
    def piece(n):
        if n == 0:
            e("s_cmp_ge_u32 s66, 52")
            e("s_cbranch_scc1 L_P0A")
            e(f"s_waitcnt vmcnt({4 + (2 if PFU == 2 else 0)})")
            e("s_branch L_P0B")
            e("L_P0A:")
            e(f"s_waitcnt vmcnt({2 if PFU == 2 else 0})")
            e("L_P0B:")
            for q in range(8):
                e(f"v_lshlrev_b32 v{U+2*q}, 16, v{L0+q}")
                e(f"v_and_b32 v{U+2*q+1}, s69, v{L0+q}")
            for q in range(4): e(f"v_add_f32 v{A+q}, v{U+q}, v{U+4+q}")
            for t in range(2, 4):
                for q in range(4): e(f"v_add_f32 v{A+q}, v{A+q}, v{U+4*t+q}")
            e(f"v_add_f32 v{A}, v{A}, v{A+1}")
            e(f"v_add_f32 v{A+2}, v{A+2}, v{A+3}")
            e(f"v_add_f32 v{A}, v{A}, v{A+2}")
            reduce32(e, [A], [A + 1])
            e(f"v_mul_f32 v{A}, s70, v{A}")
            e(f"v_add_u32 v{A+6}, {EPC:#x}, v{VE}")
            e(f"v_mov_b32 v2, {L_MISC}")
            e("v_mov_b32 v3, 0")
            e(f"ds_write_b32 v2, v{A+6}")
            for o in (4, 8, 12, 16, 20, 24, 28): e(f"ds_write_b32 v2, v3 offset:{o}")
        if n == 1:
            for q in range(16): e(f"v_sub_f32 v{U+q}, v{U+q}, v{A}")
            for q in range(4): e(f"v_mul_f32 v{L0+q}, v{U+q}, v{U+q}")
            for q in range(4, 16): e(f"v_fmac_f32 v{L0+(q&3)}, v{U+q}, v{U+q}")
            e(f"v_add_f32 v{L0}, v{L0}, v{L0+1}")
            e(f"v_add_f32 v{L0+2}, v{L0+2}, v{L0+3}")
            e(f"v_add_f32 v{A+4}, v{L0}, v{L0+2}")
            reduce32(e, [A + 4], [A + 5])
            e(f"v_mov_b32 v{A+5}, 0x3727c5ac")
            e(f"v_fma_f32 v{A+4}, v{A+4}, s70, v{A+5}")
            e(f"v_rsq_f32 v{A+4}, v{A+4}")
            e(f"v_readfirstlane_b32 s61, v{A+6}")
            e(f"v_mov_b32 v{A+7}, v{A+6}")
            e(f"v_mul_f32 v{A+5}, v{A}, v{A+4}")
            e(f"v_sub_f32 v{A+5}, 0, v{A+5}")
            e("s_mov_b32 exec_lo, 1")
            e("s_mov_b32 exec_hi, 1")
            e(f"buffer_store_dwordx4 {vr(A+4,4)}, v{VE+1}, {SS}, s64 offen sc1")
            e("s_mov_b64 exec, -1")
        if n == 2:
            e(f"s_waitcnt vmcnt({1 + (2 if PFU == 2 else 0)})")
            for q in range(4):
                e(f"v_lshlrev_b32 v{C0+2*q}, 16, v{CL+q}")
                e(f"v_and_b32 v{C0+2*q+1}, s69, v{CL+q}")
            for t in range(1, 4):
                for q in range(4):
                    e(f"v_lshlrev_b32 v{C1+2*q}, 16, v{CL+4*t+q}")
                    e(f"v_and_b32 v{C1+2*q+1}, s69, v{CL+4*t+q}")
                for q in range(8): e(f"v_add_f32 v{C0+q}, v{C0+q}, v{C1+q}")
            e("s_nop 1")
            for q in range(8): e(f"v_add_f32_dpp v{C0+q}, v{C0+q}, v{C0+q} row_ror:8 row_mask:0xf bank_mask:0xf")
            e("s_mov_b32 s72, 0xff00ff00")
            e("s_mov_b32 s73, 0xff00ff00")
            for q in range(4): e(f"v_cndmask_b32 v{C0+q}, v{C0+q}, v{C0+4+q}, s[72:73]")
            for sw in ("v_permlane16_swap_b32", "v_permlane32_swap_b32"):
                for q in range(4): e(f"v_mov_b32 v{C1+q}, v{C0+q}")
                e("s_nop 0")
                for q in range(4): e(f"{sw} v{C0+q}, v{C1+q}")
                for q in range(4): e(f"v_add_f32 v{C0+q}, v{C0+q}, v{C1+q}")
            e("s_mov_b32 s71, 0xff")
            e(f"v_bfe_u32 v{C1+2}, v0, 3, 1")
            for q in range(4): e(f"v_bfi_b32 v{C0+q}, s71, v{A+6}, v{C0+q}")
            e(f"v_lshlrev_b32 v{C1+1}, 5, v5")
            e(f"v_lshl_add_u32 v{C1+1}, v{C1+2}, 4, v{C1+1}")
            e(f"s_mul_i32 s71, s20, {3328*4}")
            e("s_lshl_b32 s72, s66, 8")
            e("s_add_u32 s71, s71, s72")
            e(f"s_add_u32 s71, s71, {WS_CS:#x}")
            e("s_cmp_ge_u32 s66, 52")
            e("s_cbranch_scc1 L_P2S")
            e("s_mov_b64 exec, 0xffff")
            e(f"buffer_store_dwordx4 {vr(C0,4)}, v{C1+1}, {SS}, s71 offen sc1")
            e("s_mov_b64 exec, -1")
            e("L_P2S:")
    def kvsetup():
        e(f"""v_and_b32 v10, 3, v0
        v_min_u32 v10, 2, v10
        s_sub_u32 s76, s20, 2
        v_add_u32 v10, s76, v10
        v_max_i32 v10, 0, v10
        v_lshlrev_b32 v10, 11, v10
        v_bfe_u32 v11, v0, 2, 1
        v_lshl_add_u32 v10, v11, 10, v10
        s_lshr_b32 s76, s23, 1
        s_lshl_b32 s76, s76, 7
        s_add_u32 s76, s76, {WS_F1:#x}
        v_mov_b32 v11, s61
        v_lshlrev_b32 v1, 4, v0
        s_lshr_b32 s52, s19, 1
        s_lshl_b32 s53, s23, 1
        s_add_u32 s53, s53, s52
        s_lshl_b32 s53, s53, 6
        s_and_b32 s54, s19, 1
        s_mul_i32 s54, s54, 6
        s_lshl_b32 s55, s20, 2
        s_add_u32 s54, s54, s55
        s_mul_i32 s55, s19, 6144""")
    def kvdma():
        for t in range(6):
            e(f"s_add_u32 s68, s54, {t}")
            e("s_sub_i32 s68, s68, 8")
            e("s_max_i32 s68, s68, 0")
            e("s_add_u32 s68, s68, s53")
            e("s_lshl_b32 s68, s68, 10")
            e(f"s_add_u32 m0, s55, {L_K + t*1024}")
            e("s_add_u32 s69, s68, 0x200000")
            e(f"buffer_load_dwordx4 v1, {SS}, s68 offen sc1 lds")
            e(f"s_add_u32 m0, s55, {L_V + t*1024}")
            e("s_nop 0")
            e(f"buffer_load_dwordx4 v1, {SS}, s69 offen sc1 lds")
    G0 = 84
    def gather():
        e(f"s_mov_b32 s71, {WS_CS:#x}")
        for g in range(16):
            e(f"buffer_load_dwordx4 {vr(G0+4*g,4)}, v15, {SS}, s71 offen sc1")
            e(f"s_add_u32 s71, s71, {3328*4}")
        e("s_lshl_b32 s71, s20, 11")
        e(f"s_add_u32 s71, s71, {WS_RS:#x}")
        for h in range(2):
            e(f"buffer_load_dwordx4 {vr(G0+64+4*h,4)}, v14, {SS}, s71 offen offset:{h*1024} sc1")
    PK = opt.get("pk", [0, 0, 1]); GK = opt.get("gk", 4); CK = opt.get("ck", 6)
    for n_, kk_ in enumerate(PK):
        if kk_ < 0: piece(n_)
    for k in range(16):
        if k == 2: e("s_waitcnt lgkmcnt(0)")
        bstamp(k)
        e("s_barrier")
        for n_, kk_ in enumerate(PK):
            if kk_ == k: piece(n_)
        KVK = opt.get("kvk", 14)
        if k == 8:
            kvsetup()
            e("s_mov_b32 s77, 0")
        if k == KVK - 1: e(f"buffer_load_dword v4, v10, {SS}, s76 offen sc1")
        if k == KVK:
            sk = lab("KVLATE")
            e("s_waitcnt vmcnt(0)")
            e("v_cmp_ne_u32 vcc, v11, v4")
            e("s_nop 1")
            e("s_cmp_lg_u64 vcc, 0")
            e(f"s_cbranch_scc1 {sk}")
            kvdma()
            e("s_mov_b32 s77, 1")
            e(f"{sk}:")
        PW0 = opt.get("pfw", 0)
        if PW0 and PW0 <= k < 16:
            if k == PW0:
                srd(e, 44, 14, 1792 * 1024)
                srd(e, 48, 8, 512 * 1024)
                e("s_lshr_b32 s78, s2, 3")
                e("s_mul_i32 s79, s78, 57344")
                e("s_mul_i32 s3, s19, 14336")
                e("s_add_u32 s79, s79, s3")
                e("s_lshl_b32 s78, s78, 14")
                e("s_lshl_b32 s3, s19, 12")
                e("s_add_u32 s78, s78, s3")
            per = -(-18 // (opt.get("pfwe", 16) - PW0))
            for j in range(per * (k - PW0), min(18, per * (k - PW0 + 1))):
                if j < 14:
                    e(f"s_add_u32 s3, s79, {j*1024}")
                    e(f"buffer_load_dwordx4 v[120:123], v14, {S2}, s3 offen")
                else:
                    e(f"buffer_load_dwordx4 v[120:123], v14, {SO}, s78 offen offset:{(j-14)*1024}")
        if opt.get("pfl2", 0) and 8 <= k <= 10:
            if k == 8:
                srd(e, 44, 14, 1792 * 1024)
                srd(e, 48, 8, 512 * 1024)
                e("v_lshlrev_b32 v12, 7, v0")
                e("s_lshr_b32 s78, s2, 3")
            j = k - 8
            sk = lab("NOP2")
            if j < 2:
                e("s_mul_i32 s71, s78, 57344")
                e("s_lshl_b32 s72, s19, 13")
                e("s_add_u32 s71, s71, s72")
                if j == 1:
                    e("s_cmp_eq_u32 s19, 3")
                    e(f"s_cbranch_scc1 {sk}")
                    e("s_add_u32 s71, s71, 32768")
                e(f"buffer_load_dword v13, v12, {S2}, s71 offen")
            else:
                e("s_cmp_ge_u32 s19, 2")
                e(f"s_cbranch_scc1 {sk}")
                e("s_lshl_b32 s71, s78, 14")
                e("s_lshl_b32 s72, s19, 13")
                e("s_add_u32 s71, s71, s72")
                e(f"buffer_load_dword v13, v12, {SO}, s71 offen")
            e(f"{sk}:")
        if UST and k == 8:
            e(f"""s_lshl_b32 s3, s19, 12
            v_add_u32 v2, s3, v14
            v_add_u32 v3, {W1A[7]}, v2
            v_add_u32 v2, {W1A[6]}, v2""")
            for s_ in range(8): e(f"ds_read_b128 {vr(16+4*s_,4)}, v{2+(s_>>2)} offset:{(s_&3)*1024}")
            e(f"""s_lshl_b32 s64, s20, 2
            s_add_u32 s64, s64, s19
            s_lshl_b32 s65, s23, 8
            s_add_u32 s65, s65, s64
            s_lshl_b32 s65, s65, 10
            s_mul_i32 s66, s64, 112
            s_lshl_b32 s3, s23, 2
            s_add_u32 s66, s66, s3
            s_lshl_b32 s66, s66, 10
            s_add_u32 s66, s66, {WS_H:#x}
            s_waitcnt lgkmcnt(0)""")
        if UST and k >= 8:
            SP = opt.get("sper", 2)
            for s_ in range(SP * (k - 8), min(8, SP * (k - 7))):
                if s_ < 4: e(f"s_add_u32 s3, s65, {WS_KV + s_*0x10000:#x}")
                else: e(f"s_add_u32 s3, s66, {(s_-4)*1024}")
                e(f"buffer_store_dwordx4 {vr(16+4*s_,4)}, v14, {SS}, s3 offen sc1")
            if k == opt.get("ugk", 12): signal(4, 3, WS_F1, 2, 3, max(0, min(8, SP * (k - 7)) - 4))
            if k == opt.get("ugh", 15): signal(24, 3, WS_F1H, 2, 3)
        if k == opt.get("pf2k", 2) and opt.get("pf2", 1):
            sk = lab("NOPF")
            e("s_cmp_lg_u32 s19, 1")
            e(f"s_cbranch_scc1 {sk}")
            srd(e, 44, 14, 1792 * 1024)
            srd(e, 48, 8, 512 * 1024)
            e("v_lshlrev_b32 v2, 7, v0")
            e("s_mul_i32 s71, s2, 7168")
            e("s_mov_b32 exec_hi, 0xffffff")
            e(f"buffer_load_dword v160, v2, {S2}, s71 offen")
            e("s_lshl_b32 s71, s2, 11")
            e("s_mov_b64 exec, 0xffff")
            e(f"buffer_load_dword v161, v2, {SO}, s71 offen")
            e("s_mov_b64 exec, -1")
            e(f"{sk}:")
        if k in (GK, CK, CK + 1):
            sk = lab("NOPOST")
            e("s_cmp_lg_u32 s19, 0")
            e(f"s_cbranch_scc1 {sk}")
            if k == GK: gather()
            if k == CK:
                e("s_mov_b32 s73, 0x20000")
                e("L_CHK:")
                e("s_waitcnt vmcnt(0)")
                e(f"v_xor_b32 v2, s61, v{G0}")
                for i in range(G0 + 1, G0 + 64): e(f"v_bitop3_b32 v2, v2, v{i}, s61 bitop3:0xf6")
                e("v_and_b32 v2, 0xff, v2")
                for i in (66, 67, 70, 71): e(f"v_bitop3_b32 v2, v2, v{G0+i}, s61 bitop3:0xf6")
                e("v_cmp_ne_u32 vcc, 0, v2")
                e("s_sub_u32 s73, s73, 1")
                e("s_cmp_eq_u32 s73, 0")
                e("s_cbranch_scc1 L_GOT")
                e("s_cmp_eq_u64 vcc, 0")
                e("s_cbranch_scc1 L_GOT")
                gather()
                e("s_branch L_CHK")
                e("L_GOT:")
            if k == CK + 1:
                e("s_mov_b32 s71, 0xffffff00")
                for i in range(G0, G0 + 64): e(f"v_and_b32 v{i}, s71, v{i}")
                for g in range(1, 16):
                    for h in range(4): e(f"v_add_f32 v{G0+h}, v{G0+h}, v{G0+4*g+h}")
                e(f"v_add_u32 v2, {L_ST}, v14")
                e(f"ds_write_b128 v2, {vr(G0+64,4)}")
                e(f"ds_write_b128 v2, {vr(G0+68,4)} offset:1024")
                e(f"ds_write_b128 v2, {vr(G0,4)} offset:2048")
                e("s_waitcnt lgkmcnt(0)")
                ldsadd(20, 2, 3)
            e(f"{sk}:")
    bflush()
    stamp(3)
    e("s_barrier")
    stamp(4)
    e("s_cmp_lg_u32 s77, 0")
    e("s_cbranch_scc1 L_KVDONE")
    poll(10, "s76", 11, 4)
    kvdma()
    e("L_KVDONE:")
    e(f"v_add_u32 v2, {L_ONE}, v1")
    for q in range(4): e(f"v_mov_b32 v{8+q}, 0x3f803f80")
    e("ds_write_b128 v2, v[8:11]")
    e("s_add_u32 s96, s19, 4")
    e("s_mov_b32 s97, 0")
    e("s_waitcnt vmcnt(0) lgkmcnt(0)")
    ldsadd(16, 2, 3)
    stamp(5)

    e("L_ATT:")
    e.vm = []; e.lg = []
    Q = 8
    K = lambda u: 12 + 4 * u
    V = lambda u, g: 48 + ((u & 1) * 2 + g) * 4
    S = lambda b: 64 + 16 * b
    P, O = 112, 120
    VNEG, M0_, M1_, NM, MK = 136, 137, 138, 139, 140
    VA, VSTR = 148, 149
    for j in range(16):
        b0 = (j >> 2) * 8 + (j & 3)
        e(f"s_mov_b32 s{64+2*j}, {(0xffffffff << b0) & 0xffffffff:#x}")
        e(f"s_mov_b32 s{65+2*j}, {(0xffffffff << (b0+4)) & 0xffffffff:#x}")
    e(f"v_mov_b32 v{VNEG}, {NEG:#x}")
    e("v_mov_b32 v6, 0xffff")
    e("v_mov_b32 v7, 0xffff0000")
    for q in range(8):
        e(f"v_cndmask_b32 v{MK+q}, 0, v6, s[{64+4*q}:{65+4*q}]")
        e(f"v_cndmask_b32 v{S(2)}, 0, v7, s[{66+4*q}:{67+4*q}]")
        e(f"v_or_b32 v{MK+q}, v{MK+q}, v{S(2)}")
    e(f"""s_and_b32 s3, s96, 3
    s_lshl_b32 s26, s20, 2
    s_add_u32 s26, s26, s3
    s_add_u32 s25, s26, 1
    s_min_u32 s25, s25, 9
    s_lshr_b32 s62, s96, 2
    s_lshl_b32 s27, s23, 1
    s_add_u32 s27, s27, s62
    v_lshlrev_b32 v1, 4, v0
    s_lshl_b32 s63, s96, 10
    s_add_u32 s63, s63, {L_Q}
    v_add_u32 v3, s63, v1
    s_mul_i32 s62, s62, 12288
    s_lshl_b32 s3, s3, 10
    s_add_u32 s3, s3, s62
    s_add_u32 s62, s3, {L_K}
    v_add_u32 v4, s62, v1
    v_lshrrev_b32 v5, 5, v0
    v_lshlrev_b32 v5, 2, v5
    v_bfe_u32 v6, v0, 2, 2
    v_add_u32 v5, v5, v6
    v_lshlrev_b32 v5, 4, v5
    v_bfe_u32 v6, v0, 1, 1
    v_lshl_add_u32 v5, v6, 9, v5
    v_and_b32 v6, 1, v0
    v_lshl_add_u32 v5, v6, 3, v5
    s_add_u32 s3, s3, {L_V + 8192}
    v_add_u32 v5, s3, v5
    v_mov_b32 v6, {L_ONE}
    v_mov_b32 v7, 1024
    s_mov_b32 s98, 0xffff
    s_mov_b32 s99, 0xffff
    v_cndmask_b32 v5, v6, v5, s[98:99]
    v_cndmask_b32 v{VSTR}, 0, v7, s[98:99]
    v_lshlrev_b32 v7, 3, v{VSTR}
    v_sub_u32 v{VA+2}, v5, v7""")
    stamp(6)
    def owed():
        sk = lab("NOOWE")
        e("s_cmp_eq_u32 s97, 0")
        e(f"s_cbranch_scc1 {sk}")
        signal(12, 3, WS_F1B, 152, 153)
        e(f"{sk}:")
    if opt.get("owu", 0) == 0: owed()
    ldswait(16, 8, 2, 6)
    e(f"s_setprio {opt.get('aprio', 0)}")
    stamp(7)
    def fill(buf, val, diag):
        for j in range(16):
            a, b = (f"v{VNEG}", val) if diag else (val, f"v{VNEG}")
            e(f"v_cndmask_b32 v{S(buf)+j}, {a}, {b}, s[{64+2*j}:{65+2*j}]")
    def smfma(u, buf, cin):
        e.lwait(("K", u))
        e(f"v_mfma_f32_32x32x16_bf16 {vr(S(buf),16)}, {vr(K(u),4)}, {vr(Q,4)}, {cin}")
    def vread(u, par=None, va=None):
        if va is None:
            if u == 0: e(f"v_mov_b32 v{VA}, v5")
            else: e(f"v_sub_u32 v{VA}, v{VA}, v{VSTR}")
            va = VA
        for g in range(2):
            r = V(u if par is None else par, g)
            for h in range(2): e.lds(f"ds_read_b64_tr_b16 v[{r+2*h}:{r+2*h+1}], v{va} offset:{g*256 + h*128}", ("V", u))
    PD, PFR = S(2), S(2) + 8
    if opt.get("noatt"): e("s_branch L_P2DONE")
    e.lds(f"ds_read_b128 {vr(Q,4)}, v3", "Q")
    for u in [0, 8, 1]: e.lds(f"ds_read_b128 {vr(K(u),4)}, v4 offset:{(8-u)*1024}", ("K", u))
    vread(0); vread(8, 1, VA + 2)
    smfma(0, 0, "0"); smfma(8, 2, "0"); smfma(1, 1, "0")
    for u in range(2, 8): e.lds(f"ds_read_b128 {vr(K(u),4)}, v4 offset:{(8-u)*1024}", ("K", u))
    e("s_nop 4")
    s0 = S(0)
    for j in range(16): e(f"v_cndmask_b32 v{s0+j}, v{S(2)+j}, v{s0+j}, s[{64+2*j}:{65+2*j}]")
    for j in range(16): e(f"v_exp_f32 v{s0+j}, v{s0+j}")
    for q in range(8): e(f"v_cvt_pk_bf16_f32 v{P+q}, v{s0+2*q}, v{s0+2*q+1}")
    for q in range(8): e(f"v_and_b32 v{PD+q}, v{MK+q}, v{P+q}")
    e.lwait(("V", 8))
    e(f"v_mfma_f32_32x32x16_bf16 {vr(O,16)}, {vr(V(0,0),4)}, {vr(PD,4)}, 0")
    for q in range(8): e(f"v_bfi_b32 v{PFR+q}, v{MK+q}, 0, v{P+q}")
    e(f"v_mfma_f32_32x32x16_bf16 {vr(O,16)}, {vr(V(0,1),4)}, {vr(PD+4,4)}, {vr(O,16)}")
    e("s_cmp_lt_u32 s25, 9")
    e("s_cbranch_scc1 L_NOFAR")
    e(f"v_mfma_f32_32x32x16_bf16 {vr(O,16)}, {vr(V(1,0),4)}, {vr(PFR,4)}, {vr(O,16)}")
    e(f"v_mfma_f32_32x32x16_bf16 {vr(O,16)}, {vr(V(1,1),4)}, {vr(PFR+4,4)}, {vr(O,16)}")
    e("L_NOFAR:")
    vread(1)
    e("s_cmp_eq_u32 s25, 1")
    e("s_cbranch_scc1 L_FCHK")
    def pv(u, g): e(f"v_mfma_f32_32x32x16_bf16 {vr(O,16)}, {vr(V(u,g),4)}, {vr(P+4*g,4)}, {vr(O,16)}")
    for u in range(1, 8):
        s_ = S(u % 2)
        if u + 1 <= 7: smfma(u + 1, (u + 1) % 2, "0")
        for j in range(2): e(f"v_exp_f32 v{s_+j}, v{s_+j}")
        if u > 1: pv(u - 1, 1)
        if u + 1 <= 7: vread(u + 1)
        for j in range(2, 8): e(f"v_exp_f32 v{s_+j}, v{s_+j}")
        for q in range(4): e(f"v_cvt_pk_bf16_f32 v{P+q}, v{s_+2*q}, v{s_+2*q+1}")
        for j in range(8, 10): e(f"v_exp_f32 v{s_+j}, v{s_+j}")
        e.lwait(("V", u))
        pv(u, 0)
        for j in range(10, 16): e(f"v_exp_f32 v{s_+j}, v{s_+j}")
        for q in range(4, 8): e(f"v_cvt_pk_bf16_f32 v{P+q}, v{s_+2*q}, v{s_+2*q+1}")
        if u < 7:
            e(f"s_cmp_eq_u32 s25, {u+1}")
            e(f"s_cbranch_scc1 L_FX{u&1}")
    e("L_FX1:")
    e("s_nop 1")
    pv(1, 1)
    e("s_branch L_FCHK")
    e("L_FX0:")
    e("s_nop 1")
    pv(0, 1)
    e("L_FCHK:")
    e("s_mov_b32 s52, 0x1f800000")
    e("s_mov_b32 s53, 0x5f800000")
    e("s_mov_b32 s3, 0x7f800000")
    e("s_waitcnt lgkmcnt(0)")
    e("s_nop 7")
    e(f"v_add_f32 v6, |v{O}|, |v{O+1}|")
    e(f"v_add_f32 v7, |v{O+2}|, |v{O+3}|")
    e(f"v_add_f32 v2, |v{O+4}|, |v{O+5}|")
    e(f"v_add_f32 v3, |v{O+6}|, |v{O+7}|")
    e(f"v_cmp_le_f32 s[62:63], s52, v{O+8}")
    e(f"v_cmp_ge_f32 s[98:99], s53, v{O+8}")
    e("v_add_f32 v6, v6, v7")
    e("v_add_f32 v2, v2, v3")
    e("v_add_f32 v6, v6, v2")
    e("s_and_b64 s[62:63], s[62:63], s[98:99]")
    e("v_cmp_gt_f32 vcc, s3, v6")
    e("s_nop 0")
    e("s_and_b64 s[62:63], s[62:63], vcc")
    e("s_cmp_eq_u64 s[62:63], -1")
    if opt.get("forceslow"): e("s_cmp_eq_u32 s62, 12345")
    e("s_cbranch_scc1 L_P2DONE")
    e.lg = []
    e(f"v_mov_b32 v{M0_}, v{VNEG}")
    e(f"v_mov_b32 v{M1_}, v{VNEG}")
    fill(0, "0", True)
    e("s_nop 1")
    smfma(0, 0, vr(S(0), 16))
    smfma(1, 1, "0")
    for u in range(9):
        if u + 2 <= 8:
            if u + 2 == 8:
                fill((u + 2) % 3, "0", False); e("s_nop 1")
                smfma(u + 2, (u + 2) % 3, vr(S((u + 2) % 3), 16))
            else:
                smfma(u + 2, (u + 2) % 3, "0")
        if u == 0: e("s_nop 9")
        for q in range(8):
            m = M0_ + (q & 1)
            e(f"v_max3_f32 v{m}, v{S(u%3)+2*q}, v{S(u%3)+2*q+1}, v{m}")
        if u < 8:
            e(f"s_cmp_eq_u32 s25, {u+1}")
            e("s_cbranch_scc1 L_P1DONE")
    e("L_P1DONE:")
    vread(0)
    e(f"v_max_f32 v{M0_}, v{M0_}, v{M1_}")
    e(f"v_mov_b32 v{M1_}, v{M0_}")
    e("s_nop 1")
    e(f"v_permlane32_swap_b32 v{M0_}, v{M1_}")
    e("s_nop 1")
    e(f"v_max_f32 v{M0_}, v{M0_}, v{M1_}")
    e(f"v_sub_f32 v{NM}, 0, v{M0_}")
    e("s_nop 3")
    CB = S(2)
    for j in range(16): e(f"v_mov_b32 v{CB+j}, v{NM}")
    fill(0, f"v{NM}", True)
    e("s_nop 1")
    smfma(0, 0, vr(S(0), 16))
    for u in range(9):
        s = S(u % 2)
        if u + 1 <= 8:
            nb_ = (u + 1) % 2
            if u + 1 == 8:
                fill(nb_, f"v{NM}", False); e("s_nop 1")
                smfma(u + 1, nb_, vr(S(nb_), 16))
            else:
                smfma(u + 1, nb_, vr(CB, 16))
            vread(u + 1)
        if u == 0: e("s_nop 6")
        for j in range(8): e(f"v_exp_f32 v{s+j}, v{s+j}")
        for q in range(4): e(f"v_cvt_pk_bf16_f32 v{P+q}, v{s+2*q}, v{s+2*q+1}")
        for j in range(8, 16): e(f"v_exp_f32 v{s+j}, v{s+j}")
        e.lwait(("V", u))
        e(f"v_mfma_f32_32x32x16_bf16 {vr(O,16)}, {vr(V(u,0),4)}, {vr(P,4)}, {'0' if u == 0 else vr(O,16)}")
        for q in range(4, 8): e(f"v_cvt_pk_bf16_f32 v{P+q}, v{s+2*q}, v{s+2*q+1}")
        e("s_nop 1")
        e(f"v_mfma_f32_32x32x16_bf16 {vr(O,16)}, {vr(V(u,1),4)}, {vr(P+4,4)}, {vr(O,16)}")
        if u < 8:
            e(f"s_cmp_eq_u32 s25, {u+1}")
            e("s_cbranch_scc1 L_P2X")
    e("L_P2X:")
    e("s_waitcnt lgkmcnt(0)")
    e("s_nop 12")
    e("L_P2DONE:")
    e("s_lshl_b32 s3, s26, 5")
    e("s_add_u32 s3, s3, s27")
    e("s_lshl_b32 s3, s3, 10")
    e(f"s_add_u32 s3, s3, {WS_O:#x}")
    e(f"v_rcp_f32 v7, v{O+8}")
    e("s_nop 0")
    for j in range(8): e(f"v_mul_f32 v{O+j}, v{O+j}, v7")
    for q in range(4): e(f"v_cvt_pk_bf16_f32 v{P+q}, v{O+2*q}, v{O+2*q+1}")
    e(f"buffer_store_dwordx4 {vr(P,4)}, v1, {SS}, s3 offen sc1")
    stamp(8)
    signal(8, 7, WS_F2)
    stamp(9)
    e("s_cmp_lg_u32 s2, 0")
    e("s_cbranch_scc1 L_FIN")
    e("s_cmp_lg_u32 s96, 1")
    e("s_cbranch_scc1 L_FIN")
    e("v_lshlrev_b32 v6, 7, v0")
    e("s_mov_b32 s63, 0x20000")
    e("L_BCHK:")
    for g in range(4):
        e(f"s_mov_b32 s62, {WS_F2 + g*8192:#x}")
        e(f"buffer_load_dword v{8+g}, v6, {SS}, s62 offen sc1")
    e("s_waitcnt vmcnt(0)")
    e("v_xor_b32 v7, s61, v8")
    for i in range(9, 12): e(f"v_bitop3_b32 v7, v7, v{i}, s61 bitop3:0xf6")
    e("v_cmp_ne_u32 vcc, 0, v7")
    e("s_sub_u32 s63, s63, 1")
    e("s_cmp_eq_u32 s63, 0")
    e("s_cbranch_scc1 L_FIN")
    e("s_cmp_lg_u64 vcc, 0")
    e("s_cbranch_scc1 L_BCHK")
    e("s_mov_b64 exec, 1")
    e("v_mov_b32 v6, 0")
    e("v_mov_b32 v7, s61")
    e(f"s_mov_b32 s62, {WS_EP:#x}")
    e(f"buffer_store_dword v7, v6, {SS}, s62 offen sc1")
    e("s_mov_b64 exec, -1")
    e("L_FIN:")
    e.vm = []; e.lg = []
    srd(e, 28, 10, 2048 * 1024)
    e(f"""v_lshrrev_b32 v7, 3, v0
    v_and_b32 v14, 7, v0
    v_lshlrev_b32 v8, 4, v14
    v_lshl_add_u32 v2, v7, 10, v8
    s_lshl_b32 s62, s58, 16
    s_lshl_b32 s3, s96, 13
    s_add_u32 s62, s62, s3
    s_lshl_b32 s3, s59, 7
    s_add_u32 s62, s62, s3""")
    e(f"buffer_load_dwordx4 v[8:11], v2, {SX}, s62 offen")
    e(f"""s_and_b32 s3, s96, 3
    s_lshl_b32 s3, s3, 10
    s_cmp_ge_u32 s96, 4
    s_mov_b32 s63, {BREG[0]}
    s_cselect_b32 s63, {BREG[2]}, s63
    s_mov_b32 s64, {BREG[1]}
    s_cselect_b32 s64, {BREG[3]}, s64
    s_add_u32 s63, s63, s3
    s_add_u32 s64, s64, s3
    v_and_b32 v12, 3, v0
    v_lshlrev_b32 v12, 1, v12
    v_xor_b32 v12, v12, v7
    v_bfe_u32 v13, v0, 2, 1
    v_xor_b32 v12, v12, v13
    v_lshlrev_b32 v12, 4, v12
    v_lshl_add_u32 v12, v7, 7, v12
    v_mov_b32 v15, s63
    v_mov_b32 v16, s64
    v_cmp_eq_u32 vcc, 1, v13
    s_nop 1
    v_cndmask_b32 v15, v15, v16, vcc
    v_add_u32 v24, v15, v12
    v_xor_b32 v25, 16, v24""")
    stamp(10)
    e("s_barrier")
    stamp(11)
    R = lambda src, h: 48 + src * 8 + h * 4
    for src in range(4):
        for h in range(2): e.lds(f"ds_read_b128 {vr(R(src,h),4)}, v{24+h} offset:{src*4096}", src)
    e("s_mov_b32 s3, 0xffff0000")
    e("s_waitcnt vmcnt(0)")
    for q in range(4):
        e(f"v_lshlrev_b32 v{32+2*q}, 16, v{8+q}")
        e(f"v_and_b32 v{33+2*q}, s3, v{8+q}")
    for src in range(4):
        e.lwait(src)
        for q in range(4): e(f"v_pk_add_f32 {pk(32+2*q)}, {pk(32+2*q)}, {pk(R(src,0)+2*q)}")
    for q in range(4): e(f"v_cvt_pk_bf16_f32 v{40+q}, v{32+2*q}, v{33+2*q}")
    e("buffer_store_dwordx4 v[40:43], v2, s[28:31], s62 offen " + opt.get("ost", ""))
    if ST:
        e("L_DUMP:")
        stamp(12)
        e("s_waitcnt vmcnt(0)")
        stamp(13); stamp(14, True)
        if opt.get("dbgst") is not None:
            e("s_load_dwordx2 s[4:5], s[0:1], 56")
            e(f"s_cmp_lg_u32 s2, {opt['dbgst']}")
            e("s_cbranch_scc1 L_END")
            e("s_cmp_lg_u32 s18, 4")
            e("s_cbranch_scc1 L_END")
            e(f"v_readlane_b32 s6, v{VST}, 1")
            e(f"v_readlane_b32 s7, v{VST}, 0")
            e("s_waitcnt lgkmcnt(0)")
            e(f"v_subrev_u32 v3, s6, v{VST}")
            e(f"v_subrev_u32 v4, s7, v{VST}")
            e("v_cmp_eq_u32 vcc, 14, v0")
            e("s_nop 1")
            e("v_cndmask_b32 v3, v3, v4, vcc")
            e("v_lshlrev_b32 v2, 2, v0")
            e("s_mov_b64 exec, 0xffff")
            e("global_store_dword v2, v3, s[4:5]")
            e("s_endpgm")
        e("s_mul_i32 s3, s2, 12")
        e("s_add_u32 s3, s3, s18")
        e("s_lshl_b32 s3, s3, 7")
        e("s_add_u32 s3, s3, 0x1000000")
        e("v_lshl_add_u32 v2, v0, 2, s3")
        e("s_mov_b64 exec, 0xffffffff")
        e(f"global_store_dword v2, v{VST}, s[16:17]")
    e("L_END:")
    e("s_endpgm")
    return name, e.text(), kd(name, 168), (256, 768, LDS)

def build(opt, path):
    n, t, k, (g, b, lds) = gen(opt)
    ref = open(f"cdna_kernels/{NAME}.s.ref").read().split("\n")
    head = [l for l in ref if l.startswith(";") and "@launch" not in l and "Override launch" not in l and "grid=ceil" not in l]
    s = "\n".join(head[:10]) + "\n"
    s += f"; @launch grid=({g},1,1) block=({b},1,1) lds={lds}\n"
    s += '.amdgcn_target "amdgcn-amd-amdhsa--gfx950"\n.text\n'
    s += f".globl {n}\n.p2align 8\n.type {n},@function\n" + t
    s += '.section .rodata,"a"\n.p2align 6\n' + k
    open(path, "w").write(s)

if __name__ == "__main__":
    import sys, json
    opt = json.loads(sys.argv[2]) if len(sys.argv) > 2 else {}
    build(opt, sys.argv[1])
```

```python
from emit import *
from alloc import plan3, plan4

NAME = "parallel_sum__sliding_block__dense_activation_relu__prompt"
WS_KV, WS_H, WS_O = 0, 0x600000, 0xD00000
WS_RS = 0xF00000
WS_CS = 0xF10000
WS_EP = 0xF80000
WS_F1, WS_F1B, WS_F2, WS_F1H = 0xF90000, 0xFA0000, 0xFB0000, 0xFC0000
WS_BYTES = 0x1000000
EPC = 0x9E3779B9
L_ST = 158720
L_MISC = L_ST + 3072
LDS = L_MISC + 64
ORD2 = list(range(6, 16)) + list(range(6))
NEG = 0xf149f2ca
pk = lambda a: f"v[{a}:{a+1}]"
SW, S1, SX, SS, S2, SO = "s[28:31]", "s[32:35]", "s[36:39]", "s[40:43]", "s[44:47]", "s[48:51]"
VST = 167

def reduce32(e, regs, tmp):
    for ctl in ("quad_perm:[1,0,3,2]", "quad_perm:[2,3,0,1]", "row_half_mirror", "row_mirror"):
        e("s_nop 1")
        for r in regs: e(f"v_add_f32_dpp v{r}, v{r}, v{r} {ctl} row_mask:0xf bank_mask:0xf")
    for r, t in zip(regs, tmp): e(f"v_mov_b32 v{t}, v{r}")
    e("s_nop 1")
    for r, t in zip(regs, tmp): e(f"v_permlane16_swap_b32 v{r}, v{t}")
    e("s_nop 1")
    for r, t in zip(regs, tmp): e(f"v_add_f32 v{r}, v{r}, v{t}")

def gen(opt):
    e = Em()
    name = NAME + "_kernel"
    ST = opt.get("stamps")
    NB = 6
    NT = opt.get("nt", "")
    PL = opt.get("pl", 2)
    XA, W1A, W2A, FIN = plan3(PL, opt.get("w2l", 2), NB, opt.get("ust", 0))
    if not opt.get("ust", 0): XA, W1A, W2A, FIN = plan4(PL, NB, opt.get("w2t", 5))
    BREG = [FIN[f"B{j}"][1] for j in range(NB)]
    BT = [max(FIN[f"B{j}"][0], min(16, opt.get("bt0", 11) + j)) for j in range(NB)]
    L_K, L_V, L_Q, L_ONE = FIN["K"], FIN["V"], FIN["Q"], FIN["ONES"]
    def stamp(i, rt=False):
        if not ST: return
        e(("s_memrealtime" if rt else "s_memtime") + " s[100:101]")
        e("s_waitcnt lgkmcnt(0)")
        e(f"v_writelane_b32 v{VST}, s100, {i}")
    BK = opt.get("bk", [])
    def bstamp(k):
        if ST and k in BK: e(f"s_memtime s[{80+2*BK.index(k)}:{81+2*BK.index(k)}]")
    def bflush():
        if ST and BK:
            e("s_waitcnt lgkmcnt(0)")
            for i in range(len(BK)): e(f"v_writelane_b32 v{VST}, s{80+2*i}, {16+i}")
    uid = [0]
    def lab(p):
        uid[0] += 1
        return f"{p}_{uid[0]}"
    def apoll_issue(voff, soff, vd, tag):
        e.vmem(f"buffer_load_dword v{vd}, v{voff}, {SS}, {soff} offen sc1", tag)
    def apoll_check(voff, soff, vtag, vd, tag):
        D = lab("AOK")
        e.vwait(tag)
        e(f"v_cmp_ne_u32 vcc, v{vtag}, v{vd}")
        e("s_nop 1")
        e("s_cmp_eq_u64 vcc, 0")
        e(f"s_cbranch_scc1 {D}")
        keep = list(e.vm); keepl = list(e.lg)
        poll(voff, soff, vtag, vd)
        e.vm = keep; e.lg = keepl
        e(f"{D}:")
    def poll(voff, soff, vtag, vd):
        L, D = lab("POLL"), lab("POLLED")
        e("s_mov_b32 s63, 0x40000")
        e(f"{L}:")
        e(f"buffer_load_dword v{vd}, v{voff}, {SS}, {soff} offen sc1")
        e("s_waitcnt vmcnt(0) lgkmcnt(0)")
        e(f"v_cmp_ne_u32 vcc, v{vtag}, v{vd}")
        e("s_sub_u32 s63, s63, 1")
        e("s_cmp_eq_u32 s63, 0")
        e(f"s_cbranch_scc1 {D}")
        e("s_cmp_lg_u64 vcc, 0")
        e(f"s_cbranch_scc1 {L}")
        e(f"{D}:")
        e.vm = []; e.lg = []
    def ldswait(off, val, va, vb):
        L, D = lab("LW"), lab("LWOK")
        e(f"v_mov_b32 v{va}, {L_MISC}")
        e("s_mov_b32 s63, 0x400000")
        e(f"{L}:")
        e(f"ds_read_b32 v{vb}, v{va} offset:{off}")
        e("s_sub_u32 s63, s63, 1")
        e("s_waitcnt lgkmcnt(0)")
        e(f"v_readfirstlane_b32 s62, v{vb}")
        e("s_cmp_eq_u32 s63, 0")
        e(f"s_cbranch_scc1 {D}")
        e(f"s_cmp_ge_u32 s62, {val}")
        e(f"s_cbranch_scc1 {D}")
        e("s_sleep 1")
        e(f"s_branch {L}")
        e(f"{D}:")
        e.lg = []
    def ldsadd(off, va, vb):
        e(f"v_mov_b32 v{va}, {L_MISC}")
        e(f"v_mov_b32 v{vb}, 1")
        e("s_mov_b64 exec, 1")
        e(f"ds_add_u32 v{va}, v{vb} offset:{off}")
        e("s_mov_b64 exec, -1")
    def signal(coff, last, base, va=2, vb=3, vm=0):
        N = lab("NOFLAG")
        e(f"s_waitcnt vmcnt({vm})")
        e(f"v_mov_b32 v{va}, {L_MISC}")
        e(f"v_mov_b32 v{vb}, 1")
        e("s_mov_b64 exec, 1")
        e(f"ds_add_rtn_u32 v{vb}, v{va}, v{vb} offset:{coff}")
        e(f"s_add_u32 s62, s24, {base:#x}")
        e("s_waitcnt lgkmcnt(0)")
        e(f"v_readfirstlane_b32 s63, v{vb}")
        e(f"s_cmp_lg_u32 s63, {last}")
        e(f"s_cbranch_scc1 {N}")
        e(f"v_mov_b32 v{va}, 0")
        e(f"v_mov_b32 v{vb}, s61")
        e(f"buffer_store_dword v{vb}, v{va}, {SS}, s62 offen sc1")
        e(f"{N}:")
        e("s_mov_b64 exec, -1")
        e.lg = []

    e(f"{name}:")
    e("s_cmp_ge_u32 s2, 256")
    e("s_cbranch_scc1 L_END")
    stamp(0, True); stamp(1)
    e("s_load_dwordx4 s[4:7], s[0:1], 0")
    e("s_load_dwordx4 s[12:15], s[0:1], 32")
    e("s_load_dwordx2 s[16:17], s[0:1], 64")
    e("s_load_dwordx2 s[8:9], s[0:1], 16")
    e("s_load_dwordx2 s[10:11], s[0:1], 48")
    e("v_lshrrev_b32 v1, 6, v0")
    e("v_and_b32 v0, 63, v0")
    e("v_readfirstlane_b32 s18, v1")
    e("""s_and_b32 s3, s2, 1
    s_lshl_b32 s20, s3, 3
    s_lshr_b32 s24, s2, 5
    s_add_u32 s20, s20, s24
    s_bfe_u32 s21, s2, 0x20001
    s_bfe_u32 s22, s2, 0x20003
    s_lshl_b32 s23, s21, 2
    s_add_u32 s23, s23, s22
    s_lshl_b32 s24, s20, 4
    s_add_u32 s24, s24, s23
    s_lshl_b32 s24, s24, 7
    s_and_b32 s19, s18, 3
    s_lshl_b32 s3, s3, 2
    s_add_u32 s58, s3, s21
    s_lshl_b32 s58, s58, 2
    s_lshr_b32 s59, s2, 6
    s_add_u32 s58, s58, s59
    s_bfe_u32 s59, s2, 0x30003""")
    if opt.get("map2", 0):
        e("""s_and_b32 s20, s2, 3
        s_lshl_b32 s20, s20, 2
        s_lshr_b32 s3, s2, 6
        s_add_u32 s20, s20, s3
        s_bfe_u32 s23, s2, 0x10002
        s_lshl_b32 s23, s23, 3
        s_bfe_u32 s3, s2, 0x30003
        s_add_u32 s23, s23, s3
        s_lshl_b32 s24, s20, 4
        s_add_u32 s24, s24, s23
        s_lshl_b32 s24, s24, 7""")
    if opt.get("own", 1):
        e("s_lshl_b32 s58, s20, 1")
        e("s_lshr_b32 s59, s23, 3")
        e("s_add_u32 s58, s58, s59")
        e("s_and_b32 s59, s23, 7")
    e("s_waitcnt lgkmcnt(0)")
    if opt.get("wsoff"):
        e(f"s_add_u32 s16, s16, {opt['wsoff'] << 20:#x}")
        e("s_addc_u32 s17, s17, 0")
    srd(e, 36, 4, 2048 * 1024)
    srd(e, 28, 6, 512 * 3072)
    srd(e, 32, 12, 512 * 3584)
    srd(e, 40, 16, WS_BYTES)
    e("s_cmp_ge_u32 s18, 8")
    e("s_cbranch_scc1 L_UTIL")
    e("s_cmp_ge_u32 s18, 4")
    e("s_cbranch_scc1 L_CONS")

    e(f"""v_and_b32 v5, 7, v0
    v_lshrrev_b32 v2, 3, v0
    v_lshrrev_b32 v3, 4, v0
    v_xor_b32 v3, v3, v5
    v_lshlrev_b32 v2, 10, v2
    v_lshl_add_u32 v12, v3, 4, v2
    v_xor_b32 v13, 64, v12
    s_lshl_b32 s65, s20, 17
    s_lshl_b32 s3, s18, 15
    s_add_u32 s65, s65, s3
    s_lshl_b32 s67, s18, 12""")
    def issueX(P):
        e(f"s_add_u32 m0, s67, {XA[P]}")
        e(f"s_add_u32 s74, s65, {P*128}")
        for a in range(4):
            e.vmem(f"buffer_load_dwordx4 v{12+(a&1)}, {SX}, s74 offen offset:{a*1024} {NT} lds", ("x", P))
            if a < 3: e(f"s_add_u32 s74, s74, {8192-1024}")
    issueX(0)
    e("""v_lshrrev_b32 v2, 5, v0
    v_bfe_u32 v3, v0, 3, 2
    v_lshl_add_u32 v3, v2, 3, v3
    v_bfe_u32 v4, v0, 4, 2
    v_lshlrev_b32 v4, 1, v4
    v_xor_b32 v4, v4, v5
    v_lshlrev_b32 v4, 4, v4
    v_mul_u32_u24 v10, 3072, v3
    v_add_u32 v10, v10, v4
    v_mul_u32_u24 v11, 3584, v3
    v_add_u32 v11, v11, v4
    s_lshr_b32 s52, s18, 1
    s_lshl_b32 s52, s52, 5
    s_and_b32 s62, s18, 1
    s_lshl_b32 s3, s62, 2
    s_add_u32 s52, s52, s3
    s_lshl_b32 s3, s23, 7
    s_mul_i32 s53, s52, 3072
    s_add_u32 s53, s53, s3
    s_add_u32 s53, s53, 1024
    s_mul_i32 s54, s52, 3584
    s_add_u32 s54, s54, s3""")
    def issueW(c):
        for ah in range(2):
            e(f"s_add_u32 m0, s67, {W1A[c] + ah*2048}")
            e(f"s_add_u32 s74, s53, {(64*c + 16*ah)*3072}")
            e.vmem(f"buffer_load_dwordx4 v10, {SW}, s74 offen {NT} lds", ("w", c))
            e(f"s_add_u32 m0, s67, {W1A[c] + ah*2048 + 1024}")
            e(f"s_add_u32 s74, s54, {(64*c + 16*ah)*3584}")
            e.vmem(f"buffer_load_dwordx4 v11, {S1}, s74 offen {NT} lds", ("w", c))
    def esetup():
        e("""v_lshrrev_b32 v2, 4, v0
        v_bfe_u32 v3, v0, 2, 2
        v_lshl_add_u32 v3, v2, 3, v3
        v_mul_u32_u24 v16, 3072, v3
        v_and_b32 v2, 1, v2
        v_lshlrev_b32 v2, 1, v2
        v_and_b32 v3, 3, v0
        v_xor_b32 v2, v2, v3
        v_lshl_add_u32 v16, v2, 4, v16
        s_and_b32 s62, s18, 1
        s_lshl_b32 s3, s62, 7""")
        for j in range(2):
            e(f"""v_add_u32 v2, s3, v0
            v_add_u32 v2, {64*j}, v2
            v_mul_u32_u24 v3, 10923, v2
            v_lshrrev_b32 v3, 16, v3
            v_mul_u32_u24 v4, 6, v3
            v_sub_u32 v4, v2, v4
            v_bfe_u32 v6, v3, 2, 2
            v_lshlrev_b32 v6, 3, v6
            v_lshrrev_b32 v7, 4, v3
            v_lshl_add_u32 v6, v7, 2, v6
            v_and_b32 v7, 3, v3
            v_add_u32 v6, v6, v7
            v_mul_u32_u24 v{17+j}, 3584, v6
            v_lshl_add_u32 v{17+j}, v4, 4, v{17+j}""")
        e("""s_cmp_eq_u32 s62, 1
        s_cselect_b32 s3, 0x80000000, 0
        v_or_b32 v18, s3, v18
        s_lshr_b32 s3, s18, 1
        s_mul_i32 s55, s52, 3072
        s_lshl_b32 s64, s23, 6
        s_add_u32 s55, s55, s64
        s_mul_i32 s56, s3, 114688
        s_mul_i32 s64, s23, 96
        s_add_u32 s56, s56, s64
        s_add_u32 s56, s56, 2048
        s_mul_i32 s57, s3, 5120
        s_lshl_b32 s64, s62, 10
        s_add_u32 s60, s57, s64
        s_lshl_b32 s64, s62, 11
        s_add_u32 s57, s57, s64
        s_add_u32 s64, s57, 1024
        s_cmp_eq_u32 s62, 1
        s_cselect_b32 s64, 8192, s64""")
    def issueW2(c):
        p = ORD2[2 * c]
        base = W2A[c][1]
        e(f"s_add_u32 m0, s60, {base}")
        e(f"s_add_u32 s74, s55, {p*32*3072}")
        e.vmem(f"buffer_load_dwordx4 v16, {SW}, s74 offen {NT} lds", ("w2", c))
        e(f"s_add_u32 m0, s57, {base + 2048}")
        e(f"s_add_u32 s74, s56, {p*32*3584}")
        e.vmem(f"buffer_load_dwordx4 v17, {S1}, s74 offen {NT} lds", ("w2", c))
        e(f"s_add_u32 m0, s64, {base + 2048}")
        e("s_nop 0")
        e.vmem(f"buffer_load_dwordx4 v18, {S1}, s74 offen {NT} lds", ("w2", c))
    NF2, NS, NA = 14, 18, 4
    A0 = 20
    AF = lambda sg, tb, kk: A0 + (sg % NA) * 16 + (tb * 2 + kk) * 4
    ACB = A0 + NA * 16
    GACC = lambda tb, nb: ACB + (tb * 2 + nb) * 16
    BFB = ACB + 64
    BF = lambda kk, nb: BFB + (kk * 2 + nb) * 4
    assert BFB + 16 <= VST
    def gsetup():
        srd(e, 44, 14, 1792 * 1024)
        srd(e, 48, 8, 512 * 1024)
        e(f"""v_lshrrev_b32 v8, 3, v0
        v_bfe_u32 v2, v0, 4, 1
        v_lshlrev_b32 v2, 2, v2
        v_xor_b32 v9, v5, v2
        v_lshlrev_b32 v9, 4, v9
        v_lshl_add_u32 v14, v8, 10, v9
        v_lshrrev_b32 v2, 2, v8
        v_lshlrev_b32 v2, 3, v2
        v_and_b32 v8, 3, v8
        v_add_u32 v8, v8, v2
        v_lshl_add_u32 v15, v8, 10, v9
        v_lshlrev_b32 v1, 4, v0
        s_lshl_b32 s3, s59, 7
        s_lshl_b32 s70, s18, 18
        s_add_u32 s70, s70, s3
        s_mul_i32 s78, s18, {12*16*1024}
        s_add_u32 s78, s78, s3
        s_lshl_b32 s71, s18, 17
        s_add_u32 s71, s71, s3
        s_mul_i32 s72, s58, {2*112*1024}
        s_add_u32 s72, s72, {WS_H:#x}
        s_mul_i32 s79, s18, {12*1024}
        s_add_u32 s79, s79, s72
        s_lshl_b32 s3, s18, 14
        s_add_u32 s72, s72, s3
        s_lshl_b32 s73, s58, 16
        s_lshl_b32 s3, s18, 13
        s_add_u32 s73, s73, s3
        s_add_u32 s73, s73, {WS_O:#x}
        s_and_b32 s3, s58, 3
        s_cmp_eq_u32 s3, s18
        s_cselect_b32 s26, 1, 0
        s_cmp_eq_u32 s59, s18
        s_cselect_b32 s27, 1, 0
        s_add_u32 s3, s18, 4
        s_cmp_eq_u32 s59, s3
        s_cselect_b32 s21, 1, 0
        s_lshl_b32 s69, s58, 1
        s_add_u32 s69, s69, s59
        s_and_b32 s69, s69, {opt.get("rotm", 7)}
        s_sub_u32 s25, s69, 6
        s_cmp_ge_u32 s69, 6
        s_cselect_b32 s25, s25, s69""")
    KS = [(2 * i, False) for i in range(8)] + [(64 + 2 * i, True) for i in range(6)]
    ROT = opt.get("rot", 0)
    def ridx(sg):
        if sg < 8:
            e(f"s_add_u32 s68, s69, {sg}")
            e("s_and_b32 s68, s68, 7")
        elif sg < NF2:
            e(f"s_add_u32 s68, s25, {sg-8}")
            e("s_sub_u32 s3, s68, 6")
            e("s_cmp_ge_u32 s68, 6")
            e("s_cselect_b32 s68, s3, s68")
        else:
            e(f"s_add_u32 s68, s69, {sg-NF2}")
            e("s_and_b32 s68, s68, 3")
    def issueB(sg):
        if ROT:
            ridx(sg)
            e("s_lshl_b32 s68, s68, 15")
            e(f"s_add_u32 s68, s68, {'s70' if sg < 8 else 's78' if sg < NF2 else 's71'}")
        for a in range(4):
            e(f"s_add_u32 m0, s67, {BREG[sg % NB] + a*1024}")
            if sg < NF2:
                k16, ex = KS[sg]
                if ROT: e(f"s_add_u32 s74, s68, {((1024 if ex else 0) + 8*a)*1024}")
                else: e(f"s_add_u32 s74, {'s78' if ex else 's70'}, {(16*k16 + 8*a)*1024}")
                e.vmem(f"buffer_load_dwordx4 v14, {S2}, s74 offen lds", ("B", sg))
            else:
                if ROT: e(f"s_add_u32 s74, s68, {(16*(a>>1) + 4*(a&1))*1024}")
                else: e(f"s_add_u32 s74, s71, {(32*(sg-NF2) + 16*(a>>1) + 4*(a&1))*1024}")
                e.vmem(f"buffer_load_dwordx4 v15, {SO}, s74 offen lds", ("B", sg))
    def issueA(sg, tbs=(0, 1)):
        for tb in tbs:
            if sg < NF2:
                k16, ex = KS[sg]
                e(f"s_add_u32 s74, {'s79' if ex else 's72'}, {(tb*112 + k16)*1024}")
            else: e(f"s_add_u32 s74, s73, {(tb*32 + 2*(sg-NF2))*1024}")
            for kk in range(2):
                e.vmem(f"buffer_load_dwordx4 {vr(AF(sg,tb,kk),4)}, v1, {SS}, s74 offen offset:{kk*1024} sc1", ("A", sg))
    LEAD = opt.get("lead", 0)
    def either(sreg, lead_fn, foll_fn):
        L1, L2 = lab("LD"), lab("LE")
        e(f"s_cmp_lg_u32 {sreg}, 0")
        e(f"s_cbranch_scc1 {L1}")
        allk = list(e.act)
        e.act = [k for k in allk if sreg not in k]
        if foll_fn: foll_fn()
        e(f"s_branch {L2}")
        e(f"{L1}:")
        keep = list(e.vm)
        e.act = [k for k in allk if sreg in k]
        if lead_fn: lead_fn()
        e.vm = keep
        e.act = allk
        e(f"{L2}:")
    def gsetup2():
        e(f"""v_lshrrev_b32 v6, 5, v0
        v_lshlrev_b32 v6, 3, v6
        v_bfe_u32 v7, v0, 2, 2
        v_add_u32 v6, v6, v7
        v_lshlrev_b32 v6, 7, v6
        v_lshrrev_b32 v7, 1, v7
        v_lshl_add_u32 v6, v7, 6, v6
        v_bfe_u32 v7, v0, 4, 1
        v_lshl_add_u32 v6, v7, 5, v6
        v_and_b32 v7, 3, v0
        v_lshl_add_u32 v6, v7, 3, v6
        v_add_u32 v6, s67, v6
        v_xor_b32 v7, 64, v6
        v_add_u32 v8, 49152, v6
        v_add_u32 v9, 49152, v7
        v_mov_b32 v2, {L_MISC}
        ds_read_b32 v2, v2
        v_and_b32 v3, 3, v0
        v_lshlrev_b32 v3, 7, v3
        s_lshr_b32 s76, s58, 1
        s_lshl_b32 s76, s76, 11
        s_lshl_b32 s3, s18, 9
        s_add_u32 s76, s76, s3
        s_add_u32 s66, s76, {WS_F1H:#x}""")
        e("s_mov_b32 s75, 0")
        e("s_waitcnt lgkmcnt(0)")
    D = opt.get("gd", 3); DB = NB - 1; PS = opt.get("ps", 11); PB = 8 - D - 1
    GE = opt.get("ge", 15)
    def firstA(lo=0, hi=None):
        hi = D if hi is None else hi
        for sg in range(lo, hi):
            if LEAD & 2 and sg == hi - 1:
                for tb in range(2): either(("s27", "s21")[tb], lambda: issueA(sg, (tb,)), None)
            else: issueA(sg)
    issueW(0)
    for c in range(1, PL): issueX(c); issueW(c)
    for k in range(17):
        e.vwait([("w", k), ("x", k)] if k < 8 else [("w2", k - 8)])
        if k == 0: stamp(2)
        if k == 8: stamp(3)
        if k == 16: stamp(4)
        bstamp(k)
        if k == 16: bflush()
        e("s_barrier")
        if k + PL <= 7: issueX(k + PL); issueW(k + PL)
        if k == 1: gsetup()
        if k == 2: esetup()
        for c in range(8):
            if W2A[c][0] == k: issueW2(c)
        if k == 7 and any(W2A[c][0] == 7.5 for c in range(8)):
            ldswait(28, 4, 2, 3)
            for c in range(8):
                if W2A[c][0] == 7.5: issueW2(c)
        if k == 9: gsetup2()
        if k == GE - 2: apoll_issue(3, "s66", 4, "f1h")
        if k == GE:
            sk = lab("GLATE")
            e.vwait("f1h")
            e("v_cmp_ne_u32 vcc, v2, v4")
            e("s_nop 1")
            e("s_cmp_lg_u64 vcc, 0")
            e(f"s_cbranch_scc1 {sk}")
            keep = list(e.vm)
            firstA()
            e.vm = keep
            e("s_mov_b32 s75, 1")
            e(f"{sk}:")
        if k < 16:
            for j in range(NB):
                if BT[j] == k: issueB(j)
    if opt.get("gprio", 0): e(f"s_setprio {opt.get('gprio')}")
    for j in range(NB):
        if BT[j] >= 16: issueB(j)
    e("s_cmp_lg_u32 s75, 0")
    e("s_cbranch_scc1 L_GGO")
    keep = list(e.vm)
    poll(3, "s66", 2, 4)
    e.vm = keep
    if LEAD:
        assert GE > 16
        e.vm = []
        e.var_start([(b_, a_) for b_ in ("", "s26") for a_ in ("", "s27", "s21")])
    firstA()
    e("L_GGO:")
    stamp(5)
    def step(sg):
        if sg == opt.get("ghold", -1): ldswait(16, 8, 12, 13)
        e.vwait([("B", sg), ("A", sg)])
        reg = BREG[sg % NB]
        hi = reg // 49152
        off0 = reg - 49152 * hi
        for kk in range(2):
            for nb in range(2):
                for q in range(2):
                    e.lds(f"ds_read_b64_tr_b16 v[{BF(kk,nb)+2*q}:{BF(kk,nb)+2*q+1}], v{6+2*hi+nb} offset:{off0 + kk*2048 + q*512}", (kk, nb))
        if LEAD & 1:
            FB = opt.get("fb", 3)
            okb = lambda j: NB <= j < NS
            if okb(sg + DB) or okb(sg + FB):
                either("s26", (lambda: issueB(sg + DB)) if okb(sg + DB) else None, (lambda: issueB(sg + FB)) if okb(sg + FB) else None)
        elif NB <= sg + DB < NS: issueB(sg + DB)
        oka = lambda j: j < NF2 or (j < NS and sg > PS and j >= PS + 1 + D)
        if LEAD & 2:
            okf = lambda j: j < NF2 or (j < NS and sg > PS and j >= PS + D)
            for tb in range(2):
                if oka(sg + D) or okf(sg + D - 1):
                    either(("s27", "s21")[tb], (lambda: issueA(sg + D, (tb,))) if oka(sg + D) else None, (lambda: issueA(sg + D - 1, (tb,))) if okf(sg + D - 1) else None)
        elif oka(sg + D): issueA(sg + D)
        for kk in range(2):
            for nb in range(2):
                e.lwait((kk, nb))
                for tb in range(2):
                    acc = vr(GACC(tb, nb), 16)
                    cin = "0" if (sg == 0 and kk == 0) else acc
                    if opt.get("nogm") and (kk or nb): continue
                    e(f"v_mfma_f32_32x32x16_bf16 {acc}, {vr(BF(kk,nb),4)}, {vr(AF(sg,tb,kk),4)}, {cin}")
    for sg in range(PS + 1):
        if sg == PB - 1 or sg == PS - 1:
            e(f"s_add_u32 s66, s76, {(WS_F1B if sg == PB - 1 else WS_F2):#x}")
            apoll_issue(3, "s66", 4, "fl")
        step(sg)
        if sg == PB:
            stamp(6)
            apoll_check(3, "s66", 2, 4, "fl")
    stamp(7)
    apoll_check(3, "s66", 2, 4, "fl")
    stamp(8)
    firstA(NF2, min(NS, PS + 1 + D))
    for sg in range(PS + 1, NS): step(sg)
    e.var = None
    stamp(9)
    e("""v_and_b32 v12, 31, v0
    v_lshlrev_b32 v12, 7, v12
    v_lshrrev_b32 v13, 5, v0
    v_xor_b32 v13, v13, v5
    v_lshl_add_u32 v12, v13, 4, v12
    v_add_u32 v12, s67, v12""")
    for nb in range(2):
        for a in range(4): e(f"v_xor_b32 v{20+nb*4+a}, {((2*a) ^ nb)*16}, v12")
    for tb in range(2):
        for nb in range(2):
            for a in range(4): e(f"v_add_u32 v{28+(tb*2+nb)*4+a}, {BREG[tb*2+nb]}, v{20+nb*4+a}")
    for tb in range(2):
        for nb in range(2):
            for a in range(4): e(f"ds_write_b128 v{28+(tb*2+nb)*4+a}, {vr(GACC(tb,nb)+4*a,4)}")
    e("s_waitcnt lgkmcnt(0)")
    stamp(10)
    e("s_barrier")
    if ST: e("s_branch L_DUMP")
    e("s_endpgm")

    e("L_CONS:")
    e.vm = []; e.lg = []
    LA = opt.get("la", 5); NFB = 6
    F = lambda f: 8 + (f % NFB) * 4
    XF = lambda n, r: 32 + ((n & 1) * 2 + r) * 4
    XK = lambda p, r: 48 + (p * 2 + r) * 4
    ACC = lambda s, r: 96 + (s * 2 + r) * 4
    AW = [1, 2, 3, 4]; AX = [7, 5]
    e(f"""v_lshrrev_b32 v8, 2, v0
    v_lshrrev_b32 v9, 3, v8
    v_lshlrev_b32 v9, 11, v9
    v_and_b32 v10, 7, v8
    v_lshl_add_u32 v9, v10, 7, v9
    v_and_b32 v10, 3, v0
    v_lshlrev_b32 v10, 3, v10
    v_add_u32 v9, v9, v10
    v_bfe_u32 v11, v0, 3, 2
    v_lshl_add_u32 v1, v11, 5, v9
    v_add_u32 v1, {W1A[0]}, v1
    v_xor_b32 v2, 32, v1
    v_xor_b32 v3, 64, v1
    v_xor_b32 v4, 96, v1
    v_and_b32 v8, 15, v0
    v_lshrrev_b32 v9, 4, v0
    v_lshrrev_b32 v10, 1, v8
    v_xor_b32 v9, v9, v10
    v_lshlrev_b32 v8, 7, v8
    v_lshl_add_u32 v7, v9, 4, v8
    s_lshl_b32 s3, s19, 12
    s_add_u32 s3, s3, {XA[0]}
    v_add_u32 v7, s3, v7
    v_xor_b32 v5, 64, v7""")
    if opt.get("cprio", 0): e(f"s_setprio {opt.get('cprio')}")
    cur = {"w": W1A[0], "x": XA[0]}
    UST = opt.get("ust", 0)
    DEF = []; NST = [0]; TIM = 0 if UST else opt.get("tim", 2)
    def move(kind, regs, addr):
        d = addr - cur[kind]
        if d:
            for a in regs: e(f"v_add_u32 v{a}, {d & 0xffffffff:#x}, v{a}")
        cur[kind] = addr
    def gemm(ps):
        NSB = 8 if ps == 1 else 5
        NF = 16 * NSB
        kst = (lambda n: n) if ps == 1 else (lambda n: ORD2[n])
        xreg = lambda n, r: XK(kst(n), r) if kst(n) < 6 else XF(n, r)
        def rd(f):
            n, s = divmod(f, NSB)
            for q in range(2):
                if ps == 1:  a, off = AW[s & 3], (n & 1) * 8192 + q * 4096 + (s >> 2) * 1024
                elif s < 2:  a, off = AW[s], (n & 1) * 5120 + q * 1024
                else:        a, off = AW[2], (n & 1) * 5120 + 2048 + q * 1536 + (s - 2) * 32
                yield f"ds_read_b64_tr_b16 v[{F(f)+2*q}:{F(f)+2*q+1}], v{a} offset:{off}"
        def kswitch(n):
            if n % 2 == 0:
                if ps == 1: move("w", AW, W1A[n // 2])
                else:       move("w", AW[:3], W2A[n // 2][1])
                bstamp(8 * (ps - 1) + n // 2)
                e("s_barrier")
                if ps == 2 and not UST:
                    for _ in range(opt.get("tper", 2)):
                        if DEF:
                            for x in DEF.pop(0):
                                if opt.get("nost1") and "buffer_store" in x: continue
                                e(x.replace(" sc1", "") if opt.get("plain1") else x)
                            NST[0] += 1
                    if n // 2 == opt.get("sgk", 3):
                        bstamp(20); signal(4, 3, WS_F1, 164, 165, max(0, NST[0] - 4)); bstamp(21)
                    if n // 2 == opt.get("sgh", 5):
                        assert not DEF
                        bstamp(22); signal(24, 3, WS_F1H, 164, 165); bstamp(23)
            if NSB > LA or n < 2: xread(n)
        def xread(n):
            p = kst(n)
            if ps == 1 or p >= 6:
                move("x", AX, XA[p >> 1])
                for r in range(2): e.lds(f"ds_read_b128 {vr(xreg(n,r),4)}, v{AX[p&1]} offset:{r*2048}", ("x", n))
        kswitch(0)
        if ps == 1: stamp(2)
        for f in range(LA):
            if f and f % NSB == 0: kswitch(f // NSB)
            for r_ in rd(f): e.lds(r_, f)
        for f in range(NF):
            n, s = divmod(f, NSB)
            nxt = f + LA
            if nxt < NF and nxt % NSB == 0: kswitch(nxt // NSB)
            if NSB <= LA and s == 0 and 1 <= n < 15: xread(n + 1)
            e.lwait([f, ("x", n)])
            if ps == 2 and f == NF - 1: e("s_barrier")
            rds = list(rd(nxt)) if nxt < NF else [None, None]
            for r in range(2):
                acc = vr(ACC(s, r), 4)
                e(f"v_mfma_f32_16x16x32_bf16 {acc}, {vr(F(f),4)}, {vr(xreg(n,r),4)}, {'0' if n == 0 else acc}")
                if rds[r]: e.lds(rds[r], nxt)
    RS = lambda r: 160 + 2 * r
    RQ = lambda r: 32 + 2 * r
    TT = 8
    CSR = [24, 28]
    def epilogue(ps):
        order = ([5, 6, 7, 2, 3, 4, 0, 1] if TIM else list(range(8))) if ps == 1 else [0, 1, 2, 3, 4]
        dd = {}
        loc = lambda s: s if ps == 1 else 8 + s
        if ps == 1:
            ldsadd(28, 8, 9)
            ldswait(20, 1, 8, 9)
        e(f"""v_and_b32 v16, 15, v0
        v_lshrrev_b32 v17, 4, v0
        s_lshl_b32 s3, s19, 9
        s_add_u32 s3, s3, {L_ST}
        v_lshl_add_u32 v8, v16, 4, s3
        v_lshlrev_b32 v164, 4, v17
        v_add_u32 v164, {L_ST+2048}, v164
        v_mov_b32 v10, {L_MISC}""")
        if ps == 1:
            for r in range(2): e.lds(f"ds_read_b64 {pk(RS(r))}, v8 offset:{256*r}", "st")
            e.lds("ds_read_b32 v10, v10", "st")
        def csread(n):
            if n < len(order): e.lds(f"ds_read_b128 {vr(CSR[n%2],4)}, v164 offset:{64*loc(order[n])}", ("cs", n))
        csread(0)
        e("v_lshlrev_b32 v166, 4, v0")
        if ps == 1:
            e(f"""s_lshl_b32 s64, s20, 2
            s_add_u32 s64, s64, s19
            s_lshl_b32 s65, s23, 8
            s_add_u32 s65, s65, s64
            s_lshl_b32 s65, s65, 10
            s_mul_i32 s66, s64, 112
            s_mul_i32 s67, s23, 3
            s_add_u32 s67, s67, s66
            s_add_u32 s67, s67, 64
            s_lshl_b32 s67, s67, 10
            s_lshl_b32 s3, s23, 2
            s_add_u32 s66, s66, s3
            s_lshl_b32 s66, s66, 10
            s_add_u32 s66, s66, {WS_H:#x}
            s_add_u32 s67, s67, {WS_H:#x}""")
            if UST:
                e("s_lshl_b32 s3, s19, 12")
                e("v_add_u32 v36, s3, v166")
                e(f"v_add_u32 v37, {W1A[7]}, v36")
                e(f"v_add_u32 v36, {W1A[6]}, v36")
            e.lwait("st")
            e("v_readfirstlane_b32 s61, v10")
        else:
            e("s_mov_b32 s3, 0x3eb8aa3b")
            for q in range(4): e(f"v_mul_f32 v{32+q}, s3, v{160+q}")
            e("s_lshl_b32 s3, s19, 10")
            e(f"s_add_u32 s3, s3, {L_Q}")
            e("v_add_u32 v36, s3, v166")
        for n, s in enumerate(order):
            T = 16 + 4 * (n % 2)
            stg = ps == 1 and UST
            dfr = ps == 1 and TIM and s >= 2 and not UST
            if dfr: T = ACC(s, 0) if s >= 5 else ACC(s + 3, 1)
            isQ = ps == 2 and s < 2
            isH = (ps == 1 and s >= 4) or (ps == 2 and s >= 2)
            if stg and s == 4: ldswait(28, 4, 38, 39)
            e.lwait(("cs", n))
            c = CSR[n % 2]
            csread(n + 1)
            if opt.get("xnop"): e("s_nop 3")
            if ps == 2 and opt.get("nopk", 1):
                for r in range(2):
                    sp = RQ(r) if isQ else RS(r)
                    for j in range(4): e(f"v_mul_f32 v{TT+4*r+j}, v{c+j}, v{sp+1}")
                for r in range(2):
                    sp = RQ(r) if isQ else RS(r)
                    for j in range(4): e(f"v_fmac_f32 v{TT+4*r+j}, v{ACC(s,r)+j}, v{sp}")
            else:
                for r in range(2):
                    sp = RQ(r) if isQ else RS(r)
                    for h in range(2):
                        e(f"v_pk_mul_f32 {pk(TT+4*r+2*h)}, {pk(c+2*h)}, {pk(sp)} op_sel:[0,1] op_sel_hi:[1,1]")
                for r in range(2):
                    sp = RQ(r) if isQ else RS(r)
                    for h in range(2):
                        t = TT + 4 * r + 2 * h
                        e(f"v_pk_fma_f32 {pk(t)}, {pk(ACC(s,r)+2*h)}, {pk(sp)}, {pk(t)} op_sel_hi:[1,0,1]")
            for r in range(2):
                for h in range(2):
                    t = TT + 4 * r + 2 * h
                    e(f"v_cvt_pk_bf16_f32 v{T+2*r+h}, v{t}, v{t+1}")
            if isQ or stg: sa = "s_nop 0"
            elif ps == 2: sa = f"s_add_u32 s3, s67, {(s-2)*1024}"
            elif s < 4: sa = f"s_add_u32 s3, s65, {WS_KV + s*0x10000:#x}"
            else: sa = f"s_add_u32 s3, s66, {(s-4)*1024}"
            e("s_nop 2")
            e(f"v_permlane16_swap_b32 v{T}, v{T+2}")
            e(f"v_permlane16_swap_b32 v{T+1}, v{T+3}")
            e(sa if not dfr else "s_nop 0")
            e("s_nop 0")
            if isH:
                for q in (0, 2, 1, 3): e(f"v_pk_max_i16 v{T+q}, v{T+q}, 0")
            if isQ:
                e.lds(f"ds_write_b128 v36, {vr(T,4)} offset:{s*4096}", "qw")
                if s == 1:
                    e.lwait_all()
                    ldsadd(16, 37, 38)
            elif stg: e.lds(f"ds_write_b128 v{36 + (s >> 2)}, {vr(T,4)} offset:{(s&3)*1024}", "qw")
            elif dfr: dd[s] = [sa, f"buffer_store_dwordx4 {vr(T,4)}, v166, {SS}, s3 offen sc1"]
            else:
                e(f"buffer_store_dwordx4 {vr(T,4)}, v166, {SS}, s3 offen sc1")
                NST[0] += 1
        for s in sorted(dd): DEF.append(dd[s])
    gemm(1)
    stamp(3)
    epilogue(1)
    e(f"""v_lshrrev_b32 v8, 2, v0
    v_and_b32 v10, 3, v0
    v_lshlrev_b32 v10, 3, v10
    v_lshl_add_u32 v1, v8, 6, v10
    v_bfe_u32 v11, v0, 4, 1
    v_lshl_add_u32 v1, v11, 5, v1
    v_add_u32 v1, {W2A[0][1]}, v1
    v_xor_b32 v2, 32, v1
    v_mul_u32_u24 v3, 96, v8
    v_add_u32 v3, v3, v10
    v_add_u32 v3, {W2A[0][1]}, v3""")
    cur["w"] = W2A[0][1]
    e.lwait_all()
    stamp(4)
    gemm(2)
    bflush()
    stamp(5)
    epilogue(2)
    e("s_mov_b32 s96, s19")
    e("s_mov_b32 s97, 1")
    e("s_branch L_ATT")

    e("L_UTIL:")
    e.vm = []; e.lg = []
    if opt.get("uprio0", 3): e(f"s_setprio {opt.get('uprio0', 3)}")
    L0, U, A, CL, C0, C1, VE = 16, 24, 40, 48, 64, 72, 80
    e("v_and_b32 v5, 7, v0")
    if opt.get("pfc", 1):
        sk = lab("NOPC")
        e("s_cmp_lg_u32 s19, 3")
        e(f"s_cbranch_scc1 {sk}")
        e("s_getpc_b64 s[64:65]")
        e("L_PCREF:")
        e(f"s_sub_u32 s64, s64, L_PCREF-{name}")
        e("s_subb_u32 s65, s65, 0")
        e("s_lshr_b32 s66, s2, 3")
        e("s_mul_i32 s66, s66, (L_END-%s+4095)/4096*128" % name)
        e("v_lshlrev_b32 v2, 7, v0")
        e("v_add_u32 v2, s66, v2")
        e("v_mov_b32 v3, s65")
        e("v_add_co_u32 v2, vcc, s64, v2")
        e("s_nop 1")
        e("v_addc_co_u32 v3, vcc, 0, v3, vcc")
        e("v_cmp_gt_u32 vcc, (L_END-%s+4095)/4096, v0" % name)
        e("s_nop 1")
        e("s_and_saveexec_b64 s[66:67], vcc")
        e("global_load_dword v163, v[2:3], off")
        e("s_mov_b64 exec, -1")
        e(f"{sk}:")
    PFU = opt.get("pfu", 0)
    def pf_x():
        e("""v_and_b32 v2, 31, v0
        v_lshlrev_b32 v2, 10, v2
        v_lshrrev_b32 v3, 5, v0
        v_lshl_add_u32 v2, v3, 7, v2
        s_lshl_b32 s64, s20, 17
        s_lshl_b32 s65, s22, 15
        s_add_u32 s64, s64, s65
        s_lshl_b32 s65, s19, 8
        s_add_u32 s64, s64, s65""")
        e(f"buffer_load_dword v160, v2, {SX}, s64 offen")
    def pf_w():
        L1, L2, L3, LD = lab("PW"), lab("PW"), lab("PW"), lab("PW")
        e("""s_and_b32 s64, s20, 7
        v_lshlrev_b32 v2, 3, v0
        v_add_u32 v2, s64, v2
        v_mul_u32_u24 v3, 3584, v2
        v_mul_u32_u24 v2, 3072, v2
        s_lshl_b32 s64, s23, 7""")
        e("s_cmp_eq_u32 s19, 1"); e(f"s_cbranch_scc1 {L1}")
        e("s_cmp_eq_u32 s19, 3"); e(f"s_cbranch_scc1 {L3}")
        e("s_add_u32 s65, s64, 1024")
        e("s_lshr_b32 s64, s64, 1")
        e("s_cmp_eq_u32 s19, 0")
        e("s_cselect_b32 s64, s65, s64")
        e(f"buffer_load_dword v161, v2, {SW}, s64 offen")
        e(f"s_branch {LD}")
        e(f"{L3}:")
        e("s_mul_i32 s64, s23, 96")
        e("s_add_u32 s64, s64, 2048")
        e(f"buffer_load_dword v162, v3, {S1}, s64 offen offset:92")
        e(f"{L1}:")
        e(f"buffer_load_dword v161, v3, {S1}, s64 offen")
        e(f"{LD}:")
    if PFU == 1: pf_x(); pf_w()
    e(f"v_mov_b32 v{VE}, 0")
    e(f"s_mov_b32 s3, {WS_EP:#x}")
    e.vmem(f"buffer_load_dword v{VE}, v{VE}, {SS}, s3 offen sc1", "rs")
    e(f"""v_lshrrev_b32 v4, 5, v0
    v_and_b32 v6, 31, v0
    v_lshlrev_b32 v6, 4, v6
    v_lshl_add_u32 v6, v4, 10, v6
    v_lshlrev_b32 v{VE+1}, 4, v4
    s_lshl_b32 s64, s20, 7
    s_lshl_b32 s65, s23, 3
    s_add_u32 s64, s64, s65
    s_lshl_b32 s65, s19, 1
    s_add_u32 s64, s64, s65
    s_lshl_b32 s65, s64, 10""")
    e.vmem(f"buffer_load_dwordx4 {vr(L0,4)}, v6, {SX}, s65 offen", "rs")
    e.vmem(f"buffer_load_dwordx4 {vr(L0+4,4)}, v6, {SX}, s65 offen offset:512", "rs")
    e("""s_add_u32 s66, s23, 8
    s_add_u32 s67, s23, 24
    s_cmp_eq_u32 s19, 1
    s_cselect_b32 s66, s67, s66
    s_add_u32 s67, s23, 32
    s_cmp_lt_u32 s23, 8
    s_cselect_b32 s67, s23, s67
    s_cmp_eq_u32 s19, 2
    s_cselect_b32 s66, s67, s66
    s_add_u32 s67, s23, 48
    s_cmp_eq_u32 s19, 3
    s_cselect_b32 s66, s67, s66
    v_lshrrev_b32 v2, 3, v0
    v_lshlrev_b32 v3, 4, v5
    s_cmp_ge_u32 s66, 52
    s_cbranch_scc1 L_CSD
    s_lshl_b32 s67, s66, 7
    s_cmp_ge_u32 s66, 24
    s_cbranch_scc1 L_CSW
    v_mul_u32_u24 v4, 3072, v2
    v_add_u32 v4, v4, v3""")
    e(f"s_mul_i32 s68, s20, {32*3072}")
    e("s_add_u32 s68, s68, s67")
    for t in range(4):
        e(f"buffer_load_dwordx4 {vr(CL+4*t,4)}, v4, {SW}, s68 offen")
        if t < 3: e(f"s_add_u32 s68, s68, {8*3072}")
    e("s_branch L_CSD")
    e("L_CSW:")
    e("v_mul_u32_u24 v4, 3584, v2")
    e("v_add_u32 v4, v4, v3")
    e(f"s_mul_i32 s68, s20, {32*3584}")
    e("s_add_u32 s68, s68, s67")
    e(f"s_sub_u32 s68, s68, {24*128}")
    for t in range(4):
        e(f"buffer_load_dwordx4 {vr(CL+4*t,4)}, v4, {S1}, s68 offen")
        if t < 3: e(f"s_add_u32 s68, s68, {8*3584}")
    e("L_CSD:")
    if PFU == 2:
        e("s_mov_b32 s74, s64")
        pf_x(); pf_w()
        e("s_mov_b32 s64, s74")
    e(f"""s_mov_b32 s69, 0xffff0000
    s_mov_b32 s70, 0x3b000000
    s_lshl_b32 s64, s64, 4
    s_add_u32 s64, s64, {WS_RS:#x}
    v_lshlrev_b32 v14, 4, v0
    s_lshl_b32 s71, s23, 8
    s_add_u32 s72, s71, {512*4}
    v_add_u32 v15, s72, v14
    s_add_u32 s72, s71, {1536*4 - 256}
    v_add_u32 v2, s72, v14
    v_cmp_le_u32 vcc, 16, v0
    s_lshl_b32 s72, s23, 7
    s_sub_u32 s72, s72, 512
    v_cndmask_b32 v15, v15, v2, vcc
    v_add_u32 v2, s72, v14
    v_cmp_le_u32 vcc, 32, v0
    s_mul_i32 s72, s23, 192
    s_add_u32 s72, s72, {2560*4 - 640}
    v_cndmask_b32 v15, v15, v2, vcc
    v_min_u32 v2, 51, v0
    v_lshlrev_b32 v2, 4, v2
    v_add_u32 v2, s72, v2
    v_cmp_le_u32 vcc, 40, v0
    s_nop 1
    v_cndmask_b32 v15, v15, v2, vcc""")
    def piece(n):
        if n == 0:
            e("s_cmp_ge_u32 s66, 52")
            e("s_cbranch_scc1 L_P0A")
            e(f"s_waitcnt vmcnt({4 + (2 if PFU == 2 else 0)})")
            e("s_branch L_P0B")
            e("L_P0A:")
            e(f"s_waitcnt vmcnt({2 if PFU == 2 else 0})")
            e("L_P0B:")
            for q in range(8):
                e(f"v_lshlrev_b32 v{U+2*q}, 16, v{L0+q}")
                e(f"v_and_b32 v{U+2*q+1}, s69, v{L0+q}")
            for q in range(4): e(f"v_add_f32 v{A+q}, v{U+q}, v{U+4+q}")
            for t in range(2, 4):
                for q in range(4): e(f"v_add_f32 v{A+q}, v{A+q}, v{U+4*t+q}")
            e(f"v_add_f32 v{A}, v{A}, v{A+1}")
            e(f"v_add_f32 v{A+2}, v{A+2}, v{A+3}")
            e(f"v_add_f32 v{A}, v{A}, v{A+2}")
            reduce32(e, [A], [A + 1])
            e(f"v_mul_f32 v{A}, s70, v{A}")
            e(f"v_add_u32 v{A+6}, {EPC:#x}, v{VE}")
            e(f"v_mov_b32 v2, {L_MISC}")
            e("v_mov_b32 v3, 0")
            e(f"ds_write_b32 v2, v{A+6}")
            for o in (4, 8, 12, 16, 20, 24, 28): e(f"ds_write_b32 v2, v3 offset:{o}")
        if n == 1:
            for q in range(16): e(f"v_sub_f32 v{U+q}, v{U+q}, v{A}")
            for q in range(4): e(f"v_mul_f32 v{L0+q}, v{U+q}, v{U+q}")
            for q in range(4, 16): e(f"v_fmac_f32 v{L0+(q&3)}, v{U+q}, v{U+q}")
            e(f"v_add_f32 v{L0}, v{L0}, v{L0+1}")
            e(f"v_add_f32 v{L0+2}, v{L0+2}, v{L0+3}")
            e(f"v_add_f32 v{A+4}, v{L0}, v{L0+2}")
            reduce32(e, [A + 4], [A + 5])
            e(f"v_mov_b32 v{A+5}, 0x3727c5ac")
            e(f"v_fma_f32 v{A+4}, v{A+4}, s70, v{A+5}")
            e(f"v_rsq_f32 v{A+4}, v{A+4}")
            e(f"v_readfirstlane_b32 s61, v{A+6}")
            e(f"v_mov_b32 v{A+7}, v{A+6}")
            e(f"v_mul_f32 v{A+5}, v{A}, v{A+4}")
            e(f"v_sub_f32 v{A+5}, 0, v{A+5}")
            e("s_mov_b32 exec_lo, 1")
            e("s_mov_b32 exec_hi, 1")
            e(f"buffer_store_dwordx4 {vr(A+4,4)}, v{VE+1}, {SS}, s64 offen sc1")
            e("s_mov_b64 exec, -1")
        if n == 2:
            e(f"s_waitcnt vmcnt({1 + (2 if PFU == 2 else 0)})")
            for q in range(4):
                e(f"v_lshlrev_b32 v{C0+2*q}, 16, v{CL+q}")
                e(f"v_and_b32 v{C0+2*q+1}, s69, v{CL+q}")
            for t in range(1, 4):
                for q in range(4):
                    e(f"v_lshlrev_b32 v{C1+2*q}, 16, v{CL+4*t+q}")
                    e(f"v_and_b32 v{C1+2*q+1}, s69, v{CL+4*t+q}")
                for q in range(8): e(f"v_add_f32 v{C0+q}, v{C0+q}, v{C1+q}")
            e("s_nop 1")
            for q in range(8): e(f"v_add_f32_dpp v{C0+q}, v{C0+q}, v{C0+q} row_ror:8 row_mask:0xf bank_mask:0xf")
            e("s_mov_b32 s72, 0xff00ff00")
            e("s_mov_b32 s73, 0xff00ff00")
            for q in range(4): e(f"v_cndmask_b32 v{C0+q}, v{C0+q}, v{C0+4+q}, s[72:73]")
            for sw in ("v_permlane16_swap_b32", "v_permlane32_swap_b32"):
                for q in range(4): e(f"v_mov_b32 v{C1+q}, v{C0+q}")
                e("s_nop 0")
                for q in range(4): e(f"{sw} v{C0+q}, v{C1+q}")
                for q in range(4): e(f"v_add_f32 v{C0+q}, v{C0+q}, v{C1+q}")
            e("s_mov_b32 s71, 0xff")
            e(f"v_bfe_u32 v{C1+2}, v0, 3, 1")
            for q in range(4): e(f"v_bfi_b32 v{C0+q}, s71, v{A+6}, v{C0+q}")
            e(f"v_lshlrev_b32 v{C1+1}, 5, v5")
            e(f"v_lshl_add_u32 v{C1+1}, v{C1+2}, 4, v{C1+1}")
            e(f"s_mul_i32 s71, s20, {3328*4}")
            e("s_lshl_b32 s72, s66, 8")
            e("s_add_u32 s71, s71, s72")
            e(f"s_add_u32 s71, s71, {WS_CS:#x}")
            e("s_cmp_ge_u32 s66, 52")
            e("s_cbranch_scc1 L_P2S")
            e("s_mov_b64 exec, 0xffff")
            e(f"buffer_store_dwordx4 {vr(C0,4)}, v{C1+1}, {SS}, s71 offen sc1")
            e("s_mov_b64 exec, -1")
            e("L_P2S:")
    def kvsetup():
        e(f"""v_and_b32 v10, 3, v0
        v_min_u32 v10, 2, v10
        s_sub_u32 s76, s20, 2
        v_add_u32 v10, s76, v10
        v_max_i32 v10, 0, v10
        v_lshlrev_b32 v10, 11, v10
        v_bfe_u32 v11, v0, 2, 1
        v_lshl_add_u32 v10, v11, 10, v10
        s_lshr_b32 s76, s23, 1
        s_lshl_b32 s76, s76, 7
        s_add_u32 s76, s76, {WS_F1:#x}
        v_mov_b32 v11, s61
        v_lshlrev_b32 v1, 4, v0
        s_lshr_b32 s52, s19, 1
        s_lshl_b32 s53, s23, 1
        s_add_u32 s53, s53, s52
        s_lshl_b32 s53, s53, 6
        s_and_b32 s54, s19, 1
        s_mul_i32 s54, s54, 6
        s_lshl_b32 s55, s20, 2
        s_add_u32 s54, s54, s55
        s_mul_i32 s55, s19, 6144""")
    def kvdma():
        for t in range(6):
            e(f"s_add_u32 s68, s54, {t}")
            e("s_sub_i32 s68, s68, 8")
            e("s_max_i32 s68, s68, 0")
            e("s_add_u32 s68, s68, s53")
            e("s_lshl_b32 s68, s68, 10")
            e(f"s_add_u32 m0, s55, {L_K + t*1024}")
            e("s_add_u32 s69, s68, 0x200000")
            e(f"buffer_load_dwordx4 v1, {SS}, s68 offen sc1 lds")
            e(f"s_add_u32 m0, s55, {L_V + t*1024}")
            e("s_nop 0")
            e(f"buffer_load_dwordx4 v1, {SS}, s69 offen sc1 lds")
    G0 = 84
    def gather():
        e(f"s_mov_b32 s71, {WS_CS:#x}")
        for g in range(16):
            e(f"buffer_load_dwordx4 {vr(G0+4*g,4)}, v15, {SS}, s71 offen sc1")
            e(f"s_add_u32 s71, s71, {3328*4}")
        e("s_lshl_b32 s71, s20, 11")
        e(f"s_add_u32 s71, s71, {WS_RS:#x}")
        for h in range(2):
            e(f"buffer_load_dwordx4 {vr(G0+64+4*h,4)}, v14, {SS}, s71 offen offset:{h*1024} sc1")
    PK = opt.get("pk", [0, 0, 1]); GK = opt.get("gk", 4); CK = opt.get("ck", 6)
    for n_, kk_ in enumerate(PK):
        if kk_ < 0: piece(n_)
    for k in range(16):
        if k == 2: e("s_waitcnt lgkmcnt(0)")
        bstamp(k)
        e("s_barrier")
        for n_, kk_ in enumerate(PK):
            if kk_ == k: piece(n_)
        KVK = opt.get("kvk", 14)
        if k == 8:
            kvsetup()
            e("s_mov_b32 s77, 0")
        if k == KVK - 1: e(f"buffer_load_dword v4, v10, {SS}, s76 offen sc1")
        if k == KVK:
            sk = lab("KVLATE")
            e("s_waitcnt vmcnt(0)")
            e("v_cmp_ne_u32 vcc, v11, v4")
            e("s_nop 1")
            e("s_cmp_lg_u64 vcc, 0")
            e(f"s_cbranch_scc1 {sk}")
            kvdma()
            e("s_mov_b32 s77, 1")
            e(f"{sk}:")
        PW0 = opt.get("pfw", 0)
        if PW0 and PW0 <= k < 16:
            if k == PW0:
                srd(e, 44, 14, 1792 * 1024)
                srd(e, 48, 8, 512 * 1024)
                e("s_lshr_b32 s78, s2, 3")
                e("s_mul_i32 s79, s78, 57344")
                e("s_mul_i32 s3, s19, 14336")
                e("s_add_u32 s79, s79, s3")
                e("s_lshl_b32 s78, s78, 14")
                e("s_lshl_b32 s3, s19, 12")
                e("s_add_u32 s78, s78, s3")
            per = -(-18 // (opt.get("pfwe", 16) - PW0))
            for j in range(per * (k - PW0), min(18, per * (k - PW0 + 1))):
                if j < 14:
                    e(f"s_add_u32 s3, s79, {j*1024}")
                    e(f"buffer_load_dwordx4 v[120:123], v14, {S2}, s3 offen")
                else:
                    e(f"buffer_load_dwordx4 v[120:123], v14, {SO}, s78 offen offset:{(j-14)*1024}")
        if opt.get("pfl2", 0) and 8 <= k <= 10:
            if k == 8:
                srd(e, 44, 14, 1792 * 1024)
                srd(e, 48, 8, 512 * 1024)
                e("v_lshlrev_b32 v12, 7, v0")
                e("s_lshr_b32 s78, s2, 3")
            j = k - 8
            sk = lab("NOP2")
            if j < 2:
                e("s_mul_i32 s71, s78, 57344")
                e("s_lshl_b32 s72, s19, 13")
                e("s_add_u32 s71, s71, s72")
                if j == 1:
                    e("s_cmp_eq_u32 s19, 3")
                    e(f"s_cbranch_scc1 {sk}")
                    e("s_add_u32 s71, s71, 32768")
                e(f"buffer_load_dword v13, v12, {S2}, s71 offen")
            else:
                e("s_cmp_ge_u32 s19, 2")
                e(f"s_cbranch_scc1 {sk}")
                e("s_lshl_b32 s71, s78, 14")
                e("s_lshl_b32 s72, s19, 13")
                e("s_add_u32 s71, s71, s72")
                e(f"buffer_load_dword v13, v12, {SO}, s71 offen")
            e(f"{sk}:")
        if UST and k == 8:
            e(f"""s_lshl_b32 s3, s19, 12
            v_add_u32 v2, s3, v14
            v_add_u32 v3, {W1A[7]}, v2
            v_add_u32 v2, {W1A[6]}, v2""")
            for s_ in range(8): e(f"ds_read_b128 {vr(16+4*s_,4)}, v{2+(s_>>2)} offset:{(s_&3)*1024}")
            e(f"""s_lshl_b32 s64, s20, 2
            s_add_u32 s64, s64, s19
            s_lshl_b32 s65, s23, 8
            s_add_u32 s65, s65, s64
            s_lshl_b32 s65, s65, 10
            s_mul_i32 s66, s64, 112
            s_lshl_b32 s3, s23, 2
            s_add_u32 s66, s66, s3
            s_lshl_b32 s66, s66, 10
            s_add_u32 s66, s66, {WS_H:#x}
            s_waitcnt lgkmcnt(0)""")
        if UST and k >= 8:
            SP = opt.get("sper", 2)
            for s_ in range(SP * (k - 8), min(8, SP * (k - 7))):
                if s_ < 4: e(f"s_add_u32 s3, s65, {WS_KV + s_*0x10000:#x}")
                else: e(f"s_add_u32 s3, s66, {(s_-4)*1024}")
                e(f"buffer_store_dwordx4 {vr(16+4*s_,4)}, v14, {SS}, s3 offen sc1")
            if k == opt.get("ugk", 12): signal(4, 3, WS_F1, 2, 3, max(0, min(8, SP * (k - 7)) - 4))
            if k == opt.get("ugh", 15): signal(24, 3, WS_F1H, 2, 3)
        if k == opt.get("pf2k", 2) and opt.get("pf2", 1):
            sk = lab("NOPF")
            e("s_cmp_lg_u32 s19, 1")
            e(f"s_cbranch_scc1 {sk}")
            srd(e, 44, 14, 1792 * 1024)
            srd(e, 48, 8, 512 * 1024)
            e("v_lshlrev_b32 v2, 7, v0")
            e("s_mul_i32 s71, s2, 7168")
            e("s_mov_b32 exec_hi, 0xffffff")
            e(f"buffer_load_dword v160, v2, {S2}, s71 offen")
            e("s_lshl_b32 s71, s2, 11")
            e("s_mov_b64 exec, 0xffff")
            e(f"buffer_load_dword v161, v2, {SO}, s71 offen")
            e("s_mov_b64 exec, -1")
            e(f"{sk}:")
        if k in (GK, CK, CK + 1):
            sk = lab("NOPOST")
            e("s_cmp_lg_u32 s19, 0")
            e(f"s_cbranch_scc1 {sk}")
            if k == GK: gather()
            if k == CK:
                e("s_mov_b32 s73, 0x20000")
                e("L_CHK:")
                e("s_waitcnt vmcnt(0)")
                e(f"v_xor_b32 v2, s61, v{G0}")
                for i in range(G0 + 1, G0 + 64): e(f"v_bitop3_b32 v2, v2, v{i}, s61 bitop3:0xf6")
                e("v_and_b32 v2, 0xff, v2")
                for i in (66, 67, 70, 71): e(f"v_bitop3_b32 v2, v2, v{G0+i}, s61 bitop3:0xf6")
                e("v_cmp_ne_u32 vcc, 0, v2")
                e("s_sub_u32 s73, s73, 1")
                e("s_cmp_eq_u32 s73, 0")
                e("s_cbranch_scc1 L_GOT")
                e("s_cmp_eq_u64 vcc, 0")
                e("s_cbranch_scc1 L_GOT")
                gather()
                e("s_branch L_CHK")
                e("L_GOT:")
            if k == CK + 1:
                e("s_mov_b32 s71, 0xffffff00")
                for i in range(G0, G0 + 64): e(f"v_and_b32 v{i}, s71, v{i}")
                for g in range(1, 16):
                    for h in range(4): e(f"v_add_f32 v{G0+h}, v{G0+h}, v{G0+4*g+h}")
                e(f"v_add_u32 v2, {L_ST}, v14")
                e(f"ds_write_b128 v2, {vr(G0+64,4)}")
                e(f"ds_write_b128 v2, {vr(G0+68,4)} offset:1024")
                e(f"ds_write_b128 v2, {vr(G0,4)} offset:2048")
                e("s_waitcnt lgkmcnt(0)")
                ldsadd(20, 2, 3)
            e(f"{sk}:")
    bflush()
    stamp(3)
    e("s_barrier")
    stamp(4)
    e("s_cmp_lg_u32 s77, 0")
    e("s_cbranch_scc1 L_KVDONE")
    poll(10, "s76", 11, 4)
    kvdma()
    e("L_KVDONE:")
    e(f"v_add_u32 v2, {L_ONE}, v1")
    for q in range(4): e(f"v_mov_b32 v{8+q}, 0x3f803f80")
    e("ds_write_b128 v2, v[8:11]")
    e("s_add_u32 s96, s19, 4")
    e("s_mov_b32 s97, 0")
    e("s_waitcnt vmcnt(0) lgkmcnt(0)")
    ldsadd(16, 2, 3)
    stamp(5)

    e("L_ATT:")
    e.vm = []; e.lg = []
    Q = 8
    K = lambda u: 12 + 4 * u
    V = lambda u, g: 48 + ((u & 1) * 2 + g) * 4
    S = lambda b: 64 + 16 * b
    P, O = 112, 120
    VNEG, M0_, M1_, NM, MK = 136, 137, 138, 139, 140
    VA, VSTR = 148, 149
    for j in range(16):
        b0 = (j >> 2) * 8 + (j & 3)
        e(f"s_mov_b32 s{64+2*j}, {(0xffffffff << b0) & 0xffffffff:#x}")
        e(f"s_mov_b32 s{65+2*j}, {(0xffffffff << (b0+4)) & 0xffffffff:#x}")
    e(f"v_mov_b32 v{VNEG}, {NEG:#x}")
    e("v_mov_b32 v6, 0xffff")
    e("v_mov_b32 v7, 0xffff0000")
    for q in range(8):
        e(f"v_cndmask_b32 v{MK+q}, 0, v6, s[{64+4*q}:{65+4*q}]")
        e(f"v_cndmask_b32 v{S(2)}, 0, v7, s[{66+4*q}:{67+4*q}]")
        e(f"v_or_b32 v{MK+q}, v{MK+q}, v{S(2)}")
    e(f"""s_and_b32 s3, s96, 3
    s_lshl_b32 s26, s20, 2
    s_add_u32 s26, s26, s3
    s_add_u32 s25, s26, 1
    s_min_u32 s25, s25, 9
    s_lshr_b32 s62, s96, 2
    s_lshl_b32 s27, s23, 1
    s_add_u32 s27, s27, s62
    v_lshlrev_b32 v1, 4, v0
    s_lshl_b32 s63, s96, 10
    s_add_u32 s63, s63, {L_Q}
    v_add_u32 v3, s63, v1
    s_mul_i32 s62, s62, 12288
    s_lshl_b32 s3, s3, 10
    s_add_u32 s3, s3, s62
    s_add_u32 s62, s3, {L_K}
    v_add_u32 v4, s62, v1
    v_lshrrev_b32 v5, 5, v0
    v_lshlrev_b32 v5, 2, v5
    v_bfe_u32 v6, v0, 2, 2
    v_add_u32 v5, v5, v6
    v_lshlrev_b32 v5, 4, v5
    v_bfe_u32 v6, v0, 1, 1
    v_lshl_add_u32 v5, v6, 9, v5
    v_and_b32 v6, 1, v0
    v_lshl_add_u32 v5, v6, 3, v5
    s_add_u32 s3, s3, {L_V + 8192}
    v_add_u32 v5, s3, v5
    v_mov_b32 v6, {L_ONE}
    v_mov_b32 v7, 1024
    s_mov_b32 s98, 0xffff
    s_mov_b32 s99, 0xffff
    v_cndmask_b32 v5, v6, v5, s[98:99]
    v_cndmask_b32 v{VSTR}, 0, v7, s[98:99]
    v_lshlrev_b32 v7, 3, v{VSTR}
    v_sub_u32 v{VA+2}, v5, v7""")
    stamp(6)
    def owed():
        sk = lab("NOOWE")
        e("s_cmp_eq_u32 s97, 0")
        e(f"s_cbranch_scc1 {sk}")
        signal(12, 3, WS_F1B, 152, 153)
        e(f"{sk}:")
    if opt.get("owu", 0) == 0: owed()
    ldswait(16, 8, 2, 6)
    e(f"s_setprio {opt.get('aprio', 0)}")
    stamp(7)
    def fill(buf, val, diag):
        for j in range(16):
            a, b = (f"v{VNEG}", val) if diag else (val, f"v{VNEG}")
            e(f"v_cndmask_b32 v{S(buf)+j}, {a}, {b}, s[{64+2*j}:{65+2*j}]")
    def smfma(u, buf, cin):
        e.lwait(("K", u))
        e(f"v_mfma_f32_32x32x16_bf16 {vr(S(buf),16)}, {vr(K(u),4)}, {vr(Q,4)}, {cin}")
    def vread(u, par=None, va=None):
        if va is None:
            if u == 0: e(f"v_mov_b32 v{VA}, v5")
            else: e(f"v_sub_u32 v{VA}, v{VA}, v{VSTR}")
            va = VA
        for g in range(2):
            r = V(u if par is None else par, g)
            for h in range(2): e.lds(f"ds_read_b64_tr_b16 v[{r+2*h}:{r+2*h+1}], v{va} offset:{g*256 + h*128}", ("V", u))
    PD, PFR = S(2), S(2) + 8
    if opt.get("noatt"): e("s_branch L_P2DONE")
    e.lds(f"ds_read_b128 {vr(Q,4)}, v3", "Q")
    for u in [0, 8, 1]: e.lds(f"ds_read_b128 {vr(K(u),4)}, v4 offset:{(8-u)*1024}", ("K", u))
    vread(0); vread(8, 1, VA + 2)
    smfma(0, 0, "0"); smfma(8, 2, "0"); smfma(1, 1, "0")
    for u in range(2, 8): e.lds(f"ds_read_b128 {vr(K(u),4)}, v4 offset:{(8-u)*1024}", ("K", u))
    e("s_nop 4")
    s0 = S(0)
    for j in range(16): e(f"v_cndmask_b32 v{s0+j}, v{S(2)+j}, v{s0+j}, s[{64+2*j}:{65+2*j}]")
    for j in range(16): e(f"v_exp_f32 v{s0+j}, v{s0+j}")
    for q in range(8): e(f"v_cvt_pk_bf16_f32 v{P+q}, v{s0+2*q}, v{s0+2*q+1}")
    for q in range(8): e(f"v_and_b32 v{PD+q}, v{MK+q}, v{P+q}")
    e.lwait(("V", 8))
    e(f"v_mfma_f32_32x32x16_bf16 {vr(O,16)}, {vr(V(0,0),4)}, {vr(PD,4)}, 0")
    for q in range(8): e(f"v_bfi_b32 v{PFR+q}, v{MK+q}, 0, v{P+q}")
    e(f"v_mfma_f32_32x32x16_bf16 {vr(O,16)}, {vr(V(0,1),4)}, {vr(PD+4,4)}, {vr(O,16)}")
    e("s_cmp_lt_u32 s25, 9")
    e("s_cbranch_scc1 L_NOFAR")
    e(f"v_mfma_f32_32x32x16_bf16 {vr(O,16)}, {vr(V(1,0),4)}, {vr(PFR,4)}, {vr(O,16)}")
    e(f"v_mfma_f32_32x32x16_bf16 {vr(O,16)}, {vr(V(1,1),4)}, {vr(PFR+4,4)}, {vr(O,16)}")
    e("L_NOFAR:")
    vread(1)
    e("s_cmp_eq_u32 s25, 1")
    e("s_cbranch_scc1 L_FCHK")
    def pv(u, g): e(f"v_mfma_f32_32x32x16_bf16 {vr(O,16)}, {vr(V(u,g),4)}, {vr(P+4*g,4)}, {vr(O,16)}")
    for u in range(1, 8):
        s_ = S(u % 2)
        if u + 1 <= 7: smfma(u + 1, (u + 1) % 2, "0")
        for j in range(2): e(f"v_exp_f32 v{s_+j}, v{s_+j}")
        if u > 1: pv(u - 1, 1)
        if u + 1 <= 7: vread(u + 1)
        for j in range(2, 8): e(f"v_exp_f32 v{s_+j}, v{s_+j}")
        for q in range(4): e(f"v_cvt_pk_bf16_f32 v{P+q}, v{s_+2*q}, v{s_+2*q+1}")
        for j in range(8, 10): e(f"v_exp_f32 v{s_+j}, v{s_+j}")
        e.lwait(("V", u))
        pv(u, 0)
        for j in range(10, 16): e(f"v_exp_f32 v{s_+j}, v{s_+j}")
        for q in range(4, 8): e(f"v_cvt_pk_bf16_f32 v{P+q}, v{s_+2*q}, v{s_+2*q+1}")
        if u < 7:
            e(f"s_cmp_eq_u32 s25, {u+1}")
            e(f"s_cbranch_scc1 L_FX{u&1}")
    e("L_FX1:")
    e("s_nop 1")
    pv(1, 1)
    e("s_branch L_FCHK")
    e("L_FX0:")
    e("s_nop 1")
    pv(0, 1)
    e("L_FCHK:")
    e("s_mov_b32 s52, 0x1f800000")
    e("s_mov_b32 s53, 0x5f800000")
    e("s_mov_b32 s3, 0x7f800000")
    e("s_waitcnt lgkmcnt(0)")
    e("s_nop 7")
    e(f"v_add_f32 v6, |v{O}|, |v{O+1}|")
    e(f"v_add_f32 v7, |v{O+2}|, |v{O+3}|")
    e(f"v_add_f32 v2, |v{O+4}|, |v{O+5}|")
    e(f"v_add_f32 v3, |v{O+6}|, |v{O+7}|")
    e(f"v_cmp_le_f32 s[62:63], s52, v{O+8}")
    e(f"v_cmp_ge_f32 s[98:99], s53, v{O+8}")
    e("v_add_f32 v6, v6, v7")
    e("v_add_f32 v2, v2, v3")
    e("v_add_f32 v6, v6, v2")
    e("s_and_b64 s[62:63], s[62:63], s[98:99]")
    e("v_cmp_gt_f32 vcc, s3, v6")
    e("s_nop 0")
    e("s_and_b64 s[62:63], s[62:63], vcc")
    e("s_cmp_eq_u64 s[62:63], -1")
    if opt.get("forceslow"): e("s_cmp_eq_u32 s62, 12345")
    e("s_cbranch_scc1 L_P2DONE")
    e.lg = []
    e(f"v_mov_b32 v{M0_}, v{VNEG}")
    e(f"v_mov_b32 v{M1_}, v{VNEG}")
    fill(0, "0", True)
    e("s_nop 1")
    smfma(0, 0, vr(S(0), 16))
    smfma(1, 1, "0")
    for u in range(9):
        if u + 2 <= 8:
            if u + 2 == 8:
                fill((u + 2) % 3, "0", False); e("s_nop 1")
                smfma(u + 2, (u + 2) % 3, vr(S((u + 2) % 3), 16))
            else:
                smfma(u + 2, (u + 2) % 3, "0")
        if u == 0: e("s_nop 9")
        for q in range(8):
            m = M0_ + (q & 1)
            e(f"v_max3_f32 v{m}, v{S(u%3)+2*q}, v{S(u%3)+2*q+1}, v{m}")
        if u < 8:
            e(f"s_cmp_eq_u32 s25, {u+1}")
            e("s_cbranch_scc1 L_P1DONE")
    e("L_P1DONE:")
    vread(0)
    e(f"v_max_f32 v{M0_}, v{M0_}, v{M1_}")
    e(f"v_mov_b32 v{M1_}, v{M0_}")
    e("s_nop 1")
    e(f"v_permlane32_swap_b32 v{M0_}, v{M1_}")
    e("s_nop 1")
    e(f"v_max_f32 v{M0_}, v{M0_}, v{M1_}")
    e(f"v_sub_f32 v{NM}, 0, v{M0_}")
    e("s_nop 3")
    CB = S(2)
    for j in range(16): e(f"v_mov_b32 v{CB+j}, v{NM}")
    fill(0, f"v{NM}", True)
    e("s_nop 1")
    smfma(0, 0, vr(S(0), 16))
    for u in range(9):
        s = S(u % 2)
        if u + 1 <= 8:
            nb_ = (u + 1) % 2
            if u + 1 == 8:
                fill(nb_, f"v{NM}", False); e("s_nop 1")
                smfma(u + 1, nb_, vr(S(nb_), 16))
            else:
                smfma(u + 1, nb_, vr(CB, 16))
            vread(u + 1)
        if u == 0: e("s_nop 6")
        for j in range(8): e(f"v_exp_f32 v{s+j}, v{s+j}")
        for q in range(4): e(f"v_cvt_pk_bf16_f32 v{P+q}, v{s+2*q}, v{s+2*q+1}")
        for j in range(8, 16): e(f"v_exp_f32 v{s+j}, v{s+j}")
        e.lwait(("V", u))
        e(f"v_mfma_f32_32x32x16_bf16 {vr(O,16)}, {vr(V(u,0),4)}, {vr(P,4)}, {'0' if u == 0 else vr(O,16)}")
        for q in range(4, 8): e(f"v_cvt_pk_bf16_f32 v{P+q}, v{s+2*q}, v{s+2*q+1}")
        e("s_nop 1")
        e(f"v_mfma_f32_32x32x16_bf16 {vr(O,16)}, {vr(V(u,1),4)}, {vr(P+4,4)}, {vr(O,16)}")
        if u < 8:
            e(f"s_cmp_eq_u32 s25, {u+1}")
            e("s_cbranch_scc1 L_P2X")
    e("L_P2X:")
    e("s_waitcnt lgkmcnt(0)")
    e("s_nop 12")
    e("L_P2DONE:")
    e("s_lshl_b32 s3, s26, 5")
    e("s_add_u32 s3, s3, s27")
    e("s_lshl_b32 s3, s3, 10")
    e(f"s_add_u32 s3, s3, {WS_O:#x}")
    e(f"v_rcp_f32 v7, v{O+8}")
    e("s_nop 0")
    for j in range(8): e(f"v_mul_f32 v{O+j}, v{O+j}, v7")
    for q in range(4): e(f"v_cvt_pk_bf16_f32 v{P+q}, v{O+2*q}, v{O+2*q+1}")
    e(f"buffer_store_dwordx4 {vr(P,4)}, v1, {SS}, s3 offen sc1")
    stamp(8)
    signal(8, 7, WS_F2)
    stamp(9)
    e("s_cmp_lg_u32 s2, 0")
    e("s_cbranch_scc1 L_FIN")
    e("s_cmp_lg_u32 s96, 1")
    e("s_cbranch_scc1 L_FIN")
    e("v_lshlrev_b32 v6, 7, v0")
    e("s_mov_b32 s63, 0x20000")
    e("L_BCHK:")
    for g in range(4):
        e(f"s_mov_b32 s62, {WS_F2 + g*8192:#x}")
        e(f"buffer_load_dword v{8+g}, v6, {SS}, s62 offen sc1")
    e("s_waitcnt vmcnt(0)")
    e("v_xor_b32 v7, s61, v8")
    for i in range(9, 12): e(f"v_bitop3_b32 v7, v7, v{i}, s61 bitop3:0xf6")
    e("v_cmp_ne_u32 vcc, 0, v7")
    e("s_sub_u32 s63, s63, 1")
    e("s_cmp_eq_u32 s63, 0")
    e("s_cbranch_scc1 L_FIN")
    e("s_cmp_lg_u64 vcc, 0")
    e("s_cbranch_scc1 L_BCHK")
    e("s_mov_b64 exec, 1")
    e("v_mov_b32 v6, 0")
    e("v_mov_b32 v7, s61")
    e(f"s_mov_b32 s62, {WS_EP:#x}")
    e(f"buffer_store_dword v7, v6, {SS}, s62 offen sc1")
    e("s_mov_b64 exec, -1")
    e("L_FIN:")
    e.vm = []; e.lg = []
    srd(e, 28, 10, 2048 * 1024)
    e(f"""v_lshrrev_b32 v7, 3, v0
    v_and_b32 v14, 7, v0
    v_lshlrev_b32 v8, 4, v14
    v_lshl_add_u32 v2, v7, 10, v8
    s_lshl_b32 s62, s58, 16
    s_lshl_b32 s3, s96, 13
    s_add_u32 s62, s62, s3
    s_lshl_b32 s3, s59, 7
    s_add_u32 s62, s62, s3""")
    e(f"buffer_load_dwordx4 v[8:11], v2, {SX}, s62 offen")
    e(f"""s_and_b32 s3, s96, 3
    s_lshl_b32 s3, s3, 10
    s_cmp_ge_u32 s96, 4
    s_mov_b32 s63, {BREG[0]}
    s_cselect_b32 s63, {BREG[2]}, s63
    s_mov_b32 s64, {BREG[1]}
    s_cselect_b32 s64, {BREG[3]}, s64
    s_add_u32 s63, s63, s3
    s_add_u32 s64, s64, s3
    v_and_b32 v12, 3, v0
    v_lshlrev_b32 v12, 1, v12
    v_xor_b32 v12, v12, v7
    v_bfe_u32 v13, v0, 2, 1
    v_xor_b32 v12, v12, v13
    v_lshlrev_b32 v12, 4, v12
    v_lshl_add_u32 v12, v7, 7, v12
    v_mov_b32 v15, s63
    v_mov_b32 v16, s64
    v_cmp_eq_u32 vcc, 1, v13
    s_nop 1
    v_cndmask_b32 v15, v15, v16, vcc
    v_add_u32 v24, v15, v12
    v_xor_b32 v25, 16, v24""")
    stamp(10)
    e("s_barrier")
    stamp(11)
    R = lambda src, h: 48 + src * 8 + h * 4
    for src in range(4):
        for h in range(2): e.lds(f"ds_read_b128 {vr(R(src,h),4)}, v{24+h} offset:{src*4096}", src)
    e("s_mov_b32 s3, 0xffff0000")
    e("s_waitcnt vmcnt(0)")
    for q in range(4):
        e(f"v_lshlrev_b32 v{32+2*q}, 16, v{8+q}")
        e(f"v_and_b32 v{33+2*q}, s3, v{8+q}")
    for src in range(4):
        e.lwait(src)
        for q in range(4): e(f"v_pk_add_f32 {pk(32+2*q)}, {pk(32+2*q)}, {pk(R(src,0)+2*q)}")
    for q in range(4): e(f"v_cvt_pk_bf16_f32 v{40+q}, v{32+2*q}, v{33+2*q}")
    e("buffer_store_dwordx4 v[40:43], v2, s[28:31], s62 offen " + opt.get("ost", ""))
    if ST:
        e("L_DUMP:")
        stamp(12)
        e("s_waitcnt vmcnt(0)")
        stamp(13); stamp(14, True)
        if opt.get("dbgst") is not None:
            e("s_load_dwordx2 s[4:5], s[0:1], 56")
            e(f"s_cmp_lg_u32 s2, {opt['dbgst']}")
            e("s_cbranch_scc1 L_END")
            e("s_cmp_lg_u32 s18, 4")
            e("s_cbranch_scc1 L_END")
            e(f"v_readlane_b32 s6, v{VST}, 1")
            e(f"v_readlane_b32 s7, v{VST}, 0")
            e("s_waitcnt lgkmcnt(0)")
            e(f"v_subrev_u32 v3, s6, v{VST}")
            e(f"v_subrev_u32 v4, s7, v{VST}")
            e("v_cmp_eq_u32 vcc, 14, v0")
            e("s_nop 1")
            e("v_cndmask_b32 v3, v3, v4, vcc")
            e("v_lshlrev_b32 v2, 2, v0")
            e("s_mov_b64 exec, 0xffff")
            e("global_store_dword v2, v3, s[4:5]")
            e("s_endpgm")
        e("s_mul_i32 s3, s2, 12")
        e("s_add_u32 s3, s3, s18")
        e("s_lshl_b32 s3, s3, 7")
        e("s_add_u32 s3, s3, 0x1000000")
        e("v_lshl_add_u32 v2, v0, 2, s3")
        e("s_mov_b64 exec, 0xffffffff")
        e(f"global_store_dword v2, v{VST}, s[16:17]")
    e("L_END:")
    e("s_endpgm")
    return name, e.text(), kd(name, 168), (256, 768, LDS)

def build(opt, path):
    n, t, k, (g, b, lds) = gen(opt)
    ref = open(f"cdna_kernels/{NAME}.s.ref").read().split("\n")
    head = [l for l in ref if l.startswith(";") and "@launch" not in l and "Override launch" not in l and "grid=ceil" not in l]
    s = "\n".join(head[:10]) + "\n"
    s += f"; @launch grid=({g},1,1) block=({b},1,1) lds={lds}\n"
    s += '.amdgcn_target "amdgcn-amd-amdhsa--gfx950"\n.text\n'
    s += f".globl {n}\n.p2align 8\n.type {n},@function\n" + t
    s += '.section .rodata,"a"\n.p2align 6\n' + k
    open(path, "w").write(s)

if __name__ == "__main__":
    import sys, json
    opt = json.loads(sys.argv[2]) if len(sys.argv) > 2 else {}
    build(opt, sys.argv[1])
```

```python
from emit import *
from alloc import plan3, plan4

NAME = "parallel_sum__sliding_block__dense_activation_relu__prompt"
WS_KV, WS_H, WS_O = 0, 0x600000, 0xD00000
WS_RS = 0xF00000
WS_CS = 0xF10000
WS_EP = 0xF80000
WS_F1, WS_F1B, WS_F2, WS_F1H = 0xF90000, 0xFA0000, 0xFB0000, 0xFC0000
WS_BYTES = 0x1000000
EPC = 0x9E3779B9
L_ST = 158720
L_MISC = L_ST + 3072
LDS = L_MISC + 64
ORD2 = list(range(6, 16)) + list(range(6))
NEG = 0xf149f2ca
pk = lambda a: f"v[{a}:{a+1}]"
SW, S1, SX, SS, S2, SO = "s[28:31]", "s[32:35]", "s[36:39]", "s[40:43]", "s[44:47]", "s[48:51]"
VST = 167

def reduce32(e, regs, tmp):
    for ctl in ("quad_perm:[1,0,3,2]", "quad_perm:[2,3,0,1]", "row_half_mirror", "row_mirror"):
        e("s_nop 1")
        for r in regs: e(f"v_add_f32_dpp v{r}, v{r}, v{r} {ctl} row_mask:0xf bank_mask:0xf")
    for r, t in zip(regs, tmp): e(f"v_mov_b32 v{t}, v{r}")
    e("s_nop 1")
    for r, t in zip(regs, tmp): e(f"v_permlane16_swap_b32 v{r}, v{t}")
    e("s_nop 1")
    for r, t in zip(regs, tmp): e(f"v_add_f32 v{r}, v{r}, v{t}")

def gen(opt):
    e = Em()
    name = NAME + "_kernel"
    ST = opt.get("stamps")
    NB = 6
    NT = opt.get("nt", "")
    PL = opt.get("pl", 2)
    XA, W1A, W2A, FIN = plan3(PL, opt.get("w2l", 2), NB, opt.get("ust", 0))
    if not opt.get("ust", 0): XA, W1A, W2A, FIN = plan4(PL, NB, opt.get("w2t", 5))
    BREG = [FIN[f"B{j}"][1] for j in range(NB)]
    BT = [max(FIN[f"B{j}"][0], min(16, opt.get("bt0", 11) + j)) for j in range(NB)]
    L_K, L_V, L_Q, L_ONE = FIN["K"], FIN["V"], FIN["Q"], FIN["ONES"]
    def stamp(i, rt=False):
        if not ST: return
        e(("s_memrealtime" if rt else "s_memtime") + " s[100:101]")
        e("s_waitcnt lgkmcnt(0)")
        e(f"v_writelane_b32 v{VST}, s100, {i}")
    BK = opt.get("bk", [])
    def bstamp(k):
        if ST and k in BK: e(f"s_memtime s[{80+2*BK.index(k)}:{81+2*BK.index(k)}]")
    def bflush():
        if ST and BK:
            e("s_waitcnt lgkmcnt(0)")
            for i in range(len(BK)): e(f"v_writelane_b32 v{VST}, s{80+2*i}, {16+i}")
    uid = [0]
    def lab(p):
        uid[0] += 1
        return f"{p}_{uid[0]}"
    def apoll_issue(voff, soff, vd, tag):
        e.vmem(f"buffer_load_dword v{vd}, v{voff}, {SS}, {soff} offen sc1", tag)
    def apoll_check(voff, soff, vtag, vd, tag):
        D = lab("AOK")
        e.vwait(tag)
        e(f"v_cmp_ne_u32 vcc, v{vtag}, v{vd}")
        e("s_nop 1")
        e("s_cmp_eq_u64 vcc, 0")
        e(f"s_cbranch_scc1 {D}")
        keep = list(e.vm); keepl = list(e.lg)
        poll(voff, soff, vtag, vd)
        e.vm = keep; e.lg = keepl
        e(f"{D}:")
    def poll(voff, soff, vtag, vd):
        L, D = lab("POLL"), lab("POLLED")
        e("s_mov_b32 s63, 0x40000")
        e(f"{L}:")
        e(f"buffer_load_dword v{vd}, v{voff}, {SS}, {soff} offen sc1")
        e("s_waitcnt vmcnt(0) lgkmcnt(0)")
        e(f"v_cmp_ne_u32 vcc, v{vtag}, v{vd}")
        e("s_sub_u32 s63, s63, 1")
        e("s_cmp_eq_u32 s63, 0")
        e(f"s_cbranch_scc1 {D}")
        e("s_cmp_lg_u64 vcc, 0")
        e(f"s_cbranch_scc1 {L}")
        e(f"{D}:")
        e.vm = []; e.lg = []
    def ldswait(off, val, va, vb):
        L, D = lab("LW"), lab("LWOK")
        e(f"v_mov_b32 v{va}, {L_MISC}")
        e("s_mov_b32 s63, 0x400000")
        e(f"{L}:")
        e(f"ds_read_b32 v{vb}, v{va} offset:{off}")
        e("s_sub_u32 s63, s63, 1")
        e("s_waitcnt lgkmcnt(0)")
        e(f"v_readfirstlane_b32 s62, v{vb}")
        e("s_cmp_eq_u32 s63, 0")
        e(f"s_cbranch_scc1 {D}")
        e(f"s_cmp_ge_u32 s62, {val}")
        e(f"s_cbranch_scc1 {D}")
        e("s_sleep 1")
        e(f"s_branch {L}")
        e(f"{D}:")
        e.lg = []
    def ldsadd(off, va, vb):
        e(f"v_mov_b32 v{va}, {L_MISC}")
        e(f"v_mov_b32 v{vb}, 1")
        e("s_mov_b64 exec, 1")
        e(f"ds_add_u32 v{va}, v{vb} offset:{off}")
        e("s_mov_b64 exec, -1")
    def signal(coff, last, base, va=2, vb=3, vm=0):
        N = lab("NOFLAG")
        e(f"s_waitcnt vmcnt({vm})")
        e(f"v_mov_b32 v{va}, {L_MISC}")
        e(f"v_mov_b32 v{vb}, 1")
        e("s_mov_b64 exec, 1")
        e(f"ds_add_rtn_u32 v{vb}, v{va}, v{vb} offset:{coff}")
        e(f"s_add_u32 s62, s24, {base:#x}")
        e("s_waitcnt lgkmcnt(0)")
        e(f"v_readfirstlane_b32 s63, v{vb}")
        e(f"s_cmp_lg_u32 s63, {last}")
        e(f"s_cbranch_scc1 {N}")
        e(f"v_mov_b32 v{va}, 0")
        e(f"v_mov_b32 v{vb}, s61")
        e(f"buffer_store_dword v{vb}, v{va}, {SS}, s62 offen sc1")
        e(f"{N}:")
        e("s_mov_b64 exec, -1")
        e.lg = []

    e(f"{name}:")
    e("s_cmp_ge_u32 s2, 256")
    e("s_cbranch_scc1 L_END")
    stamp(0, True); stamp(1)
    if opt.get("deadline"): e("s_memrealtime s[98:99]"); e("s_waitcnt lgkmcnt(0)"); e("v_writelane_b32 v167, s98, 0")
    e("s_load_dwordx4 s[4:7], s[0:1], 0")
    e("s_load_dwordx4 s[12:15], s[0:1], 32")
    e("s_load_dwordx2 s[16:17], s[0:1], 64")
    e("s_load_dwordx2 s[8:9], s[0:1], 16")
    e("s_load_dwordx2 s[10:11], s[0:1], 48")
    e("v_lshrrev_b32 v1, 6, v0")
    e("v_and_b32 v0, 63, v0")
    e("v_readfirstlane_b32 s18, v1")
    e("""s_and_b32 s3, s2, 1
    s_lshl_b32 s20, s3, 3
    s_lshr_b32 s24, s2, 5
    s_add_u32 s20, s20, s24
    s_bfe_u32 s21, s2, 0x20001
    s_bfe_u32 s22, s2, 0x20003
    s_lshl_b32 s23, s21, 2
    s_add_u32 s23, s23, s22
    s_lshl_b32 s24, s20, 4
    s_add_u32 s24, s24, s23
    s_lshl_b32 s24, s24, 7
    s_and_b32 s19, s18, 3
    s_lshl_b32 s3, s3, 2
    s_add_u32 s58, s3, s21
    s_lshl_b32 s58, s58, 2
    s_lshr_b32 s59, s2, 6
    s_add_u32 s58, s58, s59
    s_bfe_u32 s59, s2, 0x30003""")
    if opt.get("map2", 0):
        e("""s_and_b32 s20, s2, 3
        s_lshl_b32 s20, s20, 2
        s_lshr_b32 s3, s2, 6
        s_add_u32 s20, s20, s3
        s_bfe_u32 s23, s2, 0x10002
        s_lshl_b32 s23, s23, 3
        s_bfe_u32 s3, s2, 0x30003
        s_add_u32 s23, s23, s3
        s_lshl_b32 s24, s20, 4
        s_add_u32 s24, s24, s23
        s_lshl_b32 s24, s24, 7""")
    if opt.get("own", 1):
        e("s_lshl_b32 s58, s20, 1")
        e("s_lshr_b32 s59, s23, 3")
        e("s_add_u32 s58, s58, s59")
        e("s_and_b32 s59, s23, 7")
    e("s_waitcnt lgkmcnt(0)")
    if opt.get("wsoff"):
        e(f"s_add_u32 s16, s16, {opt['wsoff'] << 20:#x}")
        e("s_addc_u32 s17, s17, 0")
    srd(e, 36, 4, 2048 * 1024)
    srd(e, 28, 6, 512 * 3072)
    srd(e, 32, 12, 512 * 3584)
    srd(e, 40, 16, WS_BYTES)
    e("s_cmp_ge_u32 s18, 8")
    e("s_cbranch_scc1 L_UTIL")
    e("s_cmp_ge_u32 s18, 4")
    e("s_cbranch_scc1 L_CONS")

    e(f"""v_and_b32 v5, 7, v0
    v_lshrrev_b32 v2, 3, v0
    v_lshrrev_b32 v3, 4, v0
    v_xor_b32 v3, v3, v5
    v_lshlrev_b32 v2, 10, v2
    v_lshl_add_u32 v12, v3, 4, v2
    v_xor_b32 v13, 64, v12
    s_lshl_b32 s65, s20, 17
    s_lshl_b32 s3, s18, 15
    s_add_u32 s65, s65, s3
    s_lshl_b32 s67, s18, 12""")
    def issueX(P):
        e(f"s_add_u32 m0, s67, {XA[P]}")
        e(f"s_add_u32 s74, s65, {P*128}")
        for a in range(4):
            e.vmem(f"buffer_load_dwordx4 v{12+(a&1)}, {SX}, s74 offen offset:{a*1024} {NT} lds", ("x", P))
            if a < 3: e(f"s_add_u32 s74, s74, {8192-1024}")
    issueX(0)
    e("""v_lshrrev_b32 v2, 5, v0
    v_bfe_u32 v3, v0, 3, 2
    v_lshl_add_u32 v3, v2, 3, v3
    v_bfe_u32 v4, v0, 4, 2
    v_lshlrev_b32 v4, 1, v4
    v_xor_b32 v4, v4, v5
    v_lshlrev_b32 v4, 4, v4
    v_mul_u32_u24 v10, 3072, v3
    v_add_u32 v10, v10, v4
    v_mul_u32_u24 v11, 3584, v3
    v_add_u32 v11, v11, v4
    s_lshr_b32 s52, s18, 1
    s_lshl_b32 s52, s52, 5
    s_and_b32 s62, s18, 1
    s_lshl_b32 s3, s62, 2
    s_add_u32 s52, s52, s3
    s_lshl_b32 s3, s23, 7
    s_mul_i32 s53, s52, 3072
    s_add_u32 s53, s53, s3
    s_add_u32 s53, s53, 1024
    s_mul_i32 s54, s52, 3584
    s_add_u32 s54, s54, s3""")
    def issueW(c):
        for ah in range(2):
            e(f"s_add_u32 m0, s67, {W1A[c] + ah*2048}")
            e(f"s_add_u32 s74, s53, {(64*c + 16*ah)*3072}")
            e.vmem(f"buffer_load_dwordx4 v10, {SW}, s74 offen {NT} lds", ("w", c))
            e(f"s_add_u32 m0, s67, {W1A[c] + ah*2048 + 1024}")
            e(f"s_add_u32 s74, s54, {(64*c + 16*ah)*3584}")
            e.vmem(f"buffer_load_dwordx4 v11, {S1}, s74 offen {NT} lds", ("w", c))
    def esetup():
        e("""v_lshrrev_b32 v2, 4, v0
        v_bfe_u32 v3, v0, 2, 2
        v_lshl_add_u32 v3, v2, 3, v3
        v_mul_u32_u24 v16, 3072, v3
        v_and_b32 v2, 1, v2
        v_lshlrev_b32 v2, 1, v2
        v_and_b32 v3, 3, v0
        v_xor_b32 v2, v2, v3
        v_lshl_add_u32 v16, v2, 4, v16
        s_and_b32 s62, s18, 1
        s_lshl_b32 s3, s62, 7""")
        for j in range(2):
            e(f"""v_add_u32 v2, s3, v0
            v_add_u32 v2, {64*j}, v2
            v_mul_u32_u24 v3, 10923, v2
            v_lshrrev_b32 v3, 16, v3
            v_mul_u32_u24 v4, 6, v3
            v_sub_u32 v4, v2, v4
            v_bfe_u32 v6, v3, 2, 2
            v_lshlrev_b32 v6, 3, v6
            v_lshrrev_b32 v7, 4, v3
            v_lshl_add_u32 v6, v7, 2, v6
            v_and_b32 v7, 3, v3
            v_add_u32 v6, v6, v7
            v_mul_u32_u24 v{17+j}, 3584, v6
            v_lshl_add_u32 v{17+j}, v4, 4, v{17+j}""")
        e("""s_cmp_eq_u32 s62, 1
        s_cselect_b32 s3, 0x80000000, 0
        v_or_b32 v18, s3, v18
        s_lshr_b32 s3, s18, 1
        s_mul_i32 s55, s52, 3072
        s_lshl_b32 s64, s23, 6
        s_add_u32 s55, s55, s64
        s_mul_i32 s56, s3, 114688
        s_mul_i32 s64, s23, 96
        s_add_u32 s56, s56, s64
        s_add_u32 s56, s56, 2048
        s_mul_i32 s57, s3, 5120
        s_lshl_b32 s64, s62, 10
        s_add_u32 s60, s57, s64
        s_lshl_b32 s64, s62, 11
        s_add_u32 s57, s57, s64
        s_add_u32 s64, s57, 1024
        s_cmp_eq_u32 s62, 1
        s_cselect_b32 s64, 8192, s64""")
    def issueW2(c):
        p = ORD2[2 * c]
        base = W2A[c][1]
        e(f"s_add_u32 m0, s60, {base}")
        e(f"s_add_u32 s74, s55, {p*32*3072}")
        e.vmem(f"buffer_load_dwordx4 v16, {SW}, s74 offen {NT} lds", ("w2", c))
        e(f"s_add_u32 m0, s57, {base + 2048}")
        e(f"s_add_u32 s74, s56, {p*32*3584}")
        e.vmem(f"buffer_load_dwordx4 v17, {S1}, s74 offen {NT} lds", ("w2", c))
        e(f"s_add_u32 m0, s64, {base + 2048}")
        e("s_nop 0")
        e.vmem(f"buffer_load_dwordx4 v18, {S1}, s74 offen {NT} lds", ("w2", c))
    NF2, NS, NA = 14, 18, 4
    A0 = 20
    AF = lambda sg, tb, kk: A0 + (sg % NA) * 16 + (tb * 2 + kk) * 4
    ACB = A0 + NA * 16
    GACC = lambda tb, nb: ACB + (tb * 2 + nb) * 16
    BFB = ACB + 64
    BF = lambda kk, nb: BFB + (kk * 2 + nb) * 4
    assert BFB + 16 <= VST
    def gsetup():
        srd(e, 44, 14, 1792 * 1024)
        srd(e, 48, 8, 512 * 1024)
        e(f"""v_lshrrev_b32 v8, 3, v0
        v_bfe_u32 v2, v0, 4, 1
        v_lshlrev_b32 v2, 2, v2
        v_xor_b32 v9, v5, v2
        v_lshlrev_b32 v9, 4, v9
        v_lshl_add_u32 v14, v8, 10, v9
        v_lshrrev_b32 v2, 2, v8
        v_lshlrev_b32 v2, 3, v2
        v_and_b32 v8, 3, v8
        v_add_u32 v8, v8, v2
        v_lshl_add_u32 v15, v8, 10, v9
        v_lshlrev_b32 v1, 4, v0
        s_lshl_b32 s3, s59, 7
        s_lshl_b32 s70, s18, 18
        s_add_u32 s70, s70, s3
        s_mul_i32 s78, s18, {12*16*1024}
        s_add_u32 s78, s78, s3
        s_lshl_b32 s71, s18, 17
        s_add_u32 s71, s71, s3
        s_mul_i32 s72, s58, {2*112*1024}
        s_add_u32 s72, s72, {WS_H:#x}
        s_mul_i32 s79, s18, {12*1024}
        s_add_u32 s79, s79, s72
        s_lshl_b32 s3, s18, 14
        s_add_u32 s72, s72, s3
        s_lshl_b32 s73, s58, 16
        s_lshl_b32 s3, s18, 13
        s_add_u32 s73, s73, s3
        s_add_u32 s73, s73, {WS_O:#x}
        s_and_b32 s3, s58, 3
        s_cmp_eq_u32 s3, s18
        s_cselect_b32 s26, 1, 0
        s_cmp_eq_u32 s59, s18
        s_cselect_b32 s27, 1, 0
        s_add_u32 s3, s18, 4
        s_cmp_eq_u32 s59, s3
        s_cselect_b32 s21, 1, 0
        s_lshl_b32 s69, s58, 1
        s_add_u32 s69, s69, s59
        s_and_b32 s69, s69, {opt.get("rotm", 7)}
        s_sub_u32 s25, s69, 6
        s_cmp_ge_u32 s69, 6
        s_cselect_b32 s25, s25, s69""")
    KS = [(2 * i, False) for i in range(8)] + [(64 + 2 * i, True) for i in range(6)]
    ROT = opt.get("rot", 0)
    def ridx(sg):
        if sg < 8:
            e(f"s_add_u32 s68, s69, {sg}")
            e("s_and_b32 s68, s68, 7")
        elif sg < NF2:
            e(f"s_add_u32 s68, s25, {sg-8}")
            e("s_sub_u32 s3, s68, 6")
            e("s_cmp_ge_u32 s68, 6")
            e("s_cselect_b32 s68, s3, s68")
        else:
            e(f"s_add_u32 s68, s69, {sg-NF2}")
            e("s_and_b32 s68, s68, 3")
    def issueB(sg):
        if ROT:
            ridx(sg)
            e("s_lshl_b32 s68, s68, 15")
            e(f"s_add_u32 s68, s68, {'s70' if sg < 8 else 's78' if sg < NF2 else 's71'}")
        for a in range(4):
            e(f"s_add_u32 m0, s67, {BREG[sg % NB] + a*1024}")
            if sg < NF2:
                k16, ex = KS[sg]
                if ROT: e(f"s_add_u32 s74, s68, {((1024 if ex else 0) + 8*a)*1024}")
                else: e(f"s_add_u32 s74, {'s78' if ex else 's70'}, {(16*k16 + 8*a)*1024}")
                e.vmem(f"buffer_load_dwordx4 v14, {S2}, s74 offen lds", ("B", sg))
            else:
                if ROT: e(f"s_add_u32 s74, s68, {(16*(a>>1) + 4*(a&1))*1024}")
                else: e(f"s_add_u32 s74, s71, {(32*(sg-NF2) + 16*(a>>1) + 4*(a&1))*1024}")
                e.vmem(f"buffer_load_dwordx4 v15, {SO}, s74 offen lds", ("B", sg))
    def issueA(sg, tbs=(0, 1)):
        for tb in tbs:
            if sg < NF2:
                k16, ex = KS[sg]
                e(f"s_add_u32 s74, {'s79' if ex else 's72'}, {(tb*112 + k16)*1024}")
            else: e(f"s_add_u32 s74, s73, {(tb*32 + 2*(sg-NF2))*1024}")
            for kk in range(2):
                e.vmem(f"buffer_load_dwordx4 {vr(AF(sg,tb,kk),4)}, v1, {SS}, s74 offen offset:{kk*1024} sc1", ("A", sg))
    LEAD = opt.get("lead", 0)
    def either(sreg, lead_fn, foll_fn):
        L1, L2 = lab("LD"), lab("LE")
        e(f"s_cmp_lg_u32 {sreg}, 0")
        e(f"s_cbranch_scc1 {L1}")
        allk = list(e.act)
        e.act = [k for k in allk if sreg not in k]
        if foll_fn: foll_fn()
        e(f"s_branch {L2}")
        e(f"{L1}:")
        keep = list(e.vm)
        e.act = [k for k in allk if sreg in k]
        if lead_fn: lead_fn()
        e.vm = keep
        e.act = allk
        e(f"{L2}:")
    def gsetup2():
        e(f"""v_lshrrev_b32 v6, 5, v0
        v_lshlrev_b32 v6, 3, v6
        v_bfe_u32 v7, v0, 2, 2
        v_add_u32 v6, v6, v7
        v_lshlrev_b32 v6, 7, v6
        v_lshrrev_b32 v7, 1, v7
        v_lshl_add_u32 v6, v7, 6, v6
        v_bfe_u32 v7, v0, 4, 1
        v_lshl_add_u32 v6, v7, 5, v6
        v_and_b32 v7, 3, v0
        v_lshl_add_u32 v6, v7, 3, v6
        v_add_u32 v6, s67, v6
        v_xor_b32 v7, 64, v6
        v_add_u32 v8, 49152, v6
        v_add_u32 v9, 49152, v7
        v_mov_b32 v2, {L_MISC}
        ds_read_b32 v2, v2
        v_and_b32 v3, 3, v0
        v_lshlrev_b32 v3, 7, v3
        s_lshr_b32 s76, s58, 1
        s_lshl_b32 s76, s76, 11
        s_lshl_b32 s3, s18, 9
        s_add_u32 s76, s76, s3
        s_add_u32 s66, s76, {WS_F1H:#x}""")
        e("s_mov_b32 s75, 0")
        e("s_waitcnt lgkmcnt(0)")
    D = opt.get("gd", 3); DB = NB - 1; PS = opt.get("ps", 11); PB = 8 - D - 1
    GE = opt.get("ge", 15)
    def firstA(lo=0, hi=None):
        hi = D if hi is None else hi
        for sg in range(lo, hi):
            if LEAD & 2 and sg == hi - 1:
                for tb in range(2): either(("s27", "s21")[tb], lambda: issueA(sg, (tb,)), None)
            else: issueA(sg)
    issueW(0)
    for c in range(1, PL): issueX(c); issueW(c)
    for k in range(17):
        e.vwait([("w", k), ("x", k)] if k < 8 else [("w2", k - 8)])
        if k == 0: stamp(2)
        if k == 8: stamp(3)
        if k == 16: stamp(4)
        bstamp(k)
        if k == 16: bflush()
        e("s_barrier")
        if k + PL <= 7: issueX(k + PL); issueW(k + PL)
        if k == 1: gsetup()
        if k == 2: esetup()
        for c in range(8):
            if W2A[c][0] == k: issueW2(c)
        if k == 7 and any(W2A[c][0] == 7.5 for c in range(8)):
            ldswait(28, 4, 2, 3)
            for c in range(8):
                if W2A[c][0] == 7.5: issueW2(c)
        if k == 9: gsetup2()
        if k == GE - 2: apoll_issue(3, "s66", 4, "f1h")
        if k == GE:
            sk = lab("GLATE")
            e.vwait("f1h")
            e("v_cmp_ne_u32 vcc, v2, v4")
            e("s_nop 1")
            e("s_cmp_lg_u64 vcc, 0")
            e(f"s_cbranch_scc1 {sk}")
            keep = list(e.vm)
            firstA()
            e.vm = keep
            e("s_mov_b32 s75, 1")
            e(f"{sk}:")
        if k < 16:
            for j in range(NB):
                if BT[j] == k: issueB(j)
    if opt.get("gprio", 0): e(f"s_setprio {opt.get('gprio')}")
    for j in range(NB):
        if BT[j] >= 16: issueB(j)
    e("s_cmp_lg_u32 s75, 0")
    e("s_cbranch_scc1 L_GGO")
    keep = list(e.vm)
    poll(3, "s66", 2, 4)
    e.vm = keep
    if LEAD:
        assert GE > 16
        e.vm = []
        e.var_start([(b_, a_) for b_ in ("", "s26") for a_ in ("", "s27", "s21")])
    firstA()
    e("L_GGO:")
    stamp(5)
    def step(sg):
        if sg == opt.get("ghold", -1): ldswait(16, 8, 12, 13)
        e.vwait([("B", sg), ("A", sg)])
        reg = BREG[sg % NB]
        hi = reg // 49152
        off0 = reg - 49152 * hi
        for kk in range(2):
            for nb in range(2):
                for q in range(2):
                    e.lds(f"ds_read_b64_tr_b16 v[{BF(kk,nb)+2*q}:{BF(kk,nb)+2*q+1}], v{6+2*hi+nb} offset:{off0 + kk*2048 + q*512}", (kk, nb))
        if LEAD & 1:
            FB = opt.get("fb", 3)
            okb = lambda j: NB <= j < NS
            if okb(sg + DB) or okb(sg + FB):
                either("s26", (lambda: issueB(sg + DB)) if okb(sg + DB) else None, (lambda: issueB(sg + FB)) if okb(sg + FB) else None)
        elif NB <= sg + DB < NS: issueB(sg + DB)
        oka = lambda j: j < NF2 or (j < NS and sg > PS and j >= PS + 1 + D)
        if LEAD & 2:
            okf = lambda j: j < NF2 or (j < NS and sg > PS and j >= PS + D)
            for tb in range(2):
                if oka(sg + D) or okf(sg + D - 1):
                    either(("s27", "s21")[tb], (lambda: issueA(sg + D, (tb,))) if oka(sg + D) else None, (lambda: issueA(sg + D - 1, (tb,))) if okf(sg + D - 1) else None)
        elif oka(sg + D): issueA(sg + D)
        for kk in range(2):
            for nb in range(2):
                e.lwait((kk, nb))
                for tb in range(2):
                    acc = vr(GACC(tb, nb), 16)
                    cin = "0" if (sg == 0 and kk == 0) else acc
                    if opt.get("nogm") and (kk or nb): continue
                    e(f"v_mfma_f32_32x32x16_bf16 {acc}, {vr(BF(kk,nb),4)}, {vr(AF(sg,tb,kk),4)}, {cin}")
    for sg in range(PS + 1):
        if sg == PB - 1 or sg == PS - 1:
            e(f"s_add_u32 s66, s76, {(WS_F1B if sg == PB - 1 else WS_F2):#x}")
            apoll_issue(3, "s66", 4, "fl")
        step(sg)
        if sg == PB:
            stamp(6)
            apoll_check(3, "s66", 2, 4, "fl")
    stamp(7)
    apoll_check(3, "s66", 2, 4, "fl")
    stamp(8)
    firstA(NF2, min(NS, PS + 1 + D))
    for sg in range(PS + 1, NS): step(sg)
    e.var = None
    stamp(9)
    e("""v_and_b32 v12, 31, v0
    v_lshlrev_b32 v12, 7, v12
    v_lshrrev_b32 v13, 5, v0
    v_xor_b32 v13, v13, v5
    v_lshl_add_u32 v12, v13, 4, v12
    v_add_u32 v12, s67, v12""")
    for nb in range(2):
        for a in range(4): e(f"v_xor_b32 v{20+nb*4+a}, {((2*a) ^ nb)*16}, v12")
    for tb in range(2):
        for nb in range(2):
            for a in range(4): e(f"v_add_u32 v{28+(tb*2+nb)*4+a}, {BREG[tb*2+nb]}, v{20+nb*4+a}")
    for tb in range(2):
        for nb in range(2):
            for a in range(4): e(f"ds_write_b128 v{28+(tb*2+nb)*4+a}, {vr(GACC(tb,nb)+4*a,4)}")
    e("s_waitcnt lgkmcnt(0)")
    stamp(10)
    e("s_barrier")
    if ST: e("s_branch L_DUMP")
    e("s_endpgm")

    e("L_CONS:")
    e.vm = []; e.lg = []
    LA = opt.get("la", 5); NFB = 6
    F = lambda f: 8 + (f % NFB) * 4
    XF = lambda n, r: 32 + ((n & 1) * 2 + r) * 4
    XK = lambda p, r: 48 + (p * 2 + r) * 4
    ACC = lambda s, r: 96 + (s * 2 + r) * 4
    AW = [1, 2, 3, 4]; AX = [7, 5]
    e(f"""v_lshrrev_b32 v8, 2, v0
    v_lshrrev_b32 v9, 3, v8
    v_lshlrev_b32 v9, 11, v9
    v_and_b32 v10, 7, v8
    v_lshl_add_u32 v9, v10, 7, v9
    v_and_b32 v10, 3, v0
    v_lshlrev_b32 v10, 3, v10
    v_add_u32 v9, v9, v10
    v_bfe_u32 v11, v0, 3, 2
    v_lshl_add_u32 v1, v11, 5, v9
    v_add_u32 v1, {W1A[0]}, v1
    v_xor_b32 v2, 32, v1
    v_xor_b32 v3, 64, v1
    v_xor_b32 v4, 96, v1
    v_and_b32 v8, 15, v0
    v_lshrrev_b32 v9, 4, v0
    v_lshrrev_b32 v10, 1, v8
    v_xor_b32 v9, v9, v10
    v_lshlrev_b32 v8, 7, v8
    v_lshl_add_u32 v7, v9, 4, v8
    s_lshl_b32 s3, s19, 12
    s_add_u32 s3, s3, {XA[0]}
    v_add_u32 v7, s3, v7
    v_xor_b32 v5, 64, v7""")
    if opt.get("cprio", 0): e(f"s_setprio {opt.get('cprio')}")
    cur = {"w": W1A[0], "x": XA[0]}
    UST = opt.get("ust", 0)
    DEF = []; NST = [0]; TIM = 0 if UST else opt.get("tim", 2)
    def move(kind, regs, addr):
        d = addr - cur[kind]
        if d:
            for a in regs: e(f"v_add_u32 v{a}, {d & 0xffffffff:#x}, v{a}")
        cur[kind] = addr
    def gemm(ps):
        NSB = 8 if ps == 1 else 5
        NF = 16 * NSB
        kst = (lambda n: n) if ps == 1 else (lambda n: ORD2[n])
        xreg = lambda n, r: XK(kst(n), r) if kst(n) < 6 else XF(n, r)
        def rd(f):
            n, s = divmod(f, NSB)
            for q in range(2):
                if ps == 1:  a, off = AW[s & 3], (n & 1) * 8192 + q * 4096 + (s >> 2) * 1024
                elif s < 2:  a, off = AW[s], (n & 1) * 5120 + q * 1024
                else:        a, off = AW[2], (n & 1) * 5120 + 2048 + q * 1536 + (s - 2) * 32
                yield f"ds_read_b64_tr_b16 v[{F(f)+2*q}:{F(f)+2*q+1}], v{a} offset:{off}"
        def kswitch(n):
            if n % 2 == 0:
                if ps == 1: move("w", AW, W1A[n // 2])
                else:       move("w", AW[:3], W2A[n // 2][1])
                bstamp(8 * (ps - 1) + n // 2)
                e("s_barrier")
                if ps == 2 and not UST:
                    for _ in range(opt.get("tper", 2)):
                        if DEF:
                            for x in DEF.pop(0):
                                if opt.get("nost1") and "buffer_store" in x: continue
                                e(x.replace(" sc1", "") if opt.get("plain1") else x)
                            NST[0] += 1
                    if n // 2 == opt.get("sgk", 3):
                        bstamp(20); signal(4, 3, WS_F1, 164, 165, max(0, NST[0] - 4)); bstamp(21)
                    if n // 2 == opt.get("sgh", 5):
                        assert not DEF
                        bstamp(22); signal(24, 3, WS_F1H, 164, 165); bstamp(23)
            if NSB > LA or n < 2: xread(n)
        def xread(n):
            p = kst(n)
            if ps == 1 or p >= 6:
                move("x", AX, XA[p >> 1])
                for r in range(2): e.lds(f"ds_read_b128 {vr(xreg(n,r),4)}, v{AX[p&1]} offset:{r*2048}", ("x", n))
        kswitch(0)
        if ps == 1: stamp(2)
        for f in range(LA):
            if f and f % NSB == 0: kswitch(f // NSB)
            for r_ in rd(f): e.lds(r_, f)
        for f in range(NF):
            n, s = divmod(f, NSB)
            nxt = f + LA
            if nxt < NF and nxt % NSB == 0: kswitch(nxt // NSB)
            if NSB <= LA and s == 0 and 1 <= n < 15: xread(n + 1)
            e.lwait([f, ("x", n)])
            if ps == 2 and f == NF - 1: e("s_barrier")
            rds = list(rd(nxt)) if nxt < NF else [None, None]
            for r in range(2):
                acc = vr(ACC(s, r), 4)
                e(f"v_mfma_f32_16x16x32_bf16 {acc}, {vr(F(f),4)}, {vr(xreg(n,r),4)}, {'0' if n == 0 else acc}")
                if rds[r]: e.lds(rds[r], nxt)
    RS = lambda r: 160 + 2 * r
    RQ = lambda r: 32 + 2 * r
    TT = 8
    CSR = [24, 28]
    def epilogue(ps):
        order = ([5, 6, 7, 2, 3, 4, 0, 1] if TIM else list(range(8))) if ps == 1 else [0, 1, 2, 3, 4]
        dd = {}
        loc = lambda s: s if ps == 1 else 8 + s
        if ps == 1:
            ldsadd(28, 8, 9)
            ldswait(20, 1, 8, 9)
        e(f"""v_and_b32 v16, 15, v0
        v_lshrrev_b32 v17, 4, v0
        s_lshl_b32 s3, s19, 9
        s_add_u32 s3, s3, {L_ST}
        v_lshl_add_u32 v8, v16, 4, s3
        v_lshlrev_b32 v164, 4, v17
        v_add_u32 v164, {L_ST+2048}, v164
        v_mov_b32 v10, {L_MISC}""")
        if ps == 1:
            for r in range(2): e.lds(f"ds_read_b64 {pk(RS(r))}, v8 offset:{256*r}", "st")
            e.lds("ds_read_b32 v10, v10", "st")
        def csread(n):
            if n < len(order): e.lds(f"ds_read_b128 {vr(CSR[n%2],4)}, v164 offset:{64*loc(order[n])}", ("cs", n))
        csread(0)
        e("v_lshlrev_b32 v166, 4, v0")
        if ps == 1:
            e(f"""s_lshl_b32 s64, s20, 2
            s_add_u32 s64, s64, s19
            s_lshl_b32 s65, s23, 8
            s_add_u32 s65, s65, s64
            s_lshl_b32 s65, s65, 10
            s_mul_i32 s66, s64, 112
            s_mul_i32 s67, s23, 3
            s_add_u32 s67, s67, s66
            s_add_u32 s67, s67, 64
            s_lshl_b32 s67, s67, 10
            s_lshl_b32 s3, s23, 2
            s_add_u32 s66, s66, s3
            s_lshl_b32 s66, s66, 10
            s_add_u32 s66, s66, {WS_H:#x}
            s_add_u32 s67, s67, {WS_H:#x}""")
            if UST:
                e("s_lshl_b32 s3, s19, 12")
                e("v_add_u32 v36, s3, v166")
                e(f"v_add_u32 v37, {W1A[7]}, v36")
                e(f"v_add_u32 v36, {W1A[6]}, v36")
            e.lwait("st")
            e("v_readfirstlane_b32 s61, v10")
        else:
            e("s_mov_b32 s3, 0x3eb8aa3b")
            for q in range(4): e(f"v_mul_f32 v{32+q}, s3, v{160+q}")
            e("s_lshl_b32 s3, s19, 10")
            e(f"s_add_u32 s3, s3, {L_Q}")
            e("v_add_u32 v36, s3, v166")
        for n, s in enumerate(order):
            T = 16 + 4 * (n % 2)
            stg = ps == 1 and UST
            dfr = ps == 1 and TIM and s >= 2 and not UST
            if dfr: T = ACC(s, 0) if s >= 5 else ACC(s + 3, 1)
            isQ = ps == 2 and s < 2
            isH = (ps == 1 and s >= 4) or (ps == 2 and s >= 2)
            if stg and s == 4: ldswait(28, 4, 38, 39)
            e.lwait(("cs", n))
            c = CSR[n % 2]
            csread(n + 1)
            if opt.get("xnop"): e("s_nop 3")
            if ps == 2 and opt.get("nopk", 1):
                for r in range(2):
                    sp = RQ(r) if isQ else RS(r)
                    for j in range(4): e(f"v_mul_f32 v{TT+4*r+j}, v{c+j}, v{sp+1}")
                for r in range(2):
                    sp = RQ(r) if isQ else RS(r)
                    for j in range(4): e(f"v_fmac_f32 v{TT+4*r+j}, v{ACC(s,r)+j}, v{sp}")
            else:
                for r in range(2):
                    sp = RQ(r) if isQ else RS(r)
                    for h in range(2):
                        e(f"v_pk_mul_f32 {pk(TT+4*r+2*h)}, {pk(c+2*h)}, {pk(sp)} op_sel:[0,1] op_sel_hi:[1,1]")
                for r in range(2):
                    sp = RQ(r) if isQ else RS(r)
                    for h in range(2):
                        t = TT + 4 * r + 2 * h
                        e(f"v_pk_fma_f32 {pk(t)}, {pk(ACC(s,r)+2*h)}, {pk(sp)}, {pk(t)} op_sel_hi:[1,0,1]")
            for r in range(2):
                for h in range(2):
                    t = TT + 4 * r + 2 * h
                    e(f"v_cvt_pk_bf16_f32 v{T+2*r+h}, v{t}, v{t+1}")
            if isQ or stg: sa = "s_nop 0"
            elif ps == 2: sa = f"s_add_u32 s3, s67, {(s-2)*1024}"
            elif s < 4: sa = f"s_add_u32 s3, s65, {WS_KV + s*0x10000:#x}"
            else: sa = f"s_add_u32 s3, s66, {(s-4)*1024}"
            e("s_nop 2")
            e(f"v_permlane16_swap_b32 v{T}, v{T+2}")
            e(f"v_permlane16_swap_b32 v{T+1}, v{T+3}")
            e(sa if not dfr else "s_nop 0")
            e("s_nop 0")
            if isH:
                for q in (0, 2, 1, 3): e(f"v_pk_max_i16 v{T+q}, v{T+q}, 0")
            if isQ:
                e.lds(f"ds_write_b128 v36, {vr(T,4)} offset:{s*4096}", "qw")
                if s == 1:
                    e.lwait_all()
                    ldsadd(16, 37, 38)
            elif stg: e.lds(f"ds_write_b128 v{36 + (s >> 2)}, {vr(T,4)} offset:{(s&3)*1024}", "qw")
            elif dfr: dd[s] = [sa, f"buffer_store_dwordx4 {vr(T,4)}, v166, {SS}, s3 offen sc1"]
            else:
                e(f"buffer_store_dwordx4 {vr(T,4)}, v166, {SS}, s3 offen sc1")
                NST[0] += 1
        for s in sorted(dd): DEF.append(dd[s])
    gemm(1)
    stamp(3)
    epilogue(1)
    e(f"""v_lshrrev_b32 v8, 2, v0
    v_and_b32 v10, 3, v0
    v_lshlrev_b32 v10, 3, v10
    v_lshl_add_u32 v1, v8, 6, v10
    v_bfe_u32 v11, v0, 4, 1
    v_lshl_add_u32 v1, v11, 5, v1
    v_add_u32 v1, {W2A[0][1]}, v1
    v_xor_b32 v2, 32, v1
    v_mul_u32_u24 v3, 96, v8
    v_add_u32 v3, v3, v10
    v_add_u32 v3, {W2A[0][1]}, v3""")
    cur["w"] = W2A[0][1]
    e.lwait_all()
    stamp(4)
    gemm(2)
    bflush()
    stamp(5)
    epilogue(2)
    e("s_mov_b32 s96, s19")
    e("s_mov_b32 s97, 1")
    e("s_branch L_ATT")

    e("L_UTIL:")
    e.vm = []; e.lg = []
    if opt.get("uprio0", 3): e(f"s_setprio {opt.get('uprio0', 3)}")
    L0, U, A, CL, C0, C1, VE = 16, 24, 40, 48, 64, 72, 80
    e("v_and_b32 v5, 7, v0")
    if opt.get("pfc", 1):
        sk = lab("NOPC")
        e("s_cmp_lg_u32 s19, 3")
        e(f"s_cbranch_scc1 {sk}")
        e("s_getpc_b64 s[64:65]")
        e("L_PCREF:")
        e(f"s_sub_u32 s64, s64, L_PCREF-{name}")
        e("s_subb_u32 s65, s65, 0")
        e("s_lshr_b32 s66, s2, 3")
        e("s_mul_i32 s66, s66, (L_END-%s+4095)/4096*128" % name)
        e("v_lshlrev_b32 v2, 7, v0")
        e("v_add_u32 v2, s66, v2")
        e("v_mov_b32 v3, s65")
        e("v_add_co_u32 v2, vcc, s64, v2")
        e("s_nop 1")
        e("v_addc_co_u32 v3, vcc, 0, v3, vcc")
        e("v_cmp_gt_u32 vcc, (L_END-%s+4095)/4096, v0" % name)
        e("s_nop 1")
        e("s_and_saveexec_b64 s[66:67], vcc")
        e("global_load_dword v163, v[2:3], off")
        e("s_mov_b64 exec, -1")
        e(f"{sk}:")
    PFU = opt.get("pfu", 0)
    def pf_x():
        e("""v_and_b32 v2, 31, v0
        v_lshlrev_b32 v2, 10, v2
        v_lshrrev_b32 v3, 5, v0
        v_lshl_add_u32 v2, v3, 7, v2
        s_lshl_b32 s64, s20, 17
        s_lshl_b32 s65, s22, 15
        s_add_u32 s64, s64, s65
        s_lshl_b32 s65, s19, 8
        s_add_u32 s64, s64, s65""")
        e(f"buffer_load_dword v160, v2, {SX}, s64 offen")
    def pf_w():
        L1, L2, L3, LD = lab("PW"), lab("PW"), lab("PW"), lab("PW")
        e("""s_and_b32 s64, s20, 7
        v_lshlrev_b32 v2, 3, v0
        v_add_u32 v2, s64, v2
        v_mul_u32_u24 v3, 3584, v2
        v_mul_u32_u24 v2, 3072, v2
        s_lshl_b32 s64, s23, 7""")
        e("s_cmp_eq_u32 s19, 1"); e(f"s_cbranch_scc1 {L1}")
        e("s_cmp_eq_u32 s19, 3"); e(f"s_cbranch_scc1 {L3}")
        e("s_add_u32 s65, s64, 1024")
        e("s_lshr_b32 s64, s64, 1")
        e("s_cmp_eq_u32 s19, 0")
        e("s_cselect_b32 s64, s65, s64")
        e(f"buffer_load_dword v161, v2, {SW}, s64 offen")
        e(f"s_branch {LD}")
        e(f"{L3}:")
        e("s_mul_i32 s64, s23, 96")
        e("s_add_u32 s64, s64, 2048")
        e(f"buffer_load_dword v162, v3, {S1}, s64 offen offset:92")
        e(f"{L1}:")
        e(f"buffer_load_dword v161, v3, {S1}, s64 offen")
        e(f"{LD}:")
    if PFU == 1: pf_x(); pf_w()
    e(f"v_mov_b32 v{VE}, 0")
    e(f"s_mov_b32 s3, {WS_EP:#x}")
    e.vmem(f"buffer_load_dword v{VE}, v{VE}, {SS}, s3 offen sc1", "rs")
    e(f"""v_lshrrev_b32 v4, 5, v0
    v_and_b32 v6, 31, v0
    v_lshlrev_b32 v6, 4, v6
    v_lshl_add_u32 v6, v4, 10, v6
    v_lshlrev_b32 v{VE+1}, 4, v4
    s_lshl_b32 s64, s20, 7
    s_lshl_b32 s65, s23, 3
    s_add_u32 s64, s64, s65
    s_lshl_b32 s65, s19, 1
    s_add_u32 s64, s64, s65
    s_lshl_b32 s65, s64, 10""")
    e.vmem(f"buffer_load_dwordx4 {vr(L0,4)}, v6, {SX}, s65 offen", "rs")
    e.vmem(f"buffer_load_dwordx4 {vr(L0+4,4)}, v6, {SX}, s65 offen offset:512", "rs")
    e("""s_add_u32 s66, s23, 8
    s_add_u32 s67, s23, 24
    s_cmp_eq_u32 s19, 1
    s_cselect_b32 s66, s67, s66
    s_add_u32 s67, s23, 32
    s_cmp_lt_u32 s23, 8
    s_cselect_b32 s67, s23, s67
    s_cmp_eq_u32 s19, 2
    s_cselect_b32 s66, s67, s66
    s_add_u32 s67, s23, 48
    s_cmp_eq_u32 s19, 3
    s_cselect_b32 s66, s67, s66
    v_lshrrev_b32 v2, 3, v0
    v_lshlrev_b32 v3, 4, v5
    s_cmp_ge_u32 s66, 52
    s_cbranch_scc1 L_CSD
    s_lshl_b32 s67, s66, 7
    s_cmp_ge_u32 s66, 24
    s_cbranch_scc1 L_CSW
    v_mul_u32_u24 v4, 3072, v2
    v_add_u32 v4, v4, v3""")
    e(f"s_mul_i32 s68, s20, {32*3072}")
    e("s_add_u32 s68, s68, s67")
    for t in range(4):
        e(f"buffer_load_dwordx4 {vr(CL+4*t,4)}, v4, {SW}, s68 offen")
        if t < 3: e(f"s_add_u32 s68, s68, {8*3072}")
    e("s_branch L_CSD")
    e("L_CSW:")
    e("v_mul_u32_u24 v4, 3584, v2")
    e("v_add_u32 v4, v4, v3")
    e(f"s_mul_i32 s68, s20, {32*3584}")
    e("s_add_u32 s68, s68, s67")
    e(f"s_sub_u32 s68, s68, {24*128}")
    for t in range(4):
        e(f"buffer_load_dwordx4 {vr(CL+4*t,4)}, v4, {S1}, s68 offen")
        if t < 3: e(f"s_add_u32 s68, s68, {8*3584}")
    e("L_CSD:")
    if PFU == 2:
        e("s_mov_b32 s74, s64")
        pf_x(); pf_w()
        e("s_mov_b32 s64, s74")
    e(f"""s_mov_b32 s69, 0xffff0000
    s_mov_b32 s70, 0x3b000000
    s_lshl_b32 s64, s64, 4
    s_add_u32 s64, s64, {WS_RS:#x}
    v_lshlrev_b32 v14, 4, v0
    s_lshl_b32 s71, s23, 8
    s_add_u32 s72, s71, {512*4}
    v_add_u32 v15, s72, v14
    s_add_u32 s72, s71, {1536*4 - 256}
    v_add_u32 v2, s72, v14
    v_cmp_le_u32 vcc, 16, v0
    s_lshl_b32 s72, s23, 7
    s_sub_u32 s72, s72, 512
    v_cndmask_b32 v15, v15, v2, vcc
    v_add_u32 v2, s72, v14
    v_cmp_le_u32 vcc, 32, v0
    s_mul_i32 s72, s23, 192
    s_add_u32 s72, s72, {2560*4 - 640}
    v_cndmask_b32 v15, v15, v2, vcc
    v_min_u32 v2, 51, v0
    v_lshlrev_b32 v2, 4, v2
    v_add_u32 v2, s72, v2
    v_cmp_le_u32 vcc, 40, v0
    s_nop 1
    v_cndmask_b32 v15, v15, v2, vcc""")
    def piece(n):
        if n == 0:
            e("s_cmp_ge_u32 s66, 52")
            e("s_cbranch_scc1 L_P0A")
            e(f"s_waitcnt vmcnt({4 + (2 if PFU == 2 else 0)})")
            e("s_branch L_P0B")
            e("L_P0A:")
            e(f"s_waitcnt vmcnt({2 if PFU == 2 else 0})")
            e("L_P0B:")
            for q in range(8):
                e(f"v_lshlrev_b32 v{U+2*q}, 16, v{L0+q}")
                e(f"v_and_b32 v{U+2*q+1}, s69, v{L0+q}")
            for q in range(4): e(f"v_add_f32 v{A+q}, v{U+q}, v{U+4+q}")
            for t in range(2, 4):
                for q in range(4): e(f"v_add_f32 v{A+q}, v{A+q}, v{U+4*t+q}")
            e(f"v_add_f32 v{A}, v{A}, v{A+1}")
            e(f"v_add_f32 v{A+2}, v{A+2}, v{A+3}")
            e(f"v_add_f32 v{A}, v{A}, v{A+2}")
            reduce32(e, [A], [A + 1])
            e(f"v_mul_f32 v{A}, s70, v{A}")
            e(f"v_add_u32 v{A+6}, {EPC:#x}, v{VE}")
            e(f"v_mov_b32 v2, {L_MISC}")
            e("v_mov_b32 v3, 0")
            e(f"ds_write_b32 v2, v{A+6}")
            for o in (4, 8, 12, 16, 20, 24, 28): e(f"ds_write_b32 v2, v3 offset:{o}")
        if n == 1:
            for q in range(16): e(f"v_sub_f32 v{U+q}, v{U+q}, v{A}")
            for q in range(4): e(f"v_mul_f32 v{L0+q}, v{U+q}, v{U+q}")
            for q in range(4, 16): e(f"v_fmac_f32 v{L0+(q&3)}, v{U+q}, v{U+q}")
            e(f"v_add_f32 v{L0}, v{L0}, v{L0+1}")
            e(f"v_add_f32 v{L0+2}, v{L0+2}, v{L0+3}")
            e(f"v_add_f32 v{A+4}, v{L0}, v{L0+2}")
            reduce32(e, [A + 4], [A + 5])
            e(f"v_mov_b32 v{A+5}, 0x3727c5ac")
            e(f"v_fma_f32 v{A+4}, v{A+4}, s70, v{A+5}")
            e(f"v_rsq_f32 v{A+4}, v{A+4}")
            e(f"v_readfirstlane_b32 s61, v{A+6}")
            e(f"v_mov_b32 v{A+7}, v{A+6}")
            e(f"v_mul_f32 v{A+5}, v{A}, v{A+4}")
            e(f"v_sub_f32 v{A+5}, 0, v{A+5}")
            e("s_mov_b32 exec_lo, 1")
            e("s_mov_b32 exec_hi, 1")
            e(f"buffer_store_dwordx4 {vr(A+4,4)}, v{VE+1}, {SS}, s64 offen sc1")
            e("s_mov_b64 exec, -1")
        if n == 2:
            e(f"s_waitcnt vmcnt({1 + (2 if PFU == 2 else 0)})")
            for q in range(4):
                e(f"v_lshlrev_b32 v{C0+2*q}, 16, v{CL+q}")
                e(f"v_and_b32 v{C0+2*q+1}, s69, v{CL+q}")
            for t in range(1, 4):
                for q in range(4):
                    e(f"v_lshlrev_b32 v{C1+2*q}, 16, v{CL+4*t+q}")
                    e(f"v_and_b32 v{C1+2*q+1}, s69, v{CL+4*t+q}")
                for q in range(8): e(f"v_add_f32 v{C0+q}, v{C0+q}, v{C1+q}")
            e("s_nop 1")
            for q in range(8): e(f"v_add_f32_dpp v{C0+q}, v{C0+q}, v{C0+q} row_ror:8 row_mask:0xf bank_mask:0xf")
            e("s_mov_b32 s72, 0xff00ff00")
            e("s_mov_b32 s73, 0xff00ff00")
            for q in range(4): e(f"v_cndmask_b32 v{C0+q}, v{C0+q}, v{C0+4+q}, s[72:73]")
            for sw in ("v_permlane16_swap_b32", "v_permlane32_swap_b32"):
                for q in range(4): e(f"v_mov_b32 v{C1+q}, v{C0+q}")
                e("s_nop 0")
                for q in range(4): e(f"{sw} v{C0+q}, v{C1+q}")
                for q in range(4): e(f"v_add_f32 v{C0+q}, v{C0+q}, v{C1+q}")
            e("s_mov_b32 s71, 0xff")
            e(f"v_bfe_u32 v{C1+2}, v0, 3, 1")
            for q in range(4): e(f"v_bfi_b32 v{C0+q}, s71, v{A+6}, v{C0+q}")
            e(f"v_lshlrev_b32 v{C1+1}, 5, v5")
            e(f"v_lshl_add_u32 v{C1+1}, v{C1+2}, 4, v{C1+1}")
            e(f"s_mul_i32 s71, s20, {3328*4}")
            e("s_lshl_b32 s72, s66, 8")
            e("s_add_u32 s71, s71, s72")
            e(f"s_add_u32 s71, s71, {WS_CS:#x}")
            e("s_cmp_ge_u32 s66, 52")
            e("s_cbranch_scc1 L_P2S")
            e("s_mov_b64 exec, 0xffff")
            e(f"buffer_store_dwordx4 {vr(C0,4)}, v{C1+1}, {SS}, s71 offen sc1")
            e("s_mov_b64 exec, -1")
            e("L_P2S:")
    def kvsetup():
        e(f"""v_and_b32 v10, 3, v0
        v_min_u32 v10, 2, v10
        s_sub_u32 s76, s20, 2
        v_add_u32 v10, s76, v10
        v_max_i32 v10, 0, v10
        v_lshlrev_b32 v10, 11, v10
        v_bfe_u32 v11, v0, 2, 1
        v_lshl_add_u32 v10, v11, 10, v10
        s_lshr_b32 s76, s23, 1
        s_lshl_b32 s76, s76, 7
        s_add_u32 s76, s76, {WS_F1:#x}
        v_mov_b32 v11, s61
        v_lshlrev_b32 v1, 4, v0
        s_lshr_b32 s52, s19, 1
        s_lshl_b32 s53, s23, 1
        s_add_u32 s53, s53, s52
        s_lshl_b32 s53, s53, 6
        s_and_b32 s54, s19, 1
        s_mul_i32 s54, s54, 6
        s_lshl_b32 s55, s20, 2
        s_add_u32 s54, s54, s55
        s_mul_i32 s55, s19, 6144""")
    def kvdma():
        for t in range(6):
            e(f"s_add_u32 s68, s54, {t}")
            e("s_sub_i32 s68, s68, 8")
            e("s_max_i32 s68, s68, 0")
            e("s_add_u32 s68, s68, s53")
            e("s_lshl_b32 s68, s68, 10")
            e(f"s_add_u32 m0, s55, {L_K + t*1024}")
            e("s_add_u32 s69, s68, 0x200000")
            e(f"buffer_load_dwordx4 v1, {SS}, s68 offen sc1 lds")
            e(f"s_add_u32 m0, s55, {L_V + t*1024}")
            e("s_nop 0")
            e(f"buffer_load_dwordx4 v1, {SS}, s69 offen sc1 lds")
    G0 = 84
    def gather():
        e(f"s_mov_b32 s71, {WS_CS:#x}")
        for g in range(16):
            e(f"buffer_load_dwordx4 {vr(G0+4*g,4)}, v15, {SS}, s71 offen sc1")
            e(f"s_add_u32 s71, s71, {3328*4}")
        e("s_lshl_b32 s71, s20, 11")
        e(f"s_add_u32 s71, s71, {WS_RS:#x}")
        for h in range(2):
            e(f"buffer_load_dwordx4 {vr(G0+64+4*h,4)}, v14, {SS}, s71 offen offset:{h*1024} sc1")
    PK = opt.get("pk", [0, 0, 1]); GK = opt.get("gk", 4); CK = opt.get("ck", 6)
    for n_, kk_ in enumerate(PK):
        if kk_ < 0: piece(n_)
    for k in range(16):
        if k == 2: e("s_waitcnt lgkmcnt(0)")
        bstamp(k)
        e("s_barrier")
        for n_, kk_ in enumerate(PK):
            if kk_ == k: piece(n_)
        KVK = opt.get("kvk", 14)
        if k == 8:
            kvsetup()
            e("s_mov_b32 s77, 0")
        if k == KVK - 1: e(f"buffer_load_dword v4, v10, {SS}, s76 offen sc1")
        if k == KVK:
            sk = lab("KVLATE")
            e("s_waitcnt vmcnt(0)")
            e("v_cmp_ne_u32 vcc, v11, v4")
            e("s_nop 1")
            e("s_cmp_lg_u64 vcc, 0")
            e(f"s_cbranch_scc1 {sk}")
            kvdma()
            e("s_mov_b32 s77, 1")
            e(f"{sk}:")
        PW0 = opt.get("pfw", 0)
        if PW0 and PW0 <= k < 16:
            if k == PW0:
                srd(e, 44, 14, 1792 * 1024)
                srd(e, 48, 8, 512 * 1024)
                e("s_lshr_b32 s78, s2, 3")
                e("s_mul_i32 s79, s78, 57344")
                e("s_mul_i32 s3, s19, 14336")
                e("s_add_u32 s79, s79, s3")
                e("s_lshl_b32 s78, s78, 14")
                e("s_lshl_b32 s3, s19, 12")
                e("s_add_u32 s78, s78, s3")
            per = -(-18 // (opt.get("pfwe", 16) - PW0))
            for j in range(per * (k - PW0), min(18, per * (k - PW0 + 1))):
                if j < 14:
                    e(f"s_add_u32 s3, s79, {j*1024}")
                    e(f"buffer_load_dwordx4 v[120:123], v14, {S2}, s3 offen")
                else:
                    e(f"buffer_load_dwordx4 v[120:123], v14, {SO}, s78 offen offset:{(j-14)*1024}")
        if opt.get("pfl2", 0) and 8 <= k <= 10:
            if k == 8:
                srd(e, 44, 14, 1792 * 1024)
                srd(e, 48, 8, 512 * 1024)
                e("v_lshlrev_b32 v12, 7, v0")
                e("s_lshr_b32 s78, s2, 3")
            j = k - 8
            sk = lab("NOP2")
            if j < 2:
                e("s_mul_i32 s71, s78, 57344")
                e("s_lshl_b32 s72, s19, 13")
                e("s_add_u32 s71, s71, s72")
                if j == 1:
                    e("s_cmp_eq_u32 s19, 3")
                    e(f"s_cbranch_scc1 {sk}")
                    e("s_add_u32 s71, s71, 32768")
                e(f"buffer_load_dword v13, v12, {S2}, s71 offen")
            else:
                e("s_cmp_ge_u32 s19, 2")
                e(f"s_cbranch_scc1 {sk}")
                e("s_lshl_b32 s71, s78, 14")
                e("s_lshl_b32 s72, s19, 13")
                e("s_add_u32 s71, s71, s72")
                e(f"buffer_load_dword v13, v12, {SO}, s71 offen")
            e(f"{sk}:")
        if UST and k == 8:
            e(f"""s_lshl_b32 s3, s19, 12
            v_add_u32 v2, s3, v14
            v_add_u32 v3, {W1A[7]}, v2
            v_add_u32 v2, {W1A[6]}, v2""")
            for s_ in range(8): e(f"ds_read_b128 {vr(16+4*s_,4)}, v{2+(s_>>2)} offset:{(s_&3)*1024}")
            e(f"""s_lshl_b32 s64, s20, 2
            s_add_u32 s64, s64, s19
            s_lshl_b32 s65, s23, 8
            s_add_u32 s65, s65, s64
            s_lshl_b32 s65, s65, 10
            s_mul_i32 s66, s64, 112
            s_lshl_b32 s3, s23, 2
            s_add_u32 s66, s66, s3
            s_lshl_b32 s66, s66, 10
            s_add_u32 s66, s66, {WS_H:#x}
            s_waitcnt lgkmcnt(0)""")
        if UST and k >= 8:
            SP = opt.get("sper", 2)
            for s_ in range(SP * (k - 8), min(8, SP * (k - 7))):
                if s_ < 4: e(f"s_add_u32 s3, s65, {WS_KV + s_*0x10000:#x}")
                else: e(f"s_add_u32 s3, s66, {(s_-4)*1024}")
                e(f"buffer_store_dwordx4 {vr(16+4*s_,4)}, v14, {SS}, s3 offen sc1")
            if k == opt.get("ugk", 12): signal(4, 3, WS_F1, 2, 3, max(0, min(8, SP * (k - 7)) - 4))
            if k == opt.get("ugh", 15): signal(24, 3, WS_F1H, 2, 3)
        if k == opt.get("pf2k", 2) and opt.get("pf2", 1):
            sk = lab("NOPF")
            e("s_cmp_lg_u32 s19, 1")
            e(f"s_cbranch_scc1 {sk}")
            srd(e, 44, 14, 1792 * 1024)
            srd(e, 48, 8, 512 * 1024)
            e("v_lshlrev_b32 v2, 7, v0")
            e("s_mul_i32 s71, s2, 7168")
            e("s_mov_b32 exec_hi, 0xffffff")
            e(f"buffer_load_dword v160, v2, {S2}, s71 offen")
            e("s_lshl_b32 s71, s2, 11")
            e("s_mov_b64 exec, 0xffff")
            e(f"buffer_load_dword v161, v2, {SO}, s71 offen")
            e("s_mov_b64 exec, -1")
            e(f"{sk}:")
        if k in (GK, CK, CK + 1):
            sk = lab("NOPOST")
            e("s_cmp_lg_u32 s19, 0")
            e(f"s_cbranch_scc1 {sk}")
            if k == GK: gather()
            if k == CK:
                e("s_mov_b32 s73, 0x20000")
                e("L_CHK:")
                e("s_waitcnt vmcnt(0)")
                e(f"v_xor_b32 v2, s61, v{G0}")
                for i in range(G0 + 1, G0 + 64): e(f"v_bitop3_b32 v2, v2, v{i}, s61 bitop3:0xf6")
                e("v_and_b32 v2, 0xff, v2")
                for i in (66, 67, 70, 71): e(f"v_bitop3_b32 v2, v2, v{G0+i}, s61 bitop3:0xf6")
                e("v_cmp_ne_u32 vcc, 0, v2")
                e("s_sub_u32 s73, s73, 1")
                e("s_cmp_eq_u32 s73, 0")
                e("s_cbranch_scc1 L_GOT")
                e("s_cmp_eq_u64 vcc, 0")
                e("s_cbranch_scc1 L_GOT")
                gather()
                e("s_branch L_CHK")
                e("L_GOT:")
            if k == CK + 1:
                e("s_mov_b32 s71, 0xffffff00")
                for i in range(G0, G0 + 64): e(f"v_and_b32 v{i}, s71, v{i}")
                for g in range(1, 16):
                    for h in range(4): e(f"v_add_f32 v{G0+h}, v{G0+h}, v{G0+4*g+h}")
                e(f"v_add_u32 v2, {L_ST}, v14")
                e(f"ds_write_b128 v2, {vr(G0+64,4)}")
                e(f"ds_write_b128 v2, {vr(G0+68,4)} offset:1024")
                e(f"ds_write_b128 v2, {vr(G0,4)} offset:2048")
                e("s_waitcnt lgkmcnt(0)")
                ldsadd(20, 2, 3)
            e(f"{sk}:")
    bflush()
    stamp(3)
    e("s_barrier")
    stamp(4)
    e("s_cmp_lg_u32 s77, 0")
    e("s_cbranch_scc1 L_KVDONE")
    poll(10, "s76", 11, 4)
    kvdma()
    e("L_KVDONE:")
    e(f"v_add_u32 v2, {L_ONE}, v1")
    for q in range(4): e(f"v_mov_b32 v{8+q}, 0x3f803f80")
    e("ds_write_b128 v2, v[8:11]")
    e("s_add_u32 s96, s19, 4")
    e("s_mov_b32 s97, 0")
    e("s_waitcnt vmcnt(0) lgkmcnt(0)")
    ldsadd(16, 2, 3)
    stamp(5)

    e("L_ATT:")
    e.vm = []; e.lg = []
    Q = 8
    K = lambda u: 12 + 4 * u
    V = lambda u, g: 48 + ((u & 1) * 2 + g) * 4
    S = lambda b: 64 + 16 * b
    P, O = 112, 120
    VNEG, M0_, M1_, NM, MK = 136, 137, 138, 139, 140
    VA, VSTR = 148, 149
    for j in range(16):
        b0 = (j >> 2) * 8 + (j & 3)
        e(f"s_mov_b32 s{64+2*j}, {(0xffffffff << b0) & 0xffffffff:#x}")
        e(f"s_mov_b32 s{65+2*j}, {(0xffffffff << (b0+4)) & 0xffffffff:#x}")
    e(f"v_mov_b32 v{VNEG}, {NEG:#x}")
    e("v_mov_b32 v6, 0xffff")
    e("v_mov_b32 v7, 0xffff0000")
    for q in range(8):
        e(f"v_cndmask_b32 v{MK+q}, 0, v6, s[{64+4*q}:{65+4*q}]")
        e(f"v_cndmask_b32 v{S(2)}, 0, v7, s[{66+4*q}:{67+4*q}]")
        e(f"v_or_b32 v{MK+q}, v{MK+q}, v{S(2)}")
    e(f"""s_and_b32 s3, s96, 3
    s_lshl_b32 s26, s20, 2
    s_add_u32 s26, s26, s3
    s_add_u32 s25, s26, 1
    s_min_u32 s25, s25, 9
    s_lshr_b32 s62, s96, 2
    s_lshl_b32 s27, s23, 1
    s_add_u32 s27, s27, s62
    v_lshlrev_b32 v1, 4, v0
    s_lshl_b32 s63, s96, 10
    s_add_u32 s63, s63, {L_Q}
    v_add_u32 v3, s63, v1
    s_mul_i32 s62, s62, 12288
    s_lshl_b32 s3, s3, 10
    s_add_u32 s3, s3, s62
    s_add_u32 s62, s3, {L_K}
    v_add_u32 v4, s62, v1
    v_lshrrev_b32 v5, 5, v0
    v_lshlrev_b32 v5, 2, v5
    v_bfe_u32 v6, v0, 2, 2
    v_add_u32 v5, v5, v6
    v_lshlrev_b32 v5, 4, v5
    v_bfe_u32 v6, v0, 1, 1
    v_lshl_add_u32 v5, v6, 9, v5
    v_and_b32 v6, 1, v0
    v_lshl_add_u32 v5, v6, 3, v5
    s_add_u32 s3, s3, {L_V + 8192}
    v_add_u32 v5, s3, v5
    v_mov_b32 v6, {L_ONE}
    v_mov_b32 v7, 1024
    s_mov_b32 s98, 0xffff
    s_mov_b32 s99, 0xffff
    v_cndmask_b32 v5, v6, v5, s[98:99]
    v_cndmask_b32 v{VSTR}, 0, v7, s[98:99]
    v_lshlrev_b32 v7, 3, v{VSTR}
    v_sub_u32 v{VA+2}, v5, v7""")
    stamp(6)
    def owed():
        sk = lab("NOOWE")
        e("s_cmp_eq_u32 s97, 0")
        e(f"s_cbranch_scc1 {sk}")
        signal(12, 3, WS_F1B, 152, 153)
        e(f"{sk}:")
    if opt.get("owu", 0) == 0: owed()
    ldswait(16, 8, 2, 6)
    e(f"s_setprio {opt.get('aprio', 0)}")
    stamp(7)
    def fill(buf, val, diag):
        for j in range(16):
            a, b = (f"v{VNEG}", val) if diag else (val, f"v{VNEG}")
            e(f"v_cndmask_b32 v{S(buf)+j}, {a}, {b}, s[{64+2*j}:{65+2*j}]")
    def smfma(u, buf, cin):
        e.lwait(("K", u))
        e(f"v_mfma_f32_32x32x16_bf16 {vr(S(buf),16)}, {vr(K(u),4)}, {vr(Q,4)}, {cin}")
    def vread(u, par=None, va=None):
        if va is None:
            if u == 0: e(f"v_mov_b32 v{VA}, v5")
            else: e(f"v_sub_u32 v{VA}, v{VA}, v{VSTR}")
            va = VA
        for g in range(2):
            r = V(u if par is None else par, g)
            for h in range(2): e.lds(f"ds_read_b64_tr_b16 v[{r+2*h}:{r+2*h+1}], v{va} offset:{g*256 + h*128}", ("V", u))
    PD, PFR = S(2), S(2) + 8
    if opt.get("noatt"): e("s_branch L_P2DONE")
    e.lds(f"ds_read_b128 {vr(Q,4)}, v3", "Q")
    for u in [0, 8, 1]: e.lds(f"ds_read_b128 {vr(K(u),4)}, v4 offset:{(8-u)*1024}", ("K", u))
    vread(0); vread(8, 1, VA + 2)
    smfma(0, 0, "0"); smfma(8, 2, "0"); smfma(1, 1, "0")
    for u in range(2, 8): e.lds(f"ds_read_b128 {vr(K(u),4)}, v4 offset:{(8-u)*1024}", ("K", u))
    e("s_nop 4")
    s0 = S(0)
    for j in range(16): e(f"v_cndmask_b32 v{s0+j}, v{S(2)+j}, v{s0+j}, s[{64+2*j}:{65+2*j}]")
    for j in range(16): e(f"v_exp_f32 v{s0+j}, v{s0+j}")
    for q in range(8): e(f"v_cvt_pk_bf16_f32 v{P+q}, v{s0+2*q}, v{s0+2*q+1}")
    for q in range(8): e(f"v_and_b32 v{PD+q}, v{MK+q}, v{P+q}")
    e.lwait(("V", 8))
    e(f"v_mfma_f32_32x32x16_bf16 {vr(O,16)}, {vr(V(0,0),4)}, {vr(PD,4)}, 0")
    for q in range(8): e(f"v_bfi_b32 v{PFR+q}, v{MK+q}, 0, v{P+q}")
    e(f"v_mfma_f32_32x32x16_bf16 {vr(O,16)}, {vr(V(0,1),4)}, {vr(PD+4,4)}, {vr(O,16)}")
    e("s_cmp_lt_u32 s25, 9")
    e("s_cbranch_scc1 L_NOFAR")
    e(f"v_mfma_f32_32x32x16_bf16 {vr(O,16)}, {vr(V(1,0),4)}, {vr(PFR,4)}, {vr(O,16)}")
    e(f"v_mfma_f32_32x32x16_bf16 {vr(O,16)}, {vr(V(1,1),4)}, {vr(PFR+4,4)}, {vr(O,16)}")
    e("L_NOFAR:")
    vread(1)
    e("s_cmp_eq_u32 s25, 1")
    e("s_cbranch_scc1 L_FCHK")
    def pv(u, g): e(f"v_mfma_f32_32x32x16_bf16 {vr(O,16)}, {vr(V(u,g),4)}, {vr(P+4*g,4)}, {vr(O,16)}")
    for u in range(1, 8):
        s_ = S(u % 2)
        if u + 1 <= 7: smfma(u + 1, (u + 1) % 2, "0")
        for j in range(2): e(f"v_exp_f32 v{s_+j}, v{s_+j}")
        if u > 1: pv(u - 1, 1)
        if u + 1 <= 7: vread(u + 1)
        for j in range(2, 8): e(f"v_exp_f32 v{s_+j}, v{s_+j}")
        for q in range(4): e(f"v_cvt_pk_bf16_f32 v{P+q}, v{s_+2*q}, v{s_+2*q+1}")
        for j in range(8, 10): e(f"v_exp_f32 v{s_+j}, v{s_+j}")
        e.lwait(("V", u))
        pv(u, 0)
        for j in range(10, 16): e(f"v_exp_f32 v{s_+j}, v{s_+j}")
        for q in range(4, 8): e(f"v_cvt_pk_bf16_f32 v{P+q}, v{s_+2*q}, v{s_+2*q+1}")
        if u < 7:
            e(f"s_cmp_eq_u32 s25, {u+1}")
            e(f"s_cbranch_scc1 L_FX{u&1}")
    e("L_FX1:")
    e("s_nop 1")
    pv(1, 1)
    e("s_branch L_FCHK")
    e("L_FX0:")
    e("s_nop 1")
    pv(0, 1)
    e("L_FCHK:")
    e("s_mov_b32 s52, 0x1f800000")
    e("s_mov_b32 s53, 0x5f800000")
    e("s_mov_b32 s3, 0x7f800000")
    e("s_waitcnt lgkmcnt(0)")
    e("s_nop 7")
    e(f"v_add_f32 v6, |v{O}|, |v{O+1}|")
    e(f"v_add_f32 v7, |v{O+2}|, |v{O+3}|")
    e(f"v_add_f32 v2, |v{O+4}|, |v{O+5}|")
    e(f"v_add_f32 v3, |v{O+6}|, |v{O+7}|")
    e(f"v_cmp_le_f32 s[62:63], s52, v{O+8}")
    e(f"v_cmp_ge_f32 s[98:99], s53, v{O+8}")
    e("v_add_f32 v6, v6, v7")
    e("v_add_f32 v2, v2, v3")
    e("v_add_f32 v6, v6, v2")
    e("s_and_b64 s[62:63], s[62:63], s[98:99]")
    e("v_cmp_gt_f32 vcc, s3, v6")
    e("s_nop 0")
    e("s_and_b64 s[62:63], s[62:63], vcc")
    e("s_cmp_eq_u64 s[62:63], -1")
    if opt.get("forceslow"): e("s_cmp_eq_u32 s62, 12345")
    e("s_cbranch_scc1 L_P2DONE")
    e.lg = []
    e(f"v_mov_b32 v{M0_}, v{VNEG}")
    e(f"v_mov_b32 v{M1_}, v{VNEG}")
    fill(0, "0", True)
    e("s_nop 1")
    smfma(0, 0, vr(S(0), 16))
    smfma(1, 1, "0")
    for u in range(9):
        if u + 2 <= 8:
            if u + 2 == 8:
                fill((u + 2) % 3, "0", False); e("s_nop 1")
                smfma(u + 2, (u + 2) % 3, vr(S((u + 2) % 3), 16))
            else:
                smfma(u + 2, (u + 2) % 3, "0")
        if u == 0: e("s_nop 9")
        for q in range(8):
            m = M0_ + (q & 1)
            e(f"v_max3_f32 v{m}, v{S(u%3)+2*q}, v{S(u%3)+2*q+1}, v{m}")
        if u < 8:
            e(f"s_cmp_eq_u32 s25, {u+1}")
            e("s_cbranch_scc1 L_P1DONE")
    e("L_P1DONE:")
    vread(0)
    e(f"v_max_f32 v{M0_}, v{M0_}, v{M1_}")
    e(f"v_mov_b32 v{M1_}, v{M0_}")
    e("s_nop 1")
    e(f"v_permlane32_swap_b32 v{M0_}, v{M1_}")
    e("s_nop 1")
    e(f"v_max_f32 v{M0_}, v{M0_}, v{M1_}")
    e(f"v_sub_f32 v{NM}, 0, v{M0_}")
    e("s_nop 3")
    CB = S(2)
    for j in range(16): e(f"v_mov_b32 v{CB+j}, v{NM}")
    fill(0, f"v{NM}", True)
    e("s_nop 1")
    smfma(0, 0, vr(S(0), 16))
    for u in range(9):
        s = S(u % 2)
        if u + 1 <= 8:
            nb_ = (u + 1) % 2
            if u + 1 == 8:
                fill(nb_, f"v{NM}", False); e("s_nop 1")
                smfma(u + 1, nb_, vr(S(nb_), 16))
            else:
                smfma(u + 1, nb_, vr(CB, 16))
            vread(u + 1)
        if u == 0: e("s_nop 6")
        for j in range(8): e(f"v_exp_f32 v{s+j}, v{s+j}")
        for q in range(4): e(f"v_cvt_pk_bf16_f32 v{P+q}, v{s+2*q}, v{s+2*q+1}")
        for j in range(8, 16): e(f"v_exp_f32 v{s+j}, v{s+j}")
        e.lwait(("V", u))
        e(f"v_mfma_f32_32x32x16_bf16 {vr(O,16)}, {vr(V(u,0),4)}, {vr(P,4)}, {'0' if u == 0 else vr(O,16)}")
        for q in range(4, 8): e(f"v_cvt_pk_bf16_f32 v{P+q}, v{s+2*q}, v{s+2*q+1}")
        e("s_nop 1")
        e(f"v_mfma_f32_32x32x16_bf16 {vr(O,16)}, {vr(V(u,1),4)}, {vr(P+4,4)}, {vr(O,16)}")
        if u < 8:
            e(f"s_cmp_eq_u32 s25, {u+1}")
            e("s_cbranch_scc1 L_P2X")
    e("L_P2X:")
    e("s_waitcnt lgkmcnt(0)")
    e("s_nop 12")
    e("L_P2DONE:")
    e("s_lshl_b32 s3, s26, 5")
    e("s_add_u32 s3, s3, s27")
    e("s_lshl_b32 s3, s3, 10")
    e(f"s_add_u32 s3, s3, {WS_O:#x}")
    e(f"v_rcp_f32 v7, v{O+8}")
    e("s_nop 0")
    for j in range(8): e(f"v_mul_f32 v{O+j}, v{O+j}, v7")
    for q in range(4): e(f"v_cvt_pk_bf16_f32 v{P+q}, v{O+2*q}, v{O+2*q+1}")
    e(f"buffer_store_dwordx4 {vr(P,4)}, v1, {SS}, s3 offen sc1")
    stamp(8)
    signal(8, 7, WS_F2)
    stamp(9)
    e("s_cmp_lg_u32 s2, 0")
    e("s_cbranch_scc1 L_FIN")
    e("s_cmp_lg_u32 s96, 1")
    e("s_cbranch_scc1 L_FIN")
    e("v_lshlrev_b32 v6, 7, v0")
    e("s_mov_b32 s63, 0x20000")
    e("L_BCHK:")
    for g in range(4):
        e(f"s_mov_b32 s62, {WS_F2 + g*8192:#x}")
        e(f"buffer_load_dword v{8+g}, v6, {SS}, s62 offen sc1")
    e("s_waitcnt vmcnt(0)")
    e("v_xor_b32 v7, s61, v8")
    for i in range(9, 12): e(f"v_bitop3_b32 v7, v7, v{i}, s61 bitop3:0xf6")
    e("v_cmp_ne_u32 vcc, 0, v7")
    e("s_sub_u32 s63, s63, 1")
    e("s_cmp_eq_u32 s63, 0")
    e("s_cbranch_scc1 L_FIN")
    e("s_cmp_lg_u64 vcc, 0")
    e("s_cbranch_scc1 L_BCHK")
    e("s_mov_b64 exec, 1")
    e("v_mov_b32 v6, 0")
    e("v_mov_b32 v7, s61")
    e(f"s_mov_b32 s62, {WS_EP:#x}")
    e(f"buffer_store_dword v7, v6, {SS}, s62 offen sc1")
    e("s_mov_b64 exec, -1")
    e("L_FIN:")
    e.vm = []; e.lg = []
    srd(e, 28, 10, 2048 * 1024)
    e(f"""v_lshrrev_b32 v7, 3, v0
    v_and_b32 v14, 7, v0
    v_lshlrev_b32 v8, 4, v14
    v_lshl_add_u32 v2, v7, 10, v8
    s_lshl_b32 s62, s58, 16
    s_lshl_b32 s3, s96, 13
    s_add_u32 s62, s62, s3
    s_lshl_b32 s3, s59, 7
    s_add_u32 s62, s62, s3""")
    e(f"buffer_load_dwordx4 v[8:11], v2, {SX}, s62 offen")
    e(f"""s_and_b32 s3, s96, 3
    s_lshl_b32 s3, s3, 10
    s_cmp_ge_u32 s96, 4
    s_mov_b32 s63, {BREG[0]}
    s_cselect_b32 s63, {BREG[2]}, s63
    s_mov_b32 s64, {BREG[1]}
    s_cselect_b32 s64, {BREG[3]}, s64
    s_add_u32 s63, s63, s3
    s_add_u32 s64, s64, s3
    v_and_b32 v12, 3, v0
    v_lshlrev_b32 v12, 1, v12
    v_xor_b32 v12, v12, v7
    v_bfe_u32 v13, v0, 2, 1
    v_xor_b32 v12, v12, v13
    v_lshlrev_b32 v12, 4, v12
    v_lshl_add_u32 v12, v7, 7, v12
    v_mov_b32 v15, s63
    v_mov_b32 v16, s64
    v_cmp_eq_u32 vcc, 1, v13
    s_nop 1
    v_cndmask_b32 v15, v15, v16, vcc
    v_add_u32 v24, v15, v12
    v_xor_b32 v25, 16, v24""")
    stamp(10)
    e("s_barrier")
    stamp(11)
    R = lambda src, h: 48 + src * 8 + h * 4
    for src in range(4):
        for h in range(2): e.lds(f"ds_read_b128 {vr(R(src,h),4)}, v{24+h} offset:{src*4096}", src)
    e("s_mov_b32 s3, 0xffff0000")
    e("s_waitcnt vmcnt(0)")
    for q in range(4):
        e(f"v_lshlrev_b32 v{32+2*q}, 16, v{8+q}")
        e(f"v_and_b32 v{33+2*q}, s3, v{8+q}")
    for src in range(4):
        e.lwait(src)
        for q in range(4): e(f"v_pk_add_f32 {pk(32+2*q)}, {pk(32+2*q)}, {pk(R(src,0)+2*q)}")
    for q in range(4): e(f"v_cvt_pk_bf16_f32 v{40+q}, v{32+2*q}, v{33+2*q}")
    e("buffer_store_dwordx4 v[40:43], v2, s[28:31], s62 offen " + opt.get("ost", ""))
    if opt.get("deadline"):
        e("v_readlane_b32 s4, v167, 0")
        e("L_DLY:")
        e("s_memrealtime s[6:7]")
        e("s_waitcnt lgkmcnt(0)")
        e("s_sub_u32 s8, s6, s4")
        e(f"s_cmp_lt_u32 s8, {opt['deadline']}")
        e("s_cbranch_scc1 L_DLY")
    if opt.get("delay"):
        tm = "s_memrealtime" if opt.get("delayrt") else "s_memtime"
        e(f"{tm} s[4:5]")
        e("s_waitcnt lgkmcnt(0)")
        e("L_DLY:")
        e(f"{tm} s[6:7]")
        e("s_waitcnt lgkmcnt(0)")
        e("s_sub_u32 s8, s6, s4")
        e(f"s_cmp_lt_u32 s8, {opt['delay']}")
        e("s_cbranch_scc1 L_DLY")
    if ST:
        e("L_DUMP:")
        stamp(12)
        e("s_waitcnt vmcnt(0)")
        stamp(13); stamp(14, True)
        if opt.get("dbgst") is not None:
            e("s_load_dwordx2 s[4:5], s[0:1], 56")
            e(f"s_cmp_lg_u32 s2, {opt['dbgst']}")
            e("s_cbranch_scc1 L_END")
            e("s_cmp_lg_u32 s18, 4")
            e("s_cbranch_scc1 L_END")
            e(f"v_readlane_b32 s6, v{VST}, 1")
            e(f"v_readlane_b32 s7, v{VST}, 0")
            e("s_waitcnt lgkmcnt(0)")
            e(f"v_subrev_u32 v3, s6, v{VST}")
            e(f"v_subrev_u32 v4, s7, v{VST}")
            e("v_cmp_eq_u32 vcc, 14, v0")
            e("s_nop 1")
            e("v_cndmask_b32 v3, v3, v4, vcc")
            e("v_lshlrev_b32 v2, 2, v0")
            e("s_mov_b64 exec, 0xffff")
            e("global_store_dword v2, v3, s[4:5]")
            e("s_endpgm")
        e("s_mul_i32 s3, s2, 12")
        e("s_add_u32 s3, s3, s18")
        e("s_lshl_b32 s3, s3, 7")
        e("s_add_u32 s3, s3, 0x1000000")
        e("v_lshl_add_u32 v2, v0, 2, s3")
        e("s_mov_b64 exec, 0xffffffff")
        e(f"global_store_dword v2, v{VST}, s[16:17]")
    e("L_END:")
    e("s_endpgm")
    return name, e.text(), kd(name, 168), (256, 768, LDS)

def build(opt, path):
    n, t, k, (g, b, lds) = gen(opt)
    ref = open(f"cdna_kernels/{NAME}.s.ref").read().split("\n")
    head = [l for l in ref if l.startswith(";") and "@launch" not in l and "Override launch" not in l and "grid=ceil" not in l]
    s = "\n".join(head[:10]) + "\n"
    s += f"; @launch grid=({g},1,1) block=({b},1,1) lds={lds}\n"
    s += '.amdgcn_target "amdgcn-amd-amdhsa--gfx950"\n.text\n'
    s += f".globl {n}\n.p2align 8\n.type {n},@function\n" + t
    s += '.section .rodata,"a"\n.p2align 6\n' + k
    open(path, "w").write(s)

if __name__ == "__main__":
    import sys, json
    opt = json.loads(sys.argv[2]) if len(sys.argv) > 2 else {}
    build(opt, sys.argv[1])
```

```python
class Alloc:
    def __init__(self, size):
        self.n = size // 1024
        self.items = []
    def fits(self, lo, n, t0, t1):
        if lo + n > self.n: return False
        for (a, b, s0, s1, _) in self.items:
            if a < lo + n and lo < b and s0 < t1 and t0 < s1: return False
        return True
    def place(self, name, kb, t0, t1, top=False):
        rng = range(self.n - kb, -1, -1) if top else range(0, self.n - kb + 1)
        for lo in rng:
            if self.fits(lo, kb, t0, t1):
                self.items.append((lo, lo + kb, t0, t1, name)); return lo * 1024
        return None
    def earliest(self, name, kb, tmin, t1, tmax, top=False):
        for t in range(tmin, tmax + 1):
            a = self.place(name, kb, t, t1, top)
            if a is not None: return t, a
        raise RuntimeError("no space for " + name)

def plan(WL=3, XL=2, W2T=12, W2L=4):
    A = Alloc(158720)
    X = {}; W1 = {}; W2 = {}
    x_t0 = lambda P: -1 if P < XL else 2 * (P - XL)
    todo = []
    for P in range(3, 8): todo.append((min(16 + (2 * P + 1 - 6) // 2 + 2, 24), "X", P))
    for c in range(8): todo.append((min(16 + c + 2, 24), "W2", c))
    for t1, kind, i in sorted(todo, reverse=True):
        if kind == "X": X[i] = A.place(f"X{i}", 16, x_t0(i), t1, top=True)
    for P in range(3): X[P] = A.place(f"X{P}", 16, x_t0(P), 2 * P + 2, top=True)
    for p in range(15, -1, -1): W1[p] = A.place(f"W1_{p}", 8, max(-1, p - WL), p + 2, top=True)
    for t1, kind, i in sorted(todo):
        if kind == "W2": W2[i] = A.earliest(f"W2_{i}", 12, max(W2T, 16 + i - W2L), t1, 16 + i - 1, top=True)
    assert None not in X.values() and None not in W1.values()
    free = lambda lo, kb: max([13] + [s1 for (a, b, s0, s1, _) in A.items if a < lo + kb and lo < b])
    regs = sorted((free(16 * i, 16), 16 * i * 1024) for i in range(9))
    fin = {f"B{j}": regs[j] for j in range(7)}
    fin["V"], fin["K"] = regs[7], regs[8]
    fin["Q"] = (free(144, 8), 144 * 1024)
    return X, W1, W2, fin
if __name__ == "__main__":
    for l in (2, 3, 4):
        for r in plan(W2L=l)[2:]: print(r)

def plan3(L=2, W2L=2, NB=6, stage=False):
    busy = [[] for _ in range(10)]
    def put(t0, t1, pref):
        for s_ in pref:
            if all(t1 <= a or b <= t0 for a, b in busy[s_]):
                busy[s_].append((t0, t1)); return s_ * 16384
        return None
    X = {}; W1 = {}; W2 = {}
    t0 = lambda c: max(-1, c - L)
    hi = list(range(8, -1, -1)); lo = list(range(9))
    for P in range(7, 2, -1): X[P] = put(t0(P), min(8 + (P - 3) + 2, 16), hi)
    items = sorted([(t0(P), P + 2, "X", P) for P in range(3)] + [(t0(c), c + 2, "W", c) for c in range(8)])
    def dfs(n):
        if n == len(items): return True
        a, b, k, i = items[n]
        for s_ in hi:
            if put(a, b, [s_]) is not None:
                (X if k == "X" else W1)[i] = s_ * 16384
                if dfs(n + 1): return True
                busy[s_].remove((a, b))
        return False
    assert dfs(0)
    assert None not in X.values() and None not in W1.values(), (X, W1)
    if stage:
        for c in (6, 7):
            s_ = W1[c] // 16384
            busy[s_].remove((t0(c), c + 2)); busy[s_].append((t0(c), 9))
    for c in range(8):
        for t in range(max(4, 8 + c - W2L - (1 if c < 3 else 0)), 8 + c):
            r = put(t, min(8 + c + 2, 16), [9] + hi)
            if r is not None:
                W2[c] = (t, r); break
    assert len(W2) == 8
    free = lambda s_: max([6] + [b for a, b in busy[s_]])
    regs = sorted((free(i), i * 16384) for i in range(NB))
    fin = {f"B{j}": regs[j] for j in range(NB)}
    o = 16 * NB
    fin["K"], fin["V"], fin["Q"], fin["ONES"] = o * 1024, (o + 24) * 1024, (o + 48) * 1024, (o + 56) * 1024
    assert (o + 57) * 1024 <= 158720
    return X, W1, W2, fin


def plan4(L=2, NB=6, W2T=5, kvlow=False):
    X, W1, _, fin = plan3(L, 2, NB)
    A = Alloc(158720)
    t0 = lambda c: max(-1, c - L)
    for P, a in X.items(): A.items.append((a // 1024, a // 1024 + 16, t0(P), P + 2 if P < 3 else min(8 + (P - 3) + 2, 16), f"X{P}"))
    for c, a in W1.items(): A.items.append((a // 1024, a // 1024 + 16, t0(c), min(c + 2, 7.5), f"W{c}"))
    W2 = {}
    if kvlow: A.items.append((64, 112, 9, 99, "KVhold"))
    times = [W2T + i for i in range(8 - W2T)] + [7.5] + list(range(8, 16))
    ti = 0
    for c in range(8):
        while True:
            t = times[ti]
            r = A.place(f"W2_{c}", 11, t, min(8 + c + 2, 16), top=True)
            if r is not None:
                W2[c] = (t, r)
                if t != 7.5: ti += 1
                break
            ti += 1
        assert W2[c][0] < 8 + c
    free = lambda lo, kb: max([6] + [s1 for (a, b, s0, s1, _) in A.items if a < lo + kb and lo < b])
    slots = [0, 1, 2, 3, 7, 8] if kvlow else list(range(NB))
    regs = sorted((int(free(16 * i, 16) + 0.5), i * 16384) for i in slots)
    for j in range(NB): fin[f"B{j}"] = regs[j]
    if kvlow: fin["K"], fin["V"] = 65536, 90112
    return X, W1, W2, fin


def plan5(NB=6, L=2, kvlow=False):
    import itertools
    seq = []
    for c in range(8): seq += [("X", c), ("W", c)]
    fs = lambda k, i: (i if i < 3 else 8 + i - 3) if k == "X" else (i if k == "W" else 8 + i)
    best = None
    fixed = {("X", P): P + 1 for P in range(3, 8)}
    free_items = [it for it in seq if it not in fixed]
    def evaluate(asg):
        last = {}; pre = {}
        for it in seq:
            s_ = asg[it]
            pre[it] = last.get(s_, -1)
            last[s_] = fs(*it)
        return pre, last
    def dfs(n, asg, last):
        if n == len(seq): return dict(asg)
        it = seq[n]
        cands = [fixed[it]] if it in fixed else list(range(8, -1, -1))
        for s_ in cands:
            if last.get(s_, -1) > max(-1, it[1] - L): continue
            old = last.get(s_)
            last[s_] = fs(*it); asg[it] = s_
            r = dfs(n + 1, asg, last)
            if r: return r
            if old is None: del last[s_]
            else: last[s_] = old
            del asg[it]
        return None
    asg = dfs(0, {}, {})
    assert asg
    pre, last = evaluate(asg)
    X = {i: (asg[("X", i)] * 16384, pre[("X", i)]) for i in range(8)}
    W1 = {i: (asg[("W", i)] * 16384, pre[("W", i)]) for i in range(8)}
    fr = [-1] * 155
    for s_, st in last.items():
        for k in range(16 * s_, 16 * s_ + 16): fr[k] = st
    W2 = {}
    for c in range(8):
        cand = [lo for lo in range(0, 155 - 11 + 1) if not (kvlow and lo + 11 > 64 and lo < 112) and (c < 6 or lo % 16 <= 5)]
        lo = min(cand, key=lambda lo: (max(fr[lo:lo + 11]), -lo))
        W2[c] = (lo * 1024, max(fr[lo:lo + 11]))
        assert W2[c][1] < 8 + c
        for k in range(lo, lo + 11): fr[k] = 8 + c
    regs = sorted((max(fr[16 * i:16 * i + 16]), i * 16384) for i in ([0, 1, 2, 3, 7, 8] if kvlow else range(NB)))
    fin = {f"B{j}": regs[j] for j in range(NB)}
    o = 16 * NB
    fin["K"], fin["V"], fin["Q"], fin["ONES"] = o * 1024, (o + 24) * 1024, (o + 48) * 1024, (o + 56) * 1024
    if kvlow: fin["K"], fin["V"] = 65536, 90112
    fin["KVpre"] = max(fr[64:112]) if kvlow else max(fr[o:o + 48]); fin["Qpre"] = max(fr[o + 48:o + 56]); fin["ONEpre"] = fr[o + 56]
    return X, W1, W2, fin
```

```python
from emit import *
from alloc import plan3, plan4

NAME = "parallel_sum__sliding_block__dense_activation_relu__prompt"
WS_KV, WS_H, WS_O = 0, 0x600000, 0xD00000
WS_RS = 0xF00000
WS_CS = 0xF10000
WS_EP = 0xF80000
WS_F1, WS_F1B, WS_F2, WS_F1H = 0xF90000, 0xFA0000, 0xFB0000, 0xFC0000
WS_BYTES = 0x1000000
EPC = 0x9E3779B9
L_ST = 158720
L_MISC = L_ST + 3072
LDS = L_MISC + 64
ORD2 = list(range(6, 16)) + list(range(6))
NEG = 0xf149f2ca
pk = lambda a: f"v[{a}:{a+1}]"
SW, S1, SX, SS, S2, SO = "s[28:31]", "s[32:35]", "s[36:39]", "s[40:43]", "s[44:47]", "s[48:51]"
VST = 167

def reduce32(e, regs, tmp):
    for ctl in ("quad_perm:[1,0,3,2]", "quad_perm:[2,3,0,1]", "row_half_mirror", "row_mirror"):
        e("s_nop 1")
        for r in regs: e(f"v_add_f32_dpp v{r}, v{r}, v{r} {ctl} row_mask:0xf bank_mask:0xf")
    for r, t in zip(regs, tmp): e(f"v_mov_b32 v{t}, v{r}")
    e("s_nop 1")
    for r, t in zip(regs, tmp): e(f"v_permlane16_swap_b32 v{r}, v{t}")
    e("s_nop 1")
    for r, t in zip(regs, tmp): e(f"v_add_f32 v{r}, v{r}, v{t}")

def gen(opt):
    e = Em()
    name = NAME + "_kernel"
    ST = opt.get("stamps")
    NB = 6
    NT = opt.get("nt", "")
    PL = opt.get("pl", 2)
    XA, W1A, W2A, FIN = plan3(PL, opt.get("w2l", 2), NB, opt.get("ust", 0))
    if not opt.get("ust", 0): XA, W1A, W2A, FIN = plan4(PL, NB, opt.get("w2t", 5), opt.get("kvlow", 0))
    BREG = [FIN[f"B{j}"][1] for j in range(NB)]
    BT = [max(FIN[f"B{j}"][0], min(16, opt.get("bt0", 11) + j)) for j in range(NB)]
    L_K, L_V, L_Q, L_ONE = FIN["K"], FIN["V"], FIN["Q"], FIN["ONES"]
    def stamp(i, rt=False):
        if not ST: return
        e(("s_memrealtime" if rt else "s_memtime") + " s[100:101]")
        e("s_waitcnt lgkmcnt(0)")
        e(f"v_writelane_b32 v{VST}, s100, {i}")
    BK = opt.get("bk", [])
    def bstamp(k):
        if ST and k in BK: e(f"s_memtime s[{80+2*BK.index(k)}:{81+2*BK.index(k)}]")
    def bflush():
        if ST and BK:
            e("s_waitcnt lgkmcnt(0)")
            for i in range(len(BK)): e(f"v_writelane_b32 v{VST}, s{80+2*i}, {16+i}")
    uid = [0]
    def lab(p):
        uid[0] += 1
        return f"{p}_{uid[0]}"
    def apoll_issue(voff, soff, vd, tag):
        e.vmem(f"buffer_load_dword v{vd}, v{voff}, {SS}, {soff} offen sc1", tag)
    def apoll_check(voff, soff, vtag, vd, tag):
        D = lab("AOK")
        e.vwait(tag)
        e(f"v_cmp_ne_u32 vcc, v{vtag}, v{vd}")
        e("s_nop 1")
        e("s_cmp_eq_u64 vcc, 0")
        e(f"s_cbranch_scc1 {D}")
        keep = list(e.vm); keepl = list(e.lg)
        poll(voff, soff, vtag, vd)
        e.vm = keep; e.lg = keepl
        e(f"{D}:")
    def poll(voff, soff, vtag, vd):
        L, D = lab("POLL"), lab("POLLED")
        e("s_mov_b32 s63, 0x40000")
        e(f"{L}:")
        e(f"buffer_load_dword v{vd}, v{voff}, {SS}, {soff} offen sc1")
        e("s_waitcnt vmcnt(0) lgkmcnt(0)")
        e(f"v_cmp_ne_u32 vcc, v{vtag}, v{vd}")
        e("s_sub_u32 s63, s63, 1")
        e("s_cmp_eq_u32 s63, 0")
        e(f"s_cbranch_scc1 {D}")
        e("s_cmp_lg_u64 vcc, 0")
        e(f"s_cbranch_scc1 {L}")
        e(f"{D}:")
        e.vm = []; e.lg = []
    def ldswait(off, val, va, vb):
        L, D = lab("LW"), lab("LWOK")
        e(f"v_mov_b32 v{va}, {L_MISC}")
        e("s_mov_b32 s63, 0x400000")
        e(f"{L}:")
        e(f"ds_read_b32 v{vb}, v{va} offset:{off}")
        e("s_sub_u32 s63, s63, 1")
        e("s_waitcnt lgkmcnt(0)")
        e(f"v_readfirstlane_b32 s62, v{vb}")
        e("s_cmp_eq_u32 s63, 0")
        e(f"s_cbranch_scc1 {D}")
        e(f"s_cmp_ge_u32 s62, {val}")
        e(f"s_cbranch_scc1 {D}")
        e("s_sleep 1")
        e(f"s_branch {L}")
        e(f"{D}:")
        e.lg = []
    def ldsadd(off, va, vb):
        e(f"v_mov_b32 v{va}, {L_MISC}")
        e(f"v_mov_b32 v{vb}, 1")
        e("s_mov_b64 exec, 1")
        e(f"ds_add_u32 v{va}, v{vb} offset:{off}")
        e("s_mov_b64 exec, -1")
    def signal(coff, last, base, va=2, vb=3, vm=0):
        N = lab("NOFLAG")
        e(f"s_waitcnt vmcnt({vm})")
        e(f"v_mov_b32 v{va}, {L_MISC}")
        e(f"v_mov_b32 v{vb}, 1")
        e("s_mov_b64 exec, 1")
        e(f"ds_add_rtn_u32 v{vb}, v{va}, v{vb} offset:{coff}")
        e(f"s_add_u32 s62, s24, {base:#x}")
        e("s_waitcnt lgkmcnt(0)")
        e(f"v_readfirstlane_b32 s63, v{vb}")
        e(f"s_cmp_lg_u32 s63, {last}")
        e(f"s_cbranch_scc1 {N}")
        e(f"v_mov_b32 v{va}, 0")
        e(f"v_mov_b32 v{vb}, s61")
        e(f"buffer_store_dword v{vb}, v{va}, {SS}, s62 offen sc1")
        e(f"{N}:")
        e("s_mov_b64 exec, -1")
        e.lg = []

    e(f"{name}:")
    e("s_cmp_ge_u32 s2, 256")
    e("s_cbranch_scc1 L_END")
    stamp(0, True); stamp(1)
    if opt.get("deadline"): e("s_memrealtime s[98:99]"); e("s_waitcnt lgkmcnt(0)"); e("v_writelane_b32 v167, s98, 0")
    e("s_load_dwordx4 s[4:7], s[0:1], 0")
    e("s_load_dwordx4 s[12:15], s[0:1], 32")
    e("s_load_dwordx2 s[16:17], s[0:1], 64")
    e("s_load_dwordx2 s[8:9], s[0:1], 16")
    e("s_load_dwordx2 s[10:11], s[0:1], 48")
    e("v_lshrrev_b32 v1, 6, v0")
    e("v_and_b32 v0, 63, v0")
    e("v_readfirstlane_b32 s18, v1")
    e("""s_and_b32 s3, s2, 1
    s_lshl_b32 s20, s3, 3
    s_lshr_b32 s24, s2, 5
    s_add_u32 s20, s20, s24
    s_bfe_u32 s21, s2, 0x20001
    s_bfe_u32 s22, s2, 0x20003
    s_lshl_b32 s23, s21, 2
    s_add_u32 s23, s23, s22
    s_lshl_b32 s24, s20, 4
    s_add_u32 s24, s24, s23
    s_lshl_b32 s24, s24, 7
    s_and_b32 s19, s18, 3
    s_lshl_b32 s3, s3, 2
    s_add_u32 s58, s3, s21
    s_lshl_b32 s58, s58, 2
    s_lshr_b32 s59, s2, 6
    s_add_u32 s58, s58, s59
    s_bfe_u32 s59, s2, 0x30003""")
    if opt.get("map2", 0):
        e("""s_and_b32 s20, s2, 3
        s_lshl_b32 s20, s20, 2
        s_lshr_b32 s3, s2, 6
        s_add_u32 s20, s20, s3
        s_bfe_u32 s23, s2, 0x10002
        s_lshl_b32 s23, s23, 3
        s_bfe_u32 s3, s2, 0x30003
        s_add_u32 s23, s23, s3
        s_lshl_b32 s24, s20, 4
        s_add_u32 s24, s24, s23
        s_lshl_b32 s24, s24, 7""")
    if opt.get("own", 1):
        e("s_lshl_b32 s58, s20, 1")
        e("s_lshr_b32 s59, s23, 3")
        e("s_add_u32 s58, s58, s59")
        e("s_and_b32 s59, s23, 7")
    e("s_waitcnt lgkmcnt(0)")
    if opt.get("wsoff"):
        e(f"s_add_u32 s16, s16, {opt['wsoff'] << 20:#x}")
        e("s_addc_u32 s17, s17, 0")
    srd(e, 36, 4, 2048 * 1024)
    srd(e, 28, 6, 512 * 3072)
    srd(e, 32, 12, 512 * 3584)
    srd(e, 40, 16, WS_BYTES)
    e("s_cmp_ge_u32 s18, 8")
    e("s_cbranch_scc1 L_UTIL")
    e("s_cmp_ge_u32 s18, 4")
    e("s_cbranch_scc1 L_CONS")

    e(f"""v_and_b32 v5, 7, v0
    v_lshrrev_b32 v2, 3, v0
    v_lshrrev_b32 v3, 4, v0
    v_xor_b32 v3, v3, v5
    v_lshlrev_b32 v2, 10, v2
    v_lshl_add_u32 v12, v3, 4, v2
    v_xor_b32 v13, 64, v12
    s_lshl_b32 s65, s20, 17
    s_lshl_b32 s3, s18, 15
    s_add_u32 s65, s65, s3
    s_lshl_b32 s67, s18, 12""")
    def issueX(P):
        e(f"s_add_u32 m0, s67, {XA[P]}")
        e(f"s_add_u32 s74, s65, {P*128}")
        for a in range(4):
            e.vmem(f"buffer_load_dwordx4 v{12+(a&1)}, {SX}, s74 offen offset:{a*1024} {NT} lds", ("x", P))
            if a < 3: e(f"s_add_u32 s74, s74, {8192-1024}")
    issueX(0)
    e("""v_lshrrev_b32 v2, 5, v0
    v_bfe_u32 v3, v0, 3, 2
    v_lshl_add_u32 v3, v2, 3, v3
    v_bfe_u32 v4, v0, 4, 2
    v_lshlrev_b32 v4, 1, v4
    v_xor_b32 v4, v4, v5
    v_lshlrev_b32 v4, 4, v4
    v_mul_u32_u24 v10, 3072, v3
    v_add_u32 v10, v10, v4
    v_mul_u32_u24 v11, 3584, v3
    v_add_u32 v11, v11, v4
    s_lshr_b32 s52, s18, 1
    s_lshl_b32 s52, s52, 5
    s_and_b32 s62, s18, 1
    s_lshl_b32 s3, s62, 2
    s_add_u32 s52, s52, s3
    s_lshl_b32 s3, s23, 7
    s_mul_i32 s53, s52, 3072
    s_add_u32 s53, s53, s3
    s_add_u32 s53, s53, 1024
    s_mul_i32 s54, s52, 3584
    s_add_u32 s54, s54, s3""")
    def issueW(c):
        for ah in range(2):
            e(f"s_add_u32 m0, s67, {W1A[c] + ah*2048}")
            e(f"s_add_u32 s74, s53, {(64*c + 16*ah)*3072}")
            e.vmem(f"buffer_load_dwordx4 v10, {SW}, s74 offen {NT} lds", ("w", c))
            e(f"s_add_u32 m0, s67, {W1A[c] + ah*2048 + 1024}")
            e(f"s_add_u32 s74, s54, {(64*c + 16*ah)*3584}")
            e.vmem(f"buffer_load_dwordx4 v11, {S1}, s74 offen {NT} lds", ("w", c))
    def esetup():
        e("""v_lshrrev_b32 v2, 4, v0
        v_bfe_u32 v3, v0, 2, 2
        v_lshl_add_u32 v3, v2, 3, v3
        v_mul_u32_u24 v16, 3072, v3
        v_and_b32 v2, 1, v2
        v_lshlrev_b32 v2, 1, v2
        v_and_b32 v3, 3, v0
        v_xor_b32 v2, v2, v3
        v_lshl_add_u32 v16, v2, 4, v16
        s_and_b32 s62, s18, 1
        s_lshl_b32 s3, s62, 7""")
        for j in range(2):
            e(f"""v_add_u32 v2, s3, v0
            v_add_u32 v2, {64*j}, v2
            v_mul_u32_u24 v3, 10923, v2
            v_lshrrev_b32 v3, 16, v3
            v_mul_u32_u24 v4, 6, v3
            v_sub_u32 v4, v2, v4
            v_bfe_u32 v6, v3, 2, 2
            v_lshlrev_b32 v6, 3, v6
            v_lshrrev_b32 v7, 4, v3
            v_lshl_add_u32 v6, v7, 2, v6
            v_and_b32 v7, 3, v3
            v_add_u32 v6, v6, v7
            v_mul_u32_u24 v{17+j}, 3584, v6
            v_lshl_add_u32 v{17+j}, v4, 4, v{17+j}""")
        e("""s_cmp_eq_u32 s62, 1
        s_cselect_b32 s3, 0x80000000, 0
        v_or_b32 v18, s3, v18
        s_lshr_b32 s3, s18, 1
        s_mul_i32 s55, s52, 3072
        s_lshl_b32 s64, s23, 6
        s_add_u32 s55, s55, s64
        s_mul_i32 s56, s3, 114688
        s_mul_i32 s64, s23, 96
        s_add_u32 s56, s56, s64
        s_add_u32 s56, s56, 2048
        s_mul_i32 s57, s3, 5120
        s_lshl_b32 s64, s62, 10
        s_add_u32 s60, s57, s64
        s_lshl_b32 s64, s62, 11
        s_add_u32 s57, s57, s64
        s_add_u32 s64, s57, 1024
        s_cmp_eq_u32 s62, 1
        s_cselect_b32 s64, 8192, s64""")
    def issueW2(c):
        p = ORD2[2 * c]
        base = W2A[c][1]
        e(f"s_add_u32 m0, s60, {base}")
        e(f"s_add_u32 s74, s55, {p*32*3072}")
        e.vmem(f"buffer_load_dwordx4 v16, {SW}, s74 offen {NT} lds", ("w2", c))
        e(f"s_add_u32 m0, s57, {base + 2048}")
        e(f"s_add_u32 s74, s56, {p*32*3584}")
        e.vmem(f"buffer_load_dwordx4 v17, {S1}, s74 offen {NT} lds", ("w2", c))
        e(f"s_add_u32 m0, s64, {base + 2048}")
        e("s_nop 0")
        e.vmem(f"buffer_load_dwordx4 v18, {S1}, s74 offen {NT} lds", ("w2", c))
    NF2, NS, NA = 14, 18, 4
    A0 = 20
    AF = lambda sg, tb, kk: A0 + (sg % NA) * 16 + (tb * 2 + kk) * 4
    ACB = A0 + NA * 16
    GACC = lambda tb, nb: ACB + (tb * 2 + nb) * 16
    BFB = ACB + 64
    BF = lambda kk, nb: BFB + (kk * 2 + nb) * 4
    assert BFB + 16 <= VST
    def gsetup():
        srd(e, 44, 14, 1792 * 1024)
        srd(e, 48, 8, 512 * 1024)
        e(f"""v_lshrrev_b32 v8, 3, v0
        v_bfe_u32 v2, v0, 4, 1
        v_lshlrev_b32 v2, 2, v2
        v_xor_b32 v9, v5, v2
        v_lshlrev_b32 v9, 4, v9
        v_lshl_add_u32 v14, v8, 10, v9
        v_lshrrev_b32 v2, 2, v8
        v_lshlrev_b32 v2, 3, v2
        v_and_b32 v8, 3, v8
        v_add_u32 v8, v8, v2
        v_lshl_add_u32 v15, v8, 10, v9
        v_lshlrev_b32 v1, 4, v0
        s_lshl_b32 s3, s59, 7
        s_lshl_b32 s70, s18, 18
        s_add_u32 s70, s70, s3
        s_mul_i32 s78, s18, {12*16*1024}
        s_add_u32 s78, s78, s3
        s_lshl_b32 s71, s18, 17
        s_add_u32 s71, s71, s3
        s_mul_i32 s72, s58, {2*112*1024}
        s_add_u32 s72, s72, {WS_H:#x}
        s_mul_i32 s79, s18, {12*1024}
        s_add_u32 s79, s79, s72
        s_lshl_b32 s3, s18, 14
        s_add_u32 s72, s72, s3
        s_lshl_b32 s73, s58, 16
        s_lshl_b32 s3, s18, 13
        s_add_u32 s73, s73, s3
        s_add_u32 s73, s73, {WS_O:#x}
        s_and_b32 s3, s58, 3
        s_cmp_eq_u32 s3, s18
        s_cselect_b32 s26, 1, 0
        s_cmp_eq_u32 s59, s18
        s_cselect_b32 s27, 1, 0
        s_add_u32 s3, s18, 4
        s_cmp_eq_u32 s59, s3
        s_cselect_b32 s21, 1, 0
        s_lshl_b32 s69, s58, 1
        s_add_u32 s69, s69, s59
        s_and_b32 s69, s69, {opt.get("rotm", 7)}
        s_sub_u32 s25, s69, 6
        s_cmp_ge_u32 s69, 6
        s_cselect_b32 s25, s25, s69""")
    KS = [(2 * i, False) for i in range(8)] + [(64 + 2 * i, True) for i in range(6)]
    ROT = opt.get("rot", 0)
    def ridx(sg):
        if sg < 8:
            e(f"s_add_u32 s68, s69, {sg}")
            e("s_and_b32 s68, s68, 7")
        elif sg < NF2:
            e(f"s_add_u32 s68, s25, {sg-8}")
            e("s_sub_u32 s3, s68, 6")
            e("s_cmp_ge_u32 s68, 6")
            e("s_cselect_b32 s68, s3, s68")
        else:
            e(f"s_add_u32 s68, s69, {sg-NF2}")
            e("s_and_b32 s68, s68, 3")
    def issueB(sg):
        if ROT:
            ridx(sg)
            e("s_lshl_b32 s68, s68, 15")
            e(f"s_add_u32 s68, s68, {'s70' if sg < 8 else 's78' if sg < NF2 else 's71'}")
        for a in range(4):
            e(f"s_add_u32 m0, s67, {BREG[sg % NB] + a*1024}")
            if sg < NF2:
                k16, ex = KS[sg]
                if ROT: e(f"s_add_u32 s74, s68, {((1024 if ex else 0) + 8*a)*1024}")
                else: e(f"s_add_u32 s74, {'s78' if ex else 's70'}, {(16*k16 + 8*a)*1024}")
                e.vmem(f"buffer_load_dwordx4 v14, {S2}, s74 offen lds", ("B", sg))
            else:
                if ROT: e(f"s_add_u32 s74, s68, {(16*(a>>1) + 4*(a&1))*1024}")
                else: e(f"s_add_u32 s74, s71, {(32*(sg-NF2) + 16*(a>>1) + 4*(a&1))*1024}")
                e.vmem(f"buffer_load_dwordx4 v15, {SO}, s74 offen lds", ("B", sg))
    def issueA(sg, tbs=(0, 1)):
        for tb in tbs:
            if sg < NF2:
                k16, ex = KS[sg]
                e(f"s_add_u32 s74, {'s79' if ex else 's72'}, {(tb*112 + k16)*1024}")
            else: e(f"s_add_u32 s74, s73, {(tb*32 + 2*(sg-NF2))*1024}")
            for kk in range(2):
                e.vmem(f"buffer_load_dwordx4 {vr(AF(sg,tb,kk),4)}, v1, {SS}, s74 offen offset:{kk*1024} sc1", ("A", sg))
    LEAD = opt.get("lead", 0)
    def either(sreg, lead_fn, foll_fn):
        L1, L2 = lab("LD"), lab("LE")
        e(f"s_cmp_lg_u32 {sreg}, 0")
        e(f"s_cbranch_scc1 {L1}")
        allk = list(e.act)
        e.act = [k for k in allk if sreg not in k]
        if foll_fn: foll_fn()
        e(f"s_branch {L2}")
        e(f"{L1}:")
        keep = list(e.vm)
        e.act = [k for k in allk if sreg in k]
        if lead_fn: lead_fn()
        e.vm = keep
        e.act = allk
        e(f"{L2}:")
    def gsetup2():
        e(f"""v_lshrrev_b32 v6, 5, v0
        v_lshlrev_b32 v6, 3, v6
        v_bfe_u32 v7, v0, 2, 2
        v_add_u32 v6, v6, v7
        v_lshlrev_b32 v6, 7, v6
        v_lshrrev_b32 v7, 1, v7
        v_lshl_add_u32 v6, v7, 6, v6
        v_bfe_u32 v7, v0, 4, 1
        v_lshl_add_u32 v6, v7, 5, v6
        v_and_b32 v7, 3, v0
        v_lshl_add_u32 v6, v7, 3, v6
        v_add_u32 v6, s67, v6
        v_xor_b32 v7, 64, v6
        v_add_u32 v8, 49152, v6
        v_add_u32 v9, 49152, v7
    v_add_u32 v10, 98304, v6
    v_add_u32 v11, 98304, v7
        v_mov_b32 v2, {L_MISC}
        ds_read_b32 v2, v2
        v_and_b32 v3, 3, v0
        v_lshlrev_b32 v3, 7, v3
        s_lshr_b32 s76, s58, 1
        s_lshl_b32 s76, s76, 11
        s_lshl_b32 s3, s18, 9
        s_add_u32 s76, s76, s3
        s_add_u32 s66, s76, {WS_F1H:#x}""")
        e("s_mov_b32 s75, 0")
        e("s_waitcnt lgkmcnt(0)")
    D = opt.get("gd", 3); DB = NB - 1; PS = opt.get("ps", 11); PB = 8 - D - 1
    GE = opt.get("ge", 15)
    def firstA(lo=0, hi=None):
        hi = D if hi is None else hi
        for sg in range(lo, hi):
            if LEAD & 2 and sg == hi - 1:
                for tb in range(2): either(("s27", "s21")[tb], lambda: issueA(sg, (tb,)), None)
            else: issueA(sg)
    issueW(0)
    for c in range(1, PL): issueX(c); issueW(c)
    for k in range(17):
        e.vwait([("w", k), ("x", k)] if k < 8 else [("w2", k - 8)])
        if k == 0: stamp(2)
        if k == 8: stamp(3)
        if k == 16: stamp(4)
        bstamp(k)
        if k == 16: bflush()
        e("s_barrier")
        if k + PL <= 7: issueX(k + PL); issueW(k + PL)
        if k == 1: gsetup()
        if k == 2: esetup()
        for c in range(8):
            if W2A[c][0] == k: issueW2(c)
        if k == 7 and any(W2A[c][0] == 7.5 for c in range(8)):
            ldswait(28, 4, 2, 3)
            for c in range(8):
                if W2A[c][0] == 7.5: issueW2(c)
        if k == 9: gsetup2()
        if k == GE - 2: apoll_issue(3, "s66", 4, "f1h")
        if k == GE:
            sk = lab("GLATE")
            e.vwait("f1h")
            e("v_cmp_ne_u32 vcc, v2, v4")
            e("s_nop 1")
            e("s_cmp_lg_u64 vcc, 0")
            e(f"s_cbranch_scc1 {sk}")
            keep = list(e.vm)
            firstA()
            e.vm = keep
            e("s_mov_b32 s75, 1")
            e(f"{sk}:")
        if k < 16:
            for j in range(NB):
                if BT[j] == k: issueB(j)
    if opt.get("gprio", 0): e(f"s_setprio {opt.get('gprio')}")
    for j in range(NB):
        if BT[j] >= 16: issueB(j)
    e("s_cmp_lg_u32 s75, 0")
    e("s_cbranch_scc1 L_GGO")
    keep = list(e.vm)
    poll(3, "s66", 2, 4)
    e.vm = keep
    if LEAD:
        assert GE > 16
        e.vm = []
        e.var_start([(b_, a_) for b_ in ("", "s26") for a_ in ("", "s27", "s21")])
    firstA()
    e("L_GGO:")
    stamp(5)
    def step(sg):
        if sg == opt.get("ghold", -1): ldswait(16, 8, 12, 13)
        e.vwait([("B", sg), ("A", sg)])
        reg = BREG[sg % NB]
        hi = reg // 49152
        off0 = reg - 49152 * hi
        for kk in range(2):
            for nb in range(2):
                for q in range(2):
                    e.lds(f"ds_read_b64_tr_b16 v[{BF(kk,nb)+2*q}:{BF(kk,nb)+2*q+1}], v{6+2*hi+nb} offset:{off0 + kk*2048 + q*512}", (kk, nb))
        if LEAD & 1:
            FB = opt.get("fb", 3)
            okb = lambda j: NB <= j < NS
            if okb(sg + DB) or okb(sg + FB):
                either("s26", (lambda: issueB(sg + DB)) if okb(sg + DB) else None, (lambda: issueB(sg + FB)) if okb(sg + FB) else None)
        elif NB <= sg + DB < NS: issueB(sg + DB)
        oka = lambda j: j < NF2 or (j < NS and sg > PS and j >= PS + 1 + D)
        if LEAD & 2:
            okf = lambda j: j < NF2 or (j < NS and sg > PS and j >= PS + D)
            for tb in range(2):
                if oka(sg + D) or okf(sg + D - 1):
                    either(("s27", "s21")[tb], (lambda: issueA(sg + D, (tb,))) if oka(sg + D) else None, (lambda: issueA(sg + D - 1, (tb,))) if okf(sg + D - 1) else None)
        elif oka(sg + D): issueA(sg + D)
        for kk in range(2):
            for nb in range(2):
                e.lwait((kk, nb))
                for tb in range(2):
                    acc = vr(GACC(tb, nb), 16)
                    cin = "0" if (sg == 0 and kk == 0) else acc
                    if opt.get("nogm") and (kk or nb): continue
                    e(f"v_mfma_f32_32x32x16_bf16 {acc}, {vr(BF(kk,nb),4)}, {vr(AF(sg,tb,kk),4)}, {cin}")
    for sg in range(PS + 1):
        if sg == PB - 1 or sg == PS - 1:
            e(f"s_add_u32 s66, s76, {(WS_F1B if sg == PB - 1 else WS_F2):#x}")
            apoll_issue(3, "s66", 4, "fl")
        step(sg)
        if sg == PB:
            stamp(6)
            apoll_check(3, "s66", 2, 4, "fl")
    stamp(7)
    apoll_check(3, "s66", 2, 4, "fl")
    stamp(8)
    firstA(NF2, min(NS, PS + 1 + D))
    for sg in range(PS + 1, NS): step(sg)
    e.var = None
    stamp(9)
    e("""v_and_b32 v12, 31, v0
    v_lshlrev_b32 v12, 7, v12
    v_lshrrev_b32 v13, 5, v0
    v_xor_b32 v13, v13, v5
    v_lshl_add_u32 v12, v13, 4, v12
    v_add_u32 v12, s67, v12""")
    for nb in range(2):
        for a in range(4): e(f"v_xor_b32 v{20+nb*4+a}, {((2*a) ^ nb)*16}, v12")
    for tb in range(2):
        for nb in range(2):
            for a in range(4): e(f"v_add_u32 v{28+(tb*2+nb)*4+a}, {BREG[tb*2+nb]}, v{20+nb*4+a}")
    for tb in range(2):
        for nb in range(2):
            for a in range(4): e(f"ds_write_b128 v{28+(tb*2+nb)*4+a}, {vr(GACC(tb,nb)+4*a,4)}")
    e("s_waitcnt lgkmcnt(0)")
    stamp(10)
    e("s_barrier")
    if ST: e("s_branch L_DUMP")
    e("s_endpgm")

    e("L_CONS:")
    e.vm = []; e.lg = []
    LA = opt.get("la", 5); NFB = 6
    F = lambda f: 8 + (f % NFB) * 4
    XF = lambda n, r: 32 + ((n & 1) * 2 + r) * 4
    XK = lambda p, r: 48 + (p * 2 + r) * 4
    ACC = lambda s, r: 96 + (s * 2 + r) * 4
    AW = [1, 2, 3, 4]; AX = [7, 5]
    e(f"""v_lshrrev_b32 v8, 2, v0
    v_lshrrev_b32 v9, 3, v8
    v_lshlrev_b32 v9, 11, v9
    v_and_b32 v10, 7, v8
    v_lshl_add_u32 v9, v10, 7, v9
    v_and_b32 v10, 3, v0
    v_lshlrev_b32 v10, 3, v10
    v_add_u32 v9, v9, v10
    v_bfe_u32 v11, v0, 3, 2
    v_lshl_add_u32 v1, v11, 5, v9
    v_add_u32 v1, {W1A[0]}, v1
    v_xor_b32 v2, 32, v1
    v_xor_b32 v3, 64, v1
    v_xor_b32 v4, 96, v1
    v_and_b32 v8, 15, v0
    v_lshrrev_b32 v9, 4, v0
    v_lshrrev_b32 v10, 1, v8
    v_xor_b32 v9, v9, v10
    v_lshlrev_b32 v8, 7, v8
    v_lshl_add_u32 v7, v9, 4, v8
    s_lshl_b32 s3, s19, 12
    s_add_u32 s3, s3, {XA[0]}
    v_add_u32 v7, s3, v7
    v_xor_b32 v5, 64, v7""")
    if opt.get("cprio", 0): e(f"s_setprio {opt.get('cprio')}")
    cur = {"w": W1A[0], "x": XA[0]}
    UST = opt.get("ust", 0)
    DEF = []; NST = [0]; TIM = 0 if UST else opt.get("tim", 2)
    def move(kind, regs, addr):
        d = addr - cur[kind]
        if d:
            for a in regs: e(f"v_add_u32 v{a}, {d & 0xffffffff:#x}, v{a}")
        cur[kind] = addr
    def gemm(ps):
        NSB = 8 if ps == 1 else 5
        NF = 16 * NSB
        kst = (lambda n: n) if ps == 1 else (lambda n: ORD2[n])
        xreg = lambda n, r: XK(kst(n), r) if kst(n) < 6 else XF(n, r)
        def rd(f):
            n, s = divmod(f, NSB)
            for q in range(2):
                if ps == 1:  a, off = AW[s & 3], (n & 1) * 8192 + q * 4096 + (s >> 2) * 1024
                elif s < 2:  a, off = AW[s], (n & 1) * 5120 + q * 1024
                else:        a, off = AW[2], (n & 1) * 5120 + 2048 + q * 1536 + (s - 2) * 32
                yield f"ds_read_b64_tr_b16 v[{F(f)+2*q}:{F(f)+2*q+1}], v{a} offset:{off}"
        def kswitch(n):
            if n % 2 == 0:
                if ps == 1: move("w", AW, W1A[n // 2])
                else:       move("w", AW[:3], W2A[n // 2][1])
                bstamp(8 * (ps - 1) + n // 2)
                e("s_barrier")
                if ps == 2 and not UST:
                    for _ in range(opt.get("tper", 2)):
                        if DEF:
                            for x in DEF.pop(0):
                                if opt.get("nost1") and "buffer_store" in x: continue
                                e(x.replace(" sc1", "") if opt.get("plain1") else x)
                            NST[0] += 1
                    if n // 2 == opt.get("sgk", 3):
                        bstamp(20); signal(4, 3, WS_F1, 164, 165, max(0, NST[0] - 4)); bstamp(21)
                    if n // 2 == opt.get("sgh", 5):
                        assert not DEF
                        bstamp(22); signal(24, 3, WS_F1H, 164, 165); bstamp(23)
            if NSB > LA or n < 2: xread(n)
        def xread(n):
            p = kst(n)
            if ps == 1 or p >= 6:
                move("x", AX, XA[p >> 1])
                for r in range(2): e.lds(f"ds_read_b128 {vr(xreg(n,r),4)}, v{AX[p&1]} offset:{r*2048}", ("x", n))
        kswitch(0)
        if ps == 1: stamp(2)
        for f in range(LA):
            if f and f % NSB == 0: kswitch(f // NSB)
            for r_ in rd(f): e.lds(r_, f)
        for f in range(NF):
            n, s = divmod(f, NSB)
            nxt = f + LA
            if nxt < NF and nxt % NSB == 0: kswitch(nxt // NSB)
            if NSB <= LA and s == 0 and 1 <= n < 15: xread(n + 1)
            e.lwait([f, ("x", n)])
            if ps == 2 and f == NF - 1: e("s_barrier")
            rds = list(rd(nxt)) if nxt < NF else [None, None]
            for r in range(2):
                acc = vr(ACC(s, r), 4)
                e(f"v_mfma_f32_16x16x32_bf16 {acc}, {vr(F(f),4)}, {vr(xreg(n,r),4)}, {'0' if n == 0 else acc}")
                if rds[r]: e.lds(rds[r], nxt)
    RS = lambda r: 160 + 2 * r
    RQ = lambda r: 32 + 2 * r
    TT = 8
    CSR = [24, 28]
    def epilogue(ps):
        order = (([0, 1, 2, 3, 5, 6, 7, 4] if opt.get('kvfirst') else [5, 6, 7, 2, 3, 4, 0, 1]) if TIM else list(range(8))) if ps == 1 else [0, 1, 2, 3, 4]
        dd = {}
        loc = lambda s: s if ps == 1 else 8 + s
        if ps == 1:
            ldsadd(28, 8, 9)
            ldswait(20, 1, 8, 9)
        e(f"""v_and_b32 v16, 15, v0
        v_lshrrev_b32 v17, 4, v0
        s_lshl_b32 s3, s19, 9
        s_add_u32 s3, s3, {L_ST}
        v_lshl_add_u32 v8, v16, 4, s3
        v_lshlrev_b32 v164, 4, v17
        v_add_u32 v164, {L_ST+2048}, v164
        v_mov_b32 v10, {L_MISC}""")
        if ps == 1:
            for r in range(2): e.lds(f"ds_read_b64 {pk(RS(r))}, v8 offset:{256*r}", "st")
            e.lds("ds_read_b32 v10, v10", "st")
        def csread(n):
            if n < len(order): e.lds(f"ds_read_b128 {vr(CSR[n%2],4)}, v164 offset:{64*loc(order[n])}", ("cs", n))
        csread(0)
        e("v_lshlrev_b32 v166, 4, v0")
        if ps == 1:
            e(f"""s_lshl_b32 s64, s20, 2
            s_add_u32 s64, s64, s19
            s_lshl_b32 s65, s23, 8
            s_add_u32 s65, s65, s64
            s_lshl_b32 s65, s65, 10
            s_mul_i32 s66, s64, 112
            s_mul_i32 s67, s23, 3
            s_add_u32 s67, s67, s66
            s_add_u32 s67, s67, 64
            s_lshl_b32 s67, s67, 10
            s_lshl_b32 s3, s23, 2
            s_add_u32 s66, s66, s3
            s_lshl_b32 s66, s66, 10
            s_add_u32 s66, s66, {WS_H:#x}
            s_add_u32 s67, s67, {WS_H:#x}""")
            if UST:
                e("s_lshl_b32 s3, s19, 12")
                e("v_add_u32 v36, s3, v166")
                e(f"v_add_u32 v37, {W1A[7]}, v36")
                e(f"v_add_u32 v36, {W1A[6]}, v36")
            e.lwait("st")
            e("v_readfirstlane_b32 s61, v10")
        else:
            e("s_mov_b32 s3, 0x3eb8aa3b")
            for q in range(4): e(f"v_mul_f32 v{32+q}, s3, v{160+q}")
            e("s_lshl_b32 s3, s19, 10")
            e(f"s_add_u32 s3, s3, {L_Q}")
            e("v_add_u32 v36, s3, v166")
        for n, s in enumerate(order):
            T = 16 + 4 * (n % 2)
            stg = ps == 1 and UST
            dfr = ps == 1 and TIM and s >= (4 if opt.get('kvfirst') else 2) and not UST
            if dfr: T = ACC(s, 0) if s >= 5 else ACC(s + 3, 1)
            isQ = ps == 2 and s < 2
            isH = (ps == 1 and s >= 4) or (ps == 2 and s >= 2)
            if stg and s == 4: ldswait(28, 4, 38, 39)
            e.lwait(("cs", n))
            c = CSR[n % 2]
            csread(n + 1)
            if opt.get("xnop"): e("s_nop 3")
            if ps == 2 and opt.get("nopk", 1):
                for r in range(2):
                    sp = RQ(r) if isQ else RS(r)
                    for j in range(4): e(f"v_mul_f32 v{TT+4*r+j}, v{c+j}, v{sp+1}")
                for r in range(2):
                    sp = RQ(r) if isQ else RS(r)
                    for j in range(4): e(f"v_fmac_f32 v{TT+4*r+j}, v{ACC(s,r)+j}, v{sp}")
            else:
                for r in range(2):
                    sp = RQ(r) if isQ else RS(r)
                    for h in range(2):
                        e(f"v_pk_mul_f32 {pk(TT+4*r+2*h)}, {pk(c+2*h)}, {pk(sp)} op_sel:[0,1] op_sel_hi:[1,1]")
                for r in range(2):
                    sp = RQ(r) if isQ else RS(r)
                    for h in range(2):
                        t = TT + 4 * r + 2 * h
                        e(f"v_pk_fma_f32 {pk(t)}, {pk(ACC(s,r)+2*h)}, {pk(sp)}, {pk(t)} op_sel_hi:[1,0,1]")
            for r in range(2):
                for h in range(2):
                    t = TT + 4 * r + 2 * h
                    e(f"v_cvt_pk_bf16_f32 v{T+2*r+h}, v{t}, v{t+1}")
            if isQ or stg: sa = "s_nop 0"
            elif ps == 2: sa = f"s_add_u32 s3, s67, {(s-2)*1024}"
            elif s < 4: sa = f"s_add_u32 s3, s65, {WS_KV + s*0x10000:#x}"
            else: sa = f"s_add_u32 s3, s66, {(s-4)*1024}"
            e("s_nop 2")
            e(f"v_permlane16_swap_b32 v{T}, v{T+2}")
            e(f"v_permlane16_swap_b32 v{T+1}, v{T+3}")
            e(sa if not dfr else "s_nop 0")
            e("s_nop 0")
            if isH:
                for q in (0, 2, 1, 3): e(f"v_pk_max_i16 v{T+q}, v{T+q}, 0")
            if isQ:
                e.lds(f"ds_write_b128 v36, {vr(T,4)} offset:{s*4096}", "qw")
                if s == 1:
                    e.lwait_all()
                    ldsadd(16, 37, 38)
            elif stg: e.lds(f"ds_write_b128 v{36 + (s >> 2)}, {vr(T,4)} offset:{(s&3)*1024}", "qw")
            elif dfr: dd[s] = [sa, f"buffer_store_dwordx4 {vr(T,4)}, v166, {SS}, s3 offen sc1"]
            else:
                e(f"buffer_store_dwordx4 {vr(T,4)}, v166, {SS}, s3 offen sc1")
                NST[0] += 1
        for s in sorted(dd): DEF.append(dd[s])
    gemm(1)
    stamp(3)
    epilogue(1)
    e(f"""v_lshrrev_b32 v8, 2, v0
    v_and_b32 v10, 3, v0
    v_lshlrev_b32 v10, 3, v10
    v_lshl_add_u32 v1, v8, 6, v10
    v_bfe_u32 v11, v0, 4, 1
    v_lshl_add_u32 v1, v11, 5, v1
    v_add_u32 v1, {W2A[0][1]}, v1
    v_xor_b32 v2, 32, v1
    v_mul_u32_u24 v3, 96, v8
    v_add_u32 v3, v3, v10
    v_add_u32 v3, {W2A[0][1]}, v3""")
    cur["w"] = W2A[0][1]
    e.lwait_all()
    stamp(4)
    gemm(2)
    bflush()
    stamp(5)
    epilogue(2)
    e("s_mov_b32 s96, s19")
    e("s_mov_b32 s97, 1")
    e("s_branch L_ATT")

    e("L_UTIL:")
    e.vm = []; e.lg = []
    if opt.get("uprio0", 3): e(f"s_setprio {opt.get('uprio0', 3)}")
    L0, U, A, CL, C0, C1, VE = 16, 24, 40, 48, 64, 72, 80
    e("v_and_b32 v5, 7, v0")
    if opt.get("pfc", 1):
        sk = lab("NOPC")
        e("s_cmp_lg_u32 s19, 3")
        e(f"s_cbranch_scc1 {sk}")
        e("s_getpc_b64 s[64:65]")
        e("L_PCREF:")
        e(f"s_sub_u32 s64, s64, L_PCREF-{name}")
        e("s_subb_u32 s65, s65, 0")
        e("s_lshr_b32 s66, s2, 3")
        e("s_mul_i32 s66, s66, (L_END-%s+4095)/4096*128" % name)
        e("v_lshlrev_b32 v2, 7, v0")
        e("v_add_u32 v2, s66, v2")
        e("v_mov_b32 v3, s65")
        e("v_add_co_u32 v2, vcc, s64, v2")
        e("s_nop 1")
        e("v_addc_co_u32 v3, vcc, 0, v3, vcc")
        e("v_cmp_gt_u32 vcc, (L_END-%s+4095)/4096, v0" % name)
        e("s_nop 1")
        e("s_and_saveexec_b64 s[66:67], vcc")
        e("global_load_dword v163, v[2:3], off")
        e("s_mov_b64 exec, -1")
        e(f"{sk}:")
    PFU = opt.get("pfu", 0)
    def pf_x():
        e("""v_and_b32 v2, 31, v0
        v_lshlrev_b32 v2, 10, v2
        v_lshrrev_b32 v3, 5, v0
        v_lshl_add_u32 v2, v3, 7, v2
        s_lshl_b32 s64, s20, 17
        s_lshl_b32 s65, s22, 15
        s_add_u32 s64, s64, s65
        s_lshl_b32 s65, s19, 8
        s_add_u32 s64, s64, s65""")
        e(f"buffer_load_dword v160, v2, {SX}, s64 offen")
    def pf_w():
        L1, L2, L3, LD = lab("PW"), lab("PW"), lab("PW"), lab("PW")
        e("""s_and_b32 s64, s20, 7
        v_lshlrev_b32 v2, 3, v0
        v_add_u32 v2, s64, v2
        v_mul_u32_u24 v3, 3584, v2
        v_mul_u32_u24 v2, 3072, v2
        s_lshl_b32 s64, s23, 7""")
        e("s_cmp_eq_u32 s19, 1"); e(f"s_cbranch_scc1 {L1}")
        e("s_cmp_eq_u32 s19, 3"); e(f"s_cbranch_scc1 {L3}")
        e("s_add_u32 s65, s64, 1024")
        e("s_lshr_b32 s64, s64, 1")
        e("s_cmp_eq_u32 s19, 0")
        e("s_cselect_b32 s64, s65, s64")
        e(f"buffer_load_dword v161, v2, {SW}, s64 offen")
        e(f"s_branch {LD}")
        e(f"{L3}:")
        e("s_mul_i32 s64, s23, 96")
        e("s_add_u32 s64, s64, 2048")
        e(f"buffer_load_dword v162, v3, {S1}, s64 offen offset:92")
        e(f"{L1}:")
        e(f"buffer_load_dword v161, v3, {S1}, s64 offen")
        e(f"{LD}:")
    if PFU == 1: pf_x(); pf_w()
    e(f"v_mov_b32 v{VE}, 0")
    e(f"s_mov_b32 s3, {WS_EP:#x}")
    e.vmem(f"buffer_load_dword v{VE}, v{VE}, {SS}, s3 offen sc1", "rs")
    e(f"""v_lshrrev_b32 v4, 5, v0
    v_and_b32 v6, 31, v0
    v_lshlrev_b32 v6, 4, v6
    v_lshl_add_u32 v6, v4, 10, v6
    v_lshlrev_b32 v{VE+1}, 4, v4
    s_lshl_b32 s64, s20, 7
    s_lshl_b32 s65, s23, 3
    s_add_u32 s64, s64, s65
    s_lshl_b32 s65, s19, 1
    s_add_u32 s64, s64, s65
    s_lshl_b32 s65, s64, 10""")
    e.vmem(f"buffer_load_dwordx4 {vr(L0,4)}, v6, {SX}, s65 offen", "rs")
    e.vmem(f"buffer_load_dwordx4 {vr(L0+4,4)}, v6, {SX}, s65 offen offset:512", "rs")
    e("""s_add_u32 s66, s23, 8
    s_add_u32 s67, s23, 24
    s_cmp_eq_u32 s19, 1
    s_cselect_b32 s66, s67, s66
    s_add_u32 s67, s23, 32
    s_cmp_lt_u32 s23, 8
    s_cselect_b32 s67, s23, s67
    s_cmp_eq_u32 s19, 2
    s_cselect_b32 s66, s67, s66
    s_add_u32 s67, s23, 48
    s_cmp_eq_u32 s19, 3
    s_cselect_b32 s66, s67, s66
    v_lshrrev_b32 v2, 3, v0
    v_lshlrev_b32 v3, 4, v5
    s_cmp_ge_u32 s66, 52
    s_cbranch_scc1 L_CSD
    s_lshl_b32 s67, s66, 7
    s_cmp_ge_u32 s66, 24
    s_cbranch_scc1 L_CSW
    v_mul_u32_u24 v4, 3072, v2
    v_add_u32 v4, v4, v3""")
    e(f"s_mul_i32 s68, s20, {32*3072}")
    e("s_add_u32 s68, s68, s67")
    for t in range(4):
        e(f"buffer_load_dwordx4 {vr(CL+4*t,4)}, v4, {SW}, s68 offen")
        if t < 3: e(f"s_add_u32 s68, s68, {8*3072}")
    e("s_branch L_CSD")
    e("L_CSW:")
    e("v_mul_u32_u24 v4, 3584, v2")
    e("v_add_u32 v4, v4, v3")
    e(f"s_mul_i32 s68, s20, {32*3584}")
    e("s_add_u32 s68, s68, s67")
    e(f"s_sub_u32 s68, s68, {24*128}")
    for t in range(4):
        e(f"buffer_load_dwordx4 {vr(CL+4*t,4)}, v4, {S1}, s68 offen")
        if t < 3: e(f"s_add_u32 s68, s68, {8*3584}")
    e("L_CSD:")
    if PFU == 2:
        e("s_mov_b32 s74, s64")
        pf_x(); pf_w()
        e("s_mov_b32 s64, s74")
    e(f"""s_mov_b32 s69, 0xffff0000
    s_mov_b32 s70, 0x3b000000
    s_lshl_b32 s64, s64, 4
    s_add_u32 s64, s64, {WS_RS:#x}
    v_lshlrev_b32 v14, 4, v0
    s_lshl_b32 s71, s23, 8
    s_add_u32 s72, s71, {512*4}
    v_add_u32 v15, s72, v14
    s_add_u32 s72, s71, {1536*4 - 256}
    v_add_u32 v2, s72, v14
    v_cmp_le_u32 vcc, 16, v0
    s_lshl_b32 s72, s23, 7
    s_sub_u32 s72, s72, 512
    v_cndmask_b32 v15, v15, v2, vcc
    v_add_u32 v2, s72, v14
    v_cmp_le_u32 vcc, 32, v0
    s_mul_i32 s72, s23, 192
    s_add_u32 s72, s72, {2560*4 - 640}
    v_cndmask_b32 v15, v15, v2, vcc
    v_min_u32 v2, 51, v0
    v_lshlrev_b32 v2, 4, v2
    v_add_u32 v2, s72, v2
    v_cmp_le_u32 vcc, 40, v0
    s_nop 1
    v_cndmask_b32 v15, v15, v2, vcc""")
    def piece(n):
        if n == 0:
            e("s_cmp_ge_u32 s66, 52")
            e("s_cbranch_scc1 L_P0A")
            e(f"s_waitcnt vmcnt({4 + (2 if PFU == 2 else 0)})")
            e("s_branch L_P0B")
            e("L_P0A:")
            e(f"s_waitcnt vmcnt({2 if PFU == 2 else 0})")
            e("L_P0B:")
            for q in range(8):
                e(f"v_lshlrev_b32 v{U+2*q}, 16, v{L0+q}")
                e(f"v_and_b32 v{U+2*q+1}, s69, v{L0+q}")
            for q in range(4): e(f"v_add_f32 v{A+q}, v{U+q}, v{U+4+q}")
            for t in range(2, 4):
                for q in range(4): e(f"v_add_f32 v{A+q}, v{A+q}, v{U+4*t+q}")
            e(f"v_add_f32 v{A}, v{A}, v{A+1}")
            e(f"v_add_f32 v{A+2}, v{A+2}, v{A+3}")
            e(f"v_add_f32 v{A}, v{A}, v{A+2}")
            reduce32(e, [A], [A + 1])
            e(f"v_mul_f32 v{A}, s70, v{A}")
            e(f"v_add_u32 v{A+6}, {EPC:#x}, v{VE}")
            e(f"v_mov_b32 v2, {L_MISC}")
            e("v_mov_b32 v3, 0")
            e(f"ds_write_b32 v2, v{A+6}")
            for o in (4, 8, 12, 16, 20, 24, 28): e(f"ds_write_b32 v2, v3 offset:{o}")
        if n == 1:
            for q in range(16): e(f"v_sub_f32 v{U+q}, v{U+q}, v{A}")
            for q in range(4): e(f"v_mul_f32 v{L0+q}, v{U+q}, v{U+q}")
            for q in range(4, 16): e(f"v_fmac_f32 v{L0+(q&3)}, v{U+q}, v{U+q}")
            e(f"v_add_f32 v{L0}, v{L0}, v{L0+1}")
            e(f"v_add_f32 v{L0+2}, v{L0+2}, v{L0+3}")
            e(f"v_add_f32 v{A+4}, v{L0}, v{L0+2}")
            reduce32(e, [A + 4], [A + 5])
            e(f"v_mov_b32 v{A+5}, 0x3727c5ac")
            e(f"v_fma_f32 v{A+4}, v{A+4}, s70, v{A+5}")
            e(f"v_rsq_f32 v{A+4}, v{A+4}")
            e(f"v_readfirstlane_b32 s61, v{A+6}")
            e(f"v_mov_b32 v{A+7}, v{A+6}")
            e(f"v_mul_f32 v{A+5}, v{A}, v{A+4}")
            e(f"v_sub_f32 v{A+5}, 0, v{A+5}")
            e("s_mov_b32 exec_lo, 1")
            e("s_mov_b32 exec_hi, 1")
            e(f"buffer_store_dwordx4 {vr(A+4,4)}, v{VE+1}, {SS}, s64 offen sc1")
            e("s_mov_b64 exec, -1")
        if n == 2:
            e(f"s_waitcnt vmcnt({1 + (2 if PFU == 2 else 0)})")
            for q in range(4):
                e(f"v_lshlrev_b32 v{C0+2*q}, 16, v{CL+q}")
                e(f"v_and_b32 v{C0+2*q+1}, s69, v{CL+q}")
            for t in range(1, 4):
                for q in range(4):
                    e(f"v_lshlrev_b32 v{C1+2*q}, 16, v{CL+4*t+q}")
                    e(f"v_and_b32 v{C1+2*q+1}, s69, v{CL+4*t+q}")
                for q in range(8): e(f"v_add_f32 v{C0+q}, v{C0+q}, v{C1+q}")
            e("s_nop 1")
            for q in range(8): e(f"v_add_f32_dpp v{C0+q}, v{C0+q}, v{C0+q} row_ror:8 row_mask:0xf bank_mask:0xf")
            e("s_mov_b32 s72, 0xff00ff00")
            e("s_mov_b32 s73, 0xff00ff00")
            for q in range(4): e(f"v_cndmask_b32 v{C0+q}, v{C0+q}, v{C0+4+q}, s[72:73]")
            for sw in ("v_permlane16_swap_b32", "v_permlane32_swap_b32"):
                for q in range(4): e(f"v_mov_b32 v{C1+q}, v{C0+q}")
                e("s_nop 0")
                for q in range(4): e(f"{sw} v{C0+q}, v{C1+q}")
                for q in range(4): e(f"v_add_f32 v{C0+q}, v{C0+q}, v{C1+q}")
            e("s_mov_b32 s71, 0xff")
            e(f"v_bfe_u32 v{C1+2}, v0, 3, 1")
            for q in range(4): e(f"v_bfi_b32 v{C0+q}, s71, v{A+6}, v{C0+q}")
            e(f"v_lshlrev_b32 v{C1+1}, 5, v5")
            e(f"v_lshl_add_u32 v{C1+1}, v{C1+2}, 4, v{C1+1}")
            e(f"s_mul_i32 s71, s20, {3328*4}")
            e("s_lshl_b32 s72, s66, 8")
            e("s_add_u32 s71, s71, s72")
            e(f"s_add_u32 s71, s71, {WS_CS:#x}")
            e("s_cmp_ge_u32 s66, 52")
            e("s_cbranch_scc1 L_P2S")
            e("s_mov_b64 exec, 0xffff")
            e(f"buffer_store_dwordx4 {vr(C0,4)}, v{C1+1}, {SS}, s71 offen sc1")
            e("s_mov_b64 exec, -1")
            e("L_P2S:")
    def kvsetup():
        e(f"""v_and_b32 v10, 3, v0
        v_min_u32 v10, 2, v10
        s_sub_u32 s76, s20, 2
        v_add_u32 v10, s76, v10
        v_max_i32 v10, 0, v10
        v_lshlrev_b32 v10, 11, v10
        v_bfe_u32 v11, v0, 2, 1
        v_lshl_add_u32 v10, v11, 10, v10
        s_lshr_b32 s76, s23, 1
        s_lshl_b32 s76, s76, 7
        s_add_u32 s76, s76, {WS_F1:#x}
        v_mov_b32 v11, s61
        v_lshlrev_b32 v1, 4, v0
        s_lshr_b32 s52, s19, 1
        s_lshl_b32 s53, s23, 1
        s_add_u32 s53, s53, s52
        s_lshl_b32 s53, s53, 6
        s_and_b32 s54, s19, 1
        s_mul_i32 s54, s54, 6
        s_lshl_b32 s55, s20, 2
        s_add_u32 s54, s54, s55
        s_mul_i32 s55, s19, 6144""")
    def kvdma():
        for t in range(6):
            e(f"s_add_u32 s68, s54, {t}")
            e("s_sub_i32 s68, s68, 8")
            e("s_max_i32 s68, s68, 0")
            e("s_add_u32 s68, s68, s53")
            e("s_lshl_b32 s68, s68, 10")
            e(f"s_add_u32 m0, s55, {L_K + t*1024}")
            e("s_add_u32 s69, s68, 0x200000")
            e(f"buffer_load_dwordx4 v1, {SS}, s68 offen sc1 lds")
            e(f"s_add_u32 m0, s55, {L_V + t*1024}")
            e("s_nop 0")
            e(f"buffer_load_dwordx4 v1, {SS}, s69 offen sc1 lds")
    G0 = 84
    def gather():
        e(f"s_mov_b32 s71, {WS_CS:#x}")
        for g in range(16):
            e(f"buffer_load_dwordx4 {vr(G0+4*g,4)}, v15, {SS}, s71 offen sc1")
            e(f"s_add_u32 s71, s71, {3328*4}")
        e("s_lshl_b32 s71, s20, 11")
        e(f"s_add_u32 s71, s71, {WS_RS:#x}")
        for h in range(2):
            e(f"buffer_load_dwordx4 {vr(G0+64+4*h,4)}, v14, {SS}, s71 offen offset:{h*1024} sc1")
    PK = opt.get("pk", [0, 0, 1]); GK = opt.get("gk", 4); CK = opt.get("ck", 6)
    for n_, kk_ in enumerate(PK):
        if kk_ < 0: piece(n_)
    for k in range(16):
        if k == 2: e("s_waitcnt lgkmcnt(0)")
        bstamp(k)
        e("s_barrier")
        for n_, kk_ in enumerate(PK):
            if kk_ == k: piece(n_)
        KVK = opt.get("kvk", 14)
        if k == 8:
            kvsetup()
            e("s_mov_b32 s77, 0")
        if k == KVK - 1: e(f"buffer_load_dword v4, v10, {SS}, s76 offen sc1")
        if k == KVK:
            sk = lab("KVLATE")
            e("s_waitcnt vmcnt(0)")
            e("v_cmp_ne_u32 vcc, v11, v4")
            e("s_nop 1")
            e("s_cmp_lg_u64 vcc, 0")
            e(f"s_cbranch_scc1 {sk}")
            kvdma()
            e("s_mov_b32 s77, 1")
            e(f"{sk}:")
        PW0 = opt.get("pfw", 0)
        if PW0 and PW0 <= k < 16:
            if k == PW0:
                srd(e, 44, 14, 1792 * 1024)
                srd(e, 48, 8, 512 * 1024)
                e("s_lshr_b32 s78, s2, 3")
                e("s_mul_i32 s79, s78, 57344")
                e("s_mul_i32 s3, s19, 14336")
                e("s_add_u32 s79, s79, s3")
                e("s_lshl_b32 s78, s78, 14")
                e("s_lshl_b32 s3, s19, 12")
                e("s_add_u32 s78, s78, s3")
            per = -(-18 // (opt.get("pfwe", 16) - PW0))
            for j in range(per * (k - PW0), min(18, per * (k - PW0 + 1))):
                if j < 14:
                    e(f"s_add_u32 s3, s79, {j*1024}")
                    e(f"buffer_load_dwordx4 v[120:123], v14, {S2}, s3 offen")
                else:
                    e(f"buffer_load_dwordx4 v[120:123], v14, {SO}, s78 offen offset:{(j-14)*1024}")
        if opt.get("pfl2", 0) and 8 <= k <= 10:
            if k == 8:
                srd(e, 44, 14, 1792 * 1024)
                srd(e, 48, 8, 512 * 1024)
                e("v_lshlrev_b32 v12, 7, v0")
                e("s_lshr_b32 s78, s2, 3")
            j = k - 8
            sk = lab("NOP2")
            if j < 2:
                e("s_mul_i32 s71, s78, 57344")
                e("s_lshl_b32 s72, s19, 13")
                e("s_add_u32 s71, s71, s72")
                if j == 1:
                    e("s_cmp_eq_u32 s19, 3")
                    e(f"s_cbranch_scc1 {sk}")
                    e("s_add_u32 s71, s71, 32768")
                e(f"buffer_load_dword v13, v12, {S2}, s71 offen")
            else:
                e("s_cmp_ge_u32 s19, 2")
                e(f"s_cbranch_scc1 {sk}")
                e("s_lshl_b32 s71, s78, 14")
                e("s_lshl_b32 s72, s19, 13")
                e("s_add_u32 s71, s71, s72")
                e(f"buffer_load_dword v13, v12, {SO}, s71 offen")
            e(f"{sk}:")
        if UST and k == 8:
            e(f"""s_lshl_b32 s3, s19, 12
            v_add_u32 v2, s3, v14
            v_add_u32 v3, {W1A[7]}, v2
            v_add_u32 v2, {W1A[6]}, v2""")
            for s_ in range(8): e(f"ds_read_b128 {vr(16+4*s_,4)}, v{2+(s_>>2)} offset:{(s_&3)*1024}")
            e(f"""s_lshl_b32 s64, s20, 2
            s_add_u32 s64, s64, s19
            s_lshl_b32 s65, s23, 8
            s_add_u32 s65, s65, s64
            s_lshl_b32 s65, s65, 10
            s_mul_i32 s66, s64, 112
            s_lshl_b32 s3, s23, 2
            s_add_u32 s66, s66, s3
            s_lshl_b32 s66, s66, 10
            s_add_u32 s66, s66, {WS_H:#x}
            s_waitcnt lgkmcnt(0)""")
        if UST and k >= 8:
            SP = opt.get("sper", 2)
            for s_ in range(SP * (k - 8), min(8, SP * (k - 7))):
                if s_ < 4: e(f"s_add_u32 s3, s65, {WS_KV + s_*0x10000:#x}")
                else: e(f"s_add_u32 s3, s66, {(s_-4)*1024}")
                e(f"buffer_store_dwordx4 {vr(16+4*s_,4)}, v14, {SS}, s3 offen sc1")
            if k == opt.get("ugk", 12): signal(4, 3, WS_F1, 2, 3, max(0, min(8, SP * (k - 7)) - 4))
            if k == opt.get("ugh", 15): signal(24, 3, WS_F1H, 2, 3)
        if k == opt.get("pf2k", 2) and opt.get("pf2", 1):
            sk = lab("NOPF")
            e("s_cmp_lg_u32 s19, 1")
            e(f"s_cbranch_scc1 {sk}")
            srd(e, 44, 14, 1792 * 1024)
            srd(e, 48, 8, 512 * 1024)
            e("v_lshlrev_b32 v2, 7, v0")
            e("s_mul_i32 s71, s2, 7168")
            e("s_mov_b32 exec_hi, 0xffffff")
            e(f"buffer_load_dword v160, v2, {S2}, s71 offen")
            e("s_lshl_b32 s71, s2, 11")
            e("s_mov_b64 exec, 0xffff")
            e(f"buffer_load_dword v161, v2, {SO}, s71 offen")
            e("s_mov_b64 exec, -1")
            e(f"{sk}:")
        if k in (GK, CK, CK + 1):
            sk = lab("NOPOST")
            e("s_cmp_lg_u32 s19, 0")
            e(f"s_cbranch_scc1 {sk}")
            if k == GK: gather()
            if k == CK:
                e("s_mov_b32 s73, 0x20000")
                e("L_CHK:")
                e("s_waitcnt vmcnt(0)")
                e(f"v_xor_b32 v2, s61, v{G0}")
                for i in range(G0 + 1, G0 + 64): e(f"v_bitop3_b32 v2, v2, v{i}, s61 bitop3:0xf6")
                e("v_and_b32 v2, 0xff, v2")
                for i in (66, 67, 70, 71): e(f"v_bitop3_b32 v2, v2, v{G0+i}, s61 bitop3:0xf6")
                e("v_cmp_ne_u32 vcc, 0, v2")
                e("s_sub_u32 s73, s73, 1")
                e("s_cmp_eq_u32 s73, 0")
                e("s_cbranch_scc1 L_GOT")
                e("s_cmp_eq_u64 vcc, 0")
                e("s_cbranch_scc1 L_GOT")
                gather()
                e("s_branch L_CHK")
                e("L_GOT:")
            if k == CK + 1:
                e("s_mov_b32 s71, 0xffffff00")
                for i in range(G0, G0 + 64): e(f"v_and_b32 v{i}, s71, v{i}")
                for g in range(1, 16):
                    for h in range(4): e(f"v_add_f32 v{G0+h}, v{G0+h}, v{G0+4*g+h}")
                e(f"v_add_u32 v2, {L_ST}, v14")
                e(f"ds_write_b128 v2, {vr(G0+64,4)}")
                e(f"ds_write_b128 v2, {vr(G0+68,4)} offset:1024")
                e(f"ds_write_b128 v2, {vr(G0,4)} offset:2048")
                e("s_waitcnt lgkmcnt(0)")
                ldsadd(20, 2, 3)
            e(f"{sk}:")
    bflush()
    stamp(3)
    e("s_barrier")
    stamp(4)
    e("s_cmp_lg_u32 s77, 0")
    e("s_cbranch_scc1 L_KVDONE")
    poll(10, "s76", 11, 4)
    kvdma()
    e("L_KVDONE:")
    e(f"v_add_u32 v2, {L_ONE}, v1")
    for q in range(4): e(f"v_mov_b32 v{8+q}, 0x3f803f80")
    e("ds_write_b128 v2, v[8:11]")
    e("s_add_u32 s96, s19, 4")
    e("s_mov_b32 s97, 0")
    e("s_waitcnt vmcnt(0) lgkmcnt(0)")
    ldsadd(16, 2, 3)
    stamp(5)

    e("L_ATT:")
    e.vm = []; e.lg = []
    Q = 8
    K = lambda u: 12 + 4 * u
    V = lambda u, g: 48 + ((u & 1) * 2 + g) * 4
    S = lambda b: 64 + 16 * b
    P, O = 112, 120
    VNEG, M0_, M1_, NM, MK = 136, 137, 138, 139, 140
    VA, VSTR = 148, 149
    for j in range(16):
        b0 = (j >> 2) * 8 + (j & 3)
        e(f"s_mov_b32 s{64+2*j}, {(0xffffffff << b0) & 0xffffffff:#x}")
        e(f"s_mov_b32 s{65+2*j}, {(0xffffffff << (b0+4)) & 0xffffffff:#x}")
    e(f"v_mov_b32 v{VNEG}, {NEG:#x}")
    e("v_mov_b32 v6, 0xffff")
    e("v_mov_b32 v7, 0xffff0000")
    for q in range(8):
        e(f"v_cndmask_b32 v{MK+q}, 0, v6, s[{64+4*q}:{65+4*q}]")
        e(f"v_cndmask_b32 v{S(2)}, 0, v7, s[{66+4*q}:{67+4*q}]")
        e(f"v_or_b32 v{MK+q}, v{MK+q}, v{S(2)}")
    e(f"""s_and_b32 s3, s96, 3
    s_lshl_b32 s26, s20, 2
    s_add_u32 s26, s26, s3
    s_add_u32 s25, s26, 1
    s_min_u32 s25, s25, 9
    s_lshr_b32 s62, s96, 2
    s_lshl_b32 s27, s23, 1
    s_add_u32 s27, s27, s62
    v_lshlrev_b32 v1, 4, v0
    s_lshl_b32 s63, s96, 10
    s_add_u32 s63, s63, {L_Q}
    v_add_u32 v3, s63, v1
    s_mul_i32 s62, s62, 12288
    s_lshl_b32 s3, s3, 10
    s_add_u32 s3, s3, s62
    s_add_u32 s62, s3, {L_K}
    v_add_u32 v4, s62, v1
    v_lshrrev_b32 v5, 5, v0
    v_lshlrev_b32 v5, 2, v5
    v_bfe_u32 v6, v0, 2, 2
    v_add_u32 v5, v5, v6
    v_lshlrev_b32 v5, 4, v5
    v_bfe_u32 v6, v0, 1, 1
    v_lshl_add_u32 v5, v6, 9, v5
    v_and_b32 v6, 1, v0
    v_lshl_add_u32 v5, v6, 3, v5
    s_add_u32 s3, s3, {L_V + 8192}
    v_add_u32 v5, s3, v5
    v_mov_b32 v6, {L_ONE}
    v_mov_b32 v7, 1024
    s_mov_b32 s98, 0xffff
    s_mov_b32 s99, 0xffff
    v_cndmask_b32 v5, v6, v5, s[98:99]
    v_cndmask_b32 v{VSTR}, 0, v7, s[98:99]
    v_lshlrev_b32 v7, 3, v{VSTR}
    v_sub_u32 v{VA+2}, v5, v7""")
    stamp(6)
    def owed():
        sk = lab("NOOWE")
        e("s_cmp_eq_u32 s97, 0")
        e(f"s_cbranch_scc1 {sk}")
        keepl = list(e.lg)
        signal(12, 3, WS_F1B, 152, 153)
        e.lg = keepl
        e("s_mov_b32 s97, 0")
        e(f"{sk}:")
    if opt.get("owu", 0) == 0: owed()
    ldswait(16, 8, 2, 6)
    e(f"s_setprio {opt.get('aprio', 0)}")
    stamp(7)
    def fill(buf, val, diag):
        for j in range(16):
            a, b = (f"v{VNEG}", val) if diag else (val, f"v{VNEG}")
            e(f"v_cndmask_b32 v{S(buf)+j}, {a}, {b}, s[{64+2*j}:{65+2*j}]")
    def smfma(u, buf, cin):
        e.lwait(("K", u))
        e(f"v_mfma_f32_32x32x16_bf16 {vr(S(buf),16)}, {vr(K(u),4)}, {vr(Q,4)}, {cin}")
    def vread(u, par=None, va=None):
        if va is None:
            if u == 0: e(f"v_mov_b32 v{VA}, v5")
            else: e(f"v_sub_u32 v{VA}, v{VA}, v{VSTR}")
            va = VA
        for g in range(2):
            r = V(u if par is None else par, g)
            for h in range(2): e.lds(f"ds_read_b64_tr_b16 v[{r+2*h}:{r+2*h+1}], v{va} offset:{g*256 + h*128}", ("V", u))
    PD, PFR = S(2), S(2) + 8
    if opt.get("noatt"): e("s_branch L_P2DONE")
    e.lds(f"ds_read_b128 {vr(Q,4)}, v3", "Q")
    for u in [0, 8, 1]: e.lds(f"ds_read_b128 {vr(K(u),4)}, v4 offset:{(8-u)*1024}", ("K", u))
    vread(0); vread(8, 1, VA + 2)
    smfma(0, 0, "0"); smfma(8, 2, "0"); smfma(1, 1, "0")
    for u in range(2, 8): e.lds(f"ds_read_b128 {vr(K(u),4)}, v4 offset:{(8-u)*1024}", ("K", u))
    e("s_nop 4")
    s0 = S(0)
    for j in range(16): e(f"v_cndmask_b32 v{s0+j}, v{S(2)+j}, v{s0+j}, s[{64+2*j}:{65+2*j}]")
    for j in range(16): e(f"v_exp_f32 v{s0+j}, v{s0+j}")
    for q in range(8): e(f"v_cvt_pk_bf16_f32 v{P+q}, v{s0+2*q}, v{s0+2*q+1}")
    for q in range(8): e(f"v_and_b32 v{PD+q}, v{MK+q}, v{P+q}")
    e.lwait(("V", 8))
    e(f"v_mfma_f32_32x32x16_bf16 {vr(O,16)}, {vr(V(0,0),4)}, {vr(PD,4)}, 0")
    for q in range(8): e(f"v_bfi_b32 v{PFR+q}, v{MK+q}, 0, v{P+q}")
    e(f"v_mfma_f32_32x32x16_bf16 {vr(O,16)}, {vr(V(0,1),4)}, {vr(PD+4,4)}, {vr(O,16)}")
    e("s_cmp_lt_u32 s25, 9")
    e("s_cbranch_scc1 L_NOFAR")
    e(f"v_mfma_f32_32x32x16_bf16 {vr(O,16)}, {vr(V(1,0),4)}, {vr(PFR,4)}, {vr(O,16)}")
    e(f"v_mfma_f32_32x32x16_bf16 {vr(O,16)}, {vr(V(1,1),4)}, {vr(PFR+4,4)}, {vr(O,16)}")
    e("L_NOFAR:")
    vread(1)
    e("s_cmp_eq_u32 s25, 1")
    e("s_cbranch_scc1 L_FCHK")
    def pv(u, g): e(f"v_mfma_f32_32x32x16_bf16 {vr(O,16)}, {vr(V(u,g),4)}, {vr(P+4*g,4)}, {vr(O,16)}")
    for u in range(1, 8):
        s_ = S(u % 2)
        if u + 1 <= 7: smfma(u + 1, (u + 1) % 2, "0")
        for j in range(2): e(f"v_exp_f32 v{s_+j}, v{s_+j}")
        if u > 1: pv(u - 1, 1)
        if u + 1 <= 7: vread(u + 1)
        for j in range(2, 8): e(f"v_exp_f32 v{s_+j}, v{s_+j}")
        for q in range(4): e(f"v_cvt_pk_bf16_f32 v{P+q}, v{s_+2*q}, v{s_+2*q+1}")
        for j in range(8, 10): e(f"v_exp_f32 v{s_+j}, v{s_+j}")
        e.lwait(("V", u))
        pv(u, 0)
        for j in range(10, 16): e(f"v_exp_f32 v{s_+j}, v{s_+j}")
        for q in range(4, 8): e(f"v_cvt_pk_bf16_f32 v{P+q}, v{s_+2*q}, v{s_+2*q+1}")
        if u == opt.get("owu", 0): owed()
        if u < 7:
            e(f"s_cmp_eq_u32 s25, {u+1}")
            e(f"s_cbranch_scc1 L_FX{u&1}")
    e("L_FX1:")
    e("s_nop 1")
    pv(1, 1)
    e("s_branch L_FCHK")
    e("L_FX0:")
    e("s_nop 1")
    pv(0, 1)
    e("L_FCHK:")
    if opt.get("owu", 0): owed()
    e("s_mov_b32 s52, 0x1f800000")
    e("s_mov_b32 s53, 0x5f800000")
    e("s_mov_b32 s3, 0x7f800000")
    e("s_waitcnt lgkmcnt(0)")
    e("s_nop 7")
    e(f"v_add_f32 v6, |v{O}|, |v{O+1}|")
    e(f"v_add_f32 v7, |v{O+2}|, |v{O+3}|")
    e(f"v_add_f32 v2, |v{O+4}|, |v{O+5}|")
    e(f"v_add_f32 v3, |v{O+6}|, |v{O+7}|")
    e(f"v_cmp_le_f32 s[62:63], s52, v{O+8}")
    e(f"v_cmp_ge_f32 s[98:99], s53, v{O+8}")
    e("v_add_f32 v6, v6, v7")
    e("v_add_f32 v2, v2, v3")
    e("v_add_f32 v6, v6, v2")
    e("s_and_b64 s[62:63], s[62:63], s[98:99]")
    e("v_cmp_gt_f32 vcc, s3, v6")
    e("s_nop 0")
    e("s_and_b64 s[62:63], s[62:63], vcc")
    e("s_cmp_eq_u64 s[62:63], -1")
    if opt.get("forceslow"): e("s_cmp_eq_u32 s62, 12345")
    e("s_cbranch_scc1 L_P2DONE")
    e.lg = []
    e(f"v_mov_b32 v{M0_}, v{VNEG}")
    e(f"v_mov_b32 v{M1_}, v{VNEG}")
    fill(0, "0", True)
    e("s_nop 1")
    smfma(0, 0, vr(S(0), 16))
    smfma(1, 1, "0")
    for u in range(9):
        if u + 2 <= 8:
            if u + 2 == 8:
                fill((u + 2) % 3, "0", False); e("s_nop 1")
                smfma(u + 2, (u + 2) % 3, vr(S((u + 2) % 3), 16))
            else:
                smfma(u + 2, (u + 2) % 3, "0")
        if u == 0: e("s_nop 9")
        for q in range(8):
            m = M0_ + (q & 1)
            e(f"v_max3_f32 v{m}, v{S(u%3)+2*q}, v{S(u%3)+2*q+1}, v{m}")
        if u < 8:
            e(f"s_cmp_eq_u32 s25, {u+1}")
            e("s_cbranch_scc1 L_P1DONE")
    e("L_P1DONE:")
    vread(0)
    e(f"v_max_f32 v{M0_}, v{M0_}, v{M1_}")
    e(f"v_mov_b32 v{M1_}, v{M0_}")
    e("s_nop 1")
    e(f"v_permlane32_swap_b32 v{M0_}, v{M1_}")
    e("s_nop 1")
    e(f"v_max_f32 v{M0_}, v{M0_}, v{M1_}")
    e(f"v_sub_f32 v{NM}, 0, v{M0_}")
    e("s_nop 3")
    CB = S(2)
    for j in range(16): e(f"v_mov_b32 v{CB+j}, v{NM}")
    fill(0, f"v{NM}", True)
    e("s_nop 1")
    smfma(0, 0, vr(S(0), 16))
    for u in range(9):
        s = S(u % 2)
        if u + 1 <= 8:
            nb_ = (u + 1) % 2
            if u + 1 == 8:
                fill(nb_, f"v{NM}", False); e("s_nop 1")
                smfma(u + 1, nb_, vr(S(nb_), 16))
            else:
                smfma(u + 1, nb_, vr(CB, 16))
            vread(u + 1)
        if u == 0: e("s_nop 6")
        for j in range(8): e(f"v_exp_f32 v{s+j}, v{s+j}")
        for q in range(4): e(f"v_cvt_pk_bf16_f32 v{P+q}, v{s+2*q}, v{s+2*q+1}")
        for j in range(8, 16): e(f"v_exp_f32 v{s+j}, v{s+j}")
        e.lwait(("V", u))
        e(f"v_mfma_f32_32x32x16_bf16 {vr(O,16)}, {vr(V(u,0),4)}, {vr(P,4)}, {'0' if u == 0 else vr(O,16)}")
        for q in range(4, 8): e(f"v_cvt_pk_bf16_f32 v{P+q}, v{s+2*q}, v{s+2*q+1}")
        e("s_nop 1")
        e(f"v_mfma_f32_32x32x16_bf16 {vr(O,16)}, {vr(V(u,1),4)}, {vr(P+4,4)}, {vr(O,16)}")
        if u < 8:
            e(f"s_cmp_eq_u32 s25, {u+1}")
            e("s_cbranch_scc1 L_P2X")
    e("L_P2X:")
    e("s_waitcnt lgkmcnt(0)")
    e("s_nop 12")
    e("L_P2DONE:")
    e("s_lshl_b32 s3, s26, 5")
    e("s_add_u32 s3, s3, s27")
    e("s_lshl_b32 s3, s3, 10")
    e(f"s_add_u32 s3, s3, {WS_O:#x}")
    e(f"v_rcp_f32 v7, v{O+8}")
    e("s_nop 0")
    for j in range(8): e(f"v_mul_f32 v{O+j}, v{O+j}, v7")
    for q in range(4): e(f"v_cvt_pk_bf16_f32 v{P+q}, v{O+2*q}, v{O+2*q+1}")
    e(f"buffer_store_dwordx4 {vr(P,4)}, v1, {SS}, s3 offen sc1")
    stamp(8)
    signal(8, 7, WS_F2)
    stamp(9)
    e("s_cmp_lg_u32 s2, 0")
    e("s_cbranch_scc1 L_FIN")
    e("s_cmp_lg_u32 s96, 1")
    e("s_cbranch_scc1 L_FIN")
    e("v_lshlrev_b32 v6, 7, v0")
    e("s_mov_b32 s63, 0x20000")
    e("L_BCHK:")
    for g in range(4):
        e(f"s_mov_b32 s62, {WS_F2 + g*8192:#x}")
        e(f"buffer_load_dword v{8+g}, v6, {SS}, s62 offen sc1")
    e("s_waitcnt vmcnt(0)")
    e("v_xor_b32 v7, s61, v8")
    for i in range(9, 12): e(f"v_bitop3_b32 v7, v7, v{i}, s61 bitop3:0xf6")
    e("v_cmp_ne_u32 vcc, 0, v7")
    e("s_sub_u32 s63, s63, 1")
    e("s_cmp_eq_u32 s63, 0")
    e("s_cbranch_scc1 L_FIN")
    e("s_cmp_lg_u64 vcc, 0")
    e("s_cbranch_scc1 L_BCHK")
    e("s_mov_b64 exec, 1")
    e("v_mov_b32 v6, 0")
    e("v_mov_b32 v7, s61")
    e(f"s_mov_b32 s62, {WS_EP:#x}")
    e(f"buffer_store_dword v7, v6, {SS}, s62 offen sc1")
    e("s_mov_b64 exec, -1")
    e("L_FIN:")
    e.vm = []; e.lg = []
    srd(e, 28, 10, 2048 * 1024)
    e(f"""v_lshrrev_b32 v7, 3, v0
    v_and_b32 v14, 7, v0
    v_lshlrev_b32 v8, 4, v14
    v_lshl_add_u32 v2, v7, 10, v8
    s_lshl_b32 s62, s58, 16
    s_lshl_b32 s3, s96, 13
    s_add_u32 s62, s62, s3
    s_lshl_b32 s3, s59, 7
    s_add_u32 s62, s62, s3""")
    e(f"buffer_load_dwordx4 v[8:11], v2, {SX}, s62 offen")
    e(f"""s_and_b32 s3, s96, 3
    s_lshl_b32 s3, s3, 10
    s_cmp_ge_u32 s96, 4
    s_mov_b32 s63, {BREG[0]}
    s_cselect_b32 s63, {BREG[2]}, s63
    s_mov_b32 s64, {BREG[1]}
    s_cselect_b32 s64, {BREG[3]}, s64
    s_add_u32 s63, s63, s3
    s_add_u32 s64, s64, s3
    v_and_b32 v12, 3, v0
    v_lshlrev_b32 v12, 1, v12
    v_xor_b32 v12, v12, v7
    v_bfe_u32 v13, v0, 2, 1
    v_xor_b32 v12, v12, v13
    v_lshlrev_b32 v12, 4, v12
    v_lshl_add_u32 v12, v7, 7, v12
    v_mov_b32 v15, s63
    v_mov_b32 v16, s64
    v_cmp_eq_u32 vcc, 1, v13
    s_nop 1
    v_cndmask_b32 v15, v15, v16, vcc
    v_add_u32 v24, v15, v12
    v_xor_b32 v25, 16, v24""")
    stamp(10)
    e("s_barrier")
    stamp(11)
    R = lambda src, h: 48 + src * 8 + h * 4
    for src in range(4):
        for h in range(2): e.lds(f"ds_read_b128 {vr(R(src,h),4)}, v{24+h} offset:{src*4096}", src)
    e("s_mov_b32 s3, 0xffff0000")
    e("s_waitcnt vmcnt(0)")
    for q in range(4):
        e(f"v_lshlrev_b32 v{32+2*q}, 16, v{8+q}")
        e(f"v_and_b32 v{33+2*q}, s3, v{8+q}")
    for src in range(4):
        e.lwait(src)
        for q in range(4): e(f"v_pk_add_f32 {pk(32+2*q)}, {pk(32+2*q)}, {pk(R(src,0)+2*q)}")
    for q in range(4): e(f"v_cvt_pk_bf16_f32 v{40+q}, v{32+2*q}, v{33+2*q}")
    e("buffer_store_dwordx4 v[40:43], v2, s[28:31], s62 offen " + opt.get("ost", ""))
    if opt.get("deadline"):
        e("v_readlane_b32 s4, v167, 0")
        e("L_DLY:")
        e("s_memrealtime s[6:7]")
        e("s_waitcnt lgkmcnt(0)")
        e("s_sub_u32 s8, s6, s4")
        e(f"s_cmp_lt_u32 s8, {opt['deadline']}")
        e("s_cbranch_scc1 L_DLY")
    if opt.get("delay"):
        tm = "s_memrealtime" if opt.get("delayrt") else "s_memtime"
        e(f"{tm} s[4:5]")
        e("s_waitcnt lgkmcnt(0)")
        e("L_DLY:")
        e(f"{tm} s[6:7]")
        e("s_waitcnt lgkmcnt(0)")
        e("s_sub_u32 s8, s6, s4")
        e(f"s_cmp_lt_u32 s8, {opt['delay']}")
        e("s_cbranch_scc1 L_DLY")
    if ST:
        e("L_DUMP:")
        stamp(12)
        e("s_waitcnt vmcnt(0)")
        stamp(13); stamp(14, True)
        if opt.get("dbgst") is not None:
            e("s_load_dwordx2 s[4:5], s[0:1], 56")
            e(f"s_cmp_lg_u32 s2, {opt['dbgst']}")
            e("s_cbranch_scc1 L_END")
            e("s_cmp_lg_u32 s18, 4")
            e("s_cbranch_scc1 L_END")
            e(f"v_readlane_b32 s6, v{VST}, 1")
            e(f"v_readlane_b32 s7, v{VST}, 0")
            e("s_waitcnt lgkmcnt(0)")
            e(f"v_subrev_u32 v3, s6, v{VST}")
            e(f"v_subrev_u32 v4, s7, v{VST}")
            e("v_cmp_eq_u32 vcc, 14, v0")
            e("s_nop 1")
            e("v_cndmask_b32 v3, v3, v4, vcc")
            e("v_lshlrev_b32 v2, 2, v0")
            e("s_mov_b64 exec, 0xffff")
            e("global_store_dword v2, v3, s[4:5]")
            e("s_endpgm")
        e("s_mul_i32 s3, s2, 12")
        e("s_add_u32 s3, s3, s18")
        e("s_lshl_b32 s3, s3, 7")
        e("s_add_u32 s3, s3, 0x1000000")
        e("v_lshl_add_u32 v2, v0, 2, s3")
        e("s_mov_b64 exec, 0xffffffff")
        e(f"global_store_dword v2, v{VST}, s[16:17]")
    e("L_END:")
    e("s_endpgm")
    return name, e.text(), kd(name, 168), (256, 768, LDS)

def build(opt, path):
    n, t, k, (g, b, lds) = gen(opt)
    ref = open(f"cdna_kernels/{NAME}.s.ref").read().split("\n")
    head = [l for l in ref if l.startswith(";") and "@launch" not in l and "Override launch" not in l and "grid=ceil" not in l]
    s = "\n".join(head[:10]) + "\n"
    dm = opt.get("dummy")
    if dm:
        ll = [f"; @launch kernel=dum_kernel grid=({dm[0]},1,1) block=({dm[1]},1,1) lds={dm[2]}\n", f"; @launch kernel={n} grid=({g},1,1) block=({b},1,1) lds={lds}\n"]
        s += "".join(ll if dm[4] == 0 else ll[::-1])
    else: s += f"; @launch grid=({g},1,1) block=({b},1,1) lds={lds}\n"
    s += '.amdgcn_target "amdgcn-amd-amdhsa--gfx950"\n.text\n'
    if dm:
        s += """.globl dum_kernel
.p2align 8
.type dum_kernel,@function
dum_kernel:
  s_memrealtime s[4:5]
  s_waitcnt lgkmcnt(0)
L_DD:
  s_memrealtime s[6:7]
  s_waitcnt lgkmcnt(0)
  s_sub_u32 s8, s6, s4
  s_cmp_lt_u32 s8, 1000
  s_cbranch_scc1 L_DD
  s_endpgm
"""
        k = k + ".p2align 6\n" + kd("dum_kernel", dm[3])
    s += f".globl {n}\n.p2align 8\n.type {n},@function\n" + t
    s += '.section .rodata,"a"\n.p2align 6\n' + k
    open(path, "w").write(s)

if __name__ == "__main__":
    import sys, json
    opt = json.loads(sys.argv[2]) if len(sys.argv) > 2 else {}
    build(opt, sys.argv[1])
```

```python
from emit import *
from alloc import plan3, plan4

NAME = "parallel_sum__sliding_block__dense_activation_relu__prompt"
WS_KV, WS_H, WS_O = 0, 0x600000, 0xD00000
WS_RS = 0xF00000
WS_CS = 0xF10000
WS_EP = 0xF80000
WS_F1, WS_F1B, WS_F2, WS_F1H = 0xF90000, 0xFA0000, 0xFB0000, 0xFC0000
WS_BYTES = 0x1000000
EPC = 0x9E3779B9
L_ST = 158720
L_MISC = L_ST + 3072
LDS = L_MISC + 64
ORD2 = list(range(6, 16)) + list(range(6))
NEG = 0xf149f2ca
pk = lambda a: f"v[{a}:{a+1}]"
SW, S1, SX, SS, S2, SO = "s[28:31]", "s[32:35]", "s[36:39]", "s[40:43]", "s[44:47]", "s[48:51]"
VST = 167

def reduce32(e, regs, tmp):
    for ctl in ("quad_perm:[1,0,3,2]", "quad_perm:[2,3,0,1]", "row_half_mirror", "row_mirror"):
        e("s_nop 1")
        for r in regs: e(f"v_add_f32_dpp v{r}, v{r}, v{r} {ctl} row_mask:0xf bank_mask:0xf")
    for r, t in zip(regs, tmp): e(f"v_mov_b32 v{t}, v{r}")
    e("s_nop 1")
    for r, t in zip(regs, tmp): e(f"v_permlane16_swap_b32 v{r}, v{t}")
    e("s_nop 1")
    for r, t in zip(regs, tmp): e(f"v_add_f32 v{r}, v{r}, v{t}")

def gen(opt):
    e = Em()
    name = NAME + "_kernel"
    ST = opt.get("stamps")
    NB = 6
    NT = opt.get("nt", "")
    PL = opt.get("pl", 2)
    XA, W1A, W2A, FIN = plan3(PL, opt.get("w2l", 2), NB, opt.get("ust", 0))
    if not opt.get("ust", 0): XA, W1A, W2A, FIN = plan4(PL, NB, opt.get("w2t", 5), opt.get("kvlow", 0))
    BREG = [FIN[f"B{j}"][1] for j in range(NB)]
    BT = [max(FIN[f"B{j}"][0], min(16, opt.get("bt0", 11) + j)) for j in range(NB)]
    L_K, L_V, L_Q, L_ONE = FIN["K"], FIN["V"], FIN["Q"], FIN["ONES"]
    def stamp(i, rt=False):
        if not ST: return
        e(("s_memrealtime" if rt else "s_memtime") + " s[100:101]")
        e("s_waitcnt lgkmcnt(0)")
        e(f"v_writelane_b32 v{VST}, s100, {i}")
    BK = opt.get("bk", [])
    def bstamp(k):
        if ST and k in BK: e(f"s_memtime s[{80+2*BK.index(k)}:{81+2*BK.index(k)}]")
    def bflush():
        if ST and BK:
            e("s_waitcnt lgkmcnt(0)")
            for i in range(len(BK)): e(f"v_writelane_b32 v{VST}, s{80+2*i}, {16+i}")
    uid = [0]
    def lab(p):
        uid[0] += 1
        return f"{p}_{uid[0]}"
    def apoll_issue(voff, soff, vd, tag):
        e.vmem(f"buffer_load_dword v{vd}, v{voff}, {SS}, {soff} offen sc1", tag)
    def apoll_check(voff, soff, vtag, vd, tag):
        D = lab("AOK")
        e.vwait(tag)
        e(f"v_cmp_ne_u32 vcc, v{vtag}, v{vd}")
        e("s_nop 1")
        e("s_cmp_eq_u64 vcc, 0")
        e(f"s_cbranch_scc1 {D}")
        keep = list(e.vm); keepl = list(e.lg)
        poll(voff, soff, vtag, vd)
        e.vm = keep; e.lg = keepl
        e(f"{D}:")
    def poll(voff, soff, vtag, vd):
        L, D = lab("POLL"), lab("POLLED")
        e("s_mov_b32 s63, 0x40000")
        e(f"{L}:")
        e(f"buffer_load_dword v{vd}, v{voff}, {SS}, {soff} offen sc1")
        e("s_waitcnt vmcnt(0) lgkmcnt(0)")
        e(f"v_cmp_ne_u32 vcc, v{vtag}, v{vd}")
        e("s_sub_u32 s63, s63, 1")
        e("s_cmp_eq_u32 s63, 0")
        e(f"s_cbranch_scc1 {D}")
        e("s_cmp_lg_u64 vcc, 0")
        e(f"s_cbranch_scc1 {L}")
        e(f"{D}:")
        e.vm = []; e.lg = []
    def ldswait(off, val, va, vb):
        L, D = lab("LW"), lab("LWOK")
        e(f"v_mov_b32 v{va}, {L_MISC}")
        e("s_mov_b32 s63, 0x400000")
        e(f"{L}:")
        e(f"ds_read_b32 v{vb}, v{va} offset:{off}")
        e("s_sub_u32 s63, s63, 1")
        e("s_waitcnt lgkmcnt(0)")
        e(f"v_readfirstlane_b32 s62, v{vb}")
        e("s_cmp_eq_u32 s63, 0")
        e(f"s_cbranch_scc1 {D}")
        e(f"s_cmp_ge_u32 s62, {val}")
        e(f"s_cbranch_scc1 {D}")
        e("s_sleep 1")
        e(f"s_branch {L}")
        e(f"{D}:")
        e.lg = []
    def ldsadd(off, va, vb):
        e(f"v_mov_b32 v{va}, {L_MISC}")
        e(f"v_mov_b32 v{vb}, 1")
        e("s_mov_b64 exec, 1")
        e(f"ds_add_u32 v{va}, v{vb} offset:{off}")
        e("s_mov_b64 exec, -1")
    def signal(coff, last, base, va=2, vb=3, vm=0):
        N = lab("NOFLAG")
        e(f"s_waitcnt vmcnt({vm})")
        e(f"v_mov_b32 v{va}, {L_MISC}")
        e(f"v_mov_b32 v{vb}, 1")
        e("s_mov_b64 exec, 1")
        e(f"ds_add_rtn_u32 v{vb}, v{va}, v{vb} offset:{coff}")
        e(f"s_add_u32 s62, s24, {base:#x}")
        e("s_waitcnt lgkmcnt(0)")
        e(f"v_readfirstlane_b32 s63, v{vb}")
        e(f"s_cmp_lg_u32 s63, {last}")
        e(f"s_cbranch_scc1 {N}")
        e(f"v_mov_b32 v{va}, 0")
        e(f"v_mov_b32 v{vb}, s61")
        e(f"buffer_store_dword v{vb}, v{va}, {SS}, s62 offen sc1")
        e(f"{N}:")
        e("s_mov_b64 exec, -1")
        e.lg = []

    e(f"{name}:")
    e("s_cmp_ge_u32 s2, 256")
    e("s_cbranch_scc1 L_END")
    stamp(0, True); stamp(1)
    if opt.get("deadline"): e("s_memrealtime s[98:99]"); e("s_waitcnt lgkmcnt(0)"); e("v_writelane_b32 v167, s98, 0")
    e("s_load_dwordx4 s[4:7], s[0:1], 0")
    e("s_load_dwordx4 s[12:15], s[0:1], 32")
    e("s_load_dwordx2 s[16:17], s[0:1], 64")
    e("s_load_dwordx2 s[8:9], s[0:1], 16")
    e("s_load_dwordx2 s[10:11], s[0:1], 48")
    e("v_lshrrev_b32 v1, 6, v0")
    e("v_and_b32 v0, 63, v0")
    e("v_readfirstlane_b32 s18, v1")
    e("""s_and_b32 s3, s2, 1
    s_lshl_b32 s20, s3, 3
    s_lshr_b32 s24, s2, 5
    s_add_u32 s20, s20, s24
    s_bfe_u32 s21, s2, 0x20001
    s_bfe_u32 s22, s2, 0x20003
    s_lshl_b32 s23, s21, 2
    s_add_u32 s23, s23, s22
    s_lshl_b32 s24, s20, 4
    s_add_u32 s24, s24, s23
    s_lshl_b32 s24, s24, 7
    s_and_b32 s19, s18, 3
    s_lshl_b32 s3, s3, 2
    s_add_u32 s58, s3, s21
    s_lshl_b32 s58, s58, 2
    s_lshr_b32 s59, s2, 6
    s_add_u32 s58, s58, s59
    s_bfe_u32 s59, s2, 0x30003""")
    if opt.get("map2", 0):
        e("""s_and_b32 s20, s2, 3
        s_lshl_b32 s20, s20, 2
        s_lshr_b32 s3, s2, 6
        s_add_u32 s20, s20, s3
        s_bfe_u32 s23, s2, 0x10002
        s_lshl_b32 s23, s23, 3
        s_bfe_u32 s3, s2, 0x30003
        s_add_u32 s23, s23, s3
        s_lshl_b32 s24, s20, 4
        s_add_u32 s24, s24, s23
        s_lshl_b32 s24, s24, 7""")
    if opt.get("map3", 0):
        e("""s_and_b32 s20, s2, 7
        s_lshl_b32 s20, s20, 1
        s_lshr_b32 s3, s2, 7
        s_add_u32 s20, s20, s3
        s_bfe_u32 s23, s2, 0x40003
        s_lshl_b32 s24, s20, 4
        s_add_u32 s24, s24, s23
        s_lshl_b32 s24, s24, 7""")
    if opt.get("own", 1):
        e("s_lshl_b32 s58, s20, 1")
        e("s_lshr_b32 s59, s23, 3")
        e("s_add_u32 s58, s58, s59")
        e("s_and_b32 s59, s23, 7")
    e("s_waitcnt lgkmcnt(0)")
    if opt.get("wsoff"):
        e(f"s_add_u32 s16, s16, {opt['wsoff'] << 20:#x}")
        e("s_addc_u32 s17, s17, 0")
    srd(e, 36, 4, 2048 * 1024)
    srd(e, 28, 6, 512 * 3072)
    srd(e, 32, 12, 512 * 3584)
    srd(e, 40, 16, WS_BYTES)
    e("s_cmp_ge_u32 s18, 8")
    e("s_cbranch_scc1 L_UTIL")
    e("s_cmp_ge_u32 s18, 4")
    e("s_cbranch_scc1 L_CONS")

    e(f"""v_and_b32 v5, 7, v0
    v_lshrrev_b32 v2, 3, v0
    v_lshrrev_b32 v3, 4, v0
    v_xor_b32 v3, v3, v5
    v_lshlrev_b32 v2, 10, v2
    v_lshl_add_u32 v12, v3, 4, v2
    v_xor_b32 v13, 64, v12
    s_lshl_b32 s65, s20, 17
    s_lshl_b32 s3, s18, 15
    s_add_u32 s65, s65, s3
    s_lshl_b32 s67, s18, 12""")
    def issueX(P):
        e(f"s_add_u32 m0, s67, {XA[P]}")
        e(f"s_add_u32 s74, s65, {P*128}")
        for a in range(4):
            e.vmem(f"buffer_load_dwordx4 v{12+(a&1)}, {SX}, s74 offen offset:{a*1024} {NT} lds", ("x", P))
            if a < 3: e(f"s_add_u32 s74, s74, {8192-1024}")
    issueX(0)
    e("""v_lshrrev_b32 v2, 5, v0
    v_bfe_u32 v3, v0, 3, 2
    v_lshl_add_u32 v3, v2, 3, v3
    v_bfe_u32 v4, v0, 4, 2
    v_lshlrev_b32 v4, 1, v4
    v_xor_b32 v4, v4, v5
    v_lshlrev_b32 v4, 4, v4
    v_mul_u32_u24 v10, 3072, v3
    v_add_u32 v10, v10, v4
    v_mul_u32_u24 v11, 3584, v3
    v_add_u32 v11, v11, v4
    s_lshr_b32 s52, s18, 1
    s_lshl_b32 s52, s52, 5
    s_and_b32 s62, s18, 1
    s_lshl_b32 s3, s62, 2
    s_add_u32 s52, s52, s3
    s_lshl_b32 s3, s23, 7
    s_mul_i32 s53, s52, 3072
    s_add_u32 s53, s53, s3
    s_add_u32 s53, s53, 1024
    s_mul_i32 s54, s52, 3584
    s_add_u32 s54, s54, s3""")
    def issueW(c):
        for ah in range(2):
            e(f"s_add_u32 m0, s67, {W1A[c] + ah*2048}")
            e(f"s_add_u32 s74, s53, {(64*c + 16*ah)*3072}")
            e.vmem(f"buffer_load_dwordx4 v10, {SW}, s74 offen {NT} lds", ("w", c))
            e(f"s_add_u32 m0, s67, {W1A[c] + ah*2048 + 1024}")
            e(f"s_add_u32 s74, s54, {(64*c + 16*ah)*3584}")
            e.vmem(f"buffer_load_dwordx4 v11, {S1}, s74 offen {NT} lds", ("w", c))
    def esetup():
        e("""v_lshrrev_b32 v2, 4, v0
        v_bfe_u32 v3, v0, 2, 2
        v_lshl_add_u32 v3, v2, 3, v3
        v_mul_u32_u24 v16, 3072, v3
        v_and_b32 v2, 1, v2
        v_lshlrev_b32 v2, 1, v2
        v_and_b32 v3, 3, v0
        v_xor_b32 v2, v2, v3
        v_lshl_add_u32 v16, v2, 4, v16
        s_and_b32 s62, s18, 1
        s_lshl_b32 s3, s62, 7""")
        for j in range(2):
            e(f"""v_add_u32 v2, s3, v0
            v_add_u32 v2, {64*j}, v2
            v_mul_u32_u24 v3, 10923, v2
            v_lshrrev_b32 v3, 16, v3
            v_mul_u32_u24 v4, 6, v3
            v_sub_u32 v4, v2, v4
            v_bfe_u32 v6, v3, 2, 2
            v_lshlrev_b32 v6, 3, v6
            v_lshrrev_b32 v7, 4, v3
            v_lshl_add_u32 v6, v7, 2, v6
            v_and_b32 v7, 3, v3
            v_add_u32 v6, v6, v7
            v_mul_u32_u24 v{17+j}, 3584, v6
            v_lshl_add_u32 v{17+j}, v4, 4, v{17+j}""")
        e("""s_cmp_eq_u32 s62, 1
        s_cselect_b32 s3, 0x80000000, 0
        v_or_b32 v18, s3, v18
        s_lshr_b32 s3, s18, 1
        s_mul_i32 s55, s52, 3072
        s_lshl_b32 s64, s23, 6
        s_add_u32 s55, s55, s64
        s_mul_i32 s56, s3, 114688
        s_mul_i32 s64, s23, 96
        s_add_u32 s56, s56, s64
        s_add_u32 s56, s56, 2048
        s_mul_i32 s57, s3, 5120
        s_lshl_b32 s64, s62, 10
        s_add_u32 s60, s57, s64
        s_lshl_b32 s64, s62, 11
        s_add_u32 s57, s57, s64
        s_add_u32 s64, s57, 1024
        s_cmp_eq_u32 s62, 1
        s_cselect_b32 s64, 8192, s64""")
    def issueW2(c):
        p = ORD2[2 * c]
        base = W2A[c][1]
        e(f"s_add_u32 m0, s60, {base}")
        e(f"s_add_u32 s74, s55, {p*32*3072}")
        e.vmem(f"buffer_load_dwordx4 v16, {SW}, s74 offen {NT} lds", ("w2", c))
        e(f"s_add_u32 m0, s57, {base + 2048}")
        e(f"s_add_u32 s74, s56, {p*32*3584}")
        e.vmem(f"buffer_load_dwordx4 v17, {S1}, s74 offen {NT} lds", ("w2", c))
        e(f"s_add_u32 m0, s64, {base + 2048}")
        e("s_nop 0")
        e.vmem(f"buffer_load_dwordx4 v18, {S1}, s74 offen {NT} lds", ("w2", c))
    NF2, NS, NA = 14, 18, 4
    A0 = 20
    AF = lambda sg, tb, kk: A0 + (sg % NA) * 16 + (tb * 2 + kk) * 4
    ACB = A0 + NA * 16
    GACC = lambda tb, nb: ACB + (tb * 2 + nb) * 16
    BFB = ACB + 64
    BF = lambda kk, nb: BFB + (kk * 2 + nb) * 4
    assert BFB + 16 <= VST
    def gsetup():
        srd(e, 44, 14, 1792 * 1024)
        srd(e, 48, 8, 512 * 1024)
        e(f"""v_lshrrev_b32 v8, 3, v0
        v_bfe_u32 v2, v0, 4, 1
        v_lshlrev_b32 v2, 2, v2
        v_xor_b32 v9, v5, v2
        v_lshlrev_b32 v9, 4, v9
        v_lshl_add_u32 v14, v8, 10, v9
        v_lshrrev_b32 v2, 2, v8
        v_lshlrev_b32 v2, 3, v2
        v_and_b32 v8, 3, v8
        v_add_u32 v8, v8, v2
        v_lshl_add_u32 v15, v8, 10, v9
        v_lshlrev_b32 v1, 4, v0
        s_lshl_b32 s3, s59, 7
        s_lshl_b32 s70, s18, 18
        s_add_u32 s70, s70, s3
        s_mul_i32 s78, s18, {12*16*1024}
        s_add_u32 s78, s78, s3
        s_lshl_b32 s71, s18, 17
        s_add_u32 s71, s71, s3
        s_mul_i32 s72, s58, {2*112*1024}
        s_add_u32 s72, s72, {WS_H:#x}
        s_mul_i32 s79, s18, {12*1024}
        s_add_u32 s79, s79, s72
        s_lshl_b32 s3, s18, 14
        s_add_u32 s72, s72, s3
        s_lshl_b32 s73, s58, 16
        s_lshl_b32 s3, s18, 13
        s_add_u32 s73, s73, s3
        s_add_u32 s73, s73, {WS_O:#x}
        s_and_b32 s3, s58, 3
        s_cmp_eq_u32 s3, s18
        s_cselect_b32 s26, 1, 0
        s_cmp_eq_u32 s59, s18
        s_cselect_b32 s27, 1, 0
        s_add_u32 s3, s18, 4
        s_cmp_eq_u32 s59, s3
        s_cselect_b32 s21, 1, 0
        s_lshl_b32 s69, s58, 1
        s_add_u32 s69, s69, s59
        s_and_b32 s69, s69, {opt.get("rotm", 7)}
        s_sub_u32 s25, s69, 6
        s_cmp_ge_u32 s69, 6
        s_cselect_b32 s25, s25, s69""")
    KS = [(2 * i, False) for i in range(8)] + [(64 + 2 * i, True) for i in range(6)]
    ROT = opt.get("rot", 0)
    def ridx(sg):
        if sg < 8:
            e(f"s_add_u32 s68, s69, {sg}")
            e("s_and_b32 s68, s68, 7")
        elif sg < NF2:
            e(f"s_add_u32 s68, s25, {sg-8}")
            e("s_sub_u32 s3, s68, 6")
            e("s_cmp_ge_u32 s68, 6")
            e("s_cselect_b32 s68, s3, s68")
        else:
            e(f"s_add_u32 s68, s69, {sg-NF2}")
            e("s_and_b32 s68, s68, 3")
    def issueB(sg):
        if ROT:
            ridx(sg)
            e("s_lshl_b32 s68, s68, 15")
            e(f"s_add_u32 s68, s68, {'s70' if sg < 8 else 's78' if sg < NF2 else 's71'}")
        for a in range(4):
            e(f"s_add_u32 m0, s67, {BREG[sg % NB] + a*1024}")
            if sg < NF2:
                k16, ex = KS[sg]
                if ROT: e(f"s_add_u32 s74, s68, {((1024 if ex else 0) + 8*a)*1024}")
                else: e(f"s_add_u32 s74, {'s78' if ex else 's70'}, {(16*k16 + 8*a)*1024}")
                e.vmem(f"buffer_load_dwordx4 v14, {S2}, s74 offen lds", ("B", sg))
            else:
                if ROT: e(f"s_add_u32 s74, s68, {(16*(a>>1) + 4*(a&1))*1024}")
                else: e(f"s_add_u32 s74, s71, {(32*(sg-NF2) + 16*(a>>1) + 4*(a&1))*1024}")
                e.vmem(f"buffer_load_dwordx4 v15, {SO}, s74 offen lds", ("B", sg))
    def issueA(sg, tbs=(0, 1)):
        for tb in tbs:
            if sg < NF2:
                k16, ex = KS[sg]
                e(f"s_add_u32 s74, {'s79' if ex else 's72'}, {(tb*112 + k16)*1024}")
            else: e(f"s_add_u32 s74, s73, {(tb*32 + 2*(sg-NF2))*1024}")
            for kk in range(2):
                e.vmem(f"buffer_load_dwordx4 {vr(AF(sg,tb,kk),4)}, v1, {SS}, s74 offen offset:{kk*1024} sc1", ("A", sg))
    LEAD = opt.get("lead", 0)
    def either(sreg, lead_fn, foll_fn):
        L1, L2 = lab("LD"), lab("LE")
        e(f"s_cmp_lg_u32 {sreg}, 0")
        e(f"s_cbranch_scc1 {L1}")
        allk = list(e.act)
        e.act = [k for k in allk if sreg not in k]
        if foll_fn: foll_fn()
        e(f"s_branch {L2}")
        e(f"{L1}:")
        keep = list(e.vm)
        e.act = [k for k in allk if sreg in k]
        if lead_fn: lead_fn()
        e.vm = keep
        e.act = allk
        e(f"{L2}:")
    def gsetup2():
        e(f"""v_lshrrev_b32 v6, 5, v0
        v_lshlrev_b32 v6, 3, v6
        v_bfe_u32 v7, v0, 2, 2
        v_add_u32 v6, v6, v7
        v_lshlrev_b32 v6, 7, v6
        v_lshrrev_b32 v7, 1, v7
        v_lshl_add_u32 v6, v7, 6, v6
        v_bfe_u32 v7, v0, 4, 1
        v_lshl_add_u32 v6, v7, 5, v6
        v_and_b32 v7, 3, v0
        v_lshl_add_u32 v6, v7, 3, v6
        v_add_u32 v6, s67, v6
        v_xor_b32 v7, 64, v6
        v_add_u32 v8, 49152, v6
        v_add_u32 v9, 49152, v7
    v_add_u32 v10, 98304, v6
    v_add_u32 v11, 98304, v7
        v_mov_b32 v2, {L_MISC}
        ds_read_b32 v2, v2
        v_and_b32 v3, 3, v0
        v_lshlrev_b32 v3, 7, v3
        s_lshr_b32 s76, s58, 1
        s_lshl_b32 s76, s76, 11
        s_lshl_b32 s3, s18, 9
        s_add_u32 s76, s76, s3
        s_add_u32 s66, s76, {WS_F1H:#x}""")
        e("s_mov_b32 s75, 0")
        e("s_waitcnt lgkmcnt(0)")
    D = opt.get("gd", 3); DB = NB - 1; PS = opt.get("ps", 11); PB = 8 - D - 1
    GE = opt.get("ge", 15)
    def firstA(lo=0, hi=None):
        hi = D if hi is None else hi
        for sg in range(lo, hi):
            if LEAD & 2 and sg == hi - 1:
                for tb in range(2): either(("s27", "s21")[tb], lambda: issueA(sg, (tb,)), None)
            else: issueA(sg)
    issueW(0)
    for c in range(1, PL): issueX(c); issueW(c)
    for k in range(17):
        e.vwait([("w", k), ("x", k)] if k < 8 else [("w2", k - 8)])
        if k == 0: stamp(2)
        if k == 8: stamp(3)
        if k == 16: stamp(4)
        bstamp(k)
        if k == 16: bflush()
        e("s_barrier")
        if k + PL <= 7: issueX(k + PL); issueW(k + PL)
        if k == 1: gsetup()
        if k == 2: esetup()
        for c in range(8):
            if W2A[c][0] == k: issueW2(c)
        if k == 7 and any(W2A[c][0] == 7.5 for c in range(8)):
            ldswait(28, 4, 2, 3)
            for c in range(8):
                if W2A[c][0] == 7.5: issueW2(c)
        if k == 9: gsetup2()
        if k == GE - 2: apoll_issue(3, "s66", 4, "f1h")
        if k == GE:
            sk = lab("GLATE")
            e.vwait("f1h")
            e("v_cmp_ne_u32 vcc, v2, v4")
            e("s_nop 1")
            e("s_cmp_lg_u64 vcc, 0")
            e(f"s_cbranch_scc1 {sk}")
            keep = list(e.vm)
            firstA()
            e.vm = keep
            e("s_mov_b32 s75, 1")
            e(f"{sk}:")
        if k < 16:
            for j in range(NB):
                if BT[j] == k: issueB(j)
    if opt.get("gprio", 0): e(f"s_setprio {opt.get('gprio')}")
    for j in range(NB):
        if BT[j] >= 16: issueB(j)
    e("s_cmp_lg_u32 s75, 0")
    e("s_cbranch_scc1 L_GGO")
    keep = list(e.vm)
    poll(3, "s66", 2, 4)
    e.vm = keep
    if LEAD:
        assert GE > 16
        e.vm = []
        e.var_start([(b_, a_) for b_ in ("", "s26") for a_ in ("", "s27", "s21")])
    firstA()
    e("L_GGO:")
    stamp(5)
    def step(sg):
        if sg == opt.get("ghold", -1): ldswait(16, 8, 12, 13)
        e.vwait([("B", sg), ("A", sg)])
        reg = BREG[sg % NB]
        hi = reg // 49152
        off0 = reg - 49152 * hi
        for kk in range(2):
            for nb in range(2):
                for q in range(2):
                    e.lds(f"ds_read_b64_tr_b16 v[{BF(kk,nb)+2*q}:{BF(kk,nb)+2*q+1}], v{6+2*hi+nb} offset:{off0 + kk*2048 + q*512}", (kk, nb))
        if LEAD & 1:
            FB = opt.get("fb", 3)
            okb = lambda j: NB <= j < NS
            if okb(sg + DB) or okb(sg + FB):
                either("s26", (lambda: issueB(sg + DB)) if okb(sg + DB) else None, (lambda: issueB(sg + FB)) if okb(sg + FB) else None)
        elif NB <= sg + DB < NS: issueB(sg + DB)
        oka = lambda j: j < NF2 or (j < NS and sg > PS and j >= PS + 1 + D)
        if LEAD & 2:
            okf = lambda j: j < NF2 or (j < NS and sg > PS and j >= PS + D)
            for tb in range(2):
                if oka(sg + D) or okf(sg + D - 1):
                    either(("s27", "s21")[tb], (lambda: issueA(sg + D, (tb,))) if oka(sg + D) else None, (lambda: issueA(sg + D - 1, (tb,))) if okf(sg + D - 1) else None)
        elif oka(sg + D): issueA(sg + D)
        for kk in range(2):
            for nb in range(2):
                e.lwait((kk, nb))
                for tb in range(2):
                    acc = vr(GACC(tb, nb), 16)
                    cin = "0" if (sg == 0 and kk == 0) else acc
                    if opt.get("nogm") and (kk or nb): continue
                    e(f"v_mfma_f32_32x32x16_bf16 {acc}, {vr(BF(kk,nb),4)}, {vr(AF(sg,tb,kk),4)}, {cin}")
    for sg in range(PS + 1):
        if sg == PB - 1 or sg == PS - 1:
            e(f"s_add_u32 s66, s76, {(WS_F1B if sg == PB - 1 else WS_F2):#x}")
            apoll_issue(3, "s66", 4, "fl")
        step(sg)
        if sg == PB:
            stamp(6)
            apoll_check(3, "s66", 2, 4, "fl")
    stamp(7)
    apoll_check(3, "s66", 2, 4, "fl")
    stamp(8)
    firstA(NF2, min(NS, PS + 1 + D))
    for sg in range(PS + 1, NS): step(sg)
    e.var = None
    stamp(9)
    e("""v_and_b32 v12, 31, v0
    v_lshlrev_b32 v12, 7, v12
    v_lshrrev_b32 v13, 5, v0
    v_xor_b32 v13, v13, v5
    v_lshl_add_u32 v12, v13, 4, v12
    v_add_u32 v12, s67, v12""")
    for nb in range(2):
        for a in range(4): e(f"v_xor_b32 v{20+nb*4+a}, {((2*a) ^ nb)*16}, v12")
    for tb in range(2):
        for nb in range(2):
            for a in range(4): e(f"v_add_u32 v{28+(tb*2+nb)*4+a}, {BREG[tb*2+nb]}, v{20+nb*4+a}")
    for tb in range(2):
        for nb in range(2):
            for a in range(4): e(f"ds_write_b128 v{28+(tb*2+nb)*4+a}, {vr(GACC(tb,nb)+4*a,4)}")
    e("s_waitcnt lgkmcnt(0)")
    stamp(10)
    e("s_barrier")
    if ST: e("s_branch L_DUMP")
    e("s_endpgm")

    e("L_CONS:")
    e.vm = []; e.lg = []
    LA = opt.get("la", 5); NFB = 6
    F = lambda f: 8 + (f % NFB) * 4
    XF = lambda n, r: 32 + ((n & 1) * 2 + r) * 4
    XK = lambda p, r: 48 + (p * 2 + r) * 4
    ACC = lambda s, r: 96 + (s * 2 + r) * 4
    AW = [1, 2, 3, 4]; AX = [7, 5]
    e(f"""v_lshrrev_b32 v8, 2, v0
    v_lshrrev_b32 v9, 3, v8
    v_lshlrev_b32 v9, 11, v9
    v_and_b32 v10, 7, v8
    v_lshl_add_u32 v9, v10, 7, v9
    v_and_b32 v10, 3, v0
    v_lshlrev_b32 v10, 3, v10
    v_add_u32 v9, v9, v10
    v_bfe_u32 v11, v0, 3, 2
    v_lshl_add_u32 v1, v11, 5, v9
    v_add_u32 v1, {W1A[0]}, v1
    v_xor_b32 v2, 32, v1
    v_xor_b32 v3, 64, v1
    v_xor_b32 v4, 96, v1
    v_and_b32 v8, 15, v0
    v_lshrrev_b32 v9, 4, v0
    v_lshrrev_b32 v10, 1, v8
    v_xor_b32 v9, v9, v10
    v_lshlrev_b32 v8, 7, v8
    v_lshl_add_u32 v7, v9, 4, v8
    s_lshl_b32 s3, s19, 12
    s_add_u32 s3, s3, {XA[0]}
    v_add_u32 v7, s3, v7
    v_xor_b32 v5, 64, v7""")
    if opt.get("cprio", 0): e(f"s_setprio {opt.get('cprio')}")
    cur = {"w": W1A[0], "x": XA[0]}
    UST = opt.get("ust", 0)
    DEF = []; NST = [0]; TIM = 0 if UST else opt.get("tim", 2)
    def move(kind, regs, addr):
        d = addr - cur[kind]
        if d:
            for a in regs: e(f"v_add_u32 v{a}, {d & 0xffffffff:#x}, v{a}")
        cur[kind] = addr
    def gemm(ps):
        NSB = 8 if ps == 1 else 5
        NF = 16 * NSB
        kst = (lambda n: n) if ps == 1 else (lambda n: ORD2[n])
        xreg = lambda n, r: XK(kst(n), r) if kst(n) < 6 else XF(n, r)
        def rd(f):
            n, s = divmod(f, NSB)
            for q in range(2):
                if ps == 1:  a, off = AW[s & 3], (n & 1) * 8192 + q * 4096 + (s >> 2) * 1024
                elif s < 2:  a, off = AW[s], (n & 1) * 5120 + q * 1024
                else:        a, off = AW[2], (n & 1) * 5120 + 2048 + q * 1536 + (s - 2) * 32
                yield f"ds_read_b64_tr_b16 v[{F(f)+2*q}:{F(f)+2*q+1}], v{a} offset:{off}"
        def kswitch(n):
            if n % 2 == 0:
                if ps == 1: move("w", AW, W1A[n // 2])
                else:       move("w", AW[:3], W2A[n // 2][1])
                bstamp(8 * (ps - 1) + n // 2)
                e("s_barrier")
                if ps == 2 and not UST:
                    for _ in range(opt.get("tper", 2)):
                        if DEF:
                            for x in DEF.pop(0):
                                if opt.get("nost1") and "buffer_store" in x: continue
                                e(x.replace(" sc1", "") if opt.get("plain1") else x)
                            NST[0] += 1
                    if n // 2 == opt.get("sgk", 3):
                        bstamp(20); signal(4, 3, WS_F1, 164, 165, max(0, NST[0] - 4)); bstamp(21)
                    if n // 2 == opt.get("sgh", 5):
                        assert not DEF
                        bstamp(22); signal(24, 3, WS_F1H, 164, 165); bstamp(23)
            if NSB > LA or n < 2: xread(n)
        def xread(n):
            p = kst(n)
            if ps == 1 or p >= 6:
                move("x", AX, XA[p >> 1])
                for r in range(2): e.lds(f"ds_read_b128 {vr(xreg(n,r),4)}, v{AX[p&1]} offset:{r*2048}", ("x", n))
        kswitch(0)
        if ps == 1: stamp(2)
        for f in range(LA):
            if f and f % NSB == 0: kswitch(f // NSB)
            for r_ in rd(f): e.lds(r_, f)
        for f in range(NF):
            n, s = divmod(f, NSB)
            nxt = f + LA
            if nxt < NF and nxt % NSB == 0: kswitch(nxt // NSB)
            if NSB <= LA and s == 0 and 1 <= n < 15: xread(n + 1)
            e.lwait([f, ("x", n)])
            if ps == 2 and f == NF - 1: e("s_barrier")
            rds = list(rd(nxt)) if nxt < NF else [None, None]
            for r in range(2):
                acc = vr(ACC(s, r), 4)
                e(f"v_mfma_f32_16x16x32_bf16 {acc}, {vr(F(f),4)}, {vr(xreg(n,r),4)}, {'0' if n == 0 else acc}")
                if rds[r]: e.lds(rds[r], nxt)
    RS = lambda r: 160 + 2 * r
    RQ = lambda r: 32 + 2 * r
    TT = 8
    CSR = [24, 28]
    def epilogue(ps):
        order = (([0, 1, 2, 3, 5, 6, 7, 4] if opt.get('kvfirst') else [5, 6, 7, 2, 3, 4, 0, 1]) if TIM else list(range(8))) if ps == 1 else [0, 1, 2, 3, 4]
        dd = {}
        loc = lambda s: s if ps == 1 else 8 + s
        if ps == 1:
            ldsadd(28, 8, 9)
            ldswait(20, 1, 8, 9)
        e(f"""v_and_b32 v16, 15, v0
        v_lshrrev_b32 v17, 4, v0
        s_lshl_b32 s3, s19, 9
        s_add_u32 s3, s3, {L_ST}
        v_lshl_add_u32 v8, v16, 4, s3
        v_lshlrev_b32 v164, 4, v17
        v_add_u32 v164, {L_ST+2048}, v164
        v_mov_b32 v10, {L_MISC}""")
        if ps == 1:
            for r in range(2): e.lds(f"ds_read_b64 {pk(RS(r))}, v8 offset:{256*r}", "st")
            e.lds("ds_read_b32 v10, v10", "st")
        def csread(n):
            if n < len(order): e.lds(f"ds_read_b128 {vr(CSR[n%2],4)}, v164 offset:{64*loc(order[n])}", ("cs", n))
        csread(0)
        e("v_lshlrev_b32 v166, 4, v0")
        if ps == 1:
            e(f"""s_lshl_b32 s64, s20, 2
            s_add_u32 s64, s64, s19
            s_lshl_b32 s65, s23, 8
            s_add_u32 s65, s65, s64
            s_lshl_b32 s65, s65, 10
            s_mul_i32 s66, s64, 112
            s_mul_i32 s67, s23, 3
            s_add_u32 s67, s67, s66
            s_add_u32 s67, s67, 64
            s_lshl_b32 s67, s67, 10
            s_lshl_b32 s3, s23, 2
            s_add_u32 s66, s66, s3
            s_lshl_b32 s66, s66, 10
            s_add_u32 s66, s66, {WS_H:#x}
            s_add_u32 s67, s67, {WS_H:#x}""")
            if UST:
                e("s_lshl_b32 s3, s19, 12")
                e("v_add_u32 v36, s3, v166")
                e(f"v_add_u32 v37, {W1A[7]}, v36")
                e(f"v_add_u32 v36, {W1A[6]}, v36")
            e.lwait("st")
            e("v_readfirstlane_b32 s61, v10")
        else:
            e("s_mov_b32 s3, 0x3eb8aa3b")
            for q in range(4): e(f"v_mul_f32 v{32+q}, s3, v{160+q}")
            e("s_lshl_b32 s3, s19, 10")
            e(f"s_add_u32 s3, s3, {L_Q}")
            e("v_add_u32 v36, s3, v166")
        for n, s in enumerate(order):
            T = 16 + 4 * (n % 2)
            stg = ps == 1 and UST
            dfr = ps == 1 and TIM and s >= (4 if opt.get('kvfirst') else 2) and not UST
            if dfr: T = ACC(s, 0) if s >= 5 else ACC(s + 3, 1)
            isQ = ps == 2 and s < 2
            isH = (ps == 1 and s >= 4) or (ps == 2 and s >= 2)
            if stg and s == 4: ldswait(28, 4, 38, 39)
            e.lwait(("cs", n))
            c = CSR[n % 2]
            csread(n + 1)
            if opt.get("xnop"): e("s_nop 3")
            if ps == 2 and opt.get("nopk", 1):
                for r in range(2):
                    sp = RQ(r) if isQ else RS(r)
                    for j in range(4): e(f"v_mul_f32 v{TT+4*r+j}, v{c+j}, v{sp+1}")
                for r in range(2):
                    sp = RQ(r) if isQ else RS(r)
                    for j in range(4): e(f"v_fmac_f32 v{TT+4*r+j}, v{ACC(s,r)+j}, v{sp}")
            else:
                for r in range(2):
                    sp = RQ(r) if isQ else RS(r)
                    for h in range(2):
                        e(f"v_pk_mul_f32 {pk(TT+4*r+2*h)}, {pk(c+2*h)}, {pk(sp)} op_sel:[0,1] op_sel_hi:[1,1]")
                for r in range(2):
                    sp = RQ(r) if isQ else RS(r)
                    for h in range(2):
                        t = TT + 4 * r + 2 * h
                        e(f"v_pk_fma_f32 {pk(t)}, {pk(ACC(s,r)+2*h)}, {pk(sp)}, {pk(t)} op_sel_hi:[1,0,1]")
            for r in range(2):
                for h in range(2):
                    t = TT + 4 * r + 2 * h
                    e(f"v_cvt_pk_bf16_f32 v{T+2*r+h}, v{t}, v{t+1}")
            if isQ or stg: sa = "s_nop 0"
            elif ps == 2: sa = f"s_add_u32 s3, s67, {(s-2)*1024}"
            elif s < 4: sa = f"s_add_u32 s3, s65, {WS_KV + s*0x10000:#x}"
            else: sa = f"s_add_u32 s3, s66, {(s-4)*1024}"
            e("s_nop 2")
            e(f"v_permlane16_swap_b32 v{T}, v{T+2}")
            e(f"v_permlane16_swap_b32 v{T+1}, v{T+3}")
            e(sa if not dfr else "s_nop 0")
            e("s_nop 0")
            if isH:
                for q in (0, 2, 1, 3): e(f"v_pk_max_i16 v{T+q}, v{T+q}, 0")
            if isQ:
                e.lds(f"ds_write_b128 v36, {vr(T,4)} offset:{s*4096}", "qw")
                if s == 1:
                    e.lwait_all()
                    ldsadd(16, 37, 38)
            elif stg: e.lds(f"ds_write_b128 v{36 + (s >> 2)}, {vr(T,4)} offset:{(s&3)*1024}", "qw")
            elif dfr: dd[s] = [sa, f"buffer_store_dwordx4 {vr(T,4)}, v166, {SS}, s3 offen {'' if isH and opt.get('hplain') else 'sc1'}"]
            else:
                e(f"buffer_store_dwordx4 {vr(T,4)}, v166, {SS}, s3 offen {'' if isH and opt.get('hplain') else 'sc1'}")
                NST[0] += 1
        for s in sorted(dd): DEF.append(dd[s])
    gemm(1)
    stamp(3)
    epilogue(1)
    e(f"""v_lshrrev_b32 v8, 2, v0
    v_and_b32 v10, 3, v0
    v_lshlrev_b32 v10, 3, v10
    v_lshl_add_u32 v1, v8, 6, v10
    v_bfe_u32 v11, v0, 4, 1
    v_lshl_add_u32 v1, v11, 5, v1
    v_add_u32 v1, {W2A[0][1]}, v1
    v_xor_b32 v2, 32, v1
    v_mul_u32_u24 v3, 96, v8
    v_add_u32 v3, v3, v10
    v_add_u32 v3, {W2A[0][1]}, v3""")
    cur["w"] = W2A[0][1]
    e.lwait_all()
    stamp(4)
    gemm(2)
    bflush()
    stamp(5)
    epilogue(2)
    e("s_mov_b32 s96, s19")
    e("s_mov_b32 s97, 1")
    e("s_branch L_ATT")

    e("L_UTIL:")
    e.vm = []; e.lg = []
    if opt.get("uprio0", 3): e(f"s_setprio {opt.get('uprio0', 3)}")
    L0, U, A, CL, C0, C1, VE = 16, 24, 40, 48, 64, 72, 80
    e("v_and_b32 v5, 7, v0")
    if opt.get("pfc", 1):
        sk = lab("NOPC")
        e("s_cmp_lg_u32 s19, 3")
        e(f"s_cbranch_scc1 {sk}")
        e("s_getpc_b64 s[64:65]")
        e("L_PCREF:")
        e(f"s_sub_u32 s64, s64, L_PCREF-{name}")
        e("s_subb_u32 s65, s65, 0")
        e("s_lshr_b32 s66, s2, 3")
        e("s_mul_i32 s66, s66, (L_END-%s+4095)/4096*128" % name)
        e("v_lshlrev_b32 v2, 7, v0")
        e("v_add_u32 v2, s66, v2")
        e("v_mov_b32 v3, s65")
        e("v_add_co_u32 v2, vcc, s64, v2")
        e("s_nop 1")
        e("v_addc_co_u32 v3, vcc, 0, v3, vcc")
        e("v_cmp_gt_u32 vcc, (L_END-%s+4095)/4096, v0" % name)
        e("s_nop 1")
        e("s_and_saveexec_b64 s[66:67], vcc")
        e("global_load_dword v163, v[2:3], off")
        e("s_mov_b64 exec, -1")
        e(f"{sk}:")
    PFU = opt.get("pfu", 0)
    def pf_x():
        e("""v_and_b32 v2, 31, v0
        v_lshlrev_b32 v2, 10, v2
        v_lshrrev_b32 v3, 5, v0
        v_lshl_add_u32 v2, v3, 7, v2
        s_lshl_b32 s64, s20, 17
        s_lshl_b32 s65, s22, 15
        s_add_u32 s64, s64, s65
        s_lshl_b32 s65, s19, 8
        s_add_u32 s64, s64, s65""")
        e(f"buffer_load_dword v160, v2, {SX}, s64 offen")
    def pf_w():
        L1, L2, L3, LD = lab("PW"), lab("PW"), lab("PW"), lab("PW")
        e("""s_and_b32 s64, s20, 7
        v_lshlrev_b32 v2, 3, v0
        v_add_u32 v2, s64, v2
        v_mul_u32_u24 v3, 3584, v2
        v_mul_u32_u24 v2, 3072, v2
        s_lshl_b32 s64, s23, 7""")
        e("s_cmp_eq_u32 s19, 1"); e(f"s_cbranch_scc1 {L1}")
        e("s_cmp_eq_u32 s19, 3"); e(f"s_cbranch_scc1 {L3}")
        e("s_add_u32 s65, s64, 1024")
        e("s_lshr_b32 s64, s64, 1")
        e("s_cmp_eq_u32 s19, 0")
        e("s_cselect_b32 s64, s65, s64")
        e(f"buffer_load_dword v161, v2, {SW}, s64 offen")
        e(f"s_branch {LD}")
        e(f"{L3}:")
        e("s_mul_i32 s64, s23, 96")
        e("s_add_u32 s64, s64, 2048")
        e(f"buffer_load_dword v162, v3, {S1}, s64 offen offset:92")
        e(f"{L1}:")
        e(f"buffer_load_dword v161, v3, {S1}, s64 offen")
        e(f"{LD}:")
    if PFU == 1: pf_x(); pf_w()
    UL = opt.get("ul", -1)
    for _ in range(UL + 1): e("s_barrier")
    e(f"v_mov_b32 v{VE}, 0")
    e(f"s_mov_b32 s3, {WS_EP:#x}")
    e.vmem(f"buffer_load_dword v{VE}, v{VE}, {SS}, s3 offen sc1", "rs")
    e(f"""v_lshrrev_b32 v4, 5, v0
    v_and_b32 v6, 31, v0
    v_lshlrev_b32 v6, 4, v6
    v_lshl_add_u32 v6, v4, 10, v6
    v_lshlrev_b32 v{VE+1}, 4, v4
    s_lshl_b32 s64, s20, 7
    s_lshl_b32 s65, s23, 3
    s_add_u32 s64, s64, s65
    s_lshl_b32 s65, s19, 1
    s_add_u32 s64, s64, s65
    s_lshl_b32 s65, s64, 10""")
    e.vmem(f"buffer_load_dwordx4 {vr(L0,4)}, v6, {SX}, s65 offen", "rs")
    e.vmem(f"buffer_load_dwordx4 {vr(L0+4,4)}, v6, {SX}, s65 offen offset:512", "rs")
    e("""s_add_u32 s66, s23, 8
    s_add_u32 s67, s23, 24
    s_cmp_eq_u32 s19, 1
    s_cselect_b32 s66, s67, s66
    s_add_u32 s67, s23, 32
    s_cmp_lt_u32 s23, 8
    s_cselect_b32 s67, s23, s67
    s_cmp_eq_u32 s19, 2
    s_cselect_b32 s66, s67, s66
    s_add_u32 s67, s23, 48
    s_cmp_eq_u32 s19, 3
    s_cselect_b32 s66, s67, s66
    v_lshrrev_b32 v2, 3, v0
    v_lshlrev_b32 v3, 4, v5
    s_cmp_ge_u32 s66, 52
    s_cbranch_scc1 L_CSD
    s_lshl_b32 s67, s66, 7
    s_cmp_ge_u32 s66, 24
    s_cbranch_scc1 L_CSW
    v_mul_u32_u24 v4, 3072, v2
    v_add_u32 v4, v4, v3""")
    e(f"s_mul_i32 s68, s20, {32*3072}")
    e("s_add_u32 s68, s68, s67")
    for t in range(4):
        e(f"buffer_load_dwordx4 {vr(CL+4*t,4)}, v4, {SW}, s68 offen")
        if t < 3: e(f"s_add_u32 s68, s68, {8*3072}")
    e("s_branch L_CSD")
    e("L_CSW:")
    e("v_mul_u32_u24 v4, 3584, v2")
    e("v_add_u32 v4, v4, v3")
    e(f"s_mul_i32 s68, s20, {32*3584}")
    e("s_add_u32 s68, s68, s67")
    e(f"s_sub_u32 s68, s68, {24*128}")
    for t in range(4):
        e(f"buffer_load_dwordx4 {vr(CL+4*t,4)}, v4, {S1}, s68 offen")
        if t < 3: e(f"s_add_u32 s68, s68, {8*3584}")
    e("L_CSD:")
    if PFU == 2:
        e("s_mov_b32 s74, s64")
        pf_x(); pf_w()
        e("s_mov_b32 s64, s74")
    e(f"""s_mov_b32 s69, 0xffff0000
    s_mov_b32 s70, 0x3b000000
    s_lshl_b32 s64, s64, 4
    s_add_u32 s64, s64, {WS_RS:#x}
    v_lshlrev_b32 v14, 4, v0
    s_lshl_b32 s71, s23, 8
    s_add_u32 s72, s71, {512*4}
    v_add_u32 v15, s72, v14
    s_add_u32 s72, s71, {1536*4 - 256}
    v_add_u32 v2, s72, v14
    v_cmp_le_u32 vcc, 16, v0
    s_lshl_b32 s72, s23, 7
    s_sub_u32 s72, s72, 512
    v_cndmask_b32 v15, v15, v2, vcc
    v_add_u32 v2, s72, v14
    v_cmp_le_u32 vcc, 32, v0
    s_mul_i32 s72, s23, 192
    s_add_u32 s72, s72, {2560*4 - 640}
    v_cndmask_b32 v15, v15, v2, vcc
    v_min_u32 v2, 51, v0
    v_lshlrev_b32 v2, 4, v2
    v_add_u32 v2, s72, v2
    v_cmp_le_u32 vcc, 40, v0
    s_nop 1
    v_cndmask_b32 v15, v15, v2, vcc""")
    def piece(n):
        if n == 0:
            e("s_cmp_ge_u32 s66, 52")
            e("s_cbranch_scc1 L_P0A")
            e(f"s_waitcnt vmcnt({4 + (2 if PFU == 2 else 0)})")
            e("s_branch L_P0B")
            e("L_P0A:")
            e(f"s_waitcnt vmcnt({2 if PFU == 2 else 0})")
            e("L_P0B:")
            for q in range(8):
                e(f"v_lshlrev_b32 v{U+2*q}, 16, v{L0+q}")
                e(f"v_and_b32 v{U+2*q+1}, s69, v{L0+q}")
            for q in range(4): e(f"v_add_f32 v{A+q}, v{U+q}, v{U+4+q}")
            for t in range(2, 4):
                for q in range(4): e(f"v_add_f32 v{A+q}, v{A+q}, v{U+4*t+q}")
            e(f"v_add_f32 v{A}, v{A}, v{A+1}")
            e(f"v_add_f32 v{A+2}, v{A+2}, v{A+3}")
            e(f"v_add_f32 v{A}, v{A}, v{A+2}")
            reduce32(e, [A], [A + 1])
            e(f"v_mul_f32 v{A}, s70, v{A}")
            e(f"v_add_u32 v{A+6}, {EPC:#x}, v{VE}")
            e(f"v_mov_b32 v2, {L_MISC}")
            e("v_mov_b32 v3, 0")
            e(f"ds_write_b32 v2, v{A+6}")
            for o in (4, 8, 12, 16, 20, 24, 28): e(f"ds_write_b32 v2, v3 offset:{o}")
        if n == 1:
            for q in range(16): e(f"v_sub_f32 v{U+q}, v{U+q}, v{A}")
            for q in range(4): e(f"v_mul_f32 v{L0+q}, v{U+q}, v{U+q}")
            for q in range(4, 16): e(f"v_fmac_f32 v{L0+(q&3)}, v{U+q}, v{U+q}")
            e(f"v_add_f32 v{L0}, v{L0}, v{L0+1}")
            e(f"v_add_f32 v{L0+2}, v{L0+2}, v{L0+3}")
            e(f"v_add_f32 v{A+4}, v{L0}, v{L0+2}")
            reduce32(e, [A + 4], [A + 5])
            e(f"v_mov_b32 v{A+5}, 0x3727c5ac")
            e(f"v_fma_f32 v{A+4}, v{A+4}, s70, v{A+5}")
            e(f"v_rsq_f32 v{A+4}, v{A+4}")
            e(f"v_readfirstlane_b32 s61, v{A+6}")
            e(f"v_mov_b32 v{A+7}, v{A+6}")
            e(f"v_mul_f32 v{A+5}, v{A}, v{A+4}")
            e(f"v_sub_f32 v{A+5}, 0, v{A+5}")
            e("s_mov_b32 exec_lo, 1")
            e("s_mov_b32 exec_hi, 1")
            e(f"buffer_store_dwordx4 {vr(A+4,4)}, v{VE+1}, {SS}, s64 offen sc1")
            e("s_mov_b64 exec, -1")
        if n == 2:
            e(f"s_waitcnt vmcnt({1 + (2 if PFU == 2 else 0)})")
            for q in range(4):
                e(f"v_lshlrev_b32 v{C0+2*q}, 16, v{CL+q}")
                e(f"v_and_b32 v{C0+2*q+1}, s69, v{CL+q}")
            for t in range(1, 4):
                for q in range(4):
                    e(f"v_lshlrev_b32 v{C1+2*q}, 16, v{CL+4*t+q}")
                    e(f"v_and_b32 v{C1+2*q+1}, s69, v{CL+4*t+q}")
                for q in range(8): e(f"v_add_f32 v{C0+q}, v{C0+q}, v{C1+q}")
            e("s_nop 1")
            for q in range(8): e(f"v_add_f32_dpp v{C0+q}, v{C0+q}, v{C0+q} row_ror:8 row_mask:0xf bank_mask:0xf")
            e("s_mov_b32 s72, 0xff00ff00")
            e("s_mov_b32 s73, 0xff00ff00")
            for q in range(4): e(f"v_cndmask_b32 v{C0+q}, v{C0+q}, v{C0+4+q}, s[72:73]")
            for sw in ("v_permlane16_swap_b32", "v_permlane32_swap_b32"):
                for q in range(4): e(f"v_mov_b32 v{C1+q}, v{C0+q}")
                e("s_nop 0")
                for q in range(4): e(f"{sw} v{C0+q}, v{C1+q}")
                for q in range(4): e(f"v_add_f32 v{C0+q}, v{C0+q}, v{C1+q}")
            e("s_mov_b32 s71, 0xff")
            e(f"v_bfe_u32 v{C1+2}, v0, 3, 1")
            for q in range(4): e(f"v_bfi_b32 v{C0+q}, s71, v{A+6}, v{C0+q}")
            e(f"v_lshlrev_b32 v{C1+1}, 5, v5")
            e(f"v_lshl_add_u32 v{C1+1}, v{C1+2}, 4, v{C1+1}")
            e(f"s_mul_i32 s71, s20, {3328*4}")
            e("s_lshl_b32 s72, s66, 8")
            e("s_add_u32 s71, s71, s72")
            e(f"s_add_u32 s71, s71, {WS_CS:#x}")
            e("s_cmp_ge_u32 s66, 52")
            e("s_cbranch_scc1 L_P2S")
            e("s_mov_b64 exec, 0xffff")
            e(f"buffer_store_dwordx4 {vr(C0,4)}, v{C1+1}, {SS}, s71 offen sc1")
            e("s_mov_b64 exec, -1")
            e("L_P2S:")
    def kvsetup():
        e(f"""v_and_b32 v10, 3, v0
        v_min_u32 v10, 2, v10
        s_sub_u32 s76, s20, 2
        v_add_u32 v10, s76, v10
        v_max_i32 v10, 0, v10
        v_lshlrev_b32 v10, 11, v10
        v_bfe_u32 v11, v0, 2, 1
        v_lshl_add_u32 v10, v11, 10, v10
        s_lshr_b32 s76, s23, 1
        s_lshl_b32 s76, s76, 7
        s_add_u32 s76, s76, {WS_F1:#x}
        v_mov_b32 v11, s61
        v_lshlrev_b32 v1, 4, v0
        s_lshr_b32 s52, s19, 1
        s_lshl_b32 s53, s23, 1
        s_add_u32 s53, s53, s52
        s_lshl_b32 s53, s53, 6
        s_and_b32 s54, s19, 1
        s_mul_i32 s54, s54, 6
        s_lshl_b32 s55, s20, 2
        s_add_u32 s54, s54, s55
        s_mul_i32 s55, s19, 6144""")
    def kvdma():
        for t in range(6):
            e(f"s_add_u32 s68, s54, {t}")
            e("s_sub_i32 s68, s68, 8")
            e("s_max_i32 s68, s68, 0")
            e("s_add_u32 s68, s68, s53")
            e("s_lshl_b32 s68, s68, 10")
            e(f"s_add_u32 m0, s55, {L_K + t*1024}")
            e("s_add_u32 s69, s68, 0x200000")
            e(f"buffer_load_dwordx4 v1, {SS}, s68 offen sc1 lds")
            e(f"s_add_u32 m0, s55, {L_V + t*1024}")
            e("s_nop 0")
            e(f"buffer_load_dwordx4 v1, {SS}, s69 offen sc1 lds")
    G0 = 84
    def gather():
        e(f"s_mov_b32 s71, {WS_CS:#x}")
        for g in range(16):
            e(f"buffer_load_dwordx4 {vr(G0+4*g,4)}, v15, {SS}, s71 offen sc1")
            e(f"s_add_u32 s71, s71, {3328*4}")
        e("s_lshl_b32 s71, s20, 11")
        e(f"s_add_u32 s71, s71, {WS_RS:#x}")
        for h in range(2):
            e(f"buffer_load_dwordx4 {vr(G0+64+4*h,4)}, v14, {SS}, s71 offen offset:{h*1024} sc1")
    PK = opt.get("pk", [0, 0, 1]); GK = opt.get("gk", 4); CK = opt.get("ck", 6)
    for n_, kk_ in enumerate(PK):
        if kk_ < 0: piece(n_)
    for k in range(UL + 1, 16):
        if k == PK[0] + 2: e("s_waitcnt lgkmcnt(0)")
        bstamp(k)
        e("s_barrier")
        for n_, kk_ in enumerate(PK):
            if kk_ == k: piece(n_)
        KVK = opt.get("kvk", 14)
        if k == 8:
            kvsetup()
            e("s_mov_b32 s77, 0")
        if k == KVK - 1: e(f"buffer_load_dword v4, v10, {SS}, s76 offen sc1")
        if k == KVK:
            sk = lab("KVLATE")
            e("s_waitcnt vmcnt(0)")
            e("v_cmp_ne_u32 vcc, v11, v4")
            e("s_nop 1")
            e("s_cmp_lg_u64 vcc, 0")
            e(f"s_cbranch_scc1 {sk}")
            kvdma()
            e("s_mov_b32 s77, 1")
            e(f"{sk}:")
        PW0 = opt.get("pfw", 0)
        if PW0 and PW0 <= k < 16:
            if k == PW0:
                srd(e, 44, 14, 1792 * 1024)
                srd(e, 48, 8, 512 * 1024)
                e("s_lshr_b32 s78, s2, 3")
                e("s_mul_i32 s79, s78, 57344")
                e("s_mul_i32 s3, s19, 14336")
                e("s_add_u32 s79, s79, s3")
                e("s_lshl_b32 s78, s78, 14")
                e("s_lshl_b32 s3, s19, 12")
                e("s_add_u32 s78, s78, s3")
            per = -(-18 // (opt.get("pfwe", 16) - PW0))
            for j in range(per * (k - PW0), min(18, per * (k - PW0 + 1))):
                if j < 14:
                    e(f"s_add_u32 s3, s79, {j*1024}")
                    e(f"buffer_load_dwordx4 v[120:123], v14, {S2}, s3 offen")
                else:
                    e(f"buffer_load_dwordx4 v[120:123], v14, {SO}, s78 offen offset:{(j-14)*1024}")
        if opt.get("pfl2", 0) and 8 <= k <= 10:
            if k == 8:
                srd(e, 44, 14, 1792 * 1024)
                srd(e, 48, 8, 512 * 1024)
                e("v_lshlrev_b32 v12, 7, v0")
                e("s_lshr_b32 s78, s2, 3")
            j = k - 8
            sk = lab("NOP2")
            if j < 2:
                e("s_mul_i32 s71, s78, 57344")
                e("s_lshl_b32 s72, s19, 13")
                e("s_add_u32 s71, s71, s72")
                if j == 1:
                    e("s_cmp_eq_u32 s19, 3")
                    e(f"s_cbranch_scc1 {sk}")
                    e("s_add_u32 s71, s71, 32768")
                e(f"buffer_load_dword v13, v12, {S2}, s71 offen")
            else:
                e("s_cmp_ge_u32 s19, 2")
                e(f"s_cbranch_scc1 {sk}")
                e("s_lshl_b32 s71, s78, 14")
                e("s_lshl_b32 s72, s19, 13")
                e("s_add_u32 s71, s71, s72")
                e(f"buffer_load_dword v13, v12, {SO}, s71 offen")
            e(f"{sk}:")
        if UST and k == 8:
            e(f"""s_lshl_b32 s3, s19, 12
            v_add_u32 v2, s3, v14
            v_add_u32 v3, {W1A[7]}, v2
            v_add_u32 v2, {W1A[6]}, v2""")
            for s_ in range(8): e(f"ds_read_b128 {vr(16+4*s_,4)}, v{2+(s_>>2)} offset:{(s_&3)*1024}")
            e(f"""s_lshl_b32 s64, s20, 2
            s_add_u32 s64, s64, s19
            s_lshl_b32 s65, s23, 8
            s_add_u32 s65, s65, s64
            s_lshl_b32 s65, s65, 10
            s_mul_i32 s66, s64, 112
            s_lshl_b32 s3, s23, 2
            s_add_u32 s66, s66, s3
            s_lshl_b32 s66, s66, 10
            s_add_u32 s66, s66, {WS_H:#x}
            s_waitcnt lgkmcnt(0)""")
        if UST and k >= 8:
            SP = opt.get("sper", 2)
            for s_ in range(SP * (k - 8), min(8, SP * (k - 7))):
                if s_ < 4: e(f"s_add_u32 s3, s65, {WS_KV + s_*0x10000:#x}")
                else: e(f"s_add_u32 s3, s66, {(s_-4)*1024}")
                e(f"buffer_store_dwordx4 {vr(16+4*s_,4)}, v14, {SS}, s3 offen sc1")
            if k == opt.get("ugk", 12): signal(4, 3, WS_F1, 2, 3, max(0, min(8, SP * (k - 7)) - 4))
            if k == opt.get("ugh", 15): signal(24, 3, WS_F1H, 2, 3)
        if k == opt.get("pf2k", 2) and opt.get("pf2", 1):
            sk = lab("NOPF")
            e("s_cmp_lg_u32 s19, 1")
            e(f"s_cbranch_scc1 {sk}")
            srd(e, 44, 14, 1792 * 1024)
            srd(e, 48, 8, 512 * 1024)
            e("v_lshlrev_b32 v2, 7, v0")
            e("s_mul_i32 s71, s2, 7168")
            e("s_mov_b32 exec_hi, 0xffffff")
            e(f"buffer_load_dword v160, v2, {S2}, s71 offen")
            e("s_lshl_b32 s71, s2, 11")
            e("s_mov_b64 exec, 0xffff")
            e(f"buffer_load_dword v161, v2, {SO}, s71 offen")
            e("s_mov_b64 exec, -1")
            e(f"{sk}:")
        if k in (GK, CK, CK + 1):
            sk = lab("NOPOST")
            e("s_cmp_lg_u32 s19, 0")
            e(f"s_cbranch_scc1 {sk}")
            if k == GK: gather()
            if k == CK:
                e("s_mov_b32 s73, 0x20000")
                e("L_CHK:")
                e("s_waitcnt vmcnt(0)")
                e(f"v_xor_b32 v2, s61, v{G0}")
                for i in range(G0 + 1, G0 + 64): e(f"v_bitop3_b32 v2, v2, v{i}, s61 bitop3:0xf6")
                e("v_and_b32 v2, 0xff, v2")
                for i in (66, 67, 70, 71): e(f"v_bitop3_b32 v2, v2, v{G0+i}, s61 bitop3:0xf6")
                e("v_cmp_ne_u32 vcc, 0, v2")
                e("s_sub_u32 s73, s73, 1")
                e("s_cmp_eq_u32 s73, 0")
                e("s_cbranch_scc1 L_GOT")
                e("s_cmp_eq_u64 vcc, 0")
                e("s_cbranch_scc1 L_GOT")
                gather()
                e("s_branch L_CHK")
                e("L_GOT:")
            if k == CK + 1:
                e("s_mov_b32 s71, 0xffffff00")
                for i in range(G0, G0 + 64): e(f"v_and_b32 v{i}, s71, v{i}")
                for g in range(1, 16):
                    for h in range(4): e(f"v_add_f32 v{G0+h}, v{G0+h}, v{G0+4*g+h}")
                e(f"v_add_u32 v2, {L_ST}, v14")
                e(f"ds_write_b128 v2, {vr(G0+64,4)}")
                e(f"ds_write_b128 v2, {vr(G0+68,4)} offset:1024")
                e(f"ds_write_b128 v2, {vr(G0,4)} offset:2048")
                e("s_waitcnt lgkmcnt(0)")
                ldsadd(20, 2, 3)
            e(f"{sk}:")
    bflush()
    stamp(3)
    e("s_barrier")
    stamp(4)
    e("s_cmp_lg_u32 s77, 0")
    e("s_cbranch_scc1 L_KVDONE")
    poll(10, "s76", 11, 4)
    kvdma()
    e("L_KVDONE:")
    e(f"v_add_u32 v2, {L_ONE}, v1")
    for q in range(4): e(f"v_mov_b32 v{8+q}, 0x3f803f80")
    e("ds_write_b128 v2, v[8:11]")
    e("s_add_u32 s96, s19, 4")
    e("s_mov_b32 s97, 0")
    e("s_waitcnt vmcnt(0) lgkmcnt(0)")
    ldsadd(16, 2, 3)
    stamp(5)

    e("L_ATT:")
    e.vm = []; e.lg = []
    Q = 8
    K = lambda u: 12 + 4 * u
    V = lambda u, g: 48 + ((u & 1) * 2 + g) * 4
    S = lambda b: 64 + 16 * b
    P, O = 112, 120
    VNEG, M0_, M1_, NM, MK = 136, 137, 138, 139, 140
    VA, VSTR = 148, 149
    for j in range(16):
        b0 = (j >> 2) * 8 + (j & 3)
        e(f"s_mov_b32 s{64+2*j}, {(0xffffffff << b0) & 0xffffffff:#x}")
        e(f"s_mov_b32 s{65+2*j}, {(0xffffffff << (b0+4)) & 0xffffffff:#x}")
    e(f"v_mov_b32 v{VNEG}, {NEG:#x}")
    e("v_mov_b32 v6, 0xffff")
    e("v_mov_b32 v7, 0xffff0000")
    for q in range(8):
        e(f"v_cndmask_b32 v{MK+q}, 0, v6, s[{64+4*q}:{65+4*q}]")
        e(f"v_cndmask_b32 v{S(2)}, 0, v7, s[{66+4*q}:{67+4*q}]")
        e(f"v_or_b32 v{MK+q}, v{MK+q}, v{S(2)}")
    e(f"""s_and_b32 s3, s96, 3
    s_lshl_b32 s26, s20, 2
    s_add_u32 s26, s26, s3
    s_add_u32 s25, s26, 1
    s_min_u32 s25, s25, 9
    s_lshr_b32 s62, s96, 2
    s_lshl_b32 s27, s23, 1
    s_add_u32 s27, s27, s62
    v_lshlrev_b32 v1, 4, v0
    s_lshl_b32 s63, s96, 10
    s_add_u32 s63, s63, {L_Q}
    v_add_u32 v3, s63, v1
    s_mul_i32 s62, s62, 12288
    s_lshl_b32 s3, s3, 10
    s_add_u32 s3, s3, s62
    s_add_u32 s62, s3, {L_K}
    v_add_u32 v4, s62, v1
    v_lshrrev_b32 v5, 5, v0
    v_lshlrev_b32 v5, 2, v5
    v_bfe_u32 v6, v0, 2, 2
    v_add_u32 v5, v5, v6
    v_lshlrev_b32 v5, 4, v5
    v_bfe_u32 v6, v0, 1, 1
    v_lshl_add_u32 v5, v6, 9, v5
    v_and_b32 v6, 1, v0
    v_lshl_add_u32 v5, v6, 3, v5
    s_add_u32 s3, s3, {L_V + 8192}
    v_add_u32 v5, s3, v5
    v_mov_b32 v6, {L_ONE}
    v_mov_b32 v7, 1024
    s_mov_b32 s98, 0xffff
    s_mov_b32 s99, 0xffff
    v_cndmask_b32 v5, v6, v5, s[98:99]
    v_cndmask_b32 v{VSTR}, 0, v7, s[98:99]
    v_lshlrev_b32 v7, 3, v{VSTR}
    v_sub_u32 v{VA+2}, v5, v7""")
    stamp(6)
    def owed():
        sk = lab("NOOWE")
        e("s_cmp_eq_u32 s97, 0")
        e(f"s_cbranch_scc1 {sk}")
        keepl = list(e.lg)
        signal(12, 3, WS_F1B, 152, 153)
        e.lg = keepl
        e("s_mov_b32 s97, 0")
        e(f"{sk}:")
    if opt.get("owu", 0) == 0: owed()
    ldswait(16, 8, 2, 6)
    e(f"s_setprio {opt.get('aprio', 0)}")
    stamp(7)
    def fill(buf, val, diag):
        for j in range(16):
            a, b = (f"v{VNEG}", val) if diag else (val, f"v{VNEG}")
            e(f"v_cndmask_b32 v{S(buf)+j}, {a}, {b}, s[{64+2*j}:{65+2*j}]")
    def smfma(u, buf, cin):
        e.lwait(("K", u))
        e(f"v_mfma_f32_32x32x16_bf16 {vr(S(buf),16)}, {vr(K(u),4)}, {vr(Q,4)}, {cin}")
    def vread(u, par=None, va=None):
        if va is None:
            if u == 0: e(f"v_mov_b32 v{VA}, v5")
            else: e(f"v_sub_u32 v{VA}, v{VA}, v{VSTR}")
            va = VA
        for g in range(2):
            r = V(u if par is None else par, g)
            for h in range(2): e.lds(f"ds_read_b64_tr_b16 v[{r+2*h}:{r+2*h+1}], v{va} offset:{g*256 + h*128}", ("V", u))
    PD, PFR = S(2), S(2) + 8
    if opt.get("noatt"): e("s_branch L_P2DONE")
    e.lds(f"ds_read_b128 {vr(Q,4)}, v3", "Q")
    for u in [0, 8, 1]: e.lds(f"ds_read_b128 {vr(K(u),4)}, v4 offset:{(8-u)*1024}", ("K", u))
    vread(0); vread(8, 1, VA + 2)
    smfma(0, 0, "0"); smfma(8, 2, "0"); smfma(1, 1, "0")
    for u in range(2, 8): e.lds(f"ds_read_b128 {vr(K(u),4)}, v4 offset:{(8-u)*1024}", ("K", u))
    e("s_nop 4")
    s0 = S(0)
    for j in range(16): e(f"v_cndmask_b32 v{s0+j}, v{S(2)+j}, v{s0+j}, s[{64+2*j}:{65+2*j}]")
    for j in range(16): e(f"v_exp_f32 v{s0+j}, v{s0+j}")
    for q in range(8): e(f"v_cvt_pk_bf16_f32 v{P+q}, v{s0+2*q}, v{s0+2*q+1}")
    for q in range(8): e(f"v_and_b32 v{PD+q}, v{MK+q}, v{P+q}")
    e.lwait(("V", 8))
    e(f"v_mfma_f32_32x32x16_bf16 {vr(O,16)}, {vr(V(0,0),4)}, {vr(PD,4)}, 0")
    for q in range(8): e(f"v_bfi_b32 v{PFR+q}, v{MK+q}, 0, v{P+q}")
    e(f"v_mfma_f32_32x32x16_bf16 {vr(O,16)}, {vr(V(0,1),4)}, {vr(PD+4,4)}, {vr(O,16)}")
    e("s_cmp_lt_u32 s25, 9")
    e("s_cbranch_scc1 L_NOFAR")
    e(f"v_mfma_f32_32x32x16_bf16 {vr(O,16)}, {vr(V(1,0),4)}, {vr(PFR,4)}, {vr(O,16)}")
    e(f"v_mfma_f32_32x32x16_bf16 {vr(O,16)}, {vr(V(1,1),4)}, {vr(PFR+4,4)}, {vr(O,16)}")
    e("L_NOFAR:")
    vread(1)
    e("s_cmp_eq_u32 s25, 1")
    e("s_cbranch_scc1 L_FCHK")
    def pv(u, g): e(f"v_mfma_f32_32x32x16_bf16 {vr(O,16)}, {vr(V(u,g),4)}, {vr(P+4*g,4)}, {vr(O,16)}")
    for u in range(1, 8):
        s_ = S(u % 2)
        if u + 1 <= 7: smfma(u + 1, (u + 1) % 2, "0")
        for j in range(2): e(f"v_exp_f32 v{s_+j}, v{s_+j}")
        if u > 1: pv(u - 1, 1)
        if u + 1 <= 7: vread(u + 1)
        for j in range(2, 8): e(f"v_exp_f32 v{s_+j}, v{s_+j}")
        for q in range(4): e(f"v_cvt_pk_bf16_f32 v{P+q}, v{s_+2*q}, v{s_+2*q+1}")
        for j in range(8, 10): e(f"v_exp_f32 v{s_+j}, v{s_+j}")
        e.lwait(("V", u))
        pv(u, 0)
        for j in range(10, 16): e(f"v_exp_f32 v{s_+j}, v{s_+j}")
        for q in range(4, 8): e(f"v_cvt_pk_bf16_f32 v{P+q}, v{s_+2*q}, v{s_+2*q+1}")
        if u == opt.get("owu", 0): owed()
        if u < 7:
            e(f"s_cmp_eq_u32 s25, {u+1}")
            e(f"s_cbranch_scc1 L_FX{u&1}")
    e("L_FX1:")
    e("s_nop 1")
    pv(1, 1)
    e("s_branch L_FCHK")
    e("L_FX0:")
    e("s_nop 1")
    pv(0, 1)
    e("L_FCHK:")
    if opt.get("owu", 0): owed()
    e("s_mov_b32 s52, 0x1f800000")
    e("s_mov_b32 s53, 0x5f800000")
    e("s_mov_b32 s3, 0x7f800000")
    e("s_waitcnt lgkmcnt(0)")
    e("s_nop 7")
    e(f"v_add_f32 v6, |v{O}|, |v{O+1}|")
    e(f"v_add_f32 v7, |v{O+2}|, |v{O+3}|")
    e(f"v_add_f32 v2, |v{O+4}|, |v{O+5}|")
    e(f"v_add_f32 v3, |v{O+6}|, |v{O+7}|")
    e(f"v_cmp_le_f32 s[62:63], s52, v{O+8}")
    e(f"v_cmp_ge_f32 s[98:99], s53, v{O+8}")
    e("v_add_f32 v6, v6, v7")
    e("v_add_f32 v2, v2, v3")
    e("v_add_f32 v6, v6, v2")
    e("s_and_b64 s[62:63], s[62:63], s[98:99]")
    e("v_cmp_gt_f32 vcc, s3, v6")
    e("s_nop 0")
    e("s_and_b64 s[62:63], s[62:63], vcc")
    e("s_cmp_eq_u64 s[62:63], -1")
    if opt.get("forceslow"): e("s_cmp_eq_u32 s62, 12345")
    e("s_cbranch_scc1 L_P2DONE")
    e.lg = []
    e(f"v_mov_b32 v{M0_}, v{VNEG}")
    e(f"v_mov_b32 v{M1_}, v{VNEG}")
    fill(0, "0", True)
    e("s_nop 1")
    smfma(0, 0, vr(S(0), 16))
    smfma(1, 1, "0")
    for u in range(9):
        if u + 2 <= 8:
            if u + 2 == 8:
                fill((u + 2) % 3, "0", False); e("s_nop 1")
                smfma(u + 2, (u + 2) % 3, vr(S((u + 2) % 3), 16))
            else:
                smfma(u + 2, (u + 2) % 3, "0")
        if u == 0: e("s_nop 9")
        for q in range(8):
            m = M0_ + (q & 1)
            e(f"v_max3_f32 v{m}, v{S(u%3)+2*q}, v{S(u%3)+2*q+1}, v{m}")
        if u < 8:
            e(f"s_cmp_eq_u32 s25, {u+1}")
            e("s_cbranch_scc1 L_P1DONE")
    e("L_P1DONE:")
    vread(0)
    e(f"v_max_f32 v{M0_}, v{M0_}, v{M1_}")
    e(f"v_mov_b32 v{M1_}, v{M0_}")
    e("s_nop 1")
    e(f"v_permlane32_swap_b32 v{M0_}, v{M1_}")
    e("s_nop 1")
    e(f"v_max_f32 v{M0_}, v{M0_}, v{M1_}")
    e(f"v_sub_f32 v{NM}, 0, v{M0_}")
    e("s_nop 3")
    CB = S(2)
    for j in range(16): e(f"v_mov_b32 v{CB+j}, v{NM}")
    fill(0, f"v{NM}", True)
    e("s_nop 1")
    smfma(0, 0, vr(S(0), 16))
    for u in range(9):
        s = S(u % 2)
        if u + 1 <= 8:
            nb_ = (u + 1) % 2
            if u + 1 == 8:
                fill(nb_, f"v{NM}", False); e("s_nop 1")
                smfma(u + 1, nb_, vr(S(nb_), 16))
            else:
                smfma(u + 1, nb_, vr(CB, 16))
            vread(u + 1)
        if u == 0: e("s_nop 6")
        for j in range(8): e(f"v_exp_f32 v{s+j}, v{s+j}")
        for q in range(4): e(f"v_cvt_pk_bf16_f32 v{P+q}, v{s+2*q}, v{s+2*q+1}")
        for j in range(8, 16): e(f"v_exp_f32 v{s+j}, v{s+j}")
        e.lwait(("V", u))
        e(f"v_mfma_f32_32x32x16_bf16 {vr(O,16)}, {vr(V(u,0),4)}, {vr(P,4)}, {'0' if u == 0 else vr(O,16)}")
        for q in range(4, 8): e(f"v_cvt_pk_bf16_f32 v{P+q}, v{s+2*q}, v{s+2*q+1}")
        e("s_nop 1")
        e(f"v_mfma_f32_32x32x16_bf16 {vr(O,16)}, {vr(V(u,1),4)}, {vr(P+4,4)}, {vr(O,16)}")
        if u < 8:
            e(f"s_cmp_eq_u32 s25, {u+1}")
            e("s_cbranch_scc1 L_P2X")
    e("L_P2X:")
    e("s_waitcnt lgkmcnt(0)")
    e("s_nop 12")
    e("L_P2DONE:")
    e("s_lshl_b32 s3, s26, 5")
    e("s_add_u32 s3, s3, s27")
    e("s_lshl_b32 s3, s3, 10")
    e(f"s_add_u32 s3, s3, {WS_O:#x}")
    e(f"v_rcp_f32 v7, v{O+8}")
    e("s_nop 0")
    for j in range(8): e(f"v_mul_f32 v{O+j}, v{O+j}, v7")
    for q in range(4): e(f"v_cvt_pk_bf16_f32 v{P+q}, v{O+2*q}, v{O+2*q+1}")
    e(f"buffer_store_dwordx4 {vr(P,4)}, v1, {SS}, s3 offen {'' if opt.get('hplain') else 'sc1'}")
    stamp(8)
    signal(8, 7, WS_F2)
    stamp(9)
    e("s_cmp_lg_u32 s2, 0")
    e("s_cbranch_scc1 L_FIN")
    e("s_cmp_lg_u32 s96, 1")
    e("s_cbranch_scc1 L_FIN")
    e("v_lshlrev_b32 v6, 7, v0")
    e("s_mov_b32 s63, 0x20000")
    e("L_BCHK:")
    for g in range(4):
        e(f"s_mov_b32 s62, {WS_F2 + g*8192:#x}")
        e(f"buffer_load_dword v{8+g}, v6, {SS}, s62 offen sc1")
    e("s_waitcnt vmcnt(0)")
    e("v_xor_b32 v7, s61, v8")
    for i in range(9, 12): e(f"v_bitop3_b32 v7, v7, v{i}, s61 bitop3:0xf6")
    e("v_cmp_ne_u32 vcc, 0, v7")
    e("s_sub_u32 s63, s63, 1")
    e("s_cmp_eq_u32 s63, 0")
    e("s_cbranch_scc1 L_FIN")
    e("s_cmp_lg_u64 vcc, 0")
    e("s_cbranch_scc1 L_BCHK")
    e("s_mov_b64 exec, 1")
    e("v_mov_b32 v6, 0")
    e("v_mov_b32 v7, s61")
    e(f"s_mov_b32 s62, {WS_EP:#x}")
    e(f"buffer_store_dword v7, v6, {SS}, s62 offen sc1")
    e("s_mov_b64 exec, -1")
    e("L_FIN:")
    e.vm = []; e.lg = []
    srd(e, 28, 10, 2048 * 1024)
    e(f"""v_lshrrev_b32 v7, 3, v0
    v_and_b32 v14, 7, v0
    v_lshlrev_b32 v8, 4, v14
    v_lshl_add_u32 v2, v7, 10, v8
    s_lshl_b32 s62, s58, 16
    s_lshl_b32 s3, s96, 13
    s_add_u32 s62, s62, s3
    s_lshl_b32 s3, s59, 7
    s_add_u32 s62, s62, s3""")
    e(f"buffer_load_dwordx4 v[8:11], v2, {SX}, s62 offen")
    e(f"""s_and_b32 s3, s96, 3
    s_lshl_b32 s3, s3, 10
    s_cmp_ge_u32 s96, 4
    s_mov_b32 s63, {BREG[0]}
    s_cselect_b32 s63, {BREG[2]}, s63
    s_mov_b32 s64, {BREG[1]}
    s_cselect_b32 s64, {BREG[3]}, s64
    s_add_u32 s63, s63, s3
    s_add_u32 s64, s64, s3
    v_and_b32 v12, 3, v0
    v_lshlrev_b32 v12, 1, v12
    v_xor_b32 v12, v12, v7
    v_bfe_u32 v13, v0, 2, 1
    v_xor_b32 v12, v12, v13
    v_lshlrev_b32 v12, 4, v12
    v_lshl_add_u32 v12, v7, 7, v12
    v_mov_b32 v15, s63
    v_mov_b32 v16, s64
    v_cmp_eq_u32 vcc, 1, v13
    s_nop 1
    v_cndmask_b32 v15, v15, v16, vcc
    v_add_u32 v24, v15, v12
    v_xor_b32 v25, 16, v24""")
    stamp(10)
    e("s_barrier")
    stamp(11)
    R = lambda src, h: 48 + src * 8 + h * 4
    for src in range(4):
        for h in range(2): e.lds(f"ds_read_b128 {vr(R(src,h),4)}, v{24+h} offset:{src*4096}", src)
    e("s_mov_b32 s3, 0xffff0000")
    e("s_waitcnt vmcnt(0)")
    for q in range(4):
        e(f"v_lshlrev_b32 v{32+2*q}, 16, v{8+q}")
        e(f"v_and_b32 v{33+2*q}, s3, v{8+q}")
    for src in range(4):
        e.lwait(src)
        for q in range(4): e(f"v_pk_add_f32 {pk(32+2*q)}, {pk(32+2*q)}, {pk(R(src,0)+2*q)}")
    for q in range(4): e(f"v_cvt_pk_bf16_f32 v{40+q}, v{32+2*q}, v{33+2*q}")
    e("buffer_store_dwordx4 v[40:43], v2, s[28:31], s62 offen " + opt.get("ost", ""))
    if opt.get("deadline"):
        e("v_readlane_b32 s4, v167, 0")
        e("L_DLY:")
        e("s_memrealtime s[6:7]")
        e("s_waitcnt lgkmcnt(0)")
        e("s_sub_u32 s8, s6, s4")
        e(f"s_cmp_lt_u32 s8, {opt['deadline']}")
        e("s_cbranch_scc1 L_DLY")
    if opt.get("delay"):
        tm = "s_memrealtime" if opt.get("delayrt") else "s_memtime"
        e(f"{tm} s[4:5]")
        e("s_waitcnt lgkmcnt(0)")
        e("L_DLY:")
        e(f"{tm} s[6:7]")
        e("s_waitcnt lgkmcnt(0)")
        e("s_sub_u32 s8, s6, s4")
        e(f"s_cmp_lt_u32 s8, {opt['delay']}")
        e("s_cbranch_scc1 L_DLY")
    if ST:
        e("L_DUMP:")
        stamp(12)
        e("s_waitcnt vmcnt(0)")
        stamp(13); stamp(14, True)
        if opt.get("dbgst") is not None:
            e("s_load_dwordx2 s[4:5], s[0:1], 56")
            e(f"s_cmp_lg_u32 s2, {opt['dbgst']}")
            e("s_cbranch_scc1 L_END")
            e("s_cmp_lg_u32 s18, 4")
            e("s_cbranch_scc1 L_END")
            e(f"v_readlane_b32 s6, v{VST}, 1")
            e(f"v_readlane_b32 s7, v{VST}, 0")
            e("s_waitcnt lgkmcnt(0)")
            e(f"v_subrev_u32 v3, s6, v{VST}")
            e(f"v_subrev_u32 v4, s7, v{VST}")
            e("v_cmp_eq_u32 vcc, 14, v0")
            e("s_nop 1")
            e("v_cndmask_b32 v3, v3, v4, vcc")
            e("v_lshlrev_b32 v2, 2, v0")
            e("s_mov_b64 exec, 0xffff")
            e("global_store_dword v2, v3, s[4:5]")
            e("s_endpgm")
        e("s_mul_i32 s3, s2, 12")
        e("s_add_u32 s3, s3, s18")
        e("s_lshl_b32 s3, s3, 7")
        e("s_add_u32 s3, s3, 0x1000000")
        e("v_lshl_add_u32 v2, v0, 2, s3")
        e("s_mov_b64 exec, 0xffffffff")
        e(f"global_store_dword v2, v{VST}, s[16:17]")
    e("L_END:")
    e("s_endpgm")
    return name, e.text(), kd(name, 168), (256, 768, LDS)

def build(opt, path):
    n, t, k, (g, b, lds) = gen(opt)
    ref = open(f"cdna_kernels/{NAME}.s.ref").read().split("\n")
    head = [l for l in ref if l.startswith(";") and "@launch" not in l and "Override launch" not in l and "grid=ceil" not in l]
    s = "\n".join(head[:10]) + "\n"
    dm = opt.get("dummy")
    if dm:
        ll = [f"; @launch kernel=dum_kernel grid=({dm[0]},1,1) block=({dm[1]},1,1) lds={dm[2]}\n", f"; @launch kernel={n} grid=({g},1,1) block=({b},1,1) lds={lds}\n"]
        s += "".join(ll if dm[4] == 0 else ll[::-1])
    else: s += f"; @launch grid=({g},1,1) block=({b},1,1) lds={lds}\n"
    s += '.amdgcn_target "amdgcn-amd-amdhsa--gfx950"\n.text\n'
    if dm:
        s += """.globl dum_kernel
.p2align 8
.type dum_kernel,@function
dum_kernel:
  s_memrealtime s[4:5]
  s_waitcnt lgkmcnt(0)
L_DD:
  s_memrealtime s[6:7]
  s_waitcnt lgkmcnt(0)
  s_sub_u32 s8, s6, s4
  s_cmp_lt_u32 s8, 1000
  s_cbranch_scc1 L_DD
  s_endpgm
"""
        k = k + ".p2align 6\n" + kd("dum_kernel", dm[3])
    s += f".globl {n}\n.p2align 8\n.type {n},@function\n" + t
    s += '.section .rodata,"a"\n.p2align 6\n' + k
    open(path, "w").write(s)

if __name__ == "__main__":
    import sys, json
    opt = json.loads(sys.argv[2]) if len(sys.argv) > 2 else {}
    build(opt, sys.argv[1])
```

```python
from emit import *
from alloc import plan3, plan4

NAME = "parallel_sum__sliding_block__dense_activation_relu__prompt"
WS_KV, WS_H, WS_O = 0, 0x600000, 0xD00000
WS_RS = 0xF00000
WS_CS = 0xF10000
WS_EP = 0xF80000
WS_F1, WS_F1B, WS_F2, WS_F1H = 0xF90000, 0xFA0000, 0xFB0000, 0xFC0000
WS_BYTES = 0x1000000
EPC = 0x9E3779B9
L_ST = 158720
L_MISC = L_ST + 3072
LDS = L_MISC + 64
ORD2 = list(range(6, 16)) + list(range(6))
NEG = 0xf149f2ca
pk = lambda a: f"v[{a}:{a+1}]"
SW, S1, SX, SS, S2, SO = "s[28:31]", "s[32:35]", "s[36:39]", "s[40:43]", "s[44:47]", "s[48:51]"
VST = 167

def reduce32(e, regs, tmp):
    for ctl in ("quad_perm:[1,0,3,2]", "quad_perm:[2,3,0,1]", "row_half_mirror", "row_mirror"):
        e("s_nop 1")
        for r in regs: e(f"v_add_f32_dpp v{r}, v{r}, v{r} {ctl} row_mask:0xf bank_mask:0xf")
    for r, t in zip(regs, tmp): e(f"v_mov_b32 v{t}, v{r}")
    e("s_nop 1")
    for r, t in zip(regs, tmp): e(f"v_permlane16_swap_b32 v{r}, v{t}")
    e("s_nop 1")
    for r, t in zip(regs, tmp): e(f"v_add_f32 v{r}, v{r}, v{t}")

def gen(opt):
    e = Em()
    name = NAME + "_kernel"
    ST = opt.get("stamps")
    NB = 6
    NT = opt.get("nt", "")
    PL = opt.get("pl", 2)
    XA, W1A, W2A, FIN = plan3(PL, opt.get("w2l", 2), NB, opt.get("ust", 0))
    if not opt.get("ust", 0): XA, W1A, W2A, FIN = plan4(PL, NB, opt.get("w2t", 5), opt.get("kvlow", 0))
    BREG = [FIN[f"B{j}"][1] for j in range(NB)]
    BT = [max(FIN[f"B{j}"][0], min(16, opt.get("bt0", 11) + j)) for j in range(NB)]
    L_K, L_V, L_Q, L_ONE = FIN["K"], FIN["V"], FIN["Q"], FIN["ONES"]
    def stamp(i, rt=False):
        if not ST: return
        e(("s_memrealtime" if rt else "s_memtime") + " s[100:101]")
        e("s_waitcnt lgkmcnt(0)")
        e(f"v_writelane_b32 v{VST}, s100, {i}")
        if opt.get("rtall") and not rt:
            e("s_memrealtime s[100:101]")
            e("s_waitcnt lgkmcnt(0)")
            e(f"v_writelane_b32 v{VST}, s100, {16+i}")
    BK = opt.get("bk", [])
    def bstamp(k):
        if ST and k in BK: e(f"s_memtime s[{80+2*BK.index(k)}:{81+2*BK.index(k)}]")
    def bflush():
        if ST and BK:
            e("s_waitcnt lgkmcnt(0)")
            for i in range(len(BK)): e(f"v_writelane_b32 v{VST}, s{80+2*i}, {16+i}")
    uid = [0]
    def lab(p):
        uid[0] += 1
        return f"{p}_{uid[0]}"
    def apoll_issue(voff, soff, vd, tag):
        e.vmem(f"buffer_load_dword v{vd}, v{voff}, {SS}, {soff} offen sc1", tag)
    def apoll_check(voff, soff, vtag, vd, tag):
        D = lab("AOK")
        e.vwait(tag)
        e(f"v_cmp_ne_u32 vcc, v{vtag}, v{vd}")
        e("s_nop 1")
        e("s_cmp_eq_u64 vcc, 0")
        e(f"s_cbranch_scc1 {D}")
        keep = list(e.vm); keepl = list(e.lg)
        poll(voff, soff, vtag, vd)
        e.vm = keep; e.lg = keepl
        e(f"{D}:")
    def poll(voff, soff, vtag, vd):
        L, D = lab("POLL"), lab("POLLED")
        e("s_mov_b32 s63, 0x40000")
        e(f"{L}:")
        e(f"buffer_load_dword v{vd}, v{voff}, {SS}, {soff} offen sc1")
        e("s_waitcnt vmcnt(0) lgkmcnt(0)")
        e(f"v_cmp_ne_u32 vcc, v{vtag}, v{vd}")
        e("s_sub_u32 s63, s63, 1")
        e("s_cmp_eq_u32 s63, 0")
        e(f"s_cbranch_scc1 {D}")
        e("s_cmp_lg_u64 vcc, 0")
        e(f"s_cbranch_scc1 {L}")
        e(f"{D}:")
        e.vm = []; e.lg = []
    def ldswait(off, val, va, vb):
        L, D = lab("LW"), lab("LWOK")
        e(f"v_mov_b32 v{va}, {L_MISC}")
        e("s_mov_b32 s63, 0x400000")
        e(f"{L}:")
        e(f"ds_read_b32 v{vb}, v{va} offset:{off}")
        e("s_sub_u32 s63, s63, 1")
        e("s_waitcnt lgkmcnt(0)")
        e(f"v_readfirstlane_b32 s62, v{vb}")
        e("s_cmp_eq_u32 s63, 0")
        e(f"s_cbranch_scc1 {D}")
        e(f"s_cmp_ge_u32 s62, {val}")
        e(f"s_cbranch_scc1 {D}")
        e("s_sleep 1")
        e(f"s_branch {L}")
        e(f"{D}:")
        e.lg = []
    def ldsadd(off, va, vb):
        e(f"v_mov_b32 v{va}, {L_MISC}")
        e(f"v_mov_b32 v{vb}, 1")
        e("s_mov_b64 exec, 1")
        e(f"ds_add_u32 v{va}, v{vb} offset:{off}")
        e("s_mov_b64 exec, -1")
    def smasks():
        for j in range(16):
            b0 = (j >> 2) * 8 + (j & 3)
            e(f"s_mov_b32 s{64+2*j}, {(0xffffffff << b0) & 0xffffffff:#x}")
            e(f"s_mov_b32 s{65+2*j}, {(0xffffffff << (b0+4)) & 0xffffffff:#x}")
    def asig1(coff, vm):
        e(f"s_waitcnt vmcnt({vm})")
        e("s_mov_b64 exec, 1")
        e.lds(f"ds_add_rtn_u32 v164, v6, v165 offset:{coff}", "sg")
        e("s_mov_b64 exec, -1")
    def asig2(last, base):
        N = lab("NOFLAG")
        e.lwait("sg")
        e("v_readfirstlane_b32 s63, v164")
        e(f"s_add_u32 s62, s24, {base:#x}")
        e(f"s_cmp_lg_u32 s63, {last}")
        e(f"s_cbranch_scc1 {N}")
        e("v_mov_b32 v164, s61")
        e("s_mov_b64 exec, 1")
        e(f"buffer_store_dword v164, off, {SS}, s62 sc1")
        e("s_mov_b64 exec, -1")
        e(f"{N}:")
    def signal(coff, last, base, va=2, vb=3, vm=0):
        N = lab("NOFLAG")
        e(f"s_waitcnt vmcnt({vm})")
        e(f"v_mov_b32 v{va}, {L_MISC}")
        e(f"v_mov_b32 v{vb}, 1")
        e("s_mov_b64 exec, 1")
        e(f"ds_add_rtn_u32 v{vb}, v{va}, v{vb} offset:{coff}")
        e(f"s_add_u32 s62, s24, {base:#x}")
        e("s_waitcnt lgkmcnt(0)")
        e(f"v_readfirstlane_b32 s63, v{vb}")
        e(f"s_cmp_lg_u32 s63, {last}")
        e(f"s_cbranch_scc1 {N}")
        e(f"v_mov_b32 v{va}, 0")
        e(f"v_mov_b32 v{vb}, s61")
        e(f"buffer_store_dword v{vb}, v{va}, {SS}, s62 offen sc1")
        e(f"{N}:")
        e("s_mov_b64 exec, -1")
        e.lg = []

    e(f"{name}:")
    e("s_cmp_ge_u32 s2, 256")
    e("s_cbranch_scc1 L_END")
    stamp(0, True); stamp(1)
    def gate(nm):
        if opt.get("gate") == nm:
            L = lab("GATE")
            e("v_readlane_b32 s98, v167, 0")
            e(f"{L}:")
            e(("s_memtime" if opt.get("gcyc") else "s_memrealtime") + " s[100:101]")
            e("s_waitcnt lgkmcnt(0)")
            e("s_sub_u32 s99, s100, s98")
            e(f"s_cmp_lt_u32 s99, {opt.get('gcyc', 3000)}")
            e(f"s_cbranch_scc1 {L}")
    if opt.get("deadline") or opt.get("gate"): e(("s_memtime" if opt.get("gcyc") else "s_memrealtime") + " s[98:99]"); e("s_waitcnt lgkmcnt(0)"); e("v_writelane_b32 v167, s98, 0")
    e("s_load_dwordx4 s[4:7], s[0:1], 0")
    e("s_load_dwordx4 s[12:15], s[0:1], 32")
    e("s_load_dwordx2 s[16:17], s[0:1], 64")
    e("s_load_dwordx2 s[8:9], s[0:1], 16")
    e("s_load_dwordx2 s[10:11], s[0:1], 48")
    e("v_lshrrev_b32 v1, 6, v0")
    e("v_and_b32 v0, 63, v0")
    e("v_readfirstlane_b32 s18, v1")
    e("""s_and_b32 s3, s2, 1
    s_lshl_b32 s20, s3, 3
    s_lshr_b32 s24, s2, 5
    s_add_u32 s20, s20, s24
    s_bfe_u32 s21, s2, 0x20001
    s_bfe_u32 s22, s2, 0x20003
    s_lshl_b32 s23, s21, 2
    s_add_u32 s23, s23, s22
    s_lshl_b32 s24, s20, 4
    s_add_u32 s24, s24, s23
    s_lshl_b32 s24, s24, 7
    s_and_b32 s19, s18, 3
    s_lshl_b32 s3, s3, 2
    s_add_u32 s58, s3, s21
    s_lshl_b32 s58, s58, 2
    s_lshr_b32 s59, s2, 6
    s_add_u32 s58, s58, s59
    s_bfe_u32 s59, s2, 0x30003""")
    if opt.get("map2", 0):
        e("""s_and_b32 s20, s2, 3
        s_lshl_b32 s20, s20, 2
        s_lshr_b32 s3, s2, 6
        s_add_u32 s20, s20, s3
        s_bfe_u32 s23, s2, 0x10002
        s_lshl_b32 s23, s23, 3
        s_bfe_u32 s3, s2, 0x30003
        s_add_u32 s23, s23, s3
        s_lshl_b32 s24, s20, 4
        s_add_u32 s24, s24, s23
        s_lshl_b32 s24, s24, 7""")
    if opt.get("map3", 0):
        e("""s_and_b32 s20, s2, 7
        s_lshl_b32 s20, s20, 1
        s_lshr_b32 s3, s2, 7
        s_add_u32 s20, s20, s3
        s_bfe_u32 s23, s2, 0x40003
        s_lshl_b32 s24, s20, 4
        s_add_u32 s24, s24, s23
        s_lshl_b32 s24, s24, 7""")
    if opt.get("own", 1):
        e("s_lshl_b32 s58, s20, 1")
        e("s_lshr_b32 s59, s23, 3")
        e("s_add_u32 s58, s58, s59")
        e("s_and_b32 s59, s23, 7")
    e("s_waitcnt lgkmcnt(0)")
    if opt.get("wsoff"):
        e(f"s_add_u32 s16, s16, {opt['wsoff'] << 20:#x}")
        e("s_addc_u32 s17, s17, 0")
    srd(e, 36, 4, 2048 * 1024)
    srd(e, 28, 6, 512 * 3072)
    srd(e, 32, 12, 512 * 3584)
    srd(e, 40, 16, WS_BYTES)
    e("s_cmp_ge_u32 s18, 8")
    e("s_cbranch_scc1 L_UTIL")
    e("s_cmp_ge_u32 s18, 4")
    e("s_cbranch_scc1 L_CONS")

    e(f"""v_and_b32 v5, 7, v0
    v_lshrrev_b32 v2, 3, v0
    v_lshrrev_b32 v3, 4, v0
    v_xor_b32 v3, v3, v5
    v_lshlrev_b32 v2, 10, v2
    v_lshl_add_u32 v12, v3, 4, v2
    v_xor_b32 v13, 64, v12
    s_lshl_b32 s65, s20, 17
    s_lshl_b32 s3, s18, 15
    s_add_u32 s65, s65, s3
    s_lshl_b32 s67, s18, 12""")
    def issueX(P):
        e(f"s_add_u32 m0, s67, {XA[P]}")
        e(f"s_add_u32 s74, s65, {P*128}")
        for a in range(4):
            e.vmem(f"buffer_load_dwordx4 v{12+(a&1)}, {SX}, s74 offen offset:{a*1024} {NT} lds", ("x", P))
            if a < 3: e(f"s_add_u32 s74, s74, {8192-1024}")
    issueX(0)
    e("""v_lshrrev_b32 v2, 5, v0
    v_bfe_u32 v3, v0, 3, 2
    v_lshl_add_u32 v3, v2, 3, v3
    v_bfe_u32 v4, v0, 4, 2
    v_lshlrev_b32 v4, 1, v4
    v_xor_b32 v4, v4, v5
    v_lshlrev_b32 v4, 4, v4
    v_mul_u32_u24 v10, 3072, v3
    v_add_u32 v10, v10, v4
    v_mul_u32_u24 v11, 3584, v3
    v_add_u32 v11, v11, v4
    s_lshr_b32 s52, s18, 1
    s_lshl_b32 s52, s52, 5
    s_and_b32 s62, s18, 1
    s_lshl_b32 s3, s62, 2
    s_add_u32 s52, s52, s3
    s_lshl_b32 s3, s23, 7
    s_mul_i32 s53, s52, 3072
    s_add_u32 s53, s53, s3
    s_add_u32 s53, s53, 1024
    s_mul_i32 s54, s52, 3584
    s_add_u32 s54, s54, s3""")
    def issueW(c):
        for ah in range(2):
            e(f"s_add_u32 m0, s67, {W1A[c] + ah*2048}")
            e(f"s_add_u32 s74, s53, {(64*c + 16*ah)*3072}")
            e.vmem(f"buffer_load_dwordx4 v10, {SW}, s74 offen {NT} lds", ("w", c))
            e(f"s_add_u32 m0, s67, {W1A[c] + ah*2048 + 1024}")
            e(f"s_add_u32 s74, s54, {(64*c + 16*ah)*3584}")
            e.vmem(f"buffer_load_dwordx4 v11, {S1}, s74 offen {NT} lds", ("w", c))
    def esetup():
        e("""v_lshrrev_b32 v2, 4, v0
        v_bfe_u32 v3, v0, 2, 2
        v_lshl_add_u32 v3, v2, 3, v3
        v_mul_u32_u24 v16, 3072, v3
        v_and_b32 v2, 1, v2
        v_lshlrev_b32 v2, 1, v2
        v_and_b32 v3, 3, v0
        v_xor_b32 v2, v2, v3
        v_lshl_add_u32 v16, v2, 4, v16
        s_and_b32 s62, s18, 1
        s_lshl_b32 s3, s62, 7""")
        for j in range(2):
            e(f"""v_add_u32 v2, s3, v0
            v_add_u32 v2, {64*j}, v2
            v_mul_u32_u24 v3, 10923, v2
            v_lshrrev_b32 v3, 16, v3
            v_mul_u32_u24 v4, 6, v3
            v_sub_u32 v4, v2, v4
            v_bfe_u32 v6, v3, 2, 2
            v_lshlrev_b32 v6, 3, v6
            v_lshrrev_b32 v7, 4, v3
            v_lshl_add_u32 v6, v7, 2, v6
            v_and_b32 v7, 3, v3
            v_add_u32 v6, v6, v7
            v_mul_u32_u24 v{17+j}, 3584, v6
            v_lshl_add_u32 v{17+j}, v4, 4, v{17+j}""")
        e("""s_cmp_eq_u32 s62, 1
        s_cselect_b32 s3, 0x80000000, 0
        v_or_b32 v18, s3, v18
        s_lshr_b32 s3, s18, 1
        s_mul_i32 s55, s52, 3072
        s_lshl_b32 s64, s23, 6
        s_add_u32 s55, s55, s64
        s_mul_i32 s56, s3, 114688
        s_mul_i32 s64, s23, 96
        s_add_u32 s56, s56, s64
        s_add_u32 s56, s56, 2048
        s_mul_i32 s57, s3, 5120
        s_lshl_b32 s64, s62, 10
        s_add_u32 s60, s57, s64
        s_lshl_b32 s64, s62, 11
        s_add_u32 s57, s57, s64
        s_add_u32 s64, s57, 1024
        s_cmp_eq_u32 s62, 1
        s_cselect_b32 s64, 8192, s64""")
    def issueW2(c):
        p = ORD2[2 * c]
        base = W2A[c][1]
        e(f"s_add_u32 m0, s60, {base}")
        e(f"s_add_u32 s74, s55, {p*32*3072}")
        e.vmem(f"buffer_load_dwordx4 v16, {SW}, s74 offen {NT} lds", ("w2", c))
        e(f"s_add_u32 m0, s57, {base + 2048}")
        e(f"s_add_u32 s74, s56, {p*32*3584}")
        e.vmem(f"buffer_load_dwordx4 v17, {S1}, s74 offen {NT} lds", ("w2", c))
        e(f"s_add_u32 m0, s64, {base + 2048}")
        e("s_nop 0")
        e.vmem(f"buffer_load_dwordx4 v18, {S1}, s74 offen {NT} lds", ("w2", c))
    NF2, NS, NA = 14, 18, 4
    A0 = 20
    AF = lambda sg, tb, kk: A0 + (sg % NA) * 16 + (tb * 2 + kk) * 4
    ACB = A0 + NA * 16
    GACC = lambda tb, nb: ACB + (tb * 2 + nb) * 16
    BFB = ACB + 64
    BF = lambda kk, nb: BFB + (kk * 2 + nb) * 4
    assert BFB + 16 <= VST
    def gsetup():
        srd(e, 44, 14, 1792 * 1024)
        srd(e, 48, 8, 512 * 1024)
        e(f"""v_lshrrev_b32 v8, 3, v0
        v_bfe_u32 v2, v0, 4, 1
        v_lshlrev_b32 v2, 2, v2
        v_xor_b32 v9, v5, v2
        v_lshlrev_b32 v9, 4, v9
        v_lshl_add_u32 v14, v8, 10, v9
        v_lshrrev_b32 v2, 2, v8
        v_lshlrev_b32 v2, 3, v2
        v_and_b32 v8, 3, v8
        v_add_u32 v8, v8, v2
        v_lshl_add_u32 v15, v8, 10, v9
        v_lshlrev_b32 v1, 4, v0
        s_lshl_b32 s3, s59, 7
        s_lshl_b32 s70, s18, 18
        s_add_u32 s70, s70, s3
        s_mul_i32 s78, s18, {12*16*1024}
        s_add_u32 s78, s78, s3
        s_lshl_b32 s71, s18, 17
        s_add_u32 s71, s71, s3
        s_mul_i32 s72, s58, {2*112*1024}
        s_add_u32 s72, s72, {WS_H:#x}
        s_mul_i32 s79, s18, {12*1024}
        s_add_u32 s79, s79, s72
        s_lshl_b32 s3, s18, 14
        s_add_u32 s72, s72, s3
        s_lshl_b32 s73, s58, 16
        s_lshl_b32 s3, s18, 13
        s_add_u32 s73, s73, s3
        s_add_u32 s73, s73, {WS_O:#x}
        s_and_b32 s3, s58, 3
        s_cmp_eq_u32 s3, s18
        s_cselect_b32 s26, 1, 0
        s_cmp_eq_u32 s59, s18
        s_cselect_b32 s27, 1, 0
        s_add_u32 s3, s18, 4
        s_cmp_eq_u32 s59, s3
        s_cselect_b32 s21, 1, 0
        s_lshl_b32 s69, s58, 1
        s_add_u32 s69, s69, s59
        s_and_b32 s69, s69, {opt.get("rotm", 7)}
        s_sub_u32 s25, s69, 6
        s_cmp_ge_u32 s69, 6
        s_cselect_b32 s25, s25, s69""")
    KS = [(2 * i, False) for i in range(8)] + [(64 + 2 * i, True) for i in range(6)]
    ROT = opt.get("rot", 0)
    def ridx(sg):
        if sg < 8:
            e(f"s_add_u32 s68, s69, {sg}")
            e("s_and_b32 s68, s68, 7")
        elif sg < NF2:
            e(f"s_add_u32 s68, s25, {sg-8}")
            e("s_sub_u32 s3, s68, 6")
            e("s_cmp_ge_u32 s68, 6")
            e("s_cselect_b32 s68, s3, s68")
        else:
            e(f"s_add_u32 s68, s69, {sg-NF2}")
            e("s_and_b32 s68, s68, 3")
    def issueB(sg):
        if ROT:
            ridx(sg)
            e("s_lshl_b32 s68, s68, 15")
            e(f"s_add_u32 s68, s68, {'s70' if sg < 8 else 's78' if sg < NF2 else 's71'}")
        for a in range(4):
            e(f"s_add_u32 m0, s67, {BREG[sg % NB] + a*1024}")
            if sg < NF2:
                k16, ex = KS[sg]
                if ROT: e(f"s_add_u32 s74, s68, {((1024 if ex else 0) + 8*a)*1024}")
                else: e(f"s_add_u32 s74, {'s78' if ex else 's70'}, {(16*k16 + 8*a)*1024}")
                e.vmem(f"buffer_load_dwordx4 v14, {S2}, s74 offen lds", ("B", sg))
            else:
                if ROT: e(f"s_add_u32 s74, s68, {(16*(a>>1) + 4*(a&1))*1024}")
                else: e(f"s_add_u32 s74, s71, {(32*(sg-NF2) + 16*(a>>1) + 4*(a&1))*1024}")
                e.vmem(f"buffer_load_dwordx4 v15, {SO}, s74 offen lds", ("B", sg))
    def issueA(sg, tbs=(0, 1)):
        for tb in tbs:
            if sg < NF2:
                k16, ex = KS[sg]
                e(f"s_add_u32 s74, {'s79' if ex else 's72'}, {(tb*112 + k16)*1024}")
            else: e(f"s_add_u32 s74, s73, {(tb*32 + 2*(sg-NF2))*1024}")
            for kk in range(2):
                e.vmem(f"buffer_load_dwordx4 {vr(AF(sg,tb,kk),4)}, v1, {SS}, s74 offen offset:{kk*1024} sc1", ("A", sg))
    LEAD = opt.get("lead", 0)
    def either(sreg, lead_fn, foll_fn):
        L1, L2 = lab("LD"), lab("LE")
        e(f"s_cmp_lg_u32 {sreg}, 0")
        e(f"s_cbranch_scc1 {L1}")
        allk = list(e.act)
        e.act = [k for k in allk if sreg not in k]
        if foll_fn: foll_fn()
        e(f"s_branch {L2}")
        e(f"{L1}:")
        keep = list(e.vm)
        e.act = [k for k in allk if sreg in k]
        if lead_fn: lead_fn()
        e.vm = keep
        e.act = allk
        e(f"{L2}:")
    def gsetup2():
        e(f"""v_lshrrev_b32 v6, 5, v0
        v_lshlrev_b32 v6, 3, v6
        v_bfe_u32 v7, v0, 2, 2
        v_add_u32 v6, v6, v7
        v_lshlrev_b32 v6, 7, v6
        v_lshrrev_b32 v7, 1, v7
        v_lshl_add_u32 v6, v7, 6, v6
        v_bfe_u32 v7, v0, 4, 1
        v_lshl_add_u32 v6, v7, 5, v6
        v_and_b32 v7, 3, v0
        v_lshl_add_u32 v6, v7, 3, v6
        v_add_u32 v6, s67, v6
        v_xor_b32 v7, 64, v6
        v_add_u32 v8, 49152, v6
        v_add_u32 v9, 49152, v7
    v_add_u32 v10, 98304, v6
    v_add_u32 v11, 98304, v7
        v_mov_b32 v2, {L_MISC}
        ds_read_b32 v2, v2
        v_and_b32 v3, 3, v0
        v_lshlrev_b32 v3, 7, v3
        s_lshr_b32 s76, s58, 1
        s_lshl_b32 s76, s76, 11
        s_lshl_b32 s3, s18, 9
        s_add_u32 s76, s76, s3
        s_add_u32 s66, s76, {WS_F1H:#x}""")
        e("s_mov_b32 s75, 0")
        e("s_waitcnt lgkmcnt(0)")
    D = opt.get("gd", 3); DB = NB - 1; PS = opt.get("ps", 11); PB = 8 - D - 1
    GE = opt.get("ge", 15)
    def firstA(lo=0, hi=None):
        hi = D if hi is None else hi
        for sg in range(lo, hi):
            if LEAD & 2 and sg == hi - 1:
                for tb in range(2): either(("s27", "s21")[tb], lambda: issueA(sg, (tb,)), None)
            else: issueA(sg)
    issueW(0)
    for c in range(1, PL): issueX(c); issueW(c)
    for k in range(17):
        e.vwait([("w", k), ("x", k)] if k < 8 else [("w2", k - 8)])
        if k == 0: stamp(2)
        if k == 8: stamp(3)
        if k == 16: stamp(4)
        bstamp(k)
        if k == 16: bflush()
        e("s_barrier")
        if k + PL <= 7: issueX(k + PL); issueW(k + PL)
        if k == 1: gsetup()
        if k == 2: esetup()
        for c in range(8):
            if W2A[c][0] == k: issueW2(c)
        if k == 7 and any(W2A[c][0] == 7.5 for c in range(8)):
            ldswait(28, 4, 2, 3)
            for c in range(8):
                if W2A[c][0] == 7.5: issueW2(c)
        if k == 9: gsetup2()
        if k == GE - 2: apoll_issue(3, "s66", 4, "f1h")
        if k == GE:
            sk = lab("GLATE")
            e.vwait("f1h")
            e("v_cmp_ne_u32 vcc, v2, v4")
            e("s_nop 1")
            e("s_cmp_lg_u64 vcc, 0")
            e(f"s_cbranch_scc1 {sk}")
            keep = list(e.vm)
            if not opt.get("gel"): firstA()
            e.vm = keep
            e("s_mov_b32 s75, 1")
            e(f"{sk}:")
        if k < 16:
            for j in range(NB):
                if BT[j] == k: issueB(j)
    if opt.get("gprio", 0): e(f"s_setprio {opt.get('gprio')}")
    if opt.get("gel"):
        e("s_cmp_lg_u32 s75, 0")
        e("s_cbranch_scc1 L_GRDY")
        keep = list(e.vm)
        poll(3, "s66", 2, 4)
        e.vm = keep
        e("L_GRDY:")
        for j in range(NB):
            if BT[j] >= 16: issueB(j)
            if j < D: issueA(j)
    else:
        for j in range(NB):
            if BT[j] >= 16: issueB(j)
        e("s_cmp_lg_u32 s75, 0")
        e("s_cbranch_scc1 L_GGO")
        keep = list(e.vm)
        poll(3, "s66", 2, 4)
        e.vm = keep
        if LEAD:
            assert GE > 16
            e.vm = []
            e.var_start([(b_, a_) for b_ in ("", "s26") for a_ in ("", "s27", "s21")])
        firstA()
    e("L_GGO:")
    stamp(5)
    def step(sg):
        if sg == opt.get("ghold", -1): ldswait(16, 8, 12, 13)
        e.vwait([("B", sg), ("A", sg)])
        reg = BREG[sg % NB]
        hi = reg // 49152
        off0 = reg - 49152 * hi
        for kk in range(2):
            for nb in range(2):
                for q in range(2):
                    e.lds(f"ds_read_b64_tr_b16 v[{BF(kk,nb)+2*q}:{BF(kk,nb)+2*q+1}], v{6+2*hi+nb} offset:{off0 + kk*2048 + q*512}", (kk, nb))
        if LEAD & 1:
            FB = opt.get("fb", 3)
            okb = lambda j: NB <= j < NS
            if okb(sg + DB) or okb(sg + FB):
                either("s26", (lambda: issueB(sg + DB)) if okb(sg + DB) else None, (lambda: issueB(sg + FB)) if okb(sg + FB) else None)
        elif NB <= sg + DB < NS: issueB(sg + DB)
        oka = lambda j: j < NF2 or (j < NS and sg > PS and j >= PS + 1 + D)
        if LEAD & 2:
            okf = lambda j: j < NF2 or (j < NS and sg > PS and j >= PS + D)
            for tb in range(2):
                if oka(sg + D) or okf(sg + D - 1):
                    either(("s27", "s21")[tb], (lambda: issueA(sg + D, (tb,))) if oka(sg + D) else None, (lambda: issueA(sg + D - 1, (tb,))) if okf(sg + D - 1) else None)
        elif oka(sg + D): issueA(sg + D)
        for kk in range(2):
            for nb in range(2):
                e.lwait((kk, nb))
                for tb in range(2):
                    acc = vr(GACC(tb, nb), 16)
                    cin = "0" if (sg == 0 and kk == 0) else acc
                    if opt.get("nogm") and (kk or nb): continue
                    e(f"v_mfma_f32_32x32x16_bf16 {acc}, {vr(BF(kk,nb),4)}, {vr(AF(sg,tb,kk),4)}, {cin}")
    for sg in range(PS + 1):
        if sg == PB - 1 or sg == PS - 1:
            e(f"s_add_u32 s66, s76, {(WS_F1B if sg == PB - 1 else WS_F2):#x}")
            apoll_issue(3, "s66", 4, "fl")
        step(sg)
        if sg == PB:
            stamp(6)
            apoll_check(3, "s66", 2, 4, "fl")
    stamp(7)
    apoll_check(3, "s66", 2, 4, "fl")
    stamp(8)
    firstA(NF2, min(NS, PS + 1 + D))
    for sg in range(PS + 1, NS): step(sg)
    e.var = None
    gate('g')
    stamp(9)
    e("""v_and_b32 v12, 31, v0
    v_lshlrev_b32 v12, 7, v12
    v_lshrrev_b32 v13, 5, v0
    v_xor_b32 v13, v13, v5
    v_lshl_add_u32 v12, v13, 4, v12
    v_add_u32 v12, s67, v12""")
    for nb in range(2):
        for a in range(4): e(f"v_xor_b32 v{20+nb*4+a}, {((2*a) ^ nb)*16}, v12")
    for tb in range(2):
        for nb in range(2):
            for a in range(4): e(f"v_add_u32 v{28+(tb*2+nb)*4+a}, {BREG[tb*2+nb]}, v{20+nb*4+a}")
    for tb in range(2):
        for nb in range(2):
            for a in range(4): e(f"ds_write_b128 v{28+(tb*2+nb)*4+a}, {vr(GACC(tb,nb)+4*a,4)}")
    e("s_waitcnt lgkmcnt(0)")
    stamp(10)
    e("s_barrier")
    if ST: e("s_branch L_DUMP")
    e("s_endpgm")

    e("L_CONS:")
    e.vm = []; e.lg = []
    LA = opt.get("la", 5); NFB = 6
    F = lambda f: 8 + (f % NFB) * 4
    XF = lambda n, r: 32 + ((n & 1) * 2 + r) * 4
    XK = lambda p, r: 48 + (p * 2 + r) * 4
    ACC = lambda s, r: 96 + (s * 2 + r) * 4
    AW = [1, 2, 3, 4]; AX = [7, 5]
    e(f"""v_lshrrev_b32 v8, 2, v0
    v_lshrrev_b32 v9, 3, v8
    v_lshlrev_b32 v9, 11, v9
    v_and_b32 v10, 7, v8
    v_lshl_add_u32 v9, v10, 7, v9
    v_and_b32 v10, 3, v0
    v_lshlrev_b32 v10, 3, v10
    v_add_u32 v9, v9, v10
    v_bfe_u32 v11, v0, 3, 2
    v_lshl_add_u32 v1, v11, 5, v9
    v_add_u32 v1, {W1A[0]}, v1
    v_xor_b32 v2, 32, v1
    v_xor_b32 v3, 64, v1
    v_xor_b32 v4, 96, v1
    v_and_b32 v8, 15, v0
    v_lshrrev_b32 v9, 4, v0
    v_lshrrev_b32 v10, 1, v8
    v_xor_b32 v9, v9, v10
    v_lshlrev_b32 v8, 7, v8
    v_lshl_add_u32 v7, v9, 4, v8
    s_lshl_b32 s3, s19, 12
    s_add_u32 s3, s3, {XA[0]}
    v_add_u32 v7, s3, v7
    v_xor_b32 v5, 64, v7""")
    e(f"v_mov_b32 v6, {L_MISC}")
    e("v_mov_b32 v165, 1")
    if not BK: smasks()
    if opt.get("cprio", 2): e(f"s_setprio {opt.get('cprio', 2)}")
    cur = {"w": W1A[0], "x": XA[0]}
    UST = opt.get("ust", 0)
    PEND = []
    DEF = []; NST = [0]; TIM = 0 if UST else opt.get("tim", 2)
    def move(kind, regs, addr):
        d = addr - cur[kind]
        if d:
            for a in regs: e(f"v_add_u32 v{a}, {d & 0xffffffff:#x}, v{a}")
        cur[kind] = addr
    def gemm(ps):
        NSB = 8 if ps == 1 else 5
        NF = 16 * NSB
        kst = (lambda n: n) if ps == 1 else (lambda n: ORD2[n])
        xreg = lambda n, r: XK(kst(n), r) if kst(n) < 6 else XF(n, r)
        def rd(f):
            n, s = divmod(f, NSB)
            for q in range(2):
                if ps == 1:  a, off = AW[s & 3], (n & 1) * 8192 + q * 4096 + (s >> 2) * 1024
                elif s < 2:  a, off = AW[s], (n & 1) * 5120 + q * 1024
                else:        a, off = AW[2], (n & 1) * 5120 + 2048 + q * 1536 + (s - 2) * 32
                yield f"ds_read_b64_tr_b16 v[{F(f)+2*q}:{F(f)+2*q+1}], v{a} offset:{off}"
        def kswitch(n):
            if n % 2 == 0:
                if ps == 1: move("w", AW, W1A[n // 2])
                else:       move("w", AW[:3], W2A[n // 2][1])
                bstamp(8 * (ps - 1) + n // 2)
                e("s_barrier")
                if ps == 2 and not UST:
                    for _ in range(opt.get("tper", 2)):
                        if DEF:
                            for x in DEF.pop(0):
                                if opt.get("nost1") and "buffer_store" in x: continue
                                e(x.replace(" sc1", "") if opt.get("plain1") else x)
                            NST[0] += 1
                    if n // 2 == opt.get("sgk", 3):
                        asig1(4, max(0, NST[0] - 4)); PEND.append(WS_F1)
                    if n // 2 == opt.get("sgh", 5):
                        assert not DEF
                        asig1(24, 0); PEND.append(WS_F1H)
            if NSB > LA or n < 2: xread(n)
        def xread(n):
            p = kst(n)
            if ps == 1 or p >= 6:
                move("x", AX, XA[p >> 1])
                for r in range(2): e.lds(f"ds_read_b128 {vr(xreg(n,r),4)}, v{AX[p&1]} offset:{r*2048}", ("x", n))
        kswitch(0)
        if ps == 1: stamp(2); gate("b0")
        for f in range(LA):
            if f and f % NSB == 0: kswitch(f // NSB)
            for r_ in rd(f): e.lds(r_, f)
        for f in range(NF):
            n, s = divmod(f, NSB)
            nxt = f + LA
            if nxt < NF and nxt % NSB == 0: kswitch(nxt // NSB)
            if NSB <= LA and s == 0 and 1 <= n < 15: xread(n + 1)
            if PEND and nxt % (2 * NSB) == 4: asig2(3, PEND.pop())
            if opt.get("w2f", 1) and f % 2 == 0 and f + 1 < NF: e.lwait([f, f + 1, ("x", n), ("x", (f + 1) // NSB)])
            else: e.lwait([f, ("x", n)])
            if ps == 2 and f == NF - 1 and not opt.get("b16late"): e("s_barrier")
            rds = list(rd(nxt)) if nxt < NF else [None, None]
            for r in range(2):
                acc = vr(ACC(s, r), 4)
                e(f"v_mfma_f32_16x16x32_bf16 {acc}, {vr(F(f),4)}, {vr(xreg(n,r),4)}, {'0' if n == 0 else acc}")
                if rds[r]: e.lds(rds[r], nxt)
    RS = lambda r: 160 + 2 * r
    RQ = lambda r: 32 + 2 * r
    TT = 8
    CSR = [24, 28]
    def epilogue(ps):
        order = (([0, 1, 2, 3, 5, 6, 7, 4] if opt.get('kvfirst') else [5, 6, 7, 2, 3, 4, 0, 1]) if TIM else list(range(8))) if ps == 1 else ([2, 3, 4, 0, 1] if opt.get('b16late') else [0, 1, 2, 3, 4])
        dd = {}
        loc = lambda s: s if ps == 1 else 8 + s
        if ps == 1:
            ldsadd(28, 8, 9)
            ldswait(20, 1, 8, 9)
        e(f"""v_and_b32 v16, 15, v0
        v_lshrrev_b32 v17, 4, v0
        s_lshl_b32 s3, s19, 9
        s_add_u32 s3, s3, {L_ST}
        v_lshl_add_u32 v8, v16, 4, s3
        v_lshlrev_b32 v164, 4, v17
        v_add_u32 v164, {L_ST+2048}, v164
        v_mov_b32 v10, {L_MISC}""")
        if ps == 1:
            for r in range(2): e.lds(f"ds_read_b64 {pk(RS(r))}, v8 offset:{256*r}", "st")
            e.lds("ds_read_b32 v10, v10", "st")
        def csread(n):
            if n < len(order): e.lds(f"ds_read_b128 {vr(CSR[n%2],4)}, v164 offset:{64*loc(order[n])}", ("cs", n))
        csread(0)
        e("v_lshlrev_b32 v166, 4, v0")
        if ps == 1:
            e(f"""s_lshl_b32 s52, s20, 2
            s_add_u32 s52, s52, s19
            s_lshl_b32 s53, s23, 8
            s_add_u32 s53, s53, s52
            s_lshl_b32 s53, s53, 10
            s_mul_i32 s54, s52, 112
            s_mul_i32 s55, s23, 3
            s_add_u32 s55, s55, s54
            s_add_u32 s55, s55, 64
            s_lshl_b32 s55, s55, 10
            s_lshl_b32 s3, s23, 2
            s_add_u32 s54, s54, s3
            s_lshl_b32 s54, s54, 10
            s_add_u32 s54, s54, {WS_H:#x}
            s_add_u32 s55, s55, {WS_H:#x}""")
            if UST:
                e("s_lshl_b32 s3, s19, 12")
                e("v_add_u32 v36, s3, v166")
                e(f"v_add_u32 v37, {W1A[7]}, v36")
                e(f"v_add_u32 v36, {W1A[6]}, v36")
            e.lwait("st")
            e("v_readfirstlane_b32 s61, v10")
        else:
            e("s_mov_b32 s3, 0x3eb8aa3b")
            for q in range(4): e(f"v_mul_f32 v{32+q}, s3, v{160+q}")
            e("s_lshl_b32 s3, s19, 10")
            e(f"s_add_u32 s3, s3, {L_Q}")
            e("v_add_u32 v36, s3, v166")
        for n, s in enumerate(order):
            T = 16 + 4 * (n % 2)
            stg = ps == 1 and UST
            dfr = ps == 1 and TIM and s >= (4 if opt.get('kvfirst') else 2) and not UST
            if dfr: T = ACC(s, 0) if s >= 5 else ACC(s + 3, 1)
            isQ = ps == 2 and s < 2
            isH = (ps == 1 and s >= 4) or (ps == 2 and s >= 2)
            if stg and s == 4: ldswait(28, 4, 38, 39)
            e.lwait(("cs", n))
            c = CSR[n % 2]
            csread(n + 1)
            if opt.get("xnop"): e("s_nop 3")
            if (ps == 2 or opt.get("nopk1", 1)) and opt.get("nopk", 1):
                for r in range(2):
                    sp = RQ(r) if isQ else RS(r)
                    for j in range(4): e(f"v_mul_f32 v{TT+4*r+j}, v{c+j}, v{sp+1}")
                for r in range(2):
                    sp = RQ(r) if isQ else RS(r)
                    for j in range(4): e(f"v_fmac_f32 v{TT+4*r+j}, v{ACC(s,r)+j}, v{sp}")
            else:
                for r in range(2):
                    sp = RQ(r) if isQ else RS(r)
                    for h in range(2):
                        e(f"v_pk_mul_f32 {pk(TT+4*r+2*h)}, {pk(c+2*h)}, {pk(sp)} op_sel:[0,1] op_sel_hi:[1,1]")
                for r in range(2):
                    sp = RQ(r) if isQ else RS(r)
                    for h in range(2):
                        t = TT + 4 * r + 2 * h
                        e(f"v_pk_fma_f32 {pk(t)}, {pk(ACC(s,r)+2*h)}, {pk(sp)}, {pk(t)} op_sel_hi:[1,0,1]")
            for r in range(2):
                for h in range(2):
                    t = TT + 4 * r + 2 * h
                    e(f"v_cvt_pk_bf16_f32 v{T+2*r+h}, v{t}, v{t+1}")
            if isQ or stg: sa = "s_nop 0"
            elif ps == 2: sa = f"s_add_u32 s3, s55, {(s-2)*1024}"
            elif s < 4: sa = f"s_add_u32 s3, s53, {WS_KV + s*0x10000:#x}"
            else: sa = f"s_add_u32 s3, s54, {(s-4)*1024}"
            e("s_nop 2")
            e(f"v_permlane16_swap_b32 v{T}, v{T+2}")
            e(f"v_permlane16_swap_b32 v{T+1}, v{T+3}")
            e(sa if not dfr else "s_nop 0")
            e("s_nop 0")
            if isH:
                for q in (0, 2, 1, 3): e(f"v_pk_max_i16 v{T+q}, v{T+q}, 0")
            if isQ:
                e.lds(f"ds_write_b128 v36, {vr(T,4)} offset:{s*4096}", "qw")
                if s == 1:
                    e.lwait_all()
                    ldsadd(16, 37, 38)
            elif stg: e.lds(f"ds_write_b128 v{36 + (s >> 2)}, {vr(T,4)} offset:{(s&3)*1024}", "qw")
            elif dfr: dd[s] = [sa, f"buffer_store_dwordx4 {vr(T,4)}, v166, {SS}, s3 offen {'' if isH and opt.get('hplain') else 'sc1'}"]
            else:
                e(f"buffer_store_dwordx4 {vr(T,4)}, v166, {SS}, s3 offen {'' if isH and opt.get('hplain') else 'sc1'}")
                NST[0] += 1
                if ps == 2 and s == 4 and opt.get("b16late"): e("s_barrier")
        for s in sorted(dd): DEF.append(dd[s])
    gemm(1)
    gate('p1')
    stamp(3)
    epilogue(1)
    e(f"""v_lshrrev_b32 v8, 2, v0
    v_and_b32 v10, 3, v0
    v_lshlrev_b32 v10, 3, v10
    v_lshl_add_u32 v1, v8, 6, v10
    v_bfe_u32 v11, v0, 4, 1
    v_lshl_add_u32 v1, v11, 5, v1
    v_add_u32 v1, {W2A[0][1]}, v1
    v_xor_b32 v2, 32, v1
    v_mul_u32_u24 v3, 96, v8
    v_add_u32 v3, v3, v10
    v_add_u32 v3, {W2A[0][1]}, v3""")
    cur["w"] = W2A[0][1]
    e.lwait_all()
    stamp(4)
    gemm(2)
    gate('p2')
    bflush()
    stamp(5)
    epilogue(2)
    if BK: smasks()
    e("s_mov_b32 s96, s19")
    e("s_mov_b32 s97, 1")
    e("s_branch L_ATT")

    e("L_UTIL:")
    e.vm = []; e.lg = []
    if opt.get("uprio0", 3): e(f"s_setprio {opt.get('uprio0', 3)}")
    L0, U, A, CL, C0, C1, VE = 16, 24, 40, 48, 64, 72, 80
    e("v_and_b32 v5, 7, v0")
    if opt.get("pfc", 1):
        sk = lab("NOPC")
        e("s_cmp_lg_u32 s19, 3")
        e(f"s_cbranch_scc1 {sk}")
        e("s_getpc_b64 s[64:65]")
        e("L_PCREF:")
        e(f"s_sub_u32 s64, s64, L_PCREF-{name}")
        e("s_subb_u32 s65, s65, 0")
        e("s_lshr_b32 s66, s2, 3")
        e("s_mul_i32 s66, s66, (L_END-%s+4095)/4096*128" % name)
        e("v_lshlrev_b32 v2, 7, v0")
        e("v_add_u32 v2, s66, v2")
        e("v_mov_b32 v3, s65")
        e("v_add_co_u32 v2, vcc, s64, v2")
        e("s_nop 1")
        e("v_addc_co_u32 v3, vcc, 0, v3, vcc")
        e("v_cmp_gt_u32 vcc, (L_END-%s+4095)/4096, v0" % name)
        e("s_nop 1")
        e("s_and_saveexec_b64 s[66:67], vcc")
        e("global_load_dword v163, v[2:3], off")
        e("s_mov_b64 exec, -1")
        e(f"{sk}:")
    PFU = opt.get("pfu", 0)
    def pf_x():
        e("""v_and_b32 v2, 31, v0
        v_lshlrev_b32 v2, 10, v2
        v_lshrrev_b32 v3, 5, v0
        v_lshl_add_u32 v2, v3, 7, v2
        s_lshl_b32 s64, s20, 17
        s_lshl_b32 s65, s22, 15
        s_add_u32 s64, s64, s65
        s_lshl_b32 s65, s19, 8
        s_add_u32 s64, s64, s65""")
        e(f"buffer_load_dword v160, v2, {SX}, s64 offen")
    def pf_w():
        L1, L2, L3, LD = lab("PW"), lab("PW"), lab("PW"), lab("PW")
        e("""s_and_b32 s64, s20, 7
        v_lshlrev_b32 v2, 3, v0
        v_add_u32 v2, s64, v2
        v_mul_u32_u24 v3, 3584, v2
        v_mul_u32_u24 v2, 3072, v2
        s_lshl_b32 s64, s23, 7""")
        e("s_cmp_eq_u32 s19, 1"); e(f"s_cbranch_scc1 {L1}")
        e("s_cmp_eq_u32 s19, 3"); e(f"s_cbranch_scc1 {L3}")
        e("s_add_u32 s65, s64, 1024")
        e("s_lshr_b32 s64, s64, 1")
        e("s_cmp_eq_u32 s19, 0")
        e("s_cselect_b32 s64, s65, s64")
        e(f"buffer_load_dword v161, v2, {SW}, s64 offen")
        e(f"s_branch {LD}")
        e(f"{L3}:")
        e("s_mul_i32 s64, s23, 96")
        e("s_add_u32 s64, s64, 2048")
        e(f"buffer_load_dword v162, v3, {S1}, s64 offen offset:92")
        e(f"{L1}:")
        e(f"buffer_load_dword v161, v3, {S1}, s64 offen")
        e(f"{LD}:")
    if PFU == 1: pf_x(); pf_w()
    UL = opt.get("ul", -1)
    for _ in range(UL + 1): e("s_barrier")
    e(f"v_mov_b32 v{VE}, 0")
    e(f"s_mov_b32 s3, {WS_EP:#x}")
    e.vmem(f"buffer_load_dword v{VE}, v{VE}, {SS}, s3 offen sc1", "rs")
    e(f"""v_lshrrev_b32 v4, 5, v0
    v_and_b32 v6, 31, v0
    v_lshlrev_b32 v6, 4, v6
    v_lshl_add_u32 v6, v4, 10, v6
    v_lshlrev_b32 v{VE+1}, 4, v4
    s_lshl_b32 s64, s20, 7
    s_lshl_b32 s65, s23, 3
    s_add_u32 s64, s64, s65
    s_lshl_b32 s65, s19, 1
    s_add_u32 s64, s64, s65
    s_lshl_b32 s65, s64, 10""")
    e.vmem(f"buffer_load_dwordx4 {vr(L0,4)}, v6, {SX}, s65 offen", "rs")
    e.vmem(f"buffer_load_dwordx4 {vr(L0+4,4)}, v6, {SX}, s65 offen offset:512", "rs")
    e("""s_add_u32 s66, s23, 8
    s_add_u32 s67, s23, 24
    s_cmp_eq_u32 s19, 1
    s_cselect_b32 s66, s67, s66
    s_add_u32 s67, s23, 32
    s_cmp_lt_u32 s23, 8
    s_cselect_b32 s67, s23, s67
    s_cmp_eq_u32 s19, 2
    s_cselect_b32 s66, s67, s66
    s_add_u32 s67, s23, 48
    s_cmp_eq_u32 s19, 3
    s_cselect_b32 s66, s67, s66
    v_lshrrev_b32 v2, 3, v0
    v_lshlrev_b32 v3, 4, v5
    s_cmp_ge_u32 s66, 52
    s_cbranch_scc1 L_CSD
    s_lshl_b32 s67, s66, 7
    s_cmp_ge_u32 s66, 24
    s_cbranch_scc1 L_CSW
    v_mul_u32_u24 v4, 3072, v2
    v_add_u32 v4, v4, v3""")
    e(f"s_mul_i32 s68, s20, {32*3072}")
    e("s_add_u32 s68, s68, s67")
    for t in range(4):
        e(f"buffer_load_dwordx4 {vr(CL+4*t,4)}, v4, {SW}, s68 offen")
        if t < 3: e(f"s_add_u32 s68, s68, {8*3072}")
    e("s_branch L_CSD")
    e("L_CSW:")
    e("v_mul_u32_u24 v4, 3584, v2")
    e("v_add_u32 v4, v4, v3")
    e(f"s_mul_i32 s68, s20, {32*3584}")
    e("s_add_u32 s68, s68, s67")
    e(f"s_sub_u32 s68, s68, {24*128}")
    for t in range(4):
        e(f"buffer_load_dwordx4 {vr(CL+4*t,4)}, v4, {S1}, s68 offen")
        if t < 3: e(f"s_add_u32 s68, s68, {8*3584}")
    e("L_CSD:")
    if PFU == 2:
        e("s_mov_b32 s74, s64")
        pf_x(); pf_w()
        e("s_mov_b32 s64, s74")
    e(f"""s_mov_b32 s69, 0xffff0000
    s_mov_b32 s70, 0x3b000000
    s_lshl_b32 s64, s64, 4
    s_add_u32 s64, s64, {WS_RS:#x}
    v_lshlrev_b32 v14, 4, v0
    s_lshl_b32 s71, s23, 8
    s_add_u32 s72, s71, {512*4}
    v_add_u32 v15, s72, v14
    s_add_u32 s72, s71, {1536*4 - 256}
    v_add_u32 v2, s72, v14
    v_cmp_le_u32 vcc, 16, v0
    s_lshl_b32 s72, s23, 7
    s_sub_u32 s72, s72, 512
    v_cndmask_b32 v15, v15, v2, vcc
    v_add_u32 v2, s72, v14
    v_cmp_le_u32 vcc, 32, v0
    s_mul_i32 s72, s23, 192
    s_add_u32 s72, s72, {2560*4 - 640}
    v_cndmask_b32 v15, v15, v2, vcc
    v_min_u32 v2, 51, v0
    v_lshlrev_b32 v2, 4, v2
    v_add_u32 v2, s72, v2
    v_cmp_le_u32 vcc, 40, v0
    s_nop 1
    v_cndmask_b32 v15, v15, v2, vcc""")
    def piece(n):
        if n == 0:
            e("s_cmp_ge_u32 s66, 52")
            e("s_cbranch_scc1 L_P0A")
            e(f"s_waitcnt vmcnt({4 + (2 if PFU == 2 else 0)})")
            e("s_branch L_P0B")
            e("L_P0A:")
            e(f"s_waitcnt vmcnt({2 if PFU == 2 else 0})")
            e("L_P0B:")
            for q in range(8):
                e(f"v_lshlrev_b32 v{U+2*q}, 16, v{L0+q}")
                e(f"v_and_b32 v{U+2*q+1}, s69, v{L0+q}")
            for q in range(4): e(f"v_add_f32 v{A+q}, v{U+q}, v{U+4+q}")
            for t in range(2, 4):
                for q in range(4): e(f"v_add_f32 v{A+q}, v{A+q}, v{U+4*t+q}")
            e(f"v_add_f32 v{A}, v{A}, v{A+1}")
            e(f"v_add_f32 v{A+2}, v{A+2}, v{A+3}")
            e(f"v_add_f32 v{A}, v{A}, v{A+2}")
            reduce32(e, [A], [A + 1])
            e(f"v_mul_f32 v{A}, s70, v{A}")
            e(f"v_add_u32 v{A+6}, {EPC:#x}, v{VE}")
            e(f"v_mov_b32 v2, {L_MISC}")
            e("v_mov_b32 v3, 0")
            e(f"ds_write_b32 v2, v{A+6}")
            for o in (4, 8, 12, 16, 20, 24, 28): e(f"ds_write_b32 v2, v3 offset:{o}")
        if n == 1:
            for q in range(16): e(f"v_sub_f32 v{U+q}, v{U+q}, v{A}")
            for q in range(4): e(f"v_mul_f32 v{L0+q}, v{U+q}, v{U+q}")
            for q in range(4, 16): e(f"v_fmac_f32 v{L0+(q&3)}, v{U+q}, v{U+q}")
            e(f"v_add_f32 v{L0}, v{L0}, v{L0+1}")
            e(f"v_add_f32 v{L0+2}, v{L0+2}, v{L0+3}")
            e(f"v_add_f32 v{A+4}, v{L0}, v{L0+2}")
            reduce32(e, [A + 4], [A + 5])
            e(f"v_mov_b32 v{A+5}, 0x3727c5ac")
            e(f"v_fma_f32 v{A+4}, v{A+4}, s70, v{A+5}")
            e(f"v_rsq_f32 v{A+4}, v{A+4}")
            e(f"v_readfirstlane_b32 s61, v{A+6}")
            e(f"v_mov_b32 v{A+7}, v{A+6}")
            e(f"v_mul_f32 v{A+5}, v{A}, v{A+4}")
            e(f"v_sub_f32 v{A+5}, 0, v{A+5}")
            e("s_mov_b32 s71, 0xff")
            e(f"v_bfi_b32 v{A+4}, s71, v{A+6}, v{A+4}")
            e(f"v_bfi_b32 v{A+5}, s71, v{A+6}, v{A+5}")
            e("s_mov_b32 exec_lo, 1")
            e("s_mov_b32 exec_hi, 1")
            e(f"buffer_store_dwordx4 {vr(A+4,4)}, v{VE+1}, {SS}, s64 offen sc1")
            e("s_mov_b64 exec, -1")
        if n == 2:
            e(f"s_waitcnt vmcnt({1 + (2 if PFU == 2 else 0)})")
            for q in range(4):
                e(f"v_lshlrev_b32 v{C0+2*q}, 16, v{CL+q}")
                e(f"v_and_b32 v{C0+2*q+1}, s69, v{CL+q}")
            for t in range(1, 4):
                for q in range(4):
                    e(f"v_lshlrev_b32 v{C1+2*q}, 16, v{CL+4*t+q}")
                    e(f"v_and_b32 v{C1+2*q+1}, s69, v{CL+4*t+q}")
                for q in range(8): e(f"v_add_f32 v{C0+q}, v{C0+q}, v{C1+q}")
            e("s_nop 1")
            for q in range(8): e(f"v_add_f32_dpp v{C0+q}, v{C0+q}, v{C0+q} row_ror:8 row_mask:0xf bank_mask:0xf")
            e("s_mov_b32 s72, 0xff00ff00")
            e("s_mov_b32 s73, 0xff00ff00")
            for q in range(4): e(f"v_cndmask_b32 v{C0+q}, v{C0+q}, v{C0+4+q}, s[72:73]")
            for sw in ("v_permlane16_swap_b32", "v_permlane32_swap_b32"):
                for q in range(4): e(f"v_mov_b32 v{C1+q}, v{C0+q}")
                e("s_nop 0")
                for q in range(4): e(f"{sw} v{C0+q}, v{C1+q}")
                for q in range(4): e(f"v_add_f32 v{C0+q}, v{C0+q}, v{C1+q}")
            e("s_mov_b32 s71, 0xff")
            e(f"v_bfe_u32 v{C1+2}, v0, 3, 1")
            for q in range(4): e(f"v_bfi_b32 v{C0+q}, s71, v{A+6}, v{C0+q}")
            e(f"v_lshlrev_b32 v{C1+1}, 5, v5")
            e(f"v_lshl_add_u32 v{C1+1}, v{C1+2}, 4, v{C1+1}")
            e(f"s_mul_i32 s71, s20, {3328*4}")
            e("s_lshl_b32 s72, s66, 8")
            e("s_add_u32 s71, s71, s72")
            e(f"s_add_u32 s71, s71, {WS_CS:#x}")
            e("s_cmp_ge_u32 s66, 52")
            e("s_cbranch_scc1 L_P2S")
            e("s_mov_b64 exec, 0xffff")
            e(f"buffer_store_dwordx4 {vr(C0,4)}, v{C1+1}, {SS}, s71 offen sc1")
            e("s_mov_b64 exec, -1")
            e("L_P2S:")
    def kvsetup():
        e(f"""v_and_b32 v10, 3, v0
        v_min_u32 v10, 2, v10
        s_sub_u32 s76, s20, 2
        v_add_u32 v10, s76, v10
        v_max_i32 v10, 0, v10
        v_lshlrev_b32 v10, 11, v10
        v_bfe_u32 v11, v0, 2, 1
        v_lshl_add_u32 v10, v11, 10, v10
        s_lshr_b32 s76, s23, 1
        s_lshl_b32 s76, s76, 7
        s_add_u32 s76, s76, {WS_F1:#x}
        v_mov_b32 v11, s61
        v_lshlrev_b32 v1, 4, v0
        s_lshr_b32 s52, s19, 1
        s_lshl_b32 s53, s23, 1
        s_add_u32 s53, s53, s52
        s_lshl_b32 s53, s53, 6
        s_and_b32 s54, s19, 1
        s_mul_i32 s54, s54, 6
        s_lshl_b32 s55, s20, 2
        s_add_u32 s54, s54, s55
        s_mul_i32 s55, s19, 6144""")
    def kvdma():
        for t in range(6):
            e(f"s_add_u32 s68, s54, {t}")
            e("s_sub_i32 s68, s68, 8")
            e("s_max_i32 s68, s68, 0")
            e("s_add_u32 s68, s68, s53")
            e("s_lshl_b32 s68, s68, 10")
            e(f"s_add_u32 m0, s55, {L_K + t*1024}")
            e("s_add_u32 s69, s68, 0x200000")
            e(f"buffer_load_dwordx4 v1, {SS}, s68 offen sc1 lds")
            e(f"s_add_u32 m0, s55, {L_V + t*1024}")
            e("s_nop 0")
            e(f"buffer_load_dwordx4 v1, {SS}, s69 offen sc1 lds")
    G0 = 84
    def gather():
        e(f"s_mov_b32 s71, {WS_CS:#x}")
        for g in range(16):
            e(f"buffer_load_dwordx4 {vr(G0+4*g,4)}, v15, {SS}, s71 offen sc1")
            e(f"s_add_u32 s71, s71, {3328*4}")
        e("s_lshl_b32 s71, s20, 11")
        e(f"s_add_u32 s71, s71, {WS_RS:#x}")
        for h in range(2):
            e(f"buffer_load_dwordx4 {vr(G0+64+4*h,4)}, v14, {SS}, s71 offen offset:{h*1024} sc1")
    PK = opt.get("pk", [0, 0, 1]); GK = opt.get("gk", 4); CK = opt.get("ck", 6)
    for n_, kk_ in enumerate(PK):
        if kk_ < 0: piece(n_)
    for k in range(UL + 1, 16):
        if k == PK[0] + 2: e("s_waitcnt lgkmcnt(0)")
        bstamp(k)
        e("s_barrier")
        for n_, kk_ in enumerate(PK):
            if kk_ == k: piece(n_)
        KVK = opt.get("kvk", 14)
        if k == 8:
            kvsetup()
            e("s_mov_b32 s77, 0")
        KVE = opt.get("kve", KVK)
        if k == KVK - 1: e(f"buffer_load_dword v4, v10, {SS}, s76 offen sc1")
        if KVK <= k <= KVE:
            sk, s2_ = lab("KVLATE"), lab("KVSKIP")
            e("s_cmp_lg_u32 s77, 0")
            e(f"s_cbranch_scc1 {s2_}")
            e("s_waitcnt vmcnt(0)")
            e("v_cmp_ne_u32 vcc, v11, v4")
            e("s_nop 1")
            e("s_cmp_lg_u64 vcc, 0")
            e(f"s_cbranch_scc1 {sk}")
            kvdma()
            e("s_mov_b32 s77, 1")
            e(f"s_branch {s2_}")
            e(f"{sk}:")
            if k < KVE: e(f"buffer_load_dword v4, v10, {SS}, s76 offen sc1")
            e(f"{s2_}:")
        PW0 = opt.get("pfw", 0)
        if PW0 and PW0 <= k < 16:
            if k == PW0:
                srd(e, 44, 14, 1792 * 1024)
                srd(e, 48, 8, 512 * 1024)
                e("s_lshr_b32 s78, s2, 3")
                e("s_mul_i32 s79, s78, 57344")
                e("s_mul_i32 s3, s19, 14336")
                e("s_add_u32 s79, s79, s3")
                e("s_lshl_b32 s78, s78, 14")
                e("s_lshl_b32 s3, s19, 12")
                e("s_add_u32 s78, s78, s3")
            per = -(-18 // (opt.get("pfwe", 16) - PW0))
            for j in range(per * (k - PW0), min(18, per * (k - PW0 + 1))):
                if j < 14:
                    e(f"s_add_u32 s3, s79, {j*1024}")
                    e(f"buffer_load_dwordx4 v[120:123], v14, {S2}, s3 offen")
                else:
                    e(f"buffer_load_dwordx4 v[120:123], v14, {SO}, s78 offen offset:{(j-14)*1024}")
        if opt.get("pfl2", 0) and 8 <= k <= 10:
            if k == 8:
                srd(e, 44, 14, 1792 * 1024)
                srd(e, 48, 8, 512 * 1024)
                e("v_lshlrev_b32 v12, 7, v0")
                e("s_lshr_b32 s78, s2, 3")
            j = k - 8
            sk = lab("NOP2")
            if j < 2:
                e("s_mul_i32 s71, s78, 57344")
                e("s_lshl_b32 s72, s19, 13")
                e("s_add_u32 s71, s71, s72")
                if j == 1:
                    e("s_cmp_eq_u32 s19, 3")
                    e(f"s_cbranch_scc1 {sk}")
                    e("s_add_u32 s71, s71, 32768")
                e(f"buffer_load_dword v13, v12, {S2}, s71 offen")
            else:
                e("s_cmp_ge_u32 s19, 2")
                e(f"s_cbranch_scc1 {sk}")
                e("s_lshl_b32 s71, s78, 14")
                e("s_lshl_b32 s72, s19, 13")
                e("s_add_u32 s71, s71, s72")
                e(f"buffer_load_dword v13, v12, {SO}, s71 offen")
            e(f"{sk}:")
        if UST and k == 8:
            e(f"""s_lshl_b32 s3, s19, 12
            v_add_u32 v2, s3, v14
            v_add_u32 v3, {W1A[7]}, v2
            v_add_u32 v2, {W1A[6]}, v2""")
            for s_ in range(8): e(f"ds_read_b128 {vr(16+4*s_,4)}, v{2+(s_>>2)} offset:{(s_&3)*1024}")
            e(f"""s_lshl_b32 s64, s20, 2
            s_add_u32 s64, s64, s19
            s_lshl_b32 s65, s23, 8
            s_add_u32 s65, s65, s64
            s_lshl_b32 s65, s65, 10
            s_mul_i32 s66, s64, 112
            s_lshl_b32 s3, s23, 2
            s_add_u32 s66, s66, s3
            s_lshl_b32 s66, s66, 10
            s_add_u32 s66, s66, {WS_H:#x}
            s_waitcnt lgkmcnt(0)""")
        if UST and k >= 8:
            SP = opt.get("sper", 2)
            for s_ in range(SP * (k - 8), min(8, SP * (k - 7))):
                if s_ < 4: e(f"s_add_u32 s3, s65, {WS_KV + s_*0x10000:#x}")
                else: e(f"s_add_u32 s3, s66, {(s_-4)*1024}")
                e(f"buffer_store_dwordx4 {vr(16+4*s_,4)}, v14, {SS}, s3 offen sc1")
            if k == opt.get("ugk", 12): signal(4, 3, WS_F1, 2, 3, max(0, min(8, SP * (k - 7)) - 4))
            if k == opt.get("ugh", 15): signal(24, 3, WS_F1H, 2, 3)
        if k == opt.get("pf2k", 5) and opt.get("pf2", 1):
            sk = lab("NOPF")
            e("s_cmp_lg_u32 s19, 1")
            e(f"s_cbranch_scc1 {sk}")
            srd(e, 44, 14, 1792 * 1024)
            srd(e, 48, 8, 512 * 1024)
            e("v_lshlrev_b32 v2, 7, v0")
            e("s_mul_i32 s71, s2, 7168")
            e("s_mov_b32 exec_hi, 0xffffff")
            e(f"buffer_load_dword v160, v2, {S2}, s71 offen")
            e("s_lshl_b32 s71, s2, 11")
            e("s_mov_b64 exec, 0xffff")
            e(f"buffer_load_dword v161, v2, {SO}, s71 offen")
            e("s_mov_b64 exec, -1")
            e(f"{sk}:")
        if k in (GK, CK, CK + 1):
            sk = lab("NOPOST")
            e("s_cmp_lg_u32 s19, 0")
            e(f"s_cbranch_scc1 {sk}")
            if k == GK: gather()
            if k == CK:
                e("s_mov_b32 s73, 0x20000")
                e("L_CHK:")
                e("s_waitcnt vmcnt(0)")
                e(f"v_xor_b32 v2, s61, v{G0}")
                for i in list(range(G0 + 1, G0 + 66)) + [G0 + 68, G0 + 69]: e(f"v_bitop3_b32 v2, v2, v{i}, s61 bitop3:0xf6")
                e("v_and_b32 v2, 0xff, v2")
                for i in (66, 67, 70, 71): e(f"v_bitop3_b32 v2, v2, v{G0+i}, s61 bitop3:0xf6")
                e("v_cmp_ne_u32 vcc, 0, v2")
                e("s_sub_u32 s73, s73, 1")
                e("s_cmp_eq_u32 s73, 0")
                e("s_cbranch_scc1 L_GOT")
                e("s_cmp_eq_u64 vcc, 0")
                e("s_cbranch_scc1 L_GOT")
                gather()
                e("s_branch L_CHK")
                e("L_GOT:")
            if k == CK + 1:
                e("s_mov_b32 s71, 0xffffff00")
                for i in list(range(G0, G0 + 66)) + [G0 + 68, G0 + 69]: e(f"v_and_b32 v{i}, s71, v{i}")
                for g in range(1, 16):
                    for h in range(4): e(f"v_add_f32 v{G0+h}, v{G0+h}, v{G0+4*g+h}")
                e(f"v_add_u32 v2, {L_ST}, v14")
                e(f"ds_write_b128 v2, {vr(G0+64,4)}")
                e(f"ds_write_b128 v2, {vr(G0+68,4)} offset:1024")
                e(f"ds_write_b128 v2, {vr(G0,4)} offset:2048")
                e("s_waitcnt lgkmcnt(0)")
                ldsadd(20, 2, 3)
            e(f"{sk}:")
    bflush()
    stamp(3)
    e("s_barrier")
    stamp(4)
    e("s_cmp_lg_u32 s77, 0")
    e("s_cbranch_scc1 L_KVDONE")
    poll(10, "s76", 11, 4)
    kvdma()
    e("L_KVDONE:")
    e(f"v_add_u32 v2, {L_ONE}, v1")
    for q in range(4): e(f"v_mov_b32 v{8+q}, 0x3f803f80")
    e("ds_write_b128 v2, v[8:11]")
    smasks()
    e("v_mov_b32 v6, 0xffff")
    e("v_mov_b32 v7, 0xffff0000")
    for q in range(8):
        e(f"v_cndmask_b32 v{140+q}, 0, v6, s[{64+4*q}:{65+4*q}]")
        e(f"v_cndmask_b32 v12, 0, v7, s[{66+4*q}:{67+4*q}]")
        e(f"v_or_b32 v{140+q}, v{140+q}, v12")
    e("ds_write_b128 v2, v[140:143] offset:1024")
    e("ds_write_b128 v2, v[144:147] offset:2048")
    e("s_add_u32 s96, s19, 4")
    e("s_mov_b32 s97, 0")
    e("s_waitcnt vmcnt(0) lgkmcnt(0)")
    ldsadd(16, 2, 3)
    stamp(5)

    e("L_ATT:")
    e.vm = []; e.lg = []
    Q = 8
    K = lambda u: 12 + 4 * u
    V = lambda u, g: 48 + ((u & 1) * 2 + g) * 4
    S = lambda b: 64 + 16 * b
    P, O = 112, 120
    VNEG, M0_, M1_, NM, MK = 136, 137, 138, 139, 140
    VA, VSTR = 148, 149
    e(f"v_mov_b32 v{VNEG}, {NEG:#x}")
    e(f"""s_and_b32 s3, s96, 3
    s_lshl_b32 s26, s20, 2
    s_add_u32 s26, s26, s3
    s_add_u32 s25, s26, 1
    s_min_u32 s25, s25, 9
    s_lshr_b32 s62, s96, 2
    s_lshl_b32 s27, s23, 1
    s_add_u32 s27, s27, s62
    v_lshlrev_b32 v1, 4, v0
    s_lshl_b32 s63, s96, 10
    s_add_u32 s63, s63, {L_Q}
    v_add_u32 v3, s63, v1
    s_mul_i32 s62, s62, 12288
    s_lshl_b32 s3, s3, 10
    s_add_u32 s3, s3, s62
    s_add_u32 s62, s3, {L_K}
    v_add_u32 v4, s62, v1
    v_lshrrev_b32 v5, 5, v0
    v_lshlrev_b32 v5, 2, v5
    v_bfe_u32 v6, v0, 2, 2
    v_add_u32 v5, v5, v6
    v_lshlrev_b32 v5, 4, v5
    v_bfe_u32 v6, v0, 1, 1
    v_lshl_add_u32 v5, v6, 9, v5
    v_and_b32 v6, 1, v0
    v_lshl_add_u32 v5, v6, 3, v5
    s_add_u32 s3, s3, {L_V + 8192}
    v_add_u32 v5, s3, v5
    v_mov_b32 v6, {L_ONE}
    v_mov_b32 v7, 1024
    s_mov_b32 s98, 0xffff
    s_mov_b32 s99, 0xffff
    v_cndmask_b32 v5, v6, v5, s[98:99]
    v_cndmask_b32 v{VSTR}, 0, v7, s[98:99]
    v_lshlrev_b32 v7, 3, v{VSTR}
    v_sub_u32 v{VA+2}, v5, v7""")
    stamp(6)
    def owed():
        sk = lab("NOOWE")
        e("s_cmp_eq_u32 s97, 0")
        e(f"s_cbranch_scc1 {sk}")
        keepl = list(e.lg)
        signal(12, 3, WS_F1B, 152, 153)
        e.lg = keepl
        e("s_mov_b32 s97, 0")
        e(f"{sk}:")
    if opt.get("owu", 0) == 0: owed()
    ldswait(16, 8, 2, 6)
    e(f"s_setprio {opt.get('aprio', 0)}")
    stamp(7)
    def fill(buf, val, diag):
        for j in range(16):
            a, b = (f"v{VNEG}", val) if diag else (val, f"v{VNEG}")
            e(f"v_cndmask_b32 v{S(buf)+j}, {a}, {b}, s[{64+2*j}:{65+2*j}]")
    def smfma(u, buf, cin):
        e.lwait(("K", u))
        e(f"v_mfma_f32_32x32x16_bf16 {vr(S(buf),16)}, {vr(K(u),4)}, {vr(Q,4)}, {cin}")
    def vread(u, par=None, va=None):
        if va is None:
            if u == 0: e(f"v_mov_b32 v{VA}, v5")
            else: e(f"v_sub_u32 v{VA}, v{VA}, v{VSTR}")
            va = VA
        for g in range(2):
            r = V(u if par is None else par, g)
            for h in range(2): e.lds(f"ds_read_b64_tr_b16 v[{r+2*h}:{r+2*h+1}], v{va} offset:{g*256 + h*128}", ("V", u))
    PD, PFR = S(2), S(2) + 8
    if opt.get("noatt"): e("s_branch L_P2DONE")
    e(f"v_add_u32 v2, {L_ONE}, v1")
    e.lds(f"ds_read_b128 {vr(Q,4)}, v3", "Q")
    for u in [0, 8, 1]: e.lds(f"ds_read_b128 {vr(K(u),4)}, v4 offset:{(8-u)*1024}", ("K", u))
    vread(0); vread(8, 1, VA + 2)
    smfma(0, 0, "0"); smfma(8, 2, "0"); smfma(1, 1, "0")
    e.lwait(("V", 0))
    e.lds(f"ds_read_b128 {vr(MK,4)}, v2 offset:1024", "MK")
    e.lds(f"ds_read_b128 {vr(MK+4,4)}, v2 offset:2048", "MK")
    for u in range(2, 8): e.lds(f"ds_read_b128 {vr(K(u),4)}, v4 offset:{(8-u)*1024}", ("K", u))
    e("s_nop 2")
    s0 = S(0)
    for j in range(16): e(f"v_cndmask_b32 v{s0+j}, v{S(2)+j}, v{s0+j}, s[{64+2*j}:{65+2*j}]")
    for j in range(16): e(f"v_exp_f32 v{s0+j}, v{s0+j}")
    for q in range(8): e(f"v_cvt_pk_bf16_f32 v{P+q}, v{s0+2*q}, v{s0+2*q+1}")
    e.lwait("MK")
    for q in range(8): e(f"v_and_b32 v{PD+q}, v{MK+q}, v{P+q}")
    e.lwait(("V", 8))
    e(f"v_mfma_f32_32x32x16_bf16 {vr(O,16)}, {vr(V(0,0),4)}, {vr(PD,4)}, 0")
    for q in range(8): e(f"v_bfi_b32 v{PFR+q}, v{MK+q}, 0, v{P+q}")
    e(f"v_mfma_f32_32x32x16_bf16 {vr(O,16)}, {vr(V(0,1),4)}, {vr(PD+4,4)}, {vr(O,16)}")
    e("s_cmp_lt_u32 s25, 9")
    e("s_cbranch_scc1 L_NOFAR")
    e(f"v_mfma_f32_32x32x16_bf16 {vr(O,16)}, {vr(V(1,0),4)}, {vr(PFR,4)}, {vr(O,16)}")
    e(f"v_mfma_f32_32x32x16_bf16 {vr(O,16)}, {vr(V(1,1),4)}, {vr(PFR+4,4)}, {vr(O,16)}")
    e("L_NOFAR:")
    vread(1)
    e("s_cmp_eq_u32 s25, 1")
    e("s_cbranch_scc1 L_FCHK")
    def pv(u, g): e(f"v_mfma_f32_32x32x16_bf16 {vr(O,16)}, {vr(V(u,g),4)}, {vr(P+4*g,4)}, {vr(O,16)}")
    for u in range(1, 8):
        s_ = S(u % 2)
        if u + 1 <= 7: smfma(u + 1, (u + 1) % 2, "0")
        for j in range(2): e(f"v_exp_f32 v{s_+j}, v{s_+j}")
        if u > 1: pv(u - 1, 1)
        if u + 1 <= 7: vread(u + 1)
        for j in range(2, 8): e(f"v_exp_f32 v{s_+j}, v{s_+j}")
        for q in range(4): e(f"v_cvt_pk_bf16_f32 v{P+q}, v{s_+2*q}, v{s_+2*q+1}")
        for j in range(8, 10): e(f"v_exp_f32 v{s_+j}, v{s_+j}")
        e.lwait(("V", u))
        pv(u, 0)
        for j in range(10, 16): e(f"v_exp_f32 v{s_+j}, v{s_+j}")
        for q in range(4, 8): e(f"v_cvt_pk_bf16_f32 v{P+q}, v{s_+2*q}, v{s_+2*q+1}")
        if u == opt.get("owu", 0): owed()
        if u < 7:
            e(f"s_cmp_eq_u32 s25, {u+1}")
            e(f"s_cbranch_scc1 L_FX{u&1}")
    e("L_FX1:")
    e("s_nop 1")
    pv(1, 1)
    e("s_branch L_FCHK")
    e("L_FX0:")
    e("s_nop 1")
    pv(0, 1)
    e("L_FCHK:")
    if opt.get("owu", 0): owed()
    e("s_mov_b32 s52, 0x1f800000")
    e("s_mov_b32 s53, 0x5f800000")
    e("s_mov_b32 s3, 0x7f800000")
    e("s_waitcnt lgkmcnt(0)")
    e("s_nop 7")
    e(f"v_add_f32 v6, |v{O}|, |v{O+1}|")
    e(f"v_add_f32 v7, |v{O+2}|, |v{O+3}|")
    e(f"v_add_f32 v2, |v{O+4}|, |v{O+5}|")
    e(f"v_add_f32 v3, |v{O+6}|, |v{O+7}|")
    e(f"v_cmp_le_f32 s[62:63], s52, v{O+8}")
    e(f"v_cmp_ge_f32 s[98:99], s53, v{O+8}")
    e("v_add_f32 v6, v6, v7")
    e("v_add_f32 v2, v2, v3")
    e("v_add_f32 v6, v6, v2")
    e("s_and_b64 s[62:63], s[62:63], s[98:99]")
    e("v_cmp_gt_f32 vcc, s3, v6")
    e("s_nop 0")
    e("s_and_b64 s[62:63], s[62:63], vcc")
    e("s_cmp_eq_u64 s[62:63], -1")
    if opt.get("forceslow"): e("s_cmp_eq_u32 s62, 12345")
    e("s_cbranch_scc1 L_P2DONE")
    e.lg = []
    e(f"v_mov_b32 v{M0_}, v{VNEG}")
    e(f"v_mov_b32 v{M1_}, v{VNEG}")
    fill(0, "0", True)
    e("s_nop 1")
    smfma(0, 0, vr(S(0), 16))
    smfma(1, 1, "0")
    for u in range(9):
        if u + 2 <= 8:
            if u + 2 == 8:
                fill((u + 2) % 3, "0", False); e("s_nop 1")
                smfma(u + 2, (u + 2) % 3, vr(S((u + 2) % 3), 16))
            else:
                smfma(u + 2, (u + 2) % 3, "0")
        if u == 0: e("s_nop 9")
        for q in range(8):
            m = M0_ + (q & 1)
            e(f"v_max3_f32 v{m}, v{S(u%3)+2*q}, v{S(u%3)+2*q+1}, v{m}")
        if u < 8:
            e(f"s_cmp_eq_u32 s25, {u+1}")
            e("s_cbranch_scc1 L_P1DONE")
    e("L_P1DONE:")
    vread(0)
    e(f"v_max_f32 v{M0_}, v{M0_}, v{M1_}")
    e(f"v_mov_b32 v{M1_}, v{M0_}")
    e("s_nop 1")
    e(f"v_permlane32_swap_b32 v{M0_}, v{M1_}")
    e("s_nop 1")
    e(f"v_max_f32 v{M0_}, v{M0_}, v{M1_}")
    e(f"v_sub_f32 v{NM}, 0, v{M0_}")
    e("s_nop 3")
    CB = S(2)
    for j in range(16): e(f"v_mov_b32 v{CB+j}, v{NM}")
    fill(0, f"v{NM}", True)
    e("s_nop 1")
    smfma(0, 0, vr(S(0), 16))
    for u in range(9):
        s = S(u % 2)
        if u + 1 <= 8:
            nb_ = (u + 1) % 2
            if u + 1 == 8:
                fill(nb_, f"v{NM}", False); e("s_nop 1")
                smfma(u + 1, nb_, vr(S(nb_), 16))
            else:
                smfma(u + 1, nb_, vr(CB, 16))
            vread(u + 1)
        if u == 0: e("s_nop 6")
        for j in range(8): e(f"v_exp_f32 v{s+j}, v{s+j}")
        for q in range(4): e(f"v_cvt_pk_bf16_f32 v{P+q}, v{s+2*q}, v{s+2*q+1}")
        for j in range(8, 16): e(f"v_exp_f32 v{s+j}, v{s+j}")
        e.lwait(("V", u))
        e(f"v_mfma_f32_32x32x16_bf16 {vr(O,16)}, {vr(V(u,0),4)}, {vr(P,4)}, {'0' if u == 0 else vr(O,16)}")
        for q in range(4, 8): e(f"v_cvt_pk_bf16_f32 v{P+q}, v{s+2*q}, v{s+2*q+1}")
        e("s_nop 1")
        e(f"v_mfma_f32_32x32x16_bf16 {vr(O,16)}, {vr(V(u,1),4)}, {vr(P+4,4)}, {vr(O,16)}")
        if u < 8:
            e(f"s_cmp_eq_u32 s25, {u+1}")
            e("s_cbranch_scc1 L_P2X")
    e("L_P2X:")
    e("s_waitcnt lgkmcnt(0)")
    e("s_nop 12")
    e("L_P2DONE:")
    e("s_lshl_b32 s3, s26, 5")
    e("s_add_u32 s3, s3, s27")
    e("s_lshl_b32 s3, s3, 10")
    e(f"s_add_u32 s3, s3, {WS_O:#x}")
    e(f"v_rcp_f32 v7, v{O+8}")
    e("s_nop 0")
    for j in range(8): e(f"v_mul_f32 v{O+j}, v{O+j}, v7")
    for q in range(4): e(f"v_cvt_pk_bf16_f32 v{P+q}, v{O+2*q}, v{O+2*q+1}")
    e(f"buffer_store_dwordx4 {vr(P,4)}, v1, {SS}, s3 offen {'' if opt.get('hplain') else 'sc1'}")
    gate('att')
    stamp(8)
    signal(8, 7, WS_F2)
    stamp(9)
    e("s_cmp_lg_u32 s2, 0")
    e("s_cbranch_scc1 L_FIN")
    e("s_cmp_lg_u32 s96, 1")
    e("s_cbranch_scc1 L_FIN")
    e("v_lshlrev_b32 v6, 7, v0")
    e("s_mov_b32 s63, 0x20000")
    e("L_BCHK:")
    for g in range(4):
        e(f"s_mov_b32 s62, {WS_F2 + g*8192:#x}")
        e(f"buffer_load_dword v{8+g}, v6, {SS}, s62 offen sc1")
    e("s_waitcnt vmcnt(0)")
    e("v_xor_b32 v7, s61, v8")
    for i in range(9, 12): e(f"v_bitop3_b32 v7, v7, v{i}, s61 bitop3:0xf6")
    e("v_cmp_ne_u32 vcc, 0, v7")
    e("s_sub_u32 s63, s63, 1")
    e("s_cmp_eq_u32 s63, 0")
    e("s_cbranch_scc1 L_FIN")
    e("s_cmp_lg_u64 vcc, 0")
    e("s_cbranch_scc1 L_BCHK")
    e("s_mov_b64 exec, 1")
    e("v_mov_b32 v6, 0")
    e("v_mov_b32 v7, s61")
    e(f"s_mov_b32 s62, {WS_EP:#x}")
    e(f"buffer_store_dword v7, v6, {SS}, s62 offen sc1")
    e("s_mov_b64 exec, -1")
    e("L_FIN:")
    e.vm = []; e.lg = []
    srd(e, 28, 10, 2048 * 1024)
    e(f"""v_lshrrev_b32 v7, 3, v0
    v_and_b32 v14, 7, v0
    v_lshlrev_b32 v8, 4, v14
    v_lshl_add_u32 v2, v7, 10, v8
    s_lshl_b32 s62, s58, 16
    s_lshl_b32 s3, s96, 13
    s_add_u32 s62, s62, s3
    s_lshl_b32 s3, s59, 7
    s_add_u32 s62, s62, s3""")
    e(f"buffer_load_dwordx4 v[8:11], v2, {SX}, s62 offen")
    e(f"""s_and_b32 s3, s96, 3
    s_lshl_b32 s3, s3, 10
    s_cmp_ge_u32 s96, 4
    s_mov_b32 s63, {BREG[0]}
    s_cselect_b32 s63, {BREG[2]}, s63
    s_mov_b32 s64, {BREG[1]}
    s_cselect_b32 s64, {BREG[3]}, s64
    s_add_u32 s63, s63, s3
    s_add_u32 s64, s64, s3
    v_and_b32 v12, 3, v0
    v_lshlrev_b32 v12, 1, v12
    v_xor_b32 v12, v12, v7
    v_bfe_u32 v13, v0, 2, 1
    v_xor_b32 v12, v12, v13
    v_lshlrev_b32 v12, 4, v12
    v_lshl_add_u32 v12, v7, 7, v12
    v_mov_b32 v15, s63
    v_mov_b32 v16, s64
    v_cmp_eq_u32 vcc, 1, v13
    s_nop 1
    v_cndmask_b32 v15, v15, v16, vcc
    v_add_u32 v24, v15, v12
    v_xor_b32 v25, 16, v24""")
    stamp(10)
    e("s_barrier")
    stamp(11)
    R = lambda src, h: 48 + src * 8 + h * 4
    for src in range(4):
        for h in range(2): e.lds(f"ds_read_b128 {vr(R(src,h),4)}, v{24+h} offset:{src*4096}", src)
    e("s_mov_b32 s3, 0xffff0000")
    e("s_waitcnt vmcnt(0)")
    for q in range(4):
        e(f"v_lshlrev_b32 v{32+2*q}, 16, v{8+q}")
        e(f"v_and_b32 v{33+2*q}, s3, v{8+q}")
    for src in range(4):
        e.lwait(src)
        for q in range(4): e(f"v_pk_add_f32 {pk(32+2*q)}, {pk(32+2*q)}, {pk(R(src,0)+2*q)}")
    for q in range(4): e(f"v_cvt_pk_bf16_f32 v{40+q}, v{32+2*q}, v{33+2*q}")
    e("buffer_store_dwordx4 v[40:43], v2, s[28:31], s62 offen " + opt.get("ost", "nt"))
    if opt.get("deadline"):
        e("v_readlane_b32 s4, v167, 0")
        e("L_DLY:")
        e("s_memrealtime s[6:7]")
        e("s_waitcnt lgkmcnt(0)")
        e("s_sub_u32 s8, s6, s4")
        e(f"s_cmp_lt_u32 s8, {opt['deadline']}")
        e("s_cbranch_scc1 L_DLY")
    if opt.get("delay"):
        tm = "s_memrealtime" if opt.get("delayrt") else "s_memtime"
        e(f"{tm} s[4:5]")
        e("s_waitcnt lgkmcnt(0)")
        e("L_DLY:")
        e(f"{tm} s[6:7]")
        e("s_waitcnt lgkmcnt(0)")
        e("s_sub_u32 s8, s6, s4")
        e(f"s_cmp_lt_u32 s8, {opt['delay']}")
        e("s_cbranch_scc1 L_DLY")
    if ST:
        e("L_DUMP:")
        stamp(12)
        e("s_waitcnt vmcnt(0)")
        stamp(13); stamp(14, True)
        if opt.get("dbgst") is not None:
            e("s_load_dwordx2 s[4:5], s[0:1], 56")
            e(f"s_cmp_lg_u32 s2, {opt['dbgst']}")
            e("s_cbranch_scc1 L_END")
            e("s_cmp_lg_u32 s18, 4")
            e("s_cbranch_scc1 L_END")
            e(f"v_readlane_b32 s6, v{VST}, 1")
            e(f"v_readlane_b32 s7, v{VST}, 0")
            e("s_waitcnt lgkmcnt(0)")
            e(f"v_subrev_u32 v3, s6, v{VST}")
            e(f"v_subrev_u32 v4, s7, v{VST}")
            e("v_cmp_eq_u32 vcc, 14, v0")
            e("s_nop 1")
            e("v_cndmask_b32 v3, v3, v4, vcc")
            e("v_lshlrev_b32 v2, 2, v0")
            e("s_mov_b64 exec, 0xffff")
            e("global_store_dword v2, v3, s[4:5]")
            e("s_endpgm")
        e("s_mul_i32 s3, s2, 12")
        e("s_add_u32 s3, s3, s18")
        e("s_lshl_b32 s3, s3, 7")
        e("s_add_u32 s3, s3, 0x1000000")
        e("v_lshl_add_u32 v2, v0, 2, s3")
        e("s_mov_b64 exec, 0xffffffff")
        e(f"global_store_dword v2, v{VST}, s[16:17]")
    e("L_END:")
    e("s_endpgm")
    return name, e.text(), kd(name, 168), (256, 768, LDS)

def build(opt, path):
    n, t, k, (g, b, lds) = gen(opt)
    ref = open(f"cdna_kernels/{NAME}.s.ref").read().split("\n")
    head = [l for l in ref if l.startswith(";") and "@launch" not in l and "Override launch" not in l and "grid=ceil" not in l]
    s = "\n".join(head[:10]) + "\n"
    dm = opt.get("dummy")
    if dm:
        ll = [f"; @launch kernel=dum_kernel grid=({dm[0]},1,1) block=({dm[1]},1,1) lds={dm[2]}\n", f"; @launch kernel={n} grid=({g},1,1) block=({b},1,1) lds={lds}\n"]
        s += "".join(ll if dm[4] == 0 else ll[::-1])
    else: s += f"; @launch grid=({g},1,1) block=({b},1,1) lds={lds}\n"
    s += '.amdgcn_target "amdgcn-amd-amdhsa--gfx950"\n.text\n'
    if dm:
        s += """.globl dum_kernel
.p2align 8
.type dum_kernel,@function
dum_kernel:
  s_memrealtime s[4:5]
  s_waitcnt lgkmcnt(0)
L_DD:
  s_memrealtime s[6:7]
  s_waitcnt lgkmcnt(0)
  s_sub_u32 s8, s6, s4
  s_cmp_lt_u32 s8, 1000
  s_cbranch_scc1 L_DD
  s_endpgm
"""
        k = k + ".p2align 6\n" + kd("dum_kernel", dm[3])
    s += f".globl {n}\n.p2align 8\n.type {n},@function\n" + t
    s += '.section .rodata,"a"\n.p2align 6\n' + k
    open(path, "w").write(s)

if __name__ == "__main__":
    import sys, json
    opt = json.loads(sys.argv[2]) if len(sys.argv) > 2 else {}
    build(opt, sys.argv[1])
```

```python
from emit import *
from alloc import plan3, plan4

NAME = "parallel_sum__sliding_block__dense_activation_relu__prompt"
WS_KV, WS_H, WS_O = 0, 0x600000, 0xD00000
WS_RS = 0xF00000
WS_CS = 0xF10000
WS_EP = 0xF80000
WS_F1, WS_F1B, WS_F2, WS_F1H = 0xF90000, 0xFA0000, 0xFB0000, 0xFC0000
WS_BYTES = 0x1000000
EPC = 0x9E3779B9
L_ST = 158720
L_MISC = L_ST + 3072
LDS = L_MISC + 64
ORD2 = list(range(6, 16)) + list(range(6))
NEG = 0xf149f2ca
pk = lambda a: f"v[{a}:{a+1}]"
SW, S1, SX, SS, S2, SO = "s[28:31]", "s[32:35]", "s[36:39]", "s[40:43]", "s[44:47]", "s[48:51]"
VST = 167

def reduce32(e, regs, tmp):
    for ctl in ("quad_perm:[1,0,3,2]", "quad_perm:[2,3,0,1]", "row_half_mirror", "row_mirror"):
        e("s_nop 1")
        for r in regs: e(f"v_add_f32_dpp v{r}, v{r}, v{r} {ctl} row_mask:0xf bank_mask:0xf")
    for r, t in zip(regs, tmp): e(f"v_mov_b32 v{t}, v{r}")
    e("s_nop 1")
    for r, t in zip(regs, tmp): e(f"v_permlane16_swap_b32 v{r}, v{t}")
    e("s_nop 1")
    for r, t in zip(regs, tmp): e(f"v_add_f32 v{r}, v{r}, v{t}")

def gen(opt):
    e = Em()
    name = NAME + "_kernel"
    ST = opt.get("stamps")
    NB = 6
    NT = opt.get("nt", "")
    PL = opt.get("pl", 2)
    XA, W1A, W2A, FIN = plan3(PL, opt.get("w2l", 2), NB, opt.get("ust", 0))
    if not opt.get("ust", 0): XA, W1A, W2A, FIN = plan4(PL, NB, opt.get("w2t", 5), opt.get("kvlow", 1))
    BREG = [FIN[f"B{j}"][1] for j in range(NB)]
    BT = [max(FIN[f"B{j}"][0], min(16, opt.get("bt0", 15) + j)) for j in range(NB)]
    L_K, L_V, L_Q, L_ONE = FIN["K"], FIN["V"], FIN["Q"], FIN["ONES"]
    def stamp(i, rt=False):
        if not ST: return
        e(("s_memrealtime" if rt else "s_memtime") + " s[100:101]")
        e("s_waitcnt lgkmcnt(0)")
        e(f"v_writelane_b32 v{VST}, s100, {i}")
        if opt.get("rtall") and not rt:
            e("s_memrealtime s[100:101]")
            e("s_waitcnt lgkmcnt(0)")
            e(f"v_writelane_b32 v{VST}, s100, {16+i}")
    BK = opt.get("bk", [])
    def bstamp(k):
        if ST and k in BK: e(f"s_memtime s[{80+2*BK.index(k)}:{81+2*BK.index(k)}]")
    def bflush():
        if ST and BK:
            e("s_waitcnt lgkmcnt(0)")
            for i in range(len(BK)): e(f"v_writelane_b32 v{VST}, s{80+2*i}, {16+i}")
    uid = [0]
    def lab(p):
        uid[0] += 1
        return f"{p}_{uid[0]}"
    def apoll_issue(voff, soff, vd, tag):
        e.vmem(f"buffer_load_dword v{vd}, v{voff}, {SS}, {soff} offen sc1", tag)
    def apoll_check(voff, soff, vtag, vd, tag):
        D = lab("AOK")
        e.vwait(tag)
        e(f"v_cmp_ne_u32 vcc, v{vtag}, v{vd}")
        e("s_nop 1")
        e("s_cmp_eq_u64 vcc, 0")
        e(f"s_cbranch_scc1 {D}")
        keep = list(e.vm); keepl = list(e.lg)
        poll(voff, soff, vtag, vd)
        e.vm = keep; e.lg = keepl
        e(f"{D}:")
    def poll(voff, soff, vtag, vd):
        L, D = lab("POLL"), lab("POLLED")
        e("s_mov_b32 s63, 0x40000")
        e(f"{L}:")
        e(f"buffer_load_dword v{vd}, v{voff}, {SS}, {soff} offen sc1")
        e("s_waitcnt vmcnt(0) lgkmcnt(0)")
        e(f"v_cmp_ne_u32 vcc, v{vtag}, v{vd}")
        e("s_sub_u32 s63, s63, 1")
        e("s_cmp_eq_u32 s63, 0")
        e(f"s_cbranch_scc1 {D}")
        e("s_cmp_lg_u64 vcc, 0")
        e(f"s_cbranch_scc1 {L}")
        e(f"{D}:")
        e.vm = []; e.lg = []
    def ldswait(off, val, va, vb):
        L, D = lab("LW"), lab("LWOK")
        e(f"v_mov_b32 v{va}, {L_MISC}")
        e("s_mov_b32 s63, 0x400000")
        e(f"{L}:")
        e(f"ds_read_b32 v{vb}, v{va} offset:{off}")
        e("s_sub_u32 s63, s63, 1")
        e("s_waitcnt lgkmcnt(0)")
        e(f"v_readfirstlane_b32 s62, v{vb}")
        e("s_cmp_eq_u32 s63, 0")
        e(f"s_cbranch_scc1 {D}")
        e(f"s_cmp_ge_u32 s62, {val}")
        e(f"s_cbranch_scc1 {D}")
        e("s_sleep 1")
        e(f"s_branch {L}")
        e(f"{D}:")
        e.lg = []
    def ldsadd(off, va, vb):
        e(f"v_mov_b32 v{va}, {L_MISC}")
        e(f"v_mov_b32 v{vb}, 1")
        e("s_mov_b64 exec, 1")
        e(f"ds_add_u32 v{va}, v{vb} offset:{off}")
        e("s_mov_b64 exec, -1")
    def smasks():
        for j in range(16):
            b0 = (j >> 2) * 8 + (j & 3)
            e(f"s_mov_b32 s{64+2*j}, {(0xffffffff << b0) & 0xffffffff:#x}")
            e(f"s_mov_b32 s{65+2*j}, {(0xffffffff << (b0+4)) & 0xffffffff:#x}")
    def asig1(coff, vm):
        e(f"s_waitcnt vmcnt({vm})")
        e("s_mov_b64 exec, 1")
        e.lds(f"ds_add_rtn_u32 v164, v6, v165 offset:{coff}", "sg")
        e("s_mov_b64 exec, -1")
    def asig2(last, base):
        N = lab("NOFLAG")
        e.lwait("sg")
        e("v_readfirstlane_b32 s63, v164")
        e(f"s_add_u32 s62, s24, {base:#x}")
        e(f"s_cmp_lg_u32 s63, {last}")
        e(f"s_cbranch_scc1 {N}")
        e("v_mov_b32 v164, s61")
        e("s_mov_b64 exec, 1")
        e(f"buffer_store_dword v164, off, {SS}, s62 sc1")
        e("s_mov_b64 exec, -1")
        e(f"{N}:")
    def signal(coff, last, base, va=2, vb=3, vm=0):
        N = lab("NOFLAG")
        e(f"s_waitcnt vmcnt({vm})")
        e(f"v_mov_b32 v{va}, {L_MISC}")
        e(f"v_mov_b32 v{vb}, 1")
        e("s_mov_b64 exec, 1")
        e(f"ds_add_rtn_u32 v{vb}, v{va}, v{vb} offset:{coff}")
        e(f"s_add_u32 s62, s24, {base:#x}")
        e("s_waitcnt lgkmcnt(0)")
        e(f"v_readfirstlane_b32 s63, v{vb}")
        e(f"s_cmp_lg_u32 s63, {last}")
        e(f"s_cbranch_scc1 {N}")
        e(f"v_mov_b32 v{va}, 0")
        e(f"v_mov_b32 v{vb}, s61")
        e(f"buffer_store_dword v{vb}, v{va}, {SS}, s62 offen sc1")
        e(f"{N}:")
        e("s_mov_b64 exec, -1")
        e.lg = []

    e(f"{name}:")
    e("s_cmp_ge_u32 s2, 256")
    e("s_cbranch_scc1 L_END")
    stamp(0, True); stamp(1)
    def gate(nm):
        if opt.get("gate") == nm:
            L = lab("GATE")
            e("v_readlane_b32 s98, v167, 0")
            e(f"{L}:")
            e(("s_memtime" if opt.get("gcyc") else "s_memrealtime") + " s[100:101]")
            e("s_waitcnt lgkmcnt(0)")
            e("s_sub_u32 s99, s100, s98")
            e(f"s_cmp_lt_u32 s99, {opt.get('gcyc', 3000)}")
            e(f"s_cbranch_scc1 {L}")
    if opt.get("deadline") or opt.get("gate"): e(("s_memtime" if opt.get("gcyc") else "s_memrealtime") + " s[98:99]"); e("s_waitcnt lgkmcnt(0)"); e("v_writelane_b32 v167, s98, 0")
    e("s_load_dwordx4 s[4:7], s[0:1], 0")
    e("s_load_dwordx4 s[12:15], s[0:1], 32")
    e("s_load_dwordx2 s[16:17], s[0:1], 64")
    e("s_load_dwordx2 s[8:9], s[0:1], 16")
    e("s_load_dwordx2 s[10:11], s[0:1], 48")
    e("v_lshrrev_b32 v1, 6, v0")
    e("v_and_b32 v0, 63, v0")
    e("v_readfirstlane_b32 s18, v1")
    e("""s_and_b32 s3, s2, 1
    s_lshl_b32 s20, s3, 3
    s_lshr_b32 s24, s2, 5
    s_add_u32 s20, s20, s24
    s_bfe_u32 s21, s2, 0x20001
    s_bfe_u32 s22, s2, 0x20003
    s_lshl_b32 s23, s21, 2
    s_add_u32 s23, s23, s22
    s_lshl_b32 s24, s20, 4
    s_add_u32 s24, s24, s23
    s_lshl_b32 s24, s24, 7
    s_and_b32 s19, s18, 3
    s_lshl_b32 s3, s3, 2
    s_add_u32 s58, s3, s21
    s_lshl_b32 s58, s58, 2
    s_lshr_b32 s59, s2, 6
    s_add_u32 s58, s58, s59
    s_bfe_u32 s59, s2, 0x30003""")
    if opt.get("map2", 0):
        e("""s_and_b32 s20, s2, 3
        s_lshl_b32 s20, s20, 2
        s_lshr_b32 s3, s2, 6
        s_add_u32 s20, s20, s3
        s_bfe_u32 s23, s2, 0x10002
        s_lshl_b32 s23, s23, 3
        s_bfe_u32 s3, s2, 0x30003
        s_add_u32 s23, s23, s3
        s_lshl_b32 s24, s20, 4
        s_add_u32 s24, s24, s23
        s_lshl_b32 s24, s24, 7""")
    if opt.get("map3", 0):
        e("""s_and_b32 s20, s2, 7
        s_lshl_b32 s20, s20, 1
        s_lshr_b32 s3, s2, 7
        s_add_u32 s20, s20, s3
        s_bfe_u32 s23, s2, 0x40003
        s_lshl_b32 s24, s20, 4
        s_add_u32 s24, s24, s23
        s_lshl_b32 s24, s24, 7""")
    if opt.get("own", 1):
        e("s_lshl_b32 s58, s20, 1")
        e("s_lshr_b32 s59, s23, 3")
        e("s_add_u32 s58, s58, s59")
        e("s_and_b32 s59, s23, 7")
    e("s_waitcnt lgkmcnt(0)")
    if opt.get("wsoff"):
        e(f"s_add_u32 s16, s16, {opt['wsoff'] << 20:#x}")
        e("s_addc_u32 s17, s17, 0")
    srd(e, 36, 4, 2048 * 1024)
    srd(e, 28, 6, 512 * 3072)
    srd(e, 32, 12, 512 * 3584)
    srd(e, 40, 16, WS_BYTES)
    e("s_cmp_ge_u32 s18, 8")
    e("s_cbranch_scc1 L_UTIL")
    e("s_cmp_ge_u32 s18, 4")
    e("s_cbranch_scc1 L_CONS")

    e(f"""v_and_b32 v5, 7, v0
    v_lshrrev_b32 v2, 3, v0
    v_lshrrev_b32 v3, 4, v0
    v_xor_b32 v3, v3, v5
    v_lshlrev_b32 v2, 10, v2
    v_lshl_add_u32 v12, v3, 4, v2
    v_xor_b32 v13, 64, v12
    s_lshl_b32 s65, s20, 17
    s_lshl_b32 s3, s18, 15
    s_add_u32 s65, s65, s3
    s_lshl_b32 s67, s18, 12""")
    def issueX(P):
        e(f"s_add_u32 m0, s67, {XA[P]}")
        e(f"s_add_u32 s74, s65, {P*128}")
        for a in range(4):
            e.vmem(f"buffer_load_dwordx4 v{12+(a&1)}, {SX}, s74 offen offset:{a*1024} {NT} lds", ("x", P))
            if a < 3: e(f"s_add_u32 s74, s74, {8192-1024}")
    issueX(0)
    e("""v_lshrrev_b32 v2, 5, v0
    v_bfe_u32 v3, v0, 3, 2
    v_lshl_add_u32 v3, v2, 3, v3
    v_bfe_u32 v4, v0, 4, 2
    v_lshlrev_b32 v4, 1, v4
    v_xor_b32 v4, v4, v5
    v_lshlrev_b32 v4, 4, v4
    v_mul_u32_u24 v10, 3072, v3
    v_add_u32 v10, v10, v4
    v_mul_u32_u24 v11, 3584, v3
    v_add_u32 v11, v11, v4
    s_lshr_b32 s52, s18, 1
    s_lshl_b32 s52, s52, 5
    s_and_b32 s62, s18, 1
    s_lshl_b32 s3, s62, 2
    s_add_u32 s52, s52, s3
    s_lshl_b32 s3, s23, 7
    s_mul_i32 s53, s52, 3072
    s_add_u32 s53, s53, s3
    s_add_u32 s53, s53, 1024
    s_mul_i32 s54, s52, 3584
    s_add_u32 s54, s54, s3""")
    def issueW(c):
        for ah in range(2):
            e(f"s_add_u32 m0, s67, {W1A[c] + ah*2048}")
            e(f"s_add_u32 s74, s53, {(64*c + 16*ah)*3072}")
            e.vmem(f"buffer_load_dwordx4 v10, {SW}, s74 offen {NT} lds", ("w", c))
            e(f"s_add_u32 m0, s67, {W1A[c] + ah*2048 + 1024}")
            e(f"s_add_u32 s74, s54, {(64*c + 16*ah)*3584}")
            e.vmem(f"buffer_load_dwordx4 v11, {S1}, s74 offen {NT} lds", ("w", c))
    def esetup():
        e("""v_lshrrev_b32 v2, 4, v0
        v_bfe_u32 v3, v0, 2, 2
        v_lshl_add_u32 v3, v2, 3, v3
        v_mul_u32_u24 v16, 3072, v3
        v_and_b32 v2, 1, v2
        v_lshlrev_b32 v2, 1, v2
        v_and_b32 v3, 3, v0
        v_xor_b32 v2, v2, v3
        v_lshl_add_u32 v16, v2, 4, v16
        s_and_b32 s62, s18, 1
        s_lshl_b32 s3, s62, 7""")
        for j in range(2):
            e(f"""v_add_u32 v2, s3, v0
            v_add_u32 v2, {64*j}, v2
            v_mul_u32_u24 v3, 10923, v2
            v_lshrrev_b32 v3, 16, v3
            v_mul_u32_u24 v4, 6, v3
            v_sub_u32 v4, v2, v4
            v_bfe_u32 v6, v3, 2, 2
            v_lshlrev_b32 v6, 3, v6
            v_lshrrev_b32 v7, 4, v3
            v_lshl_add_u32 v6, v7, 2, v6
            v_and_b32 v7, 3, v3
            v_add_u32 v6, v6, v7
            v_mul_u32_u24 v{17+j}, 3584, v6
            v_lshl_add_u32 v{17+j}, v4, 4, v{17+j}""")
        e("""s_cmp_eq_u32 s62, 1
        s_cselect_b32 s3, 0x80000000, 0
        v_or_b32 v18, s3, v18
        s_lshr_b32 s3, s18, 1
        s_mul_i32 s55, s52, 3072
        s_lshl_b32 s64, s23, 6
        s_add_u32 s55, s55, s64
        s_mul_i32 s56, s3, 114688
        s_mul_i32 s64, s23, 96
        s_add_u32 s56, s56, s64
        s_add_u32 s56, s56, 2048
        s_mul_i32 s57, s3, 5120
        s_lshl_b32 s64, s62, 10
        s_add_u32 s60, s57, s64
        s_lshl_b32 s64, s62, 11
        s_add_u32 s57, s57, s64
        s_add_u32 s64, s57, 1024
        s_cmp_eq_u32 s62, 1
        s_cselect_b32 s64, 8192, s64""")
    def issueW2(c):
        p = ORD2[2 * c]
        base = W2A[c][1]
        e(f"s_add_u32 m0, s60, {base}")
        e(f"s_add_u32 s74, s55, {p*32*3072}")
        e.vmem(f"buffer_load_dwordx4 v16, {SW}, s74 offen {NT} lds", ("w2", c))
        e(f"s_add_u32 m0, s57, {base + 2048}")
        e(f"s_add_u32 s74, s56, {p*32*3584}")
        e.vmem(f"buffer_load_dwordx4 v17, {S1}, s74 offen {NT} lds", ("w2", c))
        e(f"s_add_u32 m0, s64, {base + 2048}")
        e("s_nop 0")
        e.vmem(f"buffer_load_dwordx4 v18, {S1}, s74 offen {NT} lds", ("w2", c))
    NF2, NS, NA = 14, 18, 4
    A0 = 20
    AF = lambda sg, tb, kk: A0 + (sg % NA) * 16 + (tb * 2 + kk) * 4
    ACB = A0 + NA * 16
    GACC = lambda tb, nb: ACB + (tb * 2 + nb) * 16
    BFB = ACB + 64
    BF = lambda kk, nb: BFB + (kk * 2 + nb) * 4
    assert BFB + 16 <= VST
    def gsetup():
        srd(e, 44, 14, 1792 * 1024)
        srd(e, 48, 8, 512 * 1024)
        e(f"""v_lshrrev_b32 v8, 3, v0
        v_bfe_u32 v2, v0, 4, 1
        v_lshlrev_b32 v2, 2, v2
        v_xor_b32 v9, v5, v2
        v_lshlrev_b32 v9, 4, v9
        v_lshl_add_u32 v14, v8, 10, v9
        v_lshrrev_b32 v2, 2, v8
        v_lshlrev_b32 v2, 3, v2
        v_and_b32 v8, 3, v8
        v_add_u32 v8, v8, v2
        v_lshl_add_u32 v15, v8, 10, v9
        v_lshlrev_b32 v1, 4, v0
        s_lshl_b32 s3, s59, 7
        s_lshl_b32 s70, s18, 18
        s_add_u32 s70, s70, s3
        s_mul_i32 s78, s18, {12*16*1024}
        s_add_u32 s78, s78, s3
        s_lshl_b32 s71, s18, 17
        s_add_u32 s71, s71, s3
        s_mul_i32 s72, s58, {2*112*1024}
        s_add_u32 s72, s72, {WS_H:#x}
        s_mul_i32 s79, s18, {12*1024}
        s_add_u32 s79, s79, s72
        s_lshl_b32 s3, s18, 14
        s_add_u32 s72, s72, s3
        s_lshl_b32 s73, s58, 16
        s_lshl_b32 s3, s18, 13
        s_add_u32 s73, s73, s3
        s_add_u32 s73, s73, {WS_O:#x}
        s_and_b32 s3, s58, 3
        s_cmp_eq_u32 s3, s18
        s_cselect_b32 s26, 1, 0
        s_cmp_eq_u32 s59, s18
        s_cselect_b32 s27, 1, 0
        s_add_u32 s3, s18, 4
        s_cmp_eq_u32 s59, s3
        s_cselect_b32 s21, 1, 0
        s_lshl_b32 s69, s58, 1
        s_add_u32 s69, s69, s59
        s_and_b32 s69, s69, {opt.get("rotm", 7)}
        s_sub_u32 s25, s69, 6
        s_cmp_ge_u32 s69, 6
        s_cselect_b32 s25, s25, s69""")
    KS = [(2 * i, False) for i in range(8)] + [(64 + 2 * i, True) for i in range(6)]
    ROT = opt.get("rot", 0)
    def ridx(sg):
        if sg < 8:
            e(f"s_add_u32 s68, s69, {sg}")
            e("s_and_b32 s68, s68, 7")
        elif sg < NF2:
            e(f"s_add_u32 s68, s25, {sg-8}")
            e("s_sub_u32 s3, s68, 6")
            e("s_cmp_ge_u32 s68, 6")
            e("s_cselect_b32 s68, s3, s68")
        else:
            e(f"s_add_u32 s68, s69, {sg-NF2}")
            e("s_and_b32 s68, s68, 3")
    def issueB(sg):
        if ROT:
            ridx(sg)
            e("s_lshl_b32 s68, s68, 15")
            e(f"s_add_u32 s68, s68, {'s70' if sg < 8 else 's78' if sg < NF2 else 's71'}")
        for a in range(4):
            e(f"s_add_u32 m0, s67, {BREG[sg % NB] + a*1024}")
            if sg < NF2:
                k16, ex = KS[sg]
                if ROT: e(f"s_add_u32 s74, s68, {((1024 if ex else 0) + 8*a)*1024}")
                else: e(f"s_add_u32 s74, {'s78' if ex else 's70'}, {(16*k16 + 8*a)*1024}")
                e.vmem(f"buffer_load_dwordx4 v14, {S2}, s74 offen lds", ("B", sg))
            else:
                if ROT: e(f"s_add_u32 s74, s68, {(16*(a>>1) + 4*(a&1))*1024}")
                else: e(f"s_add_u32 s74, s71, {(32*(sg-NF2) + 16*(a>>1) + 4*(a&1))*1024}")
                e.vmem(f"buffer_load_dwordx4 v15, {SO}, s74 offen lds", ("B", sg))
    def issueA(sg, tbs=(0, 1)):
        for tb in tbs:
            if sg < NF2:
                k16, ex = KS[sg]
                e(f"s_add_u32 s74, {'s79' if ex else 's72'}, {(tb*112 + k16)*1024}")
            else: e(f"s_add_u32 s74, s73, {(tb*32 + 2*(sg-NF2))*1024}")
            for kk in range(2):
                e.vmem(f"buffer_load_dwordx4 {vr(AF(sg,tb,kk),4)}, v1, {SS}, s74 offen offset:{kk*1024} sc1", ("A", sg))
    LEAD = opt.get("lead", 0)
    def either(sreg, lead_fn, foll_fn):
        L1, L2 = lab("LD"), lab("LE")
        e(f"s_cmp_lg_u32 {sreg}, 0")
        e(f"s_cbranch_scc1 {L1}")
        allk = list(e.act)
        e.act = [k for k in allk if sreg not in k]
        if foll_fn: foll_fn()
        e(f"s_branch {L2}")
        e(f"{L1}:")
        keep = list(e.vm)
        e.act = [k for k in allk if sreg in k]
        if lead_fn: lead_fn()
        e.vm = keep
        e.act = allk
        e(f"{L2}:")
    def gsetup2():
        e(f"""v_lshrrev_b32 v6, 5, v0
        v_lshlrev_b32 v6, 3, v6
        v_bfe_u32 v7, v0, 2, 2
        v_add_u32 v6, v6, v7
        v_lshlrev_b32 v6, 7, v6
        v_lshrrev_b32 v7, 1, v7
        v_lshl_add_u32 v6, v7, 6, v6
        v_bfe_u32 v7, v0, 4, 1
        v_lshl_add_u32 v6, v7, 5, v6
        v_and_b32 v7, 3, v0
        v_lshl_add_u32 v6, v7, 3, v6
        v_add_u32 v6, s67, v6
        v_xor_b32 v7, 64, v6
        v_add_u32 v8, 49152, v6
        v_add_u32 v9, 49152, v7
    v_add_u32 v10, 98304, v6
    v_add_u32 v11, 98304, v7
        v_mov_b32 v2, {L_MISC}
        ds_read_b32 v2, v2
        v_and_b32 v3, 3, v0
        v_lshlrev_b32 v3, 7, v3
        s_lshr_b32 s76, s58, 1
        s_lshl_b32 s76, s76, 11
        s_lshl_b32 s3, s18, 9
        s_add_u32 s76, s76, s3
        s_add_u32 s66, s76, {WS_F1H:#x}""")
        e("s_mov_b32 s75, 0")
        e("s_waitcnt lgkmcnt(0)")
    D = opt.get("gd", 3); DB = NB - 1; PS = opt.get("ps", 12); PB = 8 - D - 1
    GE = opt.get("ge", 15)
    def firstA(lo=0, hi=None):
        hi = D if hi is None else hi
        for sg in range(lo, hi):
            if LEAD & 2 and sg == hi - 1:
                for tb in range(2): either(("s27", "s21")[tb], lambda: issueA(sg, (tb,)), None)
            else: issueA(sg)
    issueW(0)
    for c in range(1, PL): issueX(c); issueW(c)
    for k in range(17):
        e.vwait([("w", k), ("x", k)] if k < 8 else [("w2", k - 8)])
        if k == 0: stamp(2)
        if k == 8: stamp(3)
        if k == 16: stamp(4)
        bstamp(k)
        if k == 16: bflush()
        e("s_barrier")
        if k + PL <= 7: issueX(k + PL); issueW(k + PL)
        if k == 1: gsetup()
        if k == 2: esetup()
        for c in range(8):
            if W2A[c][0] == k: issueW2(c)
        if k == 7 and any(W2A[c][0] == 7.5 for c in range(8)):
            ldswait(28, 4, 2, 3)
            for c in range(8):
                if W2A[c][0] == 7.5: issueW2(c)
        if k == 9: gsetup2()
        if k == GE - 2: apoll_issue(3, "s66", 4, "f1h")
        if k == GE:
            sk = lab("GLATE")
            e.vwait("f1h")
            e("v_cmp_ne_u32 vcc, v2, v4")
            e("s_nop 1")
            e("s_cmp_lg_u64 vcc, 0")
            e(f"s_cbranch_scc1 {sk}")
            keep = list(e.vm)
            if not opt.get("gel", 1): firstA()
            e.vm = keep
            e("s_mov_b32 s75, 1")
            e(f"{sk}:")
        if k < 16:
            for j in range(NB):
                if BT[j] == k: issueB(j)
    if opt.get("gprio", 0): e(f"s_setprio {opt.get('gprio')}")
    if opt.get("gel", 1):
        e("s_cmp_lg_u32 s75, 0")
        e("s_cbranch_scc1 L_GRDY")
        keep = list(e.vm)
        poll(3, "s66", 2, 4)
        e.vm = keep
        e("L_GRDY:")
        for j in range(NB):
            if BT[j] >= 16: issueB(j)
            if j < D: issueA(j)
    else:
        for j in range(NB):
            if BT[j] >= 16: issueB(j)
        e("s_cmp_lg_u32 s75, 0")
        e("s_cbranch_scc1 L_GGO")
        keep = list(e.vm)
        poll(3, "s66", 2, 4)
        e.vm = keep
        if LEAD:
            assert GE > 16
            e.vm = []
            e.var_start([(b_, a_) for b_ in ("", "s26") for a_ in ("", "s27", "s21")])
        firstA()
    e("L_GGO:")
    stamp(5)
    def step(sg):
        if sg == opt.get("ghold", -1): ldswait(16, 8, 12, 13)
        bstamp(100 + sg)
        e.vwait([("B", sg), ("A", sg)])
        bstamp(200 + sg)
        reg = BREG[sg % NB]
        hi = reg // 49152
        off0 = reg - 49152 * hi
        for kk in range(2):
            for nb in range(2):
                for q in range(2):
                    e.lds(f"ds_read_b64_tr_b16 v[{BF(kk,nb)+2*q}:{BF(kk,nb)+2*q+1}], v{6+2*hi+nb} offset:{off0 + kk*2048 + q*512}", (kk, nb))
        if LEAD & 1:
            FB = opt.get("fb", 3)
            okb = lambda j: NB <= j < NS
            if okb(sg + DB) or okb(sg + FB):
                either("s26", (lambda: issueB(sg + DB)) if okb(sg + DB) else None, (lambda: issueB(sg + FB)) if okb(sg + FB) else None)
        elif NB <= sg + DB < NS: issueB(sg + DB)
        oka = lambda j: j < NF2 or (j < NS and sg > PS and j >= PS + 1 + D)
        if LEAD & 2:
            okf = lambda j: j < NF2 or (j < NS and sg > PS and j >= PS + D)
            for tb in range(2):
                if oka(sg + D) or okf(sg + D - 1):
                    either(("s27", "s21")[tb], (lambda: issueA(sg + D, (tb,))) if oka(sg + D) else None, (lambda: issueA(sg + D - 1, (tb,))) if okf(sg + D - 1) else None)
        elif oka(sg + D): issueA(sg + D)
        for kk in range(2):
            for nb in range(2):
                e.lwait((kk, nb))
                for tb in range(2):
                    acc = vr(GACC(tb, nb), 16)
                    cin = "0" if (sg == 0 and kk == 0) else acc
                    if opt.get("nogm") and (kk or nb): continue
                    e(f"v_mfma_f32_32x32x16_bf16 {acc}, {vr(BF(kk,nb),4)}, {vr(AF(sg,tb,kk),4)}, {cin}")
    for sg in range(PS + 1):
        if sg == PB - 1 or sg == PS - 1:
            e(f"s_add_u32 s66, s76, {(WS_F1B if sg == PB - 1 else WS_F2):#x}")
            apoll_issue(3, "s66", 4, "fl")
        step(sg)
        if sg == PB:
            stamp(6)
            apoll_check(3, "s66", 2, 4, "fl")
    stamp(7)
    apoll_check(3, "s66", 2, 4, "fl")
    stamp(8)
    firstA(NF2, min(NS, PS + 1 + D))
    for sg in range(PS + 1, NS): step(sg)
    e.var = None
    bflush()
    gate('g')
    stamp(9)
    e("""v_and_b32 v12, 31, v0
    v_lshlrev_b32 v12, 7, v12
    v_lshrrev_b32 v13, 5, v0
    v_xor_b32 v13, v13, v5
    v_lshl_add_u32 v12, v13, 4, v12
    v_add_u32 v12, s67, v12""")
    for nb in range(2):
        for a in range(4): e(f"v_xor_b32 v{20+nb*4+a}, {((2*a) ^ nb)*16}, v12")
    for tb in range(2):
        for nb in range(2):
            for a in range(4): e(f"v_add_u32 v{28+(tb*2+nb)*4+a}, {BREG[tb*2+nb]}, v{20+nb*4+a}")
    for tb in range(2):
        for nb in range(2):
            for a in range(4): e(f"ds_write_b128 v{28+(tb*2+nb)*4+a}, {vr(GACC(tb,nb)+4*a,4)}")
    e("s_waitcnt lgkmcnt(0)")
    stamp(10)
    e("s_barrier")
    if ST: e("s_branch L_DUMP")
    e("s_endpgm")

    e("L_CONS:")
    e.vm = []; e.lg = []
    LA = opt.get("la", 5); NFB = 6
    F = lambda f: 8 + (f % NFB) * 4
    XF = lambda n, r: 32 + ((n & 1) * 2 + r) * 4
    XK = lambda p, r: 48 + (p * 2 + r) * 4
    ACC = lambda s, r: 96 + (s * 2 + r) * 4
    AW = [1, 2, 3, 4]; AX = [7, 5]
    e(f"""v_lshrrev_b32 v8, 2, v0
    v_lshrrev_b32 v9, 3, v8
    v_lshlrev_b32 v9, 11, v9
    v_and_b32 v10, 7, v8
    v_lshl_add_u32 v9, v10, 7, v9
    v_and_b32 v10, 3, v0
    v_lshlrev_b32 v10, 3, v10
    v_add_u32 v9, v9, v10
    v_bfe_u32 v11, v0, 3, 2
    v_lshl_add_u32 v1, v11, 5, v9
    v_add_u32 v1, {W1A[0]}, v1
    v_xor_b32 v2, 32, v1
    v_xor_b32 v3, 64, v1
    v_xor_b32 v4, 96, v1
    v_and_b32 v8, 15, v0
    v_lshrrev_b32 v9, 4, v0
    v_lshrrev_b32 v10, 1, v8
    v_xor_b32 v9, v9, v10
    v_lshlrev_b32 v8, 7, v8
    v_lshl_add_u32 v7, v9, 4, v8
    s_lshl_b32 s3, s19, 12
    s_add_u32 s3, s3, {XA[0]}
    v_add_u32 v7, s3, v7
    v_xor_b32 v5, 64, v7""")
    e(f"v_mov_b32 v6, {L_MISC}")
    e("v_mov_b32 v165, 1")
    if not BK: smasks()
    if opt.get("cprio", 3): e(f"s_setprio {opt.get('cprio', 3)}")
    cur = {"w": W1A[0], "x": XA[0]}
    UST = opt.get("ust", 0)
    PEND = []
    DEF = []; NST = [0]; TIM = 0 if UST else opt.get("tim", 2)
    def move(kind, regs, addr):
        d = addr - cur[kind]
        if d:
            for a in regs: e(f"v_add_u32 v{a}, {d & 0xffffffff:#x}, v{a}")
        cur[kind] = addr
    def gemm(ps):
        NSB = 8 if ps == 1 else 5
        NF = 16 * NSB
        kst = (lambda n: n) if ps == 1 else (lambda n: ORD2[n])
        xreg = lambda n, r: XK(kst(n), r) if kst(n) < 6 else XF(n, r)
        def rd(f):
            n, s = divmod(f, NSB)
            for q in range(2):
                if ps == 1:  a, off = AW[s & 3], (n & 1) * 8192 + q * 4096 + (s >> 2) * 1024
                elif s < 2:  a, off = AW[s], (n & 1) * 5120 + q * 1024
                else:        a, off = AW[2], (n & 1) * 5120 + 2048 + q * 1536 + (s - 2) * 32
                yield f"ds_read_b64_tr_b16 v[{F(f)+2*q}:{F(f)+2*q+1}], v{a} offset:{off}"
        def kswitch(n):
            if n % 2 == 0:
                if ps == 1: move("w", AW, W1A[n // 2])
                else:       move("w", AW[:3], W2A[n // 2][1])
                bstamp(8 * (ps - 1) + n // 2)
                e("s_barrier")
                if ps == 2 and not UST:
                    for _ in range(opt.get("tper", 4)):
                        if DEF:
                            for x in DEF.pop(0):
                                if opt.get("nost1") and "buffer_store" in x: continue
                                e(x.replace(" sc1", "") if opt.get("plain1") else x)
                            NST[0] += 1
                    if n // 2 == opt.get("sgk", 0):
                        asig1(4, max(0, NST[0] - 4)); PEND.append(WS_F1)
                    if n // 2 == opt.get("sgh", 3):
                        assert not DEF
                        asig1(24, 0); PEND.append(WS_F1H)
            if NSB > LA or n < 2: xread(n)
        def xread(n):
            p = kst(n)
            if ps == 1 or p >= 6:
                move("x", AX, XA[p >> 1])
                for r in range(2): e.lds(f"ds_read_b128 {vr(xreg(n,r),4)}, v{AX[p&1]} offset:{r*2048}", ("x", n))
        kswitch(0)
        if ps == 1: stamp(2); gate("b0")
        for f in range(LA):
            if f and f % NSB == 0: kswitch(f // NSB)
            for r_ in rd(f): e.lds(r_, f)
        for f in range(NF):
            n, s = divmod(f, NSB)
            nxt = f + LA
            if nxt < NF and nxt % NSB == 0: kswitch(nxt // NSB)
            if NSB <= LA and s == 0 and 1 <= n < 15: xread(n + 1)
            if PEND and nxt % (2 * NSB) == 4: asig2(3, PEND.pop())
            if opt.get("w2f", 1) and f % 2 == 0 and f + 1 < NF: e.lwait([f, f + 1, ("x", n), ("x", (f + 1) // NSB)])
            else: e.lwait([f, ("x", n)])
            if ps == 2 and f == NF - 1 and not opt.get("b16late"): e("s_barrier")
            rds = list(rd(nxt)) if nxt < NF else [None, None]
            for r in range(2):
                acc = vr(ACC(s, r), 4)
                e(f"v_mfma_f32_16x16x32_bf16 {acc}, {vr(F(f),4)}, {vr(xreg(n,r),4)}, {'0' if n == 0 else acc}")
                if rds[r]: e.lds(rds[r], nxt)
    RS = lambda r: 160 + 2 * r
    RQ = lambda r: 32 + 2 * r
    TT = 8
    CSR = [24, 28]
    def epilogue(ps):
        order = (([0, 1, 2, 3, 5, 6, 7, 4] if opt.get('kvfirst', 1) else [5, 6, 7, 2, 3, 4, 0, 1]) if TIM else list(range(8))) if ps == 1 else ([2, 3, 4, 0, 1] if opt.get('b16late') else [0, 1, 2, 3, 4])
        dd = {}
        loc = lambda s: s if ps == 1 else 8 + s
        if ps == 1:
            ldsadd(28, 8, 9)
            ldswait(20, 1, 8, 9)
        e(f"""v_and_b32 v16, 15, v0
        v_lshrrev_b32 v17, 4, v0
        s_lshl_b32 s3, s19, 9
        s_add_u32 s3, s3, {L_ST}
        v_lshl_add_u32 v8, v16, 4, s3
        v_lshlrev_b32 v164, 4, v17
        v_add_u32 v164, {L_ST+2048}, v164
        v_mov_b32 v10, {L_MISC}""")
        if ps == 1:
            for r in range(2): e.lds(f"ds_read_b64 {pk(RS(r))}, v8 offset:{256*r}", "st")
            e.lds("ds_read_b32 v10, v10", "st")
        def csread(n):
            if n < len(order): e.lds(f"ds_read_b128 {vr(CSR[n%2],4)}, v164 offset:{64*loc(order[n])}", ("cs", n))
        csread(0)
        e("v_lshlrev_b32 v166, 4, v0")
        if ps == 1:
            e(f"""s_lshl_b32 s52, s20, 2
            s_add_u32 s52, s52, s19
            s_lshl_b32 s53, s23, 8
            s_add_u32 s53, s53, s52
            s_lshl_b32 s53, s53, 10
            s_mul_i32 s54, s52, 112
            s_mul_i32 s55, s23, 3
            s_add_u32 s55, s55, s54
            s_add_u32 s55, s55, 64
            s_lshl_b32 s55, s55, 10
            s_lshl_b32 s3, s23, 2
            s_add_u32 s54, s54, s3
            s_lshl_b32 s54, s54, 10
            s_add_u32 s54, s54, {WS_H:#x}
            s_add_u32 s55, s55, {WS_H:#x}""")
            if UST:
                e("s_lshl_b32 s3, s19, 12")
                e("v_add_u32 v36, s3, v166")
                e(f"v_add_u32 v37, {W1A[7]}, v36")
                e(f"v_add_u32 v36, {W1A[6]}, v36")
            e.lwait("st")
            e("v_readfirstlane_b32 s61, v10")
        else:
            e("s_mov_b32 s3, 0x3eb8aa3b")
            for q in range(4): e(f"v_mul_f32 v{32+q}, s3, v{160+q}")
            e("s_lshl_b32 s3, s19, 10")
            e(f"s_add_u32 s3, s3, {L_Q}")
            e("v_add_u32 v36, s3, v166")
        for n, s in enumerate(order):
            T = 16 + 4 * (n % 2)
            stg = ps == 1 and UST
            dfr = ps == 1 and TIM and s >= (4 if opt.get('kvfirst', 1) else 2) and not UST
            if dfr: T = ACC(s, 0) if s >= 5 else ACC(s + 3, 1)
            isQ = ps == 2 and s < 2
            isH = (ps == 1 and s >= 4) or (ps == 2 and s >= 2)
            if stg and s == 4: ldswait(28, 4, 38, 39)
            e.lwait(("cs", n))
            c = CSR[n % 2]
            csread(n + 1)
            if opt.get("xnop"): e("s_nop 3")
            if (ps == 2 or opt.get("nopk1", 1)) and opt.get("nopk", 1):
                for r in range(2):
                    sp = RQ(r) if isQ else RS(r)
                    for j in range(4): e(f"v_mul_f32 v{TT+4*r+j}, v{c+j}, v{sp+1}")
                for r in range(2):
                    sp = RQ(r) if isQ else RS(r)
                    for j in range(4): e(f"v_fmac_f32 v{TT+4*r+j}, v{ACC(s,r)+j}, v{sp}")
            else:
                for r in range(2):
                    sp = RQ(r) if isQ else RS(r)
                    for h in range(2):
                        e(f"v_pk_mul_f32 {pk(TT+4*r+2*h)}, {pk(c+2*h)}, {pk(sp)} op_sel:[0,1] op_sel_hi:[1,1]")
                for r in range(2):
                    sp = RQ(r) if isQ else RS(r)
                    for h in range(2):
                        t = TT + 4 * r + 2 * h
                        e(f"v_pk_fma_f32 {pk(t)}, {pk(ACC(s,r)+2*h)}, {pk(sp)}, {pk(t)} op_sel_hi:[1,0,1]")
            for r in range(2):
                for h in range(2):
                    t = TT + 4 * r + 2 * h
                    e(f"v_cvt_pk_bf16_f32 v{T+2*r+h}, v{t}, v{t+1}")
            if isQ or stg: sa = "s_nop 0"
            elif ps == 2: sa = f"s_add_u32 s3, s55, {(s-2)*1024}"
            elif s < 4: sa = f"s_add_u32 s3, s53, {WS_KV + s*0x10000:#x}"
            else: sa = f"s_add_u32 s3, s54, {(s-4)*1024}"
            e("s_nop 2")
            e(f"v_permlane16_swap_b32 v{T}, v{T+2}")
            e(f"v_permlane16_swap_b32 v{T+1}, v{T+3}")
            e(sa if not dfr else "s_nop 0")
            e("s_nop 0")
            if isH:
                for q in (0, 2, 1, 3): e(f"v_pk_max_i16 v{T+q}, v{T+q}, 0")
            if isQ:
                e.lds(f"ds_write_b128 v36, {vr(T,4)} offset:{s*4096}", "qw")
                if s == 1:
                    e.lwait_all()
                    ldsadd(16, 37, 38)
            elif stg: e.lds(f"ds_write_b128 v{36 + (s >> 2)}, {vr(T,4)} offset:{(s&3)*1024}", "qw")
            elif dfr: dd[s] = [sa, f"buffer_store_dwordx4 {vr(T,4)}, v166, {SS}, s3 offen {'' if isH and opt.get('hplain') else 'sc1'}"]
            else:
                e(f"buffer_store_dwordx4 {vr(T,4)}, v166, {SS}, s3 offen {'' if isH and opt.get('hplain') else 'sc1'}")
                NST[0] += 1
                if ps == 2 and s == 4 and opt.get("b16late"): e("s_barrier")
        for s in sorted(dd): DEF.append(dd[s])
    gemm(1)
    gate('p1')
    stamp(3)
    epilogue(1)
    e(f"""v_lshrrev_b32 v8, 2, v0
    v_and_b32 v10, 3, v0
    v_lshlrev_b32 v10, 3, v10
    v_lshl_add_u32 v1, v8, 6, v10
    v_bfe_u32 v11, v0, 4, 1
    v_lshl_add_u32 v1, v11, 5, v1
    v_add_u32 v1, {W2A[0][1]}, v1
    v_xor_b32 v2, 32, v1
    v_mul_u32_u24 v3, 96, v8
    v_add_u32 v3, v3, v10
    v_add_u32 v3, {W2A[0][1]}, v3""")
    cur["w"] = W2A[0][1]
    e.lwait_all()
    stamp(4)
    gemm(2)
    gate('p2')
    bflush()
    stamp(5)
    epilogue(2)
    if BK: smasks()
    e("s_mov_b32 s96, s19")
    e("s_mov_b32 s97, 1")
    e("s_branch L_ATT")

    e("L_UTIL:")
    e.vm = []; e.lg = []
    if opt.get("uprio0", 3): e(f"s_setprio {opt.get('uprio0', 3)}")
    L0, U, A, CL, C0, C1, VE = 16, 24, 40, 48, 64, 72, 80
    e("v_and_b32 v5, 7, v0")
    if opt.get("pfc", 1):
        sk = lab("NOPC")
        e("s_cmp_lg_u32 s19, 3")
        e(f"s_cbranch_scc1 {sk}")
        e("s_getpc_b64 s[64:65]")
        e("L_PCREF:")
        e(f"s_sub_u32 s64, s64, L_PCREF-{name}")
        e("s_subb_u32 s65, s65, 0")
        e("s_lshr_b32 s66, s2, 3")
        e("s_mul_i32 s66, s66, (L_END-%s+4095)/4096*128" % name)
        e("v_lshlrev_b32 v2, 7, v0")
        e("v_add_u32 v2, s66, v2")
        e("v_mov_b32 v3, s65")
        e("v_add_co_u32 v2, vcc, s64, v2")
        e("s_nop 1")
        e("v_addc_co_u32 v3, vcc, 0, v3, vcc")
        e("v_cmp_gt_u32 vcc, (L_END-%s+4095)/4096, v0" % name)
        e("s_nop 1")
        e("s_and_saveexec_b64 s[66:67], vcc")
        e("global_load_dword v163, v[2:3], off")
        e("s_mov_b64 exec, -1")
        e(f"{sk}:")
    PFU = opt.get("pfu", 0)
    def pf_x():
        e("""v_and_b32 v2, 31, v0
        v_lshlrev_b32 v2, 10, v2
        v_lshrrev_b32 v3, 5, v0
        v_lshl_add_u32 v2, v3, 7, v2
        s_lshl_b32 s64, s20, 17
        s_lshl_b32 s65, s22, 15
        s_add_u32 s64, s64, s65
        s_lshl_b32 s65, s19, 8
        s_add_u32 s64, s64, s65""")
        e(f"buffer_load_dword v160, v2, {SX}, s64 offen")
    def pf_w():
        L1, L2, L3, LD = lab("PW"), lab("PW"), lab("PW"), lab("PW")
        e("""s_and_b32 s64, s20, 7
        v_lshlrev_b32 v2, 3, v0
        v_add_u32 v2, s64, v2
        v_mul_u32_u24 v3, 3584, v2
        v_mul_u32_u24 v2, 3072, v2
        s_lshl_b32 s64, s23, 7""")
        e("s_cmp_eq_u32 s19, 1"); e(f"s_cbranch_scc1 {L1}")
        e("s_cmp_eq_u32 s19, 3"); e(f"s_cbranch_scc1 {L3}")
        e("s_add_u32 s65, s64, 1024")
        e("s_lshr_b32 s64, s64, 1")
        e("s_cmp_eq_u32 s19, 0")
        e("s_cselect_b32 s64, s65, s64")
        e(f"buffer_load_dword v161, v2, {SW}, s64 offen")
        e(f"s_branch {LD}")
        e(f"{L3}:")
        e("s_mul_i32 s64, s23, 96")
        e("s_add_u32 s64, s64, 2048")
        e(f"buffer_load_dword v162, v3, {S1}, s64 offen offset:92")
        e(f"{L1}:")
        e(f"buffer_load_dword v161, v3, {S1}, s64 offen")
        e(f"{LD}:")
    if PFU == 1: pf_x(); pf_w()
    UL = opt.get("ul", -1)
    for _ in range(UL + 1): e("s_barrier")
    e(f"v_mov_b32 v{VE}, 0")
    e(f"s_mov_b32 s3, {WS_EP:#x}")
    e.vmem(f"buffer_load_dword v{VE}, v{VE}, {SS}, s3 offen sc1", "rs")
    e(f"""v_lshrrev_b32 v4, 5, v0
    v_and_b32 v6, 31, v0
    v_lshlrev_b32 v6, 4, v6
    v_lshl_add_u32 v6, v4, 10, v6
    v_lshlrev_b32 v{VE+1}, 4, v4
    s_lshl_b32 s64, s20, 7
    s_lshl_b32 s65, s23, 3
    s_add_u32 s64, s64, s65
    s_lshl_b32 s65, s19, 1
    s_add_u32 s64, s64, s65
    s_lshl_b32 s65, s64, 10""")
    e.vmem(f"buffer_load_dwordx4 {vr(L0,4)}, v6, {SX}, s65 offen", "rs")
    e.vmem(f"buffer_load_dwordx4 {vr(L0+4,4)}, v6, {SX}, s65 offen offset:512", "rs")
    e("""s_add_u32 s66, s23, 8
    s_add_u32 s67, s23, 24
    s_cmp_eq_u32 s19, 1
    s_cselect_b32 s66, s67, s66
    s_add_u32 s67, s23, 32
    s_cmp_lt_u32 s23, 8
    s_cselect_b32 s67, s23, s67
    s_cmp_eq_u32 s19, 2
    s_cselect_b32 s66, s67, s66
    s_add_u32 s67, s23, 48
    s_cmp_eq_u32 s19, 3
    s_cselect_b32 s66, s67, s66
    v_lshrrev_b32 v2, 3, v0
    v_lshlrev_b32 v3, 4, v5
    s_cmp_ge_u32 s66, 52
    s_cbranch_scc1 L_CSD
    s_lshl_b32 s67, s66, 7
    s_cmp_ge_u32 s66, 24
    s_cbranch_scc1 L_CSW
    v_mul_u32_u24 v4, 3072, v2
    v_add_u32 v4, v4, v3""")
    e(f"s_mul_i32 s68, s20, {32*3072}")
    e("s_add_u32 s68, s68, s67")
    for t in range(4):
        e(f"buffer_load_dwordx4 {vr(CL+4*t,4)}, v4, {SW}, s68 offen")
        if t < 3: e(f"s_add_u32 s68, s68, {8*3072}")
    e("s_branch L_CSD")
    e("L_CSW:")
    e("v_mul_u32_u24 v4, 3584, v2")
    e("v_add_u32 v4, v4, v3")
    e(f"s_mul_i32 s68, s20, {32*3584}")
    e("s_add_u32 s68, s68, s67")
    e(f"s_sub_u32 s68, s68, {24*128}")
    for t in range(4):
        e(f"buffer_load_dwordx4 {vr(CL+4*t,4)}, v4, {S1}, s68 offen")
        if t < 3: e(f"s_add_u32 s68, s68, {8*3584}")
    e("L_CSD:")
    if PFU == 2:
        e("s_mov_b32 s74, s64")
        pf_x(); pf_w()
        e("s_mov_b32 s64, s74")
    e(f"""s_mov_b32 s69, 0xffff0000
    s_mov_b32 s70, 0x3b000000
    s_lshl_b32 s64, s64, 4
    s_add_u32 s64, s64, {WS_RS:#x}
    v_lshlrev_b32 v14, 4, v0
    s_lshl_b32 s71, s23, 8
    s_add_u32 s72, s71, {512*4}
    v_add_u32 v15, s72, v14
    s_add_u32 s72, s71, {1536*4 - 256}
    v_add_u32 v2, s72, v14
    v_cmp_le_u32 vcc, 16, v0
    s_lshl_b32 s72, s23, 7
    s_sub_u32 s72, s72, 512
    v_cndmask_b32 v15, v15, v2, vcc
    v_add_u32 v2, s72, v14
    v_cmp_le_u32 vcc, 32, v0
    s_mul_i32 s72, s23, 192
    s_add_u32 s72, s72, {2560*4 - 640}
    v_cndmask_b32 v15, v15, v2, vcc
    v_min_u32 v2, 51, v0
    v_lshlrev_b32 v2, 4, v2
    v_add_u32 v2, s72, v2
    v_cmp_le_u32 vcc, 40, v0
    s_nop 1
    v_cndmask_b32 v15, v15, v2, vcc""")
    def piece(n):
        if n == 0:
            e("s_cmp_ge_u32 s66, 52")
            e("s_cbranch_scc1 L_P0A")
            e(f"s_waitcnt vmcnt({4 + (2 if PFU == 2 else 0)})")
            e("s_branch L_P0B")
            e("L_P0A:")
            e(f"s_waitcnt vmcnt({2 if PFU == 2 else 0})")
            e("L_P0B:")
            for q in range(8):
                e(f"v_lshlrev_b32 v{U+2*q}, 16, v{L0+q}")
                e(f"v_and_b32 v{U+2*q+1}, s69, v{L0+q}")
            for q in range(4): e(f"v_add_f32 v{A+q}, v{U+q}, v{U+4+q}")
            for t in range(2, 4):
                for q in range(4): e(f"v_add_f32 v{A+q}, v{A+q}, v{U+4*t+q}")
            e(f"v_add_f32 v{A}, v{A}, v{A+1}")
            e(f"v_add_f32 v{A+2}, v{A+2}, v{A+3}")
            e(f"v_add_f32 v{A}, v{A}, v{A+2}")
            reduce32(e, [A], [A + 1])
            e(f"v_mul_f32 v{A}, s70, v{A}")
            e(f"v_add_u32 v{A+6}, {EPC:#x}, v{VE}")
            e(f"v_mov_b32 v2, {L_MISC}")
            e("v_mov_b32 v3, 0")
            e(f"ds_write_b32 v2, v{A+6}")
            for o in (4, 8, 12, 16, 20, 24, 28): e(f"ds_write_b32 v2, v3 offset:{o}")
        if n == 1:
            for q in range(16): e(f"v_sub_f32 v{U+q}, v{U+q}, v{A}")
            for q in range(4): e(f"v_mul_f32 v{L0+q}, v{U+q}, v{U+q}")
            for q in range(4, 16): e(f"v_fmac_f32 v{L0+(q&3)}, v{U+q}, v{U+q}")
            e(f"v_add_f32 v{L0}, v{L0}, v{L0+1}")
            e(f"v_add_f32 v{L0+2}, v{L0+2}, v{L0+3}")
            e(f"v_add_f32 v{A+4}, v{L0}, v{L0+2}")
            reduce32(e, [A + 4], [A + 5])
            e(f"v_mov_b32 v{A+5}, 0x3727c5ac")
            e(f"v_fma_f32 v{A+4}, v{A+4}, s70, v{A+5}")
            e(f"v_rsq_f32 v{A+4}, v{A+4}")
            e(f"v_readfirstlane_b32 s61, v{A+6}")
            e(f"v_mov_b32 v{A+7}, v{A+6}")
            e(f"v_mul_f32 v{A+5}, v{A}, v{A+4}")
            e(f"v_sub_f32 v{A+5}, 0, v{A+5}")
            e("s_mov_b32 s71, 0xff")
            e(f"v_bfi_b32 v{A+4}, s71, v{A+6}, v{A+4}")
            e(f"v_bfi_b32 v{A+5}, s71, v{A+6}, v{A+5}")
            e("s_mov_b32 exec_lo, 1")
            e("s_mov_b32 exec_hi, 1")
            e(f"buffer_store_dwordx4 {vr(A+4,4)}, v{VE+1}, {SS}, s64 offen sc1")
            e("s_mov_b64 exec, -1")
        if n == 2:
            e(f"s_waitcnt vmcnt({1 + (2 if PFU == 2 else 0)})")
            for q in range(4):
                e(f"v_lshlrev_b32 v{C0+2*q}, 16, v{CL+q}")
                e(f"v_and_b32 v{C0+2*q+1}, s69, v{CL+q}")
            for t in range(1, 4):
                for q in range(4):
                    e(f"v_lshlrev_b32 v{C1+2*q}, 16, v{CL+4*t+q}")
                    e(f"v_and_b32 v{C1+2*q+1}, s69, v{CL+4*t+q}")
                for q in range(8): e(f"v_add_f32 v{C0+q}, v{C0+q}, v{C1+q}")
            e("s_nop 1")
            for q in range(8): e(f"v_add_f32_dpp v{C0+q}, v{C0+q}, v{C0+q} row_ror:8 row_mask:0xf bank_mask:0xf")
            e("s_mov_b32 s72, 0xff00ff00")
            e("s_mov_b32 s73, 0xff00ff00")
            for q in range(4): e(f"v_cndmask_b32 v{C0+q}, v{C0+q}, v{C0+4+q}, s[72:73]")
            for sw in ("v_permlane16_swap_b32", "v_permlane32_swap_b32"):
                for q in range(4): e(f"v_mov_b32 v{C1+q}, v{C0+q}")
                e("s_nop 0")
                for q in range(4): e(f"{sw} v{C0+q}, v{C1+q}")
                for q in range(4): e(f"v_add_f32 v{C0+q}, v{C0+q}, v{C1+q}")
            e("s_mov_b32 s71, 0xff")
            e(f"v_bfe_u32 v{C1+2}, v0, 3, 1")
            for q in range(4): e(f"v_bfi_b32 v{C0+q}, s71, v{A+6}, v{C0+q}")
            e(f"v_lshlrev_b32 v{C1+1}, 5, v5")
            e(f"v_lshl_add_u32 v{C1+1}, v{C1+2}, 4, v{C1+1}")
            e(f"s_mul_i32 s71, s20, {3328*4}")
            e("s_lshl_b32 s72, s66, 8")
            e("s_add_u32 s71, s71, s72")
            e(f"s_add_u32 s71, s71, {WS_CS:#x}")
            e("s_cmp_ge_u32 s66, 52")
            e("s_cbranch_scc1 L_P2S")
            e("s_mov_b64 exec, 0xffff")
            e(f"buffer_store_dwordx4 {vr(C0,4)}, v{C1+1}, {SS}, s71 offen sc1")
            e("s_mov_b64 exec, -1")
            e("L_P2S:")
    def kvsetup():
        e(f"""v_and_b32 v10, 3, v0
        v_min_u32 v10, 2, v10
        s_sub_u32 s76, s20, 2
        v_add_u32 v10, s76, v10
        v_max_i32 v10, 0, v10
        v_lshlrev_b32 v10, 11, v10
        v_bfe_u32 v11, v0, 2, 1
        v_lshl_add_u32 v10, v11, 10, v10
        s_lshr_b32 s76, s23, 1
        s_lshl_b32 s76, s76, 7
        s_add_u32 s76, s76, {WS_F1:#x}
        v_mov_b32 v11, s61
        v_lshlrev_b32 v1, 4, v0
        s_lshr_b32 s52, s19, 1
        s_lshl_b32 s53, s23, 1
        s_add_u32 s53, s53, s52
        s_lshl_b32 s53, s53, 6
        s_and_b32 s54, s19, 1
        s_mul_i32 s54, s54, 6
        s_lshl_b32 s55, s20, 2
        s_add_u32 s54, s54, s55
        s_mul_i32 s55, s19, 6144""")
    def kvdma(lo=0, hi=6):
        for t in range(lo, hi):
            e(f"s_add_u32 s68, s54, {t}")
            e("s_sub_i32 s68, s68, 8")
            e("s_max_i32 s68, s68, 0")
            e("s_add_u32 s68, s68, s53")
            e("s_lshl_b32 s68, s68, 10")
            e(f"s_add_u32 m0, s55, {L_K + t*1024}")
            e("s_add_u32 s69, s68, 0x200000")
            e(f"buffer_load_dwordx4 v1, {SS}, s68 offen sc1 lds")
            e(f"s_add_u32 m0, s55, {L_V + t*1024}")
            e("s_nop 0")
            e(f"buffer_load_dwordx4 v1, {SS}, s69 offen sc1 lds")
    G0 = 84
    def gather():
        e(f"s_mov_b32 s71, {WS_CS:#x}")
        for g in range(16):
            e(f"buffer_load_dwordx4 {vr(G0+4*g,4)}, v15, {SS}, s71 offen sc1")
            e(f"s_add_u32 s71, s71, {3328*4}")
        e("s_lshl_b32 s71, s20, 11")
        e(f"s_add_u32 s71, s71, {WS_RS:#x}")
        for h in range(2):
            e(f"buffer_load_dwordx4 {vr(G0+64+4*h,4)}, v14, {SS}, s71 offen offset:{h*1024} sc1")
    PK = opt.get("pk", [0, 0, 1]); GK = opt.get("gk", 4); CK = opt.get("ck", 6)
    for n_, kk_ in enumerate(PK):
        if kk_ < 0: piece(n_)
    for k in range(UL + 1, 16):
        if k == PK[0] + 2: e("s_waitcnt lgkmcnt(0)")
        bstamp(k)
        e("s_barrier")
        for n_, kk_ in enumerate(PK):
            if kk_ == k: piece(n_)
        KVK = opt.get("kvk", 13)
        if k == 8:
            kvsetup()
            e("s_mov_b32 s77, 0")
        KVE = opt.get("kve", 15)
        if k == KVK - 1: e(f"buffer_load_dword v4, v10, {SS}, s76 offen sc1")
        if opt.get("kvs", 0) and KVK <= k <= 15:
            sk, s2_ = lab("KVLATE"), lab("KVSKIP")
            n_ = k - KVK
            for j in range(1, n_ + 1):
                if 2 * j < 6:
                    nx = lab("KVN")
                    e(f"s_cmp_lg_u32 s77, {2*j}")
                    e(f"s_cbranch_scc1 {nx}")
                    kvdma(2 * j, 2 * j + 2)
                    e(f"s_mov_b32 s77, {2*j+2}")
                    e(f"s_branch {s2_}")
                    e(f"{nx}:")
            e("s_cmp_lg_u32 s77, 0")
            e(f"s_cbranch_scc1 {s2_}")
            e("s_waitcnt vmcnt(0)")
            e("v_cmp_ne_u32 vcc, v11, v4")
            e("s_nop 1")
            e("s_cmp_lg_u64 vcc, 0")
            e(f"s_cbranch_scc1 {sk}")
            kvdma(0, 2)
            e("s_mov_b32 s77, 2")
            e(f"s_branch {s2_}")
            e(f"{sk}:")
            if k < 15: e(f"buffer_load_dword v4, v10, {SS}, s76 offen sc1")
            e(f"{s2_}:")
        elif KVK <= k <= KVE:
            sk, s2_ = lab("KVLATE"), lab("KVSKIP")
            e("s_cmp_lg_u32 s77, 0")
            e(f"s_cbranch_scc1 {s2_}")
            e("s_waitcnt vmcnt(0)")
            e("v_cmp_ne_u32 vcc, v11, v4")
            e("s_nop 1")
            e("s_cmp_lg_u64 vcc, 0")
            e(f"s_cbranch_scc1 {sk}")
            kvdma()
            e("s_mov_b32 s77, 6")
            e(f"s_branch {s2_}")
            e(f"{sk}:")
            if k < KVE: e(f"buffer_load_dword v4, v10, {SS}, s76 offen sc1")
            e(f"{s2_}:")
        PW0 = opt.get("pfw", 0)
        if PW0 and PW0 <= k < 16:
            if k == PW0:
                srd(e, 44, 14, 1792 * 1024)
                srd(e, 48, 8, 512 * 1024)
                e("s_lshr_b32 s78, s2, 3")
                e("s_mul_i32 s79, s78, 57344")
                e("s_mul_i32 s3, s19, 14336")
                e("s_add_u32 s79, s79, s3")
                e("s_lshl_b32 s78, s78, 14")
                e("s_lshl_b32 s3, s19, 12")
                e("s_add_u32 s78, s78, s3")
            per = -(-18 // (opt.get("pfwe", 16) - PW0))
            for j in range(per * (k - PW0), min(18, per * (k - PW0 + 1))):
                if j < 14:
                    e(f"s_add_u32 s3, s79, {j*1024}")
                    e(f"buffer_load_dwordx4 v[120:123], v14, {S2}, s3 offen")
                else:
                    e(f"buffer_load_dwordx4 v[120:123], v14, {SO}, s78 offen offset:{(j-14)*1024}")
        if opt.get("pfl2", 0) and 8 <= k <= 10:
            if k == 8:
                srd(e, 44, 14, 1792 * 1024)
                srd(e, 48, 8, 512 * 1024)
                e("v_lshlrev_b32 v12, 7, v0")
                e("s_lshr_b32 s78, s2, 3")
            j = k - 8
            sk = lab("NOP2")
            if j < 2:
                e("s_mul_i32 s71, s78, 57344")
                e("s_lshl_b32 s72, s19, 13")
                e("s_add_u32 s71, s71, s72")
                if j == 1:
                    e("s_cmp_eq_u32 s19, 3")
                    e(f"s_cbranch_scc1 {sk}")
                    e("s_add_u32 s71, s71, 32768")
                e(f"buffer_load_dword v13, v12, {S2}, s71 offen")
            else:
                e("s_cmp_ge_u32 s19, 2")
                e(f"s_cbranch_scc1 {sk}")
                e("s_lshl_b32 s71, s78, 14")
                e("s_lshl_b32 s72, s19, 13")
                e("s_add_u32 s71, s71, s72")
                e(f"buffer_load_dword v13, v12, {SO}, s71 offen")
            e(f"{sk}:")
        if UST and k == 8:
            e(f"""s_lshl_b32 s3, s19, 12
            v_add_u32 v2, s3, v14
            v_add_u32 v3, {W1A[7]}, v2
            v_add_u32 v2, {W1A[6]}, v2""")
            for s_ in range(8): e(f"ds_read_b128 {vr(16+4*s_,4)}, v{2+(s_>>2)} offset:{(s_&3)*1024}")
            e(f"""s_lshl_b32 s64, s20, 2
            s_add_u32 s64, s64, s19
            s_lshl_b32 s65, s23, 8
            s_add_u32 s65, s65, s64
            s_lshl_b32 s65, s65, 10
            s_mul_i32 s66, s64, 112
            s_lshl_b32 s3, s23, 2
            s_add_u32 s66, s66, s3
            s_lshl_b32 s66, s66, 10
            s_add_u32 s66, s66, {WS_H:#x}
            s_waitcnt lgkmcnt(0)""")
        if UST and k >= 8:
            SP = opt.get("sper", 2)
            for s_ in range(SP * (k - 8), min(8, SP * (k - 7))):
                if s_ < 4: e(f"s_add_u32 s3, s65, {WS_KV + s_*0x10000:#x}")
                else: e(f"s_add_u32 s3, s66, {(s_-4)*1024}")
                e(f"buffer_store_dwordx4 {vr(16+4*s_,4)}, v14, {SS}, s3 offen sc1")
            if k == opt.get("ugk", 12): signal(4, 3, WS_F1, 2, 3, max(0, min(8, SP * (k - 7)) - 4))
            if k == opt.get("ugh", 15): signal(24, 3, WS_F1H, 2, 3)
        if k == opt.get("pf2k", 5) and opt.get("pf2", 1):
            sk = lab("NOPF")
            e("s_cmp_lg_u32 s19, 1")
            e(f"s_cbranch_scc1 {sk}")
            srd(e, 44, 14, 1792 * 1024)
            srd(e, 48, 8, 512 * 1024)
            e("v_lshlrev_b32 v2, 7, v0")
            e("s_mul_i32 s71, s2, 7168")
            e("s_mov_b32 exec_hi, 0xffffff")
            e(f"buffer_load_dword v160, v2, {S2}, s71 offen")
            e("s_lshl_b32 s71, s2, 11")
            e("s_mov_b64 exec, 0xffff")
            e(f"buffer_load_dword v161, v2, {SO}, s71 offen")
            e("s_mov_b64 exec, -1")
            e(f"{sk}:")
        if k in (GK, CK, CK + 1):
            sk = lab("NOPOST")
            e("s_cmp_lg_u32 s19, 0")
            e(f"s_cbranch_scc1 {sk}")
            if k == GK: gather()
            if k == CK:
                e("s_mov_b32 s73, 0x20000")
                e("L_CHK:")
                e("s_waitcnt vmcnt(0)")
                e(f"v_xor_b32 v2, s61, v{G0}")
                for i in list(range(G0 + 1, G0 + 66)) + [G0 + 68, G0 + 69]: e(f"v_bitop3_b32 v2, v2, v{i}, s61 bitop3:0xf6")
                e("v_and_b32 v2, 0xff, v2")
                for i in (66, 67, 70, 71): e(f"v_bitop3_b32 v2, v2, v{G0+i}, s61 bitop3:0xf6")
                e("v_cmp_ne_u32 vcc, 0, v2")
                e("s_sub_u32 s73, s73, 1")
                e("s_cmp_eq_u32 s73, 0")
                e("s_cbranch_scc1 L_GOT")
                e("s_cmp_eq_u64 vcc, 0")
                e("s_cbranch_scc1 L_GOT")
                gather()
                e("s_branch L_CHK")
                e("L_GOT:")
            if k == CK + 1:
                e("s_mov_b32 s71, 0xffffff00")
                for i in list(range(G0, G0 + 66)) + [G0 + 68, G0 + 69]: e(f"v_and_b32 v{i}, s71, v{i}")
                for g in range(1, 16):
                    for h in range(4): e(f"v_add_f32 v{G0+h}, v{G0+h}, v{G0+4*g+h}")
                e(f"v_add_u32 v2, {L_ST}, v14")
                e(f"ds_write_b128 v2, {vr(G0+64,4)}")
                e(f"ds_write_b128 v2, {vr(G0+68,4)} offset:1024")
                e(f"ds_write_b128 v2, {vr(G0,4)} offset:2048")
                e("s_waitcnt lgkmcnt(0)")
                ldsadd(20, 2, 3)
            e(f"{sk}:")
    bflush()
    stamp(3)
    e("s_barrier")
    stamp(4)
    e("s_cmp_eq_u32 s77, 6")
    e("s_cbranch_scc1 L_KVDONE")
    e("s_cmp_eq_u32 s77, 4")
    e("s_cbranch_scc1 L_KV4")
    e("s_cmp_eq_u32 s77, 2")
    e("s_cbranch_scc1 L_KV2")
    poll(10, "s76", 11, 4)
    kvdma(0, 2)
    e("L_KV2:")
    kvdma(2, 4)
    e("L_KV4:")
    kvdma(4, 6)
    e("L_KVDONE:")
    e(f"v_add_u32 v2, {L_ONE}, v1")
    for q in range(4): e(f"v_mov_b32 v{8+q}, 0x3f803f80")
    e("ds_write_b128 v2, v[8:11]")
    smasks()
    e("v_mov_b32 v6, 0xffff")
    e("v_mov_b32 v7, 0xffff0000")
    for q in range(8):
        e(f"v_cndmask_b32 v{140+q}, 0, v6, s[{64+4*q}:{65+4*q}]")
        e(f"v_cndmask_b32 v12, 0, v7, s[{66+4*q}:{67+4*q}]")
        e(f"v_or_b32 v{140+q}, v{140+q}, v12")
    e("ds_write_b128 v2, v[140:143] offset:1024")
    e("ds_write_b128 v2, v[144:147] offset:2048")
    e("s_add_u32 s96, s19, 4")
    e("s_mov_b32 s97, 0")
    e("s_waitcnt vmcnt(0) lgkmcnt(0)")
    ldsadd(16, 2, 3)
    stamp(5)

    e("L_ATT:")
    e.vm = []; e.lg = []
    Q = 8
    K = lambda u: 12 + 4 * u
    V = lambda u, g: 48 + ((u & 1) * 2 + g) * 4
    S = lambda b: 64 + 16 * b
    P, O = 112, 120
    VNEG, M0_, M1_, NM, MK = 136, 137, 138, 139, 140
    VA, VSTR = 148, 149
    e(f"v_mov_b32 v{VNEG}, {NEG:#x}")
    e(f"""s_and_b32 s3, s96, 3
    s_lshl_b32 s26, s20, 2
    s_add_u32 s26, s26, s3
    s_add_u32 s25, s26, 1
    s_min_u32 s25, s25, 9
    s_lshr_b32 s62, s96, 2
    s_lshl_b32 s27, s23, 1
    s_add_u32 s27, s27, s62
    v_lshlrev_b32 v1, 4, v0
    s_lshl_b32 s63, s96, 10
    s_add_u32 s63, s63, {L_Q}
    v_add_u32 v3, s63, v1
    s_mul_i32 s62, s62, 12288
    s_lshl_b32 s3, s3, 10
    s_add_u32 s3, s3, s62
    s_add_u32 s62, s3, {L_K}
    v_add_u32 v4, s62, v1
    v_lshrrev_b32 v5, 5, v0
    v_lshlrev_b32 v5, 2, v5
    v_bfe_u32 v6, v0, 2, 2
    v_add_u32 v5, v5, v6
    v_lshlrev_b32 v5, 4, v5
    v_bfe_u32 v6, v0, 1, 1
    v_lshl_add_u32 v5, v6, 9, v5
    v_and_b32 v6, 1, v0
    v_lshl_add_u32 v5, v6, 3, v5
    s_add_u32 s3, s3, {L_V + 8192}
    v_add_u32 v5, s3, v5
    v_mov_b32 v6, {L_ONE}
    v_mov_b32 v7, 1024
    s_mov_b32 s98, 0xffff
    s_mov_b32 s99, 0xffff
    v_cndmask_b32 v5, v6, v5, s[98:99]
    v_cndmask_b32 v{VSTR}, 0, v7, s[98:99]
    v_lshlrev_b32 v7, 3, v{VSTR}
    v_sub_u32 v{VA+2}, v5, v7""")
    stamp(6)
    def owed():
        sk = lab("NOOWE")
        e("s_cmp_eq_u32 s97, 0")
        e(f"s_cbranch_scc1 {sk}")
        keepl = list(e.lg)
        signal(12, 3, WS_F1B, 152, 153)
        e.lg = keepl
        e("s_mov_b32 s97, 0")
        e(f"{sk}:")
    if opt.get("owu", 1) == 0: owed()
    ldswait(16, 8, 2, 6)
    e(f"s_setprio {opt.get('aprio', 0)}")
    stamp(7)
    def fill(buf, val, diag):
        for j in range(16):
            a, b = (f"v{VNEG}", val) if diag else (val, f"v{VNEG}")
            e(f"v_cndmask_b32 v{S(buf)+j}, {a}, {b}, s[{64+2*j}:{65+2*j}]")
    def smfma(u, buf, cin):
        e.lwait(("K", u))
        e(f"v_mfma_f32_32x32x16_bf16 {vr(S(buf),16)}, {vr(K(u),4)}, {vr(Q,4)}, {cin}")
    def vread(u, par=None, va=None):
        if va is None:
            if u == 0: e(f"v_mov_b32 v{VA}, v5")
            else: e(f"v_sub_u32 v{VA}, v{VA}, v{VSTR}")
            va = VA
        for g in range(2):
            r = V(u if par is None else par, g)
            for h in range(2): e.lds(f"ds_read_b64_tr_b16 v[{r+2*h}:{r+2*h+1}], v{va} offset:{g*256 + h*128}", ("V", u))
    PD, PFR = S(2), S(2) + 8
    if opt.get("noatt"): e("s_branch L_P2DONE")
    e(f"v_add_u32 v2, {L_ONE}, v1")
    e.lds(f"ds_read_b128 {vr(Q,4)}, v3", "Q")
    for u in [0, 8, 1]: e.lds(f"ds_read_b128 {vr(K(u),4)}, v4 offset:{(8-u)*1024}", ("K", u))
    vread(0); vread(8, 1, VA + 2)
    smfma(0, 0, "0"); smfma(8, 2, "0"); smfma(1, 1, "0")
    e.lwait(("V", 0))
    e.lds(f"ds_read_b128 {vr(MK,4)}, v2 offset:1024", "MK")
    e.lds(f"ds_read_b128 {vr(MK+4,4)}, v2 offset:2048", "MK")
    for u in range(2, 8): e.lds(f"ds_read_b128 {vr(K(u),4)}, v4 offset:{(8-u)*1024}", ("K", u))
    e("s_nop 2")
    s0 = S(0)
    for j in range(16): e(f"v_cndmask_b32 v{s0+j}, v{S(2)+j}, v{s0+j}, s[{64+2*j}:{65+2*j}]")
    for j in range(16): e(f"v_exp_f32 v{s0+j}, v{s0+j}")
    for q in range(8): e(f"v_cvt_pk_bf16_f32 v{P+q}, v{s0+2*q}, v{s0+2*q+1}")
    e.lwait("MK")
    for q in range(8): e(f"v_and_b32 v{PD+q}, v{MK+q}, v{P+q}")
    e.lwait(("V", 8))
    e(f"v_mfma_f32_32x32x16_bf16 {vr(O,16)}, {vr(V(0,0),4)}, {vr(PD,4)}, 0")
    for q in range(8): e(f"v_bfi_b32 v{PFR+q}, v{MK+q}, 0, v{P+q}")
    e(f"v_mfma_f32_32x32x16_bf16 {vr(O,16)}, {vr(V(0,1),4)}, {vr(PD+4,4)}, {vr(O,16)}")
    e("s_cmp_lt_u32 s25, 9")
    e("s_cbranch_scc1 L_NOFAR")
    e(f"v_mfma_f32_32x32x16_bf16 {vr(O,16)}, {vr(V(1,0),4)}, {vr(PFR,4)}, {vr(O,16)}")
    e(f"v_mfma_f32_32x32x16_bf16 {vr(O,16)}, {vr(V(1,1),4)}, {vr(PFR+4,4)}, {vr(O,16)}")
    e("L_NOFAR:")
    vread(1)
    e("s_cmp_eq_u32 s25, 1")
    e("s_cbranch_scc1 L_FCHK")
    def pv(u, g): e(f"v_mfma_f32_32x32x16_bf16 {vr(O,16)}, {vr(V(u,g),4)}, {vr(P+4*g,4)}, {vr(O,16)}")
    for u in range(1, 8):
        s_ = S(u % 2)
        if u + 1 <= 7: smfma(u + 1, (u + 1) % 2, "0")
        for j in range(2): e(f"v_exp_f32 v{s_+j}, v{s_+j}")
        if u > 1: pv(u - 1, 1)
        if u + 1 <= 7: vread(u + 1)
        for j in range(2, 8): e(f"v_exp_f32 v{s_+j}, v{s_+j}")
        for q in range(4): e(f"v_cvt_pk_bf16_f32 v{P+q}, v{s_+2*q}, v{s_+2*q+1}")
        for j in range(8, 10): e(f"v_exp_f32 v{s_+j}, v{s_+j}")
        e.lwait(("V", u))
        pv(u, 0)
        for j in range(10, 16): e(f"v_exp_f32 v{s_+j}, v{s_+j}")
        for q in range(4, 8): e(f"v_cvt_pk_bf16_f32 v{P+q}, v{s_+2*q}, v{s_+2*q+1}")
        if u == opt.get("owu", 1): owed()
        if u < 7:
            e(f"s_cmp_eq_u32 s25, {u+1}")
            e(f"s_cbranch_scc1 L_FX{u&1}")
    e("L_FX1:")
    e("s_nop 1")
    pv(1, 1)
    e("s_branch L_FCHK")
    e("L_FX0:")
    e("s_nop 1")
    pv(0, 1)
    e("L_FCHK:")
    if opt.get("owu", 1): owed()
    e("s_mov_b32 s52, 0x1f800000")
    e("s_mov_b32 s53, 0x5f800000")
    e("s_mov_b32 s3, 0x7f800000")
    e("s_waitcnt lgkmcnt(0)")
    e("s_nop 7")
    e(f"v_add_f32 v6, |v{O}|, |v{O+1}|")
    e(f"v_add_f32 v7, |v{O+2}|, |v{O+3}|")
    e(f"v_add_f32 v2, |v{O+4}|, |v{O+5}|")
    e(f"v_add_f32 v3, |v{O+6}|, |v{O+7}|")
    e(f"v_cmp_le_f32 s[62:63], s52, v{O+8}")
    e(f"v_cmp_ge_f32 s[98:99], s53, v{O+8}")
    e("v_add_f32 v6, v6, v7")
    e("v_add_f32 v2, v2, v3")
    e("v_add_f32 v6, v6, v2")
    e("s_and_b64 s[62:63], s[62:63], s[98:99]")
    e("v_cmp_gt_f32 vcc, s3, v6")
    e("s_nop 0")
    e("s_and_b64 s[62:63], s[62:63], vcc")
    e("s_cmp_eq_u64 s[62:63], -1")
    if opt.get("forceslow"): e("s_cmp_eq_u32 s62, 12345")
    e("s_cbranch_scc1 L_P2DONE")
    e.lg = []
    e(f"v_mov_b32 v{M0_}, v{VNEG}")
    e(f"v_mov_b32 v{M1_}, v{VNEG}")
    fill(0, "0", True)
    e("s_nop 1")
    smfma(0, 0, vr(S(0), 16))
    smfma(1, 1, "0")
    for u in range(9):
        if u + 2 <= 8:
            if u + 2 == 8:
                fill((u + 2) % 3, "0", False); e("s_nop 1")
                smfma(u + 2, (u + 2) % 3, vr(S((u + 2) % 3), 16))
            else:
                smfma(u + 2, (u + 2) % 3, "0")
        if u == 0: e("s_nop 9")
        for q in range(8):
            m = M0_ + (q & 1)
            e(f"v_max3_f32 v{m}, v{S(u%3)+2*q}, v{S(u%3)+2*q+1}, v{m}")
        if u < 8:
            e(f"s_cmp_eq_u32 s25, {u+1}")
            e("s_cbranch_scc1 L_P1DONE")
    e("L_P1DONE:")
    vread(0)
    e(f"v_max_f32 v{M0_}, v{M0_}, v{M1_}")
    e(f"v_mov_b32 v{M1_}, v{M0_}")
    e("s_nop 1")
    e(f"v_permlane32_swap_b32 v{M0_}, v{M1_}")
    e("s_nop 1")
    e(f"v_max_f32 v{M0_}, v{M0_}, v{M1_}")
    e(f"v_sub_f32 v{NM}, 0, v{M0_}")
    e("s_nop 3")
    CB = S(2)
    for j in range(16): e(f"v_mov_b32 v{CB+j}, v{NM}")
    fill(0, f"v{NM}", True)
    e("s_nop 1")
    smfma(0, 0, vr(S(0), 16))
    for u in range(9):
        s = S(u % 2)
        if u + 1 <= 8:
            nb_ = (u + 1) % 2
            if u + 1 == 8:
                fill(nb_, f"v{NM}", False); e("s_nop 1")
                smfma(u + 1, nb_, vr(S(nb_), 16))
            else:
                smfma(u + 1, nb_, vr(CB, 16))
            vread(u + 1)
        if u == 0: e("s_nop 6")
        for j in range(8): e(f"v_exp_f32 v{s+j}, v{s+j}")
        for q in range(4): e(f"v_cvt_pk_bf16_f32 v{P+q}, v{s+2*q}, v{s+2*q+1}")
        for j in range(8, 16): e(f"v_exp_f32 v{s+j}, v{s+j}")
        e.lwait(("V", u))
        e(f"v_mfma_f32_32x32x16_bf16 {vr(O,16)}, {vr(V(u,0),4)}, {vr(P,4)}, {'0' if u == 0 else vr(O,16)}")
        for q in range(4, 8): e(f"v_cvt_pk_bf16_f32 v{P+q}, v{s+2*q}, v{s+2*q+1}")
        e("s_nop 1")
        e(f"v_mfma_f32_32x32x16_bf16 {vr(O,16)}, {vr(V(u,1),4)}, {vr(P+4,4)}, {vr(O,16)}")
        if u < 8:
            e(f"s_cmp_eq_u32 s25, {u+1}")
            e("s_cbranch_scc1 L_P2X")
    e("L_P2X:")
    e("s_waitcnt lgkmcnt(0)")
    e("s_nop 12")
    e("L_P2DONE:")
    e("s_lshl_b32 s3, s26, 5")
    e("s_add_u32 s3, s3, s27")
    e("s_lshl_b32 s3, s3, 10")
    e(f"s_add_u32 s3, s3, {WS_O:#x}")
    e(f"v_rcp_f32 v7, v{O+8}")
    e("s_nop 0")
    for j in range(8): e(f"v_mul_f32 v{O+j}, v{O+j}, v7")
    for q in range(4): e(f"v_cvt_pk_bf16_f32 v{P+q}, v{O+2*q}, v{O+2*q+1}")
    e(f"buffer_store_dwordx4 {vr(P,4)}, v1, {SS}, s3 offen {'' if opt.get('hplain') else 'sc1'}")
    gate('att')
    stamp(8)
    signal(8, 7, WS_F2)
    stamp(9)
    e("s_cmp_lg_u32 s2, 0")
    e("s_cbranch_scc1 L_FIN")
    e("s_cmp_lg_u32 s96, 1")
    e("s_cbranch_scc1 L_FIN")
    e("v_lshlrev_b32 v6, 7, v0")
    e("s_mov_b32 s63, 0x20000")
    e("L_BCHK:")
    for g in range(4):
        e(f"s_mov_b32 s62, {WS_F2 + g*8192:#x}")
        e(f"buffer_load_dword v{8+g}, v6, {SS}, s62 offen sc1")
    e("s_waitcnt vmcnt(0)")
    e("v_xor_b32 v7, s61, v8")
    for i in range(9, 12): e(f"v_bitop3_b32 v7, v7, v{i}, s61 bitop3:0xf6")
    e("v_cmp_ne_u32 vcc, 0, v7")
    e("s_sub_u32 s63, s63, 1")
    e("s_cmp_eq_u32 s63, 0")
    e("s_cbranch_scc1 L_FIN")
    e("s_cmp_lg_u64 vcc, 0")
    e("s_cbranch_scc1 L_BCHK")
    e("s_mov_b64 exec, 1")
    e("v_mov_b32 v6, 0")
    e("v_mov_b32 v7, s61")
    e(f"s_mov_b32 s62, {WS_EP:#x}")
    e(f"buffer_store_dword v7, v6, {SS}, s62 offen sc1")
    e("s_mov_b64 exec, -1")
    e("L_FIN:")
    e.vm = []; e.lg = []
    srd(e, 28, 10, 2048 * 1024)
    e(f"""v_lshrrev_b32 v7, 3, v0
    v_and_b32 v14, 7, v0
    v_lshlrev_b32 v8, 4, v14
    v_lshl_add_u32 v2, v7, 10, v8
    s_lshl_b32 s62, s58, 16
    s_lshl_b32 s3, s96, 13
    s_add_u32 s62, s62, s3
    s_lshl_b32 s3, s59, 7
    s_add_u32 s62, s62, s3""")
    e(f"buffer_load_dwordx4 v[8:11], v2, {SX}, s62 offen")
    e(f"""s_and_b32 s3, s96, 3
    s_lshl_b32 s3, s3, 10
    s_cmp_ge_u32 s96, 4
    s_mov_b32 s63, {BREG[0]}
    s_cselect_b32 s63, {BREG[2]}, s63
    s_mov_b32 s64, {BREG[1]}
    s_cselect_b32 s64, {BREG[3]}, s64
    s_add_u32 s63, s63, s3
    s_add_u32 s64, s64, s3
    v_and_b32 v12, 3, v0
    v_lshlrev_b32 v12, 1, v12
    v_xor_b32 v12, v12, v7
    v_bfe_u32 v13, v0, 2, 1
    v_xor_b32 v12, v12, v13
    v_lshlrev_b32 v12, 4, v12
    v_lshl_add_u32 v12, v7, 7, v12
    v_mov_b32 v15, s63
    v_mov_b32 v16, s64
    v_cmp_eq_u32 vcc, 1, v13
    s_nop 1
    v_cndmask_b32 v15, v15, v16, vcc
    v_add_u32 v24, v15, v12
    v_xor_b32 v25, 16, v24""")
    stamp(10)
    e("s_barrier")
    stamp(11)
    R = lambda src, h: 48 + src * 8 + h * 4
    for src in range(4):
        for h in range(2): e.lds(f"ds_read_b128 {vr(R(src,h),4)}, v{24+h} offset:{src*4096}", src)
    e("s_mov_b32 s3, 0xffff0000")
    e("s_waitcnt vmcnt(0)")
    for q in range(4):
        e(f"v_lshlrev_b32 v{32+2*q}, 16, v{8+q}")
        e(f"v_and_b32 v{33+2*q}, s3, v{8+q}")
    for src in range(4):
        e.lwait(src)
        for q in range(4): e(f"v_pk_add_f32 {pk(32+2*q)}, {pk(32+2*q)}, {pk(R(src,0)+2*q)}")
    for q in range(4): e(f"v_cvt_pk_bf16_f32 v{40+q}, v{32+2*q}, v{33+2*q}")
    e("buffer_store_dwordx4 v[40:43], v2, s[28:31], s62 offen " + opt.get("ost", "nt"))
    if opt.get("deadline"):
        e("v_readlane_b32 s4, v167, 0")
        e("L_DLY:")
        e("s_memrealtime s[6:7]")
        e("s_waitcnt lgkmcnt(0)")
        e("s_sub_u32 s8, s6, s4")
        e(f"s_cmp_lt_u32 s8, {opt['deadline']}")
        e("s_cbranch_scc1 L_DLY")
    if opt.get("delay"):
        tm = "s_memrealtime" if opt.get("delayrt") else "s_memtime"
        e(f"{tm} s[4:5]")
        e("s_waitcnt lgkmcnt(0)")
        e("L_DLY:")
        e(f"{tm} s[6:7]")
        e("s_waitcnt lgkmcnt(0)")
        e("s_sub_u32 s8, s6, s4")
        e(f"s_cmp_lt_u32 s8, {opt['delay']}")
        e("s_cbranch_scc1 L_DLY")
    if ST:
        e("L_DUMP:")
        stamp(12)
        e("s_waitcnt vmcnt(0)")
        stamp(13); stamp(14, True)
        if opt.get("dbgst") is not None:
            e("s_load_dwordx2 s[4:5], s[0:1], 56")
            e(f"s_cmp_lg_u32 s2, {opt['dbgst']}")
            e("s_cbranch_scc1 L_END")
            e("s_cmp_lg_u32 s18, 4")
            e("s_cbranch_scc1 L_END")
            e(f"v_readlane_b32 s6, v{VST}, 1")
            e(f"v_readlane_b32 s7, v{VST}, 0")
            e("s_waitcnt lgkmcnt(0)")
            e(f"v_subrev_u32 v3, s6, v{VST}")
            e(f"v_subrev_u32 v4, s7, v{VST}")
            e("v_cmp_eq_u32 vcc, 14, v0")
            e("s_nop 1")
            e("v_cndmask_b32 v3, v3, v4, vcc")
            e("v_lshlrev_b32 v2, 2, v0")
            e("s_mov_b64 exec, 0xffff")
            e("global_store_dword v2, v3, s[4:5]")
            e("s_endpgm")
        e("s_mul_i32 s3, s2, 12")
        e("s_add_u32 s3, s3, s18")
        e("s_lshl_b32 s3, s3, 7")
        e("s_add_u32 s3, s3, 0x1000000")
        e("v_lshl_add_u32 v2, v0, 2, s3")
        e("s_mov_b64 exec, 0xffffffff")
        e(f"global_store_dword v2, v{VST}, s[16:17]")
    e("L_END:")
    e("s_endpgm")
    return name, e.text(), kd(name, 168), (256, 768, LDS)

def build(opt, path):
    n, t, k, (g, b, lds) = gen(opt)
    ref = open(f"cdna_kernels/{NAME}.s.ref").read().split("\n")
    head = [l for l in ref if l.startswith(";") and "@launch" not in l and "Override launch" not in l and "grid=ceil" not in l]
    s = "\n".join(head[:10]) + "\n"
    dm = opt.get("dummy")
    if dm:
        ll = [f"; @launch kernel=dum_kernel grid=({dm[0]},1,1) block=({dm[1]},1,1) lds={dm[2]}\n", f"; @launch kernel={n} grid=({g},1,1) block=({b},1,1) lds={lds}\n"]
        s += "".join(ll if dm[4] == 0 else ll[::-1])
    else: s += f"; @launch grid=({g},1,1) block=({b},1,1) lds={lds}\n"
    s += '.amdgcn_target "amdgcn-amd-amdhsa--gfx950"\n.text\n'
    if dm:
        s += """.globl dum_kernel
.p2align 8
.type dum_kernel,@function
dum_kernel:
  s_memrealtime s[4:5]
  s_waitcnt lgkmcnt(0)
L_DD:
  s_memrealtime s[6:7]
  s_waitcnt lgkmcnt(0)
  s_sub_u32 s8, s6, s4
  s_cmp_lt_u32 s8, 1000
  s_cbranch_scc1 L_DD
  s_endpgm
"""
        k = k + ".p2align 6\n" + kd("dum_kernel", dm[3])
    s += f".globl {n}\n.p2align 8\n.type {n},@function\n" + t
    s += '.section .rodata,"a"\n.p2align 6\n' + k
    open(path, "w").write(s)

if __name__ == "__main__":
    import sys, json
    opt = json.loads(sys.argv[2]) if len(sys.argv) > 2 else {}
    build(opt, sys.argv[1])
```

```python
from emit import *
from alloc import plan3, plan4

NAME = "parallel_sum__sliding_block__dense_activation_relu__prompt"
WS_KV, WS_H, WS_O = 0, 0x600000, 0xD00000
WS_RS = 0xF00000
WS_CS = 0xF10000
WS_EP = 0xF80000
WS_F1, WS_F1B, WS_F2, WS_F1H = 0xF90000, 0xFA0000, 0xFB0000, 0xFC0000
WS_BYTES = 0x1000000
EPC = 0x9E3779B9
L_ST = 158720
L_MISC = L_ST + 3072
LDS = L_MISC + 64
ORD2 = list(range(6, 16)) + list(range(6))
NEG = 0xf149f2ca
pk = lambda a: f"v[{a}:{a+1}]"
SW, S1, SX, SS, S2, SO = "s[28:31]", "s[32:35]", "s[36:39]", "s[40:43]", "s[44:47]", "s[48:51]"
VST = 167

def reduce32(e, regs, tmp):
    for ctl in ("quad_perm:[1,0,3,2]", "quad_perm:[2,3,0,1]", "row_half_mirror", "row_mirror"):
        e("s_nop 1")
        for r in regs: e(f"v_add_f32_dpp v{r}, v{r}, v{r} {ctl} row_mask:0xf bank_mask:0xf")
    for r, t in zip(regs, tmp): e(f"v_mov_b32 v{t}, v{r}")
    e("s_nop 1")
    for r, t in zip(regs, tmp): e(f"v_permlane16_swap_b32 v{r}, v{t}")
    e("s_nop 1")
    for r, t in zip(regs, tmp): e(f"v_add_f32 v{r}, v{r}, v{t}")

def gen(opt):
    e = Em()
    name = NAME + "_kernel"
    ST = opt.get("stamps")
    NB = 6
    NT = opt.get("nt", "")
    UNT = opt.get("unt", "")
    PL = opt.get("pl", 2)
    XA, W1A, W2A, FIN = plan3(PL, opt.get("w2l", 2), NB, opt.get("ust", 0))
    if not opt.get("ust", 0): XA, W1A, W2A, FIN = plan4(PL, NB, opt.get("w2t", 5), opt.get("kvlow", 1))
    BREG = [FIN[f"B{j}"][1] for j in range(NB)]
    BT = [max(FIN[f"B{j}"][0], min(16, opt.get("bt0", 15) + j)) for j in range(NB)]
    L_K, L_V, L_Q, L_ONE = FIN["K"], FIN["V"], FIN["Q"], FIN["ONES"]
    def stamp(i, rt=False):
        if not ST: return
        e(("s_memrealtime" if rt else "s_memtime") + " s[100:101]")
        e("s_waitcnt lgkmcnt(0)")
        e(f"v_writelane_b32 v{VST}, s100, {i}")
        if opt.get("rtall") and not rt:
            e("s_memrealtime s[100:101]")
            e("s_waitcnt lgkmcnt(0)")
            e(f"v_writelane_b32 v{VST}, s100, {16+i}")
    BK = opt.get("bk", [])
    def bstamp(k):
        if ST and k in BK: e(f"s_memtime s[{80+2*BK.index(k)}:{81+2*BK.index(k)}]")
    def bflush():
        if ST and BK:
            e("s_waitcnt lgkmcnt(0)")
            for i in range(len(BK)): e(f"v_writelane_b32 v{VST}, s{80+2*i}, {16+i}")
    uid = [0]
    def lab(p):
        uid[0] += 1
        return f"{p}_{uid[0]}"
    def apoll_issue(voff, soff, vd, tag):
        e.vmem(f"buffer_load_dword v{vd}, v{voff}, {SS}, {soff} offen sc1", tag)
    def apoll_check(voff, soff, vtag, vd, tag):
        D = lab("AOK")
        e.vwait(tag)
        e(f"v_cmp_ne_u32 vcc, v{vtag}, v{vd}")
        e("s_nop 1")
        e("s_cmp_eq_u64 vcc, 0")
        e(f"s_cbranch_scc1 {D}")
        keep = list(e.vm); keepl = list(e.lg)
        poll(voff, soff, vtag, vd)
        e.vm = keep; e.lg = keepl
        e(f"{D}:")
    def poll(voff, soff, vtag, vd):
        L, D = lab("POLL"), lab("POLLED")
        e("s_mov_b32 s63, 0x40000")
        e(f"{L}:")
        e(f"buffer_load_dword v{vd}, v{voff}, {SS}, {soff} offen sc1")
        e("s_waitcnt vmcnt(0) lgkmcnt(0)")
        e(f"v_cmp_ne_u32 vcc, v{vtag}, v{vd}")
        e("s_sub_u32 s63, s63, 1")
        e("s_cmp_eq_u32 s63, 0")
        e(f"s_cbranch_scc1 {D}")
        e("s_cmp_lg_u64 vcc, 0")
        e(f"s_cbranch_scc1 {L}")
        e(f"{D}:")
        e.vm = []; e.lg = []
    def ldswait(off, val, va, vb):
        L, D = lab("LW"), lab("LWOK")
        e(f"v_mov_b32 v{va}, {L_MISC}")
        e("s_mov_b32 s63, 0x400000")
        e(f"{L}:")
        e(f"ds_read_b32 v{vb}, v{va} offset:{off}")
        e("s_sub_u32 s63, s63, 1")
        e("s_waitcnt lgkmcnt(0)")
        e(f"v_readfirstlane_b32 s62, v{vb}")
        e("s_cmp_eq_u32 s63, 0")
        e(f"s_cbranch_scc1 {D}")
        e(f"s_cmp_ge_u32 s62, {val}")
        e(f"s_cbranch_scc1 {D}")
        e("s_sleep 1")
        e(f"s_branch {L}")
        e(f"{D}:")
        e.lg = []
    def ldsadd(off, va, vb):
        e(f"v_mov_b32 v{va}, {L_MISC}")
        e(f"v_mov_b32 v{vb}, 1")
        e("s_mov_b64 exec, 1")
        e(f"ds_add_u32 v{va}, v{vb} offset:{off}")
        e("s_mov_b64 exec, -1")
    def smasks():
        for j in range(16):
            b0 = (j >> 2) * 8 + (j & 3)
            e(f"s_mov_b32 s{64+2*j}, {(0xffffffff << b0) & 0xffffffff:#x}")
            e(f"s_mov_b32 s{65+2*j}, {(0xffffffff << (b0+4)) & 0xffffffff:#x}")
    def asig1(coff, vm):
        e(f"s_waitcnt vmcnt({vm})")
        e("s_mov_b64 exec, 1")
        e.lds(f"ds_add_rtn_u32 v164, v6, v165 offset:{coff}", "sg")
        e("s_mov_b64 exec, -1")
    def asig2(last, base):
        N = lab("NOFLAG")
        e.lwait("sg")
        e("v_readfirstlane_b32 s63, v164")
        e(f"s_add_u32 s62, s24, {base:#x}")
        e(f"s_cmp_lg_u32 s63, {last}")
        e(f"s_cbranch_scc1 {N}")
        e("v_mov_b32 v164, s61")
        e("s_mov_b64 exec, 1")
        e(f"buffer_store_dword v164, off, {SS}, s62 sc1")
        e("s_mov_b64 exec, -1")
        e(f"{N}:")
    def signal(coff, last, base, va=2, vb=3, vm=0):
        N = lab("NOFLAG")
        e(f"s_waitcnt vmcnt({vm})")
        e(f"v_mov_b32 v{va}, {L_MISC}")
        e(f"v_mov_b32 v{vb}, 1")
        e("s_mov_b64 exec, 1")
        e(f"ds_add_rtn_u32 v{vb}, v{va}, v{vb} offset:{coff}")
        e(f"s_add_u32 s62, s24, {base:#x}")
        e("s_waitcnt lgkmcnt(0)")
        e(f"v_readfirstlane_b32 s63, v{vb}")
        e(f"s_cmp_lg_u32 s63, {last}")
        e(f"s_cbranch_scc1 {N}")
        e(f"v_mov_b32 v{va}, 0")
        e(f"v_mov_b32 v{vb}, s61")
        e(f"buffer_store_dword v{vb}, v{va}, {SS}, s62 offen sc1")
        e(f"{N}:")
        e("s_mov_b64 exec, -1")
        e.lg = []

    e(f"{name}:")
    e("s_cmp_ge_u32 s2, 256")
    e("s_cbranch_scc1 L_END")
    stamp(0, True); stamp(1)
    def gate(nm):
        if opt.get("gate") == nm:
            L = lab("GATE")
            e("v_readlane_b32 s98, v167, 0")
            e(f"{L}:")
            e(("s_memtime" if opt.get("gcyc") else "s_memrealtime") + " s[100:101]")
            e("s_waitcnt lgkmcnt(0)")
            e("s_sub_u32 s99, s100, s98")
            e(f"s_cmp_lt_u32 s99, {opt.get('gcyc', 3000)}")
            e(f"s_cbranch_scc1 {L}")
    if opt.get("deadline") or opt.get("gate"): e(("s_memtime" if opt.get("gcyc") else "s_memrealtime") + " s[98:99]"); e("s_waitcnt lgkmcnt(0)"); e("v_writelane_b32 v167, s98, 0")
    e("s_load_dwordx4 s[4:7], s[0:1], 0")
    e("s_load_dwordx4 s[12:15], s[0:1], 32")
    e("s_load_dwordx2 s[16:17], s[0:1], 64")
    e("s_load_dwordx2 s[8:9], s[0:1], 16")
    e("s_load_dwordx2 s[10:11], s[0:1], 48")
    e("v_lshrrev_b32 v1, 6, v0")
    e("v_and_b32 v0, 63, v0")
    e("v_readfirstlane_b32 s18, v1")
    e("""s_and_b32 s3, s2, 1
    s_lshl_b32 s20, s3, 3
    s_lshr_b32 s24, s2, 5
    s_add_u32 s20, s20, s24
    s_bfe_u32 s21, s2, 0x20001
    s_bfe_u32 s22, s2, 0x20003
    s_lshl_b32 s23, s21, 2
    s_add_u32 s23, s23, s22
    s_lshl_b32 s24, s20, 4
    s_add_u32 s24, s24, s23
    s_lshl_b32 s24, s24, 7
    s_and_b32 s19, s18, 3
    s_lshl_b32 s3, s3, 2
    s_add_u32 s58, s3, s21
    s_lshl_b32 s58, s58, 2
    s_lshr_b32 s59, s2, 6
    s_add_u32 s58, s58, s59
    s_bfe_u32 s59, s2, 0x30003""")
    if opt.get("map2", 0):
        e("""s_and_b32 s20, s2, 3
        s_lshl_b32 s20, s20, 2
        s_lshr_b32 s3, s2, 6
        s_add_u32 s20, s20, s3
        s_bfe_u32 s23, s2, 0x10002
        s_lshl_b32 s23, s23, 3
        s_bfe_u32 s3, s2, 0x30003
        s_add_u32 s23, s23, s3
        s_lshl_b32 s24, s20, 4
        s_add_u32 s24, s24, s23
        s_lshl_b32 s24, s24, 7""")
    if opt.get("map3", 0):
        e("""s_and_b32 s20, s2, 7
        s_lshl_b32 s20, s20, 1
        s_lshr_b32 s3, s2, 7
        s_add_u32 s20, s20, s3
        s_bfe_u32 s23, s2, 0x40003
        s_lshl_b32 s24, s20, 4
        s_add_u32 s24, s24, s23
        s_lshl_b32 s24, s24, 7""")
    if opt.get("own", 1):
        e("s_lshl_b32 s58, s20, 1")
        e("s_lshr_b32 s59, s23, 3")
        e("s_add_u32 s58, s58, s59")
        e("s_and_b32 s59, s23, 7")
    e("s_waitcnt lgkmcnt(0)")
    if opt.get("wsoff"):
        e(f"s_add_u32 s16, s16, {opt['wsoff'] << 20:#x}")
        e("s_addc_u32 s17, s17, 0")
    srd(e, 36, 4, 2048 * 1024)
    srd(e, 28, 6, 512 * 3072)
    srd(e, 32, 12, 512 * 3584)
    srd(e, 40, 16, WS_BYTES)
    e("s_cmp_ge_u32 s18, 8")
    e("s_cbranch_scc1 L_UTIL")
    e("s_cmp_ge_u32 s18, 4")
    e("s_cbranch_scc1 L_CONS")

    e(f"""v_and_b32 v5, 7, v0
    v_lshrrev_b32 v2, 3, v0
    v_lshrrev_b32 v3, 4, v0
    v_xor_b32 v3, v3, v5
    v_lshlrev_b32 v2, 10, v2
    v_lshl_add_u32 v12, v3, 4, v2
    v_xor_b32 v13, 64, v12
    s_lshl_b32 s65, s20, 17
    s_lshl_b32 s3, s18, 15
    s_add_u32 s65, s65, s3
    s_lshl_b32 s67, s18, 12""")
    def issueX(P):
        e(f"s_add_u32 m0, s67, {XA[P]}")
        e(f"s_add_u32 s74, s65, {P*128}")
        for a in range(4):
            e.vmem(f"buffer_load_dwordx4 v{12+(a&1)}, {SX}, s74 offen offset:{a*1024} {NT} lds", ("x", P))
            if a < 3: e(f"s_add_u32 s74, s74, {8192-1024}")
    issueX(0)
    e("""v_lshrrev_b32 v2, 5, v0
    v_bfe_u32 v3, v0, 3, 2
    v_lshl_add_u32 v3, v2, 3, v3
    v_bfe_u32 v4, v0, 4, 2
    v_lshlrev_b32 v4, 1, v4
    v_xor_b32 v4, v4, v5
    v_lshlrev_b32 v4, 4, v4
    v_mul_u32_u24 v10, 3072, v3
    v_add_u32 v10, v10, v4
    v_mul_u32_u24 v11, 3584, v3
    v_add_u32 v11, v11, v4
    s_lshr_b32 s52, s18, 1
    s_lshl_b32 s52, s52, 5
    s_and_b32 s62, s18, 1
    s_lshl_b32 s3, s62, 2
    s_add_u32 s52, s52, s3
    s_lshl_b32 s3, s23, 7
    s_mul_i32 s53, s52, 3072
    s_add_u32 s53, s53, s3
    s_add_u32 s53, s53, 1024
    s_mul_i32 s54, s52, 3584
    s_add_u32 s54, s54, s3""")
    def issueW(c):
        for ah in range(2):
            e(f"s_add_u32 m0, s67, {W1A[c] + ah*2048}")
            e(f"s_add_u32 s74, s53, {(64*c + 16*ah)*3072}")
            e.vmem(f"buffer_load_dwordx4 v10, {SW}, s74 offen {NT} lds", ("w", c))
            e(f"s_add_u32 m0, s67, {W1A[c] + ah*2048 + 1024}")
            e(f"s_add_u32 s74, s54, {(64*c + 16*ah)*3584}")
            e.vmem(f"buffer_load_dwordx4 v11, {S1}, s74 offen {NT} lds", ("w", c))
    def esetup():
        e("""v_lshrrev_b32 v2, 4, v0
        v_bfe_u32 v3, v0, 2, 2
        v_lshl_add_u32 v3, v2, 3, v3
        v_mul_u32_u24 v16, 3072, v3
        v_and_b32 v2, 1, v2
        v_lshlrev_b32 v2, 1, v2
        v_and_b32 v3, 3, v0
        v_xor_b32 v2, v2, v3
        v_lshl_add_u32 v16, v2, 4, v16
        s_and_b32 s62, s18, 1
        s_lshl_b32 s3, s62, 7""")
        for j in range(2):
            e(f"""v_add_u32 v2, s3, v0
            v_add_u32 v2, {64*j}, v2
            v_mul_u32_u24 v3, 10923, v2
            v_lshrrev_b32 v3, 16, v3
            v_mul_u32_u24 v4, 6, v3
            v_sub_u32 v4, v2, v4
            v_bfe_u32 v6, v3, 2, 2
            v_lshlrev_b32 v6, 3, v6
            v_lshrrev_b32 v7, 4, v3
            v_lshl_add_u32 v6, v7, 2, v6
            v_and_b32 v7, 3, v3
            v_add_u32 v6, v6, v7
            v_mul_u32_u24 v{17+j}, 3584, v6
            v_lshl_add_u32 v{17+j}, v4, 4, v{17+j}""")
        e("""s_cmp_eq_u32 s62, 1
        s_cselect_b32 s3, 0x80000000, 0
        v_or_b32 v18, s3, v18
        s_lshr_b32 s3, s18, 1
        s_mul_i32 s55, s52, 3072
        s_lshl_b32 s64, s23, 6
        s_add_u32 s55, s55, s64
        s_mul_i32 s56, s3, 114688
        s_mul_i32 s64, s23, 96
        s_add_u32 s56, s56, s64
        s_add_u32 s56, s56, 2048
        s_mul_i32 s57, s3, 5120
        s_lshl_b32 s64, s62, 10
        s_add_u32 s60, s57, s64
        s_lshl_b32 s64, s62, 11
        s_add_u32 s57, s57, s64
        s_add_u32 s64, s57, 1024
        s_cmp_eq_u32 s62, 1
        s_cselect_b32 s64, 8192, s64""")
    def issueW2(c):
        p = ORD2[2 * c]
        base = W2A[c][1]
        e(f"s_add_u32 m0, s60, {base}")
        e(f"s_add_u32 s74, s55, {p*32*3072}")
        e.vmem(f"buffer_load_dwordx4 v16, {SW}, s74 offen {NT} lds", ("w2", c))
        e(f"s_add_u32 m0, s57, {base + 2048}")
        e(f"s_add_u32 s74, s56, {p*32*3584}")
        e.vmem(f"buffer_load_dwordx4 v17, {S1}, s74 offen {NT} lds", ("w2", c))
        e(f"s_add_u32 m0, s64, {base + 2048}")
        e("s_nop 0")
        e.vmem(f"buffer_load_dwordx4 v18, {S1}, s74 offen {NT} lds", ("w2", c))
    NF2, NS, NA = 14, 18, 4
    A0 = 20
    AF = lambda sg, tb, kk: A0 + (sg % NA) * 16 + (tb * 2 + kk) * 4
    ACB = A0 + NA * 16
    GACC = lambda tb, nb: ACB + (tb * 2 + nb) * 16
    BFB = ACB + 64
    BF = lambda kk, nb: BFB + (kk * 2 + nb) * 4
    assert BFB + 16 <= VST
    def gsetup():
        srd(e, 44, 14, 1792 * 1024)
        srd(e, 48, 8, 512 * 1024)
        e(f"""v_lshrrev_b32 v8, 3, v0
        v_bfe_u32 v2, v0, 4, 1
        v_lshlrev_b32 v2, 2, v2
        v_xor_b32 v9, v5, v2
        v_lshlrev_b32 v9, 4, v9
        v_lshl_add_u32 v14, v8, 10, v9
        v_lshrrev_b32 v2, 2, v8
        v_lshlrev_b32 v2, 3, v2
        v_and_b32 v8, 3, v8
        v_add_u32 v8, v8, v2
        v_lshl_add_u32 v15, v8, 10, v9
        v_lshlrev_b32 v1, 4, v0
        s_lshl_b32 s3, s59, 7
        s_lshl_b32 s70, s18, 18
        s_add_u32 s70, s70, s3
        s_mul_i32 s78, s18, {12*16*1024}
        s_add_u32 s78, s78, s3
        s_lshl_b32 s71, s18, 17
        s_add_u32 s71, s71, s3
        s_mul_i32 s72, s58, {2*112*1024}
        s_add_u32 s72, s72, {WS_H:#x}
        s_mul_i32 s79, s18, {12*1024}
        s_add_u32 s79, s79, s72
        s_lshl_b32 s3, s18, 14
        s_add_u32 s72, s72, s3
        s_lshl_b32 s73, s58, 16
        s_lshl_b32 s3, s18, 13
        s_add_u32 s73, s73, s3
        s_add_u32 s73, s73, {WS_O:#x}
        s_and_b32 s3, s58, 3
        s_cmp_eq_u32 s3, s18
        s_cselect_b32 s26, 1, 0
        s_cmp_eq_u32 s59, s18
        s_cselect_b32 s27, 1, 0
        s_add_u32 s3, s18, 4
        s_cmp_eq_u32 s59, s3
        s_cselect_b32 s21, 1, 0
        s_lshl_b32 s69, s58, 1
        s_add_u32 s69, s69, s59
        s_and_b32 s69, s69, {opt.get("rotm", 7)}
        s_sub_u32 s25, s69, 6
        s_cmp_ge_u32 s69, 6
        s_cselect_b32 s25, s25, s69""")
    KS = [(2 * i, False) for i in range(8)] + [(64 + 2 * i, True) for i in range(6)]
    ROT = opt.get("rot", 0)
    def ridx(sg):
        if sg < 8:
            e(f"s_add_u32 s68, s69, {sg}")
            e("s_and_b32 s68, s68, 7")
        elif sg < NF2:
            e(f"s_add_u32 s68, s25, {sg-8}")
            e("s_sub_u32 s3, s68, 6")
            e("s_cmp_ge_u32 s68, 6")
            e("s_cselect_b32 s68, s3, s68")
        else:
            e(f"s_add_u32 s68, s69, {sg-NF2}")
            e("s_and_b32 s68, s68, 3")
    def issueB(sg):
        if ROT:
            ridx(sg)
            e("s_lshl_b32 s68, s68, 15")
            e(f"s_add_u32 s68, s68, {'s70' if sg < 8 else 's78' if sg < NF2 else 's71'}")
        for a in range(4):
            e(f"s_add_u32 m0, s67, {BREG[sg % NB] + a*1024}")
            if sg < NF2:
                k16, ex = KS[sg]
                if ROT: e(f"s_add_u32 s74, s68, {((1024 if ex else 0) + 8*a)*1024}")
                else: e(f"s_add_u32 s74, {'s78' if ex else 's70'}, {(16*k16 + 8*a)*1024}")
                e.vmem(f"buffer_load_dwordx4 v14, {S2}, s74 offen lds", ("B", sg))
            else:
                if ROT: e(f"s_add_u32 s74, s68, {(16*(a>>1) + 4*(a&1))*1024}")
                else: e(f"s_add_u32 s74, s71, {(32*(sg-NF2) + 16*(a>>1) + 4*(a&1))*1024}")
                e.vmem(f"buffer_load_dwordx4 v15, {SO}, s74 offen lds", ("B", sg))
    def issueA(sg, tbs=(0, 1)):
        for tb in tbs:
            if sg < NF2:
                k16, ex = KS[sg]
                e(f"s_add_u32 s74, {'s79' if ex else 's72'}, {(tb*112 + k16)*1024}")
            else: e(f"s_add_u32 s74, s73, {(tb*32 + 2*(sg-NF2))*1024}")
            for kk in range(2):
                e.vmem(f"buffer_load_dwordx4 {vr(AF(sg,tb,kk),4)}, v1, {SS}, s74 offen offset:{kk*1024} sc1", ("A", sg))
    LEAD = opt.get("lead", 0)
    def either(sreg, lead_fn, foll_fn):
        L1, L2 = lab("LD"), lab("LE")
        e(f"s_cmp_lg_u32 {sreg}, 0")
        e(f"s_cbranch_scc1 {L1}")
        allk = list(e.act)
        e.act = [k for k in allk if sreg not in k]
        if foll_fn: foll_fn()
        e(f"s_branch {L2}")
        e(f"{L1}:")
        keep = list(e.vm)
        e.act = [k for k in allk if sreg in k]
        if lead_fn: lead_fn()
        e.vm = keep
        e.act = allk
        e(f"{L2}:")
    def gsetup2():
        e(f"""v_lshrrev_b32 v6, 5, v0
        v_lshlrev_b32 v6, 3, v6
        v_bfe_u32 v7, v0, 2, 2
        v_add_u32 v6, v6, v7
        v_lshlrev_b32 v6, 7, v6
        v_lshrrev_b32 v7, 1, v7
        v_lshl_add_u32 v6, v7, 6, v6
        v_bfe_u32 v7, v0, 4, 1
        v_lshl_add_u32 v6, v7, 5, v6
        v_and_b32 v7, 3, v0
        v_lshl_add_u32 v6, v7, 3, v6
        v_add_u32 v6, s67, v6
        v_xor_b32 v7, 64, v6
        v_add_u32 v8, 49152, v6
        v_add_u32 v9, 49152, v7
    v_add_u32 v10, 98304, v6
    v_add_u32 v11, 98304, v7
        v_mov_b32 v2, {L_MISC}
        ds_read_b32 v2, v2
        v_and_b32 v3, 3, v0
        v_lshlrev_b32 v3, 7, v3
        s_lshr_b32 s76, s58, 1
        s_lshl_b32 s76, s76, 11
        s_lshl_b32 s3, s18, 9
        s_add_u32 s76, s76, s3
        s_add_u32 s66, s76, {WS_F1H:#x}""")
        e("s_mov_b32 s75, 0")
        e("s_waitcnt lgkmcnt(0)")
    D = opt.get("gd", 3); DB = NB - 1; PS = opt.get("ps", 12); PB = 8 - D - 1
    GE = opt.get("ge", 15)
    def firstA(lo=0, hi=None):
        hi = D if hi is None else hi
        for sg in range(lo, hi):
            if LEAD & 2 and sg == hi - 1:
                for tb in range(2): either(("s27", "s21")[tb], lambda: issueA(sg, (tb,)), None)
            else: issueA(sg)
    issueW(0)
    for c in range(1, PL): issueX(c); issueW(c)
    for k in range(17):
        e.vwait([("w", k), ("x", k)] if k < 8 else [("w2", k - 8)])
        if k == 0: stamp(2)
        if k == 8: stamp(3)
        if k == 16: stamp(4)
        bstamp(k)
        if k == 16: bflush()
        e("s_barrier")
        if k + PL <= 7: issueX(k + PL); issueW(k + PL)
        if k == 1: gsetup()
        if k == 2: esetup()
        for c in range(8):
            if W2A[c][0] == k: issueW2(c)
        if k == 7 and any(W2A[c][0] == 7.5 for c in range(8)):
            ldswait(28, 4, 2, 3)
            for c in range(8):
                if W2A[c][0] == 7.5: issueW2(c)
        if k == 9: gsetup2()
        if k == GE - 2: apoll_issue(3, "s66", 4, "f1h")
        if k == GE:
            sk = lab("GLATE")
            e.vwait("f1h")
            e("v_cmp_ne_u32 vcc, v2, v4")
            e("s_nop 1")
            e("s_cmp_lg_u64 vcc, 0")
            e(f"s_cbranch_scc1 {sk}")
            keep = list(e.vm)
            if not opt.get("gel", 1): firstA()
            e.vm = keep
            e("s_mov_b32 s75, 1")
            e(f"{sk}:")
        if k < 16:
            for j in range(NB):
                if BT[j] == k: issueB(j)
    if opt.get("gprio", 0): e(f"s_setprio {opt.get('gprio')}")
    if opt.get("gel", 1):
        e("s_cmp_lg_u32 s75, 0")
        e("s_cbranch_scc1 L_GRDY")
        keep = list(e.vm)
        poll(3, "s66", 2, 4)
        e.vm = keep
        e("L_GRDY:")
        for j in range(NB):
            if BT[j] >= 16: issueB(j)
            if j < D: issueA(j)
    else:
        for j in range(NB):
            if BT[j] >= 16: issueB(j)
        e("s_cmp_lg_u32 s75, 0")
        e("s_cbranch_scc1 L_GGO")
        keep = list(e.vm)
        poll(3, "s66", 2, 4)
        e.vm = keep
        if LEAD:
            assert GE > 16
            e.vm = []
            e.var_start([(b_, a_) for b_ in ("", "s26") for a_ in ("", "s27", "s21")])
        firstA()
    e("L_GGO:")
    stamp(5)
    def step(sg):
        if sg == opt.get("ghold", -1): ldswait(16, 8, 12, 13)
        bstamp(100 + sg)
        e.vwait([("B", sg), ("A", sg)])
        bstamp(200 + sg)
        reg = BREG[sg % NB]
        hi = reg // 49152
        off0 = reg - 49152 * hi
        for kk in range(2):
            for nb in range(2):
                for q in range(2):
                    e.lds(f"ds_read_b64_tr_b16 v[{BF(kk,nb)+2*q}:{BF(kk,nb)+2*q+1}], v{6+2*hi+nb} offset:{off0 + kk*2048 + q*512}", (kk, nb))
        if LEAD & 1:
            FB = opt.get("fb", 3)
            okb = lambda j: NB <= j < NS
            if okb(sg + DB) or okb(sg + FB):
                either("s26", (lambda: issueB(sg + DB)) if okb(sg + DB) else None, (lambda: issueB(sg + FB)) if okb(sg + FB) else None)
        elif NB <= sg + DB < NS: issueB(sg + DB)
        oka = lambda j: j < NF2 or (j < NS and sg > PS and j >= PS + 1 + D)
        if LEAD & 2:
            okf = lambda j: j < NF2 or (j < NS and sg > PS and j >= PS + D)
            for tb in range(2):
                if oka(sg + D) or okf(sg + D - 1):
                    either(("s27", "s21")[tb], (lambda: issueA(sg + D, (tb,))) if oka(sg + D) else None, (lambda: issueA(sg + D - 1, (tb,))) if okf(sg + D - 1) else None)
        elif oka(sg + D): issueA(sg + D)
        for kk in range(2):
            for nb in range(2):
                e.lwait((kk, nb))
                for tb in range(2):
                    acc = vr(GACC(tb, nb), 16)
                    cin = "0" if (sg == 0 and kk == 0) else acc
                    if opt.get("nogm") and (kk or nb): continue
                    e(f"v_mfma_f32_32x32x16_bf16 {acc}, {vr(BF(kk,nb),4)}, {vr(AF(sg,tb,kk),4)}, {cin}")
    for sg in range(PS + 1):
        if sg == PB - 1 or sg == PS - 1:
            e(f"s_add_u32 s66, s76, {(WS_F1B if sg == PB - 1 else WS_F2):#x}")
            apoll_issue(3, "s66", 4, "fl")
        step(sg)
        if sg == PB:
            stamp(6)
            apoll_check(3, "s66", 2, 4, "fl")
    stamp(7)
    apoll_check(3, "s66", 2, 4, "fl")
    stamp(8)
    firstA(NF2, min(NS, PS + 1 + D))
    for sg in range(PS + 1, NS): step(sg)
    e.var = None
    bflush()
    gate('g')
    stamp(9)
    e("""v_and_b32 v12, 31, v0
    v_lshlrev_b32 v12, 7, v12
    v_lshrrev_b32 v13, 5, v0
    v_xor_b32 v13, v13, v5
    v_lshl_add_u32 v12, v13, 4, v12
    v_add_u32 v12, s67, v12""")
    for nb in range(2):
        for a in range(4): e(f"v_xor_b32 v{20+nb*4+a}, {((2*a) ^ nb)*16}, v12")
    for tb in range(2):
        for nb in range(2):
            for a in range(4): e(f"v_add_u32 v{28+(tb*2+nb)*4+a}, {BREG[tb*2+nb]}, v{20+nb*4+a}")
    for tb in range(2):
        for nb in range(2):
            for a in range(4): e(f"ds_write_b128 v{28+(tb*2+nb)*4+a}, {vr(GACC(tb,nb)+4*a,4)}")
    e("s_waitcnt lgkmcnt(0)")
    stamp(10)
    e("s_barrier")
    if ST: e("s_branch L_DUMP")
    e("s_endpgm")

    e("L_CONS:")
    e.vm = []; e.lg = []
    LA = opt.get("la", 5); NFB = 6
    F = lambda f: 8 + (f % NFB) * 4
    XF = lambda n, r: 32 + ((n & 1) * 2 + r) * 4
    XK = lambda p, r: 48 + (p * 2 + r) * 4
    ACC = lambda s, r: 96 + (s * 2 + r) * 4
    AW = [1, 2, 3, 4]; AX = [7, 5]
    e(f"""v_lshrrev_b32 v8, 2, v0
    v_lshrrev_b32 v9, 3, v8
    v_lshlrev_b32 v9, 11, v9
    v_and_b32 v10, 7, v8
    v_lshl_add_u32 v9, v10, 7, v9
    v_and_b32 v10, 3, v0
    v_lshlrev_b32 v10, 3, v10
    v_add_u32 v9, v9, v10
    v_bfe_u32 v11, v0, 3, 2
    v_lshl_add_u32 v1, v11, 5, v9
    v_add_u32 v1, {W1A[0]}, v1
    v_xor_b32 v2, 32, v1
    v_xor_b32 v3, 64, v1
    v_xor_b32 v4, 96, v1
    v_and_b32 v8, 15, v0
    v_lshrrev_b32 v9, 4, v0
    v_lshrrev_b32 v10, 1, v8
    v_xor_b32 v9, v9, v10
    v_lshlrev_b32 v8, 7, v8
    v_lshl_add_u32 v7, v9, 4, v8
    s_lshl_b32 s3, s19, 12
    s_add_u32 s3, s3, {XA[0]}
    v_add_u32 v7, s3, v7
    v_xor_b32 v5, 64, v7""")
    e(f"v_mov_b32 v6, {L_MISC}")
    e("v_mov_b32 v165, 1")
    if not BK: smasks()
    if opt.get("cprio", 3): e(f"s_setprio {opt.get('cprio', 3)}")
    cur = {"w": W1A[0], "x": XA[0]}
    UST = opt.get("ust", 0)
    PEND = []
    DEF = []; NST = [0]; TIM = 0 if UST else opt.get("tim", 2)
    def move(kind, regs, addr):
        d = addr - cur[kind]
        if d:
            for a in regs: e(f"v_add_u32 v{a}, {d & 0xffffffff:#x}, v{a}")
        cur[kind] = addr
    def gemm(ps):
        NSB = 8 if ps == 1 else 5
        NF = 16 * NSB
        kst = (lambda n: n) if ps == 1 else (lambda n: ORD2[n])
        xreg = lambda n, r: XK(kst(n), r) if kst(n) < 6 else XF(n, r)
        def rd(f):
            n, s = divmod(f, NSB)
            for q in range(2):
                if ps == 1:  a, off = AW[s & 3], (n & 1) * 8192 + q * 4096 + (s >> 2) * 1024
                elif s < 2:  a, off = AW[s], (n & 1) * 5120 + q * 1024
                else:        a, off = AW[2], (n & 1) * 5120 + 2048 + q * 1536 + (s - 2) * 32
                yield f"ds_read_b64_tr_b16 v[{F(f)+2*q}:{F(f)+2*q+1}], v{a} offset:{off}"
        def kswitch(n):
            if n % 2 == 0:
                if ps == 1: move("w", AW, W1A[n // 2])
                else:       move("w", AW[:3], W2A[n // 2][1])
                bstamp(8 * (ps - 1) + n // 2)
                e("s_barrier")
                if ps == 2 and not UST:
                    for _ in range(opt.get("tper", 4)):
                        if DEF:
                            for x in DEF.pop(0):
                                if opt.get("nost1") and "buffer_store" in x: continue
                                e(x.replace(" sc1", "") if opt.get("plain1") else x)
                            NST[0] += 1
                    if n // 2 == opt.get("sgk", 0):
                        asig1(4, max(0, NST[0] - 4)); PEND.append(WS_F1)
                    if n // 2 == opt.get("sgh", 3):
                        assert not DEF
                        asig1(24, 0); PEND.append(WS_F1H)
            if NSB > LA or n < 2: xread(n)
        def xread(n):
            p = kst(n)
            if ps == 1 or p >= 6:
                move("x", AX, XA[p >> 1])
                for r in range(2): e.lds(f"ds_read_b128 {vr(xreg(n,r),4)}, v{AX[p&1]} offset:{r*2048}", ("x", n))
        kswitch(0)
        if ps == 1: stamp(2); gate("b0")
        for f in range(LA):
            if f and f % NSB == 0: kswitch(f // NSB)
            for r_ in rd(f): e.lds(r_, f)
        for f in range(NF):
            n, s = divmod(f, NSB)
            nxt = f + LA
            if nxt < NF and nxt % NSB == 0: kswitch(nxt // NSB)
            if NSB <= LA and s == 0 and 1 <= n < 15: xread(n + 1)
            if PEND and nxt % (2 * NSB) == 4: asig2(3, PEND.pop())
            if opt.get("w2f", 1) and f % 2 == 0 and f + 1 < NF: e.lwait([f, f + 1, ("x", n), ("x", (f + 1) // NSB)])
            else: e.lwait([f, ("x", n)])
            if ps == 2 and f == NF - 1 and not opt.get("b16late"): e("s_barrier")
            rds = list(rd(nxt)) if nxt < NF else [None, None]
            for r in range(2):
                acc = vr(ACC(s, r), 4)
                e(f"v_mfma_f32_16x16x32_bf16 {acc}, {vr(F(f),4)}, {vr(xreg(n,r),4)}, {'0' if n == 0 else acc}")
                if rds[r]: e.lds(rds[r], nxt)
    RS = lambda r: 160 + 2 * r
    RQ = lambda r: 32 + 2 * r
    TT = 8
    CSR = [24, 28]
    def epilogue(ps):
        order = (([0, 1, 2, 3, 5, 6, 7, 4] if opt.get('kvfirst', 1) else [5, 6, 7, 2, 3, 4, 0, 1]) if TIM else list(range(8))) if ps == 1 else ([2, 3, 4, 0, 1] if opt.get('b16late') else [0, 1, 2, 3, 4])
        dd = {}
        loc = lambda s: s if ps == 1 else 8 + s
        if ps == 1:
            ldsadd(28, 8, 9)
            ldswait(20, 1, 8, 9)
        e(f"""v_and_b32 v16, 15, v0
        v_lshrrev_b32 v17, 4, v0
        s_lshl_b32 s3, s19, 9
        s_add_u32 s3, s3, {L_ST}
        v_lshl_add_u32 v8, v16, 4, s3
        v_lshlrev_b32 v164, 4, v17
        v_add_u32 v164, {L_ST+2048}, v164
        v_mov_b32 v10, {L_MISC}""")
        if ps == 1:
            for r in range(2): e.lds(f"ds_read_b64 {pk(RS(r))}, v8 offset:{256*r}", "st")
            e.lds("ds_read_b32 v10, v10", "st")
        def csread(n):
            if n < len(order): e.lds(f"ds_read_b128 {vr(CSR[n%2],4)}, v164 offset:{64*loc(order[n])}", ("cs", n))
        csread(0)
        e("v_lshlrev_b32 v166, 4, v0")
        if ps == 1:
            e(f"""s_lshl_b32 s52, s20, 2
            s_add_u32 s52, s52, s19
            s_lshl_b32 s53, s23, 8
            s_add_u32 s53, s53, s52
            s_lshl_b32 s53, s53, 10
            s_mul_i32 s54, s52, 112
            s_mul_i32 s55, s23, 3
            s_add_u32 s55, s55, s54
            s_add_u32 s55, s55, 64
            s_lshl_b32 s55, s55, 10
            s_lshl_b32 s3, s23, 2
            s_add_u32 s54, s54, s3
            s_lshl_b32 s54, s54, 10
            s_add_u32 s54, s54, {WS_H:#x}
            s_add_u32 s55, s55, {WS_H:#x}""")
            if UST:
                e("s_lshl_b32 s3, s19, 12")
                e("v_add_u32 v36, s3, v166")
                e(f"v_add_u32 v37, {W1A[7]}, v36")
                e(f"v_add_u32 v36, {W1A[6]}, v36")
            e.lwait("st")
            e("v_readfirstlane_b32 s61, v10")
        else:
            e("s_mov_b32 s3, 0x3eb8aa3b")
            for q in range(4): e(f"v_mul_f32 v{32+q}, s3, v{160+q}")
            e("s_lshl_b32 s3, s19, 10")
            e(f"s_add_u32 s3, s3, {L_Q}")
            e("v_add_u32 v36, s3, v166")
        for n, s in enumerate(order):
            T = 16 + 4 * (n % 2)
            stg = ps == 1 and UST
            dfr = ps == 1 and TIM and s >= (4 if opt.get('kvfirst', 1) else 2) and not UST
            if dfr: T = ACC(s, 0) if s >= 5 else ACC(s + 3, 1)
            isQ = ps == 2 and s < 2
            isH = (ps == 1 and s >= 4) or (ps == 2 and s >= 2)
            if stg and s == 4: ldswait(28, 4, 38, 39)
            e.lwait(("cs", n))
            c = CSR[n % 2]
            csread(n + 1)
            if opt.get("xnop"): e("s_nop 3")
            if (ps == 2 or opt.get("nopk1", 1)) and opt.get("nopk", 1):
                for r in range(2):
                    sp = RQ(r) if isQ else RS(r)
                    for j in range(4): e(f"v_mul_f32 v{TT+4*r+j}, v{c+j}, v{sp+1}")
                for r in range(2):
                    sp = RQ(r) if isQ else RS(r)
                    for j in range(4): e(f"v_fmac_f32 v{TT+4*r+j}, v{ACC(s,r)+j}, v{sp}")
            else:
                for r in range(2):
                    sp = RQ(r) if isQ else RS(r)
                    for h in range(2):
                        e(f"v_pk_mul_f32 {pk(TT+4*r+2*h)}, {pk(c+2*h)}, {pk(sp)} op_sel:[0,1] op_sel_hi:[1,1]")
                for r in range(2):
                    sp = RQ(r) if isQ else RS(r)
                    for h in range(2):
                        t = TT + 4 * r + 2 * h
                        e(f"v_pk_fma_f32 {pk(t)}, {pk(ACC(s,r)+2*h)}, {pk(sp)}, {pk(t)} op_sel_hi:[1,0,1]")
            for r in range(2):
                for h in range(2):
                    t = TT + 4 * r + 2 * h
                    e(f"v_cvt_pk_bf16_f32 v{T+2*r+h}, v{t}, v{t+1}")
            if isQ or stg: sa = "s_nop 0"
            elif ps == 2: sa = f"s_add_u32 s3, s55, {(s-2)*1024}"
            elif s < 4: sa = f"s_add_u32 s3, s53, {WS_KV + s*0x10000:#x}"
            else: sa = f"s_add_u32 s3, s54, {(s-4)*1024}"
            e("s_nop 2")
            e(f"v_permlane16_swap_b32 v{T}, v{T+2}")
            e(f"v_permlane16_swap_b32 v{T+1}, v{T+3}")
            e(sa if not dfr else "s_nop 0")
            e("s_nop 0")
            if isH:
                for q in (0, 2, 1, 3): e(f"v_pk_max_i16 v{T+q}, v{T+q}, 0")
            if isQ:
                e.lds(f"ds_write_b128 v36, {vr(T,4)} offset:{s*4096}", "qw")
                if s == 1:
                    e.lwait_all()
                    ldsadd(16, 37, 38)
            elif stg: e.lds(f"ds_write_b128 v{36 + (s >> 2)}, {vr(T,4)} offset:{(s&3)*1024}", "qw")
            elif dfr: dd[s] = [sa, f"buffer_store_dwordx4 {vr(T,4)}, v166, {SS}, s3 offen {'' if isH and opt.get('hplain') else 'sc1'}"]
            else:
                e(f"buffer_store_dwordx4 {vr(T,4)}, v166, {SS}, s3 offen {'' if isH and opt.get('hplain') else 'sc1'}")
                NST[0] += 1
                if ps == 2 and s == 4 and opt.get("b16late"): e("s_barrier")
        for s in sorted(dd): DEF.append(dd[s])
    gemm(1)
    gate('p1')
    stamp(3)
    epilogue(1)
    e(f"""v_lshrrev_b32 v8, 2, v0
    v_and_b32 v10, 3, v0
    v_lshlrev_b32 v10, 3, v10
    v_lshl_add_u32 v1, v8, 6, v10
    v_bfe_u32 v11, v0, 4, 1
    v_lshl_add_u32 v1, v11, 5, v1
    v_add_u32 v1, {W2A[0][1]}, v1
    v_xor_b32 v2, 32, v1
    v_mul_u32_u24 v3, 96, v8
    v_add_u32 v3, v3, v10
    v_add_u32 v3, {W2A[0][1]}, v3""")
    cur["w"] = W2A[0][1]
    e.lwait_all()
    stamp(4)
    gemm(2)
    gate('p2')
    bflush()
    stamp(5)
    epilogue(2)
    if BK: smasks()
    e("s_mov_b32 s96, s19")
    e("s_mov_b32 s97, 1")
    e("s_branch L_ATT")

    e("L_UTIL:")
    e.vm = []; e.lg = []
    if opt.get("uprio0", 3): e(f"s_setprio {opt.get('uprio0', 3)}")
    L0, U, A, CL, C0, C1, VE = 16, 24, 40, 48, 64, 72, 80
    e("v_and_b32 v5, 7, v0")
    if opt.get("pfc", 1):
        sk = lab("NOPC")
        e("s_cmp_lg_u32 s19, 3")
        e(f"s_cbranch_scc1 {sk}")
        e("s_getpc_b64 s[64:65]")
        e("L_PCREF:")
        e(f"s_sub_u32 s64, s64, L_PCREF-{name}")
        e("s_subb_u32 s65, s65, 0")
        e("s_lshr_b32 s66, s2, 3")
        e("s_mul_i32 s66, s66, (L_END-%s+4095)/4096*128" % name)
        e("v_lshlrev_b32 v2, 7, v0")
        e("v_add_u32 v2, s66, v2")
        e("v_mov_b32 v3, s65")
        e("v_add_co_u32 v2, vcc, s64, v2")
        e("s_nop 1")
        e("v_addc_co_u32 v3, vcc, 0, v3, vcc")
        e("v_cmp_gt_u32 vcc, (L_END-%s+4095)/4096, v0" % name)
        e("s_nop 1")
        e("s_and_saveexec_b64 s[66:67], vcc")
        e("global_load_dword v163, v[2:3], off")
        e("s_mov_b64 exec, -1")
        e(f"{sk}:")
    PFU = opt.get("pfu", 0)
    def pf_x():
        e("""v_and_b32 v2, 31, v0
        v_lshlrev_b32 v2, 10, v2
        v_lshrrev_b32 v3, 5, v0
        v_lshl_add_u32 v2, v3, 7, v2
        s_lshl_b32 s64, s20, 17
        s_lshl_b32 s65, s22, 15
        s_add_u32 s64, s64, s65
        s_lshl_b32 s65, s19, 8
        s_add_u32 s64, s64, s65""")
        e(f"buffer_load_dword v160, v2, {SX}, s64 offen")
    def pf_w():
        L1, L2, L3, LD = lab("PW"), lab("PW"), lab("PW"), lab("PW")
        e("""s_and_b32 s64, s20, 7
        v_lshlrev_b32 v2, 3, v0
        v_add_u32 v2, s64, v2
        v_mul_u32_u24 v3, 3584, v2
        v_mul_u32_u24 v2, 3072, v2
        s_lshl_b32 s64, s23, 7""")
        e("s_cmp_eq_u32 s19, 1"); e(f"s_cbranch_scc1 {L1}")
        e("s_cmp_eq_u32 s19, 3"); e(f"s_cbranch_scc1 {L3}")
        e("s_add_u32 s65, s64, 1024")
        e("s_lshr_b32 s64, s64, 1")
        e("s_cmp_eq_u32 s19, 0")
        e("s_cselect_b32 s64, s65, s64")
        e(f"buffer_load_dword v161, v2, {SW}, s64 offen")
        e(f"s_branch {LD}")
        e(f"{L3}:")
        e("s_mul_i32 s64, s23, 96")
        e("s_add_u32 s64, s64, 2048")
        e(f"buffer_load_dword v162, v3, {S1}, s64 offen offset:92")
        e(f"{L1}:")
        e(f"buffer_load_dword v161, v3, {S1}, s64 offen")
        e(f"{LD}:")
    if PFU == 1: pf_x(); pf_w()
    UL = opt.get("ul", -1)
    for _ in range(UL + 1): e("s_barrier")
    e(f"v_mov_b32 v{VE}, 0")
    e(f"s_mov_b32 s3, {WS_EP:#x}")
    e.vmem(f"buffer_load_dword v{VE}, v{VE}, {SS}, s3 offen sc1", "rs")
    e(f"""v_lshrrev_b32 v4, 5, v0
    v_and_b32 v6, 31, v0
    v_lshlrev_b32 v6, 4, v6
    v_lshl_add_u32 v6, v4, 10, v6
    v_lshlrev_b32 v{VE+1}, 4, v4
    s_lshl_b32 s64, s20, 7
    s_lshl_b32 s65, s23, 3
    s_add_u32 s64, s64, s65
    s_lshl_b32 s65, s19, 1
    s_add_u32 s64, s64, s65
    s_lshl_b32 s65, s64, 10""")
    e.vmem(f"buffer_load_dwordx4 {vr(L0,4)}, v6, {SX}, s65 offen {UNT}", "rs")
    e.vmem(f"buffer_load_dwordx4 {vr(L0+4,4)}, v6, {SX}, s65 offen offset:512 {UNT}", "rs")
    e("""s_add_u32 s66, s23, 8
    s_add_u32 s67, s23, 24
    s_cmp_eq_u32 s19, 1
    s_cselect_b32 s66, s67, s66
    s_add_u32 s67, s23, 32
    s_cmp_lt_u32 s23, 8
    s_cselect_b32 s67, s23, s67
    s_cmp_eq_u32 s19, 2
    s_cselect_b32 s66, s67, s66
    s_add_u32 s67, s23, 48
    s_cmp_eq_u32 s19, 3
    s_cselect_b32 s66, s67, s66
    v_lshrrev_b32 v2, 3, v0
    v_lshlrev_b32 v3, 4, v5
    s_cmp_ge_u32 s66, 52
    s_cbranch_scc1 L_CSD
    s_lshl_b32 s67, s66, 7
    s_cmp_ge_u32 s66, 24
    s_cbranch_scc1 L_CSW
    v_mul_u32_u24 v4, 3072, v2
    v_add_u32 v4, v4, v3""")
    e(f"s_mul_i32 s68, s20, {32*3072}")
    e("s_add_u32 s68, s68, s67")
    for t in range(4):
        e(f"buffer_load_dwordx4 {vr(CL+4*t,4)}, v4, {SW}, s68 offen {UNT}")
        if t < 3: e(f"s_add_u32 s68, s68, {8*3072}")
    e("s_branch L_CSD")
    e("L_CSW:")
    e("v_mul_u32_u24 v4, 3584, v2")
    e("v_add_u32 v4, v4, v3")
    e(f"s_mul_i32 s68, s20, {32*3584}")
    e("s_add_u32 s68, s68, s67")
    e(f"s_sub_u32 s68, s68, {24*128}")
    for t in range(4):
        e(f"buffer_load_dwordx4 {vr(CL+4*t,4)}, v4, {S1}, s68 offen {UNT}")
        if t < 3: e(f"s_add_u32 s68, s68, {8*3584}")
    e("L_CSD:")
    if PFU == 2:
        e("s_mov_b32 s74, s64")
        pf_x(); pf_w()
        e("s_mov_b32 s64, s74")
    e(f"""s_mov_b32 s69, 0xffff0000
    s_mov_b32 s70, 0x3b000000
    s_lshl_b32 s64, s64, 4
    s_add_u32 s64, s64, {WS_RS:#x}
    v_lshlrev_b32 v14, 4, v0
    s_lshl_b32 s71, s23, 8
    s_add_u32 s72, s71, {512*4}
    v_add_u32 v15, s72, v14
    s_add_u32 s72, s71, {1536*4 - 256}
    v_add_u32 v2, s72, v14
    v_cmp_le_u32 vcc, 16, v0
    s_lshl_b32 s72, s23, 7
    s_sub_u32 s72, s72, 512
    v_cndmask_b32 v15, v15, v2, vcc
    v_add_u32 v2, s72, v14
    v_cmp_le_u32 vcc, 32, v0
    s_mul_i32 s72, s23, 192
    s_add_u32 s72, s72, {2560*4 - 640}
    v_cndmask_b32 v15, v15, v2, vcc
    v_min_u32 v2, 51, v0
    v_lshlrev_b32 v2, 4, v2
    v_add_u32 v2, s72, v2
    v_cmp_le_u32 vcc, 40, v0
    s_nop 1
    v_cndmask_b32 v15, v15, v2, vcc""")
    def piece(n):
        if n == 0:
            e("s_cmp_ge_u32 s66, 52")
            e("s_cbranch_scc1 L_P0A")
            e(f"s_waitcnt vmcnt({4 + (2 if PFU == 2 else 0)})")
            e("s_branch L_P0B")
            e("L_P0A:")
            e(f"s_waitcnt vmcnt({2 if PFU == 2 else 0})")
            e("L_P0B:")
            for q in range(8):
                e(f"v_lshlrev_b32 v{U+2*q}, 16, v{L0+q}")
                e(f"v_and_b32 v{U+2*q+1}, s69, v{L0+q}")
            for q in range(4): e(f"v_add_f32 v{A+q}, v{U+q}, v{U+4+q}")
            for t in range(2, 4):
                for q in range(4): e(f"v_add_f32 v{A+q}, v{A+q}, v{U+4*t+q}")
            e(f"v_add_f32 v{A}, v{A}, v{A+1}")
            e(f"v_add_f32 v{A+2}, v{A+2}, v{A+3}")
            e(f"v_add_f32 v{A}, v{A}, v{A+2}")
            reduce32(e, [A], [A + 1])
            e(f"v_mul_f32 v{A}, s70, v{A}")
            e(f"v_add_u32 v{A+6}, {EPC:#x}, v{VE}")
            e(f"v_mov_b32 v2, {L_MISC}")
            e("v_mov_b32 v3, 0")
            e(f"ds_write_b32 v2, v{A+6}")
            for o in (4, 8, 12, 16, 20, 24, 28): e(f"ds_write_b32 v2, v3 offset:{o}")
        if n == 1:
            for q in range(16): e(f"v_sub_f32 v{U+q}, v{U+q}, v{A}")
            for q in range(4): e(f"v_mul_f32 v{L0+q}, v{U+q}, v{U+q}")
            for q in range(4, 16): e(f"v_fmac_f32 v{L0+(q&3)}, v{U+q}, v{U+q}")
            e(f"v_add_f32 v{L0}, v{L0}, v{L0+1}")
            e(f"v_add_f32 v{L0+2}, v{L0+2}, v{L0+3}")
            e(f"v_add_f32 v{A+4}, v{L0}, v{L0+2}")
            reduce32(e, [A + 4], [A + 5])
            e(f"v_mov_b32 v{A+5}, 0x3727c5ac")
            e(f"v_fma_f32 v{A+4}, v{A+4}, s70, v{A+5}")
            e(f"v_rsq_f32 v{A+4}, v{A+4}")
            e(f"v_readfirstlane_b32 s61, v{A+6}")
            e(f"v_mov_b32 v{A+7}, v{A+6}")
            e(f"v_mul_f32 v{A+5}, v{A}, v{A+4}")
            e(f"v_sub_f32 v{A+5}, 0, v{A+5}")
            e("s_mov_b32 s71, 0xff")
            e(f"v_bfi_b32 v{A+4}, s71, v{A+6}, v{A+4}")
            e(f"v_bfi_b32 v{A+5}, s71, v{A+6}, v{A+5}")
            e("s_mov_b32 exec_lo, 1")
            e("s_mov_b32 exec_hi, 1")
            e(f"buffer_store_dwordx4 {vr(A+4,4)}, v{VE+1}, {SS}, s64 offen sc1")
            e("s_mov_b64 exec, -1")
        if n == 2:
            e(f"s_waitcnt vmcnt({1 + (2 if PFU == 2 else 0)})")
            for q in range(4):
                e(f"v_lshlrev_b32 v{C0+2*q}, 16, v{CL+q}")
                e(f"v_and_b32 v{C0+2*q+1}, s69, v{CL+q}")
            for t in range(1, 4):
                for q in range(4):
                    e(f"v_lshlrev_b32 v{C1+2*q}, 16, v{CL+4*t+q}")
                    e(f"v_and_b32 v{C1+2*q+1}, s69, v{CL+4*t+q}")
                for q in range(8): e(f"v_add_f32 v{C0+q}, v{C0+q}, v{C1+q}")
            e("s_nop 1")
            for q in range(8): e(f"v_add_f32_dpp v{C0+q}, v{C0+q}, v{C0+q} row_ror:8 row_mask:0xf bank_mask:0xf")
            e("s_mov_b32 s72, 0xff00ff00")
            e("s_mov_b32 s73, 0xff00ff00")
            for q in range(4): e(f"v_cndmask_b32 v{C0+q}, v{C0+q}, v{C0+4+q}, s[72:73]")
            for sw in ("v_permlane16_swap_b32", "v_permlane32_swap_b32"):
                for q in range(4): e(f"v_mov_b32 v{C1+q}, v{C0+q}")
                e("s_nop 0")
                for q in range(4): e(f"{sw} v{C0+q}, v{C1+q}")
                for q in range(4): e(f"v_add_f32 v{C0+q}, v{C0+q}, v{C1+q}")
            e("s_mov_b32 s71, 0xff")
            e(f"v_bfe_u32 v{C1+2}, v0, 3, 1")
            for q in range(4): e(f"v_bfi_b32 v{C0+q}, s71, v{A+6}, v{C0+q}")
            e(f"v_lshlrev_b32 v{C1+1}, 5, v5")
            e(f"v_lshl_add_u32 v{C1+1}, v{C1+2}, 4, v{C1+1}")
            e(f"s_mul_i32 s71, s20, {3328*4}")
            e("s_lshl_b32 s72, s66, 8")
            e("s_add_u32 s71, s71, s72")
            e(f"s_add_u32 s71, s71, {WS_CS:#x}")
            e("s_cmp_ge_u32 s66, 52")
            e("s_cbranch_scc1 L_P2S")
            e("s_mov_b64 exec, 0xffff")
            e(f"buffer_store_dwordx4 {vr(C0,4)}, v{C1+1}, {SS}, s71 offen sc1")
            e("s_mov_b64 exec, -1")
            e("L_P2S:")
    def kvsetup():
        e(f"""v_and_b32 v10, 3, v0
        v_min_u32 v10, 2, v10
        s_sub_u32 s76, s20, 2
        v_add_u32 v10, s76, v10
        v_max_i32 v10, 0, v10
        v_lshlrev_b32 v10, 11, v10
        v_bfe_u32 v11, v0, 2, 1
        v_lshl_add_u32 v10, v11, 10, v10
        s_lshr_b32 s76, s23, 1
        s_lshl_b32 s76, s76, 7
        s_add_u32 s76, s76, {WS_F1:#x}
        v_mov_b32 v11, s61
        v_lshlrev_b32 v1, 4, v0
        s_lshr_b32 s52, s19, 1
        s_lshl_b32 s53, s23, 1
        s_add_u32 s53, s53, s52
        s_lshl_b32 s53, s53, 6
        s_and_b32 s54, s19, 1
        s_mul_i32 s54, s54, 6
        s_lshl_b32 s55, s20, 2
        s_add_u32 s54, s54, s55
        s_mul_i32 s55, s19, 6144""")
    def kvdma(lo=0, hi=6):
        for t in range(lo, hi):
            e(f"s_add_u32 s68, s54, {t}")
            e("s_sub_i32 s68, s68, 8")
            e("s_max_i32 s68, s68, 0")
            e("s_add_u32 s68, s68, s53")
            e("s_lshl_b32 s68, s68, 10")
            e(f"s_add_u32 m0, s55, {L_K + t*1024}")
            e("s_add_u32 s69, s68, 0x200000")
            e(f"buffer_load_dwordx4 v1, {SS}, s68 offen sc1 lds")
            e(f"s_add_u32 m0, s55, {L_V + t*1024}")
            e("s_nop 0")
            e(f"buffer_load_dwordx4 v1, {SS}, s69 offen sc1 lds")
    G0 = 84
    def gather():
        e(f"s_mov_b32 s71, {WS_CS:#x}")
        for g in range(16):
            e(f"buffer_load_dwordx4 {vr(G0+4*g,4)}, v15, {SS}, s71 offen sc1")
            e(f"s_add_u32 s71, s71, {3328*4}")
        e("s_lshl_b32 s71, s20, 11")
        e(f"s_add_u32 s71, s71, {WS_RS:#x}")
        for h in range(2):
            e(f"buffer_load_dwordx4 {vr(G0+64+4*h,4)}, v14, {SS}, s71 offen offset:{h*1024} sc1")
    PK = opt.get("pk", [0, 0, 1]); GK = opt.get("gk", 4); CK = opt.get("ck", 6)
    for n_, kk_ in enumerate(PK):
        if kk_ < 0: piece(n_)
    for k in range(UL + 1, 16):
        if k == PK[0] + 2: e("s_waitcnt lgkmcnt(0)")
        bstamp(k)
        e("s_barrier")
        for n_, kk_ in enumerate(PK):
            if kk_ == k: piece(n_)
        KVK = opt.get("kvk", 13)
        if k == 8:
            kvsetup()
            e("s_mov_b32 s77, 0")
        KVE = opt.get("kve", 15)
        if k == KVK - 1: e(f"buffer_load_dword v4, v10, {SS}, s76 offen sc1")
        if opt.get("kvs", 0) and KVK <= k <= 15:
            sk, s2_ = lab("KVLATE"), lab("KVSKIP")
            n_ = k - KVK
            for j in range(1, n_ + 1):
                if 2 * j < 6:
                    nx = lab("KVN")
                    e(f"s_cmp_lg_u32 s77, {2*j}")
                    e(f"s_cbranch_scc1 {nx}")
                    kvdma(2 * j, 2 * j + 2)
                    e(f"s_mov_b32 s77, {2*j+2}")
                    e(f"s_branch {s2_}")
                    e(f"{nx}:")
            e("s_cmp_lg_u32 s77, 0")
            e(f"s_cbranch_scc1 {s2_}")
            e("s_waitcnt vmcnt(0)")
            e("v_cmp_ne_u32 vcc, v11, v4")
            e("s_nop 1")
            e("s_cmp_lg_u64 vcc, 0")
            e(f"s_cbranch_scc1 {sk}")
            kvdma(0, 2)
            e("s_mov_b32 s77, 2")
            e(f"s_branch {s2_}")
            e(f"{sk}:")
            if k < 15: e(f"buffer_load_dword v4, v10, {SS}, s76 offen sc1")
            e(f"{s2_}:")
        elif KVK <= k <= KVE:
            sk, s2_ = lab("KVLATE"), lab("KVSKIP")
            e("s_cmp_lg_u32 s77, 0")
            e(f"s_cbranch_scc1 {s2_}")
            e("s_waitcnt vmcnt(0)")
            e("v_cmp_ne_u32 vcc, v11, v4")
            e("s_nop 1")
            e("s_cmp_lg_u64 vcc, 0")
            e(f"s_cbranch_scc1 {sk}")
            kvdma()
            e("s_mov_b32 s77, 6")
            e(f"s_branch {s2_}")
            e(f"{sk}:")
            if k < KVE: e(f"buffer_load_dword v4, v10, {SS}, s76 offen sc1")
            e(f"{s2_}:")
        PW0 = opt.get("pfw", 0)
        if PW0 and PW0 <= k < 16:
            if k == PW0:
                srd(e, 44, 14, 1792 * 1024)
                srd(e, 48, 8, 512 * 1024)
                e("s_lshr_b32 s78, s2, 3")
                e("s_mul_i32 s79, s78, 57344")
                e("s_mul_i32 s3, s19, 14336")
                e("s_add_u32 s79, s79, s3")
                e("s_lshl_b32 s78, s78, 14")
                e("s_lshl_b32 s3, s19, 12")
                e("s_add_u32 s78, s78, s3")
            per = -(-18 // (opt.get("pfwe", 16) - PW0))
            for j in range(per * (k - PW0), min(18, per * (k - PW0 + 1))):
                if j < 14:
                    e(f"s_add_u32 s3, s79, {j*1024}")
                    e(f"buffer_load_dwordx4 v[120:123], v14, {S2}, s3 offen")
                else:
                    e(f"buffer_load_dwordx4 v[120:123], v14, {SO}, s78 offen offset:{(j-14)*1024}")
        if opt.get("pfl2", 0) and 8 <= k <= 10:
            if k == 8:
                srd(e, 44, 14, 1792 * 1024)
                srd(e, 48, 8, 512 * 1024)
                e("v_lshlrev_b32 v12, 7, v0")
                e("s_lshr_b32 s78, s2, 3")
            j = k - 8
            sk = lab("NOP2")
            if j < 2:
                e("s_mul_i32 s71, s78, 57344")
                e("s_lshl_b32 s72, s19, 13")
                e("s_add_u32 s71, s71, s72")
                if j == 1:
                    e("s_cmp_eq_u32 s19, 3")
                    e(f"s_cbranch_scc1 {sk}")
                    e("s_add_u32 s71, s71, 32768")
                e(f"buffer_load_dword v13, v12, {S2}, s71 offen")
            else:
                e("s_cmp_ge_u32 s19, 2")
                e(f"s_cbranch_scc1 {sk}")
                e("s_lshl_b32 s71, s78, 14")
                e("s_lshl_b32 s72, s19, 13")
                e("s_add_u32 s71, s71, s72")
                e(f"buffer_load_dword v13, v12, {SO}, s71 offen")
            e(f"{sk}:")
        if UST and k == 8:
            e(f"""s_lshl_b32 s3, s19, 12
            v_add_u32 v2, s3, v14
            v_add_u32 v3, {W1A[7]}, v2
            v_add_u32 v2, {W1A[6]}, v2""")
            for s_ in range(8): e(f"ds_read_b128 {vr(16+4*s_,4)}, v{2+(s_>>2)} offset:{(s_&3)*1024}")
            e(f"""s_lshl_b32 s64, s20, 2
            s_add_u32 s64, s64, s19
            s_lshl_b32 s65, s23, 8
            s_add_u32 s65, s65, s64
            s_lshl_b32 s65, s65, 10
            s_mul_i32 s66, s64, 112
            s_lshl_b32 s3, s23, 2
            s_add_u32 s66, s66, s3
            s_lshl_b32 s66, s66, 10
            s_add_u32 s66, s66, {WS_H:#x}
            s_waitcnt lgkmcnt(0)""")
        if UST and k >= 8:
            SP = opt.get("sper", 2)
            for s_ in range(SP * (k - 8), min(8, SP * (k - 7))):
                if s_ < 4: e(f"s_add_u32 s3, s65, {WS_KV + s_*0x10000:#x}")
                else: e(f"s_add_u32 s3, s66, {(s_-4)*1024}")
                e(f"buffer_store_dwordx4 {vr(16+4*s_,4)}, v14, {SS}, s3 offen sc1")
            if k == opt.get("ugk", 12): signal(4, 3, WS_F1, 2, 3, max(0, min(8, SP * (k - 7)) - 4))
            if k == opt.get("ugh", 15): signal(24, 3, WS_F1H, 2, 3)
        if k == opt.get("pf2k", 5) and opt.get("pf2", 1):
            sk = lab("NOPF")
            e("s_cmp_lg_u32 s19, 1")
            e(f"s_cbranch_scc1 {sk}")
            srd(e, 44, 14, 1792 * 1024)
            srd(e, 48, 8, 512 * 1024)
            e("v_lshlrev_b32 v2, 7, v0")
            e("s_mul_i32 s71, s2, 7168")
            e("s_mov_b32 exec_hi, 0xffffff")
            e(f"buffer_load_dword v160, v2, {S2}, s71 offen")
            e("s_lshl_b32 s71, s2, 11")
            e("s_mov_b64 exec, 0xffff")
            e(f"buffer_load_dword v161, v2, {SO}, s71 offen")
            e("s_mov_b64 exec, -1")
            e(f"{sk}:")
        if k in (GK, CK, CK + 1):
            sk = lab("NOPOST")
            e("s_cmp_lg_u32 s19, 0")
            e(f"s_cbranch_scc1 {sk}")
            if k == GK: gather()
            if k == CK:
                e("s_mov_b32 s73, 0x20000")
                e("L_CHK:")
                e("s_waitcnt vmcnt(0)")
                e(f"v_xor_b32 v2, s61, v{G0}")
                for i in list(range(G0 + 1, G0 + 66)) + [G0 + 68, G0 + 69]: e(f"v_bitop3_b32 v2, v2, v{i}, s61 bitop3:0xf6")
                e("v_and_b32 v2, 0xff, v2")
                for i in (66, 67, 70, 71): e(f"v_bitop3_b32 v2, v2, v{G0+i}, s61 bitop3:0xf6")
                e("v_cmp_ne_u32 vcc, 0, v2")
                e("s_sub_u32 s73, s73, 1")
                e("s_cmp_eq_u32 s73, 0")
                e("s_cbranch_scc1 L_GOT")
                e("s_cmp_eq_u64 vcc, 0")
                e("s_cbranch_scc1 L_GOT")
                gather()
                e("s_branch L_CHK")
                e("L_GOT:")
            if k == CK + 1:
                e("s_mov_b32 s71, 0xffffff00")
                for i in list(range(G0, G0 + 66)) + [G0 + 68, G0 + 69]: e(f"v_and_b32 v{i}, s71, v{i}")
                for g in range(1, 16):
                    for h in range(4): e(f"v_add_f32 v{G0+h}, v{G0+h}, v{G0+4*g+h}")
                e(f"v_add_u32 v2, {L_ST}, v14")
                e(f"ds_write_b128 v2, {vr(G0+64,4)}")
                e(f"ds_write_b128 v2, {vr(G0+68,4)} offset:1024")
                e(f"ds_write_b128 v2, {vr(G0,4)} offset:2048")
                e("s_waitcnt lgkmcnt(0)")
                ldsadd(20, 2, 3)
            e(f"{sk}:")
    bflush()
    stamp(3)
    e("s_barrier")
    stamp(4)
    e("s_cmp_eq_u32 s77, 6")
    e("s_cbranch_scc1 L_KVDONE")
    e("s_cmp_eq_u32 s77, 4")
    e("s_cbranch_scc1 L_KV4")
    e("s_cmp_eq_u32 s77, 2")
    e("s_cbranch_scc1 L_KV2")
    poll(10, "s76", 11, 4)
    kvdma(0, 2)
    e("L_KV2:")
    kvdma(2, 4)
    e("L_KV4:")
    kvdma(4, 6)
    e("L_KVDONE:")
    e(f"v_add_u32 v2, {L_ONE}, v1")
    for q in range(4): e(f"v_mov_b32 v{8+q}, 0x3f803f80")
    e("ds_write_b128 v2, v[8:11]")
    smasks()
    e("v_mov_b32 v6, 0xffff")
    e("v_mov_b32 v7, 0xffff0000")
    for q in range(8):
        e(f"v_cndmask_b32 v{140+q}, 0, v6, s[{64+4*q}:{65+4*q}]")
        e(f"v_cndmask_b32 v12, 0, v7, s[{66+4*q}:{67+4*q}]")
        e(f"v_or_b32 v{140+q}, v{140+q}, v12")
    e("ds_write_b128 v2, v[140:143] offset:1024")
    e("ds_write_b128 v2, v[144:147] offset:2048")
    e("s_add_u32 s96, s19, 4")
    e("s_mov_b32 s97, 0")
    e("s_waitcnt vmcnt(0) lgkmcnt(0)")
    ldsadd(16, 2, 3)
    stamp(5)

    e("L_ATT:")
    e.vm = []; e.lg = []
    Q = 8
    K = lambda u: 12 + 4 * u
    V = lambda u, g: 48 + ((u & 1) * 2 + g) * 4
    S = lambda b: 64 + 16 * b
    P, O = 112, 120
    VNEG, M0_, M1_, NM, MK = 136, 137, 138, 139, 140
    VA, VSTR = 148, 149
    e(f"v_mov_b32 v{VNEG}, {NEG:#x}")
    e(f"""s_and_b32 s3, s96, 3
    s_lshl_b32 s26, s20, 2
    s_add_u32 s26, s26, s3
    s_add_u32 s25, s26, 1
    s_min_u32 s25, s25, 9
    s_lshr_b32 s62, s96, 2
    s_lshl_b32 s27, s23, 1
    s_add_u32 s27, s27, s62
    v_lshlrev_b32 v1, 4, v0
    s_lshl_b32 s63, s96, 10
    s_add_u32 s63, s63, {L_Q}
    v_add_u32 v3, s63, v1
    s_mul_i32 s62, s62, 12288
    s_lshl_b32 s3, s3, 10
    s_add_u32 s3, s3, s62
    s_add_u32 s62, s3, {L_K}
    v_add_u32 v4, s62, v1
    v_lshrrev_b32 v5, 5, v0
    v_lshlrev_b32 v5, 2, v5
    v_bfe_u32 v6, v0, 2, 2
    v_add_u32 v5, v5, v6
    v_lshlrev_b32 v5, 4, v5
    v_bfe_u32 v6, v0, 1, 1
    v_lshl_add_u32 v5, v6, 9, v5
    v_and_b32 v6, 1, v0
    v_lshl_add_u32 v5, v6, 3, v5
    s_add_u32 s3, s3, {L_V + 8192}
    v_add_u32 v5, s3, v5
    v_mov_b32 v6, {L_ONE}
    v_mov_b32 v7, 1024
    s_mov_b32 s98, 0xffff
    s_mov_b32 s99, 0xffff
    v_cndmask_b32 v5, v6, v5, s[98:99]
    v_cndmask_b32 v{VSTR}, 0, v7, s[98:99]
    v_lshlrev_b32 v7, 3, v{VSTR}
    v_sub_u32 v{VA+2}, v5, v7""")
    stamp(6)
    def owed():
        sk = lab("NOOWE")
        e("s_cmp_eq_u32 s97, 0")
        e(f"s_cbranch_scc1 {sk}")
        keepl = list(e.lg)
        signal(12, 3, WS_F1B, 152, 153)
        e.lg = keepl
        e("s_mov_b32 s97, 0")
        e(f"{sk}:")
    if opt.get("owu", 1) == 0: owed()
    ldswait(16, 8, 2, 6)
    e(f"s_setprio {opt.get('aprio', 0)}")
    stamp(7)
    def fill(buf, val, diag):
        for j in range(16):
            a, b = (f"v{VNEG}", val) if diag else (val, f"v{VNEG}")
            e(f"v_cndmask_b32 v{S(buf)+j}, {a}, {b}, s[{64+2*j}:{65+2*j}]")
    def smfma(u, buf, cin):
        e.lwait(("K", u))
        e(f"v_mfma_f32_32x32x16_bf16 {vr(S(buf),16)}, {vr(K(u),4)}, {vr(Q,4)}, {cin}")
    def vread(u, par=None, va=None):
        if va is None:
            if u == 0: e(f"v_mov_b32 v{VA}, v5")
            else: e(f"v_sub_u32 v{VA}, v{VA}, v{VSTR}")
            va = VA
        for g in range(2):
            r = V(u if par is None else par, g)
            for h in range(2): e.lds(f"ds_read_b64_tr_b16 v[{r+2*h}:{r+2*h+1}], v{va} offset:{g*256 + h*128}", ("V", u))
    PD, PFR = S(2), S(2) + 8
    if opt.get("noatt"): e("s_branch L_P2DONE")
    e(f"v_add_u32 v2, {L_ONE}, v1")
    e.lds(f"ds_read_b128 {vr(Q,4)}, v3", "Q")
    for u in [0, 8, 1]: e.lds(f"ds_read_b128 {vr(K(u),4)}, v4 offset:{(8-u)*1024}", ("K", u))
    vread(0); vread(8, 1, VA + 2)
    smfma(0, 0, "0"); smfma(8, 2, "0"); smfma(1, 1, "0")
    e.lwait(("V", 0))
    e.lds(f"ds_read_b128 {vr(MK,4)}, v2 offset:1024", "MK")
    e.lds(f"ds_read_b128 {vr(MK+4,4)}, v2 offset:2048", "MK")
    for u in range(2, 8): e.lds(f"ds_read_b128 {vr(K(u),4)}, v4 offset:{(8-u)*1024}", ("K", u))
    e("s_nop 2")
    s0 = S(0)
    for j in range(16): e(f"v_cndmask_b32 v{s0+j}, v{S(2)+j}, v{s0+j}, s[{64+2*j}:{65+2*j}]")
    for j in range(16): e(f"v_exp_f32 v{s0+j}, v{s0+j}")
    for q in range(8): e(f"v_cvt_pk_bf16_f32 v{P+q}, v{s0+2*q}, v{s0+2*q+1}")
    e.lwait("MK")
    for q in range(8): e(f"v_and_b32 v{PD+q}, v{MK+q}, v{P+q}")
    e.lwait(("V", 8))
    e(f"v_mfma_f32_32x32x16_bf16 {vr(O,16)}, {vr(V(0,0),4)}, {vr(PD,4)}, 0")
    for q in range(8): e(f"v_bfi_b32 v{PFR+q}, v{MK+q}, 0, v{P+q}")
    e(f"v_mfma_f32_32x32x16_bf16 {vr(O,16)}, {vr(V(0,1),4)}, {vr(PD+4,4)}, {vr(O,16)}")
    e("s_cmp_lt_u32 s25, 9")
    e("s_cbranch_scc1 L_NOFAR")
    e(f"v_mfma_f32_32x32x16_bf16 {vr(O,16)}, {vr(V(1,0),4)}, {vr(PFR,4)}, {vr(O,16)}")
    e(f"v_mfma_f32_32x32x16_bf16 {vr(O,16)}, {vr(V(1,1),4)}, {vr(PFR+4,4)}, {vr(O,16)}")
    e("L_NOFAR:")
    vread(1)
    e("s_cmp_eq_u32 s25, 1")
    e("s_cbranch_scc1 L_FCHK")
    def pv(u, g): e(f"v_mfma_f32_32x32x16_bf16 {vr(O,16)}, {vr(V(u,g),4)}, {vr(P+4*g,4)}, {vr(O,16)}")
    for u in range(1, 8):
        s_ = S(u % 2)
        if u + 1 <= 7: smfma(u + 1, (u + 1) % 2, "0")
        for j in range(2): e(f"v_exp_f32 v{s_+j}, v{s_+j}")
        if u > 1: pv(u - 1, 1)
        if u + 1 <= 7: vread(u + 1)
        for j in range(2, 8): e(f"v_exp_f32 v{s_+j}, v{s_+j}")
        for q in range(4): e(f"v_cvt_pk_bf16_f32 v{P+q}, v{s_+2*q}, v{s_+2*q+1}")
        for j in range(8, 10): e(f"v_exp_f32 v{s_+j}, v{s_+j}")
        e.lwait(("V", u))
        pv(u, 0)
        for j in range(10, 16): e(f"v_exp_f32 v{s_+j}, v{s_+j}")
        for q in range(4, 8): e(f"v_cvt_pk_bf16_f32 v{P+q}, v{s_+2*q}, v{s_+2*q+1}")
        if u == opt.get("owu", 1): owed()
        if u < 7:
            e(f"s_cmp_eq_u32 s25, {u+1}")
            e(f"s_cbranch_scc1 L_FX{u&1}")
    e("L_FX1:")
    e("s_nop 1")
    pv(1, 1)
    e("s_branch L_FCHK")
    e("L_FX0:")
    e("s_nop 1")
    pv(0, 1)
    e("L_FCHK:")
    if opt.get("owu", 1): owed()
    e("s_mov_b32 s52, 0x1f800000")
    e("s_mov_b32 s53, 0x5f800000")
    e("s_mov_b32 s3, 0x7f800000")
    e("s_waitcnt lgkmcnt(0)")
    e("s_nop 7")
    e(f"v_add_f32 v6, |v{O}|, |v{O+1}|")
    e(f"v_add_f32 v7, |v{O+2}|, |v{O+3}|")
    e(f"v_add_f32 v2, |v{O+4}|, |v{O+5}|")
    e(f"v_add_f32 v3, |v{O+6}|, |v{O+7}|")
    e(f"v_cmp_le_f32 s[62:63], s52, v{O+8}")
    e(f"v_cmp_ge_f32 s[98:99], s53, v{O+8}")
    e("v_add_f32 v6, v6, v7")
    e("v_add_f32 v2, v2, v3")
    e("v_add_f32 v6, v6, v2")
    e("s_and_b64 s[62:63], s[62:63], s[98:99]")
    e("v_cmp_gt_f32 vcc, s3, v6")
    e("s_nop 0")
    e("s_and_b64 s[62:63], s[62:63], vcc")
    e("s_cmp_eq_u64 s[62:63], -1")
    if opt.get("forceslow"): e("s_cmp_eq_u32 s62, 12345")
    e("s_cbranch_scc1 L_P2DONE")
    e.lg = []
    e(f"v_mov_b32 v{M0_}, v{VNEG}")
    e(f"v_mov_b32 v{M1_}, v{VNEG}")
    fill(0, "0", True)
    e("s_nop 1")
    smfma(0, 0, vr(S(0), 16))
    smfma(1, 1, "0")
    for u in range(9):
        if u + 2 <= 8:
            if u + 2 == 8:
                fill((u + 2) % 3, "0", False); e("s_nop 1")
                smfma(u + 2, (u + 2) % 3, vr(S((u + 2) % 3), 16))
            else:
                smfma(u + 2, (u + 2) % 3, "0")
        if u == 0: e("s_nop 9")
        for q in range(8):
            m = M0_ + (q & 1)
            e(f"v_max3_f32 v{m}, v{S(u%3)+2*q}, v{S(u%3)+2*q+1}, v{m}")
        if u < 8:
            e(f"s_cmp_eq_u32 s25, {u+1}")
            e("s_cbranch_scc1 L_P1DONE")
    e("L_P1DONE:")
    vread(0)
    e(f"v_max_f32 v{M0_}, v{M0_}, v{M1_}")
    e(f"v_mov_b32 v{M1_}, v{M0_}")
    e("s_nop 1")
    e(f"v_permlane32_swap_b32 v{M0_}, v{M1_}")
    e("s_nop 1")
    e(f"v_max_f32 v{M0_}, v{M0_}, v{M1_}")
    e(f"v_sub_f32 v{NM}, 0, v{M0_}")
    e("s_nop 3")
    CB = S(2)
    for j in range(16): e(f"v_mov_b32 v{CB+j}, v{NM}")
    fill(0, f"v{NM}", True)
    e("s_nop 1")
    smfma(0, 0, vr(S(0), 16))
    for u in range(9):
        s = S(u % 2)
        if u + 1 <= 8:
            nb_ = (u + 1) % 2
            if u + 1 == 8:
                fill(nb_, f"v{NM}", False); e("s_nop 1")
                smfma(u + 1, nb_, vr(S(nb_), 16))
            else:
                smfma(u + 1, nb_, vr(CB, 16))
            vread(u + 1)
        if u == 0: e("s_nop 6")
        for j in range(8): e(f"v_exp_f32 v{s+j}, v{s+j}")
        for q in range(4): e(f"v_cvt_pk_bf16_f32 v{P+q}, v{s+2*q}, v{s+2*q+1}")
        for j in range(8, 16): e(f"v_exp_f32 v{s+j}, v{s+j}")
        e.lwait(("V", u))
        e(f"v_mfma_f32_32x32x16_bf16 {vr(O,16)}, {vr(V(u,0),4)}, {vr(P,4)}, {'0' if u == 0 else vr(O,16)}")
        for q in range(4, 8): e(f"v_cvt_pk_bf16_f32 v{P+q}, v{s+2*q}, v{s+2*q+1}")
        e("s_nop 1")
        e(f"v_mfma_f32_32x32x16_bf16 {vr(O,16)}, {vr(V(u,1),4)}, {vr(P+4,4)}, {vr(O,16)}")
        if u < 8:
            e(f"s_cmp_eq_u32 s25, {u+1}")
            e("s_cbranch_scc1 L_P2X")
    e("L_P2X:")
    e("s_waitcnt lgkmcnt(0)")
    e("s_nop 12")
    e("L_P2DONE:")
    e("s_lshl_b32 s3, s26, 5")
    e("s_add_u32 s3, s3, s27")
    e("s_lshl_b32 s3, s3, 10")
    e(f"s_add_u32 s3, s3, {WS_O:#x}")
    e(f"v_rcp_f32 v7, v{O+8}")
    e("s_nop 0")
    for j in range(8): e(f"v_mul_f32 v{O+j}, v{O+j}, v7")
    for q in range(4): e(f"v_cvt_pk_bf16_f32 v{P+q}, v{O+2*q}, v{O+2*q+1}")
    e(f"buffer_store_dwordx4 {vr(P,4)}, v1, {SS}, s3 offen {'' if opt.get('hplain') else 'sc1'}")
    gate('att')
    stamp(8)
    signal(8, 7, WS_F2)
    stamp(9)
    e("s_cmp_lg_u32 s2, 0")
    e("s_cbranch_scc1 L_FIN")
    e("s_cmp_lg_u32 s96, 1")
    e("s_cbranch_scc1 L_FIN")
    e("v_lshlrev_b32 v6, 7, v0")
    e("s_mov_b32 s63, 0x20000")
    e("L_BCHK:")
    for g in range(4):
        e(f"s_mov_b32 s62, {WS_F2 + g*8192:#x}")
        e(f"buffer_load_dword v{8+g}, v6, {SS}, s62 offen sc1")
    e("s_waitcnt vmcnt(0)")
    e("v_xor_b32 v7, s61, v8")
    for i in range(9, 12): e(f"v_bitop3_b32 v7, v7, v{i}, s61 bitop3:0xf6")
    e("v_cmp_ne_u32 vcc, 0, v7")
    e("s_sub_u32 s63, s63, 1")
    e("s_cmp_eq_u32 s63, 0")
    e("s_cbranch_scc1 L_FIN")
    e("s_cmp_lg_u64 vcc, 0")
    e("s_cbranch_scc1 L_BCHK")
    e("s_mov_b64 exec, 1")
    e("v_mov_b32 v6, 0")
    e("v_mov_b32 v7, s61")
    e(f"s_mov_b32 s62, {WS_EP:#x}")
    e(f"buffer_store_dword v7, v6, {SS}, s62 offen sc1")
    e("s_mov_b64 exec, -1")
    e("L_FIN:")
    e.vm = []; e.lg = []
    srd(e, 28, 10, 2048 * 1024)
    e(f"""v_lshrrev_b32 v7, 3, v0
    v_and_b32 v14, 7, v0
    v_lshlrev_b32 v8, 4, v14
    v_lshl_add_u32 v2, v7, 10, v8
    s_lshl_b32 s62, s58, 16
    s_lshl_b32 s3, s96, 13
    s_add_u32 s62, s62, s3
    s_lshl_b32 s3, s59, 7
    s_add_u32 s62, s62, s3""")
    e(f"buffer_load_dwordx4 v[8:11], v2, {SX}, s62 offen")
    e(f"""s_and_b32 s3, s96, 3
    s_lshl_b32 s3, s3, 10
    s_cmp_ge_u32 s96, 4
    s_mov_b32 s63, {BREG[0]}
    s_cselect_b32 s63, {BREG[2]}, s63
    s_mov_b32 s64, {BREG[1]}
    s_cselect_b32 s64, {BREG[3]}, s64
    s_add_u32 s63, s63, s3
    s_add_u32 s64, s64, s3
    v_and_b32 v12, 3, v0
    v_lshlrev_b32 v12, 1, v12
    v_xor_b32 v12, v12, v7
    v_bfe_u32 v13, v0, 2, 1
    v_xor_b32 v12, v12, v13
    v_lshlrev_b32 v12, 4, v12
    v_lshl_add_u32 v12, v7, 7, v12
    v_mov_b32 v15, s63
    v_mov_b32 v16, s64
    v_cmp_eq_u32 vcc, 1, v13
    s_nop 1
    v_cndmask_b32 v15, v15, v16, vcc
    v_add_u32 v24, v15, v12
    v_xor_b32 v25, 16, v24""")
    stamp(10)
    e("s_barrier")
    stamp(11)
    R = lambda src, h: 48 + src * 8 + h * 4
    for src in range(4):
        for h in range(2): e.lds(f"ds_read_b128 {vr(R(src,h),4)}, v{24+h} offset:{src*4096}", src)
    e("s_mov_b32 s3, 0xffff0000")
    e("s_waitcnt vmcnt(0)")
    for q in range(4):
        e(f"v_lshlrev_b32 v{32+2*q}, 16, v{8+q}")
        e(f"v_and_b32 v{33+2*q}, s3, v{8+q}")
    for src in range(4):
        e.lwait(src)
        for q in range(4): e(f"v_pk_add_f32 {pk(32+2*q)}, {pk(32+2*q)}, {pk(R(src,0)+2*q)}")
    for q in range(4): e(f"v_cvt_pk_bf16_f32 v{40+q}, v{32+2*q}, v{33+2*q}")
    e("buffer_store_dwordx4 v[40:43], v2, s[28:31], s62 offen " + opt.get("ost", "nt"))
    if opt.get("deadline"):
        e("v_readlane_b32 s4, v167, 0")
        e("L_DLY:")
        e("s_memrealtime s[6:7]")
        e("s_waitcnt lgkmcnt(0)")
        e("s_sub_u32 s8, s6, s4")
        e(f"s_cmp_lt_u32 s8, {opt['deadline']}")
        e("s_cbranch_scc1 L_DLY")
    if opt.get("delay"):
        tm = "s_memrealtime" if opt.get("delayrt") else "s_memtime"
        e(f"{tm} s[4:5]")
        e("s_waitcnt lgkmcnt(0)")
        e("L_DLY:")
        e(f"{tm} s[6:7]")
        e("s_waitcnt lgkmcnt(0)")
        e("s_sub_u32 s8, s6, s4")
        e(f"s_cmp_lt_u32 s8, {opt['delay']}")
        e("s_cbranch_scc1 L_DLY")
    if ST:
        e("L_DUMP:")
        stamp(12)
        e("s_waitcnt vmcnt(0)")
        stamp(13); stamp(14, True)
        if opt.get("dbgst") is not None:
            e("s_load_dwordx2 s[4:5], s[0:1], 56")
            e(f"s_cmp_lg_u32 s2, {opt['dbgst']}")
            e("s_cbranch_scc1 L_END")
            e("s_cmp_lg_u32 s18, 4")
            e("s_cbranch_scc1 L_END")
            e(f"v_readlane_b32 s6, v{VST}, 1")
            e(f"v_readlane_b32 s7, v{VST}, 0")
            e("s_waitcnt lgkmcnt(0)")
            e(f"v_subrev_u32 v3, s6, v{VST}")
            e(f"v_subrev_u32 v4, s7, v{VST}")
            e("v_cmp_eq_u32 vcc, 14, v0")
            e("s_nop 1")
            e("v_cndmask_b32 v3, v3, v4, vcc")
            e("v_lshlrev_b32 v2, 2, v0")
            e("s_mov_b64 exec, 0xffff")
            e("global_store_dword v2, v3, s[4:5]")
            e("s_endpgm")
        e("s_mul_i32 s3, s2, 12")
        e("s_add_u32 s3, s3, s18")
        e("s_lshl_b32 s3, s3, 7")
        e("s_add_u32 s3, s3, 0x1000000")
        e("v_lshl_add_u32 v2, v0, 2, s3")
        e("s_mov_b64 exec, 0xffffffff")
        e(f"global_store_dword v2, v{VST}, s[16:17]")
    e("L_END:")
    e("s_endpgm")
    return name, e.text(), kd(name, 168), (256, 768, LDS)

def build(opt, path):
    n, t, k, (g, b, lds) = gen(opt)
    ref = open(f"cdna_kernels/{NAME}.s.ref").read().split("\n")
    head = [l for l in ref if l.startswith(";") and "@launch" not in l and "Override launch" not in l and "grid=ceil" not in l]
    s = "\n".join(head[:10]) + "\n"
    dm = opt.get("dummy")
    if dm:
        ll = [f"; @launch kernel=dum_kernel grid=({dm[0]},1,1) block=({dm[1]},1,1) lds={dm[2]}\n", f"; @launch kernel={n} grid=({g},1,1) block=({b},1,1) lds={lds}\n"]
        s += "".join(ll if dm[4] == 0 else ll[::-1])
    else: s += f"; @launch grid=({g},1,1) block=({b},1,1) lds={lds}\n"
    s += '.amdgcn_target "amdgcn-amd-amdhsa--gfx950"\n.text\n'
    if dm:
        s += """.globl dum_kernel
.p2align 8
.type dum_kernel,@function
dum_kernel:
  s_memrealtime s[4:5]
  s_waitcnt lgkmcnt(0)
L_DD:
  s_memrealtime s[6:7]
  s_waitcnt lgkmcnt(0)
  s_sub_u32 s8, s6, s4
  s_cmp_lt_u32 s8, 1000
  s_cbranch_scc1 L_DD
  s_endpgm
"""
        k = k + ".p2align 6\n" + kd("dum_kernel", dm[3])
    s += f".globl {n}\n.p2align 8\n.type {n},@function\n" + t
    s += '.section .rodata,"a"\n.p2align 6\n' + k
    open(path, "w").write(s)

if __name__ == "__main__":
    import sys, json
    opt = json.loads(sys.argv[2]) if len(sys.argv) > 2 else {}
    build(opt, sys.argv[1])
```

```python
from emit import *
from alloc import plan3, plan4

NAME = "parallel_sum__sliding_block__dense_activation_relu__prompt"
WS_KV, WS_H, WS_O = 0, 0x600000, 0xD00000
WS_RS = 0xF00000
WS_CS = 0xF10000
WS_EP = 0xF80000
WS_F1, WS_F1B, WS_F2, WS_F1H = 0xF90000, 0xFA0000, 0xFB0000, 0xFC0000
WS_BYTES = 0x1000000
EPC = 0x9E3779B9
L_ST = 158720
L_MISC = L_ST + 3072
LDS = L_MISC + 64
ORD2 = list(range(6, 16)) + list(range(6))
NEG = 0xf149f2ca
pk = lambda a: f"v[{a}:{a+1}]"
SW, S1, SX, SS, S2, SO = "s[28:31]", "s[32:35]", "s[36:39]", "s[40:43]", "s[44:47]", "s[48:51]"
VST = 167

def reduce32(e, regs, tmp):
    for ctl in ("quad_perm:[1,0,3,2]", "quad_perm:[2,3,0,1]", "row_half_mirror", "row_mirror"):
        e("s_nop 1")
        for r in regs: e(f"v_add_f32_dpp v{r}, v{r}, v{r} {ctl} row_mask:0xf bank_mask:0xf")
    for r, t in zip(regs, tmp): e(f"v_mov_b32 v{t}, v{r}")
    e("s_nop 1")
    for r, t in zip(regs, tmp): e(f"v_permlane16_swap_b32 v{r}, v{t}")
    e("s_nop 1")
    for r, t in zip(regs, tmp): e(f"v_add_f32 v{r}, v{r}, v{t}")

def gen(opt):
    e = Em()
    name = NAME + "_kernel"
    ST = opt.get("stamps")
    NB = 6
    NT = opt.get("nt", "")
    UNT = opt.get("unt", "")
    PL = opt.get("pl", 2)
    XA, W1A, W2A, FIN = plan3(PL, opt.get("w2l", 2), NB, opt.get("ust", 0))
    if not opt.get("ust", 0): XA, W1A, W2A, FIN = plan4(PL, NB, opt.get("w2t", 5), opt.get("kvlow", 1))
    BREG = [FIN[f"B{j}"][1] for j in range(NB)]
    BT = [max(FIN[f"B{j}"][0], min(16, opt.get("bt0", 15) + j)) for j in range(NB)]
    L_K, L_V, L_Q, L_ONE = FIN["K"], FIN["V"], FIN["Q"], FIN["ONES"]
    def stamp(i, rt=False):
        if not ST: return
        e(("s_memrealtime" if rt else "s_memtime") + " s[100:101]")
        e("s_waitcnt lgkmcnt(0)")
        e(f"v_writelane_b32 v{VST}, s100, {i}")
        if opt.get("rtall") and not rt:
            e("s_memrealtime s[100:101]")
            e("s_waitcnt lgkmcnt(0)")
            e(f"v_writelane_b32 v{VST}, s100, {16+i}")
    BK = opt.get("bk", [])
    def bstamp(k):
        if ST and k in BK: e(f"s_memtime s[{80+2*BK.index(k)}:{81+2*BK.index(k)}]")
    def bflush():
        if ST and BK:
            e("s_waitcnt lgkmcnt(0)")
            for i in range(len(BK)): e(f"v_writelane_b32 v{VST}, s{80+2*i}, {16+i}")
    uid = [0]
    def lab(p):
        uid[0] += 1
        return f"{p}_{uid[0]}"
    def apoll_issue(voff, soff, vd, tag):
        e.vmem(f"buffer_load_dword v{vd}, v{voff}, {SS}, {soff} offen sc1", tag)
    def apoll_check(voff, soff, vtag, vd, tag):
        D = lab("AOK")
        e.vwait(tag)
        e(f"v_cmp_ne_u32 vcc, v{vtag}, v{vd}")
        e("s_nop 1")
        e("s_cmp_eq_u64 vcc, 0")
        e(f"s_cbranch_scc1 {D}")
        keep = list(e.vm); keepl = list(e.lg)
        poll(voff, soff, vtag, vd)
        e.vm = keep; e.lg = keepl
        e(f"{D}:")
    def poll(voff, soff, vtag, vd):
        L, D = lab("POLL"), lab("POLLED")
        e("s_mov_b32 s63, 0x40000")
        e(f"{L}:")
        e(f"buffer_load_dword v{vd}, v{voff}, {SS}, {soff} offen sc1")
        e("s_waitcnt vmcnt(0) lgkmcnt(0)")
        e(f"v_cmp_ne_u32 vcc, v{vtag}, v{vd}")
        e("s_sub_u32 s63, s63, 1")
        e("s_cmp_eq_u32 s63, 0")
        e(f"s_cbranch_scc1 {D}")
        e("s_cmp_lg_u64 vcc, 0")
        e(f"s_cbranch_scc1 {L}")
        e(f"{D}:")
        e.vm = []; e.lg = []
    def ldswait(off, val, va, vb):
        L, D = lab("LW"), lab("LWOK")
        e(f"v_mov_b32 v{va}, {L_MISC}")
        e("s_mov_b32 s63, 0x400000")
        e(f"{L}:")
        e(f"ds_read_b32 v{vb}, v{va} offset:{off}")
        e("s_sub_u32 s63, s63, 1")
        e("s_waitcnt lgkmcnt(0)")
        e(f"v_readfirstlane_b32 s62, v{vb}")
        e("s_cmp_eq_u32 s63, 0")
        e(f"s_cbranch_scc1 {D}")
        e(f"s_cmp_ge_u32 s62, {val}")
        e(f"s_cbranch_scc1 {D}")
        e("s_sleep 1")
        e(f"s_branch {L}")
        e(f"{D}:")
        e.lg = []
    def ldsadd(off, va, vb):
        e(f"v_mov_b32 v{va}, {L_MISC}")
        e(f"v_mov_b32 v{vb}, 1")
        e("s_mov_b64 exec, 1")
        e(f"ds_add_u32 v{va}, v{vb} offset:{off}")
        e("s_mov_b64 exec, -1")
    def smasks():
        for j in range(16):
            b0 = (j >> 2) * 8 + (j & 3)
            e(f"s_mov_b32 s{64+2*j}, {(0xffffffff << b0) & 0xffffffff:#x}")
            e(f"s_mov_b32 s{65+2*j}, {(0xffffffff << (b0+4)) & 0xffffffff:#x}")
    def asig1(coff, vm):
        e(f"s_waitcnt vmcnt({vm})")
        e("s_mov_b64 exec, 1")
        e.lds(f"ds_add_rtn_u32 v164, v6, v165 offset:{coff}", "sg")
        e("s_mov_b64 exec, -1")
    def asig2(last, base):
        N = lab("NOFLAG")
        e.lwait("sg")
        e("v_readfirstlane_b32 s63, v164")
        e(f"s_add_u32 s62, s24, {base:#x}")
        e(f"s_cmp_lg_u32 s63, {last}")
        e(f"s_cbranch_scc1 {N}")
        e("v_mov_b32 v164, s61")
        e("s_mov_b64 exec, 1")
        e(f"buffer_store_dword v164, off, {SS}, s62 sc1")
        e("s_mov_b64 exec, -1")
        e(f"{N}:")
    def signal(coff, last, base, va=2, vb=3, vm=0):
        N = lab("NOFLAG")
        e(f"s_waitcnt vmcnt({vm})")
        e(f"v_mov_b32 v{va}, {L_MISC}")
        e(f"v_mov_b32 v{vb}, 1")
        e("s_mov_b64 exec, 1")
        e(f"ds_add_rtn_u32 v{vb}, v{va}, v{vb} offset:{coff}")
        e(f"s_add_u32 s62, s24, {base:#x}")
        e("s_waitcnt lgkmcnt(0)")
        e(f"v_readfirstlane_b32 s63, v{vb}")
        e(f"s_cmp_lg_u32 s63, {last}")
        e(f"s_cbranch_scc1 {N}")
        e(f"v_mov_b32 v{va}, 0")
        e(f"v_mov_b32 v{vb}, s61")
        e(f"buffer_store_dword v{vb}, v{va}, {SS}, s62 offen sc1")
        e(f"{N}:")
        e("s_mov_b64 exec, -1")
        e.lg = []

    e(f"{name}:")
    e("s_cmp_ge_u32 s2, 256")
    e("s_cbranch_scc1 L_END")
    stamp(0, True); stamp(1)
    def gate(nm):
        if opt.get("gate") == nm:
            L = lab("GATE")
            e("v_readlane_b32 s98, v167, 0")
            e(f"{L}:")
            e(("s_memtime" if opt.get("gcyc") else "s_memrealtime") + " s[100:101]")
            e("s_waitcnt lgkmcnt(0)")
            e("s_sub_u32 s99, s100, s98")
            e(f"s_cmp_lt_u32 s99, {opt.get('gcyc', 3000)}")
            e(f"s_cbranch_scc1 {L}")
    if opt.get("deadline") or opt.get("gate"): e(("s_memtime" if opt.get("gcyc") else "s_memrealtime") + " s[98:99]"); e("s_waitcnt lgkmcnt(0)"); e("v_writelane_b32 v167, s98, 0")
    e("s_load_dwordx4 s[4:7], s[0:1], 0")
    e("s_load_dwordx4 s[12:15], s[0:1], 32")
    e("s_load_dwordx2 s[16:17], s[0:1], 64")
    e("s_load_dwordx2 s[8:9], s[0:1], 16")
    e("s_load_dwordx2 s[10:11], s[0:1], 48")
    e("v_lshrrev_b32 v1, 6, v0")
    e("v_and_b32 v0, 63, v0")
    e("v_readfirstlane_b32 s18, v1")
    e("""s_and_b32 s3, s2, 1
    s_lshl_b32 s20, s3, 3
    s_lshr_b32 s24, s2, 5
    s_add_u32 s20, s20, s24
    s_bfe_u32 s21, s2, 0x20001
    s_bfe_u32 s22, s2, 0x20003
    s_lshl_b32 s23, s21, 2
    s_add_u32 s23, s23, s22
    s_lshl_b32 s24, s20, 4
    s_add_u32 s24, s24, s23
    s_lshl_b32 s24, s24, 7
    s_and_b32 s19, s18, 3
    s_lshl_b32 s3, s3, 2
    s_add_u32 s58, s3, s21
    s_lshl_b32 s58, s58, 2
    s_lshr_b32 s59, s2, 6
    s_add_u32 s58, s58, s59
    s_bfe_u32 s59, s2, 0x30003""")
    if opt.get("map2", 0):
        e("""s_and_b32 s20, s2, 3
        s_lshl_b32 s20, s20, 2
        s_lshr_b32 s3, s2, 6
        s_add_u32 s20, s20, s3
        s_bfe_u32 s23, s2, 0x10002
        s_lshl_b32 s23, s23, 3
        s_bfe_u32 s3, s2, 0x30003
        s_add_u32 s23, s23, s3
        s_lshl_b32 s24, s20, 4
        s_add_u32 s24, s24, s23
        s_lshl_b32 s24, s24, 7""")
    if opt.get("map3", 0):
        e("""s_and_b32 s20, s2, 7
        s_lshl_b32 s20, s20, 1
        s_lshr_b32 s3, s2, 7
        s_add_u32 s20, s20, s3
        s_bfe_u32 s23, s2, 0x40003
        s_lshl_b32 s24, s20, 4
        s_add_u32 s24, s24, s23
        s_lshl_b32 s24, s24, 7""")
    if opt.get("own", 1):
        e("s_lshl_b32 s58, s20, 1")
        e("s_lshr_b32 s59, s23, 3")
        e("s_add_u32 s58, s58, s59")
        e("s_and_b32 s59, s23, 7")
    e("s_waitcnt lgkmcnt(0)")
    if opt.get("wsoff"):
        e(f"s_add_u32 s16, s16, {opt['wsoff'] << 20:#x}")
        e("s_addc_u32 s17, s17, 0")
    srd(e, 36, 4, 2048 * 1024)
    srd(e, 28, 6, 512 * 3072)
    srd(e, 32, 12, 512 * 3584)
    srd(e, 40, 16, WS_BYTES)
    if opt.get("unear", 1):
        e("s_cmp_lt_u32 s18, 4")
        e("s_cbranch_scc1 L_LOAD")
        e("s_cmp_lt_u32 s18, 8")
        e("s_cbranch_scc1 L_CONS")
        e("UINIT_HERE")
        e("L_LOAD:")
    else:
        e("s_cmp_ge_u32 s18, 8")
        e("s_cbranch_scc1 L_UTIL")
        e("s_cmp_ge_u32 s18, 4")
        e("s_cbranch_scc1 L_CONS")

    e(f"""v_and_b32 v5, 7, v0
    v_lshrrev_b32 v2, 3, v0
    v_lshrrev_b32 v3, 4, v0
    v_xor_b32 v3, v3, v5
    v_lshlrev_b32 v2, 10, v2
    v_lshl_add_u32 v12, v3, 4, v2
    v_xor_b32 v13, 64, v12
    s_lshl_b32 s65, s20, 17
    s_lshl_b32 s3, s18, 15
    s_add_u32 s65, s65, s3
    s_lshl_b32 s67, s18, 12""")
    def issueX(P):
        e(f"s_add_u32 m0, s67, {XA[P]}")
        e(f"s_add_u32 s74, s65, {P*128}")
        for a in range(4):
            e.vmem(f"buffer_load_dwordx4 v{12+(a&1)}, {SX}, s74 offen offset:{a*1024} {NT} lds", ("x", P))
            if a < 3: e(f"s_add_u32 s74, s74, {8192-1024}")
    issueX(0)
    e("""v_lshrrev_b32 v2, 5, v0
    v_bfe_u32 v3, v0, 3, 2
    v_lshl_add_u32 v3, v2, 3, v3
    v_bfe_u32 v4, v0, 4, 2
    v_lshlrev_b32 v4, 1, v4
    v_xor_b32 v4, v4, v5
    v_lshlrev_b32 v4, 4, v4
    v_mul_u32_u24 v10, 3072, v3
    v_add_u32 v10, v10, v4
    v_mul_u32_u24 v11, 3584, v3
    v_add_u32 v11, v11, v4
    s_lshr_b32 s52, s18, 1
    s_lshl_b32 s52, s52, 5
    s_and_b32 s62, s18, 1
    s_lshl_b32 s3, s62, 2
    s_add_u32 s52, s52, s3
    s_lshl_b32 s3, s23, 7
    s_mul_i32 s53, s52, 3072
    s_add_u32 s53, s53, s3
    s_add_u32 s53, s53, 1024
    s_mul_i32 s54, s52, 3584
    s_add_u32 s54, s54, s3""")
    def issueW(c):
        for ah in range(2):
            e(f"s_add_u32 m0, s67, {W1A[c] + ah*2048}")
            e(f"s_add_u32 s74, s53, {(64*c + 16*ah)*3072}")
            e.vmem(f"buffer_load_dwordx4 v10, {SW}, s74 offen {NT} lds", ("w", c))
            e(f"s_add_u32 m0, s67, {W1A[c] + ah*2048 + 1024}")
            e(f"s_add_u32 s74, s54, {(64*c + 16*ah)*3584}")
            e.vmem(f"buffer_load_dwordx4 v11, {S1}, s74 offen {NT} lds", ("w", c))
    def esetup():
        e("""v_lshrrev_b32 v2, 4, v0
        v_bfe_u32 v3, v0, 2, 2
        v_lshl_add_u32 v3, v2, 3, v3
        v_mul_u32_u24 v16, 3072, v3
        v_and_b32 v2, 1, v2
        v_lshlrev_b32 v2, 1, v2
        v_and_b32 v3, 3, v0
        v_xor_b32 v2, v2, v3
        v_lshl_add_u32 v16, v2, 4, v16
        s_and_b32 s62, s18, 1
        s_lshl_b32 s3, s62, 7""")
        for j in range(2):
            e(f"""v_add_u32 v2, s3, v0
            v_add_u32 v2, {64*j}, v2
            v_mul_u32_u24 v3, 10923, v2
            v_lshrrev_b32 v3, 16, v3
            v_mul_u32_u24 v4, 6, v3
            v_sub_u32 v4, v2, v4
            v_bfe_u32 v6, v3, 2, 2
            v_lshlrev_b32 v6, 3, v6
            v_lshrrev_b32 v7, 4, v3
            v_lshl_add_u32 v6, v7, 2, v6
            v_and_b32 v7, 3, v3
            v_add_u32 v6, v6, v7
            v_mul_u32_u24 v{17+j}, 3584, v6
            v_lshl_add_u32 v{17+j}, v4, 4, v{17+j}""")
        e("""s_cmp_eq_u32 s62, 1
        s_cselect_b32 s3, 0x80000000, 0
        v_or_b32 v18, s3, v18
        s_lshr_b32 s3, s18, 1
        s_mul_i32 s55, s52, 3072
        s_lshl_b32 s64, s23, 6
        s_add_u32 s55, s55, s64
        s_mul_i32 s56, s3, 114688
        s_mul_i32 s64, s23, 96
        s_add_u32 s56, s56, s64
        s_add_u32 s56, s56, 2048
        s_mul_i32 s57, s3, 5120
        s_lshl_b32 s64, s62, 10
        s_add_u32 s60, s57, s64
        s_lshl_b32 s64, s62, 11
        s_add_u32 s57, s57, s64
        s_add_u32 s64, s57, 1024
        s_cmp_eq_u32 s62, 1
        s_cselect_b32 s64, 8192, s64""")
    def issueW2(c):
        p = ORD2[2 * c]
        base = W2A[c][1]
        e(f"s_add_u32 m0, s60, {base}")
        e(f"s_add_u32 s74, s55, {p*32*3072}")
        e.vmem(f"buffer_load_dwordx4 v16, {SW}, s74 offen {NT} lds", ("w2", c))
        e(f"s_add_u32 m0, s57, {base + 2048}")
        e(f"s_add_u32 s74, s56, {p*32*3584}")
        e.vmem(f"buffer_load_dwordx4 v17, {S1}, s74 offen {NT} lds", ("w2", c))
        e(f"s_add_u32 m0, s64, {base + 2048}")
        e("s_nop 0")
        e.vmem(f"buffer_load_dwordx4 v18, {S1}, s74 offen {NT} lds", ("w2", c))
    NF2, NS, NA = 14, 18, 4
    A0 = 20
    AF = lambda sg, tb, kk: A0 + (sg % NA) * 16 + (tb * 2 + kk) * 4
    ACB = A0 + NA * 16
    GACC = lambda tb, nb: ACB + (tb * 2 + nb) * 16
    BFB = ACB + 64
    BF = lambda kk, nb: BFB + (kk * 2 + nb) * 4
    assert BFB + 16 <= VST
    def gsetup():
        srd(e, 44, 14, 1792 * 1024)
        srd(e, 48, 8, 512 * 1024)
        e(f"""v_lshrrev_b32 v8, 3, v0
        v_bfe_u32 v2, v0, 4, 1
        v_lshlrev_b32 v2, 2, v2
        v_xor_b32 v9, v5, v2
        v_lshlrev_b32 v9, 4, v9
        v_lshl_add_u32 v14, v8, 10, v9
        v_lshrrev_b32 v2, 2, v8
        v_lshlrev_b32 v2, 3, v2
        v_and_b32 v8, 3, v8
        v_add_u32 v8, v8, v2
        v_lshl_add_u32 v15, v8, 10, v9
        v_lshlrev_b32 v1, 4, v0
        s_lshl_b32 s3, s59, 7
        s_lshl_b32 s70, s18, 18
        s_add_u32 s70, s70, s3
        s_mul_i32 s78, s18, {12*16*1024}
        s_add_u32 s78, s78, s3
        s_lshl_b32 s71, s18, 17
        s_add_u32 s71, s71, s3
        s_mul_i32 s72, s58, {2*112*1024}
        s_add_u32 s72, s72, {WS_H:#x}
        s_mul_i32 s79, s18, {12*1024}
        s_add_u32 s79, s79, s72
        s_lshl_b32 s3, s18, 14
        s_add_u32 s72, s72, s3
        s_lshl_b32 s73, s58, 16
        s_lshl_b32 s3, s18, 13
        s_add_u32 s73, s73, s3
        s_add_u32 s73, s73, {WS_O:#x}
        s_and_b32 s3, s58, 3
        s_cmp_eq_u32 s3, s18
        s_cselect_b32 s26, 1, 0
        s_cmp_eq_u32 s59, s18
        s_cselect_b32 s27, 1, 0
        s_add_u32 s3, s18, 4
        s_cmp_eq_u32 s59, s3
        s_cselect_b32 s21, 1, 0
        s_lshl_b32 s69, s58, 1
        s_add_u32 s69, s69, s59
        s_and_b32 s69, s69, {opt.get("rotm", 7)}
        s_sub_u32 s25, s69, 6
        s_cmp_ge_u32 s69, 6
        s_cselect_b32 s25, s25, s69""")
    KS = [(2 * i, False) for i in range(8)] + [(64 + 2 * i, True) for i in range(6)]
    ROT = opt.get("rot", 0)
    def ridx(sg):
        if sg < 8:
            e(f"s_add_u32 s68, s69, {sg}")
            e("s_and_b32 s68, s68, 7")
        elif sg < NF2:
            e(f"s_add_u32 s68, s25, {sg-8}")
            e("s_sub_u32 s3, s68, 6")
            e("s_cmp_ge_u32 s68, 6")
            e("s_cselect_b32 s68, s3, s68")
        else:
            e(f"s_add_u32 s68, s69, {sg-NF2}")
            e("s_and_b32 s68, s68, 3")
    def issueB(sg):
        if ROT:
            ridx(sg)
            e("s_lshl_b32 s68, s68, 15")
            e(f"s_add_u32 s68, s68, {'s70' if sg < 8 else 's78' if sg < NF2 else 's71'}")
        for a in range(4):
            e(f"s_add_u32 m0, s67, {BREG[sg % NB] + a*1024}")
            if sg < NF2:
                k16, ex = KS[sg]
                if ROT: e(f"s_add_u32 s74, s68, {((1024 if ex else 0) + 8*a)*1024}")
                else: e(f"s_add_u32 s74, {'s78' if ex else 's70'}, {(16*k16 + 8*a)*1024}")
                e.vmem(f"buffer_load_dwordx4 v14, {S2}, s74 offen lds", ("B", sg))
            else:
                if ROT: e(f"s_add_u32 s74, s68, {(16*(a>>1) + 4*(a&1))*1024}")
                else: e(f"s_add_u32 s74, s71, {(32*(sg-NF2) + 16*(a>>1) + 4*(a&1))*1024}")
                e.vmem(f"buffer_load_dwordx4 v15, {SO}, s74 offen lds", ("B", sg))
    def issueA(sg, tbs=(0, 1)):
        for tb in tbs:
            if sg < NF2:
                k16, ex = KS[sg]
                e(f"s_add_u32 s74, {'s79' if ex else 's72'}, {(tb*112 + k16)*1024}")
            else: e(f"s_add_u32 s74, s73, {(tb*32 + 2*(sg-NF2))*1024}")
            for kk in range(2):
                e.vmem(f"buffer_load_dwordx4 {vr(AF(sg,tb,kk),4)}, v1, {SS}, s74 offen offset:{kk*1024} sc1", ("A", sg))
    LEAD = opt.get("lead", 0)
    def either(sreg, lead_fn, foll_fn):
        L1, L2 = lab("LD"), lab("LE")
        e(f"s_cmp_lg_u32 {sreg}, 0")
        e(f"s_cbranch_scc1 {L1}")
        allk = list(e.act)
        e.act = [k for k in allk if sreg not in k]
        if foll_fn: foll_fn()
        e(f"s_branch {L2}")
        e(f"{L1}:")
        keep = list(e.vm)
        e.act = [k for k in allk if sreg in k]
        if lead_fn: lead_fn()
        e.vm = keep
        e.act = allk
        e(f"{L2}:")
    def gsetup2():
        e(f"""v_lshrrev_b32 v6, 5, v0
        v_lshlrev_b32 v6, 3, v6
        v_bfe_u32 v7, v0, 2, 2
        v_add_u32 v6, v6, v7
        v_lshlrev_b32 v6, 7, v6
        v_lshrrev_b32 v7, 1, v7
        v_lshl_add_u32 v6, v7, 6, v6
        v_bfe_u32 v7, v0, 4, 1
        v_lshl_add_u32 v6, v7, 5, v6
        v_and_b32 v7, 3, v0
        v_lshl_add_u32 v6, v7, 3, v6
        v_add_u32 v6, s67, v6
        v_xor_b32 v7, 64, v6
        v_add_u32 v8, 49152, v6
        v_add_u32 v9, 49152, v7
    v_add_u32 v10, 98304, v6
    v_add_u32 v11, 98304, v7
        v_mov_b32 v2, {L_MISC}
        ds_read_b32 v2, v2
        v_and_b32 v3, 3, v0
        v_lshlrev_b32 v3, 7, v3
        s_lshr_b32 s76, s58, 1
        s_lshl_b32 s76, s76, 11
        s_lshl_b32 s3, s18, 9
        s_add_u32 s76, s76, s3
        s_add_u32 s66, s76, {WS_F1H:#x}""")
        e("s_mov_b32 s75, 0")
        e("s_waitcnt lgkmcnt(0)")
    D = opt.get("gd", 3); DB = NB - 1; PS = opt.get("ps", 12); PB = 8 - D - 1
    GE = opt.get("ge", 15)
    def firstA(lo=0, hi=None):
        hi = D if hi is None else hi
        for sg in range(lo, hi):
            if LEAD & 2 and sg == hi - 1:
                for tb in range(2): either(("s27", "s21")[tb], lambda: issueA(sg, (tb,)), None)
            else: issueA(sg)
    issueW(0)
    for c in range(1, PL): issueX(c); issueW(c)
    for k in range(17):
        e.vwait([("w", k), ("x", k)] if k < 8 else [("w2", k - 8)])
        if k == 0: stamp(2)
        if k == 8: stamp(3)
        if k == 16: stamp(4)
        bstamp(k)
        if k == 16: bflush()
        e("s_barrier")
        if k + PL <= 7: issueX(k + PL); issueW(k + PL)
        if k == 1: gsetup()
        if k == 2: esetup()
        for c in range(8):
            if W2A[c][0] == k: issueW2(c)
        if k == 7 and any(W2A[c][0] == 7.5 for c in range(8)):
            ldswait(28, 4, 2, 3)
            for c in range(8):
                if W2A[c][0] == 7.5: issueW2(c)
        if k == 9: gsetup2()
        if k == GE - 2: apoll_issue(3, "s66", 4, "f1h")
        if k == GE:
            sk = lab("GLATE")
            e.vwait("f1h")
            e("v_cmp_ne_u32 vcc, v2, v4")
            e("s_nop 1")
            e("s_cmp_lg_u64 vcc, 0")
            e(f"s_cbranch_scc1 {sk}")
            keep = list(e.vm)
            if not opt.get("gel", 1): firstA()
            e.vm = keep
            e("s_mov_b32 s75, 1")
            e(f"{sk}:")
        if k < 16:
            for j in range(NB):
                if BT[j] == k: issueB(j)
    if opt.get("gprio", 0): e(f"s_setprio {opt.get('gprio')}")
    if opt.get("gel", 1):
        e("s_cmp_lg_u32 s75, 0")
        e("s_cbranch_scc1 L_GRDY")
        keep = list(e.vm)
        poll(3, "s66", 2, 4)
        e.vm = keep
        e("L_GRDY:")
        for j in range(NB):
            if BT[j] >= 16: issueB(j)
            if j < D: issueA(j)
    else:
        for j in range(NB):
            if BT[j] >= 16: issueB(j)
        e("s_cmp_lg_u32 s75, 0")
        e("s_cbranch_scc1 L_GGO")
        keep = list(e.vm)
        poll(3, "s66", 2, 4)
        e.vm = keep
        if LEAD:
            assert GE > 16
            e.vm = []
            e.var_start([(b_, a_) for b_ in ("", "s26") for a_ in ("", "s27", "s21")])
        firstA()
    e("L_GGO:")
    stamp(5)
    def step(sg):
        if sg == opt.get("ghold", -1): ldswait(16, 8, 12, 13)
        bstamp(100 + sg)
        e.vwait([("B", sg), ("A", sg)])
        bstamp(200 + sg)
        reg = BREG[sg % NB]
        hi = reg // 49152
        off0 = reg - 49152 * hi
        for kk in range(2):
            for nb in range(2):
                for q in range(2):
                    e.lds(f"ds_read_b64_tr_b16 v[{BF(kk,nb)+2*q}:{BF(kk,nb)+2*q+1}], v{6+2*hi+nb} offset:{off0 + kk*2048 + q*512}", (kk, nb))
        if LEAD & 1:
            FB = opt.get("fb", 3)
            okb = lambda j: NB <= j < NS
            if okb(sg + DB) or okb(sg + FB):
                either("s26", (lambda: issueB(sg + DB)) if okb(sg + DB) else None, (lambda: issueB(sg + FB)) if okb(sg + FB) else None)
        elif NB <= sg + DB < NS: issueB(sg + DB)
        oka = lambda j: j < NF2 or (j < NS and sg > PS and j >= PS + 1 + D)
        if LEAD & 2:
            okf = lambda j: j < NF2 or (j < NS and sg > PS and j >= PS + D)
            for tb in range(2):
                if oka(sg + D) or okf(sg + D - 1):
                    either(("s27", "s21")[tb], (lambda: issueA(sg + D, (tb,))) if oka(sg + D) else None, (lambda: issueA(sg + D - 1, (tb,))) if okf(sg + D - 1) else None)
        elif oka(sg + D): issueA(sg + D)
        for kk in range(2):
            for nb in range(2):
                e.lwait((kk, nb))
                for tb in range(2):
                    acc = vr(GACC(tb, nb), 16)
                    cin = "0" if (sg == 0 and kk == 0) else acc
                    if opt.get("nogm") and (kk or nb): continue
                    e(f"v_mfma_f32_32x32x16_bf16 {acc}, {vr(BF(kk,nb),4)}, {vr(AF(sg,tb,kk),4)}, {cin}")
    for sg in range(PS + 1):
        if sg == PB - 1 or sg == PS - 1:
            e(f"s_add_u32 s66, s76, {(WS_F1B if sg == PB - 1 else WS_F2):#x}")
            apoll_issue(3, "s66", 4, "fl")
        step(sg)
        if sg == PB:
            stamp(6)
            apoll_check(3, "s66", 2, 4, "fl")
    stamp(7)
    apoll_check(3, "s66", 2, 4, "fl")
    stamp(8)
    firstA(NF2, min(NS, PS + 1 + D))
    for sg in range(PS + 1, NS): step(sg)
    e.var = None
    bflush()
    gate('g')
    stamp(9)
    e("""v_and_b32 v12, 31, v0
    v_lshlrev_b32 v12, 7, v12
    v_lshrrev_b32 v13, 5, v0
    v_xor_b32 v13, v13, v5
    v_lshl_add_u32 v12, v13, 4, v12
    v_add_u32 v12, s67, v12""")
    for nb in range(2):
        for a in range(4): e(f"v_xor_b32 v{20+nb*4+a}, {((2*a) ^ nb)*16}, v12")
    for tb in range(2):
        for nb in range(2):
            for a in range(4): e(f"v_add_u32 v{28+(tb*2+nb)*4+a}, {BREG[tb*2+nb]}, v{20+nb*4+a}")
    for tb in range(2):
        for nb in range(2):
            for a in range(4): e(f"ds_write_b128 v{28+(tb*2+nb)*4+a}, {vr(GACC(tb,nb)+4*a,4)}")
    e("s_waitcnt lgkmcnt(0)")
    stamp(10)
    e("s_barrier")
    if ST: e("s_branch L_DUMP")
    e("s_endpgm")

    e("L_CONS:")
    e.vm = []; e.lg = []
    LA = opt.get("la", 5); NFB = 6
    F = lambda f: 8 + (f % NFB) * 4
    XF = lambda n, r: 32 + ((n & 1) * 2 + r) * 4
    XK = lambda p, r: 48 + (p * 2 + r) * 4
    ACC = lambda s, r: 96 + (s * 2 + r) * 4
    AW = [1, 2, 3, 4]; AX = [7, 5]
    e(f"""v_lshrrev_b32 v8, 2, v0
    v_lshrrev_b32 v9, 3, v8
    v_lshlrev_b32 v9, 11, v9
    v_and_b32 v10, 7, v8
    v_lshl_add_u32 v9, v10, 7, v9
    v_and_b32 v10, 3, v0
    v_lshlrev_b32 v10, 3, v10
    v_add_u32 v9, v9, v10
    v_bfe_u32 v11, v0, 3, 2
    v_lshl_add_u32 v1, v11, 5, v9
    v_add_u32 v1, {W1A[0]}, v1
    v_xor_b32 v2, 32, v1
    v_xor_b32 v3, 64, v1
    v_xor_b32 v4, 96, v1
    v_and_b32 v8, 15, v0
    v_lshrrev_b32 v9, 4, v0
    v_lshrrev_b32 v10, 1, v8
    v_xor_b32 v9, v9, v10
    v_lshlrev_b32 v8, 7, v8
    v_lshl_add_u32 v7, v9, 4, v8
    s_lshl_b32 s3, s19, 12
    s_add_u32 s3, s3, {XA[0]}
    v_add_u32 v7, s3, v7
    v_xor_b32 v5, 64, v7""")
    e(f"v_mov_b32 v6, {L_MISC}")
    e("v_mov_b32 v165, 1")
    if not BK: smasks()
    if opt.get("cprio", 3): e(f"s_setprio {opt.get('cprio', 3)}")
    cur = {"w": W1A[0], "x": XA[0]}
    UST = opt.get("ust", 0)
    PEND = []
    DEF = []; NST = [0]; TIM = 0 if UST else opt.get("tim", 2)
    def move(kind, regs, addr):
        d = addr - cur[kind]
        if d:
            for a in regs: e(f"v_add_u32 v{a}, {d & 0xffffffff:#x}, v{a}")
        cur[kind] = addr
    def gemm(ps):
        NSB = 8 if ps == 1 else 5
        NF = 16 * NSB
        kst = (lambda n: n) if ps == 1 else (lambda n: ORD2[n])
        xreg = lambda n, r: XK(kst(n), r) if kst(n) < 6 else XF(n, r)
        def rd(f):
            n, s = divmod(f, NSB)
            for q in range(2):
                if ps == 1:  a, off = AW[s & 3], (n & 1) * 8192 + q * 4096 + (s >> 2) * 1024
                elif s < 2:  a, off = AW[s], (n & 1) * 5120 + q * 1024
                else:        a, off = AW[2], (n & 1) * 5120 + 2048 + q * 1536 + (s - 2) * 32
                yield f"ds_read_b64_tr_b16 v[{F(f)+2*q}:{F(f)+2*q+1}], v{a} offset:{off}"
        def kswitch(n):
            if n % 2 == 0:
                if ps == 1: move("w", AW, W1A[n // 2])
                else:       move("w", AW[:3], W2A[n // 2][1])
                bstamp(8 * (ps - 1) + n // 2)
                e("s_barrier")
                if ps == 2 and not UST:
                    for _ in range(opt.get("tper", 4)):
                        if DEF:
                            for x in DEF.pop(0):
                                if opt.get("nost1") and "buffer_store" in x: continue
                                e(x.replace(" sc1", "") if opt.get("plain1") else x)
                            NST[0] += 1
                    if n // 2 == opt.get("sgk", 0):
                        asig1(4, max(0, NST[0] - 4)); PEND.append(WS_F1)
                    if n // 2 == opt.get("sgh", 3):
                        assert not DEF
                        asig1(24, 0); PEND.append(WS_F1H)
            if NSB > LA or n < 2: xread(n)
        def xread(n):
            p = kst(n)
            if ps == 1 or p >= 6:
                move("x", AX, XA[p >> 1])
                for r in range(2): e.lds(f"ds_read_b128 {vr(xreg(n,r),4)}, v{AX[p&1]} offset:{r*2048}", ("x", n))
        kswitch(0)
        if ps == 1: stamp(2); gate("b0")
        for f in range(LA):
            if f and f % NSB == 0: kswitch(f // NSB)
            for r_ in rd(f): e.lds(r_, f)
        for f in range(NF):
            n, s = divmod(f, NSB)
            nxt = f + LA
            if nxt < NF and nxt % NSB == 0: kswitch(nxt // NSB)
            if NSB <= LA and s == 0 and 1 <= n < 15: xread(n + 1)
            if PEND and nxt % (2 * NSB) == 4: asig2(3, PEND.pop())
            if opt.get("w2f", 1) and f % 2 == 0 and f + 1 < NF: e.lwait([f, f + 1, ("x", n), ("x", (f + 1) // NSB)])
            else: e.lwait([f, ("x", n)])
            if ps == 2 and f == NF - 1 and not opt.get("b16late"): e("s_barrier")
            rds = list(rd(nxt)) if nxt < NF else [None, None]
            for r in range(2):
                acc = vr(ACC(s, r), 4)
                e(f"v_mfma_f32_16x16x32_bf16 {acc}, {vr(F(f),4)}, {vr(xreg(n,r),4)}, {'0' if n == 0 else acc}")
                if rds[r]: e.lds(rds[r], nxt)
    RS = lambda r: 160 + 2 * r
    RQ = lambda r: 32 + 2 * r
    TT = 8
    CSR = [24, 28]
    def epilogue(ps):
        order = (([0, 1, 2, 3, 5, 6, 7, 4] if opt.get('kvfirst', 1) else [5, 6, 7, 2, 3, 4, 0, 1]) if TIM else list(range(8))) if ps == 1 else ([2, 3, 4, 0, 1] if opt.get('b16late') else [0, 1, 2, 3, 4])
        dd = {}
        loc = lambda s: s if ps == 1 else 8 + s
        if ps == 1:
            ldsadd(28, 8, 9)
            ldswait(20, 1, 8, 9)
        e(f"""v_and_b32 v16, 15, v0
        v_lshrrev_b32 v17, 4, v0
        s_lshl_b32 s3, s19, 9
        s_add_u32 s3, s3, {L_ST}
        v_lshl_add_u32 v8, v16, 4, s3
        v_lshlrev_b32 v164, 4, v17
        v_add_u32 v164, {L_ST+2048}, v164
        v_mov_b32 v10, {L_MISC}""")
        if ps == 1:
            for r in range(2): e.lds(f"ds_read_b64 {pk(RS(r))}, v8 offset:{256*r}", "st")
            e.lds("ds_read_b32 v10, v10", "st")
        def csread(n):
            if n < len(order): e.lds(f"ds_read_b128 {vr(CSR[n%2],4)}, v164 offset:{64*loc(order[n])}", ("cs", n))
        csread(0)
        e("v_lshlrev_b32 v166, 4, v0")
        if ps == 1:
            e(f"""s_lshl_b32 s52, s20, 2
            s_add_u32 s52, s52, s19
            s_lshl_b32 s53, s23, 8
            s_add_u32 s53, s53, s52
            s_lshl_b32 s53, s53, 10
            s_mul_i32 s54, s52, 112
            s_mul_i32 s55, s23, 3
            s_add_u32 s55, s55, s54
            s_add_u32 s55, s55, 64
            s_lshl_b32 s55, s55, 10
            s_lshl_b32 s3, s23, 2
            s_add_u32 s54, s54, s3
            s_lshl_b32 s54, s54, 10
            s_add_u32 s54, s54, {WS_H:#x}
            s_add_u32 s55, s55, {WS_H:#x}""")
            if UST:
                e("s_lshl_b32 s3, s19, 12")
                e("v_add_u32 v36, s3, v166")
                e(f"v_add_u32 v37, {W1A[7]}, v36")
                e(f"v_add_u32 v36, {W1A[6]}, v36")
            e.lwait("st")
            e("v_readfirstlane_b32 s61, v10")
        else:
            e("s_mov_b32 s3, 0x3eb8aa3b")
            for q in range(4): e(f"v_mul_f32 v{32+q}, s3, v{160+q}")
            e("s_lshl_b32 s3, s19, 10")
            e(f"s_add_u32 s3, s3, {L_Q}")
            e("v_add_u32 v36, s3, v166")
        for n, s in enumerate(order):
            T = 16 + 4 * (n % 2)
            stg = ps == 1 and UST
            dfr = ps == 1 and TIM and s >= (4 if opt.get('kvfirst', 1) else 2) and not UST
            if dfr: T = ACC(s, 0) if s >= 5 else ACC(s + 3, 1)
            isQ = ps == 2 and s < 2
            isH = (ps == 1 and s >= 4) or (ps == 2 and s >= 2)
            if stg and s == 4: ldswait(28, 4, 38, 39)
            e.lwait(("cs", n))
            c = CSR[n % 2]
            csread(n + 1)
            if opt.get("xnop"): e("s_nop 3")
            if (ps == 2 or opt.get("nopk1", 1)) and opt.get("nopk", 1):
                for r in range(2):
                    sp = RQ(r) if isQ else RS(r)
                    for j in range(4): e(f"v_mul_f32 v{TT+4*r+j}, v{c+j}, v{sp+1}")
                for r in range(2):
                    sp = RQ(r) if isQ else RS(r)
                    for j in range(4): e(f"v_fmac_f32 v{TT+4*r+j}, v{ACC(s,r)+j}, v{sp}")
            else:
                for r in range(2):
                    sp = RQ(r) if isQ else RS(r)
                    for h in range(2):
                        e(f"v_pk_mul_f32 {pk(TT+4*r+2*h)}, {pk(c+2*h)}, {pk(sp)} op_sel:[0,1] op_sel_hi:[1,1]")
                for r in range(2):
                    sp = RQ(r) if isQ else RS(r)
                    for h in range(2):
                        t = TT + 4 * r + 2 * h
                        e(f"v_pk_fma_f32 {pk(t)}, {pk(ACC(s,r)+2*h)}, {pk(sp)}, {pk(t)} op_sel_hi:[1,0,1]")
            for r in range(2):
                for h in range(2):
                    t = TT + 4 * r + 2 * h
                    e(f"v_cvt_pk_bf16_f32 v{T+2*r+h}, v{t}, v{t+1}")
            if isQ or stg: sa = "s_nop 0"
            elif ps == 2: sa = f"s_add_u32 s3, s55, {(s-2)*1024}"
            elif s < 4: sa = f"s_add_u32 s3, s53, {WS_KV + s*0x10000:#x}"
            else: sa = f"s_add_u32 s3, s54, {(s-4)*1024}"
            e("s_nop 2")
            e(f"v_permlane16_swap_b32 v{T}, v{T+2}")
            e(f"v_permlane16_swap_b32 v{T+1}, v{T+3}")
            e(sa if not dfr else "s_nop 0")
            e("s_nop 0")
            if isH:
                for q in (0, 2, 1, 3): e(f"v_pk_max_i16 v{T+q}, v{T+q}, 0")
            if isQ:
                e.lds(f"ds_write_b128 v36, {vr(T,4)} offset:{s*4096}", "qw")
                if s == 1:
                    e.lwait_all()
                    ldsadd(16, 37, 38)
            elif stg: e.lds(f"ds_write_b128 v{36 + (s >> 2)}, {vr(T,4)} offset:{(s&3)*1024}", "qw")
            elif dfr: dd[s] = [sa, f"buffer_store_dwordx4 {vr(T,4)}, v166, {SS}, s3 offen {'' if isH and opt.get('hplain') else 'sc1'}"]
            else:
                e(f"buffer_store_dwordx4 {vr(T,4)}, v166, {SS}, s3 offen {'' if isH and opt.get('hplain') else 'sc1'}")
                NST[0] += 1
                if ps == 2 and s == 4 and opt.get("b16late"): e("s_barrier")
        for s in sorted(dd): DEF.append(dd[s])
    gemm(1)
    gate('p1')
    stamp(3)
    epilogue(1)
    e(f"""v_lshrrev_b32 v8, 2, v0
    v_and_b32 v10, 3, v0
    v_lshlrev_b32 v10, 3, v10
    v_lshl_add_u32 v1, v8, 6, v10
    v_bfe_u32 v11, v0, 4, 1
    v_lshl_add_u32 v1, v11, 5, v1
    v_add_u32 v1, {W2A[0][1]}, v1
    v_xor_b32 v2, 32, v1
    v_mul_u32_u24 v3, 96, v8
    v_add_u32 v3, v3, v10
    v_add_u32 v3, {W2A[0][1]}, v3""")
    cur["w"] = W2A[0][1]
    e.lwait_all()
    stamp(4)
    gemm(2)
    gate('p2')
    bflush()
    stamp(5)
    epilogue(2)
    if BK: smasks()
    e("s_mov_b32 s96, s19")
    e("s_mov_b32 s97, 1")
    e("s_branch L_ATT")

    e("L_UTIL:")
    e.vm = []; e.lg = []
    if opt.get("uprio0", 3): e(f"s_setprio {opt.get('uprio0', 3)}")
    L0, U, A, CL, C0, C1, VE = 16, 24, 40, 48, 64, 72, 80
    e("v_and_b32 v5, 7, v0")
    def pfcode():
        sk = lab("NOPC")
        e("s_cmp_lg_u32 s19, 3")
        e(f"s_cbranch_scc1 {sk}")
        e("s_getpc_b64 s[72:73]")
        e("L_PCREF:")
        e(f"s_sub_u32 s72, s72, L_PCREF-{name}")
        e("s_subb_u32 s73, s73, 0")
        e("s_lshr_b32 s74, s2, 3")
        e("s_mul_i32 s74, s74, (L_END-%s+4095)/4096*128" % name)
        e("v_lshlrev_b32 v2, 7, v0")
        e("v_add_u32 v2, s74, v2")
        e(f"v_min_u32 v2, L_END-{name}, v2")
        e("v_mov_b32 v3, s73")
        e("v_add_co_u32 v2, vcc, s72, v2")
        e("s_nop 1")
        e("v_addc_co_u32 v3, vcc, 0, v3, vcc")
        e("v_cmp_gt_u32 vcc, (L_END-%s+4095)/4096, v0" % name)
        e("s_nop 1")
        e("s_and_saveexec_b64 s[74:75], vcc")
        e("global_load_dword v163, v[2:3], off")
        e("s_mov_b64 exec, -1")
        e(f"{sk}:")
    if opt.get("pfc", 1) and not opt.get("unear", 1): pfcode()
    PFU = opt.get("pfu", 0)
    def pf_x():
        e("""v_and_b32 v2, 31, v0
        v_lshlrev_b32 v2, 10, v2
        v_lshrrev_b32 v3, 5, v0
        v_lshl_add_u32 v2, v3, 7, v2
        s_lshl_b32 s64, s20, 17
        s_lshl_b32 s65, s22, 15
        s_add_u32 s64, s64, s65
        s_lshl_b32 s65, s19, 8
        s_add_u32 s64, s64, s65""")
        e(f"buffer_load_dword v160, v2, {SX}, s64 offen")
    def pf_w():
        L1, L2, L3, LD = lab("PW"), lab("PW"), lab("PW"), lab("PW")
        e("""s_and_b32 s64, s20, 7
        v_lshlrev_b32 v2, 3, v0
        v_add_u32 v2, s64, v2
        v_mul_u32_u24 v3, 3584, v2
        v_mul_u32_u24 v2, 3072, v2
        s_lshl_b32 s64, s23, 7""")
        e("s_cmp_eq_u32 s19, 1"); e(f"s_cbranch_scc1 {L1}")
        e("s_cmp_eq_u32 s19, 3"); e(f"s_cbranch_scc1 {L3}")
        e("s_add_u32 s65, s64, 1024")
        e("s_lshr_b32 s64, s64, 1")
        e("s_cmp_eq_u32 s19, 0")
        e("s_cselect_b32 s64, s65, s64")
        e(f"buffer_load_dword v161, v2, {SW}, s64 offen")
        e(f"s_branch {LD}")
        e(f"{L3}:")
        e("s_mul_i32 s64, s23, 96")
        e("s_add_u32 s64, s64, 2048")
        e(f"buffer_load_dword v162, v3, {S1}, s64 offen offset:92")
        e(f"{L1}:")
        e(f"buffer_load_dword v161, v3, {S1}, s64 offen")
        e(f"{LD}:")
    if PFU == 1: pf_x(); pf_w()
    UL = opt.get("ul", -1)
    for _ in range(UL + 1): e("s_barrier")
    e(f"v_mov_b32 v{VE}, 0")
    e(f"s_mov_b32 s3, {WS_EP:#x}")
    e.vmem(f"buffer_load_dword v{VE}, v{VE}, {SS}, s3 offen sc1", "rs")
    e(f"""v_lshrrev_b32 v4, 5, v0
    v_and_b32 v6, 31, v0
    v_lshlrev_b32 v6, 4, v6
    v_lshl_add_u32 v6, v4, 10, v6
    v_lshlrev_b32 v{VE+1}, 4, v4
    s_lshl_b32 s64, s20, 7
    s_lshl_b32 s65, s23, 3
    s_add_u32 s64, s64, s65
    s_lshl_b32 s65, s19, 1
    s_add_u32 s64, s64, s65
    s_lshl_b32 s65, s64, 10""")
    e.vmem(f"buffer_load_dwordx4 {vr(L0,4)}, v6, {SX}, s65 offen {UNT}", "rs")
    e.vmem(f"buffer_load_dwordx4 {vr(L0+4,4)}, v6, {SX}, s65 offen offset:512 {UNT}", "rs")
    e("""s_add_u32 s66, s23, 8
    s_add_u32 s67, s23, 24
    s_cmp_eq_u32 s19, 1
    s_cselect_b32 s66, s67, s66
    s_add_u32 s67, s23, 32
    s_cmp_lt_u32 s23, 8
    s_cselect_b32 s67, s23, s67
    s_cmp_eq_u32 s19, 2
    s_cselect_b32 s66, s67, s66
    s_add_u32 s67, s23, 48
    s_cmp_eq_u32 s19, 3
    s_cselect_b32 s66, s67, s66
    v_lshrrev_b32 v2, 3, v0
    v_lshlrev_b32 v3, 4, v5
    s_cmp_ge_u32 s66, 52
    s_cbranch_scc1 L_CSD
    s_lshl_b32 s67, s66, 7
    s_cmp_ge_u32 s66, 24
    s_cbranch_scc1 L_CSW
    v_mul_u32_u24 v4, 3072, v2
    v_add_u32 v4, v4, v3""")
    e(f"s_mul_i32 s68, s20, {32*3072}")
    e("s_add_u32 s68, s68, s67")
    for t in range(4):
        e(f"buffer_load_dwordx4 {vr(CL+4*t,4)}, v4, {SW}, s68 offen {UNT}")
        if t < 3: e(f"s_add_u32 s68, s68, {8*3072}")
    e("s_branch L_CSD")
    e("L_CSW:")
    e("v_mul_u32_u24 v4, 3584, v2")
    e("v_add_u32 v4, v4, v3")
    e(f"s_mul_i32 s68, s20, {32*3584}")
    e("s_add_u32 s68, s68, s67")
    e(f"s_sub_u32 s68, s68, {24*128}")
    for t in range(4):
        e(f"buffer_load_dwordx4 {vr(CL+4*t,4)}, v4, {S1}, s68 offen {UNT}")
        if t < 3: e(f"s_add_u32 s68, s68, {8*3584}")
    e("L_CSD:")
    if opt.get("unear", 1):
        if opt.get("pfc", 1): pfcode()
        i0 = e.lines.index("L_UTIL:")
        blk = e.lines[i0 + 1:] + ["  s_branch L_UTIL"]
        del e.lines[i0 + 1:]
        j0 = e.lines.index("  UINIT_HERE")
        e.lines[j0:j0 + 1] = blk
    if PFU == 2:
        e("s_mov_b32 s74, s64")
        pf_x(); pf_w()
        e("s_mov_b32 s64, s74")
    e(f"""s_mov_b32 s69, 0xffff0000
    s_mov_b32 s70, 0x3b000000
    s_lshl_b32 s64, s64, 4
    s_add_u32 s64, s64, {WS_RS:#x}
    v_lshlrev_b32 v14, 4, v0
    s_lshl_b32 s71, s23, 8
    s_add_u32 s72, s71, {512*4}
    v_add_u32 v15, s72, v14
    s_add_u32 s72, s71, {1536*4 - 256}
    v_add_u32 v2, s72, v14
    v_cmp_le_u32 vcc, 16, v0
    s_lshl_b32 s72, s23, 7
    s_sub_u32 s72, s72, 512
    v_cndmask_b32 v15, v15, v2, vcc
    v_add_u32 v2, s72, v14
    v_cmp_le_u32 vcc, 32, v0
    s_mul_i32 s72, s23, 192
    s_add_u32 s72, s72, {2560*4 - 640}
    v_cndmask_b32 v15, v15, v2, vcc
    v_min_u32 v2, 51, v0
    v_lshlrev_b32 v2, 4, v2
    v_add_u32 v2, s72, v2
    v_cmp_le_u32 vcc, 40, v0
    s_nop 1
    v_cndmask_b32 v15, v15, v2, vcc""")
    def piece(n):
        if n == 0:
            e("s_cmp_ge_u32 s66, 52")
            e("s_cbranch_scc1 L_P0A")
            e(f"s_waitcnt vmcnt({4 + (2 if PFU == 2 else 0)})")
            e("s_branch L_P0B")
            e("L_P0A:")
            e(f"s_waitcnt vmcnt({2 if PFU == 2 else 0})")
            e("L_P0B:")
            for q in range(8):
                e(f"v_lshlrev_b32 v{U+2*q}, 16, v{L0+q}")
                e(f"v_and_b32 v{U+2*q+1}, s69, v{L0+q}")
            for q in range(4): e(f"v_add_f32 v{A+q}, v{U+q}, v{U+4+q}")
            for t in range(2, 4):
                for q in range(4): e(f"v_add_f32 v{A+q}, v{A+q}, v{U+4*t+q}")
            e(f"v_add_f32 v{A}, v{A}, v{A+1}")
            e(f"v_add_f32 v{A+2}, v{A+2}, v{A+3}")
            e(f"v_add_f32 v{A}, v{A}, v{A+2}")
            reduce32(e, [A], [A + 1])
            e(f"v_mul_f32 v{A}, s70, v{A}")
            e(f"v_add_u32 v{A+6}, {EPC:#x}, v{VE}")
            e(f"v_mov_b32 v2, {L_MISC}")
            e("v_mov_b32 v3, 0")
            e(f"ds_write_b32 v2, v{A+6}")
            for o in (4, 8, 12, 16, 20, 24, 28): e(f"ds_write_b32 v2, v3 offset:{o}")
        if n == 1:
            for q in range(16): e(f"v_sub_f32 v{U+q}, v{U+q}, v{A}")
            for q in range(4): e(f"v_mul_f32 v{L0+q}, v{U+q}, v{U+q}")
            for q in range(4, 16): e(f"v_fmac_f32 v{L0+(q&3)}, v{U+q}, v{U+q}")
            e(f"v_add_f32 v{L0}, v{L0}, v{L0+1}")
            e(f"v_add_f32 v{L0+2}, v{L0+2}, v{L0+3}")
            e(f"v_add_f32 v{A+4}, v{L0}, v{L0+2}")
            reduce32(e, [A + 4], [A + 5])
            e(f"v_mov_b32 v{A+5}, 0x3727c5ac")
            e(f"v_fma_f32 v{A+4}, v{A+4}, s70, v{A+5}")
            e(f"v_rsq_f32 v{A+4}, v{A+4}")
            e(f"v_readfirstlane_b32 s61, v{A+6}")
            e(f"v_mov_b32 v{A+7}, v{A+6}")
            e(f"v_mul_f32 v{A+5}, v{A}, v{A+4}")
            e(f"v_sub_f32 v{A+5}, 0, v{A+5}")
            e("s_mov_b32 s71, 0xff")
            e(f"v_bfi_b32 v{A+4}, s71, v{A+6}, v{A+4}")
            e(f"v_bfi_b32 v{A+5}, s71, v{A+6}, v{A+5}")
            e("s_mov_b32 exec_lo, 1")
            e("s_mov_b32 exec_hi, 1")
            e(f"buffer_store_dwordx4 {vr(A+4,4)}, v{VE+1}, {SS}, s64 offen sc1")
            e("s_mov_b64 exec, -1")
        if n == 2:
            e(f"s_waitcnt vmcnt({1 + (2 if PFU == 2 else 0)})")
            for q in range(4):
                e(f"v_lshlrev_b32 v{C0+2*q}, 16, v{CL+q}")
                e(f"v_and_b32 v{C0+2*q+1}, s69, v{CL+q}")
            for t in range(1, 4):
                for q in range(4):
                    e(f"v_lshlrev_b32 v{C1+2*q}, 16, v{CL+4*t+q}")
                    e(f"v_and_b32 v{C1+2*q+1}, s69, v{CL+4*t+q}")
                for q in range(8): e(f"v_add_f32 v{C0+q}, v{C0+q}, v{C1+q}")
            e("s_nop 1")
            for q in range(8): e(f"v_add_f32_dpp v{C0+q}, v{C0+q}, v{C0+q} row_ror:8 row_mask:0xf bank_mask:0xf")
            e("s_mov_b32 s72, 0xff00ff00")
            e("s_mov_b32 s73, 0xff00ff00")
            for q in range(4): e(f"v_cndmask_b32 v{C0+q}, v{C0+q}, v{C0+4+q}, s[72:73]")
            for sw in ("v_permlane16_swap_b32", "v_permlane32_swap_b32"):
                for q in range(4): e(f"v_mov_b32 v{C1+q}, v{C0+q}")
                e("s_nop 0")
                for q in range(4): e(f"{sw} v{C0+q}, v{C1+q}")
                for q in range(4): e(f"v_add_f32 v{C0+q}, v{C0+q}, v{C1+q}")
            e("s_mov_b32 s71, 0xff")
            e(f"v_bfe_u32 v{C1+2}, v0, 3, 1")
            for q in range(4): e(f"v_bfi_b32 v{C0+q}, s71, v{A+6}, v{C0+q}")
            e(f"v_lshlrev_b32 v{C1+1}, 5, v5")
            e(f"v_lshl_add_u32 v{C1+1}, v{C1+2}, 4, v{C1+1}")
            e(f"s_mul_i32 s71, s20, {3328*4}")
            e("s_lshl_b32 s72, s66, 8")
            e("s_add_u32 s71, s71, s72")
            e(f"s_add_u32 s71, s71, {WS_CS:#x}")
            e("s_cmp_ge_u32 s66, 52")
            e("s_cbranch_scc1 L_P2S")
            e("s_mov_b64 exec, 0xffff")
            e(f"buffer_store_dwordx4 {vr(C0,4)}, v{C1+1}, {SS}, s71 offen sc1")
            e("s_mov_b64 exec, -1")
            e("L_P2S:")
    def kvsetup():
        e(f"""v_and_b32 v10, 3, v0
        v_min_u32 v10, 2, v10
        s_sub_u32 s76, s20, 2
        v_add_u32 v10, s76, v10
        v_max_i32 v10, 0, v10
        v_lshlrev_b32 v10, 11, v10
        v_bfe_u32 v11, v0, 2, 1
        v_lshl_add_u32 v10, v11, 10, v10
        s_lshr_b32 s76, s23, 1
        s_lshl_b32 s76, s76, 7
        s_add_u32 s76, s76, {WS_F1:#x}
        v_mov_b32 v11, s61
        v_lshlrev_b32 v1, 4, v0
        s_lshr_b32 s52, s19, 1
        s_lshl_b32 s53, s23, 1
        s_add_u32 s53, s53, s52
        s_lshl_b32 s53, s53, 6
        s_and_b32 s54, s19, 1
        s_mul_i32 s54, s54, 6
        s_lshl_b32 s55, s20, 2
        s_add_u32 s54, s54, s55
        s_mul_i32 s55, s19, 6144""")
    def kvdma(lo=0, hi=6):
        for t in range(lo, hi):
            e(f"s_add_u32 s68, s54, {t}")
            e("s_sub_i32 s68, s68, 8")
            e("s_max_i32 s68, s68, 0")
            e("s_add_u32 s68, s68, s53")
            e("s_lshl_b32 s68, s68, 10")
            e(f"s_add_u32 m0, s55, {L_K + t*1024}")
            e("s_add_u32 s69, s68, 0x200000")
            e(f"buffer_load_dwordx4 v1, {SS}, s68 offen sc1 lds")
            e(f"s_add_u32 m0, s55, {L_V + t*1024}")
            e("s_nop 0")
            e(f"buffer_load_dwordx4 v1, {SS}, s69 offen sc1 lds")
    G0 = 84
    def gather():
        e(f"s_mov_b32 s71, {WS_CS:#x}")
        for g in range(16):
            e(f"buffer_load_dwordx4 {vr(G0+4*g,4)}, v15, {SS}, s71 offen sc1")
            e(f"s_add_u32 s71, s71, {3328*4}")
        e("s_lshl_b32 s71, s20, 11")
        e(f"s_add_u32 s71, s71, {WS_RS:#x}")
        for h in range(2):
            e(f"buffer_load_dwordx4 {vr(G0+64+4*h,4)}, v14, {SS}, s71 offen offset:{h*1024} sc1")
    PK = opt.get("pk", [0, 0, 1]); GK = opt.get("gk", 4); CK = opt.get("ck", 6)
    for n_, kk_ in enumerate(PK):
        if kk_ < 0: piece(n_)
    for k in range(UL + 1, 16):
        if k == PK[0] + 2: e("s_waitcnt lgkmcnt(0)")
        bstamp(k)
        e("s_barrier")
        for n_, kk_ in enumerate(PK):
            if kk_ == k: piece(n_)
        KVK = opt.get("kvk", 13)
        if k == 8:
            kvsetup()
            e("s_mov_b32 s77, 0")
        KVE = opt.get("kve", 15)
        if k == KVK - 1: e(f"buffer_load_dword v4, v10, {SS}, s76 offen sc1")
        if opt.get("kvs", 0) and KVK <= k <= 15:
            sk, s2_ = lab("KVLATE"), lab("KVSKIP")
            n_ = k - KVK
            for j in range(1, n_ + 1):
                if 2 * j < 6:
                    nx = lab("KVN")
                    e(f"s_cmp_lg_u32 s77, {2*j}")
                    e(f"s_cbranch_scc1 {nx}")
                    kvdma(2 * j, 2 * j + 2)
                    e(f"s_mov_b32 s77, {2*j+2}")
                    e(f"s_branch {s2_}")
                    e(f"{nx}:")
            e("s_cmp_lg_u32 s77, 0")
            e(f"s_cbranch_scc1 {s2_}")
            e("s_waitcnt vmcnt(0)")
            e("v_cmp_ne_u32 vcc, v11, v4")
            e("s_nop 1")
            e("s_cmp_lg_u64 vcc, 0")
            e(f"s_cbranch_scc1 {sk}")
            kvdma(0, 2)
            e("s_mov_b32 s77, 2")
            e(f"s_branch {s2_}")
            e(f"{sk}:")
            if k < 15: e(f"buffer_load_dword v4, v10, {SS}, s76 offen sc1")
            e(f"{s2_}:")
        elif KVK <= k <= KVE:
            sk, s2_ = lab("KVLATE"), lab("KVSKIP")
            e("s_cmp_lg_u32 s77, 0")
            e(f"s_cbranch_scc1 {s2_}")
            e("s_waitcnt vmcnt(0)")
            e("v_cmp_ne_u32 vcc, v11, v4")
            e("s_nop 1")
            e("s_cmp_lg_u64 vcc, 0")
            e(f"s_cbranch_scc1 {sk}")
            kvdma()
            e("s_mov_b32 s77, 6")
            e(f"s_branch {s2_}")
            e(f"{sk}:")
            if k < KVE: e(f"buffer_load_dword v4, v10, {SS}, s76 offen sc1")
            e(f"{s2_}:")
        PW0 = opt.get("pfw", 0)
        if PW0 and PW0 <= k < 16:
            if k == PW0:
                srd(e, 44, 14, 1792 * 1024)
                srd(e, 48, 8, 512 * 1024)
                e("s_lshr_b32 s78, s2, 3")
                e("s_mul_i32 s79, s78, 57344")
                e("s_mul_i32 s3, s19, 14336")
                e("s_add_u32 s79, s79, s3")
                e("s_lshl_b32 s78, s78, 14")
                e("s_lshl_b32 s3, s19, 12")
                e("s_add_u32 s78, s78, s3")
            per = -(-18 // (opt.get("pfwe", 16) - PW0))
            for j in range(per * (k - PW0), min(18, per * (k - PW0 + 1))):
                if j < 14:
                    e(f"s_add_u32 s3, s79, {j*1024}")
                    e(f"buffer_load_dwordx4 v[120:123], v14, {S2}, s3 offen")
                else:
                    e(f"buffer_load_dwordx4 v[120:123], v14, {SO}, s78 offen offset:{(j-14)*1024}")
        if opt.get("pfl2", 0) and 8 <= k <= 10:
            if k == 8:
                srd(e, 44, 14, 1792 * 1024)
                srd(e, 48, 8, 512 * 1024)
                e("v_lshlrev_b32 v12, 7, v0")
                e("s_lshr_b32 s78, s2, 3")
            j = k - 8
            sk = lab("NOP2")
            if j < 2:
                e("s_mul_i32 s71, s78, 57344")
                e("s_lshl_b32 s72, s19, 13")
                e("s_add_u32 s71, s71, s72")
                if j == 1:
                    e("s_cmp_eq_u32 s19, 3")
                    e(f"s_cbranch_scc1 {sk}")
                    e("s_add_u32 s71, s71, 32768")
                e(f"buffer_load_dword v13, v12, {S2}, s71 offen")
            else:
                e("s_cmp_ge_u32 s19, 2")
                e(f"s_cbranch_scc1 {sk}")
                e("s_lshl_b32 s71, s78, 14")
                e("s_lshl_b32 s72, s19, 13")
                e("s_add_u32 s71, s71, s72")
                e(f"buffer_load_dword v13, v12, {SO}, s71 offen")
            e(f"{sk}:")
        if UST and k == 8:
            e(f"""s_lshl_b32 s3, s19, 12
            v_add_u32 v2, s3, v14
            v_add_u32 v3, {W1A[7]}, v2
            v_add_u32 v2, {W1A[6]}, v2""")
            for s_ in range(8): e(f"ds_read_b128 {vr(16+4*s_,4)}, v{2+(s_>>2)} offset:{(s_&3)*1024}")
            e(f"""s_lshl_b32 s64, s20, 2
            s_add_u32 s64, s64, s19
            s_lshl_b32 s65, s23, 8
            s_add_u32 s65, s65, s64
            s_lshl_b32 s65, s65, 10
            s_mul_i32 s66, s64, 112
            s_lshl_b32 s3, s23, 2
            s_add_u32 s66, s66, s3
            s_lshl_b32 s66, s66, 10
            s_add_u32 s66, s66, {WS_H:#x}
            s_waitcnt lgkmcnt(0)""")
        if UST and k >= 8:
            SP = opt.get("sper", 2)
            for s_ in range(SP * (k - 8), min(8, SP * (k - 7))):
                if s_ < 4: e(f"s_add_u32 s3, s65, {WS_KV + s_*0x10000:#x}")
                else: e(f"s_add_u32 s3, s66, {(s_-4)*1024}")
                e(f"buffer_store_dwordx4 {vr(16+4*s_,4)}, v14, {SS}, s3 offen sc1")
            if k == opt.get("ugk", 12): signal(4, 3, WS_F1, 2, 3, max(0, min(8, SP * (k - 7)) - 4))
            if k == opt.get("ugh", 15): signal(24, 3, WS_F1H, 2, 3)
        if k == opt.get("pf2k", 5) and opt.get("pf2", 1):
            sk = lab("NOPF")
            e("s_cmp_lg_u32 s19, 1")
            e(f"s_cbranch_scc1 {sk}")
            srd(e, 44, 14, 1792 * 1024)
            srd(e, 48, 8, 512 * 1024)
            e("v_lshlrev_b32 v2, 7, v0")
            e("s_mul_i32 s71, s2, 7168")
            e("s_mov_b32 exec_hi, 0xffffff")
            e(f"buffer_load_dword v160, v2, {S2}, s71 offen")
            e("s_lshl_b32 s71, s2, 11")
            e("s_mov_b64 exec, 0xffff")
            e(f"buffer_load_dword v161, v2, {SO}, s71 offen")
            e("s_mov_b64 exec, -1")
            e(f"{sk}:")
        if k in (GK, CK, CK + 1):
            sk = lab("NOPOST")
            e("s_cmp_lg_u32 s19, 0")
            e(f"s_cbranch_scc1 {sk}")
            if k == GK: gather()
            if k == CK:
                e("s_mov_b32 s73, 0x20000")
                e("L_CHK:")
                e("s_waitcnt vmcnt(0)")
                e(f"v_xor_b32 v2, s61, v{G0}")
                for i in list(range(G0 + 1, G0 + 66)) + [G0 + 68, G0 + 69]: e(f"v_bitop3_b32 v2, v2, v{i}, s61 bitop3:0xf6")
                e("v_and_b32 v2, 0xff, v2")
                for i in (66, 67, 70, 71): e(f"v_bitop3_b32 v2, v2, v{G0+i}, s61 bitop3:0xf6")
                e("v_cmp_ne_u32 vcc, 0, v2")
                e("s_sub_u32 s73, s73, 1")
                e("s_cmp_eq_u32 s73, 0")
                e("s_cbranch_scc1 L_GOT")
                e("s_cmp_eq_u64 vcc, 0")
                e("s_cbranch_scc1 L_GOT")
                gather()
                e("s_branch L_CHK")
                e("L_GOT:")
            if k == CK + 1:
                e("s_mov_b32 s71, 0xffffff00")
                for i in list(range(G0, G0 + 66)) + [G0 + 68, G0 + 69]: e(f"v_and_b32 v{i}, s71, v{i}")
                for g in range(1, 16):
                    for h in range(4): e(f"v_add_f32 v{G0+h}, v{G0+h}, v{G0+4*g+h}")
                e(f"v_add_u32 v2, {L_ST}, v14")
                e(f"ds_write_b128 v2, {vr(G0+64,4)}")
                e(f"ds_write_b128 v2, {vr(G0+68,4)} offset:1024")
                e(f"ds_write_b128 v2, {vr(G0,4)} offset:2048")
                e("s_waitcnt lgkmcnt(0)")
                ldsadd(20, 2, 3)
            e(f"{sk}:")
    bflush()
    stamp(3)
    e("s_barrier")
    stamp(4)
    e("s_cmp_eq_u32 s77, 6")
    e("s_cbranch_scc1 L_KVDONE")
    e("s_cmp_eq_u32 s77, 4")
    e("s_cbranch_scc1 L_KV4")
    e("s_cmp_eq_u32 s77, 2")
    e("s_cbranch_scc1 L_KV2")
    poll(10, "s76", 11, 4)
    kvdma(0, 2)
    e("L_KV2:")
    kvdma(2, 4)
    e("L_KV4:")
    kvdma(4, 6)
    e("L_KVDONE:")
    e(f"v_add_u32 v2, {L_ONE}, v1")
    for q in range(4): e(f"v_mov_b32 v{8+q}, 0x3f803f80")
    e("ds_write_b128 v2, v[8:11]")
    smasks()
    e("v_mov_b32 v6, 0xffff")
    e("v_mov_b32 v7, 0xffff0000")
    for q in range(8):
        e(f"v_cndmask_b32 v{140+q}, 0, v6, s[{64+4*q}:{65+4*q}]")
        e(f"v_cndmask_b32 v12, 0, v7, s[{66+4*q}:{67+4*q}]")
        e(f"v_or_b32 v{140+q}, v{140+q}, v12")
    e("ds_write_b128 v2, v[140:143] offset:1024")
    e("ds_write_b128 v2, v[144:147] offset:2048")
    e("s_add_u32 s96, s19, 4")
    e("s_mov_b32 s97, 0")
    e("s_waitcnt vmcnt(0) lgkmcnt(0)")
    ldsadd(16, 2, 3)
    stamp(5)

    e("L_ATT:")
    e.vm = []; e.lg = []
    Q = 8
    K = lambda u: 12 + 4 * u
    V = lambda u, g: 48 + ((u & 1) * 2 + g) * 4
    S = lambda b: 64 + 16 * b
    P, O = 112, 120
    VNEG, M0_, M1_, NM, MK = 136, 137, 138, 139, 140
    VA, VSTR = 148, 149
    e(f"v_mov_b32 v{VNEG}, {NEG:#x}")
    e(f"""s_and_b32 s3, s96, 3
    s_lshl_b32 s26, s20, 2
    s_add_u32 s26, s26, s3
    s_add_u32 s25, s26, 1
    s_min_u32 s25, s25, 9
    s_lshr_b32 s62, s96, 2
    s_lshl_b32 s27, s23, 1
    s_add_u32 s27, s27, s62
    v_lshlrev_b32 v1, 4, v0
    s_lshl_b32 s63, s96, 10
    s_add_u32 s63, s63, {L_Q}
    v_add_u32 v3, s63, v1
    s_mul_i32 s62, s62, 12288
    s_lshl_b32 s3, s3, 10
    s_add_u32 s3, s3, s62
    s_add_u32 s62, s3, {L_K}
    v_add_u32 v4, s62, v1
    v_lshrrev_b32 v5, 5, v0
    v_lshlrev_b32 v5, 2, v5
    v_bfe_u32 v6, v0, 2, 2
    v_add_u32 v5, v5, v6
    v_lshlrev_b32 v5, 4, v5
    v_bfe_u32 v6, v0, 1, 1
    v_lshl_add_u32 v5, v6, 9, v5
    v_and_b32 v6, 1, v0
    v_lshl_add_u32 v5, v6, 3, v5
    s_add_u32 s3, s3, {L_V + 8192}
    v_add_u32 v5, s3, v5
    v_mov_b32 v6, {L_ONE}
    v_mov_b32 v7, 1024
    s_mov_b32 s98, 0xffff
    s_mov_b32 s99, 0xffff
    v_cndmask_b32 v5, v6, v5, s[98:99]
    v_cndmask_b32 v{VSTR}, 0, v7, s[98:99]
    v_lshlrev_b32 v7, 3, v{VSTR}
    v_sub_u32 v{VA+2}, v5, v7""")
    stamp(6)
    def owed():
        sk = lab("NOOWE")
        e("s_cmp_eq_u32 s97, 0")
        e(f"s_cbranch_scc1 {sk}")
        keepl = list(e.lg)
        signal(12, 3, WS_F1B, 152, 153)
        e.lg = keepl
        e("s_mov_b32 s97, 0")
        e(f"{sk}:")
    if opt.get("owu", 1) == 0: owed()
    ldswait(16, 8, 2, 6)
    e(f"s_setprio {opt.get('aprio', 0)}")
    stamp(7)
    def fill(buf, val, diag):
        for j in range(16):
            a, b = (f"v{VNEG}", val) if diag else (val, f"v{VNEG}")
            e(f"v_cndmask_b32 v{S(buf)+j}, {a}, {b}, s[{64+2*j}:{65+2*j}]")
    def smfma(u, buf, cin):
        e.lwait(("K", u))
        e(f"v_mfma_f32_32x32x16_bf16 {vr(S(buf),16)}, {vr(K(u),4)}, {vr(Q,4)}, {cin}")
    def vread(u, par=None, va=None):
        if va is None:
            if u == 0: e(f"v_mov_b32 v{VA}, v5")
            else: e(f"v_sub_u32 v{VA}, v{VA}, v{VSTR}")
            va = VA
        for g in range(2):
            r = V(u if par is None else par, g)
            for h in range(2): e.lds(f"ds_read_b64_tr_b16 v[{r+2*h}:{r+2*h+1}], v{va} offset:{g*256 + h*128}", ("V", u))
    PD, PFR = S(2), S(2) + 8
    if opt.get("noatt"): e("s_branch L_P2DONE")
    e(f"v_add_u32 v2, {L_ONE}, v1")
    e.lds(f"ds_read_b128 {vr(Q,4)}, v3", "Q")
    for u in [0, 8, 1]: e.lds(f"ds_read_b128 {vr(K(u),4)}, v4 offset:{(8-u)*1024}", ("K", u))
    vread(0); vread(8, 1, VA + 2)
    smfma(0, 0, "0"); smfma(8, 2, "0"); smfma(1, 1, "0")
    e.lwait(("V", 0))
    e.lds(f"ds_read_b128 {vr(MK,4)}, v2 offset:1024", "MK")
    e.lds(f"ds_read_b128 {vr(MK+4,4)}, v2 offset:2048", "MK")
    for u in range(2, 8): e.lds(f"ds_read_b128 {vr(K(u),4)}, v4 offset:{(8-u)*1024}", ("K", u))
    e("s_nop 2")
    s0 = S(0)
    for j in range(16): e(f"v_cndmask_b32 v{s0+j}, v{S(2)+j}, v{s0+j}, s[{64+2*j}:{65+2*j}]")
    for j in range(16): e(f"v_exp_f32 v{s0+j}, v{s0+j}")
    for q in range(8): e(f"v_cvt_pk_bf16_f32 v{P+q}, v{s0+2*q}, v{s0+2*q+1}")
    e.lwait("MK")
    for q in range(8): e(f"v_and_b32 v{PD+q}, v{MK+q}, v{P+q}")
    e.lwait(("V", 8))
    e(f"v_mfma_f32_32x32x16_bf16 {vr(O,16)}, {vr(V(0,0),4)}, {vr(PD,4)}, 0")
    for q in range(8): e(f"v_bfi_b32 v{PFR+q}, v{MK+q}, 0, v{P+q}")
    e(f"v_mfma_f32_32x32x16_bf16 {vr(O,16)}, {vr(V(0,1),4)}, {vr(PD+4,4)}, {vr(O,16)}")
    e("s_cmp_lt_u32 s25, 9")
    e("s_cbranch_scc1 L_NOFAR")
    e(f"v_mfma_f32_32x32x16_bf16 {vr(O,16)}, {vr(V(1,0),4)}, {vr(PFR,4)}, {vr(O,16)}")
    e(f"v_mfma_f32_32x32x16_bf16 {vr(O,16)}, {vr(V(1,1),4)}, {vr(PFR+4,4)}, {vr(O,16)}")
    e("L_NOFAR:")
    vread(1)
    e("s_cmp_eq_u32 s25, 1")
    e("s_cbranch_scc1 L_FCHK")
    def pv(u, g): e(f"v_mfma_f32_32x32x16_bf16 {vr(O,16)}, {vr(V(u,g),4)}, {vr(P+4*g,4)}, {vr(O,16)}")
    for u in range(1, 8):
        s_ = S(u % 2)
        if u + 1 <= 7: smfma(u + 1, (u + 1) % 2, "0")
        for j in range(2): e(f"v_exp_f32 v{s_+j}, v{s_+j}")
        if u > 1: pv(u - 1, 1)
        if u + 1 <= 7: vread(u + 1)
        for j in range(2, 8): e(f"v_exp_f32 v{s_+j}, v{s_+j}")
        for q in range(4): e(f"v_cvt_pk_bf16_f32 v{P+q}, v{s_+2*q}, v{s_+2*q+1}")
        for j in range(8, 10): e(f"v_exp_f32 v{s_+j}, v{s_+j}")
        e.lwait(("V", u))
        pv(u, 0)
        for j in range(10, 16): e(f"v_exp_f32 v{s_+j}, v{s_+j}")
        for q in range(4, 8): e(f"v_cvt_pk_bf16_f32 v{P+q}, v{s_+2*q}, v{s_+2*q+1}")
        if u == opt.get("owu", 1): owed()
        if u < 7:
            e(f"s_cmp_eq_u32 s25, {u+1}")
            e(f"s_cbranch_scc1 L_FX{u&1}")
    e("L_FX1:")
    e("s_nop 1")
    pv(1, 1)
    e("s_branch L_FCHK")
    e("L_FX0:")
    e("s_nop 1")
    pv(0, 1)
    e("L_FCHK:")
    if opt.get("owu", 1): owed()
    e("s_mov_b32 s52, 0x1f800000")
    e("s_mov_b32 s53, 0x5f800000")
    e("s_mov_b32 s3, 0x7f800000")
    e("s_waitcnt lgkmcnt(0)")
    e("s_nop 7")
    e(f"v_add_f32 v6, |v{O}|, |v{O+1}|")
    e(f"v_add_f32 v7, |v{O+2}|, |v{O+3}|")
    e(f"v_add_f32 v2, |v{O+4}|, |v{O+5}|")
    e(f"v_add_f32 v3, |v{O+6}|, |v{O+7}|")
    e(f"v_cmp_le_f32 s[62:63], s52, v{O+8}")
    e(f"v_cmp_ge_f32 s[98:99], s53, v{O+8}")
    e("v_add_f32 v6, v6, v7")
    e("v_add_f32 v2, v2, v3")
    e("v_add_f32 v6, v6, v2")
    e("s_and_b64 s[62:63], s[62:63], s[98:99]")
    e("v_cmp_gt_f32 vcc, s3, v6")
    e("s_nop 0")
    e("s_and_b64 s[62:63], s[62:63], vcc")
    e("s_cmp_eq_u64 s[62:63], -1")
    if opt.get("forceslow"): e("s_cmp_eq_u32 s62, 12345")
    e("s_cbranch_scc1 L_P2DONE")
    e.lg = []
    e(f"v_mov_b32 v{M0_}, v{VNEG}")
    e(f"v_mov_b32 v{M1_}, v{VNEG}")
    fill(0, "0", True)
    e("s_nop 1")
    smfma(0, 0, vr(S(0), 16))
    smfma(1, 1, "0")
    for u in range(9):
        if u + 2 <= 8:
            if u + 2 == 8:
                fill((u + 2) % 3, "0", False); e("s_nop 1")
                smfma(u + 2, (u + 2) % 3, vr(S((u + 2) % 3), 16))
            else:
                smfma(u + 2, (u + 2) % 3, "0")
        if u == 0: e("s_nop 9")
        for q in range(8):
            m = M0_ + (q & 1)
            e(f"v_max3_f32 v{m}, v{S(u%3)+2*q}, v{S(u%3)+2*q+1}, v{m}")
        if u < 8:
            e(f"s_cmp_eq_u32 s25, {u+1}")
            e("s_cbranch_scc1 L_P1DONE")
    e("L_P1DONE:")
    vread(0)
    e(f"v_max_f32 v{M0_}, v{M0_}, v{M1_}")
    e(f"v_mov_b32 v{M1_}, v{M0_}")
    e("s_nop 1")
    e(f"v_permlane32_swap_b32 v{M0_}, v{M1_}")
    e("s_nop 1")
    e(f"v_max_f32 v{M0_}, v{M0_}, v{M1_}")
    e(f"v_sub_f32 v{NM}, 0, v{M0_}")
    e("s_nop 3")
    CB = S(2)
    for j in range(16): e(f"v_mov_b32 v{CB+j}, v{NM}")
    fill(0, f"v{NM}", True)
    e("s_nop 1")
    smfma(0, 0, vr(S(0), 16))
    for u in range(9):
        s = S(u % 2)
        if u + 1 <= 8:
            nb_ = (u + 1) % 2
            if u + 1 == 8:
                fill(nb_, f"v{NM}", False); e("s_nop 1")
                smfma(u + 1, nb_, vr(S(nb_), 16))
            else:
                smfma(u + 1, nb_, vr(CB, 16))
            vread(u + 1)
        if u == 0: e("s_nop 6")
        for j in range(8): e(f"v_exp_f32 v{s+j}, v{s+j}")
        for q in range(4): e(f"v_cvt_pk_bf16_f32 v{P+q}, v{s+2*q}, v{s+2*q+1}")
        for j in range(8, 16): e(f"v_exp_f32 v{s+j}, v{s+j}")
        e.lwait(("V", u))
        e(f"v_mfma_f32_32x32x16_bf16 {vr(O,16)}, {vr(V(u,0),4)}, {vr(P,4)}, {'0' if u == 0 else vr(O,16)}")
        for q in range(4, 8): e(f"v_cvt_pk_bf16_f32 v{P+q}, v{s+2*q}, v{s+2*q+1}")
        e("s_nop 1")
        e(f"v_mfma_f32_32x32x16_bf16 {vr(O,16)}, {vr(V(u,1),4)}, {vr(P+4,4)}, {vr(O,16)}")
        if u < 8:
            e(f"s_cmp_eq_u32 s25, {u+1}")
            e("s_cbranch_scc1 L_P2X")
    e("L_P2X:")
    e("s_waitcnt lgkmcnt(0)")
    e("s_nop 12")
    e("L_P2DONE:")
    e("s_lshl_b32 s3, s26, 5")
    e("s_add_u32 s3, s3, s27")
    e("s_lshl_b32 s3, s3, 10")
    e(f"s_add_u32 s3, s3, {WS_O:#x}")
    e(f"v_rcp_f32 v7, v{O+8}")
    e("s_nop 0")
    for j in range(8): e(f"v_mul_f32 v{O+j}, v{O+j}, v7")
    for q in range(4): e(f"v_cvt_pk_bf16_f32 v{P+q}, v{O+2*q}, v{O+2*q+1}")
    e(f"buffer_store_dwordx4 {vr(P,4)}, v1, {SS}, s3 offen {'' if opt.get('hplain') else 'sc1'}")
    gate('att')
    stamp(8)
    signal(8, 7, WS_F2)
    stamp(9)
    e("s_cmp_lg_u32 s2, 0")
    e("s_cbranch_scc1 L_FIN")
    e("s_cmp_lg_u32 s96, 1")
    e("s_cbranch_scc1 L_FIN")
    e("v_lshlrev_b32 v6, 7, v0")
    e("s_mov_b32 s63, 0x20000")
    e("L_BCHK:")
    for g in range(4):
        e(f"s_mov_b32 s62, {WS_F2 + g*8192:#x}")
        e(f"buffer_load_dword v{8+g}, v6, {SS}, s62 offen sc1")
    e("s_waitcnt vmcnt(0)")
    e("v_xor_b32 v7, s61, v8")
    for i in range(9, 12): e(f"v_bitop3_b32 v7, v7, v{i}, s61 bitop3:0xf6")
    e("v_cmp_ne_u32 vcc, 0, v7")
    e("s_sub_u32 s63, s63, 1")
    e("s_cmp_eq_u32 s63, 0")
    e("s_cbranch_scc1 L_FIN")
    e("s_cmp_lg_u64 vcc, 0")
    e("s_cbranch_scc1 L_BCHK")
    e("s_mov_b64 exec, 1")
    e("v_mov_b32 v6, 0")
    e("v_mov_b32 v7, s61")
    e(f"s_mov_b32 s62, {WS_EP:#x}")
    e(f"buffer_store_dword v7, v6, {SS}, s62 offen sc1")
    e("s_mov_b64 exec, -1")
    e("L_FIN:")
    e.vm = []; e.lg = []
    srd(e, 28, 10, 2048 * 1024)
    e(f"""v_lshrrev_b32 v7, 3, v0
    v_and_b32 v14, 7, v0
    v_lshlrev_b32 v8, 4, v14
    v_lshl_add_u32 v2, v7, 10, v8
    s_lshl_b32 s62, s58, 16
    s_lshl_b32 s3, s96, 13
    s_add_u32 s62, s62, s3
    s_lshl_b32 s3, s59, 7
    s_add_u32 s62, s62, s3""")
    e(f"buffer_load_dwordx4 v[8:11], v2, {SX}, s62 offen")
    e(f"""s_and_b32 s3, s96, 3
    s_lshl_b32 s3, s3, 10
    s_cmp_ge_u32 s96, 4
    s_mov_b32 s63, {BREG[0]}
    s_cselect_b32 s63, {BREG[2]}, s63
    s_mov_b32 s64, {BREG[1]}
    s_cselect_b32 s64, {BREG[3]}, s64
    s_add_u32 s63, s63, s3
    s_add_u32 s64, s64, s3
    v_and_b32 v12, 3, v0
    v_lshlrev_b32 v12, 1, v12
    v_xor_b32 v12, v12, v7
    v_bfe_u32 v13, v0, 2, 1
    v_xor_b32 v12, v12, v13
    v_lshlrev_b32 v12, 4, v12
    v_lshl_add_u32 v12, v7, 7, v12
    v_mov_b32 v15, s63
    v_mov_b32 v16, s64
    v_cmp_eq_u32 vcc, 1, v13
    s_nop 1
    v_cndmask_b32 v15, v15, v16, vcc
    v_add_u32 v24, v15, v12
    v_xor_b32 v25, 16, v24""")
    stamp(10)
    e("s_barrier")
    stamp(11)
    R = lambda src, h: 48 + src * 8 + h * 4
    for src in range(4):
        for h in range(2): e.lds(f"ds_read_b128 {vr(R(src,h),4)}, v{24+h} offset:{src*4096}", src)
    e("s_mov_b32 s3, 0xffff0000")
    e("s_waitcnt vmcnt(0)")
    for q in range(4):
        e(f"v_lshlrev_b32 v{32+2*q}, 16, v{8+q}")
        e(f"v_and_b32 v{33+2*q}, s3, v{8+q}")
    for src in range(4):
        e.lwait(src)
        for q in range(4): e(f"v_pk_add_f32 {pk(32+2*q)}, {pk(32+2*q)}, {pk(R(src,0)+2*q)}")
    for q in range(4): e(f"v_cvt_pk_bf16_f32 v{40+q}, v{32+2*q}, v{33+2*q}")
    e("buffer_store_dwordx4 v[40:43], v2, s[28:31], s62 offen " + opt.get("ost", "nt"))
    if opt.get("deadline"):
        e("v_readlane_b32 s4, v167, 0")
        e("L_DLY:")
        e("s_memrealtime s[6:7]")
        e("s_waitcnt lgkmcnt(0)")
        e("s_sub_u32 s8, s6, s4")
        e(f"s_cmp_lt_u32 s8, {opt['deadline']}")
        e("s_cbranch_scc1 L_DLY")
    if opt.get("delay"):
        tm = "s_memrealtime" if opt.get("delayrt") else "s_memtime"
        e(f"{tm} s[4:5]")
        e("s_waitcnt lgkmcnt(0)")
        e("L_DLY:")
        e(f"{tm} s[6:7]")
        e("s_waitcnt lgkmcnt(0)")
        e("s_sub_u32 s8, s6, s4")
        e(f"s_cmp_lt_u32 s8, {opt['delay']}")
        e("s_cbranch_scc1 L_DLY")
    if ST:
        e("L_DUMP:")
        stamp(12)
        e("s_waitcnt vmcnt(0)")
        stamp(13); stamp(14, True)
        if opt.get("dbgst") is not None:
            e("s_load_dwordx2 s[4:5], s[0:1], 56")
            e(f"s_cmp_lg_u32 s2, {opt['dbgst']}")
            e("s_cbranch_scc1 L_END")
            e("s_cmp_lg_u32 s18, 4")
            e("s_cbranch_scc1 L_END")
            e(f"v_readlane_b32 s6, v{VST}, 1")
            e(f"v_readlane_b32 s7, v{VST}, 0")
            e("s_waitcnt lgkmcnt(0)")
            e(f"v_subrev_u32 v3, s6, v{VST}")
            e(f"v_subrev_u32 v4, s7, v{VST}")
            e("v_cmp_eq_u32 vcc, 14, v0")
            e("s_nop 1")
            e("v_cndmask_b32 v3, v3, v4, vcc")
            e("v_lshlrev_b32 v2, 2, v0")
            e("s_mov_b64 exec, 0xffff")
            e("global_store_dword v2, v3, s[4:5]")
            e("s_endpgm")
        e("s_mul_i32 s3, s2, 12")
        e("s_add_u32 s3, s3, s18")
        e("s_lshl_b32 s3, s3, 7")
        e("s_add_u32 s3, s3, 0x1000000")
        e("v_lshl_add_u32 v2, v0, 2, s3")
        e("s_mov_b64 exec, 0xffffffff")
        e(f"global_store_dword v2, v{VST}, s[16:17]")
    e("L_END:")
    e("s_endpgm")
    return name, e.text(), kd(name, 168), (256, 768, LDS)

def build(opt, path):
    n, t, k, (g, b, lds) = gen(opt)
    ref = open(f"cdna_kernels/{NAME}.s.ref").read().split("\n")
    head = [l for l in ref if l.startswith(";") and "@launch" not in l and "Override launch" not in l and "grid=ceil" not in l]
    s = "\n".join(head[:10]) + "\n"
    dm = opt.get("dummy")
    if dm:
        ll = [f"; @launch kernel=dum_kernel grid=({dm[0]},1,1) block=({dm[1]},1,1) lds={dm[2]}\n", f"; @launch kernel={n} grid=({g},1,1) block=({b},1,1) lds={lds}\n"]
        s += "".join(ll if dm[4] == 0 else ll[::-1])
    else: s += f"; @launch grid=({g},1,1) block=({b},1,1) lds={lds}\n"
    s += '.amdgcn_target "amdgcn-amd-amdhsa--gfx950"\n.text\n'
    if dm:
        s += """.globl dum_kernel
.p2align 8
.type dum_kernel,@function
dum_kernel:
  s_memrealtime s[4:5]
  s_waitcnt lgkmcnt(0)
L_DD:
  s_memrealtime s[6:7]
  s_waitcnt lgkmcnt(0)
  s_sub_u32 s8, s6, s4
  s_cmp_lt_u32 s8, 1000
  s_cbranch_scc1 L_DD
  s_endpgm
"""
        k = k + ".p2align 6\n" + kd("dum_kernel", dm[3])
    s += f".globl {n}\n.p2align 8\n.type {n},@function\n" + t
    s += '.section .rodata,"a"\n.p2align 6\n' + k
    open(path, "w").write(s)

if __name__ == "__main__":
    import sys, json
    opt = json.loads(sys.argv[2]) if len(sys.argv) > 2 else {}
    build(opt, sys.argv[1])
```

```python
class Alloc:
    def __init__(self, size):
        self.n = size // 1024
        self.items = []
    def fits(self, lo, n, t0, t1):
        if lo + n > self.n: return False
        for (a, b, s0, s1, _) in self.items:
            if a < lo + n and lo < b and s0 < t1 and t0 < s1: return False
        return True
    def place(self, name, kb, t0, t1, top=False):
        rng = range(self.n - kb, -1, -1) if top else range(0, self.n - kb + 1)
        for lo in rng:
            if self.fits(lo, kb, t0, t1):
                self.items.append((lo, lo + kb, t0, t1, name)); return lo * 1024
        return None
    def earliest(self, name, kb, tmin, t1, tmax, top=False):
        for t in range(tmin, tmax + 1):
            a = self.place(name, kb, t, t1, top)
            if a is not None: return t, a
        raise RuntimeError("no space for " + name)

def plan(WL=3, XL=2, W2T=12, W2L=4):
    A = Alloc(158720)
    X = {}; W1 = {}; W2 = {}
    x_t0 = lambda P: -1 if P < XL else 2 * (P - XL)
    todo = []
    for P in range(3, 8): todo.append((min(16 + (2 * P + 1 - 6) // 2 + 2, 24), "X", P))
    for c in range(8): todo.append((min(16 + c + 2, 24), "W2", c))
    for t1, kind, i in sorted(todo, reverse=True):
        if kind == "X": X[i] = A.place(f"X{i}", 16, x_t0(i), t1, top=True)
    for P in range(3): X[P] = A.place(f"X{P}", 16, x_t0(P), 2 * P + 2, top=True)
    for p in range(15, -1, -1): W1[p] = A.place(f"W1_{p}", 8, max(-1, p - WL), p + 2, top=True)
    for t1, kind, i in sorted(todo):
        if kind == "W2": W2[i] = A.earliest(f"W2_{i}", 12, max(W2T, 16 + i - W2L), t1, 16 + i - 1, top=True)
    assert None not in X.values() and None not in W1.values()
    free = lambda lo, kb: max([13] + [s1 for (a, b, s0, s1, _) in A.items if a < lo + kb and lo < b])
    regs = sorted((free(16 * i, 16), 16 * i * 1024) for i in range(9))
    fin = {f"B{j}": regs[j] for j in range(7)}
    fin["V"], fin["K"] = regs[7], regs[8]
    fin["Q"] = (free(144, 8), 144 * 1024)
    return X, W1, W2, fin
if __name__ == "__main__":
    for l in (2, 3, 4):
        for r in plan(W2L=l)[2:]: print(r)

def plan3(L=2, W2L=2, NB=6, stage=False):
    busy = [[] for _ in range(10)]
    def put(t0, t1, pref):
        for s_ in pref:
            if all(t1 <= a or b <= t0 for a, b in busy[s_]):
                busy[s_].append((t0, t1)); return s_ * 16384
        return None
    X = {}; W1 = {}; W2 = {}
    t0 = lambda c: max(-1, c - L)
    hi = list(range(8, -1, -1)); lo = list(range(9))
    for P in range(7, 2, -1): X[P] = put(t0(P), min(8 + (P - 3) + 2, 16), hi)
    items = sorted([(t0(P), P + 2, "X", P) for P in range(3)] + [(t0(c), c + 2, "W", c) for c in range(8)])
    def dfs(n):
        if n == len(items): return True
        a, b, k, i = items[n]
        for s_ in hi:
            if put(a, b, [s_]) is not None:
                (X if k == "X" else W1)[i] = s_ * 16384
                if dfs(n + 1): return True
                busy[s_].remove((a, b))
        return False
    assert dfs(0)
    assert None not in X.values() and None not in W1.values(), (X, W1)
    if stage:
        for c in (6, 7):
            s_ = W1[c] // 16384
            busy[s_].remove((t0(c), c + 2)); busy[s_].append((t0(c), 9))
    for c in range(8):
        for t in range(max(4, 8 + c - W2L - (1 if c < 3 else 0)), 8 + c):
            r = put(t, min(8 + c + 2, 16), [9] + hi)
            if r is not None:
                W2[c] = (t, r); break
    assert len(W2) == 8
    free = lambda s_: max([6] + [b for a, b in busy[s_]])
    regs = sorted((free(i), i * 16384) for i in range(NB))
    fin = {f"B{j}": regs[j] for j in range(NB)}
    o = 16 * NB
    fin["K"], fin["V"], fin["Q"], fin["ONES"] = o * 1024, (o + 24) * 1024, (o + 48) * 1024, (o + 56) * 1024
    assert (o + 57) * 1024 <= 158720
    return X, W1, W2, fin


def plan4(L=2, NB=6, W2T=5, kvlow=False):
    X, W1, _, fin = plan3(L, 2, NB)
    A = Alloc(158720)
    t0 = lambda c: max(-1, c - L)
    for P, a in X.items(): A.items.append((a // 1024, a // 1024 + 16, t0(P), P + 2 if P < 3 else min(8 + (P - 3) + 2, 16), f"X{P}"))
    for c, a in W1.items(): A.items.append((a // 1024, a // 1024 + 16, t0(c), min(c + 2, 7.5), f"W{c}"))
    W2 = {}
    if kvlow: A.items.append((64, 112, 9, 99, "KVhold"))
    times = [W2T + i for i in range(8 - W2T)] + [7.5] + list(range(8, 16))
    ti = 0
    for c in range(8):
        while True:
            t = times[ti]
            r = None
            for lo in range(A.n - 11, -1, -1):
                if (c < 6 or lo % 16 <= 5) and A.fits(lo, 11, t, min(8 + c + 2, 16)):
                    A.items.append((lo, lo + 11, t, min(8 + c + 2, 16), f"W2_{c}")); r = lo * 1024; break
            if r is not None:
                W2[c] = (t, r)
                if t != 7.5: ti += 1
                break
            ti += 1
        assert W2[c][0] < 8 + c
    free = lambda lo, kb: max([6] + [s1 for (a, b, s0, s1, _) in A.items if a < lo + kb and lo < b])
    slots = [0, 1, 2, 3, 7, 8] if kvlow else list(range(NB))
    regs = sorted((int(free(16 * i, 16) + 0.5), i * 16384) for i in slots)
    for j in range(NB): fin[f"B{j}"] = regs[j]
    if kvlow: fin["K"], fin["V"] = 65536, 90112
    def stage_of(nm):
        if nm.startswith("W2_"): return 8 + int(nm[3:])
        if nm.startswith("X") and int(nm[1:]) >= 3: return 8 + int(nm[1:]) - 3
        return -1
    def pre(lo, kb, before=99):
        return max([-1] + [stage_of(nm) for (a, b, s0, s1, nm) in A.items if a < lo + kb and lo < b and nm != "KVhold" and stage_of(nm) < before])
    fin["W2pre"] = {c: pre(W2[c][1] // 1024, 11, 8 + c) for c in range(8)}
    fin["Bx"] = sorted((pre(16 * i, 16), i * 16384) for i in slots)
    fin["KVpre"] = pre(fin["K"] // 1024, 48); fin["Qpre"] = pre(fin["Q"] // 1024, 11)
    return X, W1, W2, fin


def plan5(NB=6, L=2, kvlow=False):
    import itertools
    seq = []
    for c in range(8): seq += [("X", c), ("W", c)]
    fs = lambda k, i: (i if i < 3 else 8 + i - 3) if k == "X" else (i if k == "W" else 8 + i)
    best = None
    fixed = {("X", P): P + 1 for P in range(3, 8)}
    free_items = [it for it in seq if it not in fixed]
    def evaluate(asg):
        last = {}; pre = {}
        for it in seq:
            s_ = asg[it]
            pre[it] = last.get(s_, -1)
            last[s_] = fs(*it)
        return pre, last
    def dfs(n, asg, last):
        if n == len(seq): return dict(asg)
        it = seq[n]
        cands = [fixed[it]] if it in fixed else list(range(8, -1, -1))
        for s_ in cands:
            if last.get(s_, -1) > max(-1, it[1] - L): continue
            old = last.get(s_)
            last[s_] = fs(*it); asg[it] = s_
            r = dfs(n + 1, asg, last)
            if r: return r
            if old is None: del last[s_]
            else: last[s_] = old
            del asg[it]
        return None
    asg = dfs(0, {}, {})
    assert asg
    pre, last = evaluate(asg)
    X = {i: (asg[("X", i)] * 16384, pre[("X", i)]) for i in range(8)}
    W1 = {i: (asg[("W", i)] * 16384, pre[("W", i)]) for i in range(8)}
    fr = [-1] * 155
    for s_, st in last.items():
        for k in range(16 * s_, 16 * s_ + 16): fr[k] = st
    W2 = {}
    for c in range(8):
        cand = [lo for lo in range(0, 155 - 11 + 1) if not (kvlow and lo + 11 > 64 and lo < 112) and (c < 6 or lo % 16 <= 5)]
        lo = min(cand, key=lambda lo: (max(fr[lo:lo + 11]), -lo))
        W2[c] = (lo * 1024, max(fr[lo:lo + 11]))
        assert W2[c][1] < 8 + c
        for k in range(lo, lo + 11): fr[k] = 8 + c
    regs = sorted((max(fr[16 * i:16 * i + 16]), i * 16384) for i in ([0, 1, 2, 3, 7, 8] if kvlow else range(NB)))
    fin = {f"B{j}": regs[j] for j in range(NB)}
    o = 16 * NB
    fin["K"], fin["V"], fin["Q"], fin["ONES"] = o * 1024, (o + 24) * 1024, (o + 48) * 1024, (o + 56) * 1024
    if kvlow: fin["K"], fin["V"] = 65536, 90112
    fin["KVpre"] = max(fr[64:112]) if kvlow else max(fr[o:o + 48]); fin["Qpre"] = max(fr[o + 48:o + 56]); fin["ONEpre"] = fr[o + 56]
    return X, W1, W2, fin
```

```python
from emit import *
from alloc import plan3, plan4

NAME = "parallel_sum__sliding_block__dense_activation_relu__prompt"
WS_KV, WS_H, WS_O = 0, 0x600000, 0xD00000
WS_RS = 0xF00000
WS_CS = 0xF10000
WS_EP = 0xF80000
WS_F1, WS_F1B, WS_F2, WS_F1H = 0xF90000, 0xFA0000, 0xFB0000, 0xFC0000
WS_BYTES = 0x1000000
EPC = 0x9E3779B9
L_ST = 158720
L_MISC = L_ST + 3072
FULL, DONE = 64, 128
LDS = L_MISC + 256
ORD2 = list(range(6, 16)) + list(range(6))
NEG = 0xf149f2ca
pk = lambda a: f"v[{a}:{a+1}]"
SW, S1, SX, SS, S2, SO = "s[28:31]", "s[32:35]", "s[36:39]", "s[40:43]", "s[44:47]", "s[48:51]"
VST = 167

def reduce32(e, regs, tmp):
    for ctl in ("quad_perm:[1,0,3,2]", "quad_perm:[2,3,0,1]", "row_half_mirror", "row_mirror"):
        e("s_nop 1")
        for r in regs: e(f"v_add_f32_dpp v{r}, v{r}, v{r} {ctl} row_mask:0xf bank_mask:0xf")
    for r, t in zip(regs, tmp): e(f"v_mov_b32 v{t}, v{r}")
    e("s_nop 1")
    for r, t in zip(regs, tmp): e(f"v_permlane16_swap_b32 v{r}, v{t}")
    e("s_nop 1")
    for r, t in zip(regs, tmp): e(f"v_add_f32 v{r}, v{r}, v{t}")

def gen(opt):
    e = Em()
    name = NAME + "_kernel"
    ST = opt.get("stamps")
    NB = 6
    NT = opt.get("nt", "")
    UNT = opt.get("unt", "")
    PL = opt.get("pl", 2)
    XA, W1A, W2A, FIN = plan3(PL, opt.get("w2l", 2), NB, opt.get("ust", 0))
    if not opt.get("ust", 0): XA, W1A, W2A, FIN = plan4(PL, NB, opt.get("w2t", 5), opt.get("kvlow", 1))
    for j in range(NB): FIN[f"B{j}"] = FIN["Bx"][j]
    LATE = [c for c in range(8) if W2A[c][0] >= 8]
    NEEDD = sorted(set([FIN["W2pre"][c] for c in LATE] + [FIN[f"B{j}"][0] for j in range(NB)] + [FIN["KVpre"], FIN["Qpre"]]))
    BREG = [FIN[f"B{j}"][1] for j in range(NB)]
    BT = [max(FIN[f"B{j}"][0], min(16, opt.get("bt0", 15) + j)) for j in range(NB)]
    L_K, L_V, L_Q, L_ONE = FIN["K"], FIN["V"], FIN["Q"], FIN["ONES"]
    def stamp(i, rt=False):
        if not ST: return
        e(("s_memrealtime" if rt else "s_memtime") + " s[100:101]")
        e("s_waitcnt lgkmcnt(0)")
        e(f"v_writelane_b32 v{VST}, s100, {i}")
        if opt.get("rtall") and not rt:
            e("s_memrealtime s[100:101]")
            e("s_waitcnt lgkmcnt(0)")
            e(f"v_writelane_b32 v{VST}, s100, {16+i}")
    BK = opt.get("bk", [])
    def bstamp(k):
        if ST and k in BK: e(f"s_memtime s[{80+2*BK.index(k)}:{81+2*BK.index(k)}]")
    def bflush():
        if ST and BK:
            e("s_waitcnt lgkmcnt(0)")
            for i in range(len(BK)): e(f"v_writelane_b32 v{VST}, s{80+2*i}, {16+i}")
    uid = [0]
    def lab(p):
        uid[0] += 1
        return f"{p}_{uid[0]}"
    def apoll_issue(voff, soff, vd, tag):
        e.vmem(f"buffer_load_dword v{vd}, v{voff}, {SS}, {soff} offen sc1", tag)
    def apoll_check(voff, soff, vtag, vd, tag):
        D = lab("AOK")
        e.vwait(tag)
        e(f"v_cmp_ne_u32 vcc, v{vtag}, v{vd}")
        e("s_nop 1")
        e("s_cmp_eq_u64 vcc, 0")
        e(f"s_cbranch_scc1 {D}")
        keep = list(e.vm); keepl = list(e.lg)
        poll(voff, soff, vtag, vd)
        e.vm = keep; e.lg = keepl
        e(f"{D}:")
    def poll(voff, soff, vtag, vd):
        L, D = lab("POLL"), lab("POLLED")
        e("s_mov_b32 s63, 0x40000")
        e(f"{L}:")
        e(f"buffer_load_dword v{vd}, v{voff}, {SS}, {soff} offen sc1")
        e("s_waitcnt vmcnt(0) lgkmcnt(0)")
        e(f"v_cmp_ne_u32 vcc, v{vtag}, v{vd}")
        e("s_sub_u32 s63, s63, 1")
        e("s_cmp_eq_u32 s63, 0")
        e(f"s_cbranch_scc1 {D}")
        e("s_cmp_lg_u64 vcc, 0")
        e(f"s_cbranch_scc1 {L}")
        e(f"{D}:")
        e.vm = []; e.lg = []
    def ldswait(off, val, va, vb, pre=None):
        L, D = lab("LW"), lab("LWOK")
        if pre is None: e(f"v_mov_b32 v{va}, {L_MISC}")
        else: va = pre
        e("s_mov_b32 s63, 0x400000")
        e(f"{L}:")
        e(f"ds_read_b32 v{vb}, v{va} offset:{off}")
        e("s_sub_u32 s63, s63, 1")
        e("s_waitcnt lgkmcnt(0)")
        e(f"v_readfirstlane_b32 s62, v{vb}")
        e("s_cmp_eq_u32 s63, 0")
        e(f"s_cbranch_scc1 {D}")
        e(f"s_cmp_ge_u32 s62, {val}")
        e(f"s_cbranch_scc1 {D}")
        e("s_sleep 1")
        e(f"s_branch {L}")
        e(f"{D}:")
        e.lg = []
    def ldsadd(off, va, vb):
        e(f"v_mov_b32 v{va}, {L_MISC}")
        e(f"v_mov_b32 v{vb}, 1")
        e("s_mov_b64 exec, 1")
        e(f"ds_add_u32 v{va}, v{vb} offset:{off}")
        e("s_mov_b64 exec, -1")
    def smasks():
        for j in range(16):
            b0 = (j >> 2) * 8 + (j & 3)
            e(f"s_mov_b32 s{64+2*j}, {(0xffffffff << b0) & 0xffffffff:#x}")
            e(f"s_mov_b32 s{65+2*j}, {(0xffffffff << (b0+4)) & 0xffffffff:#x}")
    def asig1(coff, vm):
        e(f"s_waitcnt vmcnt({vm})")
        e("s_mov_b64 exec, 1")
        e.lds(f"ds_add_rtn_u32 v164, v6, v165 offset:{coff}", "sg")
        e("s_mov_b64 exec, -1")
    def asig2(last, base):
        N = lab("NOFLAG")
        e.lwait("sg")
        e("v_readfirstlane_b32 s63, v164")
        e(f"s_add_u32 s62, s24, {base:#x}")
        e(f"s_cmp_lg_u32 s63, {last}")
        e(f"s_cbranch_scc1 {N}")
        e("v_mov_b32 v164, s61")
        e("s_mov_b64 exec, 1")
        e(f"buffer_store_dword v164, off, {SS}, s62 sc1")
        e("s_mov_b64 exec, -1")
        e(f"{N}:")
    def signal(coff, last, base, va=2, vb=3, vm=0):
        N = lab("NOFLAG")
        e(f"s_waitcnt vmcnt({vm})")
        e(f"v_mov_b32 v{va}, {L_MISC}")
        e(f"v_mov_b32 v{vb}, 1")
        e("s_mov_b64 exec, 1")
        e(f"ds_add_rtn_u32 v{vb}, v{va}, v{vb} offset:{coff}")
        e(f"s_add_u32 s62, s24, {base:#x}")
        e("s_waitcnt lgkmcnt(0)")
        e(f"v_readfirstlane_b32 s63, v{vb}")
        e(f"s_cmp_lg_u32 s63, {last}")
        e(f"s_cbranch_scc1 {N}")
        e(f"v_mov_b32 v{va}, 0")
        e(f"v_mov_b32 v{vb}, s61")
        e(f"buffer_store_dword v{vb}, v{va}, {SS}, s62 offen sc1")
        e(f"{N}:")
        e("s_mov_b64 exec, -1")
        e.lg = []

    e(f"{name}:")
    e("s_cmp_ge_u32 s2, 256")
    e("s_cbranch_scc1 L_END")
    stamp(0, True); stamp(1)
    def gate(nm):
        if opt.get("gate") == nm:
            L = lab("GATE")
            e("v_readlane_b32 s98, v167, 0")
            e(f"{L}:")
            e(("s_memtime" if opt.get("gcyc") else "s_memrealtime") + " s[100:101]")
            e("s_waitcnt lgkmcnt(0)")
            e("s_sub_u32 s99, s100, s98")
            e(f"s_cmp_lt_u32 s99, {opt.get('gcyc', 3000)}")
            e(f"s_cbranch_scc1 {L}")
    if opt.get("deadline") or opt.get("gate"): e(("s_memtime" if opt.get("gcyc") else "s_memrealtime") + " s[98:99]"); e("s_waitcnt lgkmcnt(0)"); e("v_writelane_b32 v167, s98, 0")
    e("s_load_dwordx4 s[4:7], s[0:1], 0")
    e("s_load_dwordx4 s[12:15], s[0:1], 32")
    e("s_load_dwordx2 s[16:17], s[0:1], 64")
    e("s_load_dwordx2 s[8:9], s[0:1], 16")
    e("s_load_dwordx2 s[10:11], s[0:1], 48")
    e("v_lshrrev_b32 v1, 6, v0")
    e("v_and_b32 v0, 63, v0")
    e("v_readfirstlane_b32 s18, v1")
    e("""s_and_b32 s3, s2, 1
    s_lshl_b32 s20, s3, 3
    s_lshr_b32 s24, s2, 5
    s_add_u32 s20, s20, s24
    s_bfe_u32 s21, s2, 0x20001
    s_bfe_u32 s22, s2, 0x20003
    s_lshl_b32 s23, s21, 2
    s_add_u32 s23, s23, s22
    s_lshl_b32 s24, s20, 4
    s_add_u32 s24, s24, s23
    s_lshl_b32 s24, s24, 7
    s_and_b32 s19, s18, 3
    s_lshl_b32 s3, s3, 2
    s_add_u32 s58, s3, s21
    s_lshl_b32 s58, s58, 2
    s_lshr_b32 s59, s2, 6
    s_add_u32 s58, s58, s59
    s_bfe_u32 s59, s2, 0x30003""")
    if opt.get("map2", 0):
        e("""s_and_b32 s20, s2, 3
        s_lshl_b32 s20, s20, 2
        s_lshr_b32 s3, s2, 6
        s_add_u32 s20, s20, s3
        s_bfe_u32 s23, s2, 0x10002
        s_lshl_b32 s23, s23, 3
        s_bfe_u32 s3, s2, 0x30003
        s_add_u32 s23, s23, s3
        s_lshl_b32 s24, s20, 4
        s_add_u32 s24, s24, s23
        s_lshl_b32 s24, s24, 7""")
    if opt.get("map3", 0):
        e("""s_and_b32 s20, s2, 7
        s_lshl_b32 s20, s20, 1
        s_lshr_b32 s3, s2, 7
        s_add_u32 s20, s20, s3
        s_bfe_u32 s23, s2, 0x40003
        s_lshl_b32 s24, s20, 4
        s_add_u32 s24, s24, s23
        s_lshl_b32 s24, s24, 7""")
    if opt.get("own", 1):
        e("s_lshl_b32 s58, s20, 1")
        e("s_lshr_b32 s59, s23, 3")
        e("s_add_u32 s58, s58, s59")
        e("s_and_b32 s59, s23, 7")
    e("s_waitcnt lgkmcnt(0)")
    if opt.get("wsoff"):
        e(f"s_add_u32 s16, s16, {opt['wsoff'] << 20:#x}")
        e("s_addc_u32 s17, s17, 0")
    srd(e, 36, 4, 2048 * 1024)
    srd(e, 28, 6, 512 * 3072)
    srd(e, 32, 12, 512 * 3584)
    srd(e, 40, 16, WS_BYTES)
    if opt.get("unear", 1):
        e("s_cmp_lt_u32 s18, 4")
        e("s_cbranch_scc1 L_LOAD")
        e("s_cmp_lt_u32 s18, 8")
        e("s_cbranch_scc1 L_CONS")
        e("UINIT_HERE")
        e("L_LOAD:")
    else:
        e("s_cmp_ge_u32 s18, 8")
        e("s_cbranch_scc1 L_UTIL")
        e("s_cmp_ge_u32 s18, 4")
        e("s_cbranch_scc1 L_CONS")

    e(f"""v_and_b32 v5, 7, v0
    v_lshrrev_b32 v2, 3, v0
    v_lshrrev_b32 v3, 4, v0
    v_xor_b32 v3, v3, v5
    v_lshlrev_b32 v2, 10, v2
    v_lshl_add_u32 v12, v3, 4, v2
    v_xor_b32 v13, 64, v12
    s_lshl_b32 s65, s20, 17
    s_lshl_b32 s3, s18, 15
    s_add_u32 s65, s65, s3
    s_lshl_b32 s67, s18, 12""")
    def issueX(P):
        e(f"s_add_u32 m0, s67, {XA[P]}")
        e(f"s_add_u32 s74, s65, {P*128}")
        for a in range(4):
            e.vmem(f"buffer_load_dwordx4 v{12+(a&1)}, {SX}, s74 offen offset:{a*1024} {NT} lds", ("x", P))
            if a < 3: e(f"s_add_u32 s74, s74, {8192-1024}")
    issueX(0)
    e("""v_lshrrev_b32 v2, 5, v0
    v_bfe_u32 v3, v0, 3, 2
    v_lshl_add_u32 v3, v2, 3, v3
    v_bfe_u32 v4, v0, 4, 2
    v_lshlrev_b32 v4, 1, v4
    v_xor_b32 v4, v4, v5
    v_lshlrev_b32 v4, 4, v4
    v_mul_u32_u24 v10, 3072, v3
    v_add_u32 v10, v10, v4
    v_mul_u32_u24 v11, 3584, v3
    v_add_u32 v11, v11, v4
    s_lshr_b32 s52, s18, 1
    s_lshl_b32 s52, s52, 5
    s_and_b32 s62, s18, 1
    s_lshl_b32 s3, s62, 2
    s_add_u32 s52, s52, s3
    s_lshl_b32 s3, s23, 7
    s_mul_i32 s53, s52, 3072
    s_add_u32 s53, s53, s3
    s_add_u32 s53, s53, 1024
    s_mul_i32 s54, s52, 3584
    s_add_u32 s54, s54, s3""")
    def issueW(c):
        for ah in range(2):
            e(f"s_add_u32 m0, s67, {W1A[c] + ah*2048}")
            e(f"s_add_u32 s74, s53, {(64*c + 16*ah)*3072}")
            e.vmem(f"buffer_load_dwordx4 v10, {SW}, s74 offen {NT} lds", ("w", c))
            e(f"s_add_u32 m0, s67, {W1A[c] + ah*2048 + 1024}")
            e(f"s_add_u32 s74, s54, {(64*c + 16*ah)*3584}")
            e.vmem(f"buffer_load_dwordx4 v11, {S1}, s74 offen {NT} lds", ("w", c))
    def esetup():
        e("""v_lshrrev_b32 v2, 4, v0
        v_bfe_u32 v3, v0, 2, 2
        v_lshl_add_u32 v3, v2, 3, v3
        v_mul_u32_u24 v16, 3072, v3
        v_and_b32 v2, 1, v2
        v_lshlrev_b32 v2, 1, v2
        v_and_b32 v3, 3, v0
        v_xor_b32 v2, v2, v3
        v_lshl_add_u32 v16, v2, 4, v16
        s_and_b32 s62, s19, 1
        s_lshl_b32 s3, s62, 7""")
        for j in range(2):
            e(f"""v_add_u32 v2, s3, v0
            v_add_u32 v2, {64*j}, v2
            v_mul_u32_u24 v3, 10923, v2
            v_lshrrev_b32 v3, 16, v3
            v_mul_u32_u24 v4, 6, v3
            v_sub_u32 v4, v2, v4
            v_bfe_u32 v6, v3, 2, 2
            v_lshlrev_b32 v6, 3, v6
            v_lshrrev_b32 v7, 4, v3
            v_lshl_add_u32 v6, v7, 2, v6
            v_and_b32 v7, 3, v3
            v_add_u32 v6, v6, v7
            v_mul_u32_u24 v{17+j}, 3584, v6
            v_lshl_add_u32 v{17+j}, v4, 4, v{17+j}""")
        e("""s_cmp_eq_u32 s62, 1
        s_cselect_b32 s3, 0x80000000, 0
        v_or_b32 v18, s3, v18
        s_lshr_b32 s3, s19, 1
        s_mul_i32 s55, s52, 3072
        s_lshl_b32 s64, s23, 6
        s_add_u32 s55, s55, s64
        s_mul_i32 s56, s3, 114688
        s_mul_i32 s64, s23, 96
        s_add_u32 s56, s56, s64
        s_add_u32 s56, s56, 2048
        s_mul_i32 s57, s3, 5120
        s_lshl_b32 s64, s62, 10
        s_add_u32 s60, s57, s64
        s_lshl_b32 s64, s62, 11
        s_add_u32 s57, s57, s64
        s_add_u32 s64, s57, 1024
        s_cmp_eq_u32 s62, 1
        s_cselect_b32 s64, 8192, s64""")
    def issueW2(c):
        p = ORD2[2 * c]
        base = W2A[c][1]
        e(f"s_add_u32 m0, s60, {base}")
        e(f"s_add_u32 s74, s55, {p*32*3072}")
        e.vmem(f"buffer_load_dwordx4 v16, {SW}, s74 offen {NT} lds", ("w2", c))
        e(f"s_add_u32 m0, s57, {base + 2048}")
        e(f"s_add_u32 s74, s56, {p*32*3584}")
        e.vmem(f"buffer_load_dwordx4 v17, {S1}, s74 offen {NT} lds", ("w2", c))
        e(f"s_add_u32 m0, s64, {base + 2048}")
        e("s_nop 0")
        e.vmem(f"buffer_load_dwordx4 v18, {S1}, s74 offen {NT} lds", ("w2", c))
    NF2, NS, NA = 14, 18, 4
    A0 = 20
    AF = lambda sg, tb, kk: A0 + (sg % NA) * 16 + (tb * 2 + kk) * 4
    ACB = A0 + NA * 16
    GACC = lambda tb, nb: ACB + (tb * 2 + nb) * 16
    BFB = ACB + 64
    BF = lambda kk, nb: BFB + (kk * 2 + nb) * 4
    assert BFB + 16 <= VST
    def gsetup():
        srd(e, 44, 14, 1792 * 1024)
        srd(e, 48, 8, 512 * 1024)
        e(f"""v_lshrrev_b32 v8, 3, v0
        v_bfe_u32 v2, v0, 4, 1
        v_lshlrev_b32 v2, 2, v2
        v_xor_b32 v9, v5, v2
        v_lshlrev_b32 v9, 4, v9
        v_lshl_add_u32 v14, v8, 10, v9
        v_lshrrev_b32 v2, 2, v8
        v_lshlrev_b32 v2, 3, v2
        v_and_b32 v8, 3, v8
        v_add_u32 v8, v8, v2
        v_lshl_add_u32 v15, v8, 10, v9
        v_lshlrev_b32 v1, 4, v0
        s_lshl_b32 s3, s59, 7
        s_lshl_b32 s70, s18, 18
        s_add_u32 s70, s70, s3
        s_mul_i32 s78, s18, {12*16*1024}
        s_add_u32 s78, s78, s3
        s_lshl_b32 s71, s18, 17
        s_add_u32 s71, s71, s3
        s_mul_i32 s72, s58, {2*112*1024}
        s_add_u32 s72, s72, {WS_H:#x}
        s_mul_i32 s79, s18, {12*1024}
        s_add_u32 s79, s79, s72
        s_lshl_b32 s3, s18, 14
        s_add_u32 s72, s72, s3
        s_lshl_b32 s73, s58, 16
        s_lshl_b32 s3, s18, 13
        s_add_u32 s73, s73, s3
        s_add_u32 s73, s73, {WS_O:#x}
        s_and_b32 s3, s58, 3
        s_cmp_eq_u32 s3, s18
        s_cselect_b32 s26, 1, 0
        s_cmp_eq_u32 s59, s18
        s_cselect_b32 s27, 1, 0
        s_add_u32 s3, s18, 4
        s_cmp_eq_u32 s59, s3
        s_cselect_b32 s21, 1, 0
        s_lshl_b32 s69, s58, 1
        s_add_u32 s69, s69, s59
        s_and_b32 s69, s69, {opt.get("rotm", 7)}
        s_sub_u32 s25, s69, 6
        s_cmp_ge_u32 s69, 6
        s_cselect_b32 s25, s25, s69""")
    KS = [(2 * i, False) for i in range(8)] + [(64 + 2 * i, True) for i in range(6)]
    ROT = opt.get("rot", 0)
    def ridx(sg):
        if sg < 8:
            e(f"s_add_u32 s68, s69, {sg}")
            e("s_and_b32 s68, s68, 7")
        elif sg < NF2:
            e(f"s_add_u32 s68, s25, {sg-8}")
            e("s_sub_u32 s3, s68, 6")
            e("s_cmp_ge_u32 s68, 6")
            e("s_cselect_b32 s68, s3, s68")
        else:
            e(f"s_add_u32 s68, s69, {sg-NF2}")
            e("s_and_b32 s68, s68, 3")
    def issueB(sg):
        if ROT:
            ridx(sg)
            e("s_lshl_b32 s68, s68, 15")
            e(f"s_add_u32 s68, s68, {'s70' if sg < 8 else 's78' if sg < NF2 else 's71'}")
        for a in range(4):
            e(f"s_add_u32 m0, s67, {BREG[sg % NB] + a*1024}")
            if sg < NF2:
                k16, ex = KS[sg]
                if ROT: e(f"s_add_u32 s74, s68, {((1024 if ex else 0) + 8*a)*1024}")
                else: e(f"s_add_u32 s74, {'s78' if ex else 's70'}, {(16*k16 + 8*a)*1024}")
                e.vmem(f"buffer_load_dwordx4 v14, {S2}, s74 offen lds", ("B", sg))
            else:
                if ROT: e(f"s_add_u32 s74, s68, {(16*(a>>1) + 4*(a&1))*1024}")
                else: e(f"s_add_u32 s74, s71, {(32*(sg-NF2) + 16*(a>>1) + 4*(a&1))*1024}")
                e.vmem(f"buffer_load_dwordx4 v15, {SO}, s74 offen lds", ("B", sg))
    def issueA(sg, tbs=(0, 1)):
        for tb in tbs:
            if sg < NF2:
                k16, ex = KS[sg]
                e(f"s_add_u32 s74, {'s79' if ex else 's72'}, {(tb*112 + k16)*1024}")
            else: e(f"s_add_u32 s74, s73, {(tb*32 + 2*(sg-NF2))*1024}")
            for kk in range(2):
                e.vmem(f"buffer_load_dwordx4 {vr(AF(sg,tb,kk),4)}, v1, {SS}, s74 offen offset:{kk*1024} sc1", ("A", sg))
    LEAD = opt.get("lead", 0)
    def either(sreg, lead_fn, foll_fn):
        L1, L2 = lab("LD"), lab("LE")
        e(f"s_cmp_lg_u32 {sreg}, 0")
        e(f"s_cbranch_scc1 {L1}")
        allk = list(e.act)
        e.act = [k for k in allk if sreg not in k]
        if foll_fn: foll_fn()
        e(f"s_branch {L2}")
        e(f"{L1}:")
        keep = list(e.vm)
        e.act = [k for k in allk if sreg in k]
        if lead_fn: lead_fn()
        e.vm = keep
        e.act = allk
        e(f"{L2}:")
    def gsetup2():
        e(f"""v_lshrrev_b32 v6, 5, v0
        v_lshlrev_b32 v6, 3, v6
        v_bfe_u32 v7, v0, 2, 2
        v_add_u32 v6, v6, v7
        v_lshlrev_b32 v6, 7, v6
        v_lshrrev_b32 v7, 1, v7
        v_lshl_add_u32 v6, v7, 6, v6
        v_bfe_u32 v7, v0, 4, 1
        v_lshl_add_u32 v6, v7, 5, v6
        v_and_b32 v7, 3, v0
        v_lshl_add_u32 v6, v7, 3, v6
        v_add_u32 v6, s67, v6
        v_xor_b32 v7, 64, v6
        v_add_u32 v8, 49152, v6
        v_add_u32 v9, 49152, v7
    v_add_u32 v10, 98304, v6
    v_add_u32 v11, 98304, v7
        v_mov_b32 v2, {L_MISC}
        ds_read_b32 v2, v2
        v_and_b32 v3, 3, v0
        v_lshlrev_b32 v3, 7, v3
        s_lshr_b32 s76, s58, 1
        s_lshl_b32 s76, s76, 11
        s_lshl_b32 s3, s18, 9
        s_add_u32 s76, s76, s3
        s_add_u32 s66, s76, {WS_F1H:#x}""")
        e("s_mov_b32 s75, 0")
        e("s_waitcnt lgkmcnt(0)")
    D = opt.get("gd", 3); DB = NB - 1; PS = opt.get("ps", 12); PB = 8 - D - 1
    GE = opt.get("ge", 15)
    def firstA(lo=0, hi=None):
        hi = D if hi is None else hi
        for sg in range(lo, hi):
            if LEAD & 2 and sg == hi - 1:
                for tb in range(2): either(("s27", "s21")[tb], lambda: issueA(sg, (tb,)), None)
            else: issueA(sg)
    issueW(0)
    for c in range(1, PL): issueX(c); issueW(c)
    for k in range(9):
        e.vwait([("w", k), ("x", k)] if k < 8 else [("w2", c) for c in range(8)])
        if k == 0: stamp(2)
        if k == 8: stamp(3)
        bstamp(k)
        e("s_barrier")
        if k + PL <= 7: issueX(k + PL); issueW(k + PL)
        if k == 1: gsetup()
        if k == 2: esetup()
        for c in range(8):
            if W2A[c][0] == k and c not in LATE: issueW2(c)
        if k == 7:
            ldswait(28, 4, 2, 3)
            for c in range(8):
                if W2A[c][0] == 7.5: issueW2(c)
    bflush()
    stamp(4)
    if opt.get("gprio", 0): e(f"s_setprio {opt.get('gprio')}")
    gsetup2()
    seen = [-1]
    def need2(st):
        if st > seen[0]:
            ldswait(DONE + 4 * st, 4, 12, 13)
            seen[0] = st
    BP = opt.get("bp", 3)
    for j in range(BP): need2(FIN[f"B{j}"][0]); issueB(j)
    poll(3, "s66", 2, 4)
    for sg in range(D): issueA(sg)
    stamp(5)
    done_b = set()
    def step(sg):
        for j in range(BP, NB):
            if min(j - BP, opt.get("bq", 9)) == sg or (sg == 0 and j - BP < opt.get("b0", 1)):
                if j not in done_b: need2(FIN[f"B{j}"][0]); issueB(j); done_b.add(j)
        bstamp(100 + sg)
        e.vwait([("B", sg), ("A", sg)])
        bstamp(200 + sg)
        reg = BREG[sg % NB]
        hi = reg // 49152
        off0 = reg - 49152 * hi
        for kk in range(2):
            for nb in range(2):
                for q in range(2):
                    e.lds(f"ds_read_b64_tr_b16 v[{BF(kk,nb)+2*q}:{BF(kk,nb)+2*q+1}], v{6+2*hi+nb} offset:{off0 + kk*2048 + q*512}", (kk, nb))
        if LEAD & 1:
            FB = opt.get("fb", 3)
            okb = lambda j: NB <= j < NS
            if okb(sg + DB) or okb(sg + FB):
                either("s26", (lambda: issueB(sg + DB)) if okb(sg + DB) else None, (lambda: issueB(sg + FB)) if okb(sg + FB) else None)
        elif NB <= sg + DB < NS: issueB(sg + DB)
        oka = lambda j: j < NF2 or (j < NS and sg > PS and j >= PS + 1 + D)
        if LEAD & 2:
            okf = lambda j: j < NF2 or (j < NS and sg > PS and j >= PS + D)
            for tb in range(2):
                if oka(sg + D) or okf(sg + D - 1):
                    either(("s27", "s21")[tb], (lambda: issueA(sg + D, (tb,))) if oka(sg + D) else None, (lambda: issueA(sg + D - 1, (tb,))) if okf(sg + D - 1) else None)
        elif oka(sg + D): issueA(sg + D)
        for kk in range(2):
            for nb in range(2):
                e.lwait((kk, nb))
                for tb in range(2):
                    acc = vr(GACC(tb, nb), 16)
                    cin = "0" if (sg == 0 and kk == 0) else acc
                    if opt.get("nogm") and (kk or nb): continue
                    e(f"v_mfma_f32_32x32x16_bf16 {acc}, {vr(BF(kk,nb),4)}, {vr(AF(sg,tb,kk),4)}, {cin}")
    for sg in range(PS + 1):
        if sg == PB - 1 or sg == PS - 1:
            e(f"s_add_u32 s66, s76, {(WS_F1B if sg == PB - 1 else WS_F2):#x}")
            apoll_issue(3, "s66", 4, "fl")
        step(sg)
        if sg == PB:
            stamp(6)
            apoll_check(3, "s66", 2, 4, "fl")
    stamp(7)
    apoll_check(3, "s66", 2, 4, "fl")
    stamp(8)
    firstA(NF2, min(NS, PS + 1 + D))
    for sg in range(PS + 1, NS): step(sg)
    e.var = None
    bflush()
    gate('g')
    stamp(9)
    e("""v_and_b32 v12, 31, v0
    v_lshlrev_b32 v12, 7, v12
    v_lshrrev_b32 v13, 5, v0
    v_xor_b32 v13, v13, v5
    v_lshl_add_u32 v12, v13, 4, v12
    v_add_u32 v12, s67, v12""")
    for nb in range(2):
        for a in range(4): e(f"v_xor_b32 v{20+nb*4+a}, {((2*a) ^ nb)*16}, v12")
    for tb in range(2):
        for nb in range(2):
            for a in range(4): e(f"v_add_u32 v{28+(tb*2+nb)*4+a}, {BREG[tb*2+nb]}, v{20+nb*4+a}")
    for tb in range(2):
        for nb in range(2):
            for a in range(4): e(f"ds_write_b128 v{28+(tb*2+nb)*4+a}, {vr(GACC(tb,nb)+4*a,4)}")
    e("s_waitcnt lgkmcnt(0)")
    stamp(10)
    e("s_barrier")
    if ST: e("s_branch L_DUMP")
    e("s_endpgm")

    e("L_CONS:")
    e.vm = []; e.lg = []
    LA = opt.get("la", 5); NFB = 6
    F = lambda f: 8 + (f % NFB) * 4
    XF = lambda n, r: 32 + ((n & 1) * 2 + r) * 4
    XK = lambda p, r: 48 + (p * 2 + r) * 4
    ACC = lambda s, r: 96 + (s * 2 + r) * 4
    AW = [1, 2, 3, 4]; AX = [7, 5]
    e(f"""v_lshrrev_b32 v8, 2, v0
    v_lshrrev_b32 v9, 3, v8
    v_lshlrev_b32 v9, 11, v9
    v_and_b32 v10, 7, v8
    v_lshl_add_u32 v9, v10, 7, v9
    v_and_b32 v10, 3, v0
    v_lshlrev_b32 v10, 3, v10
    v_add_u32 v9, v9, v10
    v_bfe_u32 v11, v0, 3, 2
    v_lshl_add_u32 v1, v11, 5, v9
    v_add_u32 v1, {W1A[0]}, v1
    v_xor_b32 v2, 32, v1
    v_xor_b32 v3, 64, v1
    v_xor_b32 v4, 96, v1
    v_and_b32 v8, 15, v0
    v_lshrrev_b32 v9, 4, v0
    v_lshrrev_b32 v10, 1, v8
    v_xor_b32 v9, v9, v10
    v_lshlrev_b32 v8, 7, v8
    v_lshl_add_u32 v7, v9, 4, v8
    s_lshl_b32 s3, s19, 12
    s_add_u32 s3, s3, {XA[0]}
    v_add_u32 v7, s3, v7
    v_xor_b32 v5, 64, v7""")
    e(f"v_mov_b32 v6, {L_MISC}")
    e("v_mov_b32 v165, 1")
    if not BK: smasks()
    if opt.get("cprio", 3): e(f"s_setprio {opt.get('cprio', 3)}")
    cur = {"w": W1A[0], "x": XA[0]}
    UST = opt.get("ust", 0)
    PEND = []
    DEF = []; NST = [0]; TIM = 0 if UST else opt.get("tim", 2)
    def move(kind, regs, addr):
        d = addr - cur[kind]
        if d:
            for a in regs: e(f"v_add_u32 v{a}, {d & 0xffffffff:#x}, v{a}")
        cur[kind] = addr
    def gemm(ps):
        NSB = 8 if ps == 1 else 5
        NF = 16 * NSB
        kst = (lambda n: n) if ps == 1 else (lambda n: ORD2[n])
        xreg = lambda n, r: XK(kst(n), r) if kst(n) < 6 else XF(n, r)
        def rd(f):
            n, s = divmod(f, NSB)
            for q in range(2):
                if ps == 1:  a, off = AW[s & 3], (n & 1) * 8192 + q * 4096 + (s >> 2) * 1024
                elif s < 2:  a, off = AW[s], (n & 1) * 5120 + q * 1024
                else:        a, off = AW[2], (n & 1) * 5120 + 2048 + q * 1536 + (s - 2) * 32
                yield f"ds_read_b64_tr_b16 v[{F(f)+2*q}:{F(f)+2*q+1}], v{a} offset:{off}"
        def kswitch(n):
            if n % 2 == 0:
                if ps == 1: move("w", AW, W1A[n // 2])
                else:       move("w", AW[:3], W2A[n // 2][1])
                t = 8 * (ps - 1) + n // 2
                bstamp(t)
                if t <= 8: e("s_barrier")
                elif t - 8 in LATE:
                    L, D_ = lab("FW"), lab("FOK")
                    e.lwait("fl")
                    e("v_readfirstlane_b32 s62, v4")
                    e("s_cmp_ge_u32 s62, 4")
                    e(f"s_cbranch_scc1 {D_}")
                    keepl = list(e.lg)
                    ldswait(FULL + 4 * t, 4, 4, 4, 6)
                    e.lg = keepl
                    e(f"{D_}:")
                if ps == 2 and not UST:
                    for _ in range(opt.get("tper", 4)):
                        if DEF:
                            for x in DEF.pop(0):
                                if opt.get("nost1") and "buffer_store" in x: continue
                                e(x.replace(" sc1", "") if opt.get("plain1") else x)
                            NST[0] += 1
                    if n // 2 == opt.get("sgk", 0):
                        asig1(4, max(0, NST[0] - 4)); PEND.append(WS_F1)
                    if n // 2 == opt.get("sgh", 3):
                        assert not DEF
                        asig1(24, 0); PEND.append(WS_F1H)
            if NSB > LA or n < 2: xread(n)
        def xread(n):
            p = kst(n)
            if ps == 1 or p >= 6:
                move("x", AX, XA[p >> 1])
                for r in range(2): e.lds(f"ds_read_b128 {vr(xreg(n,r),4)}, v{AX[p&1]} offset:{r*2048}", ("x", n))
        kswitch(0)
        if ps == 1: stamp(2); gate("b0")
        for f in range(LA):
            if f and f % NSB == 0: kswitch(f // NSB)
            for r_ in rd(f): e.lds(r_, f)
        for f in range(NF):
            n, s = divmod(f, NSB)
            nxt = f + LA
            if nxt < NF and nxt % NSB == 0: kswitch(nxt // NSB)
            if NSB <= LA and s == 0 and 1 <= n < 15: xread(n + 1)
            if ps == 2 and (nxt + 4) % (2 * NSB) == 0 and (nxt + 4) // (2 * NSB) in LATE:
                e.lds(f"ds_read_b32 v4, v6 offset:{FULL + 4*(8 + (nxt + 4) // (2 * NSB))}", "fl")
            if PEND and nxt % (2 * NSB) == 4: asig2(3, PEND.pop())
            if opt.get("w2f", 1) and f % 2 == 0 and f + 1 < NF: e.lwait([f, f + 1, ("x", n), ("x", (f + 1) // NSB)])
            else: e.lwait([f, ("x", n)])
            if ps == 2 and (f + 1) % (2 * NSB) == 0 and 8 + n // 2 in NEEDD:
                e("s_mov_b64 exec, 1")
                e.lds(f"ds_add_u32 v6, v165 offset:{DONE + 4*(8 + n//2)}", "dn")
                e("s_mov_b64 exec, -1")
            rds = list(rd(nxt)) if nxt < NF else [None, None]
            for r in range(2):
                acc = vr(ACC(s, r), 4)
                e(f"v_mfma_f32_16x16x32_bf16 {acc}, {vr(F(f),4)}, {vr(xreg(n,r),4)}, {'0' if n == 0 else acc}")
                if rds[r]: e.lds(rds[r], nxt)
    RS = lambda r: 160 + 2 * r
    RQ = lambda r: 32 + 2 * r
    TT = 8
    CSR = [24, 28]
    def epilogue(ps):
        order = (([0, 1, 2, 3, 5, 6, 7, 4] if opt.get('kvfirst', 1) else [5, 6, 7, 2, 3, 4, 0, 1]) if TIM else list(range(8))) if ps == 1 else ([2, 3, 4, 0, 1] if opt.get('b16late') else [0, 1, 2, 3, 4])
        dd = {}
        loc = lambda s: s if ps == 1 else 8 + s
        if ps == 1:
            ldsadd(28, 8, 9)
            ldswait(20, 1, 8, 9)
        e(f"""v_and_b32 v16, 15, v0
        v_lshrrev_b32 v17, 4, v0
        s_lshl_b32 s3, s19, 9
        s_add_u32 s3, s3, {L_ST}
        v_lshl_add_u32 v8, v16, 4, s3
        v_lshlrev_b32 v164, 4, v17
        v_add_u32 v164, {L_ST+2048}, v164
        v_mov_b32 v10, {L_MISC}""")
        if ps == 1:
            for r in range(2): e.lds(f"ds_read_b64 {pk(RS(r))}, v8 offset:{256*r}", "st")
            e.lds("ds_read_b32 v10, v10", "st")
        def csread(n):
            if n < len(order): e.lds(f"ds_read_b128 {vr(CSR[n%2],4)}, v164 offset:{64*loc(order[n])}", ("cs", n))
        csread(0)
        e("v_lshlrev_b32 v166, 4, v0")
        if ps == 1:
            e(f"""s_lshl_b32 s52, s20, 2
            s_add_u32 s52, s52, s19
            s_lshl_b32 s53, s23, 8
            s_add_u32 s53, s53, s52
            s_lshl_b32 s53, s53, 10
            s_mul_i32 s54, s52, 112
            s_mul_i32 s55, s23, 3
            s_add_u32 s55, s55, s54
            s_add_u32 s55, s55, 64
            s_lshl_b32 s55, s55, 10
            s_lshl_b32 s3, s23, 2
            s_add_u32 s54, s54, s3
            s_lshl_b32 s54, s54, 10
            s_add_u32 s54, s54, {WS_H:#x}
            s_add_u32 s55, s55, {WS_H:#x}""")
            if UST:
                e("s_lshl_b32 s3, s19, 12")
                e("v_add_u32 v36, s3, v166")
                e(f"v_add_u32 v37, {W1A[7]}, v36")
                e(f"v_add_u32 v36, {W1A[6]}, v36")
            e.lwait("st")
            e("v_readfirstlane_b32 s61, v10")
        else:
            e("s_mov_b32 s3, 0x3eb8aa3b")
            for q in range(4): e(f"v_mul_f32 v{32+q}, s3, v{160+q}")
            e("s_lshl_b32 s3, s19, 10")
            e(f"s_add_u32 s3, s3, {L_Q}")
            e("v_add_u32 v36, s3, v166")
            ldswait(DONE + 4 * FIN["Qpre"], 4, 37, 38)
        for n, s in enumerate(order):
            T = 16 + 4 * (n % 2)
            stg = ps == 1 and UST
            dfr = ps == 1 and TIM and s >= (4 if opt.get('kvfirst', 1) else 2) and not UST
            if dfr: T = ACC(s, 0) if s >= 5 else ACC(s + 3, 1)
            isQ = ps == 2 and s < 2
            isH = (ps == 1 and s >= 4) or (ps == 2 and s >= 2)
            if stg and s == 4: ldswait(28, 4, 38, 39)
            e.lwait(("cs", n))
            c = CSR[n % 2]
            csread(n + 1)
            if opt.get("xnop"): e("s_nop 3")
            if (ps == 2 or opt.get("nopk1", 1)) and opt.get("nopk", 1):
                for r in range(2):
                    sp = RQ(r) if isQ else RS(r)
                    for j in range(4): e(f"v_mul_f32 v{TT+4*r+j}, v{c+j}, v{sp+1}")
                for r in range(2):
                    sp = RQ(r) if isQ else RS(r)
                    for j in range(4): e(f"v_fmac_f32 v{TT+4*r+j}, v{ACC(s,r)+j}, v{sp}")
            else:
                for r in range(2):
                    sp = RQ(r) if isQ else RS(r)
                    for h in range(2):
                        e(f"v_pk_mul_f32 {pk(TT+4*r+2*h)}, {pk(c+2*h)}, {pk(sp)} op_sel:[0,1] op_sel_hi:[1,1]")
                for r in range(2):
                    sp = RQ(r) if isQ else RS(r)
                    for h in range(2):
                        t = TT + 4 * r + 2 * h
                        e(f"v_pk_fma_f32 {pk(t)}, {pk(ACC(s,r)+2*h)}, {pk(sp)}, {pk(t)} op_sel_hi:[1,0,1]")
            for r in range(2):
                for h in range(2):
                    t = TT + 4 * r + 2 * h
                    e(f"v_cvt_pk_bf16_f32 v{T+2*r+h}, v{t}, v{t+1}")
            if isQ or stg: sa = "s_nop 0"
            elif ps == 2: sa = f"s_add_u32 s3, s55, {(s-2)*1024}"
            elif s < 4: sa = f"s_add_u32 s3, s53, {WS_KV + s*0x10000:#x}"
            else: sa = f"s_add_u32 s3, s54, {(s-4)*1024}"
            e("s_nop 2")
            e(f"v_permlane16_swap_b32 v{T}, v{T+2}")
            e(f"v_permlane16_swap_b32 v{T+1}, v{T+3}")
            e(sa if not dfr else "s_nop 0")
            e("s_nop 0")
            if isH:
                for q in (0, 2, 1, 3): e(f"v_pk_max_i16 v{T+q}, v{T+q}, 0")
            if isQ:
                e.lds(f"ds_write_b128 v36, {vr(T,4)} offset:{s*4096}", "qw")
                if s == 1:
                    e.lwait_all()
                    ldsadd(16, 37, 38)
            elif stg: e.lds(f"ds_write_b128 v{36 + (s >> 2)}, {vr(T,4)} offset:{(s&3)*1024}", "qw")
            elif dfr: dd[s] = [sa, f"buffer_store_dwordx4 {vr(T,4)}, v166, {SS}, s3 offen {'' if isH and opt.get('hplain') else 'sc1'}"]
            else:
                e(f"buffer_store_dwordx4 {vr(T,4)}, v166, {SS}, s3 offen {'' if isH and opt.get('hplain') else 'sc1'}")
                NST[0] += 1
                if ps == 2 and s == 4 and opt.get("b16late"): e("s_barrier")
        for s in sorted(dd): DEF.append(dd[s])
    gemm(1)
    gate('p1')
    stamp(3)
    epilogue(1)
    e(f"""v_lshrrev_b32 v8, 2, v0
    v_and_b32 v10, 3, v0
    v_lshlrev_b32 v10, 3, v10
    v_lshl_add_u32 v1, v8, 6, v10
    v_bfe_u32 v11, v0, 4, 1
    v_lshl_add_u32 v1, v11, 5, v1
    v_add_u32 v1, {W2A[0][1]}, v1
    v_xor_b32 v2, 32, v1
    v_mul_u32_u24 v3, 96, v8
    v_add_u32 v3, v3, v10
    v_add_u32 v3, {W2A[0][1]}, v3""")
    cur["w"] = W2A[0][1]
    e.lwait_all()
    stamp(4)
    gemm(2)
    gate('p2')
    bflush()
    stamp(5)
    epilogue(2)
    if BK: smasks()
    e("s_mov_b32 s96, s19")
    e("s_mov_b32 s97, 1")
    e("s_branch L_ATT")

    e("L_UTIL:")
    e.vm = []; e.lg = []
    if opt.get("uprio0", 3): e(f"s_setprio {opt.get('uprio0', 3)}")
    L0, U, A, CL, C0, C1, VE = 16, 24, 40, 48, 64, 72, 80
    e("v_and_b32 v5, 7, v0")
    def pfcode():
        sk = lab("NOPC")
        e("s_cmp_lg_u32 s19, 3")
        e(f"s_cbranch_scc1 {sk}")
        e("s_getpc_b64 s[72:73]")
        e("L_PCREF:")
        e(f"s_sub_u32 s72, s72, L_PCREF-{name}")
        e("s_subb_u32 s73, s73, 0")
        e("s_lshr_b32 s74, s2, 3")
        e("s_mul_i32 s74, s74, (L_END-%s+4095)/4096*128" % name)
        e("v_lshlrev_b32 v2, 7, v0")
        e("v_add_u32 v2, s74, v2")
        e(f"v_min_u32 v2, L_END-{name}, v2")
        e("v_mov_b32 v3, s73")
        e("v_add_co_u32 v2, vcc, s72, v2")
        e("s_nop 1")
        e("v_addc_co_u32 v3, vcc, 0, v3, vcc")
        e("v_cmp_gt_u32 vcc, (L_END-%s+4095)/4096, v0" % name)
        e("s_nop 1")
        e("s_and_saveexec_b64 s[74:75], vcc")
        e("global_load_dword v163, v[2:3], off")
        e("s_mov_b64 exec, -1")
        e(f"{sk}:")
    if opt.get("pfc", 1) and not opt.get("unear", 1): pfcode()
    PFU = opt.get("pfu", 0)
    def pf_x():
        e("""v_and_b32 v2, 31, v0
        v_lshlrev_b32 v2, 10, v2
        v_lshrrev_b32 v3, 5, v0
        v_lshl_add_u32 v2, v3, 7, v2
        s_lshl_b32 s64, s20, 17
        s_lshl_b32 s65, s22, 15
        s_add_u32 s64, s64, s65
        s_lshl_b32 s65, s19, 8
        s_add_u32 s64, s64, s65""")
        e(f"buffer_load_dword v160, v2, {SX}, s64 offen")
    def pf_w():
        L1, L2, L3, LD = lab("PW"), lab("PW"), lab("PW"), lab("PW")
        e("""s_and_b32 s64, s20, 7
        v_lshlrev_b32 v2, 3, v0
        v_add_u32 v2, s64, v2
        v_mul_u32_u24 v3, 3584, v2
        v_mul_u32_u24 v2, 3072, v2
        s_lshl_b32 s64, s23, 7""")
        e("s_cmp_eq_u32 s19, 1"); e(f"s_cbranch_scc1 {L1}")
        e("s_cmp_eq_u32 s19, 3"); e(f"s_cbranch_scc1 {L3}")
        e("s_add_u32 s65, s64, 1024")
        e("s_lshr_b32 s64, s64, 1")
        e("s_cmp_eq_u32 s19, 0")
        e("s_cselect_b32 s64, s65, s64")
        e(f"buffer_load_dword v161, v2, {SW}, s64 offen")
        e(f"s_branch {LD}")
        e(f"{L3}:")
        e("s_mul_i32 s64, s23, 96")
        e("s_add_u32 s64, s64, 2048")
        e(f"buffer_load_dword v162, v3, {S1}, s64 offen offset:92")
        e(f"{L1}:")
        e(f"buffer_load_dword v161, v3, {S1}, s64 offen")
        e(f"{LD}:")
    if PFU == 1: pf_x(); pf_w()
    UL = opt.get("ul", -1)
    for _ in range(UL + 1): e("s_barrier")
    e(f"v_mov_b32 v{VE}, 0")
    e(f"s_mov_b32 s3, {WS_EP:#x}")
    e.vmem(f"buffer_load_dword v{VE}, v{VE}, {SS}, s3 offen sc1", "rs")
    e(f"""v_lshrrev_b32 v4, 5, v0
    v_and_b32 v6, 31, v0
    v_lshlrev_b32 v6, 4, v6
    v_lshl_add_u32 v6, v4, 10, v6
    v_lshlrev_b32 v{VE+1}, 4, v4
    s_lshl_b32 s64, s20, 7
    s_lshl_b32 s65, s23, 3
    s_add_u32 s64, s64, s65
    s_lshl_b32 s65, s19, 1
    s_add_u32 s64, s64, s65
    s_lshl_b32 s65, s64, 10""")
    e.vmem(f"buffer_load_dwordx4 {vr(L0,4)}, v6, {SX}, s65 offen {UNT}", "rs")
    e.vmem(f"buffer_load_dwordx4 {vr(L0+4,4)}, v6, {SX}, s65 offen offset:512 {UNT}", "rs")
    e("""s_add_u32 s66, s23, 8
    s_add_u32 s67, s23, 24
    s_cmp_eq_u32 s19, 1
    s_cselect_b32 s66, s67, s66
    s_add_u32 s67, s23, 32
    s_cmp_lt_u32 s23, 8
    s_cselect_b32 s67, s23, s67
    s_cmp_eq_u32 s19, 2
    s_cselect_b32 s66, s67, s66
    s_add_u32 s67, s23, 48
    s_cmp_eq_u32 s19, 3
    s_cselect_b32 s66, s67, s66
    v_lshrrev_b32 v2, 3, v0
    v_lshlrev_b32 v3, 4, v5
    s_cmp_ge_u32 s66, 52
    s_cbranch_scc1 L_CSD
    s_lshl_b32 s67, s66, 7
    s_cmp_ge_u32 s66, 24
    s_cbranch_scc1 L_CSW
    v_mul_u32_u24 v4, 3072, v2
    v_add_u32 v4, v4, v3""")
    e(f"s_mul_i32 s68, s20, {32*3072}")
    e("s_add_u32 s68, s68, s67")
    for t in range(4):
        e(f"buffer_load_dwordx4 {vr(CL+4*t,4)}, v4, {SW}, s68 offen {UNT}")
        if t < 3: e(f"s_add_u32 s68, s68, {8*3072}")
    e("s_branch L_CSD")
    e("L_CSW:")
    e("v_mul_u32_u24 v4, 3584, v2")
    e("v_add_u32 v4, v4, v3")
    e(f"s_mul_i32 s68, s20, {32*3584}")
    e("s_add_u32 s68, s68, s67")
    e(f"s_sub_u32 s68, s68, {24*128}")
    for t in range(4):
        e(f"buffer_load_dwordx4 {vr(CL+4*t,4)}, v4, {S1}, s68 offen {UNT}")
        if t < 3: e(f"s_add_u32 s68, s68, {8*3584}")
    e("L_CSD:")
    if opt.get("unear", 1):
        if opt.get("pfc", 1): pfcode()
        i0 = e.lines.index("L_UTIL:")
        blk = e.lines[i0 + 1:] + ["  s_branch L_UTIL"]
        del e.lines[i0 + 1:]
        j0 = e.lines.index("  UINIT_HERE")
        e.lines[j0:j0 + 1] = blk
    if PFU == 2:
        e("s_mov_b32 s74, s64")
        pf_x(); pf_w()
        e("s_mov_b32 s64, s74")
    e(f"""s_mov_b32 s69, 0xffff0000
    s_mov_b32 s70, 0x3b000000
    s_lshl_b32 s64, s64, 4
    s_add_u32 s64, s64, {WS_RS:#x}
    v_lshlrev_b32 v14, 4, v0
    s_lshl_b32 s71, s23, 8
    s_add_u32 s72, s71, {512*4}
    v_add_u32 v15, s72, v14
    s_add_u32 s72, s71, {1536*4 - 256}
    v_add_u32 v2, s72, v14
    v_cmp_le_u32 vcc, 16, v0
    s_lshl_b32 s72, s23, 7
    s_sub_u32 s72, s72, 512
    v_cndmask_b32 v15, v15, v2, vcc
    v_add_u32 v2, s72, v14
    v_cmp_le_u32 vcc, 32, v0
    s_mul_i32 s72, s23, 192
    s_add_u32 s72, s72, {2560*4 - 640}
    v_cndmask_b32 v15, v15, v2, vcc
    v_min_u32 v2, 51, v0
    v_lshlrev_b32 v2, 4, v2
    v_add_u32 v2, s72, v2
    v_cmp_le_u32 vcc, 40, v0
    s_nop 1
    v_cndmask_b32 v15, v15, v2, vcc""")
    def piece(n):
        if n == 0:
            e("s_cmp_ge_u32 s66, 52")
            e("s_cbranch_scc1 L_P0A")
            e(f"s_waitcnt vmcnt({4 + (2 if PFU == 2 else 0)})")
            e("s_branch L_P0B")
            e("L_P0A:")
            e(f"s_waitcnt vmcnt({2 if PFU == 2 else 0})")
            e("L_P0B:")
            for q in range(8):
                e(f"v_lshlrev_b32 v{U+2*q}, 16, v{L0+q}")
                e(f"v_and_b32 v{U+2*q+1}, s69, v{L0+q}")
            for q in range(4): e(f"v_add_f32 v{A+q}, v{U+q}, v{U+4+q}")
            for t in range(2, 4):
                for q in range(4): e(f"v_add_f32 v{A+q}, v{A+q}, v{U+4*t+q}")
            e(f"v_add_f32 v{A}, v{A}, v{A+1}")
            e(f"v_add_f32 v{A+2}, v{A+2}, v{A+3}")
            e(f"v_add_f32 v{A}, v{A}, v{A+2}")
            reduce32(e, [A], [A + 1])
            e(f"v_mul_f32 v{A}, s70, v{A}")
            e(f"v_add_u32 v{A+6}, {EPC:#x}, v{VE}")
            e(f"v_mov_b32 v2, {L_MISC}")
            e("v_mov_b32 v3, 0")
            e(f"ds_write_b32 v2, v{A+6}")
            e("v_lshl_add_u32 v2, v0, 2, v2")
            e("s_mov_b64 exec, -2")
            e("ds_write_b32 v2, v3")
            e("s_mov_b64 exec, -1")
        if n == 1:
            for q in range(16): e(f"v_sub_f32 v{U+q}, v{U+q}, v{A}")
            for q in range(4): e(f"v_mul_f32 v{L0+q}, v{U+q}, v{U+q}")
            for q in range(4, 16): e(f"v_fmac_f32 v{L0+(q&3)}, v{U+q}, v{U+q}")
            e(f"v_add_f32 v{L0}, v{L0}, v{L0+1}")
            e(f"v_add_f32 v{L0+2}, v{L0+2}, v{L0+3}")
            e(f"v_add_f32 v{A+4}, v{L0}, v{L0+2}")
            reduce32(e, [A + 4], [A + 5])
            e(f"v_mov_b32 v{A+5}, 0x3727c5ac")
            e(f"v_fma_f32 v{A+4}, v{A+4}, s70, v{A+5}")
            e(f"v_rsq_f32 v{A+4}, v{A+4}")
            e(f"v_readfirstlane_b32 s61, v{A+6}")
            e(f"v_mov_b32 v{A+7}, v{A+6}")
            e(f"v_mul_f32 v{A+5}, v{A}, v{A+4}")
            e(f"v_sub_f32 v{A+5}, 0, v{A+5}")
            e("s_mov_b32 s71, 0xff")
            e(f"v_bfi_b32 v{A+4}, s71, v{A+6}, v{A+4}")
            e(f"v_bfi_b32 v{A+5}, s71, v{A+6}, v{A+5}")
            e("s_mov_b32 exec_lo, 1")
            e("s_mov_b32 exec_hi, 1")
            e(f"buffer_store_dwordx4 {vr(A+4,4)}, v{VE+1}, {SS}, s64 offen sc1")
            e("s_mov_b64 exec, -1")
        if n == 2:
            e(f"s_waitcnt vmcnt({1 + (2 if PFU == 2 else 0)})")
            for q in range(4):
                e(f"v_lshlrev_b32 v{C0+2*q}, 16, v{CL+q}")
                e(f"v_and_b32 v{C0+2*q+1}, s69, v{CL+q}")
            for t in range(1, 4):
                for q in range(4):
                    e(f"v_lshlrev_b32 v{C1+2*q}, 16, v{CL+4*t+q}")
                    e(f"v_and_b32 v{C1+2*q+1}, s69, v{CL+4*t+q}")
                for q in range(8): e(f"v_add_f32 v{C0+q}, v{C0+q}, v{C1+q}")
            e("s_nop 1")
            for q in range(8): e(f"v_add_f32_dpp v{C0+q}, v{C0+q}, v{C0+q} row_ror:8 row_mask:0xf bank_mask:0xf")
            e("s_mov_b32 s72, 0xff00ff00")
            e("s_mov_b32 s73, 0xff00ff00")
            for q in range(4): e(f"v_cndmask_b32 v{C0+q}, v{C0+q}, v{C0+4+q}, s[72:73]")
            for sw in ("v_permlane16_swap_b32", "v_permlane32_swap_b32"):
                for q in range(4): e(f"v_mov_b32 v{C1+q}, v{C0+q}")
                e("s_nop 0")
                for q in range(4): e(f"{sw} v{C0+q}, v{C1+q}")
                for q in range(4): e(f"v_add_f32 v{C0+q}, v{C0+q}, v{C1+q}")
            e("s_mov_b32 s71, 0xff")
            e(f"v_bfe_u32 v{C1+2}, v0, 3, 1")
            for q in range(4): e(f"v_bfi_b32 v{C0+q}, s71, v{A+6}, v{C0+q}")
            e(f"v_lshlrev_b32 v{C1+1}, 5, v5")
            e(f"v_lshl_add_u32 v{C1+1}, v{C1+2}, 4, v{C1+1}")
            e(f"s_mul_i32 s71, s20, {3328*4}")
            e("s_lshl_b32 s72, s66, 8")
            e("s_add_u32 s71, s71, s72")
            e(f"s_add_u32 s71, s71, {WS_CS:#x}")
            e("s_cmp_ge_u32 s66, 52")
            e("s_cbranch_scc1 L_P2S")
            e("s_mov_b64 exec, 0xffff")
            e(f"buffer_store_dwordx4 {vr(C0,4)}, v{C1+1}, {SS}, s71 offen sc1")
            e("s_mov_b64 exec, -1")
            e("L_P2S:")
    def kvsetup():
        e(f"""v_and_b32 v10, 3, v0
        v_min_u32 v10, 2, v10
        s_sub_u32 s76, s20, 2
        v_add_u32 v10, s76, v10
        v_max_i32 v10, 0, v10
        v_lshlrev_b32 v10, 11, v10
        v_bfe_u32 v11, v0, 2, 1
        v_lshl_add_u32 v10, v11, 10, v10
        s_lshr_b32 s76, s23, 1
        s_lshl_b32 s76, s76, 7
        s_add_u32 s76, s76, {WS_F1:#x}
        v_mov_b32 v11, s61
        v_lshlrev_b32 v1, 4, v0
        s_lshr_b32 s52, s19, 1
        s_lshl_b32 s53, s23, 1
        s_add_u32 s53, s53, s52
        s_lshl_b32 s53, s53, 6
        s_and_b32 s54, s19, 1
        s_mul_i32 s54, s54, 6
        s_lshl_b32 s55, s20, 2
        s_add_u32 s54, s54, s55
        s_mul_i32 s55, s19, 6144""")
    def kvdma(lo=0, hi=6):
        for t in range(lo, hi):
            e(f"s_add_u32 s68, s54, {t}")
            e("s_sub_i32 s68, s68, 8")
            e("s_max_i32 s68, s68, 0")
            e("s_add_u32 s68, s68, s53")
            e("s_lshl_b32 s68, s68, 10")
            e(f"s_add_u32 m0, s55, {L_K + t*1024}")
            e("s_add_u32 s69, s68, 0x200000")
            e(f"buffer_load_dwordx4 v1, {SS}, s68 offen sc1 lds")
            e(f"s_add_u32 m0, s55, {L_V + t*1024}")
            e("s_nop 0")
            e(f"buffer_load_dwordx4 v1, {SS}, s69 offen sc1 lds")
    G0 = 84
    def gather():
        e(f"s_mov_b32 s71, {WS_CS:#x}")
        for g in range(16):
            e(f"buffer_load_dwordx4 {vr(G0+4*g,4)}, v15, {SS}, s71 offen sc1")
            e(f"s_add_u32 s71, s71, {3328*4}")
        e("s_lshl_b32 s71, s20, 11")
        e(f"s_add_u32 s71, s71, {WS_RS:#x}")
        for h in range(2):
            e(f"buffer_load_dwordx4 {vr(G0+64+4*h,4)}, v14, {SS}, s71 offen offset:{h*1024} sc1")
    PK = opt.get("pk", [0, 0, 1]); GK = opt.get("gk", 4); CK = opt.get("ck", 6)
    for n_, kk_ in enumerate(PK):
        if kk_ < 0: piece(n_)
    for k in range(UL + 1, 9):
        if k == PK[0] + 2: e("s_waitcnt lgkmcnt(0)")
        bstamp(k)
        e("s_barrier")
        for n_, kk_ in enumerate(PK):
            if kk_ == k: piece(n_)
        PW0 = opt.get("pfw", 0)
        if PW0 and PW0 <= k < 16:
            if k == PW0:
                srd(e, 44, 14, 1792 * 1024)
                srd(e, 48, 8, 512 * 1024)
                e("s_lshr_b32 s78, s2, 3")
                e("s_mul_i32 s79, s78, 57344")
                e("s_mul_i32 s3, s19, 14336")
                e("s_add_u32 s79, s79, s3")
                e("s_lshl_b32 s78, s78, 14")
                e("s_lshl_b32 s3, s19, 12")
                e("s_add_u32 s78, s78, s3")
            per = -(-18 // (opt.get("pfwe", 16) - PW0))
            for j in range(per * (k - PW0), min(18, per * (k - PW0 + 1))):
                if j < 14:
                    e(f"s_add_u32 s3, s79, {j*1024}")
                    e(f"buffer_load_dwordx4 v[120:123], v14, {S2}, s3 offen")
                else:
                    e(f"buffer_load_dwordx4 v[120:123], v14, {SO}, s78 offen offset:{(j-14)*1024}")
        if opt.get("pfl2", 0) and 8 <= k <= 10:
            if k == 8:
                srd(e, 44, 14, 1792 * 1024)
                srd(e, 48, 8, 512 * 1024)
                e("v_lshlrev_b32 v12, 7, v0")
                e("s_lshr_b32 s78, s2, 3")
            j = k - 8
            sk = lab("NOP2")
            if j < 2:
                e("s_mul_i32 s71, s78, 57344")
                e("s_lshl_b32 s72, s19, 13")
                e("s_add_u32 s71, s71, s72")
                if j == 1:
                    e("s_cmp_eq_u32 s19, 3")
                    e(f"s_cbranch_scc1 {sk}")
                    e("s_add_u32 s71, s71, 32768")
                e(f"buffer_load_dword v13, v12, {S2}, s71 offen")
            else:
                e("s_cmp_ge_u32 s19, 2")
                e(f"s_cbranch_scc1 {sk}")
                e("s_lshl_b32 s71, s78, 14")
                e("s_lshl_b32 s72, s19, 13")
                e("s_add_u32 s71, s71, s72")
                e(f"buffer_load_dword v13, v12, {SO}, s71 offen")
            e(f"{sk}:")
        if UST and k == 8:
            e(f"""s_lshl_b32 s3, s19, 12
            v_add_u32 v2, s3, v14
            v_add_u32 v3, {W1A[7]}, v2
            v_add_u32 v2, {W1A[6]}, v2""")
            for s_ in range(8): e(f"ds_read_b128 {vr(16+4*s_,4)}, v{2+(s_>>2)} offset:{(s_&3)*1024}")
            e(f"""s_lshl_b32 s64, s20, 2
            s_add_u32 s64, s64, s19
            s_lshl_b32 s65, s23, 8
            s_add_u32 s65, s65, s64
            s_lshl_b32 s65, s65, 10
            s_mul_i32 s66, s64, 112
            s_lshl_b32 s3, s23, 2
            s_add_u32 s66, s66, s3
            s_lshl_b32 s66, s66, 10
            s_add_u32 s66, s66, {WS_H:#x}
            s_waitcnt lgkmcnt(0)""")
        if UST and k >= 8:
            SP = opt.get("sper", 2)
            for s_ in range(SP * (k - 8), min(8, SP * (k - 7))):
                if s_ < 4: e(f"s_add_u32 s3, s65, {WS_KV + s_*0x10000:#x}")
                else: e(f"s_add_u32 s3, s66, {(s_-4)*1024}")
                e(f"buffer_store_dwordx4 {vr(16+4*s_,4)}, v14, {SS}, s3 offen sc1")
            if k == opt.get("ugk", 12): signal(4, 3, WS_F1, 2, 3, max(0, min(8, SP * (k - 7)) - 4))
            if k == opt.get("ugh", 15): signal(24, 3, WS_F1H, 2, 3)
        if k == opt.get("pf2k", 5) and opt.get("pf2", 1):
            sk = lab("NOPF")
            e("s_cmp_lg_u32 s19, 1")
            e(f"s_cbranch_scc1 {sk}")
            srd(e, 44, 14, 1792 * 1024)
            srd(e, 48, 8, 512 * 1024)
            e("v_lshlrev_b32 v2, 7, v0")
            e("s_mul_i32 s71, s2, 7168")
            e("s_mov_b32 exec_hi, 0xffffff")
            e(f"buffer_load_dword v160, v2, {S2}, s71 offen")
            e("s_lshl_b32 s71, s2, 11")
            e("s_mov_b64 exec, 0xffff")
            e(f"buffer_load_dword v161, v2, {SO}, s71 offen")
            e("s_mov_b64 exec, -1")
            e(f"{sk}:")
        if k in (GK, CK, CK + 1):
            sk = lab("NOPOST")
            e("s_cmp_lg_u32 s19, 0")
            e(f"s_cbranch_scc1 {sk}")
            if k == GK: gather()
            if k == CK:
                e("s_mov_b32 s73, 0x20000")
                e("L_CHK:")
                e("s_waitcnt vmcnt(0)")
                e(f"v_xor_b32 v2, s61, v{G0}")
                for i in list(range(G0 + 1, G0 + 66)) + [G0 + 68, G0 + 69]: e(f"v_bitop3_b32 v2, v2, v{i}, s61 bitop3:0xf6")
                e("v_and_b32 v2, 0xff, v2")
                for i in (66, 67, 70, 71): e(f"v_bitop3_b32 v2, v2, v{G0+i}, s61 bitop3:0xf6")
                e("v_cmp_ne_u32 vcc, 0, v2")
                e("s_sub_u32 s73, s73, 1")
                e("s_cmp_eq_u32 s73, 0")
                e("s_cbranch_scc1 L_GOT")
                e("s_cmp_eq_u64 vcc, 0")
                e("s_cbranch_scc1 L_GOT")
                gather()
                e("s_branch L_CHK")
                e("L_GOT:")
            if k == CK + 1:
                e("s_mov_b32 s71, 0xffffff00")
                for i in list(range(G0, G0 + 66)) + [G0 + 68, G0 + 69]: e(f"v_and_b32 v{i}, s71, v{i}")
                for g in range(1, 16):
                    for h in range(4): e(f"v_add_f32 v{G0+h}, v{G0+h}, v{G0+4*g+h}")
                e(f"v_add_u32 v2, {L_ST}, v14")
                e(f"ds_write_b128 v2, {vr(G0+64,4)}")
                e(f"ds_write_b128 v2, {vr(G0+68,4)} offset:1024")
                e(f"ds_write_b128 v2, {vr(G0,4)} offset:2048")
                e("s_waitcnt lgkmcnt(0)")
                ldsadd(20, 2, 3)
            e(f"{sk}:")
    bflush()
    stamp(3)
    e.vm = []
    e("""s_lshr_b32 s52, s19, 1
    s_lshl_b32 s52, s52, 5
    s_and_b32 s62, s19, 1
    s_lshl_b32 s3, s62, 2
    s_add_u32 s52, s52, s3""")
    esetup()
    for c in LATE:
        ldswait(DONE + 4 * FIN["W2pre"][c], 4, 2, 3)
        issueW2(c)
    kvsetup()
    e.vmem(f"buffer_load_dword v4, v10, {SS}, s76 offen sc1", "kvf")
    for c in LATE:
        e.vwait(("w2", c))
        ldsadd(FULL + 4 * (8 + c), 2, 3)
    ldswait(DONE + 4 * FIN["KVpre"], 4, 2, 3)
    apoll_check(10, "s76", 11, 4, "kvf")
    stamp(4)
    kvdma()
    ldswait(DONE + 4 * FIN["Qpre"], 4, 2, 3)
    e(f"v_add_u32 v2, {L_ONE}, v1")
    for q in range(4): e(f"v_mov_b32 v{8+q}, 0x3f803f80")
    e("ds_write_b128 v2, v[8:11]")
    smasks()
    e("v_mov_b32 v6, 0xffff")
    e("v_mov_b32 v7, 0xffff0000")
    for q in range(8):
        e(f"v_cndmask_b32 v{140+q}, 0, v6, s[{64+4*q}:{65+4*q}]")
        e(f"v_cndmask_b32 v12, 0, v7, s[{66+4*q}:{67+4*q}]")
        e(f"v_or_b32 v{140+q}, v{140+q}, v12")
    e("ds_write_b128 v2, v[140:143] offset:1024")
    e("ds_write_b128 v2, v[144:147] offset:2048")
    e("s_add_u32 s96, s19, 4")
    e("s_mov_b32 s97, 0")
    e("s_waitcnt vmcnt(0) lgkmcnt(0)")
    ldsadd(16, 2, 3)
    stamp(5)

    e("L_ATT:")
    e.vm = []; e.lg = []
    Q = 8
    K = lambda u: 12 + 4 * u
    V = lambda u, g: 48 + ((u & 1) * 2 + g) * 4
    S = lambda b: 64 + 16 * b
    P, O = 112, 120
    VNEG, M0_, M1_, NM, MK = 136, 137, 138, 139, 140
    VA, VSTR = 148, 149
    e(f"v_mov_b32 v{VNEG}, {NEG:#x}")
    e(f"""s_and_b32 s3, s96, 3
    s_lshl_b32 s26, s20, 2
    s_add_u32 s26, s26, s3
    s_add_u32 s25, s26, 1
    s_min_u32 s25, s25, 9
    s_lshr_b32 s62, s96, 2
    s_lshl_b32 s27, s23, 1
    s_add_u32 s27, s27, s62
    v_lshlrev_b32 v1, 4, v0
    s_lshl_b32 s63, s96, 10
    s_add_u32 s63, s63, {L_Q}
    v_add_u32 v3, s63, v1
    s_mul_i32 s62, s62, 12288
    s_lshl_b32 s3, s3, 10
    s_add_u32 s3, s3, s62
    s_add_u32 s62, s3, {L_K}
    v_add_u32 v4, s62, v1
    v_lshrrev_b32 v5, 5, v0
    v_lshlrev_b32 v5, 2, v5
    v_bfe_u32 v6, v0, 2, 2
    v_add_u32 v5, v5, v6
    v_lshlrev_b32 v5, 4, v5
    v_bfe_u32 v6, v0, 1, 1
    v_lshl_add_u32 v5, v6, 9, v5
    v_and_b32 v6, 1, v0
    v_lshl_add_u32 v5, v6, 3, v5
    s_add_u32 s3, s3, {L_V + 8192}
    v_add_u32 v5, s3, v5
    v_mov_b32 v6, {L_ONE}
    v_mov_b32 v7, 1024
    s_mov_b32 s98, 0xffff
    s_mov_b32 s99, 0xffff
    v_cndmask_b32 v5, v6, v5, s[98:99]
    v_cndmask_b32 v{VSTR}, 0, v7, s[98:99]
    v_lshlrev_b32 v7, 3, v{VSTR}
    v_sub_u32 v{VA+2}, v5, v7""")
    stamp(6)
    def owed():
        sk = lab("NOOWE")
        e("s_cmp_eq_u32 s97, 0")
        e(f"s_cbranch_scc1 {sk}")
        keepl = list(e.lg)
        signal(12, 3, WS_F1B, 152, 153)
        e.lg = keepl
        e("s_mov_b32 s97, 0")
        e(f"{sk}:")
    if opt.get("owu", 1) == 0: owed()
    ldswait(16, 8, 2, 6)
    e(f"s_setprio {opt.get('aprio', 0)}")
    stamp(7)
    def fill(buf, val, diag):
        for j in range(16):
            a, b = (f"v{VNEG}", val) if diag else (val, f"v{VNEG}")
            e(f"v_cndmask_b32 v{S(buf)+j}, {a}, {b}, s[{64+2*j}:{65+2*j}]")
    def smfma(u, buf, cin):
        e.lwait(("K", u))
        e(f"v_mfma_f32_32x32x16_bf16 {vr(S(buf),16)}, {vr(K(u),4)}, {vr(Q,4)}, {cin}")
    def vread(u, par=None, va=None):
        if va is None:
            if u == 0: e(f"v_mov_b32 v{VA}, v5")
            else: e(f"v_sub_u32 v{VA}, v{VA}, v{VSTR}")
            va = VA
        for g in range(2):
            r = V(u if par is None else par, g)
            for h in range(2): e.lds(f"ds_read_b64_tr_b16 v[{r+2*h}:{r+2*h+1}], v{va} offset:{g*256 + h*128}", ("V", u))
    PD, PFR = S(2), S(2) + 8
    if opt.get("noatt"): e("s_branch L_P2DONE")
    e(f"v_add_u32 v2, {L_ONE}, v1")
    e.lds(f"ds_read_b128 {vr(Q,4)}, v3", "Q")
    for u in [0, 8, 1]: e.lds(f"ds_read_b128 {vr(K(u),4)}, v4 offset:{(8-u)*1024}", ("K", u))
    vread(0); vread(8, 1, VA + 2)
    smfma(0, 0, "0"); smfma(8, 2, "0"); smfma(1, 1, "0")
    e.lwait(("V", 0))
    e.lds(f"ds_read_b128 {vr(MK,4)}, v2 offset:1024", "MK")
    e.lds(f"ds_read_b128 {vr(MK+4,4)}, v2 offset:2048", "MK")
    for u in range(2, 8): e.lds(f"ds_read_b128 {vr(K(u),4)}, v4 offset:{(8-u)*1024}", ("K", u))
    e("s_nop 2")
    s0 = S(0)
    for j in range(16): e(f"v_cndmask_b32 v{s0+j}, v{S(2)+j}, v{s0+j}, s[{64+2*j}:{65+2*j}]")
    for j in range(16): e(f"v_exp_f32 v{s0+j}, v{s0+j}")
    for q in range(8): e(f"v_cvt_pk_bf16_f32 v{P+q}, v{s0+2*q}, v{s0+2*q+1}")
    e.lwait("MK")
    for q in range(8): e(f"v_and_b32 v{PD+q}, v{MK+q}, v{P+q}")
    e.lwait(("V", 8))
    e(f"v_mfma_f32_32x32x16_bf16 {vr(O,16)}, {vr(V(0,0),4)}, {vr(PD,4)}, 0")
    for q in range(8): e(f"v_bfi_b32 v{PFR+q}, v{MK+q}, 0, v{P+q}")
    e(f"v_mfma_f32_32x32x16_bf16 {vr(O,16)}, {vr(V(0,1),4)}, {vr(PD+4,4)}, {vr(O,16)}")
    e("s_cmp_lt_u32 s25, 9")
    e("s_cbranch_scc1 L_NOFAR")
    e(f"v_mfma_f32_32x32x16_bf16 {vr(O,16)}, {vr(V(1,0),4)}, {vr(PFR,4)}, {vr(O,16)}")
    e(f"v_mfma_f32_32x32x16_bf16 {vr(O,16)}, {vr(V(1,1),4)}, {vr(PFR+4,4)}, {vr(O,16)}")
    e("L_NOFAR:")
    vread(1)
    e("s_cmp_eq_u32 s25, 1")
    e("s_cbranch_scc1 L_FCHK")
    def pv(u, g): e(f"v_mfma_f32_32x32x16_bf16 {vr(O,16)}, {vr(V(u,g),4)}, {vr(P+4*g,4)}, {vr(O,16)}")
    for u in range(1, 8):
        s_ = S(u % 2)
        if u + 1 <= 7: smfma(u + 1, (u + 1) % 2, "0")
        for j in range(2): e(f"v_exp_f32 v{s_+j}, v{s_+j}")
        if u > 1: pv(u - 1, 1)
        if u + 1 <= 7: vread(u + 1)
        for j in range(2, 8): e(f"v_exp_f32 v{s_+j}, v{s_+j}")
        for q in range(4): e(f"v_cvt_pk_bf16_f32 v{P+q}, v{s_+2*q}, v{s_+2*q+1}")
        for j in range(8, 10): e(f"v_exp_f32 v{s_+j}, v{s_+j}")
        e.lwait(("V", u))
        pv(u, 0)
        for j in range(10, 16): e(f"v_exp_f32 v{s_+j}, v{s_+j}")
        for q in range(4, 8): e(f"v_cvt_pk_bf16_f32 v{P+q}, v{s_+2*q}, v{s_+2*q+1}")
        if u == opt.get("owu", 1): owed()
        if u < 7:
            e(f"s_cmp_eq_u32 s25, {u+1}")
            e(f"s_cbranch_scc1 L_FX{u&1}")
    e("L_FX1:")
    e("s_nop 1")
    pv(1, 1)
    e("s_branch L_FCHK")
    e("L_FX0:")
    e("s_nop 1")
    pv(0, 1)
    e("L_FCHK:")
    if opt.get("owu", 1): owed()
    e("s_mov_b32 s52, 0x1f800000")
    e("s_mov_b32 s53, 0x5f800000")
    e("s_mov_b32 s3, 0x7f800000")
    e("s_waitcnt lgkmcnt(0)")
    e("s_nop 7")
    e(f"v_add_f32 v6, |v{O}|, |v{O+1}|")
    e(f"v_add_f32 v7, |v{O+2}|, |v{O+3}|")
    e(f"v_add_f32 v2, |v{O+4}|, |v{O+5}|")
    e(f"v_add_f32 v3, |v{O+6}|, |v{O+7}|")
    e(f"v_cmp_le_f32 s[62:63], s52, v{O+8}")
    e(f"v_cmp_ge_f32 s[98:99], s53, v{O+8}")
    e("v_add_f32 v6, v6, v7")
    e("v_add_f32 v2, v2, v3")
    e("v_add_f32 v6, v6, v2")
    e("s_and_b64 s[62:63], s[62:63], s[98:99]")
    e("v_cmp_gt_f32 vcc, s3, v6")
    e("s_nop 0")
    e("s_and_b64 s[62:63], s[62:63], vcc")
    e("s_cmp_eq_u64 s[62:63], -1")
    if opt.get("forceslow"): e("s_cmp_eq_u32 s62, 12345")
    e("s_cbranch_scc1 L_P2DONE")
    e.lg = []
    e(f"v_mov_b32 v{M0_}, v{VNEG}")
    e(f"v_mov_b32 v{M1_}, v{VNEG}")
    fill(0, "0", True)
    e("s_nop 1")
    smfma(0, 0, vr(S(0), 16))
    smfma(1, 1, "0")
    for u in range(9):
        if u + 2 <= 8:
            if u + 2 == 8:
                fill((u + 2) % 3, "0", False); e("s_nop 1")
                smfma(u + 2, (u + 2) % 3, vr(S((u + 2) % 3), 16))
            else:
                smfma(u + 2, (u + 2) % 3, "0")
        if u == 0: e("s_nop 9")
        for q in range(8):
            m = M0_ + (q & 1)
            e(f"v_max3_f32 v{m}, v{S(u%3)+2*q}, v{S(u%3)+2*q+1}, v{m}")
        if u < 8:
            e(f"s_cmp_eq_u32 s25, {u+1}")
            e("s_cbranch_scc1 L_P1DONE")
    e("L_P1DONE:")
    vread(0)
    e(f"v_max_f32 v{M0_}, v{M0_}, v{M1_}")
    e(f"v_mov_b32 v{M1_}, v{M0_}")
    e("s_nop 1")
    e(f"v_permlane32_swap_b32 v{M0_}, v{M1_}")
    e("s_nop 1")
    e(f"v_max_f32 v{M0_}, v{M0_}, v{M1_}")
    e(f"v_sub_f32 v{NM}, 0, v{M0_}")
    e("s_nop 3")
    CB = S(2)
    for j in range(16): e(f"v_mov_b32 v{CB+j}, v{NM}")
    fill(0, f"v{NM}", True)
    e("s_nop 1")
    smfma(0, 0, vr(S(0), 16))
    for u in range(9):
        s = S(u % 2)
        if u + 1 <= 8:
            nb_ = (u + 1) % 2
            if u + 1 == 8:
                fill(nb_, f"v{NM}", False); e("s_nop 1")
                smfma(u + 1, nb_, vr(S(nb_), 16))
            else:
                smfma(u + 1, nb_, vr(CB, 16))
            vread(u + 1)
        if u == 0: e("s_nop 6")
        for j in range(8): e(f"v_exp_f32 v{s+j}, v{s+j}")
        for q in range(4): e(f"v_cvt_pk_bf16_f32 v{P+q}, v{s+2*q}, v{s+2*q+1}")
        for j in range(8, 16): e(f"v_exp_f32 v{s+j}, v{s+j}")
        e.lwait(("V", u))
        e(f"v_mfma_f32_32x32x16_bf16 {vr(O,16)}, {vr(V(u,0),4)}, {vr(P,4)}, {'0' if u == 0 else vr(O,16)}")
        for q in range(4, 8): e(f"v_cvt_pk_bf16_f32 v{P+q}, v{s+2*q}, v{s+2*q+1}")
        e("s_nop 1")
        e(f"v_mfma_f32_32x32x16_bf16 {vr(O,16)}, {vr(V(u,1),4)}, {vr(P+4,4)}, {vr(O,16)}")
        if u < 8:
            e(f"s_cmp_eq_u32 s25, {u+1}")
            e("s_cbranch_scc1 L_P2X")
    e("L_P2X:")
    e("s_waitcnt lgkmcnt(0)")
    e("s_nop 12")
    e("L_P2DONE:")
    e("s_lshl_b32 s3, s26, 5")
    e("s_add_u32 s3, s3, s27")
    e("s_lshl_b32 s3, s3, 10")
    e(f"s_add_u32 s3, s3, {WS_O:#x}")
    e(f"v_rcp_f32 v7, v{O+8}")
    e("s_nop 0")
    for j in range(8): e(f"v_mul_f32 v{O+j}, v{O+j}, v7")
    for q in range(4): e(f"v_cvt_pk_bf16_f32 v{P+q}, v{O+2*q}, v{O+2*q+1}")
    e(f"buffer_store_dwordx4 {vr(P,4)}, v1, {SS}, s3 offen {'' if opt.get('hplain') else 'sc1'}")
    gate('att')
    stamp(8)
    signal(8, 7, WS_F2)
    stamp(9)
    e("s_cmp_lg_u32 s2, 0")
    e("s_cbranch_scc1 L_FIN")
    e("s_cmp_lg_u32 s96, 1")
    e("s_cbranch_scc1 L_FIN")
    e("v_lshlrev_b32 v6, 7, v0")
    e("s_mov_b32 s63, 0x20000")
    e("L_BCHK:")
    for g in range(4):
        e(f"s_mov_b32 s62, {WS_F2 + g*8192:#x}")
        e(f"buffer_load_dword v{8+g}, v6, {SS}, s62 offen sc1")
    e("s_waitcnt vmcnt(0)")
    e("v_xor_b32 v7, s61, v8")
    for i in range(9, 12): e(f"v_bitop3_b32 v7, v7, v{i}, s61 bitop3:0xf6")
    e("v_cmp_ne_u32 vcc, 0, v7")
    e("s_sub_u32 s63, s63, 1")
    e("s_cmp_eq_u32 s63, 0")
    e("s_cbranch_scc1 L_FIN")
    e("s_cmp_lg_u64 vcc, 0")
    e("s_cbranch_scc1 L_BCHK")
    e("s_mov_b64 exec, 1")
    e("v_mov_b32 v6, 0")
    e("v_mov_b32 v7, s61")
    e(f"s_mov_b32 s62, {WS_EP:#x}")
    e(f"buffer_store_dword v7, v6, {SS}, s62 offen sc1")
    e("s_mov_b64 exec, -1")
    e("L_FIN:")
    e.vm = []; e.lg = []
    srd(e, 28, 10, 2048 * 1024)
    e(f"""v_lshrrev_b32 v7, 3, v0
    v_and_b32 v14, 7, v0
    v_lshlrev_b32 v8, 4, v14
    v_lshl_add_u32 v2, v7, 10, v8
    s_lshl_b32 s62, s58, 16
    s_lshl_b32 s3, s96, 13
    s_add_u32 s62, s62, s3
    s_lshl_b32 s3, s59, 7
    s_add_u32 s62, s62, s3""")
    e(f"buffer_load_dwordx4 v[8:11], v2, {SX}, s62 offen")
    e(f"""s_and_b32 s3, s96, 3
    s_lshl_b32 s3, s3, 10
    s_cmp_ge_u32 s96, 4
    s_mov_b32 s63, {BREG[0]}
    s_cselect_b32 s63, {BREG[2]}, s63
    s_mov_b32 s64, {BREG[1]}
    s_cselect_b32 s64, {BREG[3]}, s64
    s_add_u32 s63, s63, s3
    s_add_u32 s64, s64, s3
    v_and_b32 v12, 3, v0
    v_lshlrev_b32 v12, 1, v12
    v_xor_b32 v12, v12, v7
    v_bfe_u32 v13, v0, 2, 1
    v_xor_b32 v12, v12, v13
    v_lshlrev_b32 v12, 4, v12
    v_lshl_add_u32 v12, v7, 7, v12
    v_mov_b32 v15, s63
    v_mov_b32 v16, s64
    v_cmp_eq_u32 vcc, 1, v13
    s_nop 1
    v_cndmask_b32 v15, v15, v16, vcc
    v_add_u32 v24, v15, v12
    v_xor_b32 v25, 16, v24""")
    stamp(10)
    e("s_barrier")
    stamp(11)
    R = lambda src, h: 48 + src * 8 + h * 4
    for src in range(4):
        for h in range(2): e.lds(f"ds_read_b128 {vr(R(src,h),4)}, v{24+h} offset:{src*4096}", src)
    e("s_mov_b32 s3, 0xffff0000")
    e("s_waitcnt vmcnt(0)")
    for q in range(4):
        e(f"v_lshlrev_b32 v{32+2*q}, 16, v{8+q}")
        e(f"v_and_b32 v{33+2*q}, s3, v{8+q}")
    for src in range(4):
        e.lwait(src)
        for q in range(4): e(f"v_pk_add_f32 {pk(32+2*q)}, {pk(32+2*q)}, {pk(R(src,0)+2*q)}")
    for q in range(4): e(f"v_cvt_pk_bf16_f32 v{40+q}, v{32+2*q}, v{33+2*q}")
    e("buffer_store_dwordx4 v[40:43], v2, s[28:31], s62 offen " + opt.get("ost", "nt"))
    if opt.get("deadline"):
        e("v_readlane_b32 s4, v167, 0")
        e("L_DLY:")
        e("s_memrealtime s[6:7]")
        e("s_waitcnt lgkmcnt(0)")
        e("s_sub_u32 s8, s6, s4")
        e(f"s_cmp_lt_u32 s8, {opt['deadline']}")
        e("s_cbranch_scc1 L_DLY")
    if opt.get("delay"):
        tm = "s_memrealtime" if opt.get("delayrt") else "s_memtime"
        e(f"{tm} s[4:5]")
        e("s_waitcnt lgkmcnt(0)")
        e("L_DLY:")
        e(f"{tm} s[6:7]")
        e("s_waitcnt lgkmcnt(0)")
        e("s_sub_u32 s8, s6, s4")
        e(f"s_cmp_lt_u32 s8, {opt['delay']}")
        e("s_cbranch_scc1 L_DLY")
    if ST:
        e("L_DUMP:")
        stamp(12)
        e("s_waitcnt vmcnt(0)")
        stamp(13); stamp(14, True)
        if opt.get("dbgst") is not None:
            e("s_load_dwordx2 s[4:5], s[0:1], 56")
            e(f"s_cmp_lg_u32 s2, {opt['dbgst']}")
            e("s_cbranch_scc1 L_END")
            e("s_cmp_lg_u32 s18, 4")
            e("s_cbranch_scc1 L_END")
            e(f"v_readlane_b32 s6, v{VST}, 1")
            e(f"v_readlane_b32 s7, v{VST}, 0")
            e("s_waitcnt lgkmcnt(0)")
            e(f"v_subrev_u32 v3, s6, v{VST}")
            e(f"v_subrev_u32 v4, s7, v{VST}")
            e("v_cmp_eq_u32 vcc, 14, v0")
            e("s_nop 1")
            e("v_cndmask_b32 v3, v3, v4, vcc")
            e("v_lshlrev_b32 v2, 2, v0")
            e("s_mov_b64 exec, 0xffff")
            e("global_store_dword v2, v3, s[4:5]")
            e("s_endpgm")
        e("s_mul_i32 s3, s2, 12")
        e("s_add_u32 s3, s3, s18")
        e("s_lshl_b32 s3, s3, 7")
        e("s_add_u32 s3, s3, 0x1000000")
        e("v_lshl_add_u32 v2, v0, 2, s3")
        e("s_mov_b64 exec, 0xffffffff")
        e(f"global_store_dword v2, v{VST}, s[16:17]")
    e("L_END:")
    e("s_endpgm")
    return name, e.text(), kd(name, 168), (256, 768, LDS)

def build(opt, path):
    n, t, k, (g, b, lds) = gen(opt)
    ref = open(f"cdna_kernels/{NAME}.s.ref").read().split("\n")
    head = [l for l in ref if l.startswith(";") and "@launch" not in l and "Override launch" not in l and "grid=ceil" not in l]
    s = "\n".join(head[:10]) + "\n"
    dm = opt.get("dummy")
    if dm:
        ll = [f"; @launch kernel=dum_kernel grid=({dm[0]},1,1) block=({dm[1]},1,1) lds={dm[2]}\n", f"; @launch kernel={n} grid=({g},1,1) block=({b},1,1) lds={lds}\n"]
        s += "".join(ll if dm[4] == 0 else ll[::-1])
    else: s += f"; @launch grid=({g},1,1) block=({b},1,1) lds={lds}\n"
    s += '.amdgcn_target "amdgcn-amd-amdhsa--gfx950"\n.text\n'
    if dm:
        s += """.globl dum_kernel
.p2align 8
.type dum_kernel,@function
dum_kernel:
  s_memrealtime s[4:5]
  s_waitcnt lgkmcnt(0)
L_DD:
  s_memrealtime s[6:7]
  s_waitcnt lgkmcnt(0)
  s_sub_u32 s8, s6, s4
  s_cmp_lt_u32 s8, 1000
  s_cbranch_scc1 L_DD
  s_endpgm
"""
        k = k + ".p2align 6\n" + kd("dum_kernel", dm[3])
    s += f".globl {n}\n.p2align 8\n.type {n},@function\n" + t
    s += '.section .rodata,"a"\n.p2align 6\n' + k
    open(path, "w").write(s)

if __name__ == "__main__":
    import sys, json
    opt = json.loads(sys.argv[2]) if len(sys.argv) > 2 else {}
    build(opt, sys.argv[1])
```

```python
from emit import *
from alloc import plan3, plan4

NAME = "parallel_sum__sliding_block__dense_activation_relu__prompt"
WS_KV, WS_H, WS_O = 0, 0x600000, 0xD00000
WS_RS = 0xF00000
WS_CS = 0xF10000
WS_EP = 0xF80000
WS_F1, WS_F1B, WS_F2, WS_F1H = 0xF90000, 0xFA0000, 0xFB0000, 0xFC0000
WS_BYTES = 0x1000000
EPC = 0x9E3779B9
L_ST = 158720
L_MISC = L_ST + 3072
FULL, DONE = 64, 128
LDS = L_MISC + 256
ORD2 = list(range(6, 16)) + list(range(6))
NEG = 0xf149f2ca
pk = lambda a: f"v[{a}:{a+1}]"
SW, S1, SX, SS, S2, SO = "s[28:31]", "s[32:35]", "s[36:39]", "s[40:43]", "s[44:47]", "s[48:51]"
VST = 167

def reduce32(e, regs, tmp):
    for ctl in ("quad_perm:[1,0,3,2]", "quad_perm:[2,3,0,1]", "row_half_mirror", "row_mirror"):
        e("s_nop 1")
        for r in regs: e(f"v_add_f32_dpp v{r}, v{r}, v{r} {ctl} row_mask:0xf bank_mask:0xf")
    for r, t in zip(regs, tmp): e(f"v_mov_b32 v{t}, v{r}")
    e("s_nop 1")
    for r, t in zip(regs, tmp): e(f"v_permlane16_swap_b32 v{r}, v{t}")
    e("s_nop 1")
    for r, t in zip(regs, tmp): e(f"v_add_f32 v{r}, v{r}, v{t}")

def gen(opt):
    e = Em()
    name = NAME + "_kernel"
    ST = opt.get("stamps")
    NB = 6
    NT = opt.get("nt", "")
    UNT = opt.get("unt", "")
    PL = opt.get("pl", 2)
    XA, W1A, W2A, FIN = plan3(PL, opt.get("w2l", 2), NB, opt.get("ust", 0))
    if not opt.get("ust", 0): XA, W1A, W2A, FIN = plan4(PL, NB, opt.get("w2t", 5), opt.get("kvlow", 1))
    for j in range(NB): FIN[f"B{j}"] = FIN["Bx"][j]
    LATE = [c for c in range(8) if W2A[c][0] >= 8]
    NEEDD = sorted(set([FIN["W2pre"][c] for c in LATE] + [FIN[f"B{j}"][0] for j in range(NB)] + [FIN["KVpre"], FIN["Qpre"]]))
    BREG = [FIN[f"B{j}"][1] for j in range(NB)]
    BT = [max(FIN[f"B{j}"][0], min(16, opt.get("bt0", 15) + j)) for j in range(NB)]
    L_K, L_V, L_Q, L_ONE = FIN["K"], FIN["V"], FIN["Q"], FIN["ONES"]
    def stamp(i, rt=False):
        if not ST: return
        e(("s_memrealtime" if rt else "s_memtime") + " s[100:101]")
        e("s_waitcnt lgkmcnt(0)")
        e(f"v_writelane_b32 v{VST}, s100, {i}")
        if opt.get("rtall") and not rt:
            e("s_memrealtime s[100:101]")
            e("s_waitcnt lgkmcnt(0)")
            e(f"v_writelane_b32 v{VST}, s100, {16+i}")
    BK = opt.get("bk", [])
    def bstamp(k):
        if ST and k in BK: e(f"s_memtime s[{80+2*BK.index(k)}:{81+2*BK.index(k)}]")
    def bflush():
        if ST and BK:
            e("s_waitcnt lgkmcnt(0)")
            for i in range(len(BK)): e(f"v_writelane_b32 v{VST}, s{80+2*i}, {16+i}")
    uid = [0]
    def lab(p):
        uid[0] += 1
        return f"{p}_{uid[0]}"
    def apoll_issue(voff, soff, vd, tag):
        e.vmem(f"buffer_load_dword v{vd}, v{voff}, {SS}, {soff} offen sc1", tag)
    def apoll_check(voff, soff, vtag, vd, tag):
        D = lab("AOK")
        e.vwait(tag)
        e(f"v_cmp_ne_u32 vcc, v{vtag}, v{vd}")
        e("s_nop 1")
        e("s_cmp_eq_u64 vcc, 0")
        e(f"s_cbranch_scc1 {D}")
        keep = list(e.vm); keepl = list(e.lg)
        poll(voff, soff, vtag, vd)
        e.vm = keep; e.lg = keepl
        e(f"{D}:")
    def poll(voff, soff, vtag, vd):
        L, D = lab("POLL"), lab("POLLED")
        e("s_mov_b32 s63, 0x40000")
        e(f"{L}:")
        e(f"buffer_load_dword v{vd}, v{voff}, {SS}, {soff} offen sc1")
        e("s_waitcnt vmcnt(0) lgkmcnt(0)")
        e(f"v_cmp_ne_u32 vcc, v{vtag}, v{vd}")
        e("s_sub_u32 s63, s63, 1")
        e("s_cmp_eq_u32 s63, 0")
        e(f"s_cbranch_scc1 {D}")
        e("s_cmp_lg_u64 vcc, 0")
        e(f"s_cbranch_scc1 {L}")
        e(f"{D}:")
        e.vm = []; e.lg = []
    def ldswait(off, val, va, vb, pre=None):
        L, D = lab("LW"), lab("LWOK")
        if pre is None: e(f"v_mov_b32 v{va}, {L_MISC}")
        else: va = pre
        e("s_mov_b32 s63, 0x400000")
        e(f"{L}:")
        e(f"ds_read_b32 v{vb}, v{va} offset:{off}")
        e("s_sub_u32 s63, s63, 1")
        e("s_waitcnt lgkmcnt(0)")
        e(f"v_readfirstlane_b32 s62, v{vb}")
        e("s_cmp_eq_u32 s63, 0")
        e(f"s_cbranch_scc1 {D}")
        e(f"s_cmp_ge_u32 s62, {val}")
        e(f"s_cbranch_scc1 {D}")
        e("s_sleep 1")
        e(f"s_branch {L}")
        e(f"{D}:")
        e.lg = []
    def ldsadd(off, va, vb):
        e(f"v_mov_b32 v{va}, {L_MISC}")
        e(f"v_mov_b32 v{vb}, 1")
        e("s_mov_b64 exec, 1")
        e(f"ds_add_u32 v{va}, v{vb} offset:{off}")
        e("s_mov_b64 exec, -1")
    def smasks():
        for j in range(16):
            b0 = (j >> 2) * 8 + (j & 3)
            e(f"s_mov_b32 s{64+2*j}, {(0xffffffff << b0) & 0xffffffff:#x}")
            e(f"s_mov_b32 s{65+2*j}, {(0xffffffff << (b0+4)) & 0xffffffff:#x}")
    def asig1(coff, vm):
        e(f"s_waitcnt vmcnt({vm})")
        e("s_mov_b64 exec, 1")
        e.lds(f"ds_add_rtn_u32 v164, v6, v165 offset:{coff}", "sg")
        e("s_mov_b64 exec, -1")
    def asig2(last, base):
        N = lab("NOFLAG")
        e.lwait("sg")
        e("v_readfirstlane_b32 s63, v164")
        e(f"s_add_u32 s62, s24, {base:#x}")
        e(f"s_cmp_lg_u32 s63, {last}")
        e(f"s_cbranch_scc1 {N}")
        e("v_mov_b32 v164, s61")
        e("s_mov_b64 exec, 1")
        e(f"buffer_store_dword v164, off, {SS}, s62 sc1")
        e("s_mov_b64 exec, -1")
        e(f"{N}:")
    def signal(coff, last, base, va=2, vb=3, vm=0):
        N = lab("NOFLAG")
        e(f"s_waitcnt vmcnt({vm})")
        e(f"v_mov_b32 v{va}, {L_MISC}")
        e(f"v_mov_b32 v{vb}, 1")
        e("s_mov_b64 exec, 1")
        e(f"ds_add_rtn_u32 v{vb}, v{va}, v{vb} offset:{coff}")
        e(f"s_add_u32 s62, s24, {base:#x}")
        e("s_waitcnt lgkmcnt(0)")
        e(f"v_readfirstlane_b32 s63, v{vb}")
        e(f"s_cmp_lg_u32 s63, {last}")
        e(f"s_cbranch_scc1 {N}")
        e(f"v_mov_b32 v{va}, 0")
        e(f"v_mov_b32 v{vb}, s61")
        e(f"buffer_store_dword v{vb}, v{va}, {SS}, s62 offen sc1")
        e(f"{N}:")
        e("s_mov_b64 exec, -1")
        e.lg = []

    e(f"{name}:")
    e("s_cmp_ge_u32 s2, 256")
    e("s_cbranch_scc1 L_END")
    stamp(0, True); stamp(1)
    def gate(nm):
        if opt.get("gate") == nm:
            L = lab("GATE")
            e("v_readlane_b32 s98, v167, 0")
            e(f"{L}:")
            e(("s_memtime" if opt.get("gcyc") else "s_memrealtime") + " s[100:101]")
            e("s_waitcnt lgkmcnt(0)")
            e("s_sub_u32 s99, s100, s98")
            e(f"s_cmp_lt_u32 s99, {opt.get('gcyc', 3000)}")
            e(f"s_cbranch_scc1 {L}")
    if opt.get("deadline") or opt.get("gate"): e(("s_memtime" if opt.get("gcyc") else "s_memrealtime") + " s[98:99]"); e("s_waitcnt lgkmcnt(0)"); e("v_writelane_b32 v167, s98, 0")
    e("s_load_dwordx4 s[4:7], s[0:1], 0")
    e("s_load_dwordx4 s[12:15], s[0:1], 32")
    e("s_load_dwordx2 s[16:17], s[0:1], 64")
    e("s_load_dwordx2 s[8:9], s[0:1], 16")
    e("s_load_dwordx2 s[10:11], s[0:1], 48")
    e("v_lshrrev_b32 v1, 6, v0")
    e("v_and_b32 v0, 63, v0")
    e("v_readfirstlane_b32 s18, v1")
    e("""s_and_b32 s3, s2, 1
    s_lshl_b32 s20, s3, 3
    s_lshr_b32 s24, s2, 5
    s_add_u32 s20, s20, s24
    s_bfe_u32 s21, s2, 0x20001
    s_bfe_u32 s22, s2, 0x20003
    s_lshl_b32 s23, s21, 2
    s_add_u32 s23, s23, s22
    s_lshl_b32 s24, s20, 4
    s_add_u32 s24, s24, s23
    s_lshl_b32 s24, s24, 7
    s_and_b32 s19, s18, 3
    s_lshl_b32 s3, s3, 2
    s_add_u32 s58, s3, s21
    s_lshl_b32 s58, s58, 2
    s_lshr_b32 s59, s2, 6
    s_add_u32 s58, s58, s59
    s_bfe_u32 s59, s2, 0x30003""")
    if opt.get("map2", 0):
        e("""s_and_b32 s20, s2, 3
        s_lshl_b32 s20, s20, 2
        s_lshr_b32 s3, s2, 6
        s_add_u32 s20, s20, s3
        s_bfe_u32 s23, s2, 0x10002
        s_lshl_b32 s23, s23, 3
        s_bfe_u32 s3, s2, 0x30003
        s_add_u32 s23, s23, s3
        s_lshl_b32 s24, s20, 4
        s_add_u32 s24, s24, s23
        s_lshl_b32 s24, s24, 7""")
    if opt.get("map3", 0):
        e("""s_and_b32 s20, s2, 7
        s_lshl_b32 s20, s20, 1
        s_lshr_b32 s3, s2, 7
        s_add_u32 s20, s20, s3
        s_bfe_u32 s23, s2, 0x40003
        s_lshl_b32 s24, s20, 4
        s_add_u32 s24, s24, s23
        s_lshl_b32 s24, s24, 7""")
    if opt.get("own", 1):
        e("s_lshl_b32 s58, s20, 1")
        e("s_lshr_b32 s59, s23, 3")
        e("s_add_u32 s58, s58, s59")
        e("s_and_b32 s59, s23, 7")
    e("s_waitcnt lgkmcnt(0)")
    if opt.get("wsoff"):
        e(f"s_add_u32 s16, s16, {opt['wsoff'] << 20:#x}")
        e("s_addc_u32 s17, s17, 0")
    srd(e, 36, 4, 2048 * 1024)
    srd(e, 28, 6, 512 * 3072)
    srd(e, 32, 12, 512 * 3584)
    srd(e, 40, 16, WS_BYTES)
    if opt.get("unear", 1):
        e("s_cmp_lt_u32 s18, 4")
        e("s_cbranch_scc1 L_LOAD")
        e("s_cmp_lt_u32 s18, 8")
        e("s_cbranch_scc1 L_CONS")
        e("UINIT_HERE")
        e("L_LOAD:")
    else:
        e("s_cmp_ge_u32 s18, 8")
        e("s_cbranch_scc1 L_UTIL")
        e("s_cmp_ge_u32 s18, 4")
        e("s_cbranch_scc1 L_CONS")

    e(f"""v_and_b32 v5, 7, v0
    v_lshrrev_b32 v2, 3, v0
    v_lshrrev_b32 v3, 4, v0
    v_xor_b32 v3, v3, v5
    v_lshlrev_b32 v2, 10, v2
    v_lshl_add_u32 v12, v3, 4, v2
    v_xor_b32 v13, 64, v12
    s_lshl_b32 s65, s20, 17
    s_lshl_b32 s3, s18, 15
    s_add_u32 s65, s65, s3
    s_lshl_b32 s67, s18, 12""")
    def issueX(P):
        e(f"s_add_u32 m0, s67, {XA[P]}")
        e(f"s_add_u32 s74, s65, {P*128}")
        for a in range(4):
            e.vmem(f"buffer_load_dwordx4 v{12+(a&1)}, {SX}, s74 offen offset:{a*1024} {NT} lds", ("x", P))
            if a < 3: e(f"s_add_u32 s74, s74, {8192-1024}")
    issueX(0)
    e("""v_lshrrev_b32 v2, 5, v0
    v_bfe_u32 v3, v0, 3, 2
    v_lshl_add_u32 v3, v2, 3, v3
    v_bfe_u32 v4, v0, 4, 2
    v_lshlrev_b32 v4, 1, v4
    v_xor_b32 v4, v4, v5
    v_lshlrev_b32 v4, 4, v4
    v_mul_u32_u24 v10, 3072, v3
    v_add_u32 v10, v10, v4
    v_mul_u32_u24 v11, 3584, v3
    v_add_u32 v11, v11, v4
    s_lshr_b32 s52, s18, 1
    s_lshl_b32 s52, s52, 5
    s_and_b32 s62, s18, 1
    s_lshl_b32 s3, s62, 2
    s_add_u32 s52, s52, s3
    s_lshl_b32 s3, s23, 7
    s_mul_i32 s53, s52, 3072
    s_add_u32 s53, s53, s3
    s_add_u32 s53, s53, 1024
    s_mul_i32 s54, s52, 3584
    s_add_u32 s54, s54, s3""")
    def issueW(c):
        for ah in range(2):
            e(f"s_add_u32 m0, s67, {W1A[c] + ah*2048}")
            e(f"s_add_u32 s74, s53, {(64*c + 16*ah)*3072}")
            e.vmem(f"buffer_load_dwordx4 v10, {SW}, s74 offen {NT} lds", ("w", c))
            e(f"s_add_u32 m0, s67, {W1A[c] + ah*2048 + 1024}")
            e(f"s_add_u32 s74, s54, {(64*c + 16*ah)*3584}")
            e.vmem(f"buffer_load_dwordx4 v11, {S1}, s74 offen {NT} lds", ("w", c))
    def esetup():
        e("""v_lshrrev_b32 v2, 4, v0
        v_bfe_u32 v3, v0, 2, 2
        v_lshl_add_u32 v3, v2, 3, v3
        v_mul_u32_u24 v16, 3072, v3
        v_and_b32 v2, 1, v2
        v_lshlrev_b32 v2, 1, v2
        v_and_b32 v3, 3, v0
        v_xor_b32 v2, v2, v3
        v_lshl_add_u32 v16, v2, 4, v16
        s_and_b32 s62, s19, 1
        s_lshl_b32 s3, s62, 7""")
        for j in range(2):
            e(f"""v_add_u32 v2, s3, v0
            v_add_u32 v2, {64*j}, v2
            v_mul_u32_u24 v3, 10923, v2
            v_lshrrev_b32 v3, 16, v3
            v_mul_u32_u24 v4, 6, v3
            v_sub_u32 v4, v2, v4
            v_bfe_u32 v6, v3, 2, 2
            v_lshlrev_b32 v6, 3, v6
            v_lshrrev_b32 v7, 4, v3
            v_lshl_add_u32 v6, v7, 2, v6
            v_and_b32 v7, 3, v3
            v_add_u32 v6, v6, v7
            v_mul_u32_u24 v{17+j}, 3584, v6
            v_lshl_add_u32 v{17+j}, v4, 4, v{17+j}""")
        e("""s_cmp_eq_u32 s62, 1
        s_cselect_b32 s3, 0x80000000, 0
        v_or_b32 v18, s3, v18
        s_lshr_b32 s3, s19, 1
        s_mul_i32 s55, s52, 3072
        s_lshl_b32 s64, s23, 6
        s_add_u32 s55, s55, s64
        s_mul_i32 s56, s3, 114688
        s_mul_i32 s64, s23, 96
        s_add_u32 s56, s56, s64
        s_add_u32 s56, s56, 2048
        s_mul_i32 s57, s3, 5120
        s_lshl_b32 s64, s62, 10
        s_add_u32 s60, s57, s64
        s_lshl_b32 s64, s62, 11
        s_add_u32 s57, s57, s64
        s_add_u32 s64, s57, 1024
        s_cmp_eq_u32 s62, 1
        s_cselect_b32 s64, 8192, s64""")
    def issueW2(c):
        p = ORD2[2 * c]
        base = W2A[c][1]
        e(f"s_add_u32 m0, s60, {base}")
        e(f"s_add_u32 s74, s55, {p*32*3072}")
        e.vmem(f"buffer_load_dwordx4 v16, {SW}, s74 offen {NT} lds", ("w2", c))
        e(f"s_add_u32 m0, s57, {base + 2048}")
        e(f"s_add_u32 s74, s56, {p*32*3584}")
        e.vmem(f"buffer_load_dwordx4 v17, {S1}, s74 offen {NT} lds", ("w2", c))
        e(f"s_add_u32 m0, s64, {base + 2048}")
        e("s_nop 0")
        e.vmem(f"buffer_load_dwordx4 v18, {S1}, s74 offen {NT} lds", ("w2", c))
    NF2, NS, NA = 14, 18, 4
    A0 = 20
    AF = lambda sg, tb, kk: A0 + (sg % NA) * 16 + (tb * 2 + kk) * 4
    ACB = A0 + NA * 16
    GACC = lambda tb, nb: ACB + (tb * 2 + nb) * 16
    BFB = ACB + 64
    BF = lambda kk, nb: BFB + (kk * 2 + nb) * 4
    assert BFB + 16 <= VST
    def gsetup():
        srd(e, 44, 14, 1792 * 1024)
        srd(e, 48, 8, 512 * 1024)
        e(f"""v_lshrrev_b32 v8, 3, v0
        v_bfe_u32 v2, v0, 4, 1
        v_lshlrev_b32 v2, 2, v2
        v_xor_b32 v9, v5, v2
        v_lshlrev_b32 v9, 4, v9
        v_lshl_add_u32 v14, v8, 10, v9
        v_lshrrev_b32 v2, 2, v8
        v_lshlrev_b32 v2, 3, v2
        v_and_b32 v8, 3, v8
        v_add_u32 v8, v8, v2
        v_lshl_add_u32 v15, v8, 10, v9
        v_lshlrev_b32 v1, 4, v0
        s_lshl_b32 s3, s59, 7
        s_lshl_b32 s70, s18, 18
        s_add_u32 s70, s70, s3
        s_mul_i32 s78, s18, {12*16*1024}
        s_add_u32 s78, s78, s3
        s_lshl_b32 s71, s18, 17
        s_add_u32 s71, s71, s3
        s_mul_i32 s72, s58, {2*112*1024}
        s_add_u32 s72, s72, {WS_H:#x}
        s_mul_i32 s79, s18, {12*1024}
        s_add_u32 s79, s79, s72
        s_lshl_b32 s3, s18, 14
        s_add_u32 s72, s72, s3
        s_lshl_b32 s73, s58, 16
        s_lshl_b32 s3, s18, 13
        s_add_u32 s73, s73, s3
        s_add_u32 s73, s73, {WS_O:#x}
        s_and_b32 s3, s58, 3
        s_cmp_eq_u32 s3, s18
        s_cselect_b32 s26, 1, 0
        s_cmp_eq_u32 s59, s18
        s_cselect_b32 s27, 1, 0
        s_add_u32 s3, s18, 4
        s_cmp_eq_u32 s59, s3
        s_cselect_b32 s21, 1, 0
        s_lshl_b32 s69, s58, 1
        s_add_u32 s69, s69, s59
        s_and_b32 s69, s69, {opt.get("rotm", 7)}
        s_sub_u32 s25, s69, 6
        s_cmp_ge_u32 s69, 6
        s_cselect_b32 s25, s25, s69""")
    KS = [(2 * i, False) for i in range(8)] + [(64 + 2 * i, True) for i in range(6)]
    ROT = opt.get("rot", 0)
    def ridx(sg):
        if sg < 8:
            e(f"s_add_u32 s68, s69, {sg}")
            e("s_and_b32 s68, s68, 7")
        elif sg < NF2:
            e(f"s_add_u32 s68, s25, {sg-8}")
            e("s_sub_u32 s3, s68, 6")
            e("s_cmp_ge_u32 s68, 6")
            e("s_cselect_b32 s68, s3, s68")
        else:
            e(f"s_add_u32 s68, s69, {sg-NF2}")
            e("s_and_b32 s68, s68, 3")
    def issueB(sg):
        if ROT:
            ridx(sg)
            e("s_lshl_b32 s68, s68, 15")
            e(f"s_add_u32 s68, s68, {'s70' if sg < 8 else 's78' if sg < NF2 else 's71'}")
        for a in range(4):
            e(f"s_add_u32 m0, s67, {BREG[sg % NB] + a*1024}")
            if sg < NF2:
                k16, ex = KS[sg]
                if ROT: e(f"s_add_u32 s74, s68, {((1024 if ex else 0) + 8*a)*1024}")
                else: e(f"s_add_u32 s74, {'s78' if ex else 's70'}, {(16*k16 + 8*a)*1024}")
                e.vmem(f"buffer_load_dwordx4 v14, {S2}, s74 offen lds", ("B", sg))
            else:
                if ROT: e(f"s_add_u32 s74, s68, {(16*(a>>1) + 4*(a&1))*1024}")
                else: e(f"s_add_u32 s74, s71, {(32*(sg-NF2) + 16*(a>>1) + 4*(a&1))*1024}")
                e.vmem(f"buffer_load_dwordx4 v15, {SO}, s74 offen lds", ("B", sg))
    def issueA(sg, tbs=(0, 1)):
        for tb in tbs:
            if sg < NF2:
                k16, ex = KS[sg]
                e(f"s_add_u32 s74, {'s79' if ex else 's72'}, {(tb*112 + k16)*1024}")
            else: e(f"s_add_u32 s74, s73, {(tb*32 + 2*(sg-NF2))*1024}")
            for kk in range(2):
                e.vmem(f"buffer_load_dwordx4 {vr(AF(sg,tb,kk),4)}, v1, {SS}, s74 offen offset:{kk*1024} sc1", ("A", sg))
    LEAD = opt.get("lead", 0)
    def either(sreg, lead_fn, foll_fn):
        L1, L2 = lab("LD"), lab("LE")
        e(f"s_cmp_lg_u32 {sreg}, 0")
        e(f"s_cbranch_scc1 {L1}")
        allk = list(e.act)
        e.act = [k for k in allk if sreg not in k]
        if foll_fn: foll_fn()
        e(f"s_branch {L2}")
        e(f"{L1}:")
        keep = list(e.vm)
        e.act = [k for k in allk if sreg in k]
        if lead_fn: lead_fn()
        e.vm = keep
        e.act = allk
        e(f"{L2}:")
    def gsetup2():
        e(f"""v_lshrrev_b32 v6, 5, v0
        v_lshlrev_b32 v6, 3, v6
        v_bfe_u32 v7, v0, 2, 2
        v_add_u32 v6, v6, v7
        v_lshlrev_b32 v6, 7, v6
        v_lshrrev_b32 v7, 1, v7
        v_lshl_add_u32 v6, v7, 6, v6
        v_bfe_u32 v7, v0, 4, 1
        v_lshl_add_u32 v6, v7, 5, v6
        v_and_b32 v7, 3, v0
        v_lshl_add_u32 v6, v7, 3, v6
        v_add_u32 v6, s67, v6
        v_xor_b32 v7, 64, v6
        v_add_u32 v8, 49152, v6
        v_add_u32 v9, 49152, v7
    v_add_u32 v10, 98304, v6
    v_add_u32 v11, 98304, v7
        v_mov_b32 v2, {L_MISC}
        ds_read_b32 v2, v2
        v_and_b32 v3, 3, v0
        v_lshlrev_b32 v3, 7, v3
        s_lshr_b32 s76, s58, 1
        s_lshl_b32 s76, s76, 11
        s_lshl_b32 s3, s18, 9
        s_add_u32 s76, s76, s3
        s_add_u32 s66, s76, {WS_F1H:#x}""")
        e("s_mov_b32 s75, 0")
        e("s_waitcnt lgkmcnt(0)")
    D = opt.get("gd", 3); DB = NB - 1; PS = opt.get("ps", 12); PB = 8 - D - 1
    GE = opt.get("ge", 15)
    def firstA(lo=0, hi=None):
        hi = D if hi is None else hi
        for sg in range(lo, hi):
            if LEAD & 2 and sg == hi - 1:
                for tb in range(2): either(("s27", "s21")[tb], lambda: issueA(sg, (tb,)), None)
            else: issueA(sg)
    issueW(0)
    for c in range(1, PL): issueX(c); issueW(c)
    for k in range(9):
        e.vwait([("w", k), ("x", k)] if k < 8 else [("w2", c) for c in range(8)])
        if k == 0: stamp(2)
        if k == 8: stamp(3)
        bstamp(k)
        e("s_barrier")
        if k + PL <= 7: issueX(k + PL); issueW(k + PL)
        if k == 1: gsetup()
        if k == 2: esetup()
        for c in range(8):
            if W2A[c][0] == k and c not in LATE: issueW2(c)
        if k == 7:
            ldswait(28, 4, 2, 3)
            for c in range(8):
                if W2A[c][0] == 7.5: issueW2(c)
    bflush()
    stamp(4)
    if opt.get("gprio", 0): e(f"s_setprio {opt.get('gprio')}")
    gsetup2()
    seen = [-1]
    def need2(st):
        if st > seen[0]:
            ldswait(DONE + 4 * st, 4, 12, 13)
            seen[0] = st
    BP = opt.get("bp", 3)
    for j in range(BP): need2(FIN[f"B{j}"][0]); issueB(j)
    poll(3, "s66", 2, 4)
    for sg in range(D): issueA(sg)
    stamp(5)
    done_b = set()
    def step(sg):
        for j in range(BP, NB):
            if min(j - BP, opt.get("bq", 9)) == sg or (sg == 0 and j - BP < opt.get("b0", 1)):
                if j not in done_b: need2(FIN[f"B{j}"][0]); issueB(j); done_b.add(j)
        bstamp(100 + sg)
        e.vwait([("B", sg), ("A", sg)])
        bstamp(200 + sg)
        reg = BREG[sg % NB]
        hi = reg // 49152
        off0 = reg - 49152 * hi
        for kk in range(2):
            for nb in range(2):
                for q in range(2):
                    e.lds(f"ds_read_b64_tr_b16 v[{BF(kk,nb)+2*q}:{BF(kk,nb)+2*q+1}], v{6+2*hi+nb} offset:{off0 + kk*2048 + q*512}", (kk, nb))
        if LEAD & 1:
            FB = opt.get("fb", 3)
            okb = lambda j: NB <= j < NS
            if okb(sg + DB) or okb(sg + FB):
                either("s26", (lambda: issueB(sg + DB)) if okb(sg + DB) else None, (lambda: issueB(sg + FB)) if okb(sg + FB) else None)
        elif NB <= sg + DB < NS: issueB(sg + DB)
        oka = lambda j: j < NF2 or (j < NS and sg > PS and j >= PS + 1 + D)
        if LEAD & 2:
            okf = lambda j: j < NF2 or (j < NS and sg > PS and j >= PS + D)
            for tb in range(2):
                if oka(sg + D) or okf(sg + D - 1):
                    either(("s27", "s21")[tb], (lambda: issueA(sg + D, (tb,))) if oka(sg + D) else None, (lambda: issueA(sg + D - 1, (tb,))) if okf(sg + D - 1) else None)
        elif oka(sg + D): issueA(sg + D)
        for kk in range(2):
            for nb in range(2):
                e.lwait((kk, nb))
                for tb in range(2):
                    acc = vr(GACC(tb, nb), 16)
                    cin = "0" if (sg == 0 and kk == 0) else acc
                    if opt.get("nogm") and (kk or nb): continue
                    e(f"v_mfma_f32_32x32x16_bf16 {acc}, {vr(BF(kk,nb),4)}, {vr(AF(sg,tb,kk),4)}, {cin}")
    for sg in range(PS + 1):
        if sg == PB - 1 or sg == PS - 1:
            e(f"s_add_u32 s66, s76, {(WS_F1B if sg == PB - 1 else WS_F2):#x}")
            apoll_issue(3, "s66", 4, "fl")
        step(sg)
        if sg == PB:
            stamp(6)
            apoll_check(3, "s66", 2, 4, "fl")
    stamp(7)
    apoll_check(3, "s66", 2, 4, "fl")
    stamp(8)
    firstA(NF2, min(NS, PS + 1 + D))
    for sg in range(PS + 1, NS): step(sg)
    e.var = None
    bflush()
    gate('g')
    stamp(9)
    e("""v_and_b32 v12, 31, v0
    v_lshlrev_b32 v12, 7, v12
    v_lshrrev_b32 v13, 5, v0
    v_xor_b32 v13, v13, v5
    v_lshl_add_u32 v12, v13, 4, v12
    v_add_u32 v12, s67, v12""")
    for nb in range(2):
        for a in range(4): e(f"v_xor_b32 v{20+nb*4+a}, {((2*a) ^ nb)*16}, v12")
    for tb in range(2):
        for nb in range(2):
            for a in range(4): e(f"v_add_u32 v{28+(tb*2+nb)*4+a}, {BREG[tb*2+nb]}, v{20+nb*4+a}")
    for tb in range(2):
        for nb in range(2):
            for a in range(4): e(f"ds_write_b128 v{28+(tb*2+nb)*4+a}, {vr(GACC(tb,nb)+4*a,4)}")
    e("s_waitcnt lgkmcnt(0)")
    stamp(10)
    e("s_barrier")
    if ST: e("s_branch L_DUMP")
    e("s_endpgm")

    e("L_CONS:")
    e.vm = []; e.lg = []
    LA = opt.get("la", 5); NFB = 6
    F = lambda f: 8 + (f % NFB) * 4
    XF = lambda n, r: 32 + ((n & 1) * 2 + r) * 4
    XK = lambda p, r: 48 + (p * 2 + r) * 4
    ACC = lambda s, r: 96 + (s * 2 + r) * 4
    AW = [1, 2, 3, 4]; AX = [7, 5]
    e(f"""v_lshrrev_b32 v8, 2, v0
    v_lshrrev_b32 v9, 3, v8
    v_lshlrev_b32 v9, 11, v9
    v_and_b32 v10, 7, v8
    v_lshl_add_u32 v9, v10, 7, v9
    v_and_b32 v10, 3, v0
    v_lshlrev_b32 v10, 3, v10
    v_add_u32 v9, v9, v10
    v_bfe_u32 v11, v0, 3, 2
    v_lshl_add_u32 v1, v11, 5, v9
    v_add_u32 v1, {W1A[0]}, v1
    v_xor_b32 v2, 32, v1
    v_xor_b32 v3, 64, v1
    v_xor_b32 v4, 96, v1
    v_and_b32 v8, 15, v0
    v_lshrrev_b32 v9, 4, v0
    v_lshrrev_b32 v10, 1, v8
    v_xor_b32 v9, v9, v10
    v_lshlrev_b32 v8, 7, v8
    v_lshl_add_u32 v7, v9, 4, v8
    s_lshl_b32 s3, s19, 12
    s_add_u32 s3, s3, {XA[0]}
    v_add_u32 v7, s3, v7
    v_xor_b32 v5, 64, v7""")
    if opt.get("tlb", 0):
        sk = lab("NOTLB")
        e("s_cmp_lg_u32 s19, 0")
        e(f"s_cbranch_scc1 {sk}")
        srd(e, 44, 10, 2048 * 1024)
        e("v_lshlrev_b32 v8, 20, v0")
        e("s_mov_b64 exec, 0xffff")
        e(f"buffer_load_dword v156, v8, {SS}, 0 offen")
        e("s_mov_b64 exec, 3")
        e(f"buffer_load_dword v157, v8, s[44:47], 0 offen")
        e("s_mov_b64 exec, -1")
        e(f"{sk}:")
    e(f"v_mov_b32 v6, {L_MISC}")
    e("v_mov_b32 v165, 1")
    if not BK: smasks()
    if opt.get("cprio", 3): e(f"s_setprio {opt.get('cprio', 3)}")
    cur = {"w": W1A[0], "x": XA[0]}
    UST = opt.get("ust", 0)
    PEND = []
    DEF = []; NST = [0]; TIM = 0 if UST else opt.get("tim", 2)
    def move(kind, regs, addr):
        d = addr - cur[kind]
        if d:
            for a in regs: e(f"v_add_u32 v{a}, {d & 0xffffffff:#x}, v{a}")
        cur[kind] = addr
    def gemm(ps):
        NSB = 8 if ps == 1 else 5
        NF = 16 * NSB
        kst = (lambda n: n) if ps == 1 else (lambda n: ORD2[n])
        xreg = lambda n, r: XK(kst(n), r) if kst(n) < 6 else XF(n, r)
        def rd(f):
            n, s = divmod(f, NSB)
            for q in range(2):
                if ps == 1:  a, off = AW[s & 3], (n & 1) * 8192 + q * 4096 + (s >> 2) * 1024
                elif s < 2:  a, off = AW[s], (n & 1) * 5120 + q * 1024
                else:        a, off = AW[2], (n & 1) * 5120 + 2048 + q * 1536 + (s - 2) * 32
                yield f"ds_read_b64_tr_b16 v[{F(f)+2*q}:{F(f)+2*q+1}], v{a} offset:{off}"
        def kswitch(n):
            if n % 2 == 0:
                if ps == 1: move("w", AW, W1A[n // 2])
                else:       move("w", AW[:3], W2A[n // 2][1])
                t = 8 * (ps - 1) + n // 2
                bstamp(t)
                if t <= 8: e("s_barrier")
                if t == 0 and opt.get("tlb", 0): e("s_waitcnt vmcnt(0)")
                if t > 8 and t - 8 in LATE:
                    L, D_ = lab("FW"), lab("FOK")
                    e.lwait("fl")
                    e("v_readfirstlane_b32 s62, v4")
                    e("s_cmp_ge_u32 s62, 4")
                    e(f"s_cbranch_scc1 {D_}")
                    keepl = list(e.lg)
                    ldswait(FULL + 4 * t, 4, 4, 4, 6)
                    e.lg = keepl
                    e(f"{D_}:")
                if ps == 2 and not UST:
                    for _ in range(opt.get("tper", 4)):
                        if DEF:
                            for x in DEF.pop(0):
                                if opt.get("nost1") and "buffer_store" in x: continue
                                e(x.replace(" sc1", "") if opt.get("plain1") else x)
                            NST[0] += 1
                    if n // 2 == opt.get("sgk", 0):
                        asig1(4, max(0, NST[0] - 4)); PEND.append(WS_F1)
                    if n // 2 == opt.get("sgh", 3):
                        assert not DEF
                        asig1(24, 0); PEND.append(WS_F1H)
            if NSB > LA or n < 2: xread(n)
        def xread(n):
            p = kst(n)
            if ps == 1 or p >= 6:
                move("x", AX, XA[p >> 1])
                for r in range(2): e.lds(f"ds_read_b128 {vr(xreg(n,r),4)}, v{AX[p&1]} offset:{r*2048}", ("x", n))
        kswitch(0)
        if ps == 1: stamp(2); gate("b0")
        for f in range(LA):
            if f and f % NSB == 0: kswitch(f // NSB)
            for r_ in rd(f): e.lds(r_, f)
        for f in range(NF):
            n, s = divmod(f, NSB)
            nxt = f + LA
            if nxt < NF and nxt % NSB == 0: kswitch(nxt // NSB)
            if NSB <= LA and s == 0 and 1 <= n < 15: xread(n + 1)
            if ps == 2 and (nxt + 4) % (2 * NSB) == 0 and (nxt + 4) // (2 * NSB) in LATE:
                e.lds(f"ds_read_b32 v4, v6 offset:{FULL + 4*(8 + (nxt + 4) // (2 * NSB))}", "fl")
            if PEND and nxt % (2 * NSB) == 4: asig2(3, PEND.pop())
            if opt.get("w2f", 1) and f % 2 == 0 and f + 1 < NF: e.lwait([f, f + 1, ("x", n), ("x", (f + 1) // NSB)])
            else: e.lwait([f, ("x", n)])
            if ps == 2 and (f + 1) % (2 * NSB) == 0 and 8 + n // 2 in NEEDD:
                e("s_mov_b64 exec, 1")
                e.lds(f"ds_add_u32 v6, v165 offset:{DONE + 4*(8 + n//2)}", "dn")
                e("s_mov_b64 exec, -1")
            rds = list(rd(nxt)) if nxt < NF else [None, None]
            for r in range(2):
                acc = vr(ACC(s, r), 4)
                e(f"v_mfma_f32_16x16x32_bf16 {acc}, {vr(F(f),4)}, {vr(xreg(n,r),4)}, {'0' if n == 0 else acc}")
                if rds[r]: e.lds(rds[r], nxt)
    RS = lambda r: 160 + 2 * r
    RQ = lambda r: 32 + 2 * r
    TT = 8
    CSR = [24, 28]
    def epilogue(ps):
        order = (([0, 1, 2, 3, 5, 6, 7, 4] if opt.get('kvfirst', 1) else [5, 6, 7, 2, 3, 4, 0, 1]) if TIM else list(range(8))) if ps == 1 else ([2, 3, 4, 0, 1] if opt.get('b16late') else [0, 1, 2, 3, 4])
        dd = {}
        loc = lambda s: s if ps == 1 else 8 + s
        if ps == 1:
            ldsadd(28, 8, 9)
            ldswait(20, 1, 8, 9)
        e(f"""v_and_b32 v16, 15, v0
        v_lshrrev_b32 v17, 4, v0
        s_lshl_b32 s3, s19, 9
        s_add_u32 s3, s3, {L_ST}
        v_lshl_add_u32 v8, v16, 4, s3
        v_lshlrev_b32 v164, 4, v17
        v_add_u32 v164, {L_ST+2048}, v164
        v_mov_b32 v10, {L_MISC}""")
        if ps == 1:
            for r in range(2): e.lds(f"ds_read_b64 {pk(RS(r))}, v8 offset:{256*r}", "st")
            e.lds("ds_read_b32 v10, v10", "st")
        def csread(n):
            if n < len(order): e.lds(f"ds_read_b128 {vr(CSR[n%2],4)}, v164 offset:{64*loc(order[n])}", ("cs", n))
        csread(0)
        e("v_lshlrev_b32 v166, 4, v0")
        if ps == 1:
            e(f"""s_lshl_b32 s52, s20, 2
            s_add_u32 s52, s52, s19
            s_lshl_b32 s53, s23, 8
            s_add_u32 s53, s53, s52
            s_lshl_b32 s53, s53, 10
            s_mul_i32 s54, s52, 112
            s_mul_i32 s55, s23, 3
            s_add_u32 s55, s55, s54
            s_add_u32 s55, s55, 64
            s_lshl_b32 s55, s55, 10
            s_lshl_b32 s3, s23, 2
            s_add_u32 s54, s54, s3
            s_lshl_b32 s54, s54, 10
            s_add_u32 s54, s54, {WS_H:#x}
            s_add_u32 s55, s55, {WS_H:#x}""")
            if UST:
                e("s_lshl_b32 s3, s19, 12")
                e("v_add_u32 v36, s3, v166")
                e(f"v_add_u32 v37, {W1A[7]}, v36")
                e(f"v_add_u32 v36, {W1A[6]}, v36")
            e.lwait("st")
            e("v_readfirstlane_b32 s61, v10")
        else:
            e("s_mov_b32 s3, 0x3eb8aa3b")
            for q in range(4): e(f"v_mul_f32 v{32+q}, s3, v{160+q}")
            e("s_lshl_b32 s3, s19, 10")
            e(f"s_add_u32 s3, s3, {L_Q}")
            e("v_add_u32 v36, s3, v166")
            ldswait(DONE + 4 * FIN["Qpre"], 4, 37, 38)
        for n, s in enumerate(order):
            T = 16 + 4 * (n % 2)
            stg = ps == 1 and UST
            dfr = ps == 1 and TIM and s >= (4 if opt.get('kvfirst', 1) else 2) and not UST
            if dfr: T = ACC(s, 0) if s >= 5 else ACC(s + 3, 1)
            isQ = ps == 2 and s < 2
            isH = (ps == 1 and s >= 4) or (ps == 2 and s >= 2)
            if stg and s == 4: ldswait(28, 4, 38, 39)
            e.lwait(("cs", n))
            c = CSR[n % 2]
            csread(n + 1)
            if opt.get("xnop"): e("s_nop 3")
            if (ps == 2 or opt.get("nopk1", 1)) and opt.get("nopk", 1):
                for r in range(2):
                    sp = RQ(r) if isQ else RS(r)
                    for j in range(4): e(f"v_mul_f32 v{TT+4*r+j}, v{c+j}, v{sp+1}")
                for r in range(2):
                    sp = RQ(r) if isQ else RS(r)
                    for j in range(4): e(f"v_fmac_f32 v{TT+4*r+j}, v{ACC(s,r)+j}, v{sp}")
            else:
                for r in range(2):
                    sp = RQ(r) if isQ else RS(r)
                    for h in range(2):
                        e(f"v_pk_mul_f32 {pk(TT+4*r+2*h)}, {pk(c+2*h)}, {pk(sp)} op_sel:[0,1] op_sel_hi:[1,1]")
                for r in range(2):
                    sp = RQ(r) if isQ else RS(r)
                    for h in range(2):
                        t = TT + 4 * r + 2 * h
                        e(f"v_pk_fma_f32 {pk(t)}, {pk(ACC(s,r)+2*h)}, {pk(sp)}, {pk(t)} op_sel_hi:[1,0,1]")
            for r in range(2):
                for h in range(2):
                    t = TT + 4 * r + 2 * h
                    e(f"v_cvt_pk_bf16_f32 v{T+2*r+h}, v{t}, v{t+1}")
            if isQ or stg: sa = "s_nop 0"
            elif ps == 2: sa = f"s_add_u32 s3, s55, {(s-2)*1024}"
            elif s < 4: sa = f"s_add_u32 s3, s53, {WS_KV + s*0x10000:#x}"
            else: sa = f"s_add_u32 s3, s54, {(s-4)*1024}"
            e("s_nop 2")
            e(f"v_permlane16_swap_b32 v{T}, v{T+2}")
            e(f"v_permlane16_swap_b32 v{T+1}, v{T+3}")
            e(sa if not dfr else "s_nop 0")
            e("s_nop 0")
            if isH:
                for q in (0, 2, 1, 3): e(f"v_pk_max_i16 v{T+q}, v{T+q}, 0")
            if isQ:
                e.lds(f"ds_write_b128 v36, {vr(T,4)} offset:{s*4096}", "qw")
                if s == 1:
                    e.lwait_all()
                    ldsadd(16, 37, 38)
            elif stg: e.lds(f"ds_write_b128 v{36 + (s >> 2)}, {vr(T,4)} offset:{(s&3)*1024}", "qw")
            elif dfr: dd[s] = [sa, f"buffer_store_dwordx4 {vr(T,4)}, v166, {SS}, s3 offen {'' if isH and opt.get('hplain') else 'sc1'}"]
            else:
                e(f"buffer_store_dwordx4 {vr(T,4)}, v166, {SS}, s3 offen {'' if isH and opt.get('hplain') else 'sc1'}")
                NST[0] += 1
                if ps == 2 and s == 4 and opt.get("b16late"): e("s_barrier")
        for s in sorted(dd): DEF.append(dd[s])
    gemm(1)
    gate('p1')
    stamp(3)
    epilogue(1)
    e(f"""v_lshrrev_b32 v8, 2, v0
    v_and_b32 v10, 3, v0
    v_lshlrev_b32 v10, 3, v10
    v_lshl_add_u32 v1, v8, 6, v10
    v_bfe_u32 v11, v0, 4, 1
    v_lshl_add_u32 v1, v11, 5, v1
    v_add_u32 v1, {W2A[0][1]}, v1
    v_xor_b32 v2, 32, v1
    v_mul_u32_u24 v3, 96, v8
    v_add_u32 v3, v3, v10
    v_add_u32 v3, {W2A[0][1]}, v3""")
    cur["w"] = W2A[0][1]
    e.lwait_all()
    stamp(4)
    gemm(2)
    gate('p2')
    bflush()
    stamp(5)
    epilogue(2)
    if BK: smasks()
    e("s_mov_b32 s96, s19")
    e("s_mov_b32 s97, 1")
    e("s_branch L_ATT")

    e("L_UTIL:")
    e.vm = []; e.lg = []
    if opt.get("uprio0", 3): e(f"s_setprio {opt.get('uprio0', 3)}")
    L0, U, A, CL, C0, C1, VE = 16, 24, 40, 48, 64, 72, 80
    e("v_and_b32 v5, 7, v0")
    def pfcode():
        sk = lab("NOPC")
        e("s_cmp_lg_u32 s19, 3")
        e(f"s_cbranch_scc1 {sk}")
        e("s_getpc_b64 s[72:73]")
        e("L_PCREF:")
        e(f"s_sub_u32 s72, s72, L_PCREF-{name}")
        e("s_subb_u32 s73, s73, 0")
        e("s_lshr_b32 s74, s2, 3")
        e("s_mul_i32 s74, s74, (L_END-%s+4095)/4096*128" % name)
        e("v_lshlrev_b32 v2, 7, v0")
        e("v_add_u32 v2, s74, v2")
        e(f"v_min_u32 v2, L_END-{name}, v2")
        e("v_mov_b32 v3, s73")
        e("v_add_co_u32 v2, vcc, s72, v2")
        e("s_nop 1")
        e("v_addc_co_u32 v3, vcc, 0, v3, vcc")
        e("v_cmp_gt_u32 vcc, (L_END-%s+4095)/4096, v0" % name)
        e("s_nop 1")
        e("s_and_saveexec_b64 s[74:75], vcc")
        e("global_load_dword v163, v[2:3], off")
        e("s_mov_b64 exec, -1")
        e(f"{sk}:")
    if opt.get("pfc", 1) and not opt.get("unear", 1): pfcode()
    PFU = opt.get("pfu", 0)
    def pf_x():
        e("""v_and_b32 v2, 31, v0
        v_lshlrev_b32 v2, 10, v2
        v_lshrrev_b32 v3, 5, v0
        v_lshl_add_u32 v2, v3, 7, v2
        s_lshl_b32 s64, s20, 17
        s_lshl_b32 s65, s22, 15
        s_add_u32 s64, s64, s65
        s_lshl_b32 s65, s19, 8
        s_add_u32 s64, s64, s65""")
        e(f"buffer_load_dword v160, v2, {SX}, s64 offen")
    def pf_w():
        L1, L2, L3, LD = lab("PW"), lab("PW"), lab("PW"), lab("PW")
        e("""s_and_b32 s64, s20, 7
        v_lshlrev_b32 v2, 3, v0
        v_add_u32 v2, s64, v2
        v_mul_u32_u24 v3, 3584, v2
        v_mul_u32_u24 v2, 3072, v2
        s_lshl_b32 s64, s23, 7""")
        e("s_cmp_eq_u32 s19, 1"); e(f"s_cbranch_scc1 {L1}")
        e("s_cmp_eq_u32 s19, 3"); e(f"s_cbranch_scc1 {L3}")
        e("s_add_u32 s65, s64, 1024")
        e("s_lshr_b32 s64, s64, 1")
        e("s_cmp_eq_u32 s19, 0")
        e("s_cselect_b32 s64, s65, s64")
        e(f"buffer_load_dword v161, v2, {SW}, s64 offen")
        e(f"s_branch {LD}")
        e(f"{L3}:")
        e("s_mul_i32 s64, s23, 96")
        e("s_add_u32 s64, s64, 2048")
        e(f"buffer_load_dword v162, v3, {S1}, s64 offen offset:92")
        e(f"{L1}:")
        e(f"buffer_load_dword v161, v3, {S1}, s64 offen")
        e(f"{LD}:")
    if PFU == 1: pf_x(); pf_w()
    UL = opt.get("ul", -1)
    for _ in range(UL + 1): e("s_barrier")
    e(f"v_mov_b32 v{VE}, 0")
    e(f"s_mov_b32 s3, {WS_EP:#x}")
    e.vmem(f"buffer_load_dword v{VE}, v{VE}, {SS}, s3 offen sc1", "rs")
    e(f"""v_lshrrev_b32 v4, 5, v0
    v_and_b32 v6, 31, v0
    v_lshlrev_b32 v6, 4, v6
    v_lshl_add_u32 v6, v4, 10, v6
    v_lshlrev_b32 v{VE+1}, 4, v4
    s_lshl_b32 s64, s20, 7
    s_lshl_b32 s65, s23, 3
    s_add_u32 s64, s64, s65
    s_lshl_b32 s65, s19, 1
    s_add_u32 s64, s64, s65
    s_lshl_b32 s65, s64, 10""")
    e.vmem(f"buffer_load_dwordx4 {vr(L0,4)}, v6, {SX}, s65 offen {UNT}", "rs")
    e.vmem(f"buffer_load_dwordx4 {vr(L0+4,4)}, v6, {SX}, s65 offen offset:512 {UNT}", "rs")
    e("""s_add_u32 s66, s23, 8
    s_add_u32 s67, s23, 24
    s_cmp_eq_u32 s19, 1
    s_cselect_b32 s66, s67, s66
    s_add_u32 s67, s23, 32
    s_cmp_lt_u32 s23, 8
    s_cselect_b32 s67, s23, s67
    s_cmp_eq_u32 s19, 2
    s_cselect_b32 s66, s67, s66
    s_add_u32 s67, s23, 48
    s_cmp_eq_u32 s19, 3
    s_cselect_b32 s66, s67, s66
    v_lshrrev_b32 v2, 3, v0
    v_lshlrev_b32 v3, 4, v5
    s_cmp_ge_u32 s66, 52
    s_cbranch_scc1 L_CSD
    s_lshl_b32 s67, s66, 7
    s_cmp_ge_u32 s66, 24
    s_cbranch_scc1 L_CSW
    v_mul_u32_u24 v4, 3072, v2
    v_add_u32 v4, v4, v3""")
    e(f"s_mul_i32 s68, s20, {32*3072}")
    e("s_add_u32 s68, s68, s67")
    for t in range(4):
        e(f"buffer_load_dwordx4 {vr(CL+4*t,4)}, v4, {SW}, s68 offen {UNT}")
        if t < 3: e(f"s_add_u32 s68, s68, {8*3072}")
    e("s_branch L_CSD")
    e("L_CSW:")
    e("v_mul_u32_u24 v4, 3584, v2")
    e("v_add_u32 v4, v4, v3")
    e(f"s_mul_i32 s68, s20, {32*3584}")
    e("s_add_u32 s68, s68, s67")
    e(f"s_sub_u32 s68, s68, {24*128}")
    for t in range(4):
        e(f"buffer_load_dwordx4 {vr(CL+4*t,4)}, v4, {S1}, s68 offen {UNT}")
        if t < 3: e(f"s_add_u32 s68, s68, {8*3584}")
    e("L_CSD:")
    if opt.get("unear", 1):
        if opt.get("pfc", 1): pfcode()
        i0 = e.lines.index("L_UTIL:")
        blk = e.lines[i0 + 1:] + ["  s_branch L_UTIL"]
        del e.lines[i0 + 1:]
        j0 = e.lines.index("  UINIT_HERE")
        e.lines[j0:j0 + 1] = blk
    if PFU == 2:
        e("s_mov_b32 s74, s64")
        pf_x(); pf_w()
        e("s_mov_b32 s64, s74")
    e(f"""s_mov_b32 s69, 0xffff0000
    s_mov_b32 s70, 0x3b000000
    s_lshl_b32 s64, s64, 4
    s_add_u32 s64, s64, {WS_RS:#x}
    v_lshlrev_b32 v14, 4, v0
    s_lshl_b32 s71, s23, 8
    s_add_u32 s72, s71, {512*4}
    v_add_u32 v15, s72, v14
    s_add_u32 s72, s71, {1536*4 - 256}
    v_add_u32 v2, s72, v14
    v_cmp_le_u32 vcc, 16, v0
    s_lshl_b32 s72, s23, 7
    s_sub_u32 s72, s72, 512
    v_cndmask_b32 v15, v15, v2, vcc
    v_add_u32 v2, s72, v14
    v_cmp_le_u32 vcc, 32, v0
    s_mul_i32 s72, s23, 192
    s_add_u32 s72, s72, {2560*4 - 640}
    v_cndmask_b32 v15, v15, v2, vcc
    v_min_u32 v2, 51, v0
    v_lshlrev_b32 v2, 4, v2
    v_add_u32 v2, s72, v2
    v_cmp_le_u32 vcc, 40, v0
    s_nop 1
    v_cndmask_b32 v15, v15, v2, vcc""")
    def piece(n):
        if n == 0:
            e("s_cmp_ge_u32 s66, 52")
            e("s_cbranch_scc1 L_P0A")
            e(f"s_waitcnt vmcnt({4 + (2 if PFU == 2 else 0)})")
            e("s_branch L_P0B")
            e("L_P0A:")
            e(f"s_waitcnt vmcnt({2 if PFU == 2 else 0})")
            e("L_P0B:")
            for q in range(8):
                e(f"v_lshlrev_b32 v{U+2*q}, 16, v{L0+q}")
                e(f"v_and_b32 v{U+2*q+1}, s69, v{L0+q}")
            for q in range(4): e(f"v_add_f32 v{A+q}, v{U+q}, v{U+4+q}")
            for t in range(2, 4):
                for q in range(4): e(f"v_add_f32 v{A+q}, v{A+q}, v{U+4*t+q}")
            e(f"v_add_f32 v{A}, v{A}, v{A+1}")
            e(f"v_add_f32 v{A+2}, v{A+2}, v{A+3}")
            e(f"v_add_f32 v{A}, v{A}, v{A+2}")
            reduce32(e, [A], [A + 1])
            e(f"v_mul_f32 v{A}, s70, v{A}")
            e(f"v_add_u32 v{A+6}, {EPC:#x}, v{VE}")
            e(f"v_mov_b32 v2, {L_MISC}")
            e("v_mov_b32 v3, 0")
            e(f"ds_write_b32 v2, v{A+6}")
            e("v_lshl_add_u32 v2, v0, 2, v2")
            e("s_mov_b64 exec, -2")
            e("ds_write_b32 v2, v3")
            e("s_mov_b64 exec, -1")
        if n == 1:
            for q in range(16): e(f"v_sub_f32 v{U+q}, v{U+q}, v{A}")
            for q in range(4): e(f"v_mul_f32 v{L0+q}, v{U+q}, v{U+q}")
            for q in range(4, 16): e(f"v_fmac_f32 v{L0+(q&3)}, v{U+q}, v{U+q}")
            e(f"v_add_f32 v{L0}, v{L0}, v{L0+1}")
            e(f"v_add_f32 v{L0+2}, v{L0+2}, v{L0+3}")
            e(f"v_add_f32 v{A+4}, v{L0}, v{L0+2}")
            reduce32(e, [A + 4], [A + 5])
            e(f"v_mov_b32 v{A+5}, 0x3727c5ac")
            e(f"v_fma_f32 v{A+4}, v{A+4}, s70, v{A+5}")
            e(f"v_rsq_f32 v{A+4}, v{A+4}")
            e(f"v_readfirstlane_b32 s61, v{A+6}")
            e(f"v_mov_b32 v{A+7}, v{A+6}")
            e(f"v_mul_f32 v{A+5}, v{A}, v{A+4}")
            e(f"v_sub_f32 v{A+5}, 0, v{A+5}")
            e("s_mov_b32 s71, 0xff")
            e(f"v_bfi_b32 v{A+4}, s71, v{A+6}, v{A+4}")
            e(f"v_bfi_b32 v{A+5}, s71, v{A+6}, v{A+5}")
            e("s_mov_b32 exec_lo, 1")
            e("s_mov_b32 exec_hi, 1")
            e(f"buffer_store_dwordx4 {vr(A+4,4)}, v{VE+1}, {SS}, s64 offen sc1")
            e("s_mov_b64 exec, -1")
        if n == 2:
            e(f"s_waitcnt vmcnt({1 + (2 if PFU == 2 else 0)})")
            for q in range(4):
                e(f"v_lshlrev_b32 v{C0+2*q}, 16, v{CL+q}")
                e(f"v_and_b32 v{C0+2*q+1}, s69, v{CL+q}")
            for t in range(1, 4):
                for q in range(4):
                    e(f"v_lshlrev_b32 v{C1+2*q}, 16, v{CL+4*t+q}")
                    e(f"v_and_b32 v{C1+2*q+1}, s69, v{CL+4*t+q}")
                for q in range(8): e(f"v_add_f32 v{C0+q}, v{C0+q}, v{C1+q}")
            e("s_nop 1")
            for q in range(8): e(f"v_add_f32_dpp v{C0+q}, v{C0+q}, v{C0+q} row_ror:8 row_mask:0xf bank_mask:0xf")
            e("s_mov_b32 s72, 0xff00ff00")
            e("s_mov_b32 s73, 0xff00ff00")
            for q in range(4): e(f"v_cndmask_b32 v{C0+q}, v{C0+q}, v{C0+4+q}, s[72:73]")
            for sw in ("v_permlane16_swap_b32", "v_permlane32_swap_b32"):
                for q in range(4): e(f"v_mov_b32 v{C1+q}, v{C0+q}")
                e("s_nop 0")
                for q in range(4): e(f"{sw} v{C0+q}, v{C1+q}")
                for q in range(4): e(f"v_add_f32 v{C0+q}, v{C0+q}, v{C1+q}")
            e("s_mov_b32 s71, 0xff")
            e(f"v_bfe_u32 v{C1+2}, v0, 3, 1")
            for q in range(4): e(f"v_bfi_b32 v{C0+q}, s71, v{A+6}, v{C0+q}")
            e(f"v_lshlrev_b32 v{C1+1}, 5, v5")
            e(f"v_lshl_add_u32 v{C1+1}, v{C1+2}, 4, v{C1+1}")
            e(f"s_mul_i32 s71, s20, {3328*4}")
            e("s_lshl_b32 s72, s66, 8")
            e("s_add_u32 s71, s71, s72")
            e(f"s_add_u32 s71, s71, {WS_CS:#x}")
            e("s_cmp_ge_u32 s66, 52")
            e("s_cbranch_scc1 L_P2S")
            e("s_mov_b64 exec, 0xffff")
            e(f"buffer_store_dwordx4 {vr(C0,4)}, v{C1+1}, {SS}, s71 offen sc1")
            e("s_mov_b64 exec, -1")
            e("L_P2S:")
    def kvsetup():
        e(f"""v_and_b32 v10, 3, v0
        v_min_u32 v10, 2, v10
        s_sub_u32 s76, s20, 2
        v_add_u32 v10, s76, v10
        v_max_i32 v10, 0, v10
        v_lshlrev_b32 v10, 11, v10
        v_bfe_u32 v11, v0, 2, 1
        v_lshl_add_u32 v10, v11, 10, v10
        s_lshr_b32 s76, s23, 1
        s_lshl_b32 s76, s76, 7
        s_add_u32 s76, s76, {WS_F1:#x}
        v_mov_b32 v11, s61
        v_lshlrev_b32 v1, 4, v0
        s_lshr_b32 s52, s19, 1
        s_lshl_b32 s53, s23, 1
        s_add_u32 s53, s53, s52
        s_lshl_b32 s53, s53, 6
        s_and_b32 s54, s19, 1
        s_mul_i32 s54, s54, 6
        s_lshl_b32 s55, s20, 2
        s_add_u32 s54, s54, s55
        s_mul_i32 s55, s19, 6144""")
    def kvdma(lo=0, hi=6):
        for t in range(lo, hi):
            e(f"s_add_u32 s68, s54, {t}")
            e("s_sub_i32 s68, s68, 8")
            e("s_max_i32 s68, s68, 0")
            e("s_add_u32 s68, s68, s53")
            e("s_lshl_b32 s68, s68, 10")
            e(f"s_add_u32 m0, s55, {L_K + t*1024}")
            e("s_add_u32 s69, s68, 0x200000")
            e(f"buffer_load_dwordx4 v1, {SS}, s68 offen sc1 lds")
            e(f"s_add_u32 m0, s55, {L_V + t*1024}")
            e("s_nop 0")
            e(f"buffer_load_dwordx4 v1, {SS}, s69 offen sc1 lds")
    G0 = 84
    def gather():
        e(f"s_mov_b32 s71, {WS_CS:#x}")
        for g in range(16):
            e(f"buffer_load_dwordx4 {vr(G0+4*g,4)}, v15, {SS}, s71 offen sc1")
            e(f"s_add_u32 s71, s71, {3328*4}")
        e("s_lshl_b32 s71, s20, 11")
        e(f"s_add_u32 s71, s71, {WS_RS:#x}")
        for h in range(2):
            e(f"buffer_load_dwordx4 {vr(G0+64+4*h,4)}, v14, {SS}, s71 offen offset:{h*1024} sc1")
    PK = opt.get("pk", [0, 1, 1]); GK = opt.get("gk", 4); CK = opt.get("ck", 6)
    for n_, kk_ in enumerate(PK):
        if kk_ < 0: piece(n_)
    for k in range(UL + 1, 9):
        if k == PK[0] + 2: e("s_waitcnt lgkmcnt(0)")
        bstamp(k)
        e("s_barrier")
        for n_, kk_ in enumerate(PK):
            if kk_ == k: piece(n_)
        PW0 = opt.get("pfw", 0)
        if PW0 and PW0 <= k < 16:
            if k == PW0:
                srd(e, 44, 14, 1792 * 1024)
                srd(e, 48, 8, 512 * 1024)
                e("s_lshr_b32 s78, s2, 3")
                e("s_mul_i32 s79, s78, 57344")
                e("s_mul_i32 s3, s19, 14336")
                e("s_add_u32 s79, s79, s3")
                e("s_lshl_b32 s78, s78, 14")
                e("s_lshl_b32 s3, s19, 12")
                e("s_add_u32 s78, s78, s3")
            per = -(-18 // (opt.get("pfwe", 16) - PW0))
            for j in range(per * (k - PW0), min(18, per * (k - PW0 + 1))):
                if j < 14:
                    e(f"s_add_u32 s3, s79, {j*1024}")
                    e(f"buffer_load_dwordx4 v[120:123], v14, {S2}, s3 offen")
                else:
                    e(f"buffer_load_dwordx4 v[120:123], v14, {SO}, s78 offen offset:{(j-14)*1024}")
        if opt.get("pfl2", 0) and 8 <= k <= 10:
            if k == 8:
                srd(e, 44, 14, 1792 * 1024)
                srd(e, 48, 8, 512 * 1024)
                e("v_lshlrev_b32 v12, 7, v0")
                e("s_lshr_b32 s78, s2, 3")
            j = k - 8
            sk = lab("NOP2")
            if j < 2:
                e("s_mul_i32 s71, s78, 57344")
                e("s_lshl_b32 s72, s19, 13")
                e("s_add_u32 s71, s71, s72")
                if j == 1:
                    e("s_cmp_eq_u32 s19, 3")
                    e(f"s_cbranch_scc1 {sk}")
                    e("s_add_u32 s71, s71, 32768")
                e(f"buffer_load_dword v13, v12, {S2}, s71 offen")
            else:
                e("s_cmp_ge_u32 s19, 2")
                e(f"s_cbranch_scc1 {sk}")
                e("s_lshl_b32 s71, s78, 14")
                e("s_lshl_b32 s72, s19, 13")
                e("s_add_u32 s71, s71, s72")
                e(f"buffer_load_dword v13, v12, {SO}, s71 offen")
            e(f"{sk}:")
        if UST and k == 8:
            e(f"""s_lshl_b32 s3, s19, 12
            v_add_u32 v2, s3, v14
            v_add_u32 v3, {W1A[7]}, v2
            v_add_u32 v2, {W1A[6]}, v2""")
            for s_ in range(8): e(f"ds_read_b128 {vr(16+4*s_,4)}, v{2+(s_>>2)} offset:{(s_&3)*1024}")
            e(f"""s_lshl_b32 s64, s20, 2
            s_add_u32 s64, s64, s19
            s_lshl_b32 s65, s23, 8
            s_add_u32 s65, s65, s64
            s_lshl_b32 s65, s65, 10
            s_mul_i32 s66, s64, 112
            s_lshl_b32 s3, s23, 2
            s_add_u32 s66, s66, s3
            s_lshl_b32 s66, s66, 10
            s_add_u32 s66, s66, {WS_H:#x}
            s_waitcnt lgkmcnt(0)""")
        if UST and k >= 8:
            SP = opt.get("sper", 2)
            for s_ in range(SP * (k - 8), min(8, SP * (k - 7))):
                if s_ < 4: e(f"s_add_u32 s3, s65, {WS_KV + s_*0x10000:#x}")
                else: e(f"s_add_u32 s3, s66, {(s_-4)*1024}")
                e(f"buffer_store_dwordx4 {vr(16+4*s_,4)}, v14, {SS}, s3 offen sc1")
            if k == opt.get("ugk", 12): signal(4, 3, WS_F1, 2, 3, max(0, min(8, SP * (k - 7)) - 4))
            if k == opt.get("ugh", 15): signal(24, 3, WS_F1H, 2, 3)
        if k == opt.get("pf2k", 2) and opt.get("pf2", 1):
            sk = lab("NOPF")
            e("s_cmp_lg_u32 s19, 1")
            e(f"s_cbranch_scc1 {sk}")
            srd(e, 44, 14, 1792 * 1024)
            srd(e, 48, 8, 512 * 1024)
            e("v_lshlrev_b32 v2, 7, v0")
            e("s_mul_i32 s71, s2, 7168")
            e("s_mov_b32 exec_hi, 0xffffff")
            e(f"buffer_load_dword v160, v2, {S2}, s71 offen")
            e("s_lshl_b32 s71, s2, 11")
            e("s_mov_b64 exec, 0xffff")
            e(f"buffer_load_dword v161, v2, {SO}, s71 offen")
            e("s_mov_b64 exec, -1")
            e(f"{sk}:")
        if k in (GK, CK, CK + 1):
            sk = lab("NOPOST")
            e("s_cmp_lg_u32 s19, 0")
            e(f"s_cbranch_scc1 {sk}")
            if k == GK: gather()
            if k == CK:
                e("s_mov_b32 s73, 0x20000")
                e("L_CHK:")
                e("s_waitcnt vmcnt(0)")
                e(f"v_xor_b32 v2, s61, v{G0}")
                for i in list(range(G0 + 1, G0 + 66)) + [G0 + 68, G0 + 69]: e(f"v_bitop3_b32 v2, v2, v{i}, s61 bitop3:0xf6")
                e("v_and_b32 v2, 0xff, v2")
                for i in (66, 67, 70, 71): e(f"v_bitop3_b32 v2, v2, v{G0+i}, s61 bitop3:0xf6")
                e("v_cmp_ne_u32 vcc, 0, v2")
                e("s_sub_u32 s73, s73, 1")
                e("s_cmp_eq_u32 s73, 0")
                e("s_cbranch_scc1 L_GOT")
                e("s_cmp_eq_u64 vcc, 0")
                e("s_cbranch_scc1 L_GOT")
                gather()
                e("s_branch L_CHK")
                e("L_GOT:")
            if k == CK + 1:
                e("s_mov_b32 s71, 0xffffff00")
                for i in list(range(G0, G0 + 66)) + [G0 + 68, G0 + 69]: e(f"v_and_b32 v{i}, s71, v{i}")
                for g in range(1, 16):
                    for h in range(4): e(f"v_add_f32 v{G0+h}, v{G0+h}, v{G0+4*g+h}")
                e(f"v_add_u32 v2, {L_ST}, v14")
                e(f"ds_write_b128 v2, {vr(G0+64,4)}")
                e(f"ds_write_b128 v2, {vr(G0+68,4)} offset:1024")
                e(f"ds_write_b128 v2, {vr(G0,4)} offset:2048")
                e("s_waitcnt lgkmcnt(0)")
                ldsadd(20, 2, 3)
            e(f"{sk}:")
    bflush()
    stamp(3)
    e.vm = []
    e("""s_lshr_b32 s52, s19, 1
    s_lshl_b32 s52, s52, 5
    s_and_b32 s62, s19, 1
    s_lshl_b32 s3, s62, 2
    s_add_u32 s52, s52, s3""")
    esetup()
    for c in LATE:
        ldswait(DONE + 4 * FIN["W2pre"][c], 4, 2, 3)
        issueW2(c)
    kvsetup()
    e.vmem(f"buffer_load_dword v4, v10, {SS}, s76 offen sc1", "kvf")
    for c in LATE:
        e.vwait(("w2", c))
        ldsadd(FULL + 4 * (8 + c), 2, 3)
    ldswait(DONE + 4 * FIN["KVpre"], 4, 2, 3)
    apoll_check(10, "s76", 11, 4, "kvf")
    stamp(4)
    kvdma()
    ldswait(DONE + 4 * FIN["Qpre"], 4, 2, 3)
    e(f"v_add_u32 v2, {L_ONE}, v1")
    for q in range(4): e(f"v_mov_b32 v{8+q}, 0x3f803f80")
    e("ds_write_b128 v2, v[8:11]")
    smasks()
    e("v_mov_b32 v6, 0xffff")
    e("v_mov_b32 v7, 0xffff0000")
    for q in range(8):
        e(f"v_cndmask_b32 v{140+q}, 0, v6, s[{64+4*q}:{65+4*q}]")
        e(f"v_cndmask_b32 v12, 0, v7, s[{66+4*q}:{67+4*q}]")
        e(f"v_or_b32 v{140+q}, v{140+q}, v12")
    e("ds_write_b128 v2, v[140:143] offset:1024")
    e("ds_write_b128 v2, v[144:147] offset:2048")
    e("s_add_u32 s96, s19, 4")
    e("s_mov_b32 s97, 0")
    e("s_waitcnt vmcnt(0) lgkmcnt(0)")
    ldsadd(16, 2, 3)
    stamp(5)

    e("L_ATT:")
    e.vm = []; e.lg = []
    Q = 8
    K = lambda u: 12 + 4 * u
    V = lambda u, g: 48 + ((u & 1) * 2 + g) * 4
    S = lambda b: 64 + 16 * b
    P, O = 112, 120
    VNEG, M0_, M1_, NM, MK = 136, 137, 138, 139, 140
    VA, VSTR = 148, 149
    e(f"v_mov_b32 v{VNEG}, {NEG:#x}")
    e(f"""s_and_b32 s3, s96, 3
    s_lshl_b32 s26, s20, 2
    s_add_u32 s26, s26, s3
    s_add_u32 s25, s26, 1
    s_min_u32 s25, s25, 9
    s_lshr_b32 s62, s96, 2
    s_lshl_b32 s27, s23, 1
    s_add_u32 s27, s27, s62
    v_lshlrev_b32 v1, 4, v0
    s_lshl_b32 s63, s96, 10
    s_add_u32 s63, s63, {L_Q}
    v_add_u32 v3, s63, v1
    s_mul_i32 s62, s62, 12288
    s_lshl_b32 s3, s3, 10
    s_add_u32 s3, s3, s62
    s_add_u32 s62, s3, {L_K}
    v_add_u32 v4, s62, v1
    v_lshrrev_b32 v5, 5, v0
    v_lshlrev_b32 v5, 2, v5
    v_bfe_u32 v6, v0, 2, 2
    v_add_u32 v5, v5, v6
    v_lshlrev_b32 v5, 4, v5
    v_bfe_u32 v6, v0, 1, 1
    v_lshl_add_u32 v5, v6, 9, v5
    v_and_b32 v6, 1, v0
    v_lshl_add_u32 v5, v6, 3, v5
    s_add_u32 s3, s3, {L_V + 8192}
    v_add_u32 v5, s3, v5
    v_mov_b32 v6, {L_ONE}
    v_mov_b32 v7, 1024
    s_mov_b32 s98, 0xffff
    s_mov_b32 s99, 0xffff
    v_cndmask_b32 v5, v6, v5, s[98:99]
    v_cndmask_b32 v{VSTR}, 0, v7, s[98:99]
    v_lshlrev_b32 v7, 3, v{VSTR}
    v_sub_u32 v{VA+2}, v5, v7""")
    stamp(6)
    def owed():
        sk = lab("NOOWE")
        e("s_cmp_eq_u32 s97, 0")
        e(f"s_cbranch_scc1 {sk}")
        keepl = list(e.lg)
        signal(12, 3, WS_F1B, 152, 153)
        e.lg = keepl
        e("s_mov_b32 s97, 0")
        e(f"{sk}:")
    if opt.get("owu", 1) == 0: owed()
    ldswait(16, 8, 2, 6)
    e(f"s_setprio {opt.get('aprio', 0)}")
    stamp(7)
    def fill(buf, val, diag):
        for j in range(16):
            a, b = (f"v{VNEG}", val) if diag else (val, f"v{VNEG}")
            e(f"v_cndmask_b32 v{S(buf)+j}, {a}, {b}, s[{64+2*j}:{65+2*j}]")
    def smfma(u, buf, cin):
        e.lwait(("K", u))
        e(f"v_mfma_f32_32x32x16_bf16 {vr(S(buf),16)}, {vr(K(u),4)}, {vr(Q,4)}, {cin}")
    def vread(u, par=None, va=None):
        if va is None:
            if u == 0: e(f"v_mov_b32 v{VA}, v5")
            else: e(f"v_sub_u32 v{VA}, v{VA}, v{VSTR}")
            va = VA
        for g in range(2):
            r = V(u if par is None else par, g)
            for h in range(2): e.lds(f"ds_read_b64_tr_b16 v[{r+2*h}:{r+2*h+1}], v{va} offset:{g*256 + h*128}", ("V", u))
    PD, PFR = S(2), S(2) + 8
    if opt.get("noatt"): e("s_branch L_P2DONE")
    e(f"v_add_u32 v2, {L_ONE}, v1")
    e.lds(f"ds_read_b128 {vr(Q,4)}, v3", "Q")
    for u in [0, 8, 1]: e.lds(f"ds_read_b128 {vr(K(u),4)}, v4 offset:{(8-u)*1024}", ("K", u))
    vread(0); vread(8, 1, VA + 2)
    smfma(0, 0, "0"); smfma(8, 2, "0"); smfma(1, 1, "0")
    e.lwait(("V", 0))
    e.lds(f"ds_read_b128 {vr(MK,4)}, v2 offset:1024", "MK")
    e.lds(f"ds_read_b128 {vr(MK+4,4)}, v2 offset:2048", "MK")
    for u in range(2, 8): e.lds(f"ds_read_b128 {vr(K(u),4)}, v4 offset:{(8-u)*1024}", ("K", u))
    e("s_nop 2")
    s0 = S(0)
    for j in range(16): e(f"v_cndmask_b32 v{s0+j}, v{S(2)+j}, v{s0+j}, s[{64+2*j}:{65+2*j}]")
    for j in range(16): e(f"v_exp_f32 v{s0+j}, v{s0+j}")
    for q in range(8): e(f"v_cvt_pk_bf16_f32 v{P+q}, v{s0+2*q}, v{s0+2*q+1}")
    e.lwait("MK")
    for q in range(8): e(f"v_and_b32 v{PD+q}, v{MK+q}, v{P+q}")
    e.lwait(("V", 8))
    e(f"v_mfma_f32_32x32x16_bf16 {vr(O,16)}, {vr(V(0,0),4)}, {vr(PD,4)}, 0")
    for q in range(8): e(f"v_bfi_b32 v{PFR+q}, v{MK+q}, 0, v{P+q}")
    e(f"v_mfma_f32_32x32x16_bf16 {vr(O,16)}, {vr(V(0,1),4)}, {vr(PD+4,4)}, {vr(O,16)}")
    e("s_cmp_lt_u32 s25, 9")
    e("s_cbranch_scc1 L_NOFAR")
    e(f"v_mfma_f32_32x32x16_bf16 {vr(O,16)}, {vr(V(1,0),4)}, {vr(PFR,4)}, {vr(O,16)}")
    e(f"v_mfma_f32_32x32x16_bf16 {vr(O,16)}, {vr(V(1,1),4)}, {vr(PFR+4,4)}, {vr(O,16)}")
    e("L_NOFAR:")
    vread(1)
    e("s_cmp_eq_u32 s25, 1")
    e("s_cbranch_scc1 L_FCHK")
    def pv(u, g): e(f"v_mfma_f32_32x32x16_bf16 {vr(O,16)}, {vr(V(u,g),4)}, {vr(P+4*g,4)}, {vr(O,16)}")
    for u in range(1, 8):
        s_ = S(u % 2)
        if u + 1 <= 7: smfma(u + 1, (u + 1) % 2, "0")
        for j in range(2): e(f"v_exp_f32 v{s_+j}, v{s_+j}")
        if u > 1: pv(u - 1, 1)
        if u + 1 <= 7: vread(u + 1)
        for j in range(2, 8): e(f"v_exp_f32 v{s_+j}, v{s_+j}")
        for q in range(4): e(f"v_cvt_pk_bf16_f32 v{P+q}, v{s_+2*q}, v{s_+2*q+1}")
        for j in range(8, 10): e(f"v_exp_f32 v{s_+j}, v{s_+j}")
        e.lwait(("V", u))
        pv(u, 0)
        for j in range(10, 16): e(f"v_exp_f32 v{s_+j}, v{s_+j}")
        for q in range(4, 8): e(f"v_cvt_pk_bf16_f32 v{P+q}, v{s_+2*q}, v{s_+2*q+1}")
        if u == opt.get("owu", 1): owed()
        if u < 7:
            e(f"s_cmp_eq_u32 s25, {u+1}")
            e(f"s_cbranch_scc1 L_FX{u&1}")
    e("L_FX1:")
    e("s_nop 1")
    pv(1, 1)
    e("s_branch L_FCHK")
    e("L_FX0:")
    e("s_nop 1")
    pv(0, 1)
    e("L_FCHK:")
    if opt.get("owu", 1): owed()
    e("s_mov_b32 s52, 0x1f800000")
    e("s_mov_b32 s53, 0x5f800000")
    e("s_mov_b32 s3, 0x7f800000")
    e("s_waitcnt lgkmcnt(0)")
    e("s_nop 7")
    e(f"v_add_f32 v6, |v{O}|, |v{O+1}|")
    e(f"v_add_f32 v7, |v{O+2}|, |v{O+3}|")
    e(f"v_add_f32 v2, |v{O+4}|, |v{O+5}|")
    e(f"v_add_f32 v3, |v{O+6}|, |v{O+7}|")
    e(f"v_cmp_le_f32 s[62:63], s52, v{O+8}")
    e(f"v_cmp_ge_f32 s[98:99], s53, v{O+8}")
    e("v_add_f32 v6, v6, v7")
    e("v_add_f32 v2, v2, v3")
    e("v_add_f32 v6, v6, v2")
    e("s_and_b64 s[62:63], s[62:63], s[98:99]")
    e("v_cmp_gt_f32 vcc, s3, v6")
    e("s_nop 0")
    e("s_and_b64 s[62:63], s[62:63], vcc")
    e("s_cmp_eq_u64 s[62:63], -1")
    if opt.get("forceslow"): e("s_cmp_eq_u32 s62, 12345")
    e("s_cbranch_scc1 L_P2DONE")
    e.lg = []
    e(f"v_mov_b32 v{M0_}, v{VNEG}")
    e(f"v_mov_b32 v{M1_}, v{VNEG}")
    fill(0, "0", True)
    e("s_nop 1")
    smfma(0, 0, vr(S(0), 16))
    smfma(1, 1, "0")
    for u in range(9):
        if u + 2 <= 8:
            if u + 2 == 8:
                fill((u + 2) % 3, "0", False); e("s_nop 1")
                smfma(u + 2, (u + 2) % 3, vr(S((u + 2) % 3), 16))
            else:
                smfma(u + 2, (u + 2) % 3, "0")
        if u == 0: e("s_nop 9")
        for q in range(8):
            m = M0_ + (q & 1)
            e(f"v_max3_f32 v{m}, v{S(u%3)+2*q}, v{S(u%3)+2*q+1}, v{m}")
        if u < 8:
            e(f"s_cmp_eq_u32 s25, {u+1}")
            e("s_cbranch_scc1 L_P1DONE")
    e("L_P1DONE:")
    vread(0)
    e(f"v_max_f32 v{M0_}, v{M0_}, v{M1_}")
    e(f"v_mov_b32 v{M1_}, v{M0_}")
    e("s_nop 1")
    e(f"v_permlane32_swap_b32 v{M0_}, v{M1_}")
    e("s_nop 1")
    e(f"v_max_f32 v{M0_}, v{M0_}, v{M1_}")
    e(f"v_sub_f32 v{NM}, 0, v{M0_}")
    e("s_nop 3")
    CB = S(2)
    for j in range(16): e(f"v_mov_b32 v{CB+j}, v{NM}")
    fill(0, f"v{NM}", True)
    e("s_nop 1")
    smfma(0, 0, vr(S(0), 16))
    for u in range(9):
        s = S(u % 2)
        if u + 1 <= 8:
            nb_ = (u + 1) % 2
            if u + 1 == 8:
                fill(nb_, f"v{NM}", False); e("s_nop 1")
                smfma(u + 1, nb_, vr(S(nb_), 16))
            else:
                smfma(u + 1, nb_, vr(CB, 16))
            vread(u + 1)
        if u == 0: e("s_nop 6")
        for j in range(8): e(f"v_exp_f32 v{s+j}, v{s+j}")
        for q in range(4): e(f"v_cvt_pk_bf16_f32 v{P+q}, v{s+2*q}, v{s+2*q+1}")
        for j in range(8, 16): e(f"v_exp_f32 v{s+j}, v{s+j}")
        e.lwait(("V", u))
        e(f"v_mfma_f32_32x32x16_bf16 {vr(O,16)}, {vr(V(u,0),4)}, {vr(P,4)}, {'0' if u == 0 else vr(O,16)}")
        for q in range(4, 8): e(f"v_cvt_pk_bf16_f32 v{P+q}, v{s+2*q}, v{s+2*q+1}")
        e("s_nop 1")
        e(f"v_mfma_f32_32x32x16_bf16 {vr(O,16)}, {vr(V(u,1),4)}, {vr(P+4,4)}, {vr(O,16)}")
        if u < 8:
            e(f"s_cmp_eq_u32 s25, {u+1}")
            e("s_cbranch_scc1 L_P2X")
    e("L_P2X:")
    e("s_waitcnt lgkmcnt(0)")
    e("s_nop 12")
    e("L_P2DONE:")
    e("s_lshl_b32 s3, s26, 5")
    e("s_add_u32 s3, s3, s27")
    e("s_lshl_b32 s3, s3, 10")
    e(f"s_add_u32 s3, s3, {WS_O:#x}")
    e(f"v_rcp_f32 v7, v{O+8}")
    e("s_nop 0")
    for j in range(8): e(f"v_mul_f32 v{O+j}, v{O+j}, v7")
    for q in range(4): e(f"v_cvt_pk_bf16_f32 v{P+q}, v{O+2*q}, v{O+2*q+1}")
    e(f"buffer_store_dwordx4 {vr(P,4)}, v1, {SS}, s3 offen {'' if opt.get('hplain') else 'sc1'}")
    gate('att')
    stamp(8)
    signal(8, 7, WS_F2)
    stamp(9)
    e("s_cmp_lg_u32 s2, 0")
    e("s_cbranch_scc1 L_FIN")
    e("s_cmp_lg_u32 s96, 1")
    e("s_cbranch_scc1 L_FIN")
    e("v_lshlrev_b32 v6, 7, v0")
    e("s_mov_b32 s63, 0x20000")
    e("L_BCHK:")
    for g in range(4):
        e(f"s_mov_b32 s62, {WS_F2 + g*8192:#x}")
        e(f"buffer_load_dword v{8+g}, v6, {SS}, s62 offen sc1")
    e("s_waitcnt vmcnt(0)")
    e("v_xor_b32 v7, s61, v8")
    for i in range(9, 12): e(f"v_bitop3_b32 v7, v7, v{i}, s61 bitop3:0xf6")
    e("v_cmp_ne_u32 vcc, 0, v7")
    e("s_sub_u32 s63, s63, 1")
    e("s_cmp_eq_u32 s63, 0")
    e("s_cbranch_scc1 L_FIN")
    e("s_cmp_lg_u64 vcc, 0")
    e("s_cbranch_scc1 L_BCHK")
    e("s_mov_b64 exec, 1")
    e("v_mov_b32 v6, 0")
    e("v_mov_b32 v7, s61")
    e(f"s_mov_b32 s62, {WS_EP:#x}")
    e(f"buffer_store_dword v7, v6, {SS}, s62 offen sc1")
    e("s_mov_b64 exec, -1")
    e("L_FIN:")
    e.vm = []; e.lg = []
    srd(e, 28, 10, 2048 * 1024)
    e(f"""v_lshrrev_b32 v7, 3, v0
    v_and_b32 v14, 7, v0
    v_lshlrev_b32 v8, 4, v14
    v_lshl_add_u32 v2, v7, 10, v8
    s_lshl_b32 s62, s58, 16
    s_lshl_b32 s3, s96, 13
    s_add_u32 s62, s62, s3
    s_lshl_b32 s3, s59, 7
    s_add_u32 s62, s62, s3""")
    e(f"buffer_load_dwordx4 v[8:11], v2, {SX}, s62 offen")
    e(f"""s_and_b32 s3, s96, 3
    s_lshl_b32 s3, s3, 10
    s_cmp_ge_u32 s96, 4
    s_mov_b32 s63, {BREG[0]}
    s_cselect_b32 s63, {BREG[2]}, s63
    s_mov_b32 s64, {BREG[1]}
    s_cselect_b32 s64, {BREG[3]}, s64
    s_add_u32 s63, s63, s3
    s_add_u32 s64, s64, s3
    v_and_b32 v12, 3, v0
    v_lshlrev_b32 v12, 1, v12
    v_xor_b32 v12, v12, v7
    v_bfe_u32 v13, v0, 2, 1
    v_xor_b32 v12, v12, v13
    v_lshlrev_b32 v12, 4, v12
    v_lshl_add_u32 v12, v7, 7, v12
    v_mov_b32 v15, s63
    v_mov_b32 v16, s64
    v_cmp_eq_u32 vcc, 1, v13
    s_nop 1
    v_cndmask_b32 v15, v15, v16, vcc
    v_add_u32 v24, v15, v12
    v_xor_b32 v25, 16, v24""")
    stamp(10)
    e("s_barrier")
    stamp(11)
    R = lambda src, h: 48 + src * 8 + h * 4
    for src in range(4):
        for h in range(2): e.lds(f"ds_read_b128 {vr(R(src,h),4)}, v{24+h} offset:{src*4096}", src)
    e("s_mov_b32 s3, 0xffff0000")
    e("s_waitcnt vmcnt(0)")
    for q in range(4):
        e(f"v_lshlrev_b32 v{32+2*q}, 16, v{8+q}")
        e(f"v_and_b32 v{33+2*q}, s3, v{8+q}")
    for src in range(4):
        e.lwait(src)
        for q in range(4): e(f"v_pk_add_f32 {pk(32+2*q)}, {pk(32+2*q)}, {pk(R(src,0)+2*q)}")
    for q in range(4): e(f"v_cvt_pk_bf16_f32 v{40+q}, v{32+2*q}, v{33+2*q}")
    e("buffer_store_dwordx4 v[40:43], v2, s[28:31], s62 offen " + opt.get("ost", "nt"))
    if opt.get("deadline"):
        e("v_readlane_b32 s4, v167, 0")
        e("L_DLY:")
        e("s_memrealtime s[6:7]")
        e("s_waitcnt lgkmcnt(0)")
        e("s_sub_u32 s8, s6, s4")
        e(f"s_cmp_lt_u32 s8, {opt['deadline']}")
        e("s_cbranch_scc1 L_DLY")
    if opt.get("delay"):
        tm = "s_memrealtime" if opt.get("delayrt") else "s_memtime"
        e(f"{tm} s[4:5]")
        e("s_waitcnt lgkmcnt(0)")
        e("L_DLY:")
        e(f"{tm} s[6:7]")
        e("s_waitcnt lgkmcnt(0)")
        e("s_sub_u32 s8, s6, s4")
        e(f"s_cmp_lt_u32 s8, {opt['delay']}")
        e("s_cbranch_scc1 L_DLY")
    if ST:
        e("L_DUMP:")
        stamp(12)
        e("s_waitcnt vmcnt(0)")
        stamp(13); stamp(14, True)
        if opt.get("dbgst") is not None:
            e("s_load_dwordx2 s[4:5], s[0:1], 56")
            e(f"s_cmp_lg_u32 s2, {opt['dbgst']}")
            e("s_cbranch_scc1 L_END")
            e("s_cmp_lg_u32 s18, 4")
            e("s_cbranch_scc1 L_END")
            e(f"v_readlane_b32 s6, v{VST}, 1")
            e(f"v_readlane_b32 s7, v{VST}, 0")
            e("s_waitcnt lgkmcnt(0)")
            e(f"v_subrev_u32 v3, s6, v{VST}")
            e(f"v_subrev_u32 v4, s7, v{VST}")
            e("v_cmp_eq_u32 vcc, 14, v0")
            e("s_nop 1")
            e("v_cndmask_b32 v3, v3, v4, vcc")
            e("v_lshlrev_b32 v2, 2, v0")
            e("s_mov_b64 exec, 0xffff")
            e("global_store_dword v2, v3, s[4:5]")
            e("s_endpgm")
        e("s_mul_i32 s3, s2, 12")
        e("s_add_u32 s3, s3, s18")
        e("s_lshl_b32 s3, s3, 7")
        e("s_add_u32 s3, s3, 0x1000000")
        e("v_lshl_add_u32 v2, v0, 2, s3")
        e("s_mov_b64 exec, 0xffffffff")
        e(f"global_store_dword v2, v{VST}, s[16:17]")
    e("L_END:")
    e("s_endpgm")
    return name, e.text(), kd(name, 168), (256, 768, LDS)

def build(opt, path):
    n, t, k, (g, b, lds) = gen(opt)
    ref = open(f"cdna_kernels/{NAME}.s.ref").read().split("\n")
    head = [l for l in ref if l.startswith(";") and "@launch" not in l and "Override launch" not in l and "grid=ceil" not in l]
    s = "\n".join(head[:10]) + "\n"
    dm = opt.get("dummy")
    if dm:
        ll = [f"; @launch kernel=dum_kernel grid=({dm[0]},1,1) block=({dm[1]},1,1) lds={dm[2]}\n", f"; @launch kernel={n} grid=({g},1,1) block=({b},1,1) lds={lds}\n"]
        s += "".join(ll if dm[4] == 0 else ll[::-1])
    else: s += f"; @launch grid=({g},1,1) block=({b},1,1) lds={lds}\n"
    s += '.amdgcn_target "amdgcn-amd-amdhsa--gfx950"\n.text\n'
    if dm:
        s += """.globl dum_kernel
.p2align 8
.type dum_kernel,@function
dum_kernel:
  s_memrealtime s[4:5]
  s_waitcnt lgkmcnt(0)
L_DD:
  s_memrealtime s[6:7]
  s_waitcnt lgkmcnt(0)
  s_sub_u32 s8, s6, s4
  s_cmp_lt_u32 s8, 1000
  s_cbranch_scc1 L_DD
  s_endpgm
"""
        k = k + ".p2align 6\n" + kd("dum_kernel", dm[3])
    s += f".globl {n}\n.p2align 8\n.type {n},@function\n" + t
    s += '.section .rodata,"a"\n.p2align 6\n' + k
    open(path, "w").write(s)

if __name__ == "__main__":
    import sys, json
    opt = json.loads(sys.argv[2]) if len(sys.argv) > 2 else {}
    build(opt, sys.argv[1])
```

```python
from emit import *
from alloc import plan3, plan4

NAME = "parallel_sum__sliding_block__dense_activation_relu__prompt"
WS_KV, WS_H, WS_O = 0, 0x600000, 0xD00000
WS_RS = 0xF00000
WS_CS = 0xF10000
WS_EP = 0xF80000
WS_F1, WS_F1B, WS_F2, WS_F1H = 0xF90000, 0xFA0000, 0xFB0000, 0xFC0000
WS_BYTES = 0x1000000
EPC = 0x9E3779B9
L_ST = 158720
L_MISC = L_ST + 3072
FULL, DONE = 64, 128
LDS = L_MISC + 256
ORD2 = list(range(6, 16)) + list(range(6))
NEG = 0xf149f2ca
pk = lambda a: f"v[{a}:{a+1}]"
SW, S1, SX, SS, S2, SO = "s[28:31]", "s[32:35]", "s[36:39]", "s[40:43]", "s[44:47]", "s[48:51]"
VST = 167

def reduce32(e, regs, tmp):
    for ctl in ("quad_perm:[1,0,3,2]", "quad_perm:[2,3,0,1]", "row_half_mirror", "row_mirror"):
        e("s_nop 1")
        for r in regs: e(f"v_add_f32_dpp v{r}, v{r}, v{r} {ctl} row_mask:0xf bank_mask:0xf")
    for r, t in zip(regs, tmp): e(f"v_mov_b32 v{t}, v{r}")
    e("s_nop 1")
    for r, t in zip(regs, tmp): e(f"v_permlane16_swap_b32 v{r}, v{t}")
    e("s_nop 1")
    for r, t in zip(regs, tmp): e(f"v_add_f32 v{r}, v{r}, v{t}")

def gen(opt):
    e = Em()
    name = NAME + "_kernel"
    ST = opt.get("stamps")
    NB = 6
    NT = opt.get("nt", "")
    UNT = opt.get("unt", "")
    PL = opt.get("pl", 2)
    XA, W1A, W2A, FIN = plan3(PL, opt.get("w2l", 2), NB, opt.get("ust", 0))
    if not opt.get("ust", 0): XA, W1A, W2A, FIN = plan4(PL, NB, opt.get("w2t", 5), opt.get("kvlow", 1))
    for j in range(NB): FIN[f"B{j}"] = FIN["Bx"][j]
    LATE = [c for c in range(8) if W2A[c][0] >= 8]
    NEEDD = sorted(set([FIN["W2pre"][c] for c in LATE] + [FIN[f"B{j}"][0] for j in range(NB)] + [FIN["KVpre"], FIN["Qpre"]]))
    BREG = [FIN[f"B{j}"][1] for j in range(NB)]
    BT = [max(FIN[f"B{j}"][0], min(16, opt.get("bt0", 15) + j)) for j in range(NB)]
    L_K, L_V, L_Q, L_ONE = FIN["K"], FIN["V"], FIN["Q"], FIN["ONES"]
    def stamp(i, rt=False):
        if not ST: return
        e(("s_memrealtime" if rt else "s_memtime") + " s[100:101]")
        e("s_waitcnt lgkmcnt(0)")
        e(f"v_writelane_b32 v{VST}, s100, {i}")
        if opt.get("rtall") and not rt:
            e("s_memrealtime s[100:101]")
            e("s_waitcnt lgkmcnt(0)")
            e(f"v_writelane_b32 v{VST}, s100, {16+i}")
    BK = opt.get("bk", [])
    def bstamp(k):
        if ST and k in BK: e(f"s_memtime s[{80+2*BK.index(k)}:{81+2*BK.index(k)}]")
    def bflush():
        if ST and BK:
            e("s_waitcnt lgkmcnt(0)")
            for i in range(len(BK)): e(f"v_writelane_b32 v{VST}, s{80+2*i}, {16+i}")
    uid = [0]
    def lab(p):
        uid[0] += 1
        return f"{p}_{uid[0]}"
    def apoll_issue(voff, soff, vd, tag):
        e.vmem(f"buffer_load_dword v{vd}, v{voff}, {SS}, {soff} offen sc1", tag)
    def apoll_check(voff, soff, vtag, vd, tag):
        D = lab("AOK")
        e.vwait(tag)
        e(f"v_cmp_ne_u32 vcc, v{vtag}, v{vd}")
        e("s_nop 1")
        e("s_cmp_eq_u64 vcc, 0")
        e(f"s_cbranch_scc1 {D}")
        keep = list(e.vm); keepl = list(e.lg)
        poll(voff, soff, vtag, vd)
        e.vm = keep; e.lg = keepl
        e(f"{D}:")
    def poll(voff, soff, vtag, vd):
        L, D = lab("POLL"), lab("POLLED")
        e("s_mov_b32 s63, 0x40000")
        e(f"{L}:")
        e(f"buffer_load_dword v{vd}, v{voff}, {SS}, {soff} offen sc1")
        e("s_waitcnt vmcnt(0) lgkmcnt(0)")
        e(f"v_cmp_ne_u32 vcc, v{vtag}, v{vd}")
        e("s_sub_u32 s63, s63, 1")
        e("s_cmp_eq_u32 s63, 0")
        e(f"s_cbranch_scc1 {D}")
        e("s_cmp_lg_u64 vcc, 0")
        e(f"s_cbranch_scc1 {L}")
        e(f"{D}:")
        e.vm = []; e.lg = []
    def ldswait(off, val, va, vb, pre=None):
        L, D = lab("LW"), lab("LWOK")
        if pre is None: e(f"v_mov_b32 v{va}, {L_MISC}")
        else: va = pre
        e("s_mov_b32 s63, 0x400000")
        e(f"{L}:")
        e(f"ds_read_b32 v{vb}, v{va} offset:{off}")
        e("s_sub_u32 s63, s63, 1")
        e("s_waitcnt lgkmcnt(0)")
        e(f"v_readfirstlane_b32 s62, v{vb}")
        e("s_cmp_eq_u32 s63, 0")
        e(f"s_cbranch_scc1 {D}")
        e(f"s_cmp_ge_u32 s62, {val}")
        e(f"s_cbranch_scc1 {D}")
        e("s_sleep 1")
        e(f"s_branch {L}")
        e(f"{D}:")
        e.lg = []
    def ldsadd(off, va, vb):
        e(f"v_mov_b32 v{va}, {L_MISC}")
        e(f"v_mov_b32 v{vb}, 1")
        e("s_mov_b64 exec, 1")
        e(f"ds_add_u32 v{va}, v{vb} offset:{off}")
        e("s_mov_b64 exec, -1")
    def smasks():
        for j in range(16):
            b0 = (j >> 2) * 8 + (j & 3)
            e(f"s_mov_b32 s{64+2*j}, {(0xffffffff << b0) & 0xffffffff:#x}")
            e(f"s_mov_b32 s{65+2*j}, {(0xffffffff << (b0+4)) & 0xffffffff:#x}")
    def asig1(coff, vm):
        e(f"s_waitcnt vmcnt({vm})")
        e("s_mov_b64 exec, 1")
        e.lds(f"ds_add_rtn_u32 v164, v6, v165 offset:{coff}", "sg")
        e("s_mov_b64 exec, -1")
    def asig2(last, base):
        N = lab("NOFLAG")
        e.lwait("sg")
        e("v_readfirstlane_b32 s63, v164")
        e(f"s_add_u32 s62, s24, {base:#x}")
        e(f"s_cmp_lg_u32 s63, {last}")
        e(f"s_cbranch_scc1 {N}")
        e("v_mov_b32 v164, s61")
        e("s_mov_b64 exec, 1")
        e(f"buffer_store_dword v164, off, {SS}, s62 sc1")
        e("s_mov_b64 exec, -1")
        e(f"{N}:")
    def signal(coff, last, base, va=2, vb=3, vm=0):
        N = lab("NOFLAG")
        e(f"s_waitcnt vmcnt({vm})")
        e(f"v_mov_b32 v{va}, {L_MISC}")
        e(f"v_mov_b32 v{vb}, 1")
        e("s_mov_b64 exec, 1")
        e(f"ds_add_rtn_u32 v{vb}, v{va}, v{vb} offset:{coff}")
        e(f"s_add_u32 s62, s24, {base:#x}")
        e("s_waitcnt lgkmcnt(0)")
        e(f"v_readfirstlane_b32 s63, v{vb}")
        e(f"s_cmp_lg_u32 s63, {last}")
        e(f"s_cbranch_scc1 {N}")
        e(f"v_mov_b32 v{va}, 0")
        e(f"v_mov_b32 v{vb}, s61")
        e(f"buffer_store_dword v{vb}, v{va}, {SS}, s62 offen sc1")
        e(f"{N}:")
        e("s_mov_b64 exec, -1")
        e.lg = []

    e(f"{name}:")
    e("s_cmp_ge_u32 s2, 256")
    e("s_cbranch_scc1 L_END")
    stamp(0, True); stamp(1)
    def gate(nm):
        if opt.get("gate") == nm:
            L = lab("GATE")
            e("v_readlane_b32 s98, v167, 0")
            e(f"{L}:")
            e(("s_memtime" if opt.get("gcyc") else "s_memrealtime") + " s[100:101]")
            e("s_waitcnt lgkmcnt(0)")
            e("s_sub_u32 s99, s100, s98")
            e(f"s_cmp_lt_u32 s99, {opt.get('gcyc', 3000)}")
            e(f"s_cbranch_scc1 {L}")
    if opt.get("deadline") or opt.get("gate"): e(("s_memtime" if opt.get("gcyc") else "s_memrealtime") + " s[98:99]"); e("s_waitcnt lgkmcnt(0)"); e("v_writelane_b32 v167, s98, 0")
    e("s_load_dwordx4 s[4:7], s[0:1], 0")
    e("s_load_dwordx4 s[12:15], s[0:1], 32")
    e("s_load_dwordx2 s[16:17], s[0:1], 64")
    e("s_load_dwordx2 s[8:9], s[0:1], 16")
    e("s_load_dwordx2 s[10:11], s[0:1], 48")
    e("v_lshrrev_b32 v1, 6, v0")
    e("v_and_b32 v0, 63, v0")
    e("v_readfirstlane_b32 s18, v1")
    e("""s_and_b32 s3, s2, 1
    s_lshl_b32 s20, s3, 3
    s_lshr_b32 s24, s2, 5
    s_add_u32 s20, s20, s24
    s_bfe_u32 s21, s2, 0x20001
    s_bfe_u32 s22, s2, 0x20003
    s_lshl_b32 s23, s21, 2
    s_add_u32 s23, s23, s22
    s_lshl_b32 s24, s20, 4
    s_add_u32 s24, s24, s23
    s_lshl_b32 s24, s24, 7
    s_and_b32 s19, s18, 3
    s_lshl_b32 s3, s3, 2
    s_add_u32 s58, s3, s21
    s_lshl_b32 s58, s58, 2
    s_lshr_b32 s59, s2, 6
    s_add_u32 s58, s58, s59
    s_bfe_u32 s59, s2, 0x30003""")
    if opt.get("map2", 0):
        e("""s_and_b32 s20, s2, 3
        s_lshl_b32 s20, s20, 2
        s_lshr_b32 s3, s2, 6
        s_add_u32 s20, s20, s3
        s_bfe_u32 s23, s2, 0x10002
        s_lshl_b32 s23, s23, 3
        s_bfe_u32 s3, s2, 0x30003
        s_add_u32 s23, s23, s3
        s_lshl_b32 s24, s20, 4
        s_add_u32 s24, s24, s23
        s_lshl_b32 s24, s24, 7""")
    if opt.get("map3", 0):
        e("""s_and_b32 s20, s2, 7
        s_lshl_b32 s20, s20, 1
        s_lshr_b32 s3, s2, 7
        s_add_u32 s20, s20, s3
        s_bfe_u32 s23, s2, 0x40003
        s_lshl_b32 s24, s20, 4
        s_add_u32 s24, s24, s23
        s_lshl_b32 s24, s24, 7""")
    if opt.get("own", 1):
        e("s_lshl_b32 s58, s20, 1")
        e("s_lshr_b32 s59, s23, 3")
        e("s_add_u32 s58, s58, s59")
        e("s_and_b32 s59, s23, 7")
        e(f"s_xor_b32 s59, s59, {opt.get('ntx', 2)}")
    e(f"s_xor_b32 s22, s23, {opt.get('hx', 1)}")
    e("s_waitcnt lgkmcnt(0)")
    if opt.get("wsoff"):
        e(f"s_add_u32 s16, s16, {opt['wsoff'] << 20:#x}")
        e("s_addc_u32 s17, s17, 0")
    srd(e, 36, 4, 2048 * 1024)
    srd(e, 28, 6, 512 * 3072)
    srd(e, 32, 12, 512 * 3584)
    srd(e, 40, 16, WS_BYTES)
    if opt.get("unear", 1):
        e("s_cmp_lt_u32 s18, 4")
        e("s_cbranch_scc1 L_LOAD")
        e("s_cmp_lt_u32 s18, 8")
        e("s_cbranch_scc1 L_CONS")
        e("UINIT_HERE")
        e("L_LOAD:")
    else:
        e("s_cmp_ge_u32 s18, 8")
        e("s_cbranch_scc1 L_UTIL")
        e("s_cmp_ge_u32 s18, 4")
        e("s_cbranch_scc1 L_CONS")

    e(f"""v_and_b32 v5, 7, v0
    v_lshrrev_b32 v2, 3, v0
    v_lshrrev_b32 v3, 4, v0
    v_xor_b32 v3, v3, v5
    v_lshlrev_b32 v2, 10, v2
    v_lshl_add_u32 v12, v3, 4, v2
    v_xor_b32 v13, 64, v12
    s_lshl_b32 s65, s20, 17
    s_lshl_b32 s3, s18, 15
    s_add_u32 s65, s65, s3
    s_lshl_b32 s67, s18, 12""")
    def issueX(P):
        e(f"s_add_u32 m0, s67, {XA[P]}")
        e(f"s_add_u32 s74, s65, {P*128}")
        for a in range(4):
            e.vmem(f"buffer_load_dwordx4 v{12+(a&1)}, {SX}, s74 offen offset:{a*1024} {NT} lds", ("x", P))
            if a < 3: e(f"s_add_u32 s74, s74, {8192-1024}")
    issueX(0)
    e("""v_lshrrev_b32 v2, 5, v0
    v_bfe_u32 v3, v0, 3, 2
    v_lshl_add_u32 v3, v2, 3, v3
    v_bfe_u32 v4, v0, 4, 2
    v_lshlrev_b32 v4, 1, v4
    v_xor_b32 v4, v4, v5
    v_lshlrev_b32 v4, 4, v4
    v_mul_u32_u24 v10, 3072, v3
    v_add_u32 v10, v10, v4
    v_mul_u32_u24 v11, 3584, v3
    v_add_u32 v11, v11, v4
    s_lshr_b32 s52, s18, 1
    s_lshl_b32 s52, s52, 5
    s_and_b32 s62, s18, 1
    s_lshl_b32 s3, s62, 2
    s_add_u32 s52, s52, s3
    s_lshl_b32 s3, s23, 7
    s_mul_i32 s53, s52, 3072
    s_add_u32 s53, s53, s3
    s_add_u32 s53, s53, 1024
    s_mul_i32 s54, s52, 3584
    s_lshl_b32 s3, s22, 7
    s_add_u32 s54, s54, s3""")
    def issueW(c):
        for ah in range(2):
            e(f"s_add_u32 m0, s67, {W1A[c] + ah*2048}")
            e(f"s_add_u32 s74, s53, {(64*c + 16*ah)*3072}")
            e.vmem(f"buffer_load_dwordx4 v10, {SW}, s74 offen {NT} lds", ("w", c))
            e(f"s_add_u32 m0, s67, {W1A[c] + ah*2048 + 1024}")
            e(f"s_add_u32 s74, s54, {(64*c + 16*ah)*3584}")
            e.vmem(f"buffer_load_dwordx4 v11, {S1}, s74 offen {NT} lds", ("w", c))
    def esetup():
        e("""v_lshrrev_b32 v2, 4, v0
        v_bfe_u32 v3, v0, 2, 2
        v_lshl_add_u32 v3, v2, 3, v3
        v_mul_u32_u24 v16, 3072, v3
        v_and_b32 v2, 1, v2
        v_lshlrev_b32 v2, 1, v2
        v_and_b32 v3, 3, v0
        v_xor_b32 v2, v2, v3
        v_lshl_add_u32 v16, v2, 4, v16
        s_and_b32 s62, s19, 1
        s_lshl_b32 s3, s62, 7""")
        for j in range(2):
            e(f"""v_add_u32 v2, s3, v0
            v_add_u32 v2, {64*j}, v2
            v_mul_u32_u24 v3, 10923, v2
            v_lshrrev_b32 v3, 16, v3
            v_mul_u32_u24 v4, 6, v3
            v_sub_u32 v4, v2, v4
            v_bfe_u32 v6, v3, 2, 2
            v_lshlrev_b32 v6, 3, v6
            v_lshrrev_b32 v7, 4, v3
            v_lshl_add_u32 v6, v7, 2, v6
            v_and_b32 v7, 3, v3
            v_add_u32 v6, v6, v7
            v_mul_u32_u24 v{17+j}, 3584, v6
            v_lshl_add_u32 v{17+j}, v4, 4, v{17+j}""")
        e("""s_cmp_eq_u32 s62, 1
        s_cselect_b32 s3, 0x80000000, 0
        v_or_b32 v18, s3, v18
        s_lshr_b32 s3, s19, 1
        s_mul_i32 s55, s52, 3072
        s_lshl_b32 s64, s23, 6
        s_add_u32 s55, s55, s64
        s_mul_i32 s56, s3, 114688
        s_mul_i32 s64, s23, 96
        s_add_u32 s56, s56, s64
        s_add_u32 s56, s56, 2048
        s_mul_i32 s57, s3, 5120
        s_lshl_b32 s64, s62, 10
        s_add_u32 s60, s57, s64
        s_lshl_b32 s64, s62, 11
        s_add_u32 s57, s57, s64
        s_add_u32 s64, s57, 1024
        s_cmp_eq_u32 s62, 1
        s_cselect_b32 s64, 8192, s64""")
    def issueW2(c):
        p = ORD2[2 * c]
        base = W2A[c][1]
        e(f"s_add_u32 m0, s60, {base}")
        e(f"s_add_u32 s74, s55, {p*32*3072}")
        e.vmem(f"buffer_load_dwordx4 v16, {SW}, s74 offen {NT} lds", ("w2", c))
        e(f"s_add_u32 m0, s57, {base + 2048}")
        e(f"s_add_u32 s74, s56, {p*32*3584}")
        e.vmem(f"buffer_load_dwordx4 v17, {S1}, s74 offen {NT} lds", ("w2", c))
        e(f"s_add_u32 m0, s64, {base + 2048}")
        e("s_nop 0")
        e.vmem(f"buffer_load_dwordx4 v18, {S1}, s74 offen {NT} lds", ("w2", c))
    NF2, NS, NA = 14, 18, 4
    A0 = 20
    AF = lambda sg, tb, kk: A0 + (sg % NA) * 16 + (tb * 2 + kk) * 4
    ACB = A0 + NA * 16
    GACC = lambda tb, nb: ACB + (tb * 2 + nb) * 16
    BFB = ACB + 64
    BF = lambda kk, nb: BFB + (kk * 2 + nb) * 4
    assert BFB + 16 <= VST
    def gsetup():
        srd(e, 44, 14, 1792 * 1024)
        srd(e, 48, 8, 512 * 1024)
        e(f"""v_lshrrev_b32 v8, 3, v0
        v_bfe_u32 v2, v0, 4, 1
        v_lshlrev_b32 v2, 2, v2
        v_xor_b32 v9, v5, v2
        v_lshlrev_b32 v9, 4, v9
        v_lshl_add_u32 v14, v8, 10, v9
        v_lshrrev_b32 v2, 2, v8
        v_lshlrev_b32 v2, 3, v2
        v_and_b32 v8, 3, v8
        v_add_u32 v8, v8, v2
        v_lshl_add_u32 v15, v8, 10, v9
        v_lshlrev_b32 v1, 4, v0
        s_lshl_b32 s3, s59, 7
        s_lshl_b32 s70, s18, 18
        s_add_u32 s70, s70, s3
        s_mul_i32 s78, s18, {12*16*1024}
        s_add_u32 s78, s78, s3
        s_lshl_b32 s71, s18, 17
        s_add_u32 s71, s71, s3
        s_mul_i32 s72, s58, {2*112*1024}
        s_add_u32 s72, s72, {WS_H:#x}
        s_mul_i32 s79, s18, {12*1024}
        s_add_u32 s79, s79, s72
        s_lshl_b32 s3, s18, 14
        s_add_u32 s72, s72, s3
        s_lshl_b32 s73, s58, 16
        s_lshl_b32 s3, s18, 13
        s_add_u32 s73, s73, s3
        s_add_u32 s73, s73, {WS_O:#x}
        s_and_b32 s3, s58, 3
        s_cmp_eq_u32 s3, s18
        s_cselect_b32 s26, 1, 0
        s_cmp_eq_u32 s59, s18
        s_cselect_b32 s27, 1, 0
        s_add_u32 s3, s18, 4
        s_cmp_eq_u32 s59, s3
        s_cselect_b32 s21, 1, 0
        s_lshl_b32 s69, s58, 1
        s_add_u32 s69, s69, s59
        s_and_b32 s69, s69, {opt.get("rotm", 7)}
        s_sub_u32 s25, s69, 6
        s_cmp_ge_u32 s69, 6
        s_cselect_b32 s25, s25, s69""")
    KS = [(2 * i, False) for i in range(8)] + [(64 + 2 * i, True) for i in range(6)]
    ROT = opt.get("rot", 0)
    def ridx(sg):
        if sg < 8:
            e(f"s_add_u32 s68, s69, {sg}")
            e("s_and_b32 s68, s68, 7")
        elif sg < NF2:
            e(f"s_add_u32 s68, s25, {sg-8}")
            e("s_sub_u32 s3, s68, 6")
            e("s_cmp_ge_u32 s68, 6")
            e("s_cselect_b32 s68, s3, s68")
        else:
            e(f"s_add_u32 s68, s69, {sg-NF2}")
            e("s_and_b32 s68, s68, 3")
    def issueB(sg):
        if ROT:
            ridx(sg)
            e("s_lshl_b32 s68, s68, 15")
            e(f"s_add_u32 s68, s68, {'s70' if sg < 8 else 's78' if sg < NF2 else 's71'}")
        for a in range(4):
            e(f"s_add_u32 m0, s67, {BREG[sg % NB] + a*1024}")
            if sg < NF2:
                k16, ex = KS[sg]
                if ROT: e(f"s_add_u32 s74, s68, {((1024 if ex else 0) + 8*a)*1024}")
                else: e(f"s_add_u32 s74, {'s78' if ex else 's70'}, {(16*k16 + 8*a)*1024}")
                e.vmem(f"buffer_load_dwordx4 v14, {S2}, s74 offen lds", ("B", sg))
            else:
                if ROT: e(f"s_add_u32 s74, s68, {(16*(a>>1) + 4*(a&1))*1024}")
                else: e(f"s_add_u32 s74, s71, {(32*(sg-NF2) + 16*(a>>1) + 4*(a&1))*1024}")
                e.vmem(f"buffer_load_dwordx4 v15, {SO}, s74 offen lds", ("B", sg))
    def issueA(sg, tbs=(0, 1)):
        for tb in tbs:
            if sg < NF2:
                k16, ex = KS[sg]
                e(f"s_add_u32 s74, {'s79' if ex else 's72'}, {(tb*112 + k16)*1024}")
            else: e(f"s_add_u32 s74, s73, {(tb*32 + 2*(sg-NF2))*1024}")
            for kk in range(2):
                e.vmem(f"buffer_load_dwordx4 {vr(AF(sg,tb,kk),4)}, v1, {SS}, s74 offen offset:{kk*1024} sc1", ("A", sg))
    LEAD = opt.get("lead", 0)
    def either(sreg, lead_fn, foll_fn):
        L1, L2 = lab("LD"), lab("LE")
        e(f"s_cmp_lg_u32 {sreg}, 0")
        e(f"s_cbranch_scc1 {L1}")
        allk = list(e.act)
        e.act = [k for k in allk if sreg not in k]
        if foll_fn: foll_fn()
        e(f"s_branch {L2}")
        e(f"{L1}:")
        keep = list(e.vm)
        e.act = [k for k in allk if sreg in k]
        if lead_fn: lead_fn()
        e.vm = keep
        e.act = allk
        e(f"{L2}:")
    def gsetup2():
        e(f"""v_lshrrev_b32 v6, 5, v0
        v_lshlrev_b32 v6, 3, v6
        v_bfe_u32 v7, v0, 2, 2
        v_add_u32 v6, v6, v7
        v_lshlrev_b32 v6, 7, v6
        v_lshrrev_b32 v7, 1, v7
        v_lshl_add_u32 v6, v7, 6, v6
        v_bfe_u32 v7, v0, 4, 1
        v_lshl_add_u32 v6, v7, 5, v6
        v_and_b32 v7, 3, v0
        v_lshl_add_u32 v6, v7, 3, v6
        v_add_u32 v6, s67, v6
        v_xor_b32 v7, 64, v6
        v_add_u32 v8, 49152, v6
        v_add_u32 v9, 49152, v7
    v_add_u32 v10, 98304, v6
    v_add_u32 v11, 98304, v7
        v_mov_b32 v2, {L_MISC}
        ds_read_b32 v2, v2
        v_and_b32 v3, 3, v0
        v_lshlrev_b32 v3, 7, v3
        s_lshr_b32 s76, s58, 1
        s_lshl_b32 s76, s76, 11
        s_lshl_b32 s3, s18, 9
        s_add_u32 s76, s76, s3
        s_add_u32 s66, s76, {WS_F1H:#x}""")
        e("s_mov_b32 s75, 0")
        e("s_waitcnt lgkmcnt(0)")
    D = opt.get("gd", 3); DB = NB - 1; PS = opt.get("ps", 12); PB = 8 - D - 1
    GE = opt.get("ge", 15)
    def firstA(lo=0, hi=None):
        hi = D if hi is None else hi
        for sg in range(lo, hi):
            if LEAD & 2 and sg == hi - 1:
                for tb in range(2): either(("s27", "s21")[tb], lambda: issueA(sg, (tb,)), None)
            else: issueA(sg)
    issueW(0)
    for c in range(1, PL): issueX(c); issueW(c)
    for k in range(9):
        e.vwait([("w", k), ("x", k)] if k < 8 else [("w2", c) for c in range(8)])
        if k == 0: stamp(2)
        if k == 8: stamp(3)
        bstamp(k)
        e("s_barrier")
        if k + PL <= 7: issueX(k + PL); issueW(k + PL)
        if k == 1: gsetup()
        if k == 2: esetup()
        for c in range(8):
            if W2A[c][0] == k and c not in LATE: issueW2(c)
        if k == 7:
            ldswait(28, 4, 2, 3)
            for c in range(8):
                if W2A[c][0] == 7.5: issueW2(c)
    bflush()
    stamp(4)
    if opt.get("gprio", 0): e(f"s_setprio {opt.get('gprio')}")
    gsetup2()
    seen = [-1]
    def need2(st):
        if st > seen[0]:
            ldswait(DONE + 4 * st, 4, 12, 13)
            seen[0] = st
    BP = opt.get("bp", 3)
    for j in range(BP): need2(FIN[f"B{j}"][0]); issueB(j)
    poll(3, "s66", 2, 4)
    for sg in range(D): issueA(sg)
    stamp(5)
    done_b = set()
    def step(sg):
        for j in range(BP, NB):
            if min(j - BP, opt.get("bq", 9)) == sg or (sg == 0 and j - BP < opt.get("b0", 1)):
                if j not in done_b: need2(FIN[f"B{j}"][0]); issueB(j); done_b.add(j)
        bstamp(100 + sg)
        e.vwait([("B", sg), ("A", sg)])
        bstamp(200 + sg)
        reg = BREG[sg % NB]
        hi = reg // 49152
        off0 = reg - 49152 * hi
        for kk in range(2):
            for nb in range(2):
                for q in range(2):
                    e.lds(f"ds_read_b64_tr_b16 v[{BF(kk,nb)+2*q}:{BF(kk,nb)+2*q+1}], v{6+2*hi+nb} offset:{off0 + kk*2048 + q*512}", (kk, nb))
        if LEAD & 1:
            FB = opt.get("fb", 3)
            okb = lambda j: NB <= j < NS
            if okb(sg + DB) or okb(sg + FB):
                either("s26", (lambda: issueB(sg + DB)) if okb(sg + DB) else None, (lambda: issueB(sg + FB)) if okb(sg + FB) else None)
        elif NB <= sg + DB < NS: issueB(sg + DB)
        oka = lambda j: j < NF2 or (j < NS and sg > PS and j >= PS + 1 + D)
        if LEAD & 2:
            okf = lambda j: j < NF2 or (j < NS and sg > PS and j >= PS + D)
            for tb in range(2):
                if oka(sg + D) or okf(sg + D - 1):
                    either(("s27", "s21")[tb], (lambda: issueA(sg + D, (tb,))) if oka(sg + D) else None, (lambda: issueA(sg + D - 1, (tb,))) if okf(sg + D - 1) else None)
        elif oka(sg + D): issueA(sg + D)
        for kk in range(2):
            for nb in range(2):
                e.lwait((kk, nb))
                for tb in range(2):
                    acc = vr(GACC(tb, nb), 16)
                    cin = "0" if (sg == 0 and kk == 0) else acc
                    if opt.get("nogm") and (kk or nb): continue
                    e(f"v_mfma_f32_32x32x16_bf16 {acc}, {vr(BF(kk,nb),4)}, {vr(AF(sg,tb,kk),4)}, {cin}")
    for sg in range(PS + 1):
        if sg == PB - 1 or sg == PS - 1:
            e(f"s_add_u32 s66, s76, {(WS_F1B if sg == PB - 1 else WS_F2):#x}")
            apoll_issue(3, "s66", 4, "fl")
        step(sg)
        if sg == PB:
            stamp(6)
            apoll_check(3, "s66", 2, 4, "fl")
    stamp(7)
    apoll_check(3, "s66", 2, 4, "fl")
    stamp(8)
    firstA(NF2, min(NS, PS + 1 + D))
    for sg in range(PS + 1, NS): step(sg)
    e.var = None
    bflush()
    gate('g')
    stamp(9)
    e("""v_and_b32 v12, 31, v0
    v_lshlrev_b32 v12, 7, v12
    v_lshrrev_b32 v13, 5, v0
    v_xor_b32 v13, v13, v5
    v_lshl_add_u32 v12, v13, 4, v12
    v_add_u32 v12, s67, v12""")
    for nb in range(2):
        for a in range(4): e(f"v_xor_b32 v{20+nb*4+a}, {((2*a) ^ nb)*16}, v12")
    for tb in range(2):
        for nb in range(2):
            for a in range(4): e(f"v_add_u32 v{28+(tb*2+nb)*4+a}, {BREG[tb*2+nb]}, v{20+nb*4+a}")
    for tb in range(2):
        for nb in range(2):
            for a in range(4): e(f"ds_write_b128 v{28+(tb*2+nb)*4+a}, {vr(GACC(tb,nb)+4*a,4)}")
    e("s_waitcnt lgkmcnt(0)")
    stamp(10)
    e("s_barrier")
    if ST: e("s_branch L_DUMP")
    e("s_endpgm")

    e("L_CONS:")
    e.vm = []; e.lg = []
    LA = opt.get("la", 5); NFB = 6
    F = lambda f: 8 + (f % NFB) * 4
    XF = lambda n, r: 32 + ((n & 1) * 2 + r) * 4
    XK = lambda p, r: 48 + (p * 2 + r) * 4
    ACC = lambda s, r: 96 + (s * 2 + r) * 4
    AW = [1, 2, 3, 4]; AX = [7, 5]
    e(f"""v_lshrrev_b32 v8, 2, v0
    v_lshrrev_b32 v9, 3, v8
    v_lshlrev_b32 v9, 11, v9
    v_and_b32 v10, 7, v8
    v_lshl_add_u32 v9, v10, 7, v9
    v_and_b32 v10, 3, v0
    v_lshlrev_b32 v10, 3, v10
    v_add_u32 v9, v9, v10
    v_bfe_u32 v11, v0, 3, 2
    v_lshl_add_u32 v1, v11, 5, v9
    v_add_u32 v1, {W1A[0]}, v1
    v_xor_b32 v2, 32, v1
    v_xor_b32 v3, 64, v1
    v_xor_b32 v4, 96, v1
    v_and_b32 v8, 15, v0
    v_lshrrev_b32 v9, 4, v0
    v_lshrrev_b32 v10, 1, v8
    v_xor_b32 v9, v9, v10
    v_lshlrev_b32 v8, 7, v8
    v_lshl_add_u32 v7, v9, 4, v8
    s_lshl_b32 s3, s19, 12
    s_add_u32 s3, s3, {XA[0]}
    v_add_u32 v7, s3, v7
    v_xor_b32 v5, 64, v7""")
    if opt.get("tlb", 0):
        sk = lab("NOTLB")
        e("s_cmp_lg_u32 s19, 0")
        e(f"s_cbranch_scc1 {sk}")
        srd(e, 44, 10, 2048 * 1024)
        e("v_lshlrev_b32 v8, 20, v0")
        e("s_mov_b64 exec, 0xffff")
        e(f"buffer_load_dword v156, v8, {SS}, 0 offen")
        e("s_mov_b64 exec, 3")
        e(f"buffer_load_dword v157, v8, s[44:47], 0 offen")
        e("s_mov_b64 exec, -1")
        e(f"{sk}:")
    e(f"v_mov_b32 v6, {L_MISC}")
    e("v_mov_b32 v165, 1")
    if not BK: smasks()
    if opt.get("cprio", 3): e(f"s_setprio {opt.get('cprio', 3)}")
    cur = {"w": W1A[0], "x": XA[0]}
    UST = opt.get("ust", 0)
    PEND = []
    DEF = []; NST = [0]; TIM = 0 if UST else opt.get("tim", 2)
    def move(kind, regs, addr):
        d = addr - cur[kind]
        if d:
            for a in regs: e(f"v_add_u32 v{a}, {d & 0xffffffff:#x}, v{a}")
        cur[kind] = addr
    def gemm(ps):
        NSB = 8 if ps == 1 else 5
        NF = 16 * NSB
        kst = (lambda n: n) if ps == 1 else (lambda n: ORD2[n])
        xreg = lambda n, r: XK(kst(n), r) if kst(n) < 6 else XF(n, r)
        def rd(f):
            n, s = divmod(f, NSB)
            for q in range(2):
                if ps == 1:  a, off = AW[s & 3], (n & 1) * 8192 + q * 4096 + (s >> 2) * 1024
                elif s < 2:  a, off = AW[s], (n & 1) * 5120 + q * 1024
                else:        a, off = AW[2], (n & 1) * 5120 + 2048 + q * 1536 + (s - 2) * 32
                yield f"ds_read_b64_tr_b16 v[{F(f)+2*q}:{F(f)+2*q+1}], v{a} offset:{off}"
        def kswitch(n):
            if n % 2 == 0:
                if ps == 1: move("w", AW, W1A[n // 2])
                else:       move("w", AW[:3], W2A[n // 2][1])
                t = 8 * (ps - 1) + n // 2
                bstamp(t)
                if t <= 8: e("s_barrier")
                if t == 0 and opt.get("tlb", 0): e("s_waitcnt vmcnt(0)")
                if t > 8 and t - 8 in LATE:
                    L, D_ = lab("FW"), lab("FOK")
                    e.lwait("fl")
                    e("v_readfirstlane_b32 s62, v4")
                    e("s_cmp_ge_u32 s62, 4")
                    e(f"s_cbranch_scc1 {D_}")
                    keepl = list(e.lg)
                    ldswait(FULL + 4 * t, 4, 4, 4, 6)
                    e.lg = keepl
                    e(f"{D_}:")
                if ps == 2 and not UST:
                    for _ in range(opt.get("tper", 4)):
                        if DEF:
                            for x in DEF.pop(0):
                                if opt.get("nost1") and "buffer_store" in x: continue
                                e(x.replace(" sc1", "") if opt.get("plain1") else x)
                            NST[0] += 1
                    if n // 2 == opt.get("sgk", 0):
                        asig1(4, max(0, NST[0] - 4)); PEND.append(WS_F1)
                    if n // 2 == opt.get("sgh", 3):
                        assert not DEF
                        asig1(24, 0); PEND.append(WS_F1H)
            if NSB > LA or n < 2: xread(n)
        def xread(n):
            p = kst(n)
            if ps == 1 or p >= 6:
                move("x", AX, XA[p >> 1])
                for r in range(2): e.lds(f"ds_read_b128 {vr(xreg(n,r),4)}, v{AX[p&1]} offset:{r*2048}", ("x", n))
        kswitch(0)
        if ps == 1: stamp(2); gate("b0")
        for f in range(LA):
            if f and f % NSB == 0: kswitch(f // NSB)
            for r_ in rd(f): e.lds(r_, f)
        for f in range(NF):
            n, s = divmod(f, NSB)
            nxt = f + LA
            if nxt < NF and nxt % NSB == 0: kswitch(nxt // NSB)
            if NSB <= LA and s == 0 and 1 <= n < 15: xread(n + 1)
            if ps == 2 and (nxt + 4) % (2 * NSB) == 0 and (nxt + 4) // (2 * NSB) in LATE:
                e.lds(f"ds_read_b32 v4, v6 offset:{FULL + 4*(8 + (nxt + 4) // (2 * NSB))}", "fl")
            if PEND and nxt % (2 * NSB) == 4: asig2(3, PEND.pop())
            if opt.get("w2f", 1) and f % 2 == 0 and f + 1 < NF: e.lwait([f, f + 1, ("x", n), ("x", (f + 1) // NSB)])
            else: e.lwait([f, ("x", n)])
            if ps == 2 and (f + 1) % (2 * NSB) == 0 and 8 + n // 2 in NEEDD:
                e("s_mov_b64 exec, 1")
                e.lds(f"ds_add_u32 v6, v165 offset:{DONE + 4*(8 + n//2)}", "dn")
                e("s_mov_b64 exec, -1")
            rds = list(rd(nxt)) if nxt < NF else [None, None]
            for r in range(2):
                acc = vr(ACC(s, r), 4)
                e(f"v_mfma_f32_16x16x32_bf16 {acc}, {vr(F(f),4)}, {vr(xreg(n,r),4)}, {'0' if n == 0 else acc}")
                if rds[r]: e.lds(rds[r], nxt)
    RS = lambda r: 160 + 2 * r
    RQ = lambda r: 32 + 2 * r
    TT = 8
    CSR = [24, 28]
    def epilogue(ps):
        order = (([0, 1, 2, 3, 5, 6, 7, 4] if opt.get('kvfirst', 1) else [5, 6, 7, 2, 3, 4, 0, 1]) if TIM else list(range(8))) if ps == 1 else ([2, 3, 4, 0, 1] if opt.get('b16late') else [0, 1, 2, 3, 4])
        dd = {}
        loc = lambda s: s if ps == 1 else 8 + s
        if ps == 1:
            ldsadd(28, 8, 9)
            ldswait(20, 1, 8, 9)
        e(f"""v_and_b32 v16, 15, v0
        v_lshrrev_b32 v17, 4, v0
        s_lshl_b32 s3, s19, 9
        s_add_u32 s3, s3, {L_ST}
        v_lshl_add_u32 v8, v16, 4, s3
        v_lshlrev_b32 v164, 4, v17
        v_add_u32 v164, {L_ST+2048}, v164
        v_mov_b32 v10, {L_MISC}""")
        if ps == 1:
            for r in range(2): e.lds(f"ds_read_b64 {pk(RS(r))}, v8 offset:{256*r}", "st")
            e.lds("ds_read_b32 v10, v10", "st")
        def csread(n):
            if n < len(order): e.lds(f"ds_read_b128 {vr(CSR[n%2],4)}, v164 offset:{64*loc(order[n])}", ("cs", n))
        csread(0)
        e("v_lshlrev_b32 v166, 4, v0")
        if ps == 1:
            e(f"""s_lshl_b32 s52, s20, 2
            s_add_u32 s52, s52, s19
            s_lshl_b32 s53, s23, 8
            s_add_u32 s53, s53, s52
            s_lshl_b32 s53, s53, 10
            s_mul_i32 s54, s52, 112
            s_mul_i32 s55, s23, 3
            s_add_u32 s55, s55, s54
            s_add_u32 s55, s55, 64
            s_lshl_b32 s55, s55, 10
            s_lshl_b32 s3, s22, 2
            s_add_u32 s54, s54, s3
            s_lshl_b32 s54, s54, 10
            s_add_u32 s54, s54, {WS_H:#x}
            s_add_u32 s55, s55, {WS_H:#x}""")
            if UST:
                e("s_lshl_b32 s3, s19, 12")
                e("v_add_u32 v36, s3, v166")
                e(f"v_add_u32 v37, {W1A[7]}, v36")
                e(f"v_add_u32 v36, {W1A[6]}, v36")
            e.lwait("st")
            e("v_readfirstlane_b32 s61, v10")
        else:
            e("s_mov_b32 s3, 0x3eb8aa3b")
            for q in range(4): e(f"v_mul_f32 v{32+q}, s3, v{160+q}")
            e("s_lshl_b32 s3, s19, 10")
            e(f"s_add_u32 s3, s3, {L_Q}")
            e("v_add_u32 v36, s3, v166")
            ldswait(DONE + 4 * FIN["Qpre"], 4, 37, 38)
        for n, s in enumerate(order):
            T = 16 + 4 * (n % 2)
            stg = ps == 1 and UST
            dfr = ps == 1 and TIM and s >= (4 if opt.get('kvfirst', 1) else 2) and not UST
            if dfr: T = ACC(s, 0) if s >= 5 else ACC(s + 3, 1)
            isQ = ps == 2 and s < 2
            isH = (ps == 1 and s >= 4) or (ps == 2 and s >= 2)
            if stg and s == 4: ldswait(28, 4, 38, 39)
            e.lwait(("cs", n))
            c = CSR[n % 2]
            csread(n + 1)
            if opt.get("xnop"): e("s_nop 3")
            if (ps == 2 or opt.get("nopk1", 1)) and opt.get("nopk", 1):
                for r in range(2):
                    sp = RQ(r) if isQ else RS(r)
                    for j in range(4): e(f"v_mul_f32 v{TT+4*r+j}, v{c+j}, v{sp+1}")
                for r in range(2):
                    sp = RQ(r) if isQ else RS(r)
                    for j in range(4): e(f"v_fmac_f32 v{TT+4*r+j}, v{ACC(s,r)+j}, v{sp}")
            else:
                for r in range(2):
                    sp = RQ(r) if isQ else RS(r)
                    for h in range(2):
                        e(f"v_pk_mul_f32 {pk(TT+4*r+2*h)}, {pk(c+2*h)}, {pk(sp)} op_sel:[0,1] op_sel_hi:[1,1]")
                for r in range(2):
                    sp = RQ(r) if isQ else RS(r)
                    for h in range(2):
                        t = TT + 4 * r + 2 * h
                        e(f"v_pk_fma_f32 {pk(t)}, {pk(ACC(s,r)+2*h)}, {pk(sp)}, {pk(t)} op_sel_hi:[1,0,1]")
            for r in range(2):
                for h in range(2):
                    t = TT + 4 * r + 2 * h
                    e(f"v_cvt_pk_bf16_f32 v{T+2*r+h}, v{t}, v{t+1}")
            if isQ or stg: sa = "s_nop 0"
            elif ps == 2: sa = f"s_add_u32 s3, s55, {(s-2)*1024}"
            elif s < 4: sa = f"s_add_u32 s3, s53, {WS_KV + s*0x10000:#x}"
            else: sa = f"s_add_u32 s3, s54, {(s-4)*1024}"
            e("s_nop 2")
            e(f"v_permlane16_swap_b32 v{T}, v{T+2}")
            e(f"v_permlane16_swap_b32 v{T+1}, v{T+3}")
            e(sa if not dfr else "s_nop 0")
            e("s_nop 0")
            if isH:
                for q in (0, 2, 1, 3): e(f"v_pk_max_i16 v{T+q}, v{T+q}, 0")
            if isQ:
                e.lds(f"ds_write_b128 v36, {vr(T,4)} offset:{s*4096}", "qw")
                if s == 1:
                    e.lwait_all()
                    ldsadd(16, 37, 38)
            elif stg: e.lds(f"ds_write_b128 v{36 + (s >> 2)}, {vr(T,4)} offset:{(s&3)*1024}", "qw")
            elif dfr: dd[s] = [sa, f"buffer_store_dwordx4 {vr(T,4)}, v166, {SS}, s3 offen {'' if isH and opt.get('hplain') else 'sc1'}"]
            else:
                e(f"buffer_store_dwordx4 {vr(T,4)}, v166, {SS}, s3 offen {'' if isH and opt.get('hplain') else 'sc1'}")
                NST[0] += 1
                if ps == 2 and s == 4 and opt.get("b16late"): e("s_barrier")
        for s in sorted(dd): DEF.append(dd[s])
    gemm(1)
    gate('p1')
    stamp(3)
    epilogue(1)
    e(f"""v_lshrrev_b32 v8, 2, v0
    v_and_b32 v10, 3, v0
    v_lshlrev_b32 v10, 3, v10
    v_lshl_add_u32 v1, v8, 6, v10
    v_bfe_u32 v11, v0, 4, 1
    v_lshl_add_u32 v1, v11, 5, v1
    v_add_u32 v1, {W2A[0][1]}, v1
    v_xor_b32 v2, 32, v1
    v_mul_u32_u24 v3, 96, v8
    v_add_u32 v3, v3, v10
    v_add_u32 v3, {W2A[0][1]}, v3""")
    cur["w"] = W2A[0][1]
    e.lwait_all()
    stamp(4)
    gemm(2)
    gate('p2')
    bflush()
    stamp(5)
    epilogue(2)
    if BK: smasks()
    e("s_mov_b32 s96, s19")
    e("s_mov_b32 s97, 1")
    e("s_branch L_ATT")

    e("L_UTIL:")
    e.vm = []; e.lg = []
    if opt.get("uprio0", 3): e(f"s_setprio {opt.get('uprio0', 3)}")
    L0, U, A, CL, C0, C1, VE = 16, 24, 40, 48, 64, 72, 80
    e("v_and_b32 v5, 7, v0")
    def pfcode():
        sk = lab("NOPC")
        e("s_cmp_lg_u32 s19, 3")
        e(f"s_cbranch_scc1 {sk}")
        e("s_getpc_b64 s[72:73]")
        e("L_PCREF:")
        e(f"s_sub_u32 s72, s72, L_PCREF-{name}")
        e("s_subb_u32 s73, s73, 0")
        e("s_lshr_b32 s74, s2, 3")
        e("s_mul_i32 s74, s74, (L_END-%s+4095)/4096*128" % name)
        e("v_lshlrev_b32 v2, 7, v0")
        e("v_add_u32 v2, s74, v2")
        e(f"v_min_u32 v2, L_END-{name}, v2")
        e("v_mov_b32 v3, s73")
        e("v_add_co_u32 v2, vcc, s72, v2")
        e("s_nop 1")
        e("v_addc_co_u32 v3, vcc, 0, v3, vcc")
        e("v_cmp_gt_u32 vcc, (L_END-%s+4095)/4096, v0" % name)
        e("s_nop 1")
        e("s_and_saveexec_b64 s[74:75], vcc")
        e("global_load_dword v163, v[2:3], off")
        e("s_mov_b64 exec, -1")
        e(f"{sk}:")
    if opt.get("pfc", 1) and not opt.get("unear", 1): pfcode()
    PFU = opt.get("pfu", 0)
    def pf_x():
        e("""v_and_b32 v2, 31, v0
        v_lshlrev_b32 v2, 10, v2
        v_lshrrev_b32 v3, 5, v0
        v_lshl_add_u32 v2, v3, 7, v2
        s_lshl_b32 s64, s20, 17
        s_lshl_b32 s65, s22, 15
        s_add_u32 s64, s64, s65
        s_lshl_b32 s65, s19, 8
        s_add_u32 s64, s64, s65""")
        e(f"buffer_load_dword v160, v2, {SX}, s64 offen")
    def pf_w():
        L1, L2, L3, LD = lab("PW"), lab("PW"), lab("PW"), lab("PW")
        e("""s_and_b32 s64, s20, 7
        v_lshlrev_b32 v2, 3, v0
        v_add_u32 v2, s64, v2
        v_mul_u32_u24 v3, 3584, v2
        v_mul_u32_u24 v2, 3072, v2
        s_lshl_b32 s64, s23, 7""")
        e("s_cmp_eq_u32 s19, 1"); e(f"s_cbranch_scc1 {L1}")
        e("s_cmp_eq_u32 s19, 3"); e(f"s_cbranch_scc1 {L3}")
        e("s_add_u32 s65, s64, 1024")
        e("s_lshr_b32 s64, s64, 1")
        e("s_cmp_eq_u32 s19, 0")
        e("s_cselect_b32 s64, s65, s64")
        e(f"buffer_load_dword v161, v2, {SW}, s64 offen")
        e(f"s_branch {LD}")
        e(f"{L3}:")
        e("s_mul_i32 s64, s23, 96")
        e("s_add_u32 s64, s64, 2048")
        e(f"buffer_load_dword v162, v3, {S1}, s64 offen offset:92")
        e(f"{L1}:")
        e(f"buffer_load_dword v161, v3, {S1}, s64 offen")
        e(f"{LD}:")
    if PFU == 1: pf_x(); pf_w()
    UL = opt.get("ul", -1)
    for _ in range(UL + 1): e("s_barrier")
    e(f"v_mov_b32 v{VE}, 0")
    e(f"s_mov_b32 s3, {WS_EP:#x}")
    e.vmem(f"buffer_load_dword v{VE}, v{VE}, {SS}, s3 offen sc1", "rs")
    e(f"""v_lshrrev_b32 v4, 5, v0
    v_and_b32 v6, 31, v0
    v_lshlrev_b32 v6, 4, v6
    v_lshl_add_u32 v6, v4, 10, v6
    v_lshlrev_b32 v{VE+1}, 4, v4
    s_lshl_b32 s64, s20, 7
    s_lshl_b32 s65, s23, 3
    s_add_u32 s64, s64, s65
    s_lshl_b32 s65, s19, 1
    s_add_u32 s64, s64, s65
    s_lshl_b32 s65, s64, 10""")
    e.vmem(f"buffer_load_dwordx4 {vr(L0,4)}, v6, {SX}, s65 offen {UNT}", "rs")
    e.vmem(f"buffer_load_dwordx4 {vr(L0+4,4)}, v6, {SX}, s65 offen offset:512 {UNT}", "rs")
    e("""s_add_u32 s66, s23, 8
    s_add_u32 s67, s22, 24
    s_cmp_eq_u32 s19, 1
    s_cselect_b32 s66, s67, s66
    s_add_u32 s67, s23, 32
    s_cmp_lt_u32 s23, 8
    s_cselect_b32 s67, s23, s67
    s_cmp_eq_u32 s19, 2
    s_cselect_b32 s66, s67, s66
    s_add_u32 s67, s23, 48
    s_cmp_eq_u32 s19, 3
    s_cselect_b32 s66, s67, s66
    v_lshrrev_b32 v2, 3, v0
    v_lshlrev_b32 v3, 4, v5
    s_cmp_ge_u32 s66, 52
    s_cbranch_scc1 L_CSD
    s_lshl_b32 s67, s66, 7
    s_cmp_ge_u32 s66, 24
    s_cbranch_scc1 L_CSW
    v_mul_u32_u24 v4, 3072, v2
    v_add_u32 v4, v4, v3""")
    e(f"s_mul_i32 s68, s20, {32*3072}")
    e("s_add_u32 s68, s68, s67")
    for t in range(4):
        e(f"buffer_load_dwordx4 {vr(CL+4*t,4)}, v4, {SW}, s68 offen {UNT}")
        if t < 3: e(f"s_add_u32 s68, s68, {8*3072}")
    e("s_branch L_CSD")
    e("L_CSW:")
    e("v_mul_u32_u24 v4, 3584, v2")
    e("v_add_u32 v4, v4, v3")
    e(f"s_mul_i32 s68, s20, {32*3584}")
    e("s_add_u32 s68, s68, s67")
    e(f"s_sub_u32 s68, s68, {24*128}")
    for t in range(4):
        e(f"buffer_load_dwordx4 {vr(CL+4*t,4)}, v4, {S1}, s68 offen {UNT}")
        if t < 3: e(f"s_add_u32 s68, s68, {8*3584}")
    e("L_CSD:")
    if opt.get("unear", 1):
        if opt.get("pfc", 1): pfcode()
        if opt.get("pf4", 0):
            sk = lab("NOP4")
            e("s_and_b32 s72, s23, 7")
            e("s_cmp_lg_u32 s72, 3")
            e(f"s_cbranch_scc1 {sk}")
            e("s_cmp_lg_u32 s19, 1")
            e(f"s_cbranch_scc1 {sk}")
            e("s_and_b32 s72, s20, 7")
            e("v_lshlrev_b32 v2, 3, v0")
            e("v_add_u32 v2, s72, v2")
            e("v_mul_u32_u24 v2, 3072, v2")
            e("s_lshl_b32 s72, s23, 7")
            e(f"buffer_load_dword v162, v2, {SW}, s72 offen offset:1024")
            e(f"{sk}:")
        i0 = e.lines.index("L_UTIL:")
        blk = e.lines[i0 + 1:] + ["  s_branch L_UTIL"]
        del e.lines[i0 + 1:]
        j0 = e.lines.index("  UINIT_HERE")
        e.lines[j0:j0 + 1] = blk
    if PFU == 2:
        e("s_mov_b32 s74, s64")
        pf_x(); pf_w()
        e("s_mov_b32 s64, s74")
    e(f"""s_mov_b32 s69, 0xffff0000
    s_mov_b32 s70, 0x3b000000
    s_lshl_b32 s64, s64, 4
    s_add_u32 s64, s64, {WS_RS:#x}
    v_lshlrev_b32 v14, 4, v0
    s_lshl_b32 s71, s23, 8
    s_add_u32 s72, s71, {512*4}
    v_add_u32 v15, s72, v14
    s_lshl_b32 s72, s22, 8
    s_add_u32 s72, s72, {1536*4 - 256}
    v_add_u32 v2, s72, v14
    v_cmp_le_u32 vcc, 16, v0
    s_lshl_b32 s72, s23, 7
    s_sub_u32 s72, s72, 512
    v_cndmask_b32 v15, v15, v2, vcc
    v_add_u32 v2, s72, v14
    v_cmp_le_u32 vcc, 32, v0
    s_mul_i32 s72, s23, 192
    s_add_u32 s72, s72, {2560*4 - 640}
    v_cndmask_b32 v15, v15, v2, vcc
    v_min_u32 v2, 51, v0
    v_lshlrev_b32 v2, 4, v2
    v_add_u32 v2, s72, v2
    v_cmp_le_u32 vcc, 40, v0
    s_nop 1
    v_cndmask_b32 v15, v15, v2, vcc""")
    def piece(n):
        if n == 0:
            e("s_cmp_ge_u32 s66, 52")
            e("s_cbranch_scc1 L_P0A")
            e(f"s_waitcnt vmcnt({4 + (2 if PFU == 2 else 0)})")
            e("s_branch L_P0B")
            e("L_P0A:")
            e(f"s_waitcnt vmcnt({2 if PFU == 2 else 0})")
            e("L_P0B:")
            for q in range(8):
                e(f"v_lshlrev_b32 v{U+2*q}, 16, v{L0+q}")
                e(f"v_and_b32 v{U+2*q+1}, s69, v{L0+q}")
            for q in range(4): e(f"v_add_f32 v{A+q}, v{U+q}, v{U+4+q}")
            for t in range(2, 4):
                for q in range(4): e(f"v_add_f32 v{A+q}, v{A+q}, v{U+4*t+q}")
            e(f"v_add_f32 v{A}, v{A}, v{A+1}")
            e(f"v_add_f32 v{A+2}, v{A+2}, v{A+3}")
            e(f"v_add_f32 v{A}, v{A}, v{A+2}")
            reduce32(e, [A], [A + 1])
            e(f"v_mul_f32 v{A}, s70, v{A}")
            e(f"v_add_u32 v{A+6}, {EPC:#x}, v{VE}")
            e(f"v_mov_b32 v2, {L_MISC}")
            e("v_mov_b32 v3, 0")
            e(f"ds_write_b32 v2, v{A+6}")
            e("v_lshl_add_u32 v2, v0, 2, v2")
            e("s_mov_b64 exec, -2")
            e("ds_write_b32 v2, v3")
            e("s_mov_b64 exec, -1")
        if n == 1:
            for q in range(16): e(f"v_sub_f32 v{U+q}, v{U+q}, v{A}")
            for q in range(4): e(f"v_mul_f32 v{L0+q}, v{U+q}, v{U+q}")
            for q in range(4, 16): e(f"v_fmac_f32 v{L0+(q&3)}, v{U+q}, v{U+q}")
            e(f"v_add_f32 v{L0}, v{L0}, v{L0+1}")
            e(f"v_add_f32 v{L0+2}, v{L0+2}, v{L0+3}")
            e(f"v_add_f32 v{A+4}, v{L0}, v{L0+2}")
            reduce32(e, [A + 4], [A + 5])
            e(f"v_mov_b32 v{A+5}, 0x3727c5ac")
            e(f"v_fma_f32 v{A+4}, v{A+4}, s70, v{A+5}")
            e(f"v_rsq_f32 v{A+4}, v{A+4}")
            e(f"v_readfirstlane_b32 s61, v{A+6}")
            e(f"v_mov_b32 v{A+7}, v{A+6}")
            e(f"v_mul_f32 v{A+5}, v{A}, v{A+4}")
            e(f"v_sub_f32 v{A+5}, 0, v{A+5}")
            e("s_mov_b32 s71, 0xff")
            e(f"v_bfi_b32 v{A+4}, s71, v{A+6}, v{A+4}")
            e(f"v_bfi_b32 v{A+5}, s71, v{A+6}, v{A+5}")
            e("s_mov_b32 exec_lo, 1")
            e("s_mov_b32 exec_hi, 1")
            e(f"buffer_store_dwordx4 {vr(A+4,4)}, v{VE+1}, {SS}, s64 offen sc1")
            e("s_mov_b64 exec, -1")
        if n == 2:
            e(f"s_waitcnt vmcnt({1 + (2 if PFU == 2 else 0)})")
            for q in range(4):
                e(f"v_lshlrev_b32 v{C0+2*q}, 16, v{CL+q}")
                e(f"v_and_b32 v{C0+2*q+1}, s69, v{CL+q}")
            for t in range(1, 4):
                for q in range(4):
                    e(f"v_lshlrev_b32 v{C1+2*q}, 16, v{CL+4*t+q}")
                    e(f"v_and_b32 v{C1+2*q+1}, s69, v{CL+4*t+q}")
                for q in range(8): e(f"v_add_f32 v{C0+q}, v{C0+q}, v{C1+q}")
            e("s_nop 1")
            for q in range(8): e(f"v_add_f32_dpp v{C0+q}, v{C0+q}, v{C0+q} row_ror:8 row_mask:0xf bank_mask:0xf")
            e("s_mov_b32 s72, 0xff00ff00")
            e("s_mov_b32 s73, 0xff00ff00")
            for q in range(4): e(f"v_cndmask_b32 v{C0+q}, v{C0+q}, v{C0+4+q}, s[72:73]")
            for sw in ("v_permlane16_swap_b32", "v_permlane32_swap_b32"):
                for q in range(4): e(f"v_mov_b32 v{C1+q}, v{C0+q}")
                e("s_nop 0")
                for q in range(4): e(f"{sw} v{C0+q}, v{C1+q}")
                for q in range(4): e(f"v_add_f32 v{C0+q}, v{C0+q}, v{C1+q}")
            e("s_mov_b32 s71, 0xff")
            e(f"v_bfe_u32 v{C1+2}, v0, 3, 1")
            for q in range(4): e(f"v_bfi_b32 v{C0+q}, s71, v{A+6}, v{C0+q}")
            e(f"v_lshlrev_b32 v{C1+1}, 5, v5")
            e(f"v_lshl_add_u32 v{C1+1}, v{C1+2}, 4, v{C1+1}")
            e(f"s_mul_i32 s71, s20, {3328*4}")
            e("s_lshl_b32 s72, s66, 8")
            e("s_add_u32 s71, s71, s72")
            e(f"s_add_u32 s71, s71, {WS_CS:#x}")
            e("s_cmp_ge_u32 s66, 52")
            e("s_cbranch_scc1 L_P2S")
            e("s_mov_b64 exec, 0xffff")
            e(f"buffer_store_dwordx4 {vr(C0,4)}, v{C1+1}, {SS}, s71 offen sc1")
            e("s_mov_b64 exec, -1")
            e("L_P2S:")
    def kvsetup():
        e(f"""v_and_b32 v10, 3, v0
        v_min_u32 v10, 2, v10
        s_sub_u32 s76, s20, 2
        v_add_u32 v10, s76, v10
        v_max_i32 v10, 0, v10
        v_lshlrev_b32 v10, 11, v10
        v_bfe_u32 v11, v0, 2, 1
        v_lshl_add_u32 v10, v11, 10, v10
        s_lshr_b32 s76, s23, 1
        s_lshl_b32 s76, s76, 7
        s_add_u32 s76, s76, {WS_F1:#x}
        v_mov_b32 v11, s61
        v_lshlrev_b32 v1, 4, v0
        s_lshr_b32 s52, s19, 1
        s_lshl_b32 s53, s23, 1
        s_add_u32 s53, s53, s52
        s_lshl_b32 s53, s53, 6
        s_and_b32 s54, s19, 1
        s_mul_i32 s54, s54, 6
        s_lshl_b32 s55, s20, 2
        s_add_u32 s54, s54, s55
        s_mul_i32 s55, s19, 6144""")
    def kvdma(lo=0, hi=6):
        for t in range(lo, hi):
            e(f"s_add_u32 s68, s54, {t}")
            e("s_sub_i32 s68, s68, 8")
            e("s_max_i32 s68, s68, 0")
            e("s_add_u32 s68, s68, s53")
            e("s_lshl_b32 s68, s68, 10")
            e(f"s_add_u32 m0, s55, {L_K + t*1024}")
            e("s_add_u32 s69, s68, 0x200000")
            e(f"buffer_load_dwordx4 v1, {SS}, s68 offen sc1 lds")
            e(f"s_add_u32 m0, s55, {L_V + t*1024}")
            e("s_nop 0")
            e(f"buffer_load_dwordx4 v1, {SS}, s69 offen sc1 lds")
    G0 = 84
    def gather():
        e(f"s_mov_b32 s71, {WS_CS:#x}")
        for g in range(16):
            e(f"buffer_load_dwordx4 {vr(G0+4*g,4)}, v15, {SS}, s71 offen sc1")
            e(f"s_add_u32 s71, s71, {3328*4}")
        e("s_lshl_b32 s71, s20, 11")
        e(f"s_add_u32 s71, s71, {WS_RS:#x}")
        for h in range(2):
            e(f"buffer_load_dwordx4 {vr(G0+64+4*h,4)}, v14, {SS}, s71 offen offset:{h*1024} sc1")
    PK = opt.get("pk", [0, 1, 1]); GK = opt.get("gk", 4); CK = opt.get("ck", 6)
    for n_, kk_ in enumerate(PK):
        if kk_ < 0: piece(n_)
    for k in range(UL + 1, 9):
        if k == PK[0] + 2: e("s_waitcnt lgkmcnt(0)")
        bstamp(k)
        e("s_barrier")
        for n_, kk_ in enumerate(PK):
            if kk_ == k: piece(n_)
        PW0 = opt.get("pfw", 0)
        if PW0 and PW0 <= k < 16:
            if k == PW0:
                srd(e, 44, 14, 1792 * 1024)
                srd(e, 48, 8, 512 * 1024)
                e("s_lshr_b32 s78, s2, 3")
                e("s_mul_i32 s79, s78, 57344")
                e("s_mul_i32 s3, s19, 14336")
                e("s_add_u32 s79, s79, s3")
                e("s_lshl_b32 s78, s78, 14")
                e("s_lshl_b32 s3, s19, 12")
                e("s_add_u32 s78, s78, s3")
            per = -(-18 // (opt.get("pfwe", 16) - PW0))
            for j in range(per * (k - PW0), min(18, per * (k - PW0 + 1))):
                if j < 14:
                    e(f"s_add_u32 s3, s79, {j*1024}")
                    e(f"buffer_load_dwordx4 v[120:123], v14, {S2}, s3 offen")
                else:
                    e(f"buffer_load_dwordx4 v[120:123], v14, {SO}, s78 offen offset:{(j-14)*1024}")
        if opt.get("pfl2", 0) and 8 <= k <= 10:
            if k == 8:
                srd(e, 44, 14, 1792 * 1024)
                srd(e, 48, 8, 512 * 1024)
                e("v_lshlrev_b32 v12, 7, v0")
                e("s_lshr_b32 s78, s2, 3")
            j = k - 8
            sk = lab("NOP2")
            if j < 2:
                e("s_mul_i32 s71, s78, 57344")
                e("s_lshl_b32 s72, s19, 13")
                e("s_add_u32 s71, s71, s72")
                if j == 1:
                    e("s_cmp_eq_u32 s19, 3")
                    e(f"s_cbranch_scc1 {sk}")
                    e("s_add_u32 s71, s71, 32768")
                e(f"buffer_load_dword v13, v12, {S2}, s71 offen")
            else:
                e("s_cmp_ge_u32 s19, 2")
                e(f"s_cbranch_scc1 {sk}")
                e("s_lshl_b32 s71, s78, 14")
                e("s_lshl_b32 s72, s19, 13")
                e("s_add_u32 s71, s71, s72")
                e(f"buffer_load_dword v13, v12, {SO}, s71 offen")
            e(f"{sk}:")
        if UST and k == 8:
            e(f"""s_lshl_b32 s3, s19, 12
            v_add_u32 v2, s3, v14
            v_add_u32 v3, {W1A[7]}, v2
            v_add_u32 v2, {W1A[6]}, v2""")
            for s_ in range(8): e(f"ds_read_b128 {vr(16+4*s_,4)}, v{2+(s_>>2)} offset:{(s_&3)*1024}")
            e(f"""s_lshl_b32 s64, s20, 2
            s_add_u32 s64, s64, s19
            s_lshl_b32 s65, s23, 8
            s_add_u32 s65, s65, s64
            s_lshl_b32 s65, s65, 10
            s_mul_i32 s66, s64, 112
            s_lshl_b32 s3, s23, 2
            s_add_u32 s66, s66, s3
            s_lshl_b32 s66, s66, 10
            s_add_u32 s66, s66, {WS_H:#x}
            s_waitcnt lgkmcnt(0)""")
        if UST and k >= 8:
            SP = opt.get("sper", 2)
            for s_ in range(SP * (k - 8), min(8, SP * (k - 7))):
                if s_ < 4: e(f"s_add_u32 s3, s65, {WS_KV + s_*0x10000:#x}")
                else: e(f"s_add_u32 s3, s66, {(s_-4)*1024}")
                e(f"buffer_store_dwordx4 {vr(16+4*s_,4)}, v14, {SS}, s3 offen sc1")
            if k == opt.get("ugk", 12): signal(4, 3, WS_F1, 2, 3, max(0, min(8, SP * (k - 7)) - 4))
            if k == opt.get("ugh", 15): signal(24, 3, WS_F1H, 2, 3)
        if k == opt.get("pf3k", 3) and opt.get("pf3", 1):
            sk = lab("NOP3")
            e("s_cmp_lg_u32 s19, 2")
            e(f"s_cbranch_scc1 {sk}")
            e("s_bitcmp1_b32 s23, 2")
            e(f"s_cbranch_scc1 {sk}")
            srd(e, 44, 14, 1792 * 1024)
            srd(e, 48, 8, 512 * 1024)
            e("v_lshlrev_b32 v2, 10, v0")
            e("s_lshr_b32 s72, s2, 3")
            e("s_mul_i32 s71, s72, 57344")
            e("s_mov_b32 exec_hi, 0xffffff")
            e(f"buffer_load_dword v160, v2, {S2}, s71 offen offset:384")
            e("s_lshl_b32 s71, s72, 14")
            e("s_mov_b64 exec, 0xffff")
            e(f"buffer_load_dword v161, v2, {SO}, s71 offen offset:384")
            e("s_mov_b64 exec, -1")
            e(f"{sk}:")
        if k == opt.get("pf2k", 2) and opt.get("pf2", 1):
            sk = lab("NOPF")
            e("s_cmp_lg_u32 s19, 1")
            e(f"s_cbranch_scc1 {sk}")
            srd(e, 44, 14, 1792 * 1024)
            srd(e, 48, 8, 512 * 1024)
            e("v_lshlrev_b32 v2, 7, v0")
            e("s_mul_i32 s71, s2, 7168")
            e("s_mov_b32 exec_hi, 0xffffff")
            e(f"buffer_load_dword v160, v2, {S2}, s71 offen")
            e("s_lshl_b32 s71, s2, 11")
            e("s_mov_b64 exec, 0xffff")
            e(f"buffer_load_dword v161, v2, {SO}, s71 offen")
            e("s_mov_b64 exec, -1")
            e(f"{sk}:")
        if k in (GK, CK, CK + 1):
            sk = lab("NOPOST")
            e("s_cmp_lg_u32 s19, 0")
            e(f"s_cbranch_scc1 {sk}")
            if k == GK: gather()
            if k == CK:
                e("s_mov_b32 s73, 0x20000")
                e("L_CHK:")
                e("s_waitcnt vmcnt(0)")
                e(f"v_xor_b32 v2, s61, v{G0}")
                for i in list(range(G0 + 1, G0 + 66)) + [G0 + 68, G0 + 69]: e(f"v_bitop3_b32 v2, v2, v{i}, s61 bitop3:0xf6")
                e("v_and_b32 v2, 0xff, v2")
                for i in (66, 67, 70, 71): e(f"v_bitop3_b32 v2, v2, v{G0+i}, s61 bitop3:0xf6")
                e("v_cmp_ne_u32 vcc, 0, v2")
                e("s_sub_u32 s73, s73, 1")
                e("s_cmp_eq_u32 s73, 0")
                e("s_cbranch_scc1 L_GOT")
                e("s_cmp_eq_u64 vcc, 0")
                e("s_cbranch_scc1 L_GOT")
                gather()
                e("s_branch L_CHK")
                e("L_GOT:")
            if k == CK + 1:
                e("s_mov_b32 s71, 0xffffff00")
                for i in list(range(G0, G0 + 66)) + [G0 + 68, G0 + 69]: e(f"v_and_b32 v{i}, s71, v{i}")
                for g in range(1, 16):
                    for h in range(4): e(f"v_add_f32 v{G0+h}, v{G0+h}, v{G0+4*g+h}")
                e(f"v_add_u32 v2, {L_ST}, v14")
                e(f"ds_write_b128 v2, {vr(G0+64,4)}")
                e(f"ds_write_b128 v2, {vr(G0+68,4)} offset:1024")
                e(f"ds_write_b128 v2, {vr(G0,4)} offset:2048")
                e("s_waitcnt lgkmcnt(0)")
                ldsadd(20, 2, 3)
            e(f"{sk}:")
    bflush()
    stamp(3)
    e.vm = []
    e("""s_lshr_b32 s52, s19, 1
    s_lshl_b32 s52, s52, 5
    s_and_b32 s62, s19, 1
    s_lshl_b32 s3, s62, 2
    s_add_u32 s52, s52, s3""")
    esetup()
    for c in LATE:
        ldswait(DONE + 4 * FIN["W2pre"][c], 4, 2, 3)
        issueW2(c)
    kvsetup()
    e.vmem(f"buffer_load_dword v4, v10, {SS}, s76 offen sc1", "kvf")
    for c in LATE:
        e.vwait(("w2", c))
        ldsadd(FULL + 4 * (8 + c), 2, 3)
    ldswait(DONE + 4 * FIN["KVpre"], 4, 2, 3)
    apoll_check(10, "s76", 11, 4, "kvf")
    stamp(4)
    kvdma()
    ldswait(DONE + 4 * FIN["Qpre"], 4, 2, 3)
    e(f"v_add_u32 v2, {L_ONE}, v1")
    for q in range(4): e(f"v_mov_b32 v{8+q}, 0x3f803f80")
    e("ds_write_b128 v2, v[8:11]")
    smasks()
    e("v_mov_b32 v6, 0xffff")
    e("v_mov_b32 v7, 0xffff0000")
    for q in range(8):
        e(f"v_cndmask_b32 v{140+q}, 0, v6, s[{64+4*q}:{65+4*q}]")
        e(f"v_cndmask_b32 v12, 0, v7, s[{66+4*q}:{67+4*q}]")
        e(f"v_or_b32 v{140+q}, v{140+q}, v12")
    e("ds_write_b128 v2, v[140:143] offset:1024")
    e("ds_write_b128 v2, v[144:147] offset:2048")
    e("s_add_u32 s96, s19, 4")
    e("s_mov_b32 s97, 0")
    e("s_waitcnt vmcnt(0) lgkmcnt(0)")
    ldsadd(16, 2, 3)
    stamp(5)

    e("L_ATT:")
    e.vm = []; e.lg = []
    Q = 8
    K = lambda u: 12 + 4 * u
    V = lambda u, g: 48 + ((u & 1) * 2 + g) * 4
    S = lambda b: 64 + 16 * b
    P, O = 112, 120
    VNEG, M0_, M1_, NM, MK = 136, 137, 138, 139, 140
    VA, VSTR = 148, 149
    e(f"v_mov_b32 v{VNEG}, {NEG:#x}")
    e(f"""s_and_b32 s3, s96, 3
    s_lshl_b32 s26, s20, 2
    s_add_u32 s26, s26, s3
    s_add_u32 s25, s26, 1
    s_min_u32 s25, s25, 9
    s_lshr_b32 s62, s96, 2
    s_lshl_b32 s27, s23, 1
    s_add_u32 s27, s27, s62
    v_lshlrev_b32 v1, 4, v0
    s_lshl_b32 s63, s96, 10
    s_add_u32 s63, s63, {L_Q}
    v_add_u32 v3, s63, v1
    s_mul_i32 s62, s62, 12288
    s_lshl_b32 s3, s3, 10
    s_add_u32 s3, s3, s62
    s_add_u32 s62, s3, {L_K}
    v_add_u32 v4, s62, v1
    v_lshrrev_b32 v5, 5, v0
    v_lshlrev_b32 v5, 2, v5
    v_bfe_u32 v6, v0, 2, 2
    v_add_u32 v5, v5, v6
    v_lshlrev_b32 v5, 4, v5
    v_bfe_u32 v6, v0, 1, 1
    v_lshl_add_u32 v5, v6, 9, v5
    v_and_b32 v6, 1, v0
    v_lshl_add_u32 v5, v6, 3, v5
    s_add_u32 s3, s3, {L_V + 8192}
    v_add_u32 v5, s3, v5
    v_mov_b32 v6, {L_ONE}
    v_mov_b32 v7, 1024
    s_mov_b32 s98, 0xffff
    s_mov_b32 s99, 0xffff
    v_cndmask_b32 v5, v6, v5, s[98:99]
    v_cndmask_b32 v{VSTR}, 0, v7, s[98:99]
    v_lshlrev_b32 v7, 3, v{VSTR}
    v_sub_u32 v{VA+2}, v5, v7""")
    stamp(6)
    def owed():
        sk = lab("NOOWE")
        e("s_cmp_eq_u32 s97, 0")
        e(f"s_cbranch_scc1 {sk}")
        keepl = list(e.lg)
        signal(12, 3, WS_F1B, 152, 153)
        e.lg = keepl
        e("s_mov_b32 s97, 0")
        e(f"{sk}:")
    if opt.get("owu", 1) == 0: owed()
    ldswait(16, 8, 2, 6)
    e(f"s_setprio {opt.get('aprio', 0)}")
    stamp(7)
    def fill(buf, val, diag):
        for j in range(16):
            a, b = (f"v{VNEG}", val) if diag else (val, f"v{VNEG}")
            e(f"v_cndmask_b32 v{S(buf)+j}, {a}, {b}, s[{64+2*j}:{65+2*j}]")
    def smfma(u, buf, cin):
        e.lwait(("K", u))
        e(f"v_mfma_f32_32x32x16_bf16 {vr(S(buf),16)}, {vr(K(u),4)}, {vr(Q,4)}, {cin}")
    def vread(u, par=None, va=None):
        if va is None:
            if u == 0: e(f"v_mov_b32 v{VA}, v5")
            else: e(f"v_sub_u32 v{VA}, v{VA}, v{VSTR}")
            va = VA
        for g in range(2):
            r = V(u if par is None else par, g)
            for h in range(2): e.lds(f"ds_read_b64_tr_b16 v[{r+2*h}:{r+2*h+1}], v{va} offset:{g*256 + h*128}", ("V", u))
    PD, PFR = S(2), S(2) + 8
    if opt.get("noatt"): e("s_branch L_P2DONE")
    e(f"v_add_u32 v2, {L_ONE}, v1")
    e.lds(f"ds_read_b128 {vr(Q,4)}, v3", "Q")
    for u in [0, 8, 1]: e.lds(f"ds_read_b128 {vr(K(u),4)}, v4 offset:{(8-u)*1024}", ("K", u))
    vread(0); vread(8, 1, VA + 2)
    smfma(0, 0, "0"); smfma(8, 2, "0"); smfma(1, 1, "0")
    e.lwait(("V", 0))
    e.lds(f"ds_read_b128 {vr(MK,4)}, v2 offset:1024", "MK")
    e.lds(f"ds_read_b128 {vr(MK+4,4)}, v2 offset:2048", "MK")
    for u in range(2, 8): e.lds(f"ds_read_b128 {vr(K(u),4)}, v4 offset:{(8-u)*1024}", ("K", u))
    e("s_nop 2")
    s0 = S(0)
    for j in range(16): e(f"v_cndmask_b32 v{s0+j}, v{S(2)+j}, v{s0+j}, s[{64+2*j}:{65+2*j}]")
    for j in range(16): e(f"v_exp_f32 v{s0+j}, v{s0+j}")
    for q in range(8): e(f"v_cvt_pk_bf16_f32 v{P+q}, v{s0+2*q}, v{s0+2*q+1}")
    e.lwait("MK")
    for q in range(8): e(f"v_and_b32 v{PD+q}, v{MK+q}, v{P+q}")
    e.lwait(("V", 8))
    e(f"v_mfma_f32_32x32x16_bf16 {vr(O,16)}, {vr(V(0,0),4)}, {vr(PD,4)}, 0")
    for q in range(8): e(f"v_bfi_b32 v{PFR+q}, v{MK+q}, 0, v{P+q}")
    e(f"v_mfma_f32_32x32x16_bf16 {vr(O,16)}, {vr(V(0,1),4)}, {vr(PD+4,4)}, {vr(O,16)}")
    e("s_cmp_lt_u32 s25, 9")
    e("s_cbranch_scc1 L_NOFAR")
    e(f"v_mfma_f32_32x32x16_bf16 {vr(O,16)}, {vr(V(1,0),4)}, {vr(PFR,4)}, {vr(O,16)}")
    e(f"v_mfma_f32_32x32x16_bf16 {vr(O,16)}, {vr(V(1,1),4)}, {vr(PFR+4,4)}, {vr(O,16)}")
    e("L_NOFAR:")
    vread(1)
    e("s_cmp_eq_u32 s25, 1")
    e("s_cbranch_scc1 L_FCHK")
    def pv(u, g): e(f"v_mfma_f32_32x32x16_bf16 {vr(O,16)}, {vr(V(u,g),4)}, {vr(P+4*g,4)}, {vr(O,16)}")
    for u in range(1, 8):
        s_ = S(u % 2)
        if u + 1 <= 7: smfma(u + 1, (u + 1) % 2, "0")
        for j in range(2): e(f"v_exp_f32 v{s_+j}, v{s_+j}")
        if u > 1: pv(u - 1, 1)
        if u + 1 <= 7: vread(u + 1)
        for j in range(2, 8): e(f"v_exp_f32 v{s_+j}, v{s_+j}")
        for q in range(4): e(f"v_cvt_pk_bf16_f32 v{P+q}, v{s_+2*q}, v{s_+2*q+1}")
        for j in range(8, 10): e(f"v_exp_f32 v{s_+j}, v{s_+j}")
        e.lwait(("V", u))
        pv(u, 0)
        for j in range(10, 16): e(f"v_exp_f32 v{s_+j}, v{s_+j}")
        for q in range(4, 8): e(f"v_cvt_pk_bf16_f32 v{P+q}, v{s_+2*q}, v{s_+2*q+1}")
        if u == opt.get("owu", 1): owed()
        if u < 7:
            e(f"s_cmp_eq_u32 s25, {u+1}")
            e(f"s_cbranch_scc1 L_FX{u&1}")
    e("L_FX1:")
    e("s_nop 1")
    pv(1, 1)
    e("s_branch L_FCHK")
    e("L_FX0:")
    e("s_nop 1")
    pv(0, 1)
    e("L_FCHK:")
    if opt.get("owu", 1): owed()
    e("s_mov_b32 s52, 0x1f800000")
    e("s_mov_b32 s53, 0x5f800000")
    e("s_mov_b32 s3, 0x7f800000")
    e("s_waitcnt lgkmcnt(0)")
    e("s_nop 7")
    e(f"v_add_f32 v6, |v{O}|, |v{O+1}|")
    e(f"v_add_f32 v7, |v{O+2}|, |v{O+3}|")
    e(f"v_add_f32 v2, |v{O+4}|, |v{O+5}|")
    e(f"v_add_f32 v3, |v{O+6}|, |v{O+7}|")
    e(f"v_cmp_le_f32 s[62:63], s52, v{O+8}")
    e(f"v_cmp_ge_f32 s[98:99], s53, v{O+8}")
    e("v_add_f32 v6, v6, v7")
    e("v_add_f32 v2, v2, v3")
    e("v_add_f32 v6, v6, v2")
    e("s_and_b64 s[62:63], s[62:63], s[98:99]")
    e("v_cmp_gt_f32 vcc, s3, v6")
    e("s_nop 0")
    e("s_and_b64 s[62:63], s[62:63], vcc")
    e("s_cmp_eq_u64 s[62:63], -1")
    if opt.get("forceslow"): e("s_cmp_eq_u32 s62, 12345")
    e("s_cbranch_scc1 L_P2DONE")
    e.lg = []
    e(f"v_mov_b32 v{M0_}, v{VNEG}")
    e(f"v_mov_b32 v{M1_}, v{VNEG}")
    fill(0, "0", True)
    e("s_nop 1")
    smfma(0, 0, vr(S(0), 16))
    smfma(1, 1, "0")
    for u in range(9):
        if u + 2 <= 8:
            if u + 2 == 8:
                fill((u + 2) % 3, "0", False); e("s_nop 1")
                smfma(u + 2, (u + 2) % 3, vr(S((u + 2) % 3), 16))
            else:
                smfma(u + 2, (u + 2) % 3, "0")
        if u == 0: e("s_nop 9")
        for q in range(8):
            m = M0_ + (q & 1)
            e(f"v_max3_f32 v{m}, v{S(u%3)+2*q}, v{S(u%3)+2*q+1}, v{m}")
        if u < 8:
            e(f"s_cmp_eq_u32 s25, {u+1}")
            e("s_cbranch_scc1 L_P1DONE")
    e("L_P1DONE:")
    vread(0)
    e(f"v_max_f32 v{M0_}, v{M0_}, v{M1_}")
    e(f"v_mov_b32 v{M1_}, v{M0_}")
    e("s_nop 1")
    e(f"v_permlane32_swap_b32 v{M0_}, v{M1_}")
    e("s_nop 1")
    e(f"v_max_f32 v{M0_}, v{M0_}, v{M1_}")
    e(f"v_sub_f32 v{NM}, 0, v{M0_}")
    e("s_nop 3")
    CB = S(2)
    for j in range(16): e(f"v_mov_b32 v{CB+j}, v{NM}")
    fill(0, f"v{NM}", True)
    e("s_nop 1")
    smfma(0, 0, vr(S(0), 16))
    for u in range(9):
        s = S(u % 2)
        if u + 1 <= 8:
            nb_ = (u + 1) % 2
            if u + 1 == 8:
                fill(nb_, f"v{NM}", False); e("s_nop 1")
                smfma(u + 1, nb_, vr(S(nb_), 16))
            else:
                smfma(u + 1, nb_, vr(CB, 16))
            vread(u + 1)
        if u == 0: e("s_nop 6")
        for j in range(8): e(f"v_exp_f32 v{s+j}, v{s+j}")
        for q in range(4): e(f"v_cvt_pk_bf16_f32 v{P+q}, v{s+2*q}, v{s+2*q+1}")
        for j in range(8, 16): e(f"v_exp_f32 v{s+j}, v{s+j}")
        e.lwait(("V", u))
        e(f"v_mfma_f32_32x32x16_bf16 {vr(O,16)}, {vr(V(u,0),4)}, {vr(P,4)}, {'0' if u == 0 else vr(O,16)}")
        for q in range(4, 8): e(f"v_cvt_pk_bf16_f32 v{P+q}, v{s+2*q}, v{s+2*q+1}")
        e("s_nop 1")
        e(f"v_mfma_f32_32x32x16_bf16 {vr(O,16)}, {vr(V(u,1),4)}, {vr(P+4,4)}, {vr(O,16)}")
        if u < 8:
            e(f"s_cmp_eq_u32 s25, {u+1}")
            e("s_cbranch_scc1 L_P2X")
    e("L_P2X:")
    e("s_waitcnt lgkmcnt(0)")
    e("s_nop 12")
    e("L_P2DONE:")
    e("s_lshl_b32 s3, s26, 5")
    e("s_add_u32 s3, s3, s27")
    e("s_lshl_b32 s3, s3, 10")
    e(f"s_add_u32 s3, s3, {WS_O:#x}")
    e(f"v_rcp_f32 v7, v{O+8}")
    e("s_nop 0")
    for j in range(8): e(f"v_mul_f32 v{O+j}, v{O+j}, v7")
    for q in range(4): e(f"v_cvt_pk_bf16_f32 v{P+q}, v{O+2*q}, v{O+2*q+1}")
    e(f"buffer_store_dwordx4 {vr(P,4)}, v1, {SS}, s3 offen {'' if opt.get('hplain') else 'sc1'}")
    gate('att')
    stamp(8)
    signal(8, 7, WS_F2)
    stamp(9)
    e("s_cmp_lg_u32 s2, 0")
    e("s_cbranch_scc1 L_FIN")
    e("s_cmp_lg_u32 s96, 1")
    e("s_cbranch_scc1 L_FIN")
    e("v_lshlrev_b32 v6, 7, v0")
    e("s_mov_b32 s63, 0x20000")
    e("L_BCHK:")
    for g in range(4):
        e(f"s_mov_b32 s62, {WS_F2 + g*8192:#x}")
        e(f"buffer_load_dword v{8+g}, v6, {SS}, s62 offen sc1")
    e("s_waitcnt vmcnt(0)")
    e("v_xor_b32 v7, s61, v8")
    for i in range(9, 12): e(f"v_bitop3_b32 v7, v7, v{i}, s61 bitop3:0xf6")
    e("v_cmp_ne_u32 vcc, 0, v7")
    e("s_sub_u32 s63, s63, 1")
    e("s_cmp_eq_u32 s63, 0")
    e("s_cbranch_scc1 L_FIN")
    e("s_cmp_lg_u64 vcc, 0")
    e("s_cbranch_scc1 L_BCHK")
    e("s_mov_b64 exec, 1")
    e("v_mov_b32 v6, 0")
    e("v_mov_b32 v7, s61")
    e(f"s_mov_b32 s62, {WS_EP:#x}")
    e(f"buffer_store_dword v7, v6, {SS}, s62 offen sc1")
    e("s_mov_b64 exec, -1")
    e("L_FIN:")
    e.vm = []; e.lg = []
    srd(e, 28, 10, 2048 * 1024)
    e(f"""v_lshrrev_b32 v7, 3, v0
    v_and_b32 v14, 7, v0
    v_lshlrev_b32 v8, 4, v14
    v_lshl_add_u32 v2, v7, 10, v8
    s_lshl_b32 s62, s58, 16
    s_lshl_b32 s3, s96, 13
    s_add_u32 s62, s62, s3
    s_lshl_b32 s3, s59, 7
    s_add_u32 s62, s62, s3""")
    e(f"buffer_load_dwordx4 v[8:11], v2, {SX}, s62 offen")
    e(f"""s_and_b32 s3, s96, 3
    s_lshl_b32 s3, s3, 10
    s_cmp_ge_u32 s96, 4
    s_mov_b32 s63, {BREG[0]}
    s_cselect_b32 s63, {BREG[2]}, s63
    s_mov_b32 s64, {BREG[1]}
    s_cselect_b32 s64, {BREG[3]}, s64
    s_add_u32 s63, s63, s3
    s_add_u32 s64, s64, s3
    v_and_b32 v12, 3, v0
    v_lshlrev_b32 v12, 1, v12
    v_xor_b32 v12, v12, v7
    v_bfe_u32 v13, v0, 2, 1
    v_xor_b32 v12, v12, v13
    v_lshlrev_b32 v12, 4, v12
    v_lshl_add_u32 v12, v7, 7, v12
    v_mov_b32 v15, s63
    v_mov_b32 v16, s64
    v_cmp_eq_u32 vcc, 1, v13
    s_nop 1
    v_cndmask_b32 v15, v15, v16, vcc
    v_add_u32 v24, v15, v12
    v_xor_b32 v25, 16, v24""")
    stamp(10)
    e("s_barrier")
    stamp(11)
    R = lambda src, h: 48 + src * 8 + h * 4
    for src in range(4):
        for h in range(2): e.lds(f"ds_read_b128 {vr(R(src,h),4)}, v{24+h} offset:{src*4096}", src)
    e("s_mov_b32 s3, 0xffff0000")
    e("s_waitcnt vmcnt(0)")
    for q in range(4):
        e(f"v_lshlrev_b32 v{32+2*q}, 16, v{8+q}")
        e(f"v_and_b32 v{33+2*q}, s3, v{8+q}")
    for src in range(4):
        e.lwait(src)
        for q in range(4): e(f"v_pk_add_f32 {pk(32+2*q)}, {pk(32+2*q)}, {pk(R(src,0)+2*q)}")
    for q in range(4): e(f"v_cvt_pk_bf16_f32 v{40+q}, v{32+2*q}, v{33+2*q}")
    e("buffer_store_dwordx4 v[40:43], v2, s[28:31], s62 offen " + opt.get("ost", "nt"))
    if opt.get("deadline"):
        e("v_readlane_b32 s4, v167, 0")
        e("L_DLY:")
        e("s_memrealtime s[6:7]")
        e("s_waitcnt lgkmcnt(0)")
        e("s_sub_u32 s8, s6, s4")
        e(f"s_cmp_lt_u32 s8, {opt['deadline']}")
        e("s_cbranch_scc1 L_DLY")
    if opt.get("delay"):
        tm = "s_memrealtime" if opt.get("delayrt") else "s_memtime"
        e(f"{tm} s[4:5]")
        e("s_waitcnt lgkmcnt(0)")
        e("L_DLY:")
        e(f"{tm} s[6:7]")
        e("s_waitcnt lgkmcnt(0)")
        e("s_sub_u32 s8, s6, s4")
        e(f"s_cmp_lt_u32 s8, {opt['delay']}")
        e("s_cbranch_scc1 L_DLY")
    if ST:
        e("L_DUMP:")
        stamp(12)
        e("s_waitcnt vmcnt(0)")
        stamp(13); stamp(14, True)
        if opt.get("dbgst") is not None:
            e("s_load_dwordx2 s[4:5], s[0:1], 56")
            e(f"s_cmp_lg_u32 s2, {opt['dbgst']}")
            e("s_cbranch_scc1 L_END")
            e("s_cmp_lg_u32 s18, 4")
            e("s_cbranch_scc1 L_END")
            e(f"v_readlane_b32 s6, v{VST}, 1")
            e(f"v_readlane_b32 s7, v{VST}, 0")
            e("s_waitcnt lgkmcnt(0)")
            e(f"v_subrev_u32 v3, s6, v{VST}")
            e(f"v_subrev_u32 v4, s7, v{VST}")
            e("v_cmp_eq_u32 vcc, 14, v0")
            e("s_nop 1")
            e("v_cndmask_b32 v3, v3, v4, vcc")
            e("v_lshlrev_b32 v2, 2, v0")
            e("s_mov_b64 exec, 0xffff")
            e("global_store_dword v2, v3, s[4:5]")
            e("s_endpgm")
        e("s_mul_i32 s3, s2, 12")
        e("s_add_u32 s3, s3, s18")
        e("s_lshl_b32 s3, s3, 7")
        e("s_add_u32 s3, s3, 0x1000000")
        e("v_lshl_add_u32 v2, v0, 2, s3")
        e("s_mov_b64 exec, 0xffffffff")
        e(f"global_store_dword v2, v{VST}, s[16:17]")
    e("L_END:")
    e("s_endpgm")
    return name, e.text(), kd(name, 168), (256, 768, LDS)

def build(opt, path):
    n, t, k, (g, b, lds) = gen(opt)
    ref = open(f"cdna_kernels/{NAME}.s.ref").read().split("\n")
    head = [l for l in ref if l.startswith(";") and "@launch" not in l and "Override launch" not in l and "grid=ceil" not in l]
    s = "\n".join(head[:10]) + "\n"
    dm = opt.get("dummy")
    if dm:
        ll = [f"; @launch kernel=dum_kernel grid=({dm[0]},1,1) block=({dm[1]},1,1) lds={dm[2]}\n", f"; @launch kernel={n} grid=({g},1,1) block=({b},1,1) lds={lds}\n"]
        s += "".join(ll if dm[4] == 0 else ll[::-1])
    else: s += f"; @launch grid=({g},1,1) block=({b},1,1) lds={lds}\n"
    s += '.amdgcn_target "amdgcn-amd-amdhsa--gfx950"\n.text\n'
    if dm:
        s += """.globl dum_kernel
.p2align 8
.type dum_kernel,@function
dum_kernel:
  s_memrealtime s[4:5]
  s_waitcnt lgkmcnt(0)
L_DD:
  s_memrealtime s[6:7]
  s_waitcnt lgkmcnt(0)
  s_sub_u32 s8, s6, s4
  s_cmp_lt_u32 s8, 1000
  s_cbranch_scc1 L_DD
  s_endpgm
"""
        k = k + ".p2align 6\n" + kd("dum_kernel", dm[3])
    s += f".globl {n}\n.p2align 8\n.type {n},@function\n" + t
    s += '.section .rodata,"a"\n.p2align 6\n' + k
    open(path, "w").write(s)

if __name__ == "__main__":
    import sys, json
    opt = json.loads(sys.argv[2]) if len(sys.argv) > 2 else {}
    build(opt, sys.argv[1])
```

```python
from emit import *
from alloc import plan3, plan4

NAME = "parallel_sum__sliding_block__dense_activation_relu__prompt"
WS_KV, WS_H, WS_O = 0, 0x600000, 0xD00000
WS_RS = 0xF00000
WS_CS = 0xF10000
WS_EP = 0xF80000
WS_F1, WS_F1B, WS_F2, WS_F1H = 0xF90000, 0xFA0000, 0xFB0000, 0xFC0000
WS_BYTES = 0x1000000
EPC = 0x9E3779B9
L_ST = 158720
L_MISC = L_ST + 3072
FULL, DONE = 64, 128
LDS = L_MISC + 256
ORD2 = list(range(6, 16)) + list(range(6))
NEG = 0xf149f2ca
pk = lambda a: f"v[{a}:{a+1}]"
SW, S1, SX, SS, S2, SO = "s[28:31]", "s[32:35]", "s[36:39]", "s[40:43]", "s[44:47]", "s[48:51]"
VST = 167

def reduce32(e, regs, tmp):
    for ctl in ("quad_perm:[1,0,3,2]", "quad_perm:[2,3,0,1]", "row_half_mirror", "row_mirror"):
        e("s_nop 1")
        for r in regs: e(f"v_add_f32_dpp v{r}, v{r}, v{r} {ctl} row_mask:0xf bank_mask:0xf")
    for r, t in zip(regs, tmp): e(f"v_mov_b32 v{t}, v{r}")
    e("s_nop 1")
    for r, t in zip(regs, tmp): e(f"v_permlane16_swap_b32 v{r}, v{t}")
    e("s_nop 1")
    for r, t in zip(regs, tmp): e(f"v_add_f32 v{r}, v{r}, v{t}")

def gen(opt):
    e = Em()
    name = NAME + "_kernel"
    ST = opt.get("stamps")
    NB = 6
    NT = opt.get("nt", "")
    UNT = opt.get("unt", "")
    PL = opt.get("pl", 2)
    XA, W1A, W2A, FIN = plan3(PL, opt.get("w2l", 2), NB, opt.get("ust", 0))
    if not opt.get("ust", 0): XA, W1A, W2A, FIN = plan4(PL, NB, opt.get("w2t", 5), opt.get("kvlow", 1))
    for j in range(NB): FIN[f"B{j}"] = FIN["Bx"][j]
    LATE = [c for c in range(8) if W2A[c][0] >= 8]
    NEEDD = sorted(set(([opt["brw"]] if opt.get("brw") is not None else []) + [FIN["W2pre"][c] for c in LATE] + [FIN[f"B{j}"][0] for j in range(NB)] + [FIN["KVpre"], FIN["Qpre"]]))
    BREG = [FIN[f"B{j}"][1] for j in range(NB)]
    BT = [max(FIN[f"B{j}"][0], min(16, opt.get("bt0", 15) + j)) for j in range(NB)]
    L_K, L_V, L_Q, L_ONE = FIN["K"], FIN["V"], FIN["Q"], FIN["ONES"]
    def stamp(i, rt=False):
        if not ST or (ST == 2 and not rt): return
        e(("s_memrealtime" if rt else "s_memtime") + " s[100:101]")
        e("s_waitcnt lgkmcnt(0)")
        e(f"v_writelane_b32 v{VST}, s100, {i}")
        if opt.get("rtall") and not rt:
            e("s_memrealtime s[100:101]")
            e("s_waitcnt lgkmcnt(0)")
            e(f"v_writelane_b32 v{VST}, s100, {16+i}")
    BK = opt.get("bk", [])
    def bstamp(k):
        if ST and k in BK: e(f"s_memtime s[{80+2*BK.index(k)}:{81+2*BK.index(k)}]")
    def bflush():
        if ST and BK:
            e("s_waitcnt lgkmcnt(0)")
            for i in range(len(BK)): e(f"v_writelane_b32 v{VST}, s{80+2*i}, {16+i}")
    uid = [0]
    def lab(p):
        uid[0] += 1
        return f"{p}_{uid[0]}"
    def apoll_issue(voff, soff, vd, tag):
        e.vmem(f"buffer_load_dword v{vd}, v{voff}, {SS}, {soff} offen sc1", tag)
    def apoll_check(voff, soff, vtag, vd, tag):
        D = lab("AOK")
        e.vwait(tag)
        e(f"v_cmp_ne_u32 vcc, v{vtag}, v{vd}")
        e("s_nop 1")
        e("s_cmp_eq_u64 vcc, 0")
        e(f"s_cbranch_scc1 {D}")
        keep = list(e.vm); keepl = list(e.lg)
        poll(voff, soff, vtag, vd)
        e.vm = keep; e.lg = keepl
        e(f"{D}:")
    def poll(voff, soff, vtag, vd):
        L, D = lab("POLL"), lab("POLLED")
        e("s_mov_b32 s63, 0x40000")
        e(f"{L}:")
        e(f"buffer_load_dword v{vd}, v{voff}, {SS}, {soff} offen sc1")
        e("s_waitcnt vmcnt(0) lgkmcnt(0)")
        e(f"v_cmp_ne_u32 vcc, v{vtag}, v{vd}")
        e("s_sub_u32 s63, s63, 1")
        e("s_cmp_eq_u32 s63, 0")
        e(f"s_cbranch_scc1 {D}")
        e("s_cmp_lg_u64 vcc, 0")
        e(f"s_cbranch_scc1 {L}")
        e(f"{D}:")
        e.vm = []; e.lg = []
    def ldswait(off, val, va, vb, pre=None):
        L, D = lab("LW"), lab("LWOK")
        if pre is None: e(f"v_mov_b32 v{va}, {L_MISC}")
        else: va = pre
        e("s_mov_b32 s63, 0x400000")
        e(f"{L}:")
        e(f"ds_read_b32 v{vb}, v{va} offset:{off}")
        e("s_sub_u32 s63, s63, 1")
        e("s_waitcnt lgkmcnt(0)")
        e(f"v_readfirstlane_b32 s62, v{vb}")
        e("s_cmp_eq_u32 s63, 0")
        e(f"s_cbranch_scc1 {D}")
        e(f"s_cmp_ge_u32 s62, {val}")
        e(f"s_cbranch_scc1 {D}")
        e("s_sleep 1")
        e(f"s_branch {L}")
        e(f"{D}:")
        e.lg = []
    def ldsadd(off, va, vb):
        e(f"v_mov_b32 v{va}, {L_MISC}")
        e(f"v_mov_b32 v{vb}, 1")
        e("s_mov_b64 exec, 1")
        e(f"ds_add_u32 v{va}, v{vb} offset:{off}")
        e("s_mov_b64 exec, -1")
    def smasks():
        for j in range(16):
            b0 = (j >> 2) * 8 + (j & 3)
            e(f"s_mov_b32 s{64+2*j}, {(0xffffffff << b0) & 0xffffffff:#x}")
            e(f"s_mov_b32 s{65+2*j}, {(0xffffffff << (b0+4)) & 0xffffffff:#x}")
    def asig1(coff, vm):
        e(f"s_waitcnt vmcnt({vm})")
        e("s_mov_b64 exec, 1")
        e.lds(f"ds_add_rtn_u32 v164, v6, v165 offset:{coff}", "sg")
        e("s_mov_b64 exec, -1")
    def asig2(last, base):
        N = lab("NOFLAG")
        e.lwait("sg")
        e("v_readfirstlane_b32 s63, v164")
        e(f"s_add_u32 s62, s24, {base:#x}")
        e(f"s_cmp_lg_u32 s63, {last}")
        e(f"s_cbranch_scc1 {N}")
        e("v_mov_b32 v164, s61")
        e("s_mov_b64 exec, 1")
        e(f"buffer_store_dword v164, off, {SS}, s62 sc1")
        e("s_mov_b64 exec, -1")
        e(f"{N}:")
    def signal(coff, last, base, va=2, vb=3, vm=0):
        N = lab("NOFLAG")
        e(f"s_waitcnt vmcnt({vm})")
        e(f"v_mov_b32 v{va}, {L_MISC}")
        e(f"v_mov_b32 v{vb}, 1")
        e("s_mov_b64 exec, 1")
        e(f"ds_add_rtn_u32 v{vb}, v{va}, v{vb} offset:{coff}")
        e(f"s_add_u32 s62, s24, {base:#x}")
        e("s_waitcnt lgkmcnt(0)")
        e(f"v_readfirstlane_b32 s63, v{vb}")
        e(f"s_cmp_lg_u32 s63, {last}")
        e(f"s_cbranch_scc1 {N}")
        e(f"v_mov_b32 v{va}, 0")
        e(f"v_mov_b32 v{vb}, s61")
        e(f"buffer_store_dword v{vb}, v{va}, {SS}, s62 offen sc1")
        e(f"{N}:")
        e("s_mov_b64 exec, -1")
        e.lg = []

    e(f"{name}:")
    e("s_cmp_ge_u32 s2, 256")
    e("s_cbranch_scc1 L_END")
    stamp(0, True); stamp(1)
    def gate(nm):
        if opt.get("gate") == nm:
            L = lab("GATE")
            e("v_readlane_b32 s98, v167, 0")
            e(f"{L}:")
            e(("s_memtime" if opt.get("gcyc") else "s_memrealtime") + " s[100:101]")
            e("s_waitcnt lgkmcnt(0)")
            e("s_sub_u32 s99, s100, s98")
            e(f"s_cmp_lt_u32 s99, {opt.get('gcyc', 3000)}")
            e(f"s_cbranch_scc1 {L}")
    if opt.get("deadline") or opt.get("gate"): e(("s_memtime" if opt.get("gcyc") else "s_memrealtime") + " s[98:99]"); e("s_waitcnt lgkmcnt(0)"); e("v_writelane_b32 v167, s98, 0")
    e("s_load_dwordx4 s[4:7], s[0:1], 0")
    e("s_load_dwordx4 s[12:15], s[0:1], 32")
    e("s_load_dwordx2 s[16:17], s[0:1], 64")
    e("s_load_dwordx2 s[8:9], s[0:1], 16")
    e("s_load_dwordx2 s[10:11], s[0:1], 48")
    e("v_lshrrev_b32 v1, 6, v0")
    e("v_and_b32 v0, 63, v0")
    e("v_readfirstlane_b32 s18, v1")
    e("""s_and_b32 s3, s2, 1
    s_lshl_b32 s20, s3, 3
    s_lshr_b32 s24, s2, 5
    s_add_u32 s20, s20, s24
    s_bfe_u32 s21, s2, 0x20001
    s_bfe_u32 s22, s2, 0x20003
    s_lshl_b32 s23, s21, 2
    s_add_u32 s23, s23, s22
    s_lshl_b32 s24, s20, 4
    s_add_u32 s24, s24, s23
    s_lshl_b32 s24, s24, 7
    s_and_b32 s19, s18, 3
    s_lshl_b32 s3, s3, 2
    s_add_u32 s58, s3, s21
    s_lshl_b32 s58, s58, 2
    s_lshr_b32 s59, s2, 6
    s_add_u32 s58, s58, s59
    s_bfe_u32 s59, s2, 0x30003""")
    if opt.get("map2", 0):
        e("""s_and_b32 s20, s2, 3
        s_lshl_b32 s20, s20, 2
        s_lshr_b32 s3, s2, 6
        s_add_u32 s20, s20, s3
        s_bfe_u32 s23, s2, 0x10002
        s_lshl_b32 s23, s23, 3
        s_bfe_u32 s3, s2, 0x30003
        s_add_u32 s23, s23, s3
        s_lshl_b32 s24, s20, 4
        s_add_u32 s24, s24, s23
        s_lshl_b32 s24, s24, 7""")
    if opt.get("map3", 0):
        e("""s_and_b32 s20, s2, 7
        s_lshl_b32 s20, s20, 1
        s_lshr_b32 s3, s2, 7
        s_add_u32 s20, s20, s3
        s_bfe_u32 s23, s2, 0x40003
        s_lshl_b32 s24, s20, 4
        s_add_u32 s24, s24, s23
        s_lshl_b32 s24, s24, 7""")
    if opt.get("own", 1):
        e("s_lshl_b32 s58, s20, 1")
        e("s_lshr_b32 s59, s23, 3")
        e("s_add_u32 s58, s58, s59")
        e("s_and_b32 s59, s23, 7")
        e(f"s_xor_b32 s59, s59, {opt.get('ntx', 2)}")
    e(f"s_xor_b32 s22, s23, {opt.get('hx', 1)}")
    e("s_waitcnt lgkmcnt(0)")
    if opt.get("wsoff"):
        e(f"s_add_u32 s16, s16, {opt['wsoff'] << 20:#x}")
        e("s_addc_u32 s17, s17, 0")
    srd(e, 36, 4, 2048 * 1024)
    srd(e, 28, 6, 512 * 3072)
    srd(e, 32, 12, 512 * 3584)
    srd(e, 40, 16, WS_BYTES)
    if opt.get("unear", 1):
        e("s_cmp_lt_u32 s18, 4")
        e("s_cbranch_scc1 L_LOAD")
        e("s_cmp_lt_u32 s18, 8")
        e("s_cbranch_scc1 L_CONS")
        e("UINIT_HERE")
        e("L_LOAD:")
    else:
        e("s_cmp_ge_u32 s18, 8")
        e("s_cbranch_scc1 L_UTIL")
        e("s_cmp_ge_u32 s18, 4")
        e("s_cbranch_scc1 L_CONS")

    e(f"""v_and_b32 v5, 7, v0
    v_lshrrev_b32 v2, 3, v0
    v_lshrrev_b32 v3, 4, v0
    v_xor_b32 v3, v3, v5
    v_lshlrev_b32 v2, 10, v2
    v_lshl_add_u32 v12, v3, 4, v2
    v_xor_b32 v13, 64, v12
    s_lshl_b32 s65, s20, 17
    s_lshl_b32 s3, s18, 15
    s_add_u32 s65, s65, s3
    s_lshl_b32 s67, s18, 12""")
    def issueX(P):
        e(f"s_add_u32 m0, s67, {XA[P]}")
        e(f"s_add_u32 s74, s65, {P*128}")
        for a in range(4):
            e.vmem(f"buffer_load_dwordx4 v{12+(a&1)}, {SX}, s74 offen offset:{a*1024} {NT} lds", ("x", P))
            if a < 3: e(f"s_add_u32 s74, s74, {8192-1024}")
    issueX(0)
    e("""v_lshrrev_b32 v2, 5, v0
    v_bfe_u32 v3, v0, 3, 2
    v_lshl_add_u32 v3, v2, 3, v3
    v_bfe_u32 v4, v0, 4, 2
    v_lshlrev_b32 v4, 1, v4
    v_xor_b32 v4, v4, v5
    v_lshlrev_b32 v4, 4, v4
    v_mul_u32_u24 v10, 3072, v3
    v_add_u32 v10, v10, v4
    v_mul_u32_u24 v11, 3584, v3
    v_add_u32 v11, v11, v4
    s_lshr_b32 s52, s18, 1
    s_lshl_b32 s52, s52, 5
    s_and_b32 s62, s18, 1
    s_lshl_b32 s3, s62, 2
    s_add_u32 s52, s52, s3
    s_lshl_b32 s3, s23, 7
    s_mul_i32 s53, s52, 3072
    s_add_u32 s53, s53, s3
    s_add_u32 s53, s53, 1024
    s_mul_i32 s54, s52, 3584
    s_lshl_b32 s3, s22, 7
    s_add_u32 s54, s54, s3""")
    def issueW(c):
        for ah in range(2):
            e(f"s_add_u32 m0, s67, {W1A[c] + ah*2048}")
            e(f"s_add_u32 s74, s53, {(64*c + 16*ah)*3072}")
            e.vmem(f"buffer_load_dwordx4 v10, {SW}, s74 offen {NT} lds", ("w", c))
            e(f"s_add_u32 m0, s67, {W1A[c] + ah*2048 + 1024}")
            e(f"s_add_u32 s74, s54, {(64*c + 16*ah)*3584}")
            e.vmem(f"buffer_load_dwordx4 v11, {S1}, s74 offen {NT} lds", ("w", c))
    def esetup():
        e("""v_lshrrev_b32 v2, 4, v0
        v_bfe_u32 v3, v0, 2, 2
        v_lshl_add_u32 v3, v2, 3, v3
        v_mul_u32_u24 v16, 3072, v3
        v_and_b32 v2, 1, v2
        v_lshlrev_b32 v2, 1, v2
        v_and_b32 v3, 3, v0
        v_xor_b32 v2, v2, v3
        v_lshl_add_u32 v16, v2, 4, v16
        s_and_b32 s62, s19, 1
        s_lshl_b32 s3, s62, 7""")
        for j in range(2):
            e(f"""v_add_u32 v2, s3, v0
            v_add_u32 v2, {64*j}, v2
            v_mul_u32_u24 v3, 10923, v2
            v_lshrrev_b32 v3, 16, v3
            v_mul_u32_u24 v4, 6, v3
            v_sub_u32 v4, v2, v4
            v_bfe_u32 v6, v3, 2, 2
            v_lshlrev_b32 v6, 3, v6
            v_lshrrev_b32 v7, 4, v3
            v_lshl_add_u32 v6, v7, 2, v6
            v_and_b32 v7, 3, v3
            v_add_u32 v6, v6, v7
            v_mul_u32_u24 v{17+j}, 3584, v6
            v_lshl_add_u32 v{17+j}, v4, 4, v{17+j}""")
        e("""s_cmp_eq_u32 s62, 1
        s_cselect_b32 s3, 0x80000000, 0
        v_or_b32 v18, s3, v18
        s_lshr_b32 s3, s19, 1
        s_mul_i32 s55, s52, 3072
        s_lshl_b32 s64, s23, 6
        s_add_u32 s55, s55, s64
        s_mul_i32 s56, s3, 114688
        s_mul_i32 s64, s23, 96
        s_add_u32 s56, s56, s64
        s_add_u32 s56, s56, 2048
        s_mul_i32 s57, s3, 5120
        s_lshl_b32 s64, s62, 10
        s_add_u32 s60, s57, s64
        s_lshl_b32 s64, s62, 11
        s_add_u32 s57, s57, s64
        s_add_u32 s64, s57, 1024
        s_cmp_eq_u32 s62, 1
        s_cselect_b32 s64, 8192, s64""")
    def issueW2(c):
        p = ORD2[2 * c]
        base = W2A[c][1]
        e(f"s_add_u32 m0, s60, {base}")
        e(f"s_add_u32 s74, s55, {p*32*3072}")
        e.vmem(f"buffer_load_dwordx4 v16, {SW}, s74 offen {NT} lds", ("w2", c))
        e(f"s_add_u32 m0, s57, {base + 2048}")
        e(f"s_add_u32 s74, s56, {p*32*3584}")
        e.vmem(f"buffer_load_dwordx4 v17, {S1}, s74 offen {NT} lds", ("w2", c))
        e(f"s_add_u32 m0, s64, {base + 2048}")
        e("s_nop 0")
        e.vmem(f"buffer_load_dwordx4 v18, {S1}, s74 offen {NT} lds", ("w2", c))
    NF2, NS, NA = 14, 18, 4
    A0 = 20
    AF = lambda sg, tb, kk: A0 + (sg % NA) * 16 + (tb * 2 + kk) * 4
    ACB = A0 + NA * 16
    GACC = lambda tb, nb: ACB + (tb * 2 + nb) * 16
    BFB = ACB + 64
    BF = lambda kk, nb: BFB + (kk * 2 + nb) * 4
    assert BFB + 16 <= VST
    def gsetup():
        srd(e, 44, 14, 1792 * 1024)
        srd(e, 48, 8, 512 * 1024)
        e(f"""v_lshrrev_b32 v8, 3, v0
        v_bfe_u32 v2, v0, 4, 1
        v_lshlrev_b32 v2, 2, v2
        v_xor_b32 v9, v5, v2
        v_lshlrev_b32 v9, 4, v9
        v_lshl_add_u32 v14, v8, 10, v9
        v_lshrrev_b32 v2, 2, v8
        v_lshlrev_b32 v2, 3, v2
        v_and_b32 v8, 3, v8
        v_add_u32 v8, v8, v2
        v_lshl_add_u32 v15, v8, 10, v9
        v_lshlrev_b32 v1, 4, v0
        s_lshl_b32 s3, s59, 7
        s_lshl_b32 s70, s18, 18
        s_add_u32 s70, s70, s3
        s_mul_i32 s78, s18, {12*16*1024}
        s_add_u32 s78, s78, s3
        s_lshl_b32 s71, s18, 17
        s_add_u32 s71, s71, s3
        s_mul_i32 s72, s58, {2*112*1024}
        s_add_u32 s72, s72, {WS_H:#x}
        s_mul_i32 s79, s18, {12*1024}
        s_add_u32 s79, s79, s72
        s_lshl_b32 s3, s18, 14
        s_add_u32 s72, s72, s3
        s_lshl_b32 s73, s58, 16
        s_lshl_b32 s3, s18, 13
        s_add_u32 s73, s73, s3
        s_add_u32 s73, s73, {WS_O:#x}
        s_and_b32 s3, s58, 3
        s_cmp_eq_u32 s3, s18
        s_cselect_b32 s26, 1, 0
        s_cmp_eq_u32 s59, s18
        s_cselect_b32 s27, 1, 0
        s_add_u32 s3, s18, 4
        s_cmp_eq_u32 s59, s3
        s_cselect_b32 s21, 1, 0
        s_lshl_b32 s69, s58, 1
        s_add_u32 s69, s69, s59
        s_and_b32 s69, s69, {opt.get("rotm", 7)}
        s_sub_u32 s25, s69, 6
        s_cmp_ge_u32 s69, 6
        s_cselect_b32 s25, s25, s69""")
    KS = [(2 * i, False) for i in range(8)] + [(64 + 2 * i, True) for i in range(6)]
    ROT = opt.get("rot", 0)
    def ridx(sg):
        if sg < 8:
            e(f"s_add_u32 s68, s69, {sg}")
            e("s_and_b32 s68, s68, 7")
        elif sg < NF2:
            e(f"s_add_u32 s68, s25, {sg-8}")
            e("s_sub_u32 s3, s68, 6")
            e("s_cmp_ge_u32 s68, 6")
            e("s_cselect_b32 s68, s3, s68")
        else:
            e(f"s_add_u32 s68, s69, {sg-NF2}")
            e("s_and_b32 s68, s68, 3")
    def issueB(sg):
        if ROT:
            ridx(sg)
            e("s_lshl_b32 s68, s68, 15")
            e(f"s_add_u32 s68, s68, {'s70' if sg < 8 else 's78' if sg < NF2 else 's71'}")
        for a in range(4):
            e(f"s_add_u32 m0, s67, {BREG[sg % NB] + a*1024}")
            if sg < NF2:
                k16, ex = KS[sg]
                if ROT: e(f"s_add_u32 s74, s68, {((1024 if ex else 0) + 8*a)*1024}")
                else: e(f"s_add_u32 s74, {'s78' if ex else 's70'}, {(16*k16 + 8*a)*1024}")
                e.vmem(f"buffer_load_dwordx4 v14, {S2}, s74 offen lds", ("B", sg))
            else:
                if ROT: e(f"s_add_u32 s74, s68, {(16*(a>>1) + 4*(a&1))*1024}")
                else: e(f"s_add_u32 s74, s71, {(32*(sg-NF2) + 16*(a>>1) + 4*(a&1))*1024}")
                e.vmem(f"buffer_load_dwordx4 v15, {SO}, s74 offen lds", ("B", sg))
    def issueA(sg, tbs=(0, 1)):
        for tb in tbs:
            if sg < NF2:
                k16, ex = KS[sg]
                e(f"s_add_u32 s74, {'s79' if ex else 's72'}, {(tb*112 + k16)*1024}")
            else: e(f"s_add_u32 s74, s73, {(tb*32 + 2*(sg-NF2))*1024}")
            for kk in range(2):
                e.vmem(f"buffer_load_dwordx4 {vr(AF(sg,tb,kk),4)}, v1, {SS}, s74 offen offset:{kk*1024} sc1", ("A", sg))
    LEAD = opt.get("lead", 0)
    def either(sreg, lead_fn, foll_fn):
        L1, L2 = lab("LD"), lab("LE")
        e(f"s_cmp_lg_u32 {sreg}, 0")
        e(f"s_cbranch_scc1 {L1}")
        allk = list(e.act)
        e.act = [k for k in allk if sreg not in k]
        if foll_fn: foll_fn()
        e(f"s_branch {L2}")
        e(f"{L1}:")
        keep = list(e.vm)
        e.act = [k for k in allk if sreg in k]
        if lead_fn: lead_fn()
        e.vm = keep
        e.act = allk
        e(f"{L2}:")
    def gsetup2():
        e(f"""v_lshrrev_b32 v6, 5, v0
        v_lshlrev_b32 v6, 3, v6
        v_bfe_u32 v7, v0, 2, 2
        v_add_u32 v6, v6, v7
        v_lshlrev_b32 v6, 7, v6
        v_lshrrev_b32 v7, 1, v7
        v_lshl_add_u32 v6, v7, 6, v6
        v_bfe_u32 v7, v0, 4, 1
        v_lshl_add_u32 v6, v7, 5, v6
        v_and_b32 v7, 3, v0
        v_lshl_add_u32 v6, v7, 3, v6
        v_add_u32 v6, s67, v6
        v_xor_b32 v7, 64, v6
        v_add_u32 v8, 49152, v6
        v_add_u32 v9, 49152, v7
    v_add_u32 v10, 98304, v6
    v_add_u32 v11, 98304, v7
        v_mov_b32 v2, {L_MISC}
        ds_read_b32 v2, v2
        v_and_b32 v3, 3, v0
        v_lshlrev_b32 v3, 7, v3
        s_lshr_b32 s76, s58, 1
        s_lshl_b32 s76, s76, 11
        s_lshl_b32 s3, s18, 9
        s_add_u32 s76, s76, s3
        s_add_u32 s66, s76, {WS_F1H:#x}""")
        e("s_mov_b32 s75, 0")
        e("s_waitcnt lgkmcnt(0)")
    D = opt.get("gd", 3); DB = NB - 1; PS = opt.get("ps", 12); PB = 8 - D - 1
    GE = opt.get("ge", 15)
    def firstA(lo=0, hi=None):
        hi = D if hi is None else hi
        for sg in range(lo, hi):
            if LEAD & 2 and sg == hi - 1:
                for tb in range(2): either(("s27", "s21")[tb], lambda: issueA(sg, (tb,)), None)
            else: issueA(sg)
    issueW(0)
    for c in range(1, PL): issueX(c); issueW(c)
    for k in range(9):
        e.vwait([("w", k), ("x", k)] if k < 8 else [("w2", c) for c in range(8)])
        if k == 0: stamp(2)
        if k == 8: stamp(3)
        bstamp(k)
        e("s_barrier")
        if k + PL <= 7: issueX(k + PL); issueW(k + PL)
        if k == 1: gsetup()
        if k == 2: esetup()
        for c in range(8):
            if W2A[c][0] == k and c not in LATE: issueW2(c)
        if k == 7:
            ldswait(28, 4, 2, 3)
            for c in range(8):
                if W2A[c][0] == 7.5: issueW2(c)
    bflush()
    stamp(4)
    if opt.get("gprio", 0): e(f"s_setprio {opt.get('gprio')}")
    gsetup2()
    seen = [-1]
    def need2(st):
        if st > seen[0]:
            ldswait(DONE + 4 * st, 4, 12, 13)
            seen[0] = st
    BP = opt.get("bp", 3)
    BR = opt.get("breg", 0)
    if BR:
        if opt.get("brw") is not None: need2(opt["brw"])
        for j in range(BR):
            for a in range(4):
                e(f"s_add_u32 s74, s70, {(16*KS[j][0] + 8*a)*1024}")
                e.vmem(f"buffer_load_dwordx4 {vr(ACB+16*j+4*a,4)}, v14, {S2}, s74 offen", ("B", j))
        poll(3, "s66", 2, 4)
        for sg in range(D): issueA(sg)
        for j in range(BR):
            need2(FIN[f"B{j}"][0])
            e(f"s_add_u32 s3, s67, {BREG[j]}")
            e("v_add_u32 v16, s3, v1")
            for a in range(4): e(f"ds_write_b128 v16, {vr(ACB+16*j+4*a,4)} offset:{a*1024}")
        e("s_waitcnt lgkmcnt(0)")
        BP = BR
    else:
        for j in range(BP): need2(FIN[f"B{j}"][0]); issueB(j)
        poll(3, "s66", 2, 4)
        for sg in range(D): issueA(sg)
    stamp(5)
    done_b = set()
    def step(sg):
        for j in range(BP, NB):
            if min(j - BP, opt.get("bq", 9)) == sg or (sg == 0 and j - BP < opt.get("b0", 1)):
                if j not in done_b: need2(FIN[f"B{j}"][0]); issueB(j); done_b.add(j)
        bstamp(100 + sg)
        e.vwait([("B", sg), ("A", sg)])
        bstamp(200 + sg)
        reg = BREG[sg % NB]
        hi = reg // 49152
        off0 = reg - 49152 * hi
        for kk in range(2):
            for nb in range(2):
                for q in range(2):
                    e.lds(f"ds_read_b64_tr_b16 v[{BF(kk,nb)+2*q}:{BF(kk,nb)+2*q+1}], v{6+2*hi+nb} offset:{off0 + kk*2048 + q*512}", (kk, nb))
        if LEAD & 1:
            FB = opt.get("fb", 3)
            okb = lambda j: NB <= j < NS
            if okb(sg + DB) or okb(sg + FB):
                either("s26", (lambda: issueB(sg + DB)) if okb(sg + DB) else None, (lambda: issueB(sg + FB)) if okb(sg + FB) else None)
        elif NB <= sg + DB < NS: issueB(sg + DB)
        oka = lambda j: j < NF2 or (j < NS and sg > PS and j >= PS + 1 + D)
        if LEAD & 2:
            okf = lambda j: j < NF2 or (j < NS and sg > PS and j >= PS + D)
            for tb in range(2):
                if oka(sg + D) or okf(sg + D - 1):
                    either(("s27", "s21")[tb], (lambda: issueA(sg + D, (tb,))) if oka(sg + D) else None, (lambda: issueA(sg + D - 1, (tb,))) if okf(sg + D - 1) else None)
        elif oka(sg + D): issueA(sg + D)
        for kk in range(2):
            for nb in range(2):
                e.lwait((kk, nb))
                for tb in range(2):
                    acc = vr(GACC(tb, nb), 16)
                    cin = "0" if (sg == 0 and kk == 0) else acc
                    if opt.get("nogm") and (kk or nb): continue
                    e(f"v_mfma_f32_32x32x16_bf16 {acc}, {vr(BF(kk,nb),4)}, {vr(AF(sg,tb,kk),4)}, {cin}")
    for sg in range(PS + 1):
        if sg == PB - 1 or sg == PS - 1:
            e(f"s_add_u32 s66, s76, {(WS_F1B if sg == PB - 1 else WS_F2):#x}")
            apoll_issue(3, "s66", 4, "fl")
        step(sg)
        if sg == PB:
            stamp(6)
            apoll_check(3, "s66", 2, 4, "fl")
    stamp(7)
    apoll_check(3, "s66", 2, 4, "fl")
    stamp(8)
    firstA(NF2, min(NS, PS + 1 + D))
    for sg in range(PS + 1, NS): step(sg)
    e.var = None
    bflush()
    gate('g')
    stamp(9)
    e("""v_and_b32 v12, 31, v0
    v_lshlrev_b32 v12, 7, v12
    v_lshrrev_b32 v13, 5, v0
    v_xor_b32 v13, v13, v5
    v_lshl_add_u32 v12, v13, 4, v12
    v_add_u32 v12, s67, v12""")
    for nb in range(2):
        for a in range(4): e(f"v_xor_b32 v{20+nb*4+a}, {((2*a) ^ nb)*16}, v12")
    for tb in range(2):
        for nb in range(2):
            for a in range(4): e(f"v_add_u32 v{28+(tb*2+nb)*4+a}, {BREG[tb*2+nb]}, v{20+nb*4+a}")
    for tb in range(2):
        for nb in range(2):
            for a in range(4): e(f"ds_write_b128 v{28+(tb*2+nb)*4+a}, {vr(GACC(tb,nb)+4*a,4)}")
    e("s_waitcnt lgkmcnt(0)")
    stamp(10)
    e("s_barrier")
    if ST: e("s_branch L_DUMP")
    e("s_endpgm")

    e("L_CONS:")
    e.vm = []; e.lg = []
    LA = opt.get("la", 5); NFB = 6
    F = lambda f: 8 + (f % NFB) * 4
    XF = lambda n, r: 32 + ((n & 1) * 2 + r) * 4
    XK = lambda p, r: 48 + (p * 2 + r) * 4
    ACC = lambda s, r: 96 + (s * 2 + r) * 4
    AW = [1, 2, 3, 4]; AX = [7, 5]
    e(f"""v_lshrrev_b32 v8, 2, v0
    v_lshrrev_b32 v9, 3, v8
    v_lshlrev_b32 v9, 11, v9
    v_and_b32 v10, 7, v8
    v_lshl_add_u32 v9, v10, 7, v9
    v_and_b32 v10, 3, v0
    v_lshlrev_b32 v10, 3, v10
    v_add_u32 v9, v9, v10
    v_bfe_u32 v11, v0, 3, 2
    v_lshl_add_u32 v1, v11, 5, v9
    v_add_u32 v1, {W1A[0]}, v1
    v_xor_b32 v2, 32, v1
    v_xor_b32 v3, 64, v1
    v_xor_b32 v4, 96, v1
    v_and_b32 v8, 15, v0
    v_lshrrev_b32 v9, 4, v0
    v_lshrrev_b32 v10, 1, v8
    v_xor_b32 v9, v9, v10
    v_lshlrev_b32 v8, 7, v8
    v_lshl_add_u32 v7, v9, 4, v8
    s_lshl_b32 s3, s19, 12
    s_add_u32 s3, s3, {XA[0]}
    v_add_u32 v7, s3, v7
    v_xor_b32 v5, 64, v7""")
    if opt.get("tlb", 0):
        sk = lab("NOTLB")
        e("s_cmp_lg_u32 s19, 0")
        e(f"s_cbranch_scc1 {sk}")
        srd(e, 44, 10, 2048 * 1024)
        e("v_lshlrev_b32 v8, 20, v0")
        e("s_mov_b64 exec, 0xffff")
        e(f"buffer_load_dword v156, v8, {SS}, 0 offen")
        e("s_mov_b64 exec, 3")
        e(f"buffer_load_dword v157, v8, s[44:47], 0 offen")
        e("s_mov_b64 exec, -1")
        e(f"{sk}:")
    e(f"v_mov_b32 v6, {L_MISC}")
    e("v_mov_b32 v165, 1")
    if not BK: smasks()
    if opt.get("cprio", 3): e(f"s_setprio {opt.get('cprio', 3)}")
    cur = {"w": W1A[0], "x": XA[0]}
    UST = opt.get("ust", 0)
    PEND = []
    DEF = []; NST = [0]; TIM = 0 if UST else opt.get("tim", 2)
    def move(kind, regs, addr):
        d = addr - cur[kind]
        if d:
            for a in regs: e(f"v_add_u32 v{a}, {d & 0xffffffff:#x}, v{a}")
        cur[kind] = addr
    def gemm(ps):
        NSB = 8 if ps == 1 else 5
        NF = 16 * NSB
        kst = (lambda n: n) if ps == 1 else (lambda n: ORD2[n])
        xreg = lambda n, r: XK(kst(n), r) if kst(n) < 6 else XF(n, r)
        def rd(f):
            n, s = divmod(f, NSB)
            for q in range(2):
                if ps == 1:  a, off = AW[s & 3], (n & 1) * 8192 + q * 4096 + (s >> 2) * 1024
                elif s < 2:  a, off = AW[s], (n & 1) * 5120 + q * 1024
                else:        a, off = AW[2], (n & 1) * 5120 + 2048 + q * 1536 + (s - 2) * 32
                yield f"ds_read_b64_tr_b16 v[{F(f)+2*q}:{F(f)+2*q+1}], v{a} offset:{off}"
        def kswitch(n):
            if n % 2 == 0:
                if ps == 1: move("w", AW, W1A[n // 2])
                else:       move("w", AW[:3], W2A[n // 2][1])
                t = 8 * (ps - 1) + n // 2
                bstamp(t)
                if t <= 8: e("s_barrier")
                if t == 0 and opt.get("tlb", 0): e("s_waitcnt vmcnt(0)")
                if t > 8 and t - 8 in LATE:
                    L, D_ = lab("FW"), lab("FOK")
                    e.lwait("fl")
                    e("v_readfirstlane_b32 s62, v4")
                    e("s_cmp_ge_u32 s62, 4")
                    e(f"s_cbranch_scc1 {D_}")
                    keepl = list(e.lg)
                    ldswait(FULL + 4 * t, 4, 4, 4, 6)
                    e.lg = keepl
                    e(f"{D_}:")
                if ps == 2 and not UST:
                    for _ in range(opt.get("tper", 4)):
                        if DEF:
                            for x in DEF.pop(0):
                                if opt.get("nost1") and "buffer_store" in x: continue
                                e(x.replace(" sc1", "") if opt.get("plain1") else x)
                            NST[0] += 1
                    if n // 2 == opt.get("sgk", 0):
                        asig1(4, max(0, NST[0] - 4)); PEND.append(WS_F1)
                    if n // 2 == opt.get("sgh", 3):
                        assert not DEF
                        asig1(24, 0); PEND.append(WS_F1H)
            if NSB > LA or n < 2: xread(n)
        def xread(n):
            p = kst(n)
            if ps == 1 or p >= 6:
                move("x", AX, XA[p >> 1])
                for r in range(2): e.lds(f"ds_read_b128 {vr(xreg(n,r),4)}, v{AX[p&1]} offset:{r*2048}", ("x", n))
        kswitch(0)
        if ps == 1: stamp(2); gate("b0")
        for f in range(LA):
            if f and f % NSB == 0: kswitch(f // NSB)
            for r_ in rd(f): e.lds(r_, f)
        for f in range(NF):
            n, s = divmod(f, NSB)
            nxt = f + LA
            if nxt < NF and nxt % NSB == 0: kswitch(nxt // NSB)
            if NSB <= LA and s == 0 and 1 <= n < 15: xread(n + 1)
            if ps == 2 and (nxt + 4) % (2 * NSB) == 0 and (nxt + 4) // (2 * NSB) in LATE:
                e.lds(f"ds_read_b32 v4, v6 offset:{FULL + 4*(8 + (nxt + 4) // (2 * NSB))}", "fl")
            if PEND and nxt % (2 * NSB) == 4: asig2(3, PEND.pop())
            if opt.get("w2f", 1) and f % 2 == 0 and f + 1 < NF: e.lwait([f, f + 1, ("x", n), ("x", (f + 1) // NSB)])
            else: e.lwait([f, ("x", n)])
            if ps == 2 and (f + 1) % (2 * NSB) == 0 and 8 + n // 2 in NEEDD:
                e("s_mov_b64 exec, 1")
                e.lds(f"ds_add_u32 v6, v165 offset:{DONE + 4*(8 + n//2)}", "dn")
                e("s_mov_b64 exec, -1")
            rds = list(rd(nxt)) if nxt < NF else [None, None]
            for r in range(2):
                acc = vr(ACC(s, r), 4)
                e(f"v_mfma_f32_16x16x32_bf16 {acc}, {vr(F(f),4)}, {vr(xreg(n,r),4)}, {'0' if n == 0 else acc}")
                if rds[r]: e.lds(rds[r], nxt)
    RS = lambda r: 160 + 2 * r
    RQ = lambda r: 32 + 2 * r
    TT = 8
    CSR = [24, 28]
    def epilogue(ps):
        order = (([0, 1, 2, 3, 5, 6, 7, 4] if opt.get('kvfirst', 1) else [5, 6, 7, 2, 3, 4, 0, 1]) if TIM else list(range(8))) if ps == 1 else ([2, 3, 4, 0, 1] if opt.get('b16late') else [0, 1, 2, 3, 4])
        dd = {}
        loc = lambda s: s if ps == 1 else 8 + s
        if ps == 1:
            ldsadd(28, 8, 9)
            ldswait(20, 1, 8, 9)
        e(f"""v_and_b32 v16, 15, v0
        v_lshrrev_b32 v17, 4, v0
        s_lshl_b32 s3, s19, 9
        s_add_u32 s3, s3, {L_ST}
        v_lshl_add_u32 v8, v16, 4, s3
        v_lshlrev_b32 v164, 4, v17
        v_add_u32 v164, {L_ST+2048}, v164
        v_mov_b32 v10, {L_MISC}""")
        if ps == 1:
            for r in range(2): e.lds(f"ds_read_b64 {pk(RS(r))}, v8 offset:{256*r}", "st")
            e.lds("ds_read_b32 v10, v10", "st")
        def csread(n):
            if n < len(order): e.lds(f"ds_read_b128 {vr(CSR[n%2],4)}, v164 offset:{64*loc(order[n])}", ("cs", n))
        csread(0)
        e("v_lshlrev_b32 v166, 4, v0")
        if ps == 1:
            e(f"""s_lshl_b32 s52, s20, 2
            s_add_u32 s52, s52, s19
            s_lshl_b32 s53, s23, 8
            s_add_u32 s53, s53, s52
            s_lshl_b32 s53, s53, 10
            s_mul_i32 s54, s52, 112
            s_mul_i32 s55, s23, 3
            s_add_u32 s55, s55, s54
            s_add_u32 s55, s55, 64
            s_lshl_b32 s55, s55, 10
            s_lshl_b32 s3, s22, 2
            s_add_u32 s54, s54, s3
            s_lshl_b32 s54, s54, 10
            s_add_u32 s54, s54, {WS_H:#x}
            s_add_u32 s55, s55, {WS_H:#x}""")
            if UST:
                e("s_lshl_b32 s3, s19, 12")
                e("v_add_u32 v36, s3, v166")
                e(f"v_add_u32 v37, {W1A[7]}, v36")
                e(f"v_add_u32 v36, {W1A[6]}, v36")
            e.lwait("st")
            e("v_readfirstlane_b32 s61, v10")
        else:
            e("s_mov_b32 s3, 0x3eb8aa3b")
            for q in range(4): e(f"v_mul_f32 v{32+q}, s3, v{160+q}")
            e("s_lshl_b32 s3, s19, 10")
            e(f"s_add_u32 s3, s3, {L_Q}")
            e("v_add_u32 v36, s3, v166")
            ldswait(DONE + 4 * FIN["Qpre"], 4, 37, 38)
        for n, s in enumerate(order):
            T = 16 + 4 * (n % 2)
            stg = ps == 1 and UST
            dfr = ps == 1 and TIM and s >= (4 if opt.get('kvfirst', 1) else 2) and not UST
            if dfr: T = ACC(s, 0) if s >= 5 else ACC(s + 3, 1)
            isQ = ps == 2 and s < 2
            isH = (ps == 1 and s >= 4) or (ps == 2 and s >= 2)
            if stg and s == 4: ldswait(28, 4, 38, 39)
            e.lwait(("cs", n))
            c = CSR[n % 2]
            csread(n + 1)
            if opt.get("xnop"): e("s_nop 3")
            if (ps == 2 or opt.get("nopk1", 1)) and opt.get("nopk", 1):
                for r in range(2):
                    sp = RQ(r) if isQ else RS(r)
                    for j in range(4): e(f"v_mul_f32 v{TT+4*r+j}, v{c+j}, v{sp+1}")
                for r in range(2):
                    sp = RQ(r) if isQ else RS(r)
                    for j in range(4): e(f"v_fmac_f32 v{TT+4*r+j}, v{ACC(s,r)+j}, v{sp}")
            else:
                for r in range(2):
                    sp = RQ(r) if isQ else RS(r)
                    for h in range(2):
                        e(f"v_pk_mul_f32 {pk(TT+4*r+2*h)}, {pk(c+2*h)}, {pk(sp)} op_sel:[0,1] op_sel_hi:[1,1]")
                for r in range(2):
                    sp = RQ(r) if isQ else RS(r)
                    for h in range(2):
                        t = TT + 4 * r + 2 * h
                        e(f"v_pk_fma_f32 {pk(t)}, {pk(ACC(s,r)+2*h)}, {pk(sp)}, {pk(t)} op_sel_hi:[1,0,1]")
            for r in range(2):
                for h in range(2):
                    t = TT + 4 * r + 2 * h
                    e(f"v_cvt_pk_bf16_f32 v{T+2*r+h}, v{t}, v{t+1}")
            if isQ or stg: sa = "s_nop 0"
            elif ps == 2: sa = f"s_add_u32 s3, s55, {(s-2)*1024}"
            elif s < 4: sa = f"s_add_u32 s3, s53, {WS_KV + s*0x10000:#x}"
            else: sa = f"s_add_u32 s3, s54, {(s-4)*1024}"
            e("s_nop 2")
            e(f"v_permlane16_swap_b32 v{T}, v{T+2}")
            e(f"v_permlane16_swap_b32 v{T+1}, v{T+3}")
            e(sa if not dfr else "s_nop 0")
            e("s_nop 0")
            if isH:
                for q in (0, 2, 1, 3): e(f"v_pk_max_i16 v{T+q}, v{T+q}, 0")
            if isQ:
                e.lds(f"ds_write_b128 v36, {vr(T,4)} offset:{s*4096}", "qw")
                if s == 1:
                    e.lwait_all()
                    ldsadd(16, 37, 38)
            elif stg: e.lds(f"ds_write_b128 v{36 + (s >> 2)}, {vr(T,4)} offset:{(s&3)*1024}", "qw")
            elif dfr: dd[s] = [sa, f"buffer_store_dwordx4 {vr(T,4)}, v166, {SS}, s3 offen {'' if isH and opt.get('hplain') else 'sc1'}"]
            else:
                e(f"buffer_store_dwordx4 {vr(T,4)}, v166, {SS}, s3 offen {'' if isH and opt.get('hplain') else 'sc1'}")
                NST[0] += 1
                if ps == 2 and s == 4 and opt.get("b16late"): e("s_barrier")
        for s in sorted(dd): DEF.append(dd[s])
    gemm(1)
    gate('p1')
    stamp(3)
    epilogue(1)
    e(f"""v_lshrrev_b32 v8, 2, v0
    v_and_b32 v10, 3, v0
    v_lshlrev_b32 v10, 3, v10
    v_lshl_add_u32 v1, v8, 6, v10
    v_bfe_u32 v11, v0, 4, 1
    v_lshl_add_u32 v1, v11, 5, v1
    v_add_u32 v1, {W2A[0][1]}, v1
    v_xor_b32 v2, 32, v1
    v_mul_u32_u24 v3, 96, v8
    v_add_u32 v3, v3, v10
    v_add_u32 v3, {W2A[0][1]}, v3""")
    cur["w"] = W2A[0][1]
    e.lwait_all()
    stamp(4)
    gemm(2)
    gate('p2')
    bflush()
    stamp(5)
    epilogue(2)
    if BK: smasks()
    e("s_mov_b32 s96, s19")
    e("s_mov_b32 s97, 1")
    e("s_branch L_ATT")

    e("L_UTIL:")
    e.vm = []; e.lg = []
    if opt.get("uprio0", 3): e(f"s_setprio {opt.get('uprio0', 3)}")
    L0, U, A, CL, C0, C1, VE = 16, 24, 40, 48, 64, 72, 80
    e("v_and_b32 v5, 7, v0")
    def pfcode():
        sk = lab("NOPC")
        e("s_cmp_lg_u32 s19, 3")
        e(f"s_cbranch_scc1 {sk}")
        e("s_getpc_b64 s[72:73]")
        e("L_PCREF:")
        e(f"s_sub_u32 s72, s72, L_PCREF-{name}")
        e("s_subb_u32 s73, s73, 0")
        e("s_lshr_b32 s74, s2, 3")
        e("s_mul_i32 s74, s74, (L_END-%s+4095)/4096*128" % name)
        e("v_lshlrev_b32 v2, 7, v0")
        e("v_add_u32 v2, s74, v2")
        e(f"v_min_u32 v2, L_END-{name}, v2")
        e("v_mov_b32 v3, s73")
        e("v_add_co_u32 v2, vcc, s72, v2")
        e("s_nop 1")
        e("v_addc_co_u32 v3, vcc, 0, v3, vcc")
        e("v_cmp_gt_u32 vcc, (L_END-%s+4095)/4096, v0" % name)
        e("s_nop 1")
        e("s_and_saveexec_b64 s[74:75], vcc")
        e("global_load_dword v163, v[2:3], off")
        e("s_mov_b64 exec, -1")
        e(f"{sk}:")
    if opt.get("pfc", 1) and not opt.get("unear", 1): pfcode()
    PFU = opt.get("pfu", 0)
    def pf_x():
        e("""v_and_b32 v2, 31, v0
        v_lshlrev_b32 v2, 10, v2
        v_lshrrev_b32 v3, 5, v0
        v_lshl_add_u32 v2, v3, 7, v2
        s_lshl_b32 s64, s20, 17
        s_lshl_b32 s65, s22, 15
        s_add_u32 s64, s64, s65
        s_lshl_b32 s65, s19, 8
        s_add_u32 s64, s64, s65""")
        e(f"buffer_load_dword v160, v2, {SX}, s64 offen")
    def pf_w():
        L1, L2, L3, LD = lab("PW"), lab("PW"), lab("PW"), lab("PW")
        e("""s_and_b32 s64, s20, 7
        v_lshlrev_b32 v2, 3, v0
        v_add_u32 v2, s64, v2
        v_mul_u32_u24 v3, 3584, v2
        v_mul_u32_u24 v2, 3072, v2
        s_lshl_b32 s64, s23, 7""")
        e("s_cmp_eq_u32 s19, 1"); e(f"s_cbranch_scc1 {L1}")
        e("s_cmp_eq_u32 s19, 3"); e(f"s_cbranch_scc1 {L3}")
        e("s_add_u32 s65, s64, 1024")
        e("s_lshr_b32 s64, s64, 1")
        e("s_cmp_eq_u32 s19, 0")
        e("s_cselect_b32 s64, s65, s64")
        e(f"buffer_load_dword v161, v2, {SW}, s64 offen")
        e(f"s_branch {LD}")
        e(f"{L3}:")
        e("s_mul_i32 s64, s23, 96")
        e("s_add_u32 s64, s64, 2048")
        e(f"buffer_load_dword v162, v3, {S1}, s64 offen offset:92")
        e(f"{L1}:")
        e(f"buffer_load_dword v161, v3, {S1}, s64 offen")
        e(f"{LD}:")
    if PFU == 1: pf_x(); pf_w()
    UL = opt.get("ul", -1)
    for _ in range(UL + 1): e("s_barrier")
    e(f"v_mov_b32 v{VE}, 0")
    e(f"s_mov_b32 s3, {WS_EP:#x}")
    e.vmem(f"buffer_load_dword v{VE}, v{VE}, {SS}, s3 offen sc1", "rs")
    e(f"""v_lshrrev_b32 v4, 5, v0
    v_and_b32 v6, 31, v0
    v_lshlrev_b32 v6, 4, v6
    v_lshl_add_u32 v6, v4, 10, v6
    v_lshlrev_b32 v{VE+1}, 4, v4
    s_lshl_b32 s64, s20, 7
    s_lshl_b32 s65, s23, 3
    s_add_u32 s64, s64, s65
    s_lshl_b32 s65, s19, 1
    s_add_u32 s64, s64, s65
    s_lshl_b32 s65, s64, 10""")
    e.vmem(f"buffer_load_dwordx4 {vr(L0,4)}, v6, {SX}, s65 offen {UNT}", "rs")
    e.vmem(f"buffer_load_dwordx4 {vr(L0+4,4)}, v6, {SX}, s65 offen offset:512 {UNT}", "rs")
    e("""s_add_u32 s66, s23, 8
    s_add_u32 s67, s22, 24
    s_cmp_eq_u32 s19, 1
    s_cselect_b32 s66, s67, s66
    s_add_u32 s67, s23, 32
    s_cmp_lt_u32 s23, 8
    s_cselect_b32 s67, s23, s67
    s_cmp_eq_u32 s19, 2
    s_cselect_b32 s66, s67, s66
    s_add_u32 s67, s23, 48
    s_cmp_eq_u32 s19, 3
    s_cselect_b32 s66, s67, s66
    v_lshrrev_b32 v2, 3, v0
    v_lshlrev_b32 v3, 4, v5
    s_cmp_ge_u32 s66, 52
    s_cbranch_scc1 L_CSD
    s_lshl_b32 s67, s66, 7
    s_cmp_ge_u32 s66, 24
    s_cbranch_scc1 L_CSW
    v_mul_u32_u24 v4, 3072, v2
    v_add_u32 v4, v4, v3""")
    e(f"s_mul_i32 s68, s20, {32*3072}")
    e("s_add_u32 s68, s68, s67")
    for t in range(4):
        e(f"buffer_load_dwordx4 {vr(CL+4*t,4)}, v4, {SW}, s68 offen {UNT}")
        if t < 3: e(f"s_add_u32 s68, s68, {8*3072}")
    e("s_branch L_CSD")
    e("L_CSW:")
    e("v_mul_u32_u24 v4, 3584, v2")
    e("v_add_u32 v4, v4, v3")
    e(f"s_mul_i32 s68, s20, {32*3584}")
    e("s_add_u32 s68, s68, s67")
    e(f"s_sub_u32 s68, s68, {24*128}")
    for t in range(4):
        e(f"buffer_load_dwordx4 {vr(CL+4*t,4)}, v4, {S1}, s68 offen {UNT}")
        if t < 3: e(f"s_add_u32 s68, s68, {8*3584}")
    e("L_CSD:")
    if opt.get("unear", 1):
        if opt.get("pfc", 1): pfcode()
        if opt.get("pf4", 1):
            sk = lab("NOP4")
            e("s_and_b32 s72, s23, 7")
            e("s_cmp_lg_u32 s72, 3")
            e(f"s_cbranch_scc1 {sk}")
            e("s_cmp_lg_u32 s19, 1")
            e(f"s_cbranch_scc1 {sk}")
            e("s_and_b32 s72, s20, 7")
            e("v_lshlrev_b32 v2, 3, v0")
            e("v_add_u32 v2, s72, v2")
            e("v_mul_u32_u24 v2, 3072, v2")
            e("s_lshl_b32 s72, s23, 7")
            e(f"buffer_load_dword v162, v2, {SW}, s72 offen offset:1024")
            e(f"{sk}:")
        i0 = e.lines.index("L_UTIL:")
        blk = e.lines[i0 + 1:] + ["  s_branch L_UTIL"]
        del e.lines[i0 + 1:]
        j0 = e.lines.index("  UINIT_HERE")
        e.lines[j0:j0 + 1] = blk
    if PFU == 2:
        e("s_mov_b32 s74, s64")
        pf_x(); pf_w()
        e("s_mov_b32 s64, s74")
    e(f"""s_mov_b32 s69, 0xffff0000
    s_mov_b32 s70, 0x3b000000
    s_lshl_b32 s64, s64, 4
    s_add_u32 s64, s64, {WS_RS:#x}
    v_lshlrev_b32 v14, 4, v0
    s_lshl_b32 s71, s23, 8
    s_add_u32 s72, s71, {512*4}
    v_add_u32 v15, s72, v14
    s_lshl_b32 s72, s22, 8
    s_add_u32 s72, s72, {1536*4 - 256}
    v_add_u32 v2, s72, v14
    v_cmp_le_u32 vcc, 16, v0
    s_lshl_b32 s72, s23, 7
    s_sub_u32 s72, s72, 512
    v_cndmask_b32 v15, v15, v2, vcc
    v_add_u32 v2, s72, v14
    v_cmp_le_u32 vcc, 32, v0
    s_mul_i32 s72, s23, 192
    s_add_u32 s72, s72, {2560*4 - 640}
    v_cndmask_b32 v15, v15, v2, vcc
    v_min_u32 v2, 51, v0
    v_lshlrev_b32 v2, 4, v2
    v_add_u32 v2, s72, v2
    v_cmp_le_u32 vcc, 40, v0
    s_nop 1
    v_cndmask_b32 v15, v15, v2, vcc""")
    def piece(n):
        if n == 0:
            e("s_cmp_ge_u32 s66, 52")
            e("s_cbranch_scc1 L_P0A")
            e(f"s_waitcnt vmcnt({4 + (2 if PFU == 2 else 0)})")
            e("s_branch L_P0B")
            e("L_P0A:")
            e(f"s_waitcnt vmcnt({2 if PFU == 2 else 0})")
            e("L_P0B:")
            for q in range(8):
                e(f"v_lshlrev_b32 v{U+2*q}, 16, v{L0+q}")
                e(f"v_and_b32 v{U+2*q+1}, s69, v{L0+q}")
            for q in range(4): e(f"v_add_f32 v{A+q}, v{U+q}, v{U+4+q}")
            for t in range(2, 4):
                for q in range(4): e(f"v_add_f32 v{A+q}, v{A+q}, v{U+4*t+q}")
            e(f"v_add_f32 v{A}, v{A}, v{A+1}")
            e(f"v_add_f32 v{A+2}, v{A+2}, v{A+3}")
            e(f"v_add_f32 v{A}, v{A}, v{A+2}")
            reduce32(e, [A], [A + 1])
            e(f"v_mul_f32 v{A}, s70, v{A}")
            e(f"v_add_u32 v{A+6}, {EPC:#x}, v{VE}")
            e(f"v_mov_b32 v2, {L_MISC}")
            e("v_mov_b32 v3, 0")
            e(f"ds_write_b32 v2, v{A+6}")
            e("v_lshl_add_u32 v2, v0, 2, v2")
            e("s_mov_b64 exec, -2")
            e("ds_write_b32 v2, v3")
            e("s_mov_b64 exec, -1")
        if n == 1:
            for q in range(16): e(f"v_sub_f32 v{U+q}, v{U+q}, v{A}")
            for q in range(4): e(f"v_mul_f32 v{L0+q}, v{U+q}, v{U+q}")
            for q in range(4, 16): e(f"v_fmac_f32 v{L0+(q&3)}, v{U+q}, v{U+q}")
            e(f"v_add_f32 v{L0}, v{L0}, v{L0+1}")
            e(f"v_add_f32 v{L0+2}, v{L0+2}, v{L0+3}")
            e(f"v_add_f32 v{A+4}, v{L0}, v{L0+2}")
            reduce32(e, [A + 4], [A + 5])
            e(f"v_mov_b32 v{A+5}, 0x3727c5ac")
            e(f"v_fma_f32 v{A+4}, v{A+4}, s70, v{A+5}")
            e(f"v_rsq_f32 v{A+4}, v{A+4}")
            e(f"v_readfirstlane_b32 s61, v{A+6}")
            e(f"v_mov_b32 v{A+7}, v{A+6}")
            e(f"v_mul_f32 v{A+5}, v{A}, v{A+4}")
            e(f"v_sub_f32 v{A+5}, 0, v{A+5}")
            e("s_mov_b32 s71, 0xff")
            e(f"v_bfi_b32 v{A+4}, s71, v{A+6}, v{A+4}")
            e(f"v_bfi_b32 v{A+5}, s71, v{A+6}, v{A+5}")
            e("s_mov_b32 exec_lo, 1")
            e("s_mov_b32 exec_hi, 1")
            e(f"buffer_store_dwordx4 {vr(A+4,4)}, v{VE+1}, {SS}, s64 offen sc1")
            e("s_mov_b64 exec, -1")
        if n == 2:
            e(f"s_waitcnt vmcnt({1 + (2 if PFU == 2 else 0)})")
            for q in range(4):
                e(f"v_lshlrev_b32 v{C0+2*q}, 16, v{CL+q}")
                e(f"v_and_b32 v{C0+2*q+1}, s69, v{CL+q}")
            for t in range(1, 4):
                for q in range(4):
                    e(f"v_lshlrev_b32 v{C1+2*q}, 16, v{CL+4*t+q}")
                    e(f"v_and_b32 v{C1+2*q+1}, s69, v{CL+4*t+q}")
                for q in range(8): e(f"v_add_f32 v{C0+q}, v{C0+q}, v{C1+q}")
            e("s_nop 1")
            for q in range(8): e(f"v_add_f32_dpp v{C0+q}, v{C0+q}, v{C0+q} row_ror:8 row_mask:0xf bank_mask:0xf")
            e("s_mov_b32 s72, 0xff00ff00")
            e("s_mov_b32 s73, 0xff00ff00")
            for q in range(4): e(f"v_cndmask_b32 v{C0+q}, v{C0+q}, v{C0+4+q}, s[72:73]")
            for sw in ("v_permlane16_swap_b32", "v_permlane32_swap_b32"):
                for q in range(4): e(f"v_mov_b32 v{C1+q}, v{C0+q}")
                e("s_nop 0")
                for q in range(4): e(f"{sw} v{C0+q}, v{C1+q}")
                for q in range(4): e(f"v_add_f32 v{C0+q}, v{C0+q}, v{C1+q}")
            e("s_mov_b32 s71, 0xff")
            e(f"v_bfe_u32 v{C1+2}, v0, 3, 1")
            for q in range(4): e(f"v_bfi_b32 v{C0+q}, s71, v{A+6}, v{C0+q}")
            e(f"v_lshlrev_b32 v{C1+1}, 5, v5")
            e(f"v_lshl_add_u32 v{C1+1}, v{C1+2}, 4, v{C1+1}")
            e(f"s_mul_i32 s71, s20, {3328*4}")
            e("s_lshl_b32 s72, s66, 8")
            e("s_add_u32 s71, s71, s72")
            e(f"s_add_u32 s71, s71, {WS_CS:#x}")
            e("s_cmp_ge_u32 s66, 52")
            e("s_cbranch_scc1 L_P2S")
            e("s_mov_b64 exec, 0xffff")
            e(f"buffer_store_dwordx4 {vr(C0,4)}, v{C1+1}, {SS}, s71 offen sc1")
            e("s_mov_b64 exec, -1")
            e("L_P2S:")
    def kvsetup():
        e(f"""v_and_b32 v10, 3, v0
        v_min_u32 v10, 2, v10
        s_sub_u32 s76, s20, 2
        v_add_u32 v10, s76, v10
        v_max_i32 v10, 0, v10
        v_lshlrev_b32 v10, 11, v10
        v_bfe_u32 v11, v0, 2, 1
        v_lshl_add_u32 v10, v11, 10, v10
        s_lshr_b32 s76, s23, 1
        s_lshl_b32 s76, s76, 7
        s_add_u32 s76, s76, {WS_F1:#x}
        v_mov_b32 v11, s61
        v_lshlrev_b32 v1, 4, v0
        s_lshr_b32 s52, s19, 1
        s_lshl_b32 s53, s23, 1
        s_add_u32 s53, s53, s52
        s_lshl_b32 s53, s53, 6
        s_and_b32 s54, s19, 1
        s_mul_i32 s54, s54, 6
        s_lshl_b32 s55, s20, 2
        s_add_u32 s54, s54, s55
        s_mul_i32 s55, s19, 6144""")
    def kvdma(lo=0, hi=6):
        for t in range(lo, hi):
            e(f"s_add_u32 s68, s54, {t}")
            e("s_sub_i32 s68, s68, 8")
            e("s_max_i32 s68, s68, 0")
            e("s_add_u32 s68, s68, s53")
            e("s_lshl_b32 s68, s68, 10")
            e(f"s_add_u32 m0, s55, {L_K + t*1024}")
            e("s_add_u32 s69, s68, 0x200000")
            e(f"buffer_load_dwordx4 v1, {SS}, s68 offen sc1 lds")
            e(f"s_add_u32 m0, s55, {L_V + t*1024}")
            e("s_nop 0")
            e(f"buffer_load_dwordx4 v1, {SS}, s69 offen sc1 lds")
    G0 = 84
    def gather():
        e(f"s_mov_b32 s71, {WS_CS:#x}")
        for g in range(16):
            e(f"buffer_load_dwordx4 {vr(G0+4*g,4)}, v15, {SS}, s71 offen sc1")
            e(f"s_add_u32 s71, s71, {3328*4}")
        e("s_lshl_b32 s71, s20, 11")
        e(f"s_add_u32 s71, s71, {WS_RS:#x}")
        for h in range(2):
            e(f"buffer_load_dwordx4 {vr(G0+64+4*h,4)}, v14, {SS}, s71 offen offset:{h*1024} sc1")
    PK = opt.get("pk", [0, 1, 1]); GK = opt.get("gk", 4); CK = opt.get("ck", 6)
    for n_, kk_ in enumerate(PK):
        if kk_ < 0: piece(n_)
    for k in range(UL + 1, 9):
        if k == PK[0] + 2: e("s_waitcnt lgkmcnt(0)")
        bstamp(k)
        e("s_barrier")
        for n_, kk_ in enumerate(PK):
            if kk_ == k: piece(n_)
        PW0 = opt.get("pfw", 0)
        if PW0 and PW0 <= k < 16:
            if k == PW0:
                srd(e, 44, 14, 1792 * 1024)
                srd(e, 48, 8, 512 * 1024)
                e("s_lshr_b32 s78, s2, 3")
                e("s_mul_i32 s79, s78, 57344")
                e("s_mul_i32 s3, s19, 14336")
                e("s_add_u32 s79, s79, s3")
                e("s_lshl_b32 s78, s78, 14")
                e("s_lshl_b32 s3, s19, 12")
                e("s_add_u32 s78, s78, s3")
            per = -(-18 // (opt.get("pfwe", 16) - PW0))
            for j in range(per * (k - PW0), min(18, per * (k - PW0 + 1))):
                if j < 14:
                    e(f"s_add_u32 s3, s79, {j*1024}")
                    e(f"buffer_load_dwordx4 v[120:123], v14, {S2}, s3 offen")
                else:
                    e(f"buffer_load_dwordx4 v[120:123], v14, {SO}, s78 offen offset:{(j-14)*1024}")
        if opt.get("pfl2", 0) and 8 <= k <= 10:
            if k == 8:
                srd(e, 44, 14, 1792 * 1024)
                srd(e, 48, 8, 512 * 1024)
                e("v_lshlrev_b32 v12, 7, v0")
                e("s_lshr_b32 s78, s2, 3")
            j = k - 8
            sk = lab("NOP2")
            if j < 2:
                e("s_mul_i32 s71, s78, 57344")
                e("s_lshl_b32 s72, s19, 13")
                e("s_add_u32 s71, s71, s72")
                if j == 1:
                    e("s_cmp_eq_u32 s19, 3")
                    e(f"s_cbranch_scc1 {sk}")
                    e("s_add_u32 s71, s71, 32768")
                e(f"buffer_load_dword v13, v12, {S2}, s71 offen")
            else:
                e("s_cmp_ge_u32 s19, 2")
                e(f"s_cbranch_scc1 {sk}")
                e("s_lshl_b32 s71, s78, 14")
                e("s_lshl_b32 s72, s19, 13")
                e("s_add_u32 s71, s71, s72")
                e(f"buffer_load_dword v13, v12, {SO}, s71 offen")
            e(f"{sk}:")
        if UST and k == 8:
            e(f"""s_lshl_b32 s3, s19, 12
            v_add_u32 v2, s3, v14
            v_add_u32 v3, {W1A[7]}, v2
            v_add_u32 v2, {W1A[6]}, v2""")
            for s_ in range(8): e(f"ds_read_b128 {vr(16+4*s_,4)}, v{2+(s_>>2)} offset:{(s_&3)*1024}")
            e(f"""s_lshl_b32 s64, s20, 2
            s_add_u32 s64, s64, s19
            s_lshl_b32 s65, s23, 8
            s_add_u32 s65, s65, s64
            s_lshl_b32 s65, s65, 10
            s_mul_i32 s66, s64, 112
            s_lshl_b32 s3, s23, 2
            s_add_u32 s66, s66, s3
            s_lshl_b32 s66, s66, 10
            s_add_u32 s66, s66, {WS_H:#x}
            s_waitcnt lgkmcnt(0)""")
        if UST and k >= 8:
            SP = opt.get("sper", 2)
            for s_ in range(SP * (k - 8), min(8, SP * (k - 7))):
                if s_ < 4: e(f"s_add_u32 s3, s65, {WS_KV + s_*0x10000:#x}")
                else: e(f"s_add_u32 s3, s66, {(s_-4)*1024}")
                e(f"buffer_store_dwordx4 {vr(16+4*s_,4)}, v14, {SS}, s3 offen sc1")
            if k == opt.get("ugk", 12): signal(4, 3, WS_F1, 2, 3, max(0, min(8, SP * (k - 7)) - 4))
            if k == opt.get("ugh", 15): signal(24, 3, WS_F1H, 2, 3)
        if k == opt.get("pf3k", 3) and opt.get("pf3", 1):
            sk = lab("NOP3")
            e("s_cmp_lg_u32 s19, 2")
            e(f"s_cbranch_scc1 {sk}")
            e("s_bitcmp1_b32 s23, 2")
            e(f"s_cbranch_scc1 {sk}")
            srd(e, 44, 14, 1792 * 1024)
            srd(e, 48, 8, 512 * 1024)
            e("v_lshlrev_b32 v2, 10, v0")
            e("s_lshr_b32 s72, s2, 3")
            e("s_mul_i32 s71, s72, 57344")
            e("s_mov_b32 exec_hi, 0xffffff")
            e(f"buffer_load_dword v160, v2, {S2}, s71 offen offset:384")
            e("s_lshl_b32 s71, s72, 14")
            e("s_mov_b64 exec, 0xffff")
            e(f"buffer_load_dword v161, v2, {SO}, s71 offen offset:384")
            e("s_mov_b64 exec, -1")
            e(f"{sk}:")
        if k == opt.get("pf2k", 2) and opt.get("pf2", 1):
            sk = lab("NOPF")
            e("s_cmp_lg_u32 s19, 1")
            e(f"s_cbranch_scc1 {sk}")
            srd(e, 44, 14, 1792 * 1024)
            srd(e, 48, 8, 512 * 1024)
            e("v_lshlrev_b32 v2, 7, v0")
            e("s_mul_i32 s71, s2, 7168")
            e("s_mov_b32 exec_hi, 0xffffff")
            e(f"buffer_load_dword v160, v2, {S2}, s71 offen")
            e("s_lshl_b32 s71, s2, 11")
            e("s_mov_b64 exec, 0xffff")
            e(f"buffer_load_dword v161, v2, {SO}, s71 offen")
            e("s_mov_b64 exec, -1")
            e(f"{sk}:")
        if k in (GK, CK, CK + 1):
            sk = lab("NOPOST")
            e("s_cmp_lg_u32 s19, 0")
            e(f"s_cbranch_scc1 {sk}")
            if k == GK: gather()
            if k == CK:
                e("s_mov_b32 s73, 0x20000")
                e("L_CHK:")
                e("s_waitcnt vmcnt(0)")
                e(f"v_xor_b32 v2, s61, v{G0}")
                for i in list(range(G0 + 1, G0 + 66)) + [G0 + 68, G0 + 69]: e(f"v_bitop3_b32 v2, v2, v{i}, s61 bitop3:0xf6")
                e("v_and_b32 v2, 0xff, v2")
                for i in (66, 67, 70, 71): e(f"v_bitop3_b32 v2, v2, v{G0+i}, s61 bitop3:0xf6")
                e("v_cmp_ne_u32 vcc, 0, v2")
                e("s_sub_u32 s73, s73, 1")
                e("s_cmp_eq_u32 s73, 0")
                e("s_cbranch_scc1 L_GOT")
                e("s_cmp_eq_u64 vcc, 0")
                e("s_cbranch_scc1 L_GOT")
                gather()
                e("s_branch L_CHK")
                e("L_GOT:")
            if k == CK + 1:
                e("s_mov_b32 s71, 0xffffff00")
                for i in list(range(G0, G0 + 66)) + [G0 + 68, G0 + 69]: e(f"v_and_b32 v{i}, s71, v{i}")
                for g in range(1, 16):
                    for h in range(4): e(f"v_add_f32 v{G0+h}, v{G0+h}, v{G0+4*g+h}")
                e(f"v_add_u32 v2, {L_ST}, v14")
                e(f"ds_write_b128 v2, {vr(G0+64,4)}")
                e(f"ds_write_b128 v2, {vr(G0+68,4)} offset:1024")
                e(f"ds_write_b128 v2, {vr(G0,4)} offset:2048")
                e("s_waitcnt lgkmcnt(0)")
                ldsadd(20, 2, 3)
            e(f"{sk}:")
    bflush()
    stamp(3)
    e.vm = []
    e("""s_lshr_b32 s52, s19, 1
    s_lshl_b32 s52, s52, 5
    s_and_b32 s62, s19, 1
    s_lshl_b32 s3, s62, 2
    s_add_u32 s52, s52, s3""")
    esetup()
    for c in LATE:
        ldswait(DONE + 4 * FIN["W2pre"][c], 4, 2, 3)
        issueW2(c)
    kvsetup()
    e.vmem(f"buffer_load_dword v4, v10, {SS}, s76 offen sc1", "kvf")
    for c in LATE:
        e.vwait(("w2", c))
        ldsadd(FULL + 4 * (8 + c), 2, 3)
    ldswait(DONE + 4 * FIN["KVpre"], 4, 2, 3)
    apoll_check(10, "s76", 11, 4, "kvf")
    stamp(4)
    kvdma()
    ldswait(DONE + 4 * FIN["Qpre"], 4, 2, 3)
    e(f"v_add_u32 v2, {L_ONE}, v1")
    for q in range(4): e(f"v_mov_b32 v{8+q}, 0x3f803f80")
    e("ds_write_b128 v2, v[8:11]")
    smasks()
    e("v_mov_b32 v6, 0xffff")
    e("v_mov_b32 v7, 0xffff0000")
    for q in range(8):
        e(f"v_cndmask_b32 v{140+q}, 0, v6, s[{64+4*q}:{65+4*q}]")
        e(f"v_cndmask_b32 v12, 0, v7, s[{66+4*q}:{67+4*q}]")
        e(f"v_or_b32 v{140+q}, v{140+q}, v12")
    e("ds_write_b128 v2, v[140:143] offset:1024")
    e("ds_write_b128 v2, v[144:147] offset:2048")
    e("s_add_u32 s96, s19, 4")
    e("s_mov_b32 s97, 0")
    e("s_waitcnt vmcnt(0) lgkmcnt(0)")
    ldsadd(16, 2, 3)
    stamp(5)

    e("L_ATT:")
    e.vm = []; e.lg = []
    Q = 8
    K = lambda u: 12 + 4 * u
    V = lambda u, g: 48 + ((u & 1) * 2 + g) * 4
    S = lambda b: 64 + 16 * b
    P, O = 112, 120
    VNEG, M0_, M1_, NM, MK = 136, 137, 138, 139, 140
    VA, VSTR = 148, 149
    e(f"v_mov_b32 v{VNEG}, {NEG:#x}")
    e(f"""s_and_b32 s3, s96, 3
    s_lshl_b32 s26, s20, 2
    s_add_u32 s26, s26, s3
    s_add_u32 s25, s26, 1
    s_min_u32 s25, s25, 9
    s_lshr_b32 s62, s96, 2
    s_lshl_b32 s27, s23, 1
    s_add_u32 s27, s27, s62
    v_lshlrev_b32 v1, 4, v0
    s_lshl_b32 s63, s96, 10
    s_add_u32 s63, s63, {L_Q}
    v_add_u32 v3, s63, v1
    s_mul_i32 s62, s62, 12288
    s_lshl_b32 s3, s3, 10
    s_add_u32 s3, s3, s62
    s_add_u32 s62, s3, {L_K}
    v_add_u32 v4, s62, v1
    v_lshrrev_b32 v5, 5, v0
    v_lshlrev_b32 v5, 2, v5
    v_bfe_u32 v6, v0, 2, 2
    v_add_u32 v5, v5, v6
    v_lshlrev_b32 v5, 4, v5
    v_bfe_u32 v6, v0, 1, 1
    v_lshl_add_u32 v5, v6, 9, v5
    v_and_b32 v6, 1, v0
    v_lshl_add_u32 v5, v6, 3, v5
    s_add_u32 s3, s3, {L_V + 8192}
    v_add_u32 v5, s3, v5
    v_mov_b32 v6, {L_ONE}
    v_mov_b32 v7, 1024
    s_mov_b32 s98, 0xffff
    s_mov_b32 s99, 0xffff
    v_cndmask_b32 v5, v6, v5, s[98:99]
    v_cndmask_b32 v{VSTR}, 0, v7, s[98:99]
    v_lshlrev_b32 v7, 3, v{VSTR}
    v_sub_u32 v{VA+2}, v5, v7""")
    stamp(6)
    def owed():
        sk = lab("NOOWE")
        e("s_cmp_eq_u32 s97, 0")
        e(f"s_cbranch_scc1 {sk}")
        keepl = list(e.lg)
        signal(12, 3, WS_F1B, 152, 153)
        e.lg = keepl
        e("s_mov_b32 s97, 0")
        e(f"{sk}:")
    if opt.get("owu", 2) == 0: owed()
    ldswait(16, 8, 2, 6)
    e(f"s_setprio {opt.get('aprio', 3)}")
    stamp(7)
    def fill(buf, val, diag):
        for j in range(16):
            a, b = (f"v{VNEG}", val) if diag else (val, f"v{VNEG}")
            e(f"v_cndmask_b32 v{S(buf)+j}, {a}, {b}, s[{64+2*j}:{65+2*j}]")
    def smfma(u, buf, cin):
        e.lwait(("K", u))
        e(f"v_mfma_f32_32x32x16_bf16 {vr(S(buf),16)}, {vr(K(u),4)}, {vr(Q,4)}, {cin}")
    def vread(u, par=None, va=None):
        if va is None:
            if u == 0: e(f"v_mov_b32 v{VA}, v5")
            else: e(f"v_sub_u32 v{VA}, v{VA}, v{VSTR}")
            va = VA
        for g in range(2):
            r = V(u if par is None else par, g)
            for h in range(2): e.lds(f"ds_read_b64_tr_b16 v[{r+2*h}:{r+2*h+1}], v{va} offset:{g*256 + h*128}", ("V", u))
    PD, PFR = S(2), S(2) + 8
    if opt.get("noatt"): e("s_branch L_P2DONE")
    e(f"v_add_u32 v2, {L_ONE}, v1")
    e.lds(f"ds_read_b128 {vr(Q,4)}, v3", "Q")
    for u in [0, 8, 1]: e.lds(f"ds_read_b128 {vr(K(u),4)}, v4 offset:{(8-u)*1024}", ("K", u))
    vread(0); vread(8, 1, VA + 2)
    smfma(0, 0, "0"); smfma(8, 2, "0"); smfma(1, 1, "0")
    e.lwait(("V", 0))
    e.lds(f"ds_read_b128 {vr(MK,4)}, v2 offset:1024", "MK")
    e.lds(f"ds_read_b128 {vr(MK+4,4)}, v2 offset:2048", "MK")
    for u in range(2, 8): e.lds(f"ds_read_b128 {vr(K(u),4)}, v4 offset:{(8-u)*1024}", ("K", u))
    e("s_nop 2")
    s0 = S(0)
    for j in range(16): e(f"v_cndmask_b32 v{s0+j}, v{S(2)+j}, v{s0+j}, s[{64+2*j}:{65+2*j}]")
    for j in range(16): e(f"v_exp_f32 v{s0+j}, v{s0+j}")
    for q in range(8): e(f"v_cvt_pk_bf16_f32 v{P+q}, v{s0+2*q}, v{s0+2*q+1}")
    e.lwait("MK")
    for q in range(8): e(f"v_and_b32 v{PD+q}, v{MK+q}, v{P+q}")
    e.lwait(("V", 8))
    e(f"v_mfma_f32_32x32x16_bf16 {vr(O,16)}, {vr(V(0,0),4)}, {vr(PD,4)}, 0")
    for q in range(8): e(f"v_bfi_b32 v{PFR+q}, v{MK+q}, 0, v{P+q}")
    e(f"v_mfma_f32_32x32x16_bf16 {vr(O,16)}, {vr(V(0,1),4)}, {vr(PD+4,4)}, {vr(O,16)}")
    e("s_cmp_lt_u32 s25, 9")
    e("s_cbranch_scc1 L_NOFAR")
    e(f"v_mfma_f32_32x32x16_bf16 {vr(O,16)}, {vr(V(1,0),4)}, {vr(PFR,4)}, {vr(O,16)}")
    e(f"v_mfma_f32_32x32x16_bf16 {vr(O,16)}, {vr(V(1,1),4)}, {vr(PFR+4,4)}, {vr(O,16)}")
    e("L_NOFAR:")
    vread(1)
    e("s_cmp_eq_u32 s25, 1")
    e("s_cbranch_scc1 L_FCHK")
    def pv(u, g): e(f"v_mfma_f32_32x32x16_bf16 {vr(O,16)}, {vr(V(u,g),4)}, {vr(P+4*g,4)}, {vr(O,16)}")
    for u in range(1, 8):
        s_ = S(u % 2)
        if u + 1 <= 7: smfma(u + 1, (u + 1) % 2, "0")
        for j in range(2): e(f"v_exp_f32 v{s_+j}, v{s_+j}")
        if u > 1: pv(u - 1, 1)
        if u + 1 <= 7: vread(u + 1)
        for j in range(2, 8): e(f"v_exp_f32 v{s_+j}, v{s_+j}")
        for q in range(4): e(f"v_cvt_pk_bf16_f32 v{P+q}, v{s_+2*q}, v{s_+2*q+1}")
        for j in range(8, 10): e(f"v_exp_f32 v{s_+j}, v{s_+j}")
        e.lwait(("V", u))
        pv(u, 0)
        for j in range(10, 16): e(f"v_exp_f32 v{s_+j}, v{s_+j}")
        for q in range(4, 8): e(f"v_cvt_pk_bf16_f32 v{P+q}, v{s_+2*q}, v{s_+2*q+1}")
        if u == opt.get("owu", 2): owed()
        if u < 7:
            e(f"s_cmp_eq_u32 s25, {u+1}")
            e(f"s_cbranch_scc1 L_FX{u&1}")
    e("L_FX1:")
    e("s_nop 1")
    pv(1, 1)
    e("s_branch L_FCHK")
    e("L_FX0:")
    e("s_nop 1")
    pv(0, 1)
    e("L_FCHK:")
    if opt.get("owu", 2): owed()
    e("s_mov_b32 s52, 0x1f800000")
    e("s_mov_b32 s53, 0x5f800000")
    e("s_mov_b32 s3, 0x7f800000")
    e("s_waitcnt lgkmcnt(0)")
    e("s_nop 7")
    e(f"v_add_f32 v6, |v{O}|, |v{O+1}|")
    e(f"v_add_f32 v7, |v{O+2}|, |v{O+3}|")
    e(f"v_add_f32 v2, |v{O+4}|, |v{O+5}|")
    e(f"v_add_f32 v3, |v{O+6}|, |v{O+7}|")
    e(f"v_cmp_le_f32 s[62:63], s52, v{O+8}")
    e(f"v_cmp_ge_f32 s[98:99], s53, v{O+8}")
    e("v_add_f32 v6, v6, v7")
    e("v_add_f32 v2, v2, v3")
    e("v_add_f32 v6, v6, v2")
    e("s_and_b64 s[62:63], s[62:63], s[98:99]")
    e("v_cmp_gt_f32 vcc, s3, v6")
    e("s_nop 0")
    e("s_and_b64 s[62:63], s[62:63], vcc")
    e("s_cmp_eq_u64 s[62:63], -1")
    if opt.get("forceslow"): e("s_cmp_eq_u32 s62, 12345")
    e("s_cbranch_scc1 L_P2DONE")
    e.lg = []
    e(f"v_mov_b32 v{M0_}, v{VNEG}")
    e(f"v_mov_b32 v{M1_}, v{VNEG}")
    fill(0, "0", True)
    e("s_nop 1")
    smfma(0, 0, vr(S(0), 16))
    smfma(1, 1, "0")
    for u in range(9):
        if u + 2 <= 8:
            if u + 2 == 8:
                fill((u + 2) % 3, "0", False); e("s_nop 1")
                smfma(u + 2, (u + 2) % 3, vr(S((u + 2) % 3), 16))
            else:
                smfma(u + 2, (u + 2) % 3, "0")
        if u == 0: e("s_nop 9")
        for q in range(8):
            m = M0_ + (q & 1)
            e(f"v_max3_f32 v{m}, v{S(u%3)+2*q}, v{S(u%3)+2*q+1}, v{m}")
        if u < 8:
            e(f"s_cmp_eq_u32 s25, {u+1}")
            e("s_cbranch_scc1 L_P1DONE")
    e("L_P1DONE:")
    vread(0)
    e(f"v_max_f32 v{M0_}, v{M0_}, v{M1_}")
    e(f"v_mov_b32 v{M1_}, v{M0_}")
    e("s_nop 1")
    e(f"v_permlane32_swap_b32 v{M0_}, v{M1_}")
    e("s_nop 1")
    e(f"v_max_f32 v{M0_}, v{M0_}, v{M1_}")
    e(f"v_sub_f32 v{NM}, 0, v{M0_}")
    e("s_nop 3")
    CB = S(2)
    for j in range(16): e(f"v_mov_b32 v{CB+j}, v{NM}")
    fill(0, f"v{NM}", True)
    e("s_nop 1")
    smfma(0, 0, vr(S(0), 16))
    for u in range(9):
        s = S(u % 2)
        if u + 1 <= 8:
            nb_ = (u + 1) % 2
            if u + 1 == 8:
                fill(nb_, f"v{NM}", False); e("s_nop 1")
                smfma(u + 1, nb_, vr(S(nb_), 16))
            else:
                smfma(u + 1, nb_, vr(CB, 16))
            vread(u + 1)
        if u == 0: e("s_nop 6")
        for j in range(8): e(f"v_exp_f32 v{s+j}, v{s+j}")
        for q in range(4): e(f"v_cvt_pk_bf16_f32 v{P+q}, v{s+2*q}, v{s+2*q+1}")
        for j in range(8, 16): e(f"v_exp_f32 v{s+j}, v{s+j}")
        e.lwait(("V", u))
        e(f"v_mfma_f32_32x32x16_bf16 {vr(O,16)}, {vr(V(u,0),4)}, {vr(P,4)}, {'0' if u == 0 else vr(O,16)}")
        for q in range(4, 8): e(f"v_cvt_pk_bf16_f32 v{P+q}, v{s+2*q}, v{s+2*q+1}")
        e("s_nop 1")
        e(f"v_mfma_f32_32x32x16_bf16 {vr(O,16)}, {vr(V(u,1),4)}, {vr(P+4,4)}, {vr(O,16)}")
        if u < 8:
            e(f"s_cmp_eq_u32 s25, {u+1}")
            e("s_cbranch_scc1 L_P2X")
    e("L_P2X:")
    e("s_waitcnt lgkmcnt(0)")
    e("s_nop 12")
    e("L_P2DONE:")
    e("s_lshl_b32 s3, s26, 5")
    e("s_add_u32 s3, s3, s27")
    e("s_lshl_b32 s3, s3, 10")
    e(f"s_add_u32 s3, s3, {WS_O:#x}")
    e(f"v_rcp_f32 v7, v{O+8}")
    e("s_nop 0")
    for j in range(8): e(f"v_mul_f32 v{O+j}, v{O+j}, v7")
    for q in range(4): e(f"v_cvt_pk_bf16_f32 v{P+q}, v{O+2*q}, v{O+2*q+1}")
    e(f"buffer_store_dwordx4 {vr(P,4)}, v1, {SS}, s3 offen {'' if opt.get('hplain') else 'sc1'}")
    gate('att')
    stamp(8)
    signal(8, 7, WS_F2)
    stamp(9)
    e("s_cmp_lg_u32 s2, 0")
    e("s_cbranch_scc1 L_FIN")
    e("s_cmp_lg_u32 s96, 1")
    e("s_cbranch_scc1 L_FIN")
    e("v_lshlrev_b32 v6, 7, v0")
    e("s_mov_b32 s63, 0x20000")
    e("L_BCHK:")
    for g in range(4):
        e(f"s_mov_b32 s62, {WS_F2 + g*8192:#x}")
        e(f"buffer_load_dword v{8+g}, v6, {SS}, s62 offen sc1")
    e("s_waitcnt vmcnt(0)")
    e("v_xor_b32 v7, s61, v8")
    for i in range(9, 12): e(f"v_bitop3_b32 v7, v7, v{i}, s61 bitop3:0xf6")
    e("v_cmp_ne_u32 vcc, 0, v7")
    e("s_sub_u32 s63, s63, 1")
    e("s_cmp_eq_u32 s63, 0")
    e("s_cbranch_scc1 L_FIN")
    e("s_cmp_lg_u64 vcc, 0")
    e("s_cbranch_scc1 L_BCHK")
    e("s_mov_b64 exec, 1")
    e("v_mov_b32 v6, 0")
    e("v_mov_b32 v7, s61")
    e(f"s_mov_b32 s62, {WS_EP:#x}")
    e(f"buffer_store_dword v7, v6, {SS}, s62 offen sc1")
    e("s_mov_b64 exec, -1")
    e("L_FIN:")
    e.vm = []; e.lg = []
    srd(e, 28, 10, 2048 * 1024)
    e(f"""v_lshrrev_b32 v7, 3, v0
    v_and_b32 v14, 7, v0
    v_lshlrev_b32 v8, 4, v14
    v_lshl_add_u32 v2, v7, 10, v8
    s_lshl_b32 s62, s58, 16
    s_lshl_b32 s3, s96, 13
    s_add_u32 s62, s62, s3
    s_lshl_b32 s3, s59, 7
    s_add_u32 s62, s62, s3""")
    e(f"buffer_load_dwordx4 v[8:11], v2, {SX}, s62 offen")
    e(f"""s_and_b32 s3, s96, 3
    s_lshl_b32 s3, s3, 10
    s_cmp_ge_u32 s96, 4
    s_mov_b32 s63, {BREG[0]}
    s_cselect_b32 s63, {BREG[2]}, s63
    s_mov_b32 s64, {BREG[1]}
    s_cselect_b32 s64, {BREG[3]}, s64
    s_add_u32 s63, s63, s3
    s_add_u32 s64, s64, s3
    v_and_b32 v12, 3, v0
    v_lshlrev_b32 v12, 1, v12
    v_xor_b32 v12, v12, v7
    v_bfe_u32 v13, v0, 2, 1
    v_xor_b32 v12, v12, v13
    v_lshlrev_b32 v12, 4, v12
    v_lshl_add_u32 v12, v7, 7, v12
    v_mov_b32 v15, s63
    v_mov_b32 v16, s64
    v_cmp_eq_u32 vcc, 1, v13
    s_nop 1
    v_cndmask_b32 v15, v15, v16, vcc
    v_add_u32 v24, v15, v12
    v_xor_b32 v25, 16, v24""")
    stamp(10)
    e("s_barrier")
    stamp(11)
    R = lambda src, h: 48 + src * 8 + h * 4
    for src in range(4):
        for h in range(2): e.lds(f"ds_read_b128 {vr(R(src,h),4)}, v{24+h} offset:{src*4096}", src)
    e("s_mov_b32 s3, 0xffff0000")
    e("s_waitcnt vmcnt(0)")
    for q in range(4):
        e(f"v_lshlrev_b32 v{32+2*q}, 16, v{8+q}")
        e(f"v_and_b32 v{33+2*q}, s3, v{8+q}")
    for src in range(4):
        e.lwait(src)
        for q in range(4): e(f"v_pk_add_f32 {pk(32+2*q)}, {pk(32+2*q)}, {pk(R(src,0)+2*q)}")
    for q in range(4): e(f"v_cvt_pk_bf16_f32 v{40+q}, v{32+2*q}, v{33+2*q}")
    e("buffer_store_dwordx4 v[40:43], v2, s[28:31], s62 offen " + opt.get("ost", ""))
    if opt.get("deadline"):
        e("v_readlane_b32 s4, v167, 0")
        e("L_DLY:")
        e("s_memrealtime s[6:7]")
        e("s_waitcnt lgkmcnt(0)")
        e("s_sub_u32 s8, s6, s4")
        e(f"s_cmp_lt_u32 s8, {opt['deadline']}")
        e("s_cbranch_scc1 L_DLY")
    if opt.get("delay"):
        tm = "s_memrealtime" if opt.get("delayrt") else "s_memtime"
        e(f"{tm} s[4:5]")
        e("s_waitcnt lgkmcnt(0)")
        e("L_DLY:")
        e(f"{tm} s[6:7]")
        e("s_waitcnt lgkmcnt(0)")
        e("s_sub_u32 s8, s6, s4")
        e(f"s_cmp_lt_u32 s8, {opt['delay']}")
        e("s_cbranch_scc1 L_DLY")
    if ST:
        e("L_DUMP:")
        stamp(12)
        e("s_waitcnt vmcnt(0)")
        stamp(13); stamp(14, True)
        if opt.get("dbgst") is not None:
            e("s_load_dwordx2 s[4:5], s[0:1], 56")
            e(f"s_cmp_lg_u32 s2, {opt['dbgst']}")
            e("s_cbranch_scc1 L_END")
            e("s_cmp_lg_u32 s18, 4")
            e("s_cbranch_scc1 L_END")
            e(f"v_readlane_b32 s6, v{VST}, 1")
            e(f"v_readlane_b32 s7, v{VST}, 0")
            e("s_waitcnt lgkmcnt(0)")
            e(f"v_subrev_u32 v3, s6, v{VST}")
            e(f"v_subrev_u32 v4, s7, v{VST}")
            e("v_cmp_eq_u32 vcc, 14, v0")
            e("s_nop 1")
            e("v_cndmask_b32 v3, v3, v4, vcc")
            e("v_lshlrev_b32 v2, 2, v0")
            e("s_mov_b64 exec, 0xffff")
            e("global_store_dword v2, v3, s[4:5]")
            e("s_endpgm")
        e("s_mul_i32 s3, s2, 12")
        e("s_add_u32 s3, s3, s18")
        e("s_lshl_b32 s3, s3, 7")
        e("s_add_u32 s3, s3, 0x1000000")
        e("v_lshl_add_u32 v2, v0, 2, s3")
        e("s_mov_b64 exec, 0xffffffff")
        e(f"global_store_dword v2, v{VST}, s[16:17]")
    e("L_END:")
    e("s_endpgm")
    return name, e.text(), kd(name, 168), (256, 768, LDS)

def build(opt, path):
    n, t, k, (g, b, lds) = gen(opt)
    ref = open(f"cdna_kernels/{NAME}.s.ref").read().split("\n")
    head = [l for l in ref if l.startswith(";") and "@launch" not in l and "Override launch" not in l and "grid=ceil" not in l]
    s = "\n".join(head[:10]) + "\n"
    dm = opt.get("dummy")
    if dm:
        ll = [f"; @launch kernel=dum_kernel grid=({dm[0]},1,1) block=({dm[1]},1,1) lds={dm[2]}\n", f"; @launch kernel={n} grid=({g},1,1) block=({b},1,1) lds={lds}\n"]
        s += "".join(ll if dm[4] == 0 else ll[::-1])
    else: s += f"; @launch grid=({g},1,1) block=({b},1,1) lds={lds}\n"
    s += '.amdgcn_target "amdgcn-amd-amdhsa--gfx950"\n.text\n'
    if dm:
        s += """.globl dum_kernel
.p2align 8
.type dum_kernel,@function
dum_kernel:
  s_memrealtime s[4:5]
  s_waitcnt lgkmcnt(0)
L_DD:
  s_memrealtime s[6:7]
  s_waitcnt lgkmcnt(0)
  s_sub_u32 s8, s6, s4
  s_cmp_lt_u32 s8, 1000
  s_cbranch_scc1 L_DD
  s_endpgm
"""
        k = k + ".p2align 6\n" + kd("dum_kernel", dm[3])
    s += f".globl {n}\n.p2align 8\n.type {n},@function\n" + t
    s += '.section .rodata,"a"\n.p2align 6\n' + k
    open(path, "w").write(s)

if __name__ == "__main__":
    import sys, json
    opt = json.loads(sys.argv[2]) if len(sys.argv) > 2 else {}
    build(opt, sys.argv[1])
```
